```python
import torch

def _softmax(x, axis=-1):
    return torch.softmax(x, dim=axis)
def _gelu(x):
    return torch.nn.functional.gelu(x, approximate="tanh")
def _silu(x):
    return torch.nn.functional.silu(x)
def _sigmoid(x):
    return torch.sigmoid(x)
def _layernorm(x, axis=-1, eps=1e-5):
    m = x.mean(dim=axis, keepdim=True)
    v = x.var(dim=axis, keepdim=True, unbiased=False)
    return (x - m) / torch.sqrt(v + eps)
def _scatter_add(tgt, idx, src, axis=0):
    return tgt.clone().index_add_(axis, idx, src)
def _segment_sum(src, seg, n):
    out = torch.zeros((n,) + src.shape[1:], dtype=src.dtype)
    return out.index_add_(0, seg, src)
def _pad(x, pw):
    flat = tuple(v for pair in reversed(pw) for v in pair)
    return torch.nn.functional.pad(x, flat)

kernel_name = 'gated_mix__ssm_conv_s4__grouped_kv_mqa__prompt'

def setup_inputs():

    _w = (lambda a: (lambda t: t.to(torch.bfloat16) if t.is_floating_point() else t)(torch.as_tensor(a)))
    def _A_setup():
        B, L, D, N = 1, 2048, 640, 128
        A_re = -(lambda _x: torch.exp(torch.as_tensor(_x)))((lambda *s: torch.randn(*s, dtype=torch.bfloat16) * 3.2)(D, N))
        A_im = torch.pi * (lambda *s: torch.randn(*s, dtype=torch.bfloat16) * 0.05)(D, N)
        B_re = (lambda *s: torch.randn(*s, dtype=torch.bfloat16) * 0.1)(D, N)
        B_im = (lambda *s: torch.randn(*s, dtype=torch.bfloat16) * 0.1)(D, N)
        C_re = (lambda *s: torch.randn(*s, dtype=torch.bfloat16) * 0.1)(D, N)
        C_im = (lambda *s: torch.randn(*s, dtype=torch.bfloat16) * 0.1)(D, N)
        log_dt = (lambda *s: torch.randn(*s, dtype=torch.bfloat16) * 0.05)(D) * 0.5 - 4.0
        Dskip = (lambda *s: torch.randn(*s, dtype=torch.bfloat16) * 0.05)(D)
        return {
            "u": _w((lambda *s: torch.randn(*s, dtype=torch.bfloat16) * 0.05)(B, L, D)),
            "A_re": _w(A_re),
            "A_im": _w(A_im),
            "B_re": _w(B_re),
            "B_im": _w(B_im),
            "C_re": _w(C_re),
            "C_im": _w(C_im),
            "log_dt": _w(log_dt),
            "Dskip": _w(Dskip),
        }
    _A_in = _A_setup()

    def _B_setup():
        B, S, D, H = 1, 2048, 640, 32
        Dh = D // H
        return {
            "x": _w((lambda *s: torch.randn(*s, dtype=torch.bfloat16) * 0.05)(B, S, D)),
            "wq": _w((lambda *s: torch.randn(*s, dtype=torch.bfloat16) * 0.8)(D, H * Dh)),
            "wk": _w((lambda *s: torch.randn(*s, dtype=torch.bfloat16) * 0.8)(D, Dh)),
            "wv": _w((lambda *s: torch.randn(*s, dtype=torch.bfloat16) * 0.05)(D, Dh)),
            "wo": _w((lambda *s: torch.randn(*s, dtype=torch.bfloat16) * 0.05)(H * Dh, D)),
        }
    _B_in = _B_setup()

    return {
        "A_u": _A_in["u"],
        "A_A_re": _A_in["A_re"],
        "A_A_im": _A_in["A_im"],
        "A_B_re": _A_in["B_re"],
        "A_B_im": _A_in["B_im"],
        "A_C_re": _A_in["C_re"],
        "A_C_im": _A_in["C_im"],
        "A_log_dt": _A_in["log_dt"],
        "A_Dskip": _A_in["Dskip"],
        "B_x": _B_in["x"],
        "B_wq": _B_in["wq"],
        "B_wk": _B_in["wk"],
        "B_wv": _B_in["wv"],
        "B_wo": _B_in["wo"],
        "gate_w": _w((lambda *s: torch.randn(*s, dtype=torch.bfloat16) * 0.05)(640) * 16.0),
    }

def reference(A_u, A_A_re, A_A_im, A_B_re, A_B_im, A_C_re, A_C_im, A_log_dt, A_Dskip, B_x, B_wq, B_wk, B_wv, B_wo, gate_w):
    def _A_ref(u, A_re, A_im, B_re, B_im, C_re, C_im, log_dt, Dskip):
        Bsz, L, D = u.shape
        dt = torch.exp(log_dt)[:, None]
        A = A_re + 1j * A_im
        Bc = B_re + 1j * B_im
        Cc = C_re + 1j * C_im
        logdA = dt * A
        dB = dt * Bc
        l = (lambda x, dt: x.to(dt))(torch.arange(L), A_re.dtype)
        P = torch.exp(logdA[:, :, None] * l[None, None, :])
        K = torch.einsum("dn,dnl,dn->dl", Cc, P, dB).real
        L2 = 2 * L
        Kp = _pad(K, ((0, 0), (0, L)))
        up = (lambda x, *d: x.permute(*d))(u, 0, 2, 1)
        up = _pad(up, ((0, 0), (0, 0), (0, L)))
        Kf = (lambda x, axes=(-2,-1): torch.fft.rfft2(x.float(), dim=axes))(Kp[:, None, :], axes=(-2, -1))
        Uf = (lambda x, axes=(-2,-1): torch.fft.rfft2(x.float(), dim=axes))(up[:, :, None, :], axes=(-2, -1))
        Yf = Uf * Kf[None, :, :, :]
        y = (lambda x, s, axes=(-2,-1): torch.fft.irfft2(x, s=s, dim=axes).to(torch.bfloat16))(Yf, (1, L2), axes=(-2, -1))[:, :, 0, :L]
        y = (lambda x, *d: x.permute(*d))(y, 0, 2, 1) + u * Dskip[None, None, :]
        return y

    def _B_ref(x, wq, wk, wv, wo):
        B, S, D = x.shape
        H = 32
        Dh = D // H
        q = (lambda x, *d: x.permute(*d))((x @ wq).reshape(B, S, H, Dh), 0, 2, 1, 3)
        k = x @ wk
        v = x @ wv
        scores = torch.einsum("bhqd,bkd->bhqk", q, k) * (Dh ** -0.5)
        p = _softmax(scores, axis=-1)
        o = torch.einsum("bhqk,bkd->bhqd", p, v)
        return (lambda x, *d: x.permute(*d))(o, 0, 2, 1, 3).reshape(B, S, H * Dh) @ wo

    x = A_u
    g = _sigmoid((x * gate_w).sum(-1, keepdims=True))
    a = _A_ref(x, A_A_re, A_A_im, A_B_re, A_B_im, A_C_re, A_C_im, A_log_dt, A_Dskip)
    b = _B_ref(x, B_wq, B_wk, B_wv, B_wo)
    return g * a + (1 - g) * b
```

```python
class Asm:
    def __init__(self):
        self.lines = []
        self.nlabel = 0
    def __call__(self, s, *a):
        for ln in s.strip("\n").split("\n"):
            self.lines.append("    " + ln.strip())
    def c(self, s):
        self.lines.append("    ; " + s)
    def label(self, name):
        self.lines.append(name + ":")
    def newlabel(self, pfx="L"):
        self.nlabel += 1
        return "%s_%d" % (pfx, self.nlabel)
    def text(self):
        return "\n".join(self.lines) + "\n"

def v(a, n=1):
    return "v%d" % a if n == 1 else "v[%d:%d]" % (a, a + n - 1)
def s(a, n=1):
    return "s%d" % a if n == 1 else "s[%d:%d]" % (a, a + n - 1)
def a_(a, n=1):
    return "a%d" % a if n == 1 else "a[%d:%d]" % (a, a + n - 1)

def srd(A, dst, ptr_lo, off, nbytes):
    if off:
        A("s_add_u32 s%d, s%d, 0x%x" % (dst, ptr_lo, off))
        A("s_addc_u32 s%d, s%d, 0" % (dst + 1, ptr_lo + 1))
    else:
        A("s_mov_b32 s%d, s%d" % (dst, ptr_lo))
        A("s_mov_b32 s%d, s%d" % (dst + 1, ptr_lo + 1))
    A("s_mov_b32 s%d, 0x%x" % (dst + 2, nbytes))
    A("s_mov_b32 s%d, 0x00020000" % (dst + 3))

def kernel_header(name):
    return ".globl %s\n.p2align 8\n.type %s,@function\n%s:\n" % (name, name, name)

def kernel_desc(name, vgpr, sgpr=102, accum=None):
    if accum is None:
        accum = (vgpr + 3) // 4 * 4
    return """.p2align 6
.amdhsa_kernel %s
  .amdhsa_next_free_vgpr %d
  .amdhsa_next_free_sgpr %d
  .amdhsa_accum_offset %d
  .amdhsa_group_segment_fixed_size 0
  .amdhsa_kernarg_size 144
  .amdhsa_user_sgpr_count 2
  .amdhsa_user_sgpr_kernarg_segment_ptr 1
  .amdhsa_system_sgpr_workgroup_id_x 1
.end_amdhsa_kernel
""" % (name, vgpr, sgpr, accum)

def compose(kernels):
    out = []
    for k in kernels:
        out.append("; @launch kernel=%s grid=(%d,1,1) block=(%d,1,1) lds=%d" % (k["name"], k["grid"], k["block"], k["lds"]))
    out.append('.amdgcn_target "amdgcn-amd-amdhsa--gfx950"')
    out.append(".text")
    seen = set()
    for k in kernels:
        if k["name"] in seen: continue
        seen.add(k["name"])
        out.append(kernel_header(k["name"]) + k["body"])
    out.append('.section .rodata,"a"')
    seen = set()
    for k in kernels:
        if k["name"] in seen: continue
        seen.add(k["name"])
        out.append(kernel_desc(k["name"], k["vgpr"], k.get("sgpr", 102), k.get("accum")))
    return "\n".join(out) + "\n"

WS_Q   = 0x0000000
WS_KV  = 0x0280000
WS_G   = 0x02B0000
WS_UT  = 0x0300000
WS_KC  = 0x0580000
WS_O   = 0x0800000
WS_AT  = 0x0A80000
NQ = 2048 * 640 * 2
NKV = 64 * 2560
```

```python
from asmlib import *

def set_exec(A, n):
    m = (1 << n) - 1
    A("s_mov_b32 exec_lo, 0x%x" % (m & 0xffffffff))
    A("s_mov_b32 exec_hi, 0x%x" % (m >> 32))

class Gemm:
    def __init__(self, A, R, KC, D, vbase, sW, srdX, srdW, ldsbase=0, NW=16):
        self.A = A; self.R = R; self.D = D; self.KC = KC; self.NW = NW
        self.sW = sW; self.srdX = srdX; self.srdW = srdW; self.lds = ldsbase
        self.wch = KC * 160
        self.pitch = KC * 2
        self.cpr = KC // 8
        self.buf = self.wch + R * self.pitch
        self.wsl = KC * 10 // NW
        self.nwi = (self.wsl + 63) // 64
        self.nx = R * self.cpr // (64 * NW)
        self.rpi = 64 // self.cpr
        self.ns = KC // 32
        b = vbase
        self.vWo = b; b += self.nwi
        self.vXo = b; b += self.nx
        self.vWr = b; b += 1
        self.vXr = b; b += self.ns
        self.t0 = b; self.t1 = b + 1; self.t2 = b + 2; b += 3
        self.nregs = b - vbase
        self.issued = []
        self.bias = 0
    def setup(self, vLane, vI, vG):
        A = self.A; t0, t1, t2 = self.t0, self.t1, self.t2
        for j in range(self.nwi):
            d = self.vWo + j
            A("s_mul_i32 s100, s%d, %d" % (self.sW, self.wsl))
            if j: A("s_add_u32 s100, s100, %d" % (64 * j))
            A("v_add_u32 v%d, s100, v%d" % (t0, vLane))
            A("v_mul_u32_u24 v%d, 6554, v%d" % (t1, t0))
            A("v_lshrrev_b32 v%d, 16, v%d" % (t1, t1))
            A("v_mul_u32_u24 v%d, 10, v%d" % (d, t1))
            A("v_sub_u32 v%d, v%d, v%d" % (t0, t0, d))
            A("v_and_b32 v%d, 0x73, v%d" % (d, t1))
            A("v_and_b32 v%d, 4, v%d" % (t2, t1))
            A("v_lshl_or_b32 v%d, v%d, 1, v%d" % (d, t2, d))
            A("v_and_b32 v%d, 8, v%d" % (t2, t1))
            A("v_lshrrev_b32 v%d, 1, v%d" % (t2, t2))
            A("v_or_b32 v%d, v%d, v%d" % (d, d, t2))
            A("v_mul_u32_u24 v%d, 1280, v%d" % (d, d))
            A("v_lshl_add_u32 v%d, v%d, 4, v%d" % (d, t0, d))
        sh = {8: 3, 16: 4}[self.cpr]
        for q in range(self.nx):
            d = self.vXo + q
            A("v_lshrrev_b32 v%d, %d, v%d" % (t0, sh, vLane))
            A("s_mul_i32 s100, s%d, %d" % (self.sW, self.rpi * self.nx))
            if q: A("s_add_u32 s100, s100, %d" % (self.rpi * q))
            A("v_add_u32 v%d, s100, v%d" % (t1, t0))
            if self.cpr == 8:
                A("v_bfe_u32 v%d, v%d, 1, 3" % (t1, t1))
            else:
                A("v_and_b32 v%d, 15, v%d" % (t1, t1))
            A("v_and_b32 v%d, %d, v%d" % (t2, self.cpr - 1, vLane))
            A("v_xor_b32 v%d, v%d, v%d" % (t2, t2, t1))
            A("v_add_u32 v%d, %d, v%d" % (t0, self.rpi * q, t0))
            A("v_mul_u32_u24 v%d, 1280, v%d" % (d, t0))
            A("v_lshl_add_u32 v%d, v%d, 4, v%d" % (d, t2, d))
        A("v_lshrrev_b32 v%d, 1, v%d" % (t0, vG))
        A("v_lshlrev_b32 v%d, 4, v%d" % (t0, t0))
        A("v_and_b32 v%d, 1, v%d" % (t1, vG))
        A("v_lshl_add_u32 v%d, v%d, 2, v%d" % (t0, t1, t0))
        A("v_lshrrev_b32 v%d, 2, v%d" % (t1, vI))
        A("v_add_u32 v%d, v%d, v%d" % (t0, t0, t1))
        A("v_mul_u32_u24 v%d, 160, v%d" % (self.vWr, t0))
        A("v_and_b32 v%d, 3, v%d" % (t1, vLane))
        A("v_mul_u32_u24 v%d, 40, v%d" % (t1, t1))
        A("v_add_u32 v%d, v%d, v%d" % (self.vWr, self.vWr, t1))
        if self.lds: A("v_add_u32 v%d, %d, v%d" % (self.vWr, self.lds, self.vWr))
        for s_ in range(self.ns):
            if self.cpr == 8: A("v_lshrrev_b32 v%d, 1, v%d" % (t0, vI))
            else: A("v_mov_b32 v%d, v%d" % (t0, vI))
            A("v_add_u32 v%d, %d, v%d" % (t1, 4 * s_, vG))
            A("v_xor_b32 v%d, v%d, v%d" % (t0, t0, t1))
            A("v_lshlrev_b32 v%d, 4, v%d" % (t0, t0))
            A("v_mul_u32_u24 v%d, %d, v%d" % (t1, self.pitch, vI))
            A("v_add3_u32 v%d, v%d, v%d, %d" % (self.vXr + s_, t0, t1, 0) if False else "v_add_u32 v%d, v%d, v%d" % (self.vXr + s_, t0, t1))
            A("v_add_u32 v%d, %d, v%d" % (self.vXr + s_, self.lds + self.wch, self.vXr + s_))
    def add_read_offsets(self, sWoff=None, sXoff=None):
        A = self.A
        if sWoff is not None: A("v_add_u32 v%d, s%d, v%d" % (self.vWr, sWoff, self.vWr))
        if sXoff is not None:
            for s_ in range(self.ns): A("v_add_u32 v%d, s%d, v%d" % (self.vXr + s_, sXoff, self.vXr + s_))
    def init_soffs(self, sRow0, sN0x2, sXg, sM0w, sM0x):
        A = self.A
        self.sXg, self.sWg, self.sM0w, self.sM0x = sXg, sN0x2, sM0w, sM0x
        A("s_mul_i32 s100, s%d, %d" % (self.sW, self.rpi * self.nx))
        A("s_add_u32 s100, s100, s%d" % sRow0)
        A("s_mul_i32 s%d, s100, 1280" % sXg)
        A("s_mul_i32 s%d, s%d, %d" % (sM0w, self.sW, self.wsl * 16))
        A("s_mul_i32 s%d, s%d, %d" % (sM0x, self.sW, self.nx * 1024))
        A("s_add_u32 s%d, s%d, %d" % (sM0x, sM0x, self.wch + self.lds))
        if self.lds: A("s_add_u32 s%d, s%d, %d" % (sM0w, sM0w, self.lds))
    def dma(self, c):
        A = self.A
        b = (c % self.D) * self.buf
        for q in range(self.nx):
            A("s_add_u32 m0, s%d, %d" % (self.sM0x, b + q * 1024))
            A("s_add_u32 s101, s%d, %d" % (self.sXg, c * self.pitch))
            A("buffer_load_dwordx4 v%d, s[%d:%d], s101 offen lds" % (self.vXo + q, self.srdX, self.srdX + 3))
            self.issued.append(c)
        for j in range(self.nwi):
            n = min(64, self.wsl - 64 * j)
            A("s_add_u32 m0, s%d, %d" % (self.sM0w, b + 1024 * j))
            A("s_add_u32 s101, s%d, %d" % (self.sWg, c * self.KC * 1280))
            if n < 64: set_exec(A, n)
            A("buffer_load_dwordx4 v%d, s[%d:%d], s101 offen lds" % (self.vWo + j, self.srdW, self.srdW + 3))
            if n < 64: A("s_mov_b64 exec, -1")
            self.issued.append(c)
    def other(self, n=1):
        self.issued += ["x"] * n
    def wait_chunk(self, c):
        last = max(i for i, x in enumerate(self.issued) if x == c)
        n = len(self.issued) - 1 - last
        assert n <= 63
        self.A("s_waitcnt vmcnt(%d)" % n)
    def wread(self, c, s_, t, dst):
        b = (c % self.D) * self.buf
        base, off = self.rbase(self.vWr, b + s_ * 32 * 160 + 8 * t)
        for h in range(2):
            self.A("ds_read_b64_tr_b16 %s, v%d offset:%d" % (v(dst + 2 * h, 2), base, off + h * 1280))
    def xread(self, c, s_, lt, dst):
        b = (c % self.D) * self.buf
        base, off = self.rbase(self.vXr + s_, b + lt * 16 * self.pitch)
        self.A("ds_read_b128 %s, v%d offset:%d" % (v(dst, 4), base, off))
    def rbase(self, reg, off):
        off -= self.bias
        assert 0 <= off < 65536 - 1300, off
        return reg, off
    def set_bias(self, bias):
        d = bias - self.bias
        if d:
            for r in [self.vWr] + [self.vXr + s_ for s_ in range(self.ns)]:
                self.A("v_add_u32 v%d, %d, v%d" % (r, d & 0xffffffff, r))
        self.bias = bias
```

```python
from asmlib import *
import struct, math

def f32bits(x):
    return struct.unpack("<I", struct.pack("<f", x))[0]

GMOD = ""
LOG2E = 1.4426950408889634
CSCALE = (20 ** -0.5) * LOG2E

sW = 6
vLane = 1

def stamp(A, timing, n):
    if timing is not False: A("s_memtime s[%d:%d]" % (60 + 2 * n, 61 + 2 * n))

def dump_stamps(A, timing, nst, end, wg, vt=2):
    if timing is False or (timing is not True and (timing >= 160) != (wg >= 160)): return
    if timing is not True: wg = timing
    A("s_waitcnt lgkmcnt(0)")
    A("s_cmp_eq_u32 s2, %d" % wg)
    A("s_cbranch_scc0 %s" % end)
    A("s_load_dwordx2 s[40:41], s[0:1], 128")
    A("s_and_b32 s50, s%d, 3" % sW)
    A("s_cmp_eq_u32 s50, 0")
    A("s_cbranch_scc0 %s" % end)
    A("s_lshl_b32 s50, s%d, 4" % sW)
    A("v_mov_b32 v%d, s50" % vt)
    A("s_waitcnt lgkmcnt(0)")
    for i in range(1, nst):
        A("s_sub_u32 s51, s%d, s60" % (60 + 2 * i))
        A("v_mov_b32 v%d, s51" % (vt + 1))
        A("global_store_dword v%d, v%d, s[40:41] offset:%d" % (vt, vt + 1, 4 * (i - 1)))

def x_dma_setup(A, vX, t0, t1):
    for e in range(2):
        A("v_lshrrev_b32 v%d, 3, v%d" % (t0, vLane))
        if e: A("v_add_u32 v%d, 8, v%d" % (t0, t0))
        A("v_mul_u32_u24 v%d, 1280, v%d" % (vX + e, t0))
        A("v_lshrrev_b32 v%d, 4, v%d" % (t0, vLane))
        if e: A("v_add_u32 v%d, 4, v%d" % (t0, t0))
        A("v_and_b32 v%d, 7, v%d" % (t1, vLane))
        A("v_xor_b32 v%d, v%d, v%d" % (t0, t0, t1))
        A("v_lshl_add_u32 v%d, v%d, 4, v%d" % (vX + e, t0, vX + e))

def x_read_setup(A, vXr, sRowOff128, xbase, t0, t1, t2):
    A("v_and_b32 v%d, 31, v%d" % (t0, vLane))
    A("v_bfe_u32 v%d, v%d, 1, 3" % (t1, vLane))
    A("v_lshrrev_b32 v%d, 5, v%d" % (t2, vLane))
    A("v_xor_b32 v%d, v%d, v%d" % (t1, t1, t2))
    A("v_lshlrev_b32 v%d, 7, v%d" % (t0, t0))
    A("v_add_u32 v%d, s%d, v%d" % (t0, sRowOff128, t0))
    if xbase: A("v_add_u32 v%d, %d, v%d" % (t0, xbase, t0))
    for s_ in range(4):
        A("v_xor_b32 v%d, %d, v%d" % (t2, 2 * s_, t1))
        A("v_lshl_add_u32 v%d, v%d, 4, v%d" % (vXr + s_, t2, t0))

def role_q(A, end, timing):
    D = 5; BUF = 32768; WOFF = 16384
    SX, SWT, SO = 8, 12, 16
    sRow0, sN0b, sJ = 20, 21, 22
    t0, t1, t2 = 2, 3, 4
    A("s_cmp_ge_u32 s%d, 12" % sW)
    A("s_cbranch_scc1 %s" % end)
    A("s_load_dwordx2 s[32:33], s[0:1], 0")
    A("s_load_dwordx2 s[34:35], s[0:1], 80")
    A("s_load_dwordx2 s[4:5], s[0:1], 136")
    A("s_sub_u32 s23, s2, 160")
    A("s_and_b32 s%d, s23, 15" % sRow0)
    A("s_lshl_b32 s%d, s%d, 7" % (sRow0, sRow0))
    A("s_lshr_b32 s%d, s23, 4" % sN0b)
    A("s_lshl_b32 s%d, s%d, 8" % (sN0b, sN0b))
    A("s_cmp_lt_u32 s%d, 4" % sW)
    A("s_cbranch_scc1 q_comp")
    vX, vWd = 8, 10
    A("s_sub_u32 s%d, s%d, 4" % (sJ, sW))
    x_dma_setup(A, vX, t0, t1)
    A("v_lshrrev_b32 v%d, 4, v%d" % (t0, vLane))
    A("v_mul_u32_u24 v%d, 1280, v%d" % (vWd, t0))
    A("v_and_b32 v%d, 1, v%d" % (t1, t0))
    A("v_lshlrev_b32 v%d, 1, v%d" % (t1, t1))
    A("v_lshrrev_b32 v%d, 1, v%d" % (t0, t0))
    A("v_lshl_add_u32 v%d, v%d, 3, v%d" % (t1, t0, t1))
    A("v_and_b32 v%d, 15, v%d" % (t0, vLane))
    A("v_xor_b32 v%d, v%d, v%d" % (t0, t0, t1))
    A("v_lshl_add_u32 v%d, v%d, 4, v%d" % (vWd, t0, vWd))
    sXg, sWg, sM0 = 24, 25, 26
    A("s_lshl_b32 s27, s%d, 4" % sJ)
    A("s_add_u32 s27, s27, s%d" % sRow0)
    A("s_mul_i32 s%d, s27, 1280" % sXg)
    A("s_mul_i32 s%d, s%d, %d" % (sWg, sJ, 8 * 1280))
    A("s_add_u32 s%d, s%d, s%d" % (sWg, sWg, sN0b))
    A("s_lshl_b32 s%d, s%d, 11" % (sM0, sJ))
    A("s_waitcnt lgkmcnt(0)")
    srd(A, SX, 32, 0, NQ)
    srd(A, SWT, 34, 0, 640 * 1280)
    srd(A, SO, 4, WS_Q, NQ)
    issued = []
    def dma(c):
        b = (c % D) * BUF
        for e in range(2):
            A("s_add_u32 m0, s%d, %d" % (sM0, b + e * 1024))
            A("s_add_u32 s28, s%d, %d" % (sXg, c * 128))
            A("buffer_load_dwordx4 v%d, s[%d:%d], s28 offen lds" % (vX + e, SX, SX + 3))
            issued.append(c)
        for e in range(2):
            A("s_add_u32 m0, s%d, %d" % (sM0, b + WOFF + e * 1024))
            A("s_add_u32 s28, s%d, %d" % (sWg, (64 * c + 4 * e) * 1280))
            A("buffer_load_dwordx4 v%d, s[%d:%d], s28 offen lds" % (vWd, SWT, SWT + 3))
            issued.append(c)
    for c in range(D):
        dma(c)
    vSl, vSg = 12, 13
    A("v_lshrrev_b32 v%d, 4, v%d" % (t0, vLane))
    A("v_and_b32 v%d, 15, v%d" % (t1, vLane))
    A("v_mul_u32_u24 v%d, 272, v%d" % (vSl, t0))
    A("v_lshl_add_u32 v%d, v%d, 4, v%d" % (vSl, t1, vSl))
    A("s_mul_i32 s27, s%d, %d" % (sJ, 16 * 272))
    A("v_add_u32 v%d, s27, v%d" % (vSl, vSl))
    A("v_mul_u32_u24 v%d, 1280, v%d" % (vSg, t0))
    A("v_lshl_add_u32 v%d, v%d, 4, v%d" % (vSg, t1, vSg))
    for c in range(10):
        last = max(i for i, x in enumerate(issued) if x == c)
        A("s_waitcnt vmcnt(%d)" % (len(issued) - 1 - last))
        A("s_barrier")
        if c >= 2 and c - 2 + D <= 9:
            dma(c - 2 + D)
    A("s_barrier")
    for e in range(4):
        A("ds_read_b128 %s, v%d offset:%d" % (v(16 + 4 * e, 4), vSl, e * 4 * 272))
    A("s_add_u32 s28, s%d, s%d" % (sXg, sN0b))
    for e in range(4):
        A("s_waitcnt lgkmcnt(%d)" % (3 - e))
        A("buffer_store_dwordx4 %s, v%d, s[%d:%d], s28 offen offset:%d" % (v(16 + 4 * e, 4), vSg, SO, SO + 3, 0) if e == 0 else
          "s_add_u32 s29, s28, %d\nbuffer_store_dwordx4 %s, v%d, s[%d:%d], s29 offen" % (e * 4 * 1280, v(16 + 4 * e, 4), vSg, SO, SO + 3))
        if e: A("s_nop 0")
    stamp(A, timing, 3)
    dump_stamps(A, timing, 4, end, 160)
    A("s_branch %s" % end)
    A.label("q_comp")
    vXr, vWr = 8, 12
    XF = [[16, 20], [24, 28]]; WF = [[32, 36], [40, 44]]
    ACC = 64
    A("s_and_b32 s24, s%d, 1" % sW)
    A("s_lshl_b32 s24, s24, 13")
    x_read_setup(A, vXr, 24, 0, t0, t1, t2)
    A("v_lshrrev_b32 v%d, 5, v%d" % (t0, vLane))
    A("v_bfe_u32 v%d, v%d, 2, 2" % (t1, vLane))
    A("v_lshl_add_u32 v%d, v%d, 3, v%d" % (t0, t0, t1))
    A("v_lshlrev_b32 v%d, 8, v%d" % (t0, t0))
    A("v_bfe_u32 v%d, v%d, 1, 1" % (t2, vLane))
    A("v_lshl_add_u32 v%d, v%d, 3, v%d" % (t0, t2, t0))
    A("v_add_u32 v%d, %d, v%d" % (t0, WOFF, t0))
    A("v_and_b32 v%d, 1, v%d" % (t2, vLane))
    A("v_lshlrev_b32 v%d, 2, v%d" % (t2, t2))
    A("v_bfe_u32 v5, v%d, 4, 1" % vLane)
    A("v_or_b32 v%d, v%d, v5" % (t2, t2))
    A("s_lshr_b32 s25, s%d, 1" % sW)
    A("s_lshl_b32 s25, s25, 3")
    A("v_or_b32 v%d, s25, v%d" % (t2, t2))
    A("v_and_b32 v5, 1, v%d" % t1)
    A("v_lshlrev_b32 v5, 1, v5")
    A("v_xor_b32 v%d, v%d, v5" % (t2, t2))
    A("v_lshrrev_b32 v5, 1, v%d" % t1)
    A("v_lshlrev_b32 v5, 3, v5")
    A("v_xor_b32 v%d, v%d, v5" % (t2, t2))
    A("v_lshl_add_u32 v%d, v%d, 4, v%d" % (vWr, t2, t0))
    A("v_xor_b32 v%d, 2, v%d" % (t2, t2))
    A("v_lshl_add_u32 v%d, v%d, 4, v%d" % (vWr + 1, t2, t0))
    vSt = 14
    A("v_and_b32 v%d, 31, v%d" % (t0, vLane))
    A("v_mul_u32_u24 v%d, 272, v%d" % (vSt, t0))
    A("v_lshrrev_b32 v%d, 5, v%d" % (t0, vLane))
    A("v_lshl_add_u32 v%d, v%d, 6, v%d" % (vSt, t0, vSt))
    A("s_and_b32 s24, s%d, 1" % sW)
    A("s_mul_i32 s24, s24, %d" % (64 * 272))
    A("s_lshl_b32 s25, s25, 4")
    A("s_add_u32 s24, s24, s25")
    A("v_add_u32 v%d, s24, v%d" % (vSt, vSt))
    bias = [0]
    def set_bias(nb):
        d = nb - bias[0]
        if d:
            for r in list(range(vXr, vXr + 4)) + [vWr, vWr + 1]:
                A("v_add_u32 v%d, %d, v%d" % (r, d & 0xffffffff, r))
        bias[0] = nb
    def reads(S):
        c, s_ = divmod(S, 4); fb = S & 1
        b = (c % D) * BUF
        set_bias(b // 65536 * 65536)
        o = b - bias[0]
        for lg in range(2):
            A("ds_read_b128 %s, v%d offset:%d" % (v(XF[fb][lg], 4), vXr + s_, o + lg * 4096))
        for t in range(2):
            for h in range(2):
                A("ds_read_b64_tr_b16 %s, v%d offset:%d" % (v(WF[fb][t] + 2 * h, 2), vWr + t, o + s_ * 4096 + h * 1024))
    def mfma(S, i):
        fb = S & 1; lg, t = divmod(i, 2)
        a = ACC + 16 * (2 * lg + t)
        A("v_mfma_f32_32x32x16_bf16 %s, %s, %s, %s" % (v(a, 16), v(WF[fb][t], 4), v(XF[fb][lg], 4), "0" if S == 0 else v(a, 16)))
    A("s_barrier")
    stamp(A, timing, 1)
    reads(0)
    for S in range(40):
        c, s_ = divmod(S, 4)
        if S + 1 < 40:
            reads(S + 1)
            A("s_waitcnt lgkmcnt(6)")
        else:
            A("s_waitcnt lgkmcnt(0)")
        for i in range(4):
            mfma(S, i)
            if i == 0 and s_ == 2 and c + 1 < 10:
                A("s_barrier")
    stamp(A, timing, 2)
    A("s_nop 7")
    A("s_nop 3")
    for lg in range(2):
        for t in range(2):
            a = ACC + 16 * (2 * lg + t)
            for j in range(8):
                A("v_cvt_pk_bf16_f32 v%d, v%d, v%d" % (a + j, a + 2 * j, a + 2 * j + 1))
            for h in range(2):
                A("ds_write_b128 v%d, %s offset:%d" % (vSt, v(a + 4 * h, 4), lg * 32 * 272 + 32 * t + 16 * h))
    A("s_waitcnt lgkmcnt(0)")
    A("s_barrier")
    stamp(A, timing, 3)
    dump_stamps(A, timing, 4, end, 160)
    A("s_branch %s" % end)

def role_kv(A, end, timing):
    D = 5; XB = 65536; BUF = 16384
    SX, SK, SV, SO = 8, 12, 16, 20
    sRow0, sJ = 24, 25
    t0, t1, t2 = 2, 3, 4
    A("s_cmp_ge_u32 s%d, 12" % sW)
    A("s_cbranch_scc1 %s" % end)
    A("s_load_dwordx2 s[32:33], s[0:1], 0")
    A("s_load_dwordx4 s[36:39], s[0:1], 88")
    A("s_load_dwordx2 s[4:5], s[0:1], 136")
    A("s_sub_u32 s%d, s2, 240" % sRow0)
    A("s_lshl_b32 s%d, s%d, 7" % (sRow0, sRow0))
    A("s_cmp_lt_u32 s%d, 4" % sW)
    A("s_cbranch_scc1 kv_comp")
    vX, vL16 = 8, 10
    A("s_sub_u32 s%d, s%d, 4" % (sJ, sW))
    x_dma_setup(A, vX, t0, t1)
    A("v_lshlrev_b32 v%d, 4, v%d" % (vL16, vLane))
    sXg, sM0 = 26, 27
    A("s_lshl_b32 s28, s%d, 4" % sJ)
    A("s_add_u32 s28, s28, s%d" % sRow0)
    A("s_mul_i32 s%d, s28, 1280" % sXg)
    A("s_lshl_b32 s%d, s%d, 11" % (sM0, sJ))
    A("s_waitcnt lgkmcnt(0)")
    srd(A, SX, 32, 0, NQ)
    srd(A, SK, 36, 0, 25600)
    srd(A, SV, 38, 0, 25600)
    issued = []
    def dma(c):
        b = XB + (c % D) * BUF
        for e in range(2):
            A("s_add_u32 m0, s%d, %d" % (sM0, b + e * 1024))
            A("s_add_u32 s29, s%d, %d" % (sXg, c * 128))
            A("buffer_load_dwordx4 v%d, s[%d:%d], s29 offen lds" % (vX + e, SX, SX + 3))
            issued.append(c)
    A("s_lshl_b32 s30, s%d, 10" % sJ)
    for e in range(4):
        for (sr, base) in ((SK, 0), (SV, 32768)):
            A("s_add_u32 s29, s30, %d" % (e * 8192))
            A("s_add_u32 m0, s29, %d" % base)
            A("s_nop 0")
            A("buffer_load_dwordx4 v%d, s[%d:%d], s29 offen lds" % (vL16, sr, sr + 3))
            issued.append(0)
    for c in range(D):
        dma(c)
    for c in range(10):
        last = max(i for i, x in enumerate(issued) if x == c)
        A("s_waitcnt vmcnt(%d)" % (len(issued) - 1 - last))
        A("s_barrier")
        if c >= 2 and c - 2 + D <= 9:
            dma(c - 2 + D)
    A("s_branch %s" % end)
    A.label("kv_comp")
    vXr, vWr = 8, 12
    XF = [16, 20]; KF = [24, 28]; VF = [32, 36]
    DK, DV = 64, 80
    A("s_lshl_b32 s26, s%d, 12" % sW)
    x_read_setup(A, vXr, 26, XB, t0, t1, t2)
    set_off = XB
    A("v_lshrrev_b32 v%d, 5, v%d" % (t0, vLane))
    A("v_bfe_u32 v%d, v%d, 2, 2" % (t1, vLane))
    A("v_lshl_add_u32 v%d, v%d, 3, v%d" % (t0, t0, t1))
    A("v_mul_u32_u24 v%d, 40, v%d" % (vWr, t0))
    A("v_bfe_u32 v%d, v%d, 4, 1" % (t0, vLane))
    A("v_lshl_add_u32 v%d, v%d, 5, v%d" % (vWr, t0, vWr))
    A("v_and_b32 v%d, 3, v%d" % (t0, vLane))
    A("v_lshl_add_u32 v%d, v%d, 3, v%d" % (vWr, t0, vWr))
    def reads(S):
        c, s_ = divmod(S, 4); fb = S & 1
        o = (c % D) * BUF
        if o >= 65536:
            A("v_add_u32 v%d, %d, v%d" % (t0, 65536, vXr + s_))
            A("ds_read_b128 %s, v%d offset:%d" % (v(XF[fb], 4), t0, o - 65536))
        else:
            A("ds_read_b128 %s, v%d offset:%d" % (v(XF[fb], 4), vXr + s_, o))
        for h in range(2):
            A("ds_read_b64_tr_b16 %s, v%d offset:%d" % (v(KF[fb] + 2 * h, 2), vWr, S * 640 + h * 160))
        for h in range(2):
            A("ds_read_b64_tr_b16 %s, v%d offset:%d" % (v(VF[fb] + 2 * h, 2), vWr, 32768 + S * 640 + h * 160))
    A("s_barrier")
    reads(0)
    for S in range(40):
        c, s_ = divmod(S, 4); fb = S & 1
        if S + 1 < 40:
            reads(S + 1)
            A("s_waitcnt lgkmcnt(5)")
        else:
            A("s_waitcnt lgkmcnt(0)")
        A("v_mfma_f32_32x32x16_bf16 %s, %s, %s, %s" % (v(DK, 16), v(KF[fb], 4), v(XF[fb], 4), "0" if S == 0 else v(DK, 16)))
        if s_ == 2 and c + 1 < 10:
            A("s_barrier")
        A("v_mfma_f32_32x32x16_bf16 %s, %s, %s, %s" % (v(DV, 16), v(XF[fb], 4), v(VF[fb], 4), "0" if S == 0 else v(DV, 16)))
    A("s_waitcnt lgkmcnt(0)")
    srd(A, SO, 4, WS_KV, NKV)
    A("s_lshr_b32 s26, s%d, 5" % sRow0)
    A("s_add_u32 s26, s26, s%d" % sW)
    A("s_mul_i32 s26, s26, 2560")
    vK1, vK2, vV = 8, 9, 10
    A("v_and_b32 v%d, 31, v%d" % (t0, vLane))
    A("v_lshrrev_b32 v%d, 5, v%d" % (t1, vLane))
    A("v_lshlrev_b32 v%d, 4, v%d" % (vK1, t0))
    A("v_lshl_add_u32 v%d, v%d, 3, v%d" % (vK1, t1, vK1))
    A("v_lshlrev_b32 v%d, 30, v%d" % (vK2, t1))
    A("v_lshl_add_u32 v%d, v%d, 3, v%d" % (vK2, t0, vK2))
    A("v_mul_u32_u24 v%d, 320, v%d" % (vV, t1))
    A("v_lshl_add_u32 v%d, v%d, 4, v%d" % (vV, t0, vV))
    A("v_cmp_gt_u32 vcc, 20, v%d" % t0)
    A("v_mov_b32 v%d, 0x40000000" % t2)
    A("s_nop 1")
    A("v_cndmask_b32 v%d, v%d, v%d, vcc" % (vV, t2, vV))
    A("s_nop 7")
    for j in range(6):
        A("v_cvt_pk_bf16_f32 v%d, v%d, v%d" % (16 + j, DK + 2 * j, DK + 2 * j + 1))
    for j in range(6):
        A("v_lshlrev_b32 v%d, 16, v%d" % (DK + 2 * j, 16 + j))
        A("v_and_b32 v%d, 0xffff0000, v%d" % (DK + 2 * j + 1, 16 + j))
    A("s_mov_b32 s27, 0x%x" % f32bits(CSCALE))
    for r in range(12):
        A("v_mul_f32 v%d, s27, v%d" % (DK + r, DK + r))
    for j in range(6):
        A("v_cvt_pk_bf16_f32 v%d, v%d, v%d" % (16 + j, DK + 2 * j, DK + 2 * j + 1))
    for j in range(8):
        A("v_cvt_pk_bf16_f32 v%d, v%d, v%d" % (24 + j, DV + 2 * j, DV + 2 * j + 1))
    A("buffer_store_dwordx2 %s, v%d, s[%d:%d], s26 offen" % (v(16, 2), vK1, SO, SO + 3))
    A("buffer_store_dwordx2 %s, v%d, s[%d:%d], s26 offen offset:512" % (v(18, 2), vK1, SO, SO + 3))
    A("buffer_store_dwordx2 %s, v%d, s[%d:%d], s26 offen offset:1024" % (v(20, 2), vK2, SO, SO + 3))
    A("buffer_store_dwordx4 %s, v%d, s[%d:%d], s26 offen offset:1280" % (v(24, 4), vV, SO, SO + 3))
    A("buffer_store_dwordx4 %s, v%d, s[%d:%d], s26 offen offset:1920" % (v(28, 4), vV, SO, SO + 3))
    A("s_branch %s" % end)

CH = 34816
TAB = 17408
UB = 4 * CH
UP = 4576
CP0 = 2048
CPS = 4160
EX2 = 20480

GROWS = {0: [11], 1: [10], 2: [9], 3: [8], 4: [3], 5: [2], 6: [1], 7: [0],
         256: [14, 15], 258: [13], 260: [12, 7, 6], 262: [5], 264: [4],
         512: [18], 516: [17], 520: [16], 768: [22], 772: [21], 776: [20],
         1024: [25], 1032: [24], 1280: [27], 1288: [26], 1536: [29], 1544: [28], 1792: [31], 1800: [30]}

def role_ssm(A, end, timing):
    t0, t1, t2, t3 = 2, 3, 4, 5
    sD0, sCH, sHF = 7, 8, 9
    SX, SAT = 12, 36
    A("s_load_dwordx16 s[16:31], s[0:1], 0")
    A("s_load_dwordx2 s[32:33], s[0:1], 64")
    A("s_load_dwordx2 s[4:5], s[0:1], 136")
    A("s_and_b32 s10, s2, 7")
    A("s_mul_i32 s10, s10, 20")
    A("s_lshr_b32 s11, s2, 3")
    A("s_add_u32 s10, s10, s11")
    A("s_lshl_b32 s%d, s10, 2" % sD0)
    A("s_cmp_lt_u32 s%d, 8" % sW)
    A("s_cbranch_scc1 ssm_main")
    A("s_sub_u32 s10, s%d, 8" % sW)
    A("v_mul_u32_u24 v%d, 1280, v%d" % (t0, vLane))
    A("s_mul_i32 s11, s10, %d" % (256 * 1280))
    A("s_lshl_b32 s34, s%d, 1" % sD0)
    A("s_add_u32 s11, s11, s34")
    A("s_waitcnt lgkmcnt(0)")
    srd(A, SX, 16, 0, NQ)
    for e in range(4):
        A("s_add_u32 s34, s11, %d" % (e * 64 * 1280))
        A("buffer_load_dwordx2 %s, v%d, s[%d:%d], s34 offen %s" % (v(8 + 2 * e, 2), t0, SX, SX + 3, GMOD))
    A("v_mov_b32 v16, 0"); A("v_mov_b32 v17, 0"); A("v_mov_b32 v18, 0"); A("v_mov_b32 v19, 0")
    A("s_mul_i32 s34, s10, %d" % UP)
    A("s_add_u32 s34, s34, %d" % UB)
    A("v_lshlrev_b32 v%d, 4, v%d" % (t1, vLane))
    A("v_add_u32 v%d, s34, v%d" % (t1, t1))
    A("s_cmp_lt_u32 s10, 4")
    A("s_cbranch_scc0 ssm_nz")
    A("s_mov_b32 exec_lo, 0x3fffffff")
    A("s_mov_b32 exec_hi, 0")
    A("ds_write_b128 v%d, v[16:19]" % t1)
    A("s_mov_b64 exec, -1")
    A.label("ssm_nz")
    A("s_lshl_b32 s34, s10, 9")
    A("s_add_u32 s34, s34, %d" % (UB + 480))
    A("v_lshlrev_b32 v%d, 1, v%d" % (t1, vLane))
    A("v_add_u32 v%d, s34, v%d" % (t1, t1))
    for e in range(4):
        A("s_waitcnt vmcnt(%d)" % (3 - e))
        for cc in range(4):
            A("ds_write_b16%s v%d, v%d offset:%d" % ("_d16_hi" if cc & 1 else "", t1, 8 + 2 * e + (cc >> 1), cc * UP + e * 128))
    A("s_waitcnt lgkmcnt(0)")
    stamp(A, timing, 1)
    dump_stamps(A, timing, 2, end, 0)
    A("s_branch %s" % end)

    A.label("ssm_main")
    A("s_lshr_b32 s%d, s%d, 1" % (sCH, sW))
    A("s_and_b32 s%d, s%d, 1" % (sHF, sW))
    P = 8
    for i in range(6): A("v_mov_b32 v%d, 0" % (P + i))
    A("s_add_u32 s10, s%d, s%d" % (sD0, sCH))
    A("s_lshl_b32 s11, s10, 8")
    A("s_lshl_b32 s34, s%d, 7" % sHF)
    A("s_add_u32 s11, s11, s34")
    A("v_lshlrev_b32 v%d, 1, v%d" % (t0, vLane))
    A("v_add_u32 v%d, s11, v%d" % (t0, t0))
    A("s_lshl_b32 s11, s%d, 1" % sD0)
    A("s_waitcnt lgkmcnt(0)")
    for i in range(6):
        A("global_load_short_d16_hi v%d, v%d, s[%d:%d]" % (P + i, t0, 18 + 2 * i, 19 + 2 * i))
    A("s_load_dwordx2 s[34:35], s[30:31], s11")
    A("s_load_dwordx2 s[40:41], s[32:33], s11")
    srd(A, SAT, 4, WS_AT, NQ)
    vTab = 50
    A("s_mul_i32 s42, s%d, %d" % (sW, TAB))
    A("v_lshlrev_b32 v%d, 2, v%d" % (vTab, vLane))
    A("v_add_u32 v%d, s42, v%d" % (vTab, vTab))
    A("s_waitcnt lgkmcnt(0)")
    for (src, dst) in ((34, 43), (40, 44)):
        A("s_bitcmp1_b32 s%d, 1" % sCH)
        A("s_cselect_b32 s%d, s%d, s%d" % (dst, src + 1, src))
        A("s_lshl_b32 s45, s%d, 16" % dst)
        A("s_and_b32 s%d, s%d, 0xffff0000" % (dst, dst))
        A("s_bitcmp1_b32 s%d, 0" % sCH)
        A("s_cselect_b32 s%d, s%d, s45" % (dst, dst))
    sDskip = 44
    vDT = 6
    A("v_mov_b32 v%d, s43" % vDT)
    A("v_mul_f32 v%d, 0x%x, v%d" % (vDT, f32bits(LOG2E), vDT))
    A("v_exp_f32 v%d, v%d" % (vDT, vDT))
    A("s_nop 0")
    A("v_cvt_pk_bf16_f32 v%d, v%d, v%d" % (vDT, vDT, vDT))
    A("v_and_b32 v%d, 0xffff0000, v%d" % (vDT, vDT))
    Z, E1, E2, E4, W8, E256, E512, E1024, CB = 14, 16, 18, 20, 22, 24, 26, 28, 30
    GA, GB, FA, FB, T1, T2 = 32, 34, 38, 40, 42, 44
    PK = [46, 47, 48, 49]
    A("s_waitcnt vmcnt(0)")
    A("v_mul_f32 v%d, v%d, v%d" % (Z, vDT, P + 0))
    A("v_mul_f32 v%d, v%d, v%d" % (Z + 1, vDT, P + 1))
    A("v_mul_f32 v%d, v%d, v%d" % (P + 2, vDT, P + 2))
    A("v_mul_f32 v%d, v%d, v%d" % (P + 3, vDT, P + 3))
    A("v_mul_f32 v%d, 0x%x, v%d" % (Z, f32bits(LOG2E), Z))
    A("v_mul_f32 v%d, 0x%x, v%d" % (Z + 1, f32bits(1.0 / (2 * math.pi)), Z + 1))
    def cmul(d, a, b, t, conj=False):
        A("v_pk_mul_f32 %s, %s, %s op_sel_hi:[0,1]" % (v(t, 2), v(b, 2), v(a, 2)))
        A("v_pk_fma_f32 %s, %s, %s, %s op_sel:[1,1,0] op_sel_hi:[1,0,1] %s:[1,0,0]" % (v(d, 2), v(b, 2), v(a, 2), v(t, 2), "neg_hi" if conj else "neg_lo"))
    def anchor(d, m):
        if m == 1:
            A("v_exp_f32 v%d, v%d" % (t0, Z))
            A("v_fract_f32 v%d, v%d" % (t1, Z + 1))
        else:
            A("v_mul_f32 v%d, %s, v%d" % (t0, "%d.0" % m if m in (2, 4) else "0x%x" % f32bits(float(m)), Z))
            A("v_mul_f32 v%d, %s, v%d" % (t1, "%d.0" % m if m in (2, 4) else "0x%x" % f32bits(float(m)), Z + 1))
            A("v_exp_f32 v%d, v%d" % (t0, t0))
            A("v_fract_f32 v%d, v%d" % (t1, t1))
        A("v_cos_f32 v%d, v%d" % (d, t1))
        A("v_sin_f32 v%d, v%d" % (d + 1, t1))
        A("s_nop 0")
        A("v_mul_f32 v%d, v%d, v%d" % (d, d, t0))
        A("v_mul_f32 v%d, v%d, v%d" % (d + 1, d + 1, t0))
    anchor(W8, 8)
    anchor(E1, 1)
    cmul(CB, P + 4, P + 2, T1)
    A("v_xor_b32 v%d, 0x80000000, v%d" % (CB + 1, CB + 1))
    anchor(E256, 256)
    anchor(E512, 512)
    anchor(E1024, 1024)
    cmul(E2, E1, E1, T1)
    cmul(E4, E2, E2, T2)
    pki = [0]
    def put(src, rows):
        pk = PK[pki[0] & 3]; pki[0] += 1
        A("v_cvt_pk_bf16_f32 v%d, v%d, v%d" % (pk, src, src + 1))
        for r in rows:
            A("ds_write_b32 v%d, v%d offset:%d" % (vTab, pk, r * 272))
    fops = []
    fops.append(lambda: (A("v_mov_b32 v%d, 0x3f80" % PK[3]), A("ds_write_b32 v%d, v%d offset:%d" % (vTab, PK[3], 32 * 272))))
    fops.append(lambda: put(W8, [33]))
    cur = W8
    fr = [FA, FB]
    for j in range(2, 32):
        d = fr[j & 1]
        fops.append((lambda d=d, cur=cur, j=j: (cmul(d, cur, W8, T1), put(d, [32 + j]))))
        cur = d
    gops = []
    def gstep(d, a, b, base):
        gops.append(lambda: (cmul(d, a, b, T2, conj=True), put(d, GROWS[base])))
    gops.append(lambda: put(CB, GROWS[0]))
    g = [GA, GB]
    prev = CB
    for k in range(1, 8):
        gstep(g[k & 1], prev, E1, k); prev = g[k & 1]
    G256, G512, G1024, G1536 = 36, 52, 54, 56
    gstep(G256, CB, E256, 256)
    prev = G256
    for k, base in enumerate((258, 260, 262, 264)):
        gstep(g[k & 1], prev, E2, base); prev = g[k & 1]
    gstep(G512, CB, E512, 512)
    gstep(GA, G512, E4, 516); gstep(GB, GA, E4, 520)
    gstep(G256, G512, E256, 768)
    gstep(GA, G256, E4, 772); gstep(GB, GA, E4, 776)
    gstep(G1024, CB, E1024, 1024)
    gstep(GA, G1024, W8, 1032)
    gstep(GB, G1024, E256, 1280); gstep(GA, GB, W8, 1288)
    gstep(G1536, G1024, E512, 1536); gstep(GA, G1536, W8, 1544)
    gstep(GB, G1536, E256, 1792); gstep(GA, GB, W8, 1800)
    n = max(len(fops), len(gops))
    for i in range(n):
        if i < len(fops): fops[i]()
        if i < len(gops): gops[i]()
    stamp(A, timing, 1)
    AF, BF, DK = 64, 96, 16
    A("v_and_b32 v%d, 31, v%d" % (t0, vLane))
    A("v_mul_u32_u24 v%d, 272, v%d" % (t0, t0))
    A("v_lshrrev_b32 v%d, 5, v%d" % (t1, vLane))
    A("v_lshl_add_u32 v%d, v%d, 4, v%d" % (t0, t1, t0))
    A("v_add_u32 v%d, s42, v%d" % (t0, t0))
    for t in range(8):
        A("ds_read_b128 %s, v%d offset:%d" % (v(AF + 4 * t, 4), t0, 32 * t))
        A("ds_read_b128 %s, v%d offset:%d" % (v(BF + 4 * t, 4), t0, 32 * 272 + 32 * t))
    for t in range(8):
        A("s_waitcnt lgkmcnt(%d)" % (14 - 2 * t))
        A("v_mfma_f32_32x32x16_bf16 %s, %s, %s, %s" % (v(DK, 16), v(AF + 4 * t, 4), v(BF + 4 * t, 4), "0" if t == 0 else v(DK, 16)))
    vL16 = 7
    A("v_lshlrev_b32 v%d, 4, v%d" % (vL16, vLane))
    A("v_add_u32 v%d, s42, v%d" % (t0, vL16))
    A("s_xor_b32 s45, s%d, 1" % sW)
    A("s_mul_i32 s45, s45, %d" % TAB)
    A("v_add_u32 v%d, s45, v%d" % (t1, vL16))
    A("s_mul_i32 s46, s%d, %d" % (sCH, CH))
    A("s_nop 7")
    A("s_nop 1")
    A("s_cmp_eq_u32 s%d, 0" % sHF)
    A("s_cbranch_scc0 ssm_x1")
    A("ds_write_b128 v%d, %s" % (t0, v(DK + 8, 4)))
    A("ds_write_b128 v%d, %s offset:1024" % (t0, v(DK + 12, 4)))
    A("s_branch ssm_x2")
    A.label("ssm_x1")
    A("ds_write_b128 v%d, %s" % (t0, v(DK, 4)))
    A("ds_write_b128 v%d, %s offset:1024" % (t0, v(DK + 4, 4)))
    A.label("ssm_x2")
    A("s_waitcnt lgkmcnt(0)")
    A("s_barrier")
    stamp(A, timing, 2)
    R = 32
    A("ds_read_b128 %s, v%d" % (v(R, 4), t1))
    A("ds_read_b128 %s, v%d offset:1024" % (v(R + 4, 4), t1))
    A("v_and_b32 v%d, 31, v%d" % (t2, vLane))
    A("v_lshrrev_b32 v%d, 5, v%d" % (t3, vLane))
    A("v_lshlrev_b32 v%d, 4, v%d" % (t2, t2))
    A("s_add_u32 s47, s46, %d" % (CP0 + 4080))
    A("v_sub_u32 v%d, s47, v%d" % (t2, t2))
    A("s_waitcnt lgkmcnt(0)")
    A("s_cmp_eq_u32 s%d, 0" % sHF)
    A("s_cbranch_scc0 ssm_y1")
    for r in range(8): A("v_add_f32 v%d, v%d, v%d" % (DK + r, DK + r, R + r))
    A("v_lshlrev_b32 v%d, 9, v%d" % (t3, t3))
    A("v_sub_u32 v%d, v%d, v%d" % (t2, t2, t3))
    for j in range(4): A("v_cvt_pk_bf16_f32 v%d, v%d, v%d" % (R + j, DK + 2 * j, DK + 2 * j + 1))
    A("ds_write_b128 v%d, %s" % (t2, v(R, 4)))
    A("v_mov_b32 v%d, 0" % (R + 4)); A("v_mov_b32 v%d, 0" % (R + 5)); A("v_mov_b32 v%d, 0" % (R + 6)); A("v_mov_b32 v%d, 0" % (R + 7))
    A("s_add_u32 s47, s46, %d" % (CP0 + 4096))
    A("v_add_u32 v%d, s47, v%d" % (t3, vL16))
    A("s_mov_b64 exec, 0xf")
    A("ds_write_b128 v%d, %s" % (t3, v(R + 4, 4)))
    A("s_mov_b64 exec, -1")
    A("s_branch ssm_y2")
    A.label("ssm_y1")
    for r in range(8): A("v_add_f32 v%d, v%d, v%d" % (DK + r, DK + 8 + r, R + r))
    A("v_lshlrev_b32 v%d, 9, v%d" % (R + 12, t3))
    A("v_sub_u32 v%d, v%d, v%d" % (R + 12, t2, R + 12))
    A("v_subrev_u32 v%d, 1024, v%d" % (R + 12, R + 12))
    A("v_cvt_pk_bf16_f32 v%d, v%d, v%d" % (R + 0, DK + 0, DK + 0))
    A("v_cvt_pk_bf16_f32 v%d, v%d, v%d" % (R + 1, DK + 1, DK + 1))
    A("v_cvt_pk_bf16_f32 v%d, v%d, v%d" % (R + 2, DK + 1, DK + 2))
    A("v_cvt_pk_bf16_f32 v%d, v%d, v%d" % (R + 3, DK + 2, DK + 2))
    A("ds_write_b128 v%d, %s" % (R + 12, v(R, 4)))
    A("v_lshlrev_b32 v%d, 10, v%d" % (R + 13, t3))
    A("v_sub_u32 v%d, v%d, v%d" % (R + 13, t2, R + 13))
    A("v_subrev_u32 v%d, 2560, v%d" % (R + 13, R + 13))
    A("v_and_b32 v%d, 1, v%d" % (R + 14, vLane))
    A("v_cmp_eq_u32 vcc, 1, v%d" % (R + 14))
    A("s_nop 1")
    for k in range(2):
        K8, K0 = DK + 4 + 2 * k, DK + 5 + 2 * k
        o = R + 4 + 4 * k
        A("v_cndmask_b32 v%d, v%d, v%d, vcc" % (R + 15, K0, K8))
        A("v_cvt_pk_bf16_f32 v%d, v%d, v%d" % (o + 0, K8, K8))
        A("v_cvt_pk_bf16_f32 v%d, v%d, v%d" % (o + 1, K8, R + 15))
        A("v_cvt_pk_bf16_f32 v%d, v%d, v%d" % (o + 2, K0, K0))
        A("v_mov_b32 v%d, v%d" % (o + 3, o + 2))
    A("ds_write_b128 v%d, %s offset:512" % (R + 13, v(R + 4, 4)))
    A("ds_write_b128 v%d, %s" % (R + 13, v(R + 8, 4)))
    A.label("ssm_y2")
    A("s_waitcnt lgkmcnt(0)")
    A("s_barrier")
    stamp(A, timing, 3)
    A("s_lshl_b32 s47, s%d, 11" % sHF)
    A("s_add_u32 s47, s47, s46")
    A("s_add_u32 s47, s47, %d" % CP0)
    A("v_add_u32 v%d, s47, v%d" % (t0, vL16))
    for it in range(2):
        d = 32 + 8 * it
        A("ds_read_b128 %s, v%d offset:%d" % (v(d, 4), t0, it * 1024))
        A("ds_read_b64 %s, v%d offset:%d" % (v(d + 4, 2), t0, it * 1024 + 16))
    A("v_lshrrev_b32 v%d, 2, v%d" % (t1, vLane))
    A("v_mul_u32_u24 v%d, %d, v%d" % (t1, CPS, t1))
    A("v_and_b32 v%d, 3, v%d" % (t2, vLane))
    A("v_lshl_add_u32 v%d, v%d, 4, v%d" % (t1, t2, t1))
    A("s_add_u32 s47, s46, %d" % (CP0 + CPS + 4096))
    A("v_add_u32 v%d, s47, v%d" % (t1, t1))
    for r in range(4): A("v_mov_b32 v%d, 0" % (60 + r))
    A("s_cmp_eq_u32 s%d, 0" % sHF)
    A("s_cbranch_scc0 ssm_z1")
    A("s_mov_b64 exec, 0xfff")
    A("ds_write_b128 v%d, v[60:63]" % t1)
    A("s_mov_b64 exec, -1")
    A.label("ssm_z1")
    A("v_add_u32 v64, %d, v%d" % (2 * CPS, t0))
    A("v_add_u32 v65, %d, v%d" % (2 * CPS + 1024, t0))
    A("s_waitcnt lgkmcnt(0)")
    for it in range(2):
        d = 32 + 8 * it; e = 48 + 8 * it
        for i in range(4): A("v_alignbit_b32 v%d, v%d, v%d, 16" % (e + i, d + i + 1, d + i))
        for i in range(4): A("v_alignbit_b32 v%d, v%d, v%d, 16" % (e + 4 + i, d + i + 2, d + i + 1))
        A("ds_write_b128 v%d, %s offset:%d" % (t0, v(e, 4), it * 1024 + CPS))
        A("ds_write2_b32 v%d, v%d, v%d offset0:0 offset1:1" % (64 + it, d + 1, d + 2))
        A("ds_write2_b32 v%d, v%d, v%d offset0:2 offset1:3" % (64 + it, d + 3, d + 4))
        A("ds_write_b128 v%d, %s offset:%d" % (t0, v(e + 4, 4), it * 1024 + 3 * CPS))
    AF, BF, DC = 32, 64, 96
    vAlo, vAhi, vB = 8, 9, 10
    A("v_and_b32 v%d, 3, v%d" % (t1, vLane))
    A("v_sub_u32 v%d, 3, v%d" % (t1, t1))
    A("v_mul_u32_u24 v%d, %d, v%d" % (vAlo, CPS, t1))
    A("v_bfe_u32 v%d, v%d, 2, 2" % (t1, vLane))
    A("v_lshrrev_b32 v%d, 4, v%d" % (t2, vLane))
    A("v_lshlrev_b32 v%d, 1, v%d" % (t3, t2))
    A("v_sub_u32 v%d, v%d, v%d" % (t3, t3, t1))
    A("v_lshl_add_u32 v%d, v%d, 3, v%d" % (vAlo, t3, vAlo))
    A("s_lshl_b32 s47, s%d, 8" % sHF)
    A("s_sub_u32 s48, s46, s47")
    A("s_add_u32 s48, s48, %d" % (CP0 + 8 * 507 - 3584))
    A("v_add_u32 v%d, s48, v%d" % (vAlo, vAlo))
    A("v_add_u32 v%d, 2048, v%d" % (vAhi, vAlo))
    A("v_and_b32 v%d, 15, v%d" % (t1, vLane))
    A("v_lshlrev_b32 v%d, 5, v%d" % (vB, t1))
    A("v_lshl_add_u32 v%d, v%d, 4, v%d" % (vB, t2, vB))
    A("s_mul_i32 s48, s%d, %d" % (sCH, UP))
    A("s_add_u32 s48, s48, %d" % (UB + 448))
    A("s_sub_u32 s49, s48, s47")
    A("v_add_u32 v%d, s49, v%d" % (vB, vB))
    vU, vO = 11, 12
    A("v_lshlrev_b32 v%d, 5, v%d" % (vO, t1))
    A("v_lshl_add_u32 v%d, v%d, 3, v%d" % (vO, t2, vO))
    A("s_lshl_b32 s47, s%d, 11" % sHF)
    A("s_add_u32 s49, s48, s47")
    A("s_add_u32 s49, s49, 32")
    A("v_add_u32 v%d, s49, v%d" % (vU, vO))
    A("s_add_u32 s10, s%d, s%d" % (sD0, sCH))
    A("s_lshl_b32 s10, s10, 12")
    A("s_add_u32 s10, s10, s47")
    A("s_add_u32 s47, s46, %d" % EX2)
    A("s_lshl_b32 s48, s%d, 12" % sHF)
    A("s_add_u32 s49, s47, s48")
    A("v_add_u32 v%d, s49, v%d" % (13, vL16))
    A("s_xor_b32 s48, s48, 4096")
    A("s_add_u32 s49, s47, s48")
    A("v_add_u32 v%d, s49, v%d" % (14, vL16))
    A("s_waitcnt lgkmcnt(0)")
    A("s_barrier")
    stamp(A, timing, 4)
    for cl in range(4):
        if cl:
            A("v_subrev_u32 v%d, 64, v%d" % (vAlo, vAlo))
            A("v_subrev_u32 v%d, 64, v%d" % (vB, vB))
        seq = [("B", 0)]
        for a in range(8): seq += [("A", a, 0), ("A", a, 1)]
        seq += [("B", b) for b in range(1, 8)]
        for x in seq:
            if x[0] == "A":
                i, h = x[1], x[2]
                A("ds_read_b64 %s, v%d offset:%d" % (v(AF + 4 * i + 2 * h, 2), vAlo, 512 * (7 - i) + 8 * h))
            else:
                A("ds_read_b128 %s, v%d offset:%d" % (v(BF + 4 * x[1], 4), vB, 512 * x[1]))
        pos = {x: n for n, x in enumerate(seq)}
        waited = -1
        for b in range(8):
            for a in range(8 - b):
                need = max(pos[("A", a, 1)], pos[("B", b)])
                if need > waited:
                    cnt = len(seq) - 1 - need
                    if cnt <= 15:
                        A("s_waitcnt lgkmcnt(%d)" % cnt)
                        waited = need
                    elif len(seq) - 1 - 15 > waited:
                        A("s_waitcnt lgkmcnt(15)")
                        waited = len(seq) - 1 - 15
                c = a + b
                first = (cl == 0 and b == 0)
                A("v_mfma_f32_16x16x32_bf16 %s, %s, %s, %s" % (v(DC + 4 * c, 4), v(AF + 4 * a, 4), v(BF + 4 * b, 4), "0" if first else v(DC + 4 * c, 4)))
    stamp(A, timing, 5)
    A("s_nop 7")
    A("s_cmp_eq_u32 s%d, 0" % sHF)
    A("s_cbranch_scc0 ssm_w1")
    for k in range(4): A("ds_write_b128 v13, %s offset:%d" % (v(DC + 16 + 4 * k, 4), 1024 * k))
    A("s_branch ssm_w2")
    A.label("ssm_w1")
    for k in range(4): A("ds_write_b128 v13, %s offset:%d" % (v(DC + 4 * k, 4), 1024 * k))
    A.label("ssm_w2")
    U = 32
    for k in range(4): A("ds_read_b64 %s, v%d offset:%d" % (v(U + 2 * k, 2), vU, 512 * k))
    A("s_waitcnt lgkmcnt(0)")
    A("s_barrier")
    R = 64
    for k in range(4): A("ds_read_b128 %s, v14 offset:%d" % (v(R + 4 * k, 4), 1024 * k))
    UF = 40
    for k in range(8):
        A("v_lshlrev_b32 v%d, 16, v%d" % (UF + 2 * k, U + k))
        A("v_and_b32 v%d, 0xffff0000, v%d" % (UF + 2 * k + 1, U + k))
    for r in range(16): A("v_mul_f32 v%d, s%d, v%d" % (UF + r, sDskip, UF + r))
    for k in range(8): A("v_cvt_pk_bf16_f32 v%d, v%d, v%d" % (U + k, UF + 2 * k, UF + 2 * k + 1))
    for k in range(8):
        A("v_lshlrev_b32 v%d, 16, v%d" % (UF + 2 * k, U + k))
        A("v_and_b32 v%d, 0xffff0000, v%d" % (UF + 2 * k + 1, U + k))
    A("s_waitcnt lgkmcnt(0)")
    A("s_cmp_eq_u32 s%d, 0" % sHF)
    A("s_cbranch_scc0 ssm_v1")
    for r in range(16): A("v_add_f32 v%d, v%d, v%d" % (DC + r, DC + r, R + r))
    A("s_branch ssm_v2")
    A.label("ssm_v1")
    for r in range(16): A("v_add_f32 v%d, v%d, v%d" % (DC + r, DC + 16 + r, R + r))
    A.label("ssm_v2")
    for k in range(8): A("v_cvt_pk_bf16_f32 v%d, v%d, v%d" % (U + k, DC + 2 * k, DC + 2 * k + 1))
    for k in range(8):
        A("v_lshlrev_b32 v%d, 16, v%d" % (DC + 2 * k, U + k))
        A("v_and_b32 v%d, 0xffff0000, v%d" % (DC + 2 * k + 1, U + k))
    for r in range(16): A("v_add_f32 v%d, v%d, v%d" % (DC + r, DC + r, UF + r))
    for k in range(8): A("v_cvt_pk_bf16_f32 v%d, v%d, v%d" % (U + k, DC + 2 * k, DC + 2 * k + 1))
    for k in range(4):
        A("buffer_store_dwordx2 %s, v%d, s[%d:%d], s10 offen offset:%d" % (v(U + 2 * k, 2), vO, SAT, SAT + 3, 512 * k))
    stamp(A, timing, 6)
    dump_stamps(A, timing, 7, end, 0)
    A("s_branch %s" % end)

def gen_k1(name="k1_kernel", timing=False):
    A = Asm()
    end = name + "_end"
    A("s_cmp_ge_u32 s2, 256")
    A("s_cbranch_scc1 %s" % end)
    stamp(A, timing, 0)
    A("v_lshrrev_b32 v2, 6, v0")
    A("v_and_b32 v%d, 63, v0" % vLane)
    A("v_readfirstlane_b32 s%d, v2" % sW)
    A("s_cmp_lt_u32 s2, 160")
    A("s_cbranch_scc1 k1_ssm")
    A("s_cmp_lt_u32 s2, 240")
    A("s_cbranch_scc1 k1_q")
    role_kv(A, end, timing)
    A.label("k1_q")
    role_q(A, end, timing)
    A.label("k1_ssm")
    role_ssm(A, end, timing)
    A.label(end)
    A("s_endpgm")
    return dict(name=name, grid=256, block=1024, lds=163840, body=A.text(), vgpr=128)

if __name__ == "__main__":
    import sys
    tm = False
    for a in sys.argv[2:]:
        if a.startswith("t"): tm = int(a[1:]) if len(a) > 1 else True
    for a in sys.argv[2:]:
        if a.startswith("g:"): GMOD = a[2:].replace("+", " ")
    k = gen_k1(timing=tm)
    open(sys.argv[1], "w").write(compose([k]))
```

```python
from asmlib import *

def gen_k2(name="k2_kernel", force_fallback=False, timing=False, prio=False, unroll=False):
    A = Asm()
    Q1 = {"A": 4, "B": 10}; Q2 = {"A": 8, "B": 14}
    S = {"A": 16, "B": 32}; O = {"A": 48, "B": 64}; P = {"A": 80, "B": 88}
    K1 = [96, 102]; K2 = [100, 106]; V = [108, 116]
    aK1, aK2, aV = 1, 2, 3
    T0, T1, T2, T3 = 124, 125, 126, 127
    aDMA = 128
    SRD_KV, SRD_Q, SRD_O = 8, 12, 16
    sW, sKH, sRP, sROW, sDMA, sJ = 6, 7, 20, 21, 22, 23
    sMASK = 24
    end = name + "_end"
    A("s_cmp_ge_u32 s2, 256")
    A("s_cbranch_scc1 %s" % end)
    A("s_load_dwordx2 s[4:5], s[0:1], 136")
    A("s_load_dwordx2 s[92:93], s[0:1], 0")
    A("s_load_dwordx2 s[94:95], s[0:1], 112")
    if timing:
        A("s_load_dwordx2 s[40:41], s[0:1], 128")
        A("s_memtime s[42:43]")
        A("s_memrealtime s[56:57]")
    A("v_lshrrev_b32 v%d, 6, v0" % T0)
    A("v_and_b32 v%d, 63, v0" % T1)
    A("v_and_b32 v%d, 31, v0" % T2)
    A("v_readfirstlane_b32 s%d, v%d" % (sW, T0))
    A("v_bfe_u32 v%d, v0, 5, 1" % T3)
    GX, GW, GT = 20, 26, 32
    A("s_lshl_b32 s96, s2, 3")
    A("s_add_u32 s96, s96, s%d" % sW)
    A("s_mul_i32 s97, s96, 1280")
    A("v_mul_u32_u24 v%d, 20, v%d" % (GT, T1))
    A("v_add_u32 v%d, s97, v%d" % (GT + 1, GT))
    A("s_waitcnt lgkmcnt(0)")
    A("global_load_dwordx4 %s, v%d, s[92:93]" % (v(GX, 4), GT + 1))
    A("global_load_dword v%d, v%d, s[92:93] offset:16" % (GX + 4, GT + 1))
    A("global_load_dwordx4 %s, v%d, s[94:95]" % (v(GW, 4), GT))
    A("global_load_dword v%d, v%d, s[94:95] offset:16" % (GW + 4, GT))
    srd(A, SRD_KV, 4, WS_KV, NKV)
    srd(A, SRD_Q, 4, WS_Q, NQ)
    srd(A, SRD_O, 4, WS_O, NQ)
    A("s_lshr_b32 s%d, s%d, 2" % (sKH, sW))
    A("s_and_b32 s%d, s%d, 3" % (sRP, sW))
    A("s_lshl_b32 s%d, s2, 3" % sROW)
    A("s_lshl_b32 s26, s%d, 1" % sRP)
    A("s_add_u32 s%d, s%d, s26" % (sROW, sROW))
    A("s_mul_i32 s27, s%d, 1280" % sROW)
    qa, qb = 16, 17
    A("v_mul_u32_u24 v%d, 40, v%d" % (qa, T2))
    A("v_lshlrev_b32 v%d, 30, v%d" % (qb, T3))
    A("v_add3_u32 v%d, v%d, v%d, 32" % (qb, qb, qa))
    A("v_lshl_add_u32 v%d, v%d, 4, v%d" % (qa, T3, qa))
    A("buffer_load_dwordx4 %s, v%d, s[%d:%d], s27 offen" % (v(Q1["A"], 4), qa, SRD_Q, SRD_Q + 3))
    A("buffer_load_dwordx2 %s, v%d, s[%d:%d], s27 offen" % (v(Q2["A"], 2), qb, SRD_Q, SRD_Q + 3))
    A("buffer_load_dwordx4 %s, v%d, s[%d:%d], s27 offen offset:1280" % (v(Q1["B"], 4), qa, SRD_Q, SRD_Q + 3))
    A("buffer_load_dwordx2 %s, v%d, s[%d:%d], s27 offen offset:1280" % (v(Q2["B"], 2), qb, SRD_Q, SRD_Q + 3))
    A("s_mul_i32 s28, s%d, 81920" % sKH)
    A("s_lshl_b32 s26, s%d, 12" % sRP)
    A("s_add_u32 s%d, s28, s26" % sDMA)
    A("v_lshlrev_b32 v18, 4, v%d" % T1)
    def dma_round():
        A("s_mov_b32 m0, s%d" % sDMA)
        A("s_nop 0")
        for k in range(4):
            A("buffer_load_dwordx4 v%d, s[%d:%d], s%d offen offset:%d lds" % (aDMA, SRD_KV, SRD_KV + 3, sDMA, k * 1024))
        A("s_add_u32 s%d, s%d, 16384" % (sDMA, sDMA))
    A("v_mov_b32 v%d, v18" % aDMA)
    dma_round()
    A("v_add_u32 v%d, s28, v18" % aK1)
    A("v_lshlrev_b32 v%d, 3, v%d" % (aK2, T2))
    A("v_add_u32 v%d, s28, v%d" % (aK2, aK2))
    A("v_mul_u32_u24 v%d, 320, v%d" % (aV, T3))
    A("v_lshl_add_u32 v%d, v%d, 4, v%d" % (aV, T2, aV))
    A("v_add_u32 v%d, s28, v%d" % (aV, aV))
    A("s_mov_b32 s%d, 0x000fffff" % sMASK)
    A("s_mov_b32 s%d, 0x000fffff" % (sMASK + 1))
    A("v_cmp_eq_u32 vcc, 20, v%d" % T2)
    A("v_mov_b32 v19, 0x3f803f80")
    A("v_mov_b32 v%d, 0" % T0)
    A("v_cndmask_b32 v%d, v%d, v19, vcc" % (T0, T0))
    for r in range(16):
        A("v_mov_b32 v%d, v%d" % (V[0] + r, T0))
    for r in range(32):
        A("v_mov_b32 v%d, 0" % (O["A"] + r))
    for r in range(8):
        A("v_mov_b32 v%d, 0" % (P["B"] + r))
    A("s_waitcnt vmcnt(8)")
    XU, WU = GT, GT + 10
    for j in range(5):
        A("v_lshlrev_b32 v%d, 16, v%d" % (XU + 2 * j, GX + j))
        A("v_and_b32 v%d, 0xffff0000, v%d" % (XU + 2 * j + 1, GX + j))
        A("v_lshlrev_b32 v%d, 16, v%d" % (GX + j, GW + j))
        A("v_and_b32 v%d, 0xffff0000, v%d" % (GW + j, GW + j))
    for j in range(5):
        A("v_mul_f32 v%d, v%d, v%d" % (XU + 2 * j, XU + 2 * j, GX + j))
        A("v_mul_f32 v%d, v%d, v%d" % (XU + 2 * j + 1, XU + 2 * j + 1, GW + j))
    for j in range(5):
        A("v_cvt_pk_bf16_f32 v%d, v%d, v%d" % (GX + j, XU + 2 * j, XU + 2 * j + 1))
    for j in range(5):
        A("v_lshlrev_b32 v%d, 16, v%d" % (XU + 2 * j, GX + j))
        A("v_and_b32 v%d, 0xffff0000, v%d" % (XU + 2 * j + 1, GX + j))
    for j in range(5):
        A("v_add_f32 v%d, v%d, v%d" % (XU + j, XU + j, XU + 5 + j))
    A("v_add_f32 v%d, v%d, v%d" % (XU, XU, XU + 1))
    A("v_add_f32 v%d, v%d, v%d" % (XU + 2, XU + 2, XU + 3))
    A("v_add_f32 v%d, v%d, v%d" % (XU, XU, XU + 4))
    A("v_add_f32 v%d, v%d, v%d" % (XU, XU, XU + 2))
    for ctl in ("row_shr:1", "row_shr:2", "row_shr:4", "row_shr:8"):
        A("s_nop 1")
        A("v_add_f32_dpp v%d, v%d, v%d %s row_mask:0xf bank_mask:0xf bound_ctrl:0" % (XU, XU, XU, ctl))
    A("s_nop 1")
    A("v_add_f32_dpp v%d, v%d, v%d row_bcast:15 row_mask:0xa bank_mask:0xf" % (XU, XU, XU))
    A("s_nop 1")
    A("v_add_f32_dpp v%d, v%d, v%d row_bcast:31 row_mask:0xc bank_mask:0xf" % (XU, XU, XU))
    A("v_cvt_pk_bf16_f32 v%d, v%d, v%d" % (XU, XU, XU))
    A("v_lshlrev_b32 v%d, 16, v%d" % (XU, XU))
    A("v_mul_f32 v%d, 0xbfb8aa3b, v%d" % (XU, XU))
    A("v_exp_f32 v%d, v%d" % (XU, XU))
    A("s_nop 0")
    A("v_add_f32 v%d, 1.0, v%d" % (XU, XU))
    A("v_rcp_f32 v%d, v%d" % (XU, XU))
    A("s_nop 0")
    A("v_cvt_pk_bf16_f32 v%d, v%d, v%d" % (XU, XU, XU))
    A("v_lshlrev_b32 v%d, 16, v%d" % (XU, XU))
    A("s_nop 0")
    A("v_readlane_b32 s97, v%d, 63" % XU)
    A("s_waitcnt vmcnt(0)")
    A("s_barrier")
    if timing:
        A("s_memtime s[44:45]")
    A("ds_read_b128 %s, v%d" % (v(K1[0], 4), aK1))
    A("ds_read_b64 %s, v%d offset:1024" % (v(K2[0], 2), aK2))
    A("s_mov_b32 s%d, 0" % sJ)
    A("s_waitcnt lgkmcnt(0)")
    A("v_mfma_f32_32x32x16_bf16 %s, %s, %s, 0" % (v(S["A"], 16), v(K1[0], 4), v(Q1["A"], 4)))
    A("v_mfma_f32_32x32x8_bf16 %s, %s, %s, %s" % (v(S["A"], 16), v(K2[0], 2), v(Q2["A"], 2), v(S["A"], 16)))
    A("s_nop 7")
    A("s_nop 3")

    def H(cur, kb, vb, reads, do_qk=True):
        oth = "B" if cur == "A" else "A"
        Sc, Pc = S[cur], P[cur]
        So, Po, Oo = S[oth], P[oth], O[oth]
        if reads:
            for r in reads:
                A(r)
        M = []
        if do_qk:
            M.append("v_mfma_f32_32x32x16_bf16 %s, %s, %s, 0" % (v(So, 16), v(K1[kb], 4), v(Q1[oth], 4)))
            M.append("v_mfma_f32_32x32x8_bf16 %s, %s, %s, %s" % (v(So, 16), v(K2[kb], 2), v(Q2[oth], 2), v(So, 16)))
        M.append("v_mfma_f32_32x32x16_bf16 %s, %s, %s, %s" % (v(Oo, 16), v(V[vb], 4), v(Po, 4), v(Oo, 16)))
        M.append("v_mfma_f32_32x32x16_bf16 %s, %s, %s, %s" % (v(Oo, 16), v(V[vb] + 4, 4), v(Po + 4, 4), v(Oo, 16)))
        while len(M) < 4:
            M.insert(0, None)
        E = ["v_exp_f32 v%d, v%d" % (Sc + r, Sc + r) for r in range(16)]
        C = ["v_cvt_pk_bf16_f32 v%d, v%d, v%d" % (Pc + j, Sc + 2 * j, Sc + 2 * j + 1) for j in range(8)]
        for g in range(4):
            if M[g]: A(M[g])
            for r in range(4): A(E[4 * g + r])
            if g >= 1:
                A(C[2 * (g - 1)]); A(C[2 * (g - 1) + 1])
        A(C[6]); A(C[7])

    def reads(kb, koff, vb, voff):
        R = []
        if kb is not None:
            R.append("ds_read_b128 %s, v%d offset:%d" % (v(K1[kb], 4), aK1, koff))
            R.append("ds_read_b64 %s, v%d offset:%d" % (v(K2[kb], 2), aK2, koff + 1024))
        R.append("s_mov_b64 exec, s[%d:%d]" % (sMASK, sMASK + 1))
        R.append("ds_read_b128 %s, v%d offset:%d" % (v(V[vb], 4), aV, voff + 1280))
        R.append("ds_read_b128 %s, v%d offset:%d" % (v(V[vb] + 4, 4), aV, voff + 1280 + 640))
        R.append("s_mov_b64 exec, -1")
        return R

    def body():
        H("A", 0, 1, reads(1, 2560, 0, 0))
        H("B", 1, 0, ["s_waitcnt lgkmcnt(0)"])
        H("A", 1, 0, reads(0, 5120, 1, 2560))
        H("B", 0, 1, ["s_waitcnt lgkmcnt(0)"])
        A("v_add_u32 v%d, 5120, v%d" % (aK1, aK1))
        A("v_add_u32 v%d, 5120, v%d" % (aK2, aK2))
        A("v_add_u32 v%d, 5120, v%d" % (aV, aV))
    if unroll:
        for j in range(15):
            if j == 2:
                A("s_waitcnt vmcnt(4)"); A("s_barrier")
            if j < 4: dma_round()
            if j == 5:
                A("s_waitcnt vmcnt(0)"); A("s_barrier")
            if timing: A("s_memtime s[%d:%d]" % (60 + 2 * j, 61 + 2 * j))
            if prio:
                A("s_setprio %d" % 0)
            body()
        if timing: A("s_memtime s[90:91]")
    else:
        loop = name + "_loop"
        A.label(loop)
        sk1 = name + "_sk1"; sk2 = name + "_sk2"
        A("s_cmp_eq_u32 s%d, 2" % sJ)
        A("s_cbranch_scc0 %s" % sk1)
        A("s_waitcnt vmcnt(4)")
        A("s_barrier")
        A.label(sk1)
        A("s_cmp_lt_u32 s%d, 4" % sJ)
        A("s_cbranch_scc0 %s_skd" % name)
        dma_round()
        A.label(name + "_skd")
        if prio:
            A("s_add_u32 s33, s%d, s%d" % (sJ, sKH))
            A("s_bitcmp1_b32 s33, 0")
            A("s_cbranch_scc1 %s_p1" % name)
            A("s_setprio 0")
            A("s_branch %s_p2" % name)
            A.label(name + "_p1")
            A("s_setprio 1")
            A.label(name + "_p2")
        A("s_cmp_eq_u32 s%d, 5" % sJ)
        A("s_cbranch_scc0 %s" % sk2)
        A("s_waitcnt vmcnt(0)")
        A("s_barrier")
        A.label(sk2)
        body()
        A("s_add_u32 s%d, s%d, 1" % (sJ, sJ))
        A("s_cmp_lt_u32 s%d, 15" % sJ)
        A("s_cbranch_scc1 %s" % loop)
    H("A", 0, 1, reads(1, 2560, 0, 0))
    H("B", 1, 0, ["s_waitcnt lgkmcnt(0)"])
    H("A", 1, 0, reads(None, 0, 1, 2560))
    H("B", 0, 1, ["s_waitcnt lgkmcnt(0)"], do_qk=False)
    A("s_nop 1")
    A("v_mfma_f32_32x32x16_bf16 %s, %s, %s, %s" % (v(O["B"], 16), v(V[1], 4), v(P["B"], 4), v(O["B"], 16)))
    A("v_mfma_f32_32x32x16_bf16 %s, %s, %s, %s" % (v(O["B"], 16), v(V[1] + 4, 4), v(P["B"] + 4, 4), v(O["B"], 16)))
    if timing:
        A("s_memtime s[46:47]")
    A("s_mul_i32 s29, s%d, 3072" % sW)
    A("s_xor_b32 s30, s%d, 4" % sW)
    A("s_mul_i32 s30, s30, 3072")
    A("v_lshlrev_b32 v%d, 4, v%d" % (aK1, T1))
    A("v_add_u32 v%d, s30, v%d" % (aK2, aK1))
    A("v_add_u32 v%d, s29, v%d" % (aK1, aK1))
    A("s_nop 7")
    A("s_nop 3")
    R = S["A"]
    T = S["B"]
    lab1 = name + "_x1"; lab2 = name + "_x2"; lab3 = name + "_x3"; lab4 = name + "_x4"
    A("s_cmp_eq_u32 s%d, 0" % sKH)
    A("s_cbranch_scc0 %s" % lab1)
    for k in range(3):
        A("ds_write_b128 v%d, %s offset:%d" % (aK1, v(O["B"] + 4 * k, 4), k * 1024))
    A("s_branch %s" % lab2)
    A.label(lab1)
    for k in range(3):
        A("ds_write_b128 v%d, %s offset:%d" % (aK1, v(O["A"] + 4 * k, 4), k * 1024))
    A.label(lab2)
    A("s_waitcnt lgkmcnt(0)")
    A("s_barrier")
    for k in range(3):
        A("ds_read_b128 %s, v%d offset:%d" % (v(R + 4 * k, 4), aK2, k * 1024))
    A("s_cmp_eq_u32 s%d, 0" % sKH)
    A("s_cbranch_scc0 %s" % lab3)
    A("s_waitcnt lgkmcnt(0)")
    for r in range(12):
        A("v_add_f32 v%d, v%d, v%d" % (T + r, O["A"] + r, R + r))
    A("s_branch %s" % lab4)
    A.label(lab3)
    A("s_waitcnt lgkmcnt(0)")
    for r in range(12):
        A("v_add_f32 v%d, v%d, v%d" % (T + r, O["B"] + r, R + r))
    for r in range(4): A("v_mov_b32 v%d, v%d" % (Q1["A"] + r, Q1["B"] + r))
    for r in range(2): A("v_mov_b32 v%d, v%d" % (Q2["A"] + r, Q2["B"] + r))
    A.label(lab4)
    A("s_add_u32 s31, s%d, s%d" % (sROW, sKH))
    A("s_mul_i32 s31, s31, 1280")
    A("s_mov_b32 s32, 0")
    norm = name + "_norm"; fb = name + "_fb"; st = name + "_st"
    A.label(norm)
    A("v_mov_b32 v%d, v%d" % (R + 0, T + 8))
    A("v_mov_b32 v%d, v%d" % (R + 1, T + 8))
    A("s_nop 1")
    A("v_permlane32_swap_b32 v%d, v%d" % (R + 0, R + 1))
    A("s_cmp_eq_u32 s32, 1")
    A("s_cbranch_scc1 %s" % st)
    A("v_max3_f32 v%d, |v%d|, |v%d|, |v%d|" % (R + 2, T + 0, T + 1, T + 2))
    A("v_max3_f32 v%d, |v%d|, |v%d|, |v%d|" % (R + 3, T + 3, T + 4, T + 5))
    A("v_max3_f32 v%d, |v%d|, |v%d|, |v%d|" % (R + 4, T + 6, T + 7, T + 8))
    A("v_max3_f32 v%d, |v%d|, |v%d|, |v%d|" % (R + 5, T + 9, T + 10, T + 11))
    A("v_max3_f32 v%d, v%d, v%d, v%d" % (R + 2, R + 2, R + 3, R + 4))
    A("v_max_f32 v%d, v%d, v%d" % (R + 2, R + 2, R + 5))
    A("v_mov_b32 v%d, 0x%x" % (R + 3, (127 - 30) << 23))
    A("v_mov_b32 v%d, 0x%x" % (R + 4, (127 + 30) << 23))
    A("v_mov_b32 v%d, 0x%x" % (R + 5, (127 + 120) << 23))
    A("v_cmp_ge_f32 s[34:35], v%d, v%d" % (R + 1, R + 3))
    A("v_cmp_le_f32 s[36:37], v%d, v%d" % (R + 1, R + 4))
    A("v_cmp_le_f32 s[38:39], v%d, v%d" % (R + 2, R + 5))
    A("s_nop 1")
    A("s_and_b64 s[34:35], s[34:35], s[36:37]")
    A("s_and_b64 s[34:35], s[34:35], s[38:39]")
    if force_fallback:
        A("s_mov_b64 s[34:35], 0")
    A("s_cmp_eq_u64 s[34:35], -1")
    A("s_cbranch_scc0 %s" % fb)
    A.label(st)
    A("v_rcp_f32 v%d, v%d" % (R + 1, R + 1))
    A("v_mul_u32_u24 v%d, 40, v%d" % (R + 6, T2))
    A("v_lshlrev_b32 v%d, 30, v%d" % (R + 7, T3))
    A("v_add3_u32 v%d, v%d, v%d, 32" % (R + 7, R + 7, R + 6))
    A("v_lshl_add_u32 v%d, v%d, 3, v%d" % (R + 6, T3, R + 6))
    for r in range(12):
        A("v_mul_f32 v%d, v%d, v%d" % (T + r, T + r, R + 1))
    for j in range(6):
        A("v_cvt_pk_bf16_f32 v%d, v%d, v%d" % (R + 8 + j, T + 2 * j, T + 2 * j + 1))
    A("buffer_store_dwordx2 %s, v%d, s[%d:%d], s31 offen" % (v(R + 8, 2), R + 6, SRD_O, SRD_O + 3))
    A("buffer_store_dwordx2 %s, v%d, s[%d:%d], s31 offen offset:16" % (v(R + 10, 2), R + 6, SRD_O, SRD_O + 3))
    A("buffer_store_dwordx2 %s, v%d, s[%d:%d], s31 offen" % (v(R + 12, 2), R + 7, SRD_O, SRD_O + 3))
    A("s_lshl_b32 s96, s96, 2")
    A("s_add_u32 s96, s96, 0x%x" % WS_G)
    A("v_mov_b32 v%d, s96" % (R + 0))
    A("v_mov_b32 v%d, s97" % (R + 1))
    A("s_mov_b64 exec, 1")
    A("global_store_dword v%d, v%d, s[4:5]" % (R + 0, R + 1))
    A("s_mov_b64 exec, -1")
    if timing:
        A("s_memtime s[48:49]")
        A("s_memrealtime s[58:59]")
        A("s_waitcnt lgkmcnt(0)")
        A("s_sub_u32 s44, s44, s42")
        A("s_sub_u32 s46, s46, s42")
        A("s_sub_u32 s48, s48, s42")
        A("s_sub_u32 s58, s58, s56")
        if unroll:
            A("s_cmp_eq_u32 s2, 0")
            A("s_cbranch_scc0 %s" % end)
            A("s_and_b32 s50, s%d, 3" % sW)
            A("s_cmp_eq_u32 s50, 0")
            A("s_cbranch_scc0 %s" % end)
            A("s_lshl_b32 s50, s%d, 7" % sKH)
            A("v_mov_b32 v%d, s50" % (R + 0))
            vals = ["s44"] + ["s%d" % (60 + 2 * j) for j in range(16)] + ["s46", "s48", "s58"]
            for i, sv in enumerate(vals):
                if 1 <= i <= 16: A("s_sub_u32 %s, %s, s42" % (sv, sv))
                A("v_mov_b32 v%d, %s" % (R + 1, sv))
                A("global_store_dword v%d, v%d, s[40:41] offset:%d" % (R + 0, R + 1, 4 * i))
        else:
            A("s_cmp_lt_u32 s2, 2")
            A("s_cbranch_scc0 %s" % end)
            A("s_lshl_b32 s50, s2, 3")
            A("s_add_u32 s50, s50, s%d" % sW)
            A("s_lshl_b32 s50, s50, 4")
            A("v_mov_b32 v%d, s50" % (R + 0))
            A("v_mov_b32 v%d, s58" % (R + 2))
            A("v_mov_b32 v%d, s44" % (R + 3))
            A("v_mov_b32 v%d, s46" % (R + 4))
            A("v_mov_b32 v%d, s48" % (R + 5))
            A("global_store_dwordx4 v%d, %s, s[40:41]" % (R + 0, v(R + 2, 4)))
    A("s_endpgm")
    A.label(fb)
    FK1, FK2, FV = K1[0], K2[0], V[0]
    FS = O["A"]; FM = O["B"]
    FP = P["A"]
    A("v_lshlrev_b32 v%d, 4, v%d" % (aK1, T1))
    A("v_lshlrev_b32 v%d, 3, v%d" % (aK2, T2))
    A("v_mul_u32_u24 v%d, 320, v%d" % (aV, T3))
    A("v_lshl_add_u32 v%d, v%d, 4, v%d" % (aV, T2, aV))
    A("v_cmp_gt_u32 vcc, 20, v%d" % T2)
    A("v_mov_b32 v%d, 0x40000000" % (R + 0))
    A("s_nop 1")
    A("v_cndmask_b32 v%d, v%d, v%d, vcc" % (aV, R + 0, aV))
    A("v_mov_b32 v%d, 0xff800000" % (R + 0))
    A("s_mov_b32 s33, 0")
    f1 = name + "_f1"
    A.label(f1)
    A("buffer_load_dwordx4 %s, v%d, s[%d:%d], s33 offen" % (v(FK1, 4), aK1, SRD_KV, SRD_KV + 3))
    A("buffer_load_dwordx2 %s, v%d, s[%d:%d], s33 offen offset:1024" % (v(FK2, 2), aK2, SRD_KV, SRD_KV + 3))
    A("s_waitcnt vmcnt(0)")
    A("v_mfma_f32_32x32x16_bf16 %s, %s, %s, 0" % (v(FS, 16), v(FK1, 4), v(Q1["A"], 4)))
    A("v_mfma_f32_32x32x8_bf16 %s, %s, %s, %s" % (v(FS, 16), v(FK2, 2), v(Q2["A"], 2), v(FS, 16)))
    A("s_nop 7")
    A("s_nop 7")
    for r in range(0, 16, 2):
        A("v_max3_f32 v%d, v%d, v%d, v%d" % (R + 0, R + 0, FS + r, FS + r + 1))
    A("s_add_u32 s33, s33, 2560")
    A("s_cmp_lt_u32 s33, %d" % NKV)
    A("s_cbranch_scc1 %s" % f1)
    A("v_mov_b32 v%d, v%d" % (R + 1, R + 0))
    A("s_nop 1")
    A("v_permlane32_swap_b32 v%d, v%d" % (R + 0, R + 1))
    A("s_nop 1")
    A("v_max_f32 v%d, v%d, v%d" % (R + 0, R + 0, R + 1))
    for r in range(16):
        A("v_mul_f32 v%d, -1.0, v%d" % (FM + r, R + 0))
    for r in range(16):
        A("v_mov_b32 v%d, 0" % (T + r))
    A("s_mov_b32 s33, 0")
    f2 = name + "_f2"
    A.label(f2)
    A("buffer_load_dwordx4 %s, v%d, s[%d:%d], s33 offen" % (v(FK1, 4), aK1, SRD_KV, SRD_KV + 3))
    A("buffer_load_dwordx2 %s, v%d, s[%d:%d], s33 offen offset:1024" % (v(FK2, 2), aK2, SRD_KV, SRD_KV + 3))
    A("buffer_load_dwordx4 %s, v%d, s[%d:%d], s33 offen offset:1280" % (v(FV, 4), aV, SRD_KV, SRD_KV + 3))
    A("buffer_load_dwordx4 %s, v%d, s[%d:%d], s33 offen offset:1920" % (v(FV + 4, 4), aV, SRD_KV, SRD_KV + 3))
    A("s_waitcnt vmcnt(0)")
    A("v_mfma_f32_32x32x16_bf16 %s, %s, %s, %s" % (v(FS, 16), v(FK1, 4), v(Q1["A"], 4), v(FM, 16)))
    A("v_mfma_f32_32x32x8_bf16 %s, %s, %s, %s" % (v(FS, 16), v(FK2, 2), v(Q2["A"], 2), v(FS, 16)))
    for r in range(8):
        A("v_or_b32 v%d, v%d, v%d" % (FV + r, FV + r, T0))
    A("s_nop 7")
    A("s_nop 7")
    for r in range(16):
        A("v_exp_f32 v%d, v%d" % (FS + r, FS + r))
    A("s_nop 0")
    for j in range(8):
        A("v_cvt_pk_bf16_f32 v%d, v%d, v%d" % (FP + j, FS + 2 * j, FS + 2 * j + 1))
    A("s_nop 1")
    A("v_mfma_f32_32x32x16_bf16 %s, %s, %s, %s" % (v(T, 16), v(FV, 4), v(FP, 4), v(T, 16)))
    A("v_mfma_f32_32x32x16_bf16 %s, %s, %s, %s" % (v(T, 16), v(FV + 4, 4), v(FP + 4, 4), v(T, 16)))
    A("s_add_u32 s33, s33, 2560")
    A("s_cmp_lt_u32 s33, %d" % NKV)
    A("s_cbranch_scc1 %s" % f2)
    A("s_nop 7")
    A("s_nop 7")
    A("s_mov_b32 s32, 1")
    A("s_branch %s" % norm)
    A.label(end)
    A("s_endpgm")
    return dict(name=name, grid=256, block=512, lds=163840, body=A.text(), vgpr=136)

if __name__ == "__main__":
    import sys
    k = gen_k2(force_fallback=("fb" in sys.argv), timing=("t" in sys.argv), prio=("p" in sys.argv), unroll=("u" in sys.argv))
    open(sys.argv[1], "w").write(compose([k]))
```

```python
from asmlib import *
from gemm import *

def gen_k3(name="k3_kernel", timing=False, D=4, PRE=2, NB=2):
    A = Asm()
    ACC = 4
    XF = [16, 20]
    WF = [24, 36]
    AV = 48
    TA = 56
    PK = 68
    GB = 76
    vG, vLane, vI, vGq, vAo, vAr, vEx = 96, 97, 98, 99, 100, 101, 102
    T0, T1, T2 = 103, 104, 105
    SW, SO, SA, SG, SOUT = 8, 12, 16, 20, 24
    sW, sL0, sN0, sLT, sNH, sKS = 6, 7, 28, 29, 30, 31
    sXg, sWg, sM0w, sM0x = 52, 53, 54, 55
    G = Gemm(A, 64, 128, D, GB, sW, SO, SW)
    assert GB + G.nregs <= 96
    ATL = D * G.buf
    NC = 5
    end = name + "_end"
    A("s_cmp_ge_u32 s2, 256")
    A("s_cbranch_scc1 %s" % end)
    A("s_load_dwordx2 s[4:5], s[0:1], 136")
    A("s_load_dwordx2 s[32:33], s[0:1], 104")
    A("s_load_dwordx2 s[34:35], s[0:1], 120")
    if timing:
        A("s_load_dwordx2 s[40:41], s[0:1], 128")
        A("s_memtime s[42:43]")
    A("v_lshrrev_b32 v%d, 6, v0" % T0)
    A("v_and_b32 v%d, 63, v0" % vLane)
    A("v_readfirstlane_b32 s%d, v%d" % (sW, T0))
    A("v_and_b32 v%d, 15, v0" % vI)
    A("v_bfe_u32 v%d, v0, 4, 2" % vGq)
    A("s_and_b32 s%d, s2, 31" % sL0)
    A("s_lshl_b32 s%d, s%d, 6" % (sL0, sL0))
    A("s_lshr_b32 s%d, s2, 5" % sN0)
    A("s_mul_i32 s%d, s%d, 80" % (sN0, sN0))
    A("s_and_b32 s%d, s%d, 3" % (sLT, sW))
    A("s_bfe_u32 s%d, s%d, 0x10002" % (sNH, sW))
    A("s_lshr_b32 s%d, s%d, 3" % (sKS, sW))
    A("s_lshl_b32 s%d, s%d, 1" % (sWg, sN0))
    G.setup(vLane, vI, vGq)
    G.init_soffs(sL0, sWg, sXg, sM0w, sM0x)
    A("s_mul_i32 s36, s%d, 40" % sW)
    A("v_add_u32 v%d, s36, v%d" % (T0, vLane))
    A("v_lshrrev_b32 v%d, 3, v%d" % (T1, T0))
    A("v_and_b32 v%d, 7, v%d" % (T0, T0))
    A("v_lshlrev_b32 v%d, 12, v%d" % (vAo, T1))
    A("v_lshl_add_u32 v%d, v%d, 4, v%d" % (vAo, T0, vAo))
    A("s_waitcnt lgkmcnt(0)")
    if timing: A("s_memtime s[56:57]")
    srd(A, SW, 32, 0, 640 * 1280)
    srd(A, SO, 4, WS_O, NQ)
    for c in range(PRE):
        G.dma(c)
        if c < NB: A("s_barrier")
    srd(A, SA, 4, WS_AT, NQ)
    srd(A, SG, 4, WS_G, 8192)
    srd(A, SOUT, 34, 0, NQ)
    A("s_lshl_b32 s36, s%d, 4" % sNH)
    A("s_mul_i32 s37, s%d, %d" % (sKS, 32 * 160))
    A("s_add_u32 s36, s36, s37")
    A("s_mul_i32 s37, s%d, %d" % (sLT, 16 * G.pitch))
    G.add_read_offsets(36, 37)
    lab = name + "_ks0"
    A("s_cmp_eq_u32 s%d, 0" % sKS)
    A("s_cbranch_scc1 %s" % lab)
    A("v_mov_b32 v%d, v%d" % (G.vXr + 0, G.vXr + 1))
    A("v_mov_b32 v%d, v%d" % (G.vXr + 2, G.vXr + 3))
    A.label(lab)
    for c in range(PRE, D):
        G.dma(c)
        if c < NB: A("s_barrier")
    A("s_lshl_b32 s36, s%d, 12" % sN0)
    A("s_lshl_b32 s37, s%d, 1" % sL0)
    A("s_add_u32 s36, s36, s37")
    A("s_mul_i32 s37, s%d, 640" % sW)
    A("s_add_u32 m0, s37, %d" % ATL)
    set_exec(A, 40)
    A("buffer_load_dwordx4 v%d, s[%d:%d], s36 offen lds" % (vAo, SA, SA + 3))
    A("s_mov_b64 exec, -1")
    A("s_lshl_b32 s36, s%d, 4" % sLT)
    A("s_add_u32 s%d, s%d, s36" % (sL0, sL0))
    A("v_lshlrev_b32 v%d, 2, v%d" % (T0, vI))
    A("s_lshl_b32 s37, s%d, 2" % sL0)
    A("buffer_load_dword v%d, v%d, s[%d:%d], s37 offen" % (vG, T0, SG, SG + 3))
    G.other(2)
    if timing: A("s_memtime s[58:59]")
    A("v_mul_u32_u24 v%d, 20, v%d" % (T0, vGq))
    A("v_lshrrev_b32 v%d, 2, v%d" % (T1, vI))
    A("v_add_u32 v%d, v%d, v%d" % (T0, T0, T1))
    A("s_lshl_b32 s36, s%d, 3" % sNH)
    A("v_add_u32 v%d, s36, v%d" % (T0, T0))
    A("v_lshlrev_b32 v%d, 7, v%d" % (vAr, T0))
    A("v_and_b32 v%d, 3, v%d" % (T1, vLane))
    A("v_lshl_add_u32 v%d, v%d, 3, v%d" % (vAr, T1, vAr))
    A("s_lshl_b32 s36, s%d, 5" % sLT)
    A("s_add_u32 s36, s36, %d" % ATL)
    A("v_add_u32 v%d, s36, v%d" % (vAr, vAr))
    for r in range(12):
        A("v_mov_b32 v%d, 0" % (ACC + r))
    def reads(c, s_, buf):
        G.xread(c, s_, 0, XF[buf])
        for t in range(3):
            G.wread(c, s_, t, WF[buf] + 4 * t)
    def mfmas(buf):
        for t in range(3):
            A("v_mfma_f32_16x16x32_bf16 %s, %s, %s, %s" % (v(ACC + 4 * t, 4), v(WF[buf] + 4 * t, 4), v(XF[buf], 4), v(ACC + 4 * t, 4)))
    for c in range(NC):
        G.wait_chunk(c)
        if timing: A("s_memtime s[%d:%d]" % (60 + 4 * c, 61 + 4 * c))
        A("s_barrier")
        if timing: A("s_memtime s[%d:%d]" % (62 + 4 * c, 63 + 4 * c))
        if c >= 1 and c - 1 + D < NC:
            G.dma(c - 1 + D)
        G.set_bias(((c % D) * G.buf) // 32768 * 32768)
        reads(c, 0, 0)
        reads(c, 2, 1)
        A("s_waitcnt lgkmcnt(7)")
        mfmas(0)
        A("s_waitcnt lgkmcnt(0)")
        mfmas(1)
    if timing: A("s_memtime s[46:47]")
    EX = G.buf * 1
    A("s_xor_b32 s36, s%d, 8" % sW)
    A("s_mul_i32 s36, s36, 1536")
    A("s_mul_i32 s37, s%d, 1536" % sW)
    A("v_mul_u32_u24 v%d, 24, v%d" % (T0, vLane))
    A("v_add_u32 v%d, s36, v%d" % (T1, T0))
    A("v_add_u32 v%d, s37, v%d" % (vEx, T0))
    A("s_nop 4")
    l1 = name + "_e1"; l2 = name + "_e2"
    A("s_cmp_eq_u32 s%d, 0" % sKS)
    A("s_cbranch_scc0 %s" % l1)
    for j in range(3):
        A("ds_write_b64 v%d, %s offset:%d" % (T1, v(ACC + 6 + 2 * j, 2), EX + 8 * j))
    A("s_branch %s" % l2)
    A.label(l1)
    for j in range(3):
        A("ds_write_b64 v%d, %s offset:%d" % (T1, v(ACC + 2 * j, 2), EX + 8 * j))
    for r in range(6):
        A("v_mov_b32 v%d, v%d" % (ACC + r, ACC + 6 + r))
    A.label(l2)
    A("s_waitcnt vmcnt(0) lgkmcnt(0)")
    A("s_barrier")
    for j in range(3):
        A("ds_read_b64 %s, v%d offset:%d" % (v(TA + 2 * j, 2), vEx, EX + 8 * j))
    for t in range(3):
        A("ds_read_b64_tr_b16 %s, v%d offset:%d" % (v(AV + 2 * t, 2), vAr, t * 512))
    A("v_sub_f32 v%d, 1.0, v%d" % (T0, vG))
    A("v_cvt_pk_bf16_f32 v%d, v%d, v%d" % (T0, T0, T0))
    A("v_and_b32 v%d, 0xffff0000, v%d" % (T0, T0))
    A("s_waitcnt lgkmcnt(3)")
    for r in range(6):
        A("v_add_f32 v%d, v%d, v%d" % (ACC + r, ACC + r, TA + r))
    for j in range(3):
        A("v_cvt_pk_bf16_f32 v%d, v%d, v%d" % (PK + j, ACC + 2 * j, ACC + 2 * j + 1))
    for j in range(3):
        A("v_lshlrev_b32 v%d, 16, v%d" % (ACC + 2 * j, PK + j))
        A("v_and_b32 v%d, 0xffff0000, v%d" % (ACC + 2 * j + 1, PK + j))
    for n in range(6):
        A("v_mul_f32 v%d, v%d, v%d" % (ACC + n, ACC + n, T0))
    for j in range(3):
        A("v_cvt_pk_bf16_f32 v%d, v%d, v%d" % (PK + j, ACC + 2 * j, ACC + 2 * j + 1))
    for j in range(3):
        A("v_lshlrev_b32 v%d, 16, v%d" % (ACC + 2 * j, PK + j))
        A("v_and_b32 v%d, 0xffff0000, v%d" % (ACC + 2 * j + 1, PK + j))
    A("s_waitcnt lgkmcnt(0)")
    l3 = name + "_e3"
    A("s_cmp_eq_u32 s%d, 0" % sKS)
    A("s_cbranch_scc1 %s" % l3)
    for j in range(3):
        A("v_mov_b32 v%d, v%d" % (AV + j, AV + 3 + j))
    A.label(l3)
    for j in range(3):
        A("v_lshlrev_b32 v%d, 16, v%d" % (TA + 2 * j, AV + j))
        A("v_and_b32 v%d, 0xffff0000, v%d" % (TA + 2 * j + 1, AV + j))
    for n in range(6):
        A("v_mul_f32 v%d, v%d, v%d" % (TA + n, TA + n, vG))
    for j in range(3):
        A("v_cvt_pk_bf16_f32 v%d, v%d, v%d" % (PK + j, TA + 2 * j, TA + 2 * j + 1))
    for j in range(3):
        A("v_lshlrev_b32 v%d, 16, v%d" % (TA + 2 * j, PK + j))
        A("v_and_b32 v%d, 0xffff0000, v%d" % (TA + 2 * j + 1, PK + j))
    for n in range(6):
        A("v_add_f32 v%d, v%d, v%d" % (ACC + n, ACC + n, TA + n))
    for j in range(3):
        A("v_cvt_pk_bf16_f32 v%d, v%d, v%d" % (PK + j, ACC + 2 * j, ACC + 2 * j + 1))
    A("v_mul_u32_u24 v%d, 1280, v%d" % (T1, vI))
    A("v_mul_u32_u24 v%d, 40, v%d" % (T2, vGq))
    A("v_add_u32 v%d, v%d, v%d" % (T1, T1, T2))
    A("s_mul_i32 s36, s%d, 1280" % sL0)
    A("s_lshl_b32 s37, s%d, 1" % sN0)
    A("s_add_u32 s36, s36, s37")
    A("s_lshl_b32 s37, s%d, 4" % sNH)
    A("s_add_u32 s36, s36, s37")
    A("s_mul_i32 s37, s%d, 12" % sKS)
    A("s_add_u32 s36, s36, s37")
    A("buffer_store_dwordx3 %s, v%d, s[%d:%d], s36 offen" % (v(PK, 3), T1, SOUT, SOUT + 3))
    if timing:
        A("s_memtime s[48:49]")
        A("s_waitcnt lgkmcnt(0)")
        A("s_cmp_lt_u32 s2, 1")
        A("s_cbranch_scc0 %s" % end)
        A("s_lshl_b32 s50, s%d, 4" % sW)
        A("s_cmp_lt_u32 s%d, 4" % sW)
        A("s_cbranch_scc0 %s" % end)
        A("s_lshl_b32 s50, s50, 2")
        A("v_mov_b32 v%d, s50" % T0)
        st = [56, 58] + [60 + 2 * i for i in range(10)] + [46, 48]
        for i, r in enumerate(st):
            A("s_sub_u32 s%d, s%d, s42" % (r, r))
            A("v_mov_b32 v%d, s%d" % (ACC + 1, r))
            A("global_store_dword v%d, v%d, s[40:41] offset:%d" % (T0, ACC + 1, 4 * i))
    A.label(end)
    A("s_endpgm")
    return dict(name=name, grid=256, block=1024, lds=ATL + 10240, body=A.text(), vgpr=108)

if __name__ == "__main__":
    import sys
    k = gen_k3(timing=("t" in sys.argv), NB=int(sys.argv[3]) if len(sys.argv) > 3 else 2)
    open(sys.argv[1], "w").write(compose([k]))
```

```python
import sys
from asmlib import *
import k1, k2, k3
NAME = "gated_mix__ssm_conv_s4__grouped_kv_mqa__prompt"
def build(fb=False, timing=False):
    a = k1.gen_k1("k1_kernel")
    b = k2.gen_k2("k2_kernel", force_fallback=fb)
    c = k3.gen_k3(NAME + "_kernel")
    hdr = open("cdna_kernels/%s.s.ref" % NAME).read().split("; Override launch")[0]
    return hdr + compose([a, b, c])
if __name__ == "__main__":
    open(sys.argv[1], "w").write(build(fb="fb" in sys.argv))
```

```python
from asmlib import *
import struct, math

def f32bits(x):
    return struct.unpack("<I", struct.pack("<f", x))[0]

GMOD = ""
LOG2E = 1.4426950408889634
CSCALE = (20 ** -0.5) * LOG2E

sW = 6
vLane = 1

def stamp(A, timing, n):
    if timing is not False: A("s_memtime s[%d:%d]" % (60 + 2 * n, 61 + 2 * n))

def dump_stamps(A, timing, nst, end, wg, vt=2):
    if timing is False or (timing is not True and (timing >= 160) != (wg >= 160)): return
    if timing is not True: wg = timing
    A("s_waitcnt lgkmcnt(0)")
    A("s_cmp_eq_u32 s2, %d" % wg)
    A("s_cbranch_scc0 %s" % end)
    A("s_load_dwordx2 s[40:41], s[0:1], 128")
    A("s_and_b32 s50, s%d, 3" % sW)
    A("s_cmp_eq_u32 s50, 0")
    A("s_cbranch_scc0 %s" % end)
    A("s_lshl_b32 s50, s%d, 4" % sW)
    A("v_mov_b32 v%d, s50" % vt)
    A("s_waitcnt lgkmcnt(0)")
    for i in range(1, nst):
        A("s_sub_u32 s51, s%d, s60" % (60 + 2 * i))
        A("v_mov_b32 v%d, s51" % (vt + 1))
        A("global_store_dword v%d, v%d, s[40:41] offset:%d" % (vt, vt + 1, 4 * (i - 1)))

def x_dma_setup(A, vX, t0, t1):
    for e in range(2):
        A("v_lshrrev_b32 v%d, 3, v%d" % (t0, vLane))
        if e: A("v_add_u32 v%d, 8, v%d" % (t0, t0))
        A("v_mul_u32_u24 v%d, 1280, v%d" % (vX + e, t0))
        A("v_lshrrev_b32 v%d, 4, v%d" % (t0, vLane))
        if e: A("v_add_u32 v%d, 4, v%d" % (t0, t0))
        A("v_and_b32 v%d, 7, v%d" % (t1, vLane))
        A("v_xor_b32 v%d, v%d, v%d" % (t0, t0, t1))
        A("v_lshl_add_u32 v%d, v%d, 4, v%d" % (vX + e, t0, vX + e))

def x_read_setup(A, vXr, sRowOff128, xbase, t0, t1, t2):
    A("v_and_b32 v%d, 31, v%d" % (t0, vLane))
    A("v_bfe_u32 v%d, v%d, 1, 3" % (t1, vLane))
    A("v_lshrrev_b32 v%d, 5, v%d" % (t2, vLane))
    A("v_xor_b32 v%d, v%d, v%d" % (t1, t1, t2))
    A("v_lshlrev_b32 v%d, 7, v%d" % (t0, t0))
    A("v_add_u32 v%d, s%d, v%d" % (t0, sRowOff128, t0))
    if xbase: A("v_add_u32 v%d, %d, v%d" % (t0, xbase, t0))
    for s_ in range(4):
        A("v_xor_b32 v%d, %d, v%d" % (t2, 2 * s_, t1))
        A("v_lshl_add_u32 v%d, v%d, 4, v%d" % (vXr + s_, t2, t0))

def role_q(A, end, timing):
    D = 5; BUF = 32768; WOFF = 16384
    SX, SWT, SO = 8, 12, 16
    sRow0, sN0b, sJ = 20, 21, 22
    t0, t1, t2 = 2, 3, 4
    A("s_cmp_ge_u32 s%d, 12" % sW)
    A("s_cbranch_scc1 %s" % ("k1_gate" if AUX else end))
    A("s_load_dwordx2 s[32:33], s[0:1], 0")
    A("s_load_dwordx2 s[34:35], s[0:1], 80")
    A("s_load_dwordx2 s[4:5], s[0:1], 136")
    A("s_sub_u32 s23, s2, 160")
    A("s_and_b32 s%d, s23, 15" % sRow0)
    A("s_lshl_b32 s%d, s%d, 7" % (sRow0, sRow0))
    A("s_lshr_b32 s%d, s23, 4" % sN0b)
    A("s_lshl_b32 s%d, s%d, 8" % (sN0b, sN0b))
    A("s_cmp_lt_u32 s%d, 4" % sW)
    A("s_cbranch_scc1 q_comp")
    vX, vWd = 8, 10
    A("s_sub_u32 s%d, s%d, 4" % (sJ, sW))
    x_dma_setup(A, vX, t0, t1)
    A("v_lshrrev_b32 v%d, 4, v%d" % (t0, vLane))
    A("v_mul_u32_u24 v%d, 1280, v%d" % (vWd, t0))
    A("v_and_b32 v%d, 1, v%d" % (t1, t0))
    A("v_lshlrev_b32 v%d, 1, v%d" % (t1, t1))
    A("v_lshrrev_b32 v%d, 1, v%d" % (t0, t0))
    A("v_lshl_add_u32 v%d, v%d, 3, v%d" % (t1, t0, t1))
    A("v_and_b32 v%d, 15, v%d" % (t0, vLane))
    A("v_xor_b32 v%d, v%d, v%d" % (t0, t0, t1))
    A("v_lshl_add_u32 v%d, v%d, 4, v%d" % (vWd, t0, vWd))
    sXg, sWg, sM0 = 24, 25, 26
    A("s_lshl_b32 s27, s%d, 4" % sJ)
    A("s_add_u32 s27, s27, s%d" % sRow0)
    A("s_mul_i32 s%d, s27, 1280" % sXg)
    A("s_mul_i32 s%d, s%d, %d" % (sWg, sJ, 8 * 1280))
    A("s_add_u32 s%d, s%d, s%d" % (sWg, sWg, sN0b))
    A("s_lshl_b32 s%d, s%d, 11" % (sM0, sJ))
    A("s_waitcnt lgkmcnt(0)")
    srd(A, SX, 32, 0, NQ)
    srd(A, SWT, 34, 0, 640 * 1280)
    srd(A, SO, 4, WS_Q, NQ)
    issued = []
    def dma(c):
        b = (c % D) * BUF
        for e in range(2):
            A("s_add_u32 m0, s%d, %d" % (sM0, b + e * 1024))
            A("s_add_u32 s28, s%d, %d" % (sXg, c * 128))
            A("buffer_load_dwordx4 v%d, s[%d:%d], s28 offen lds" % (vX + e, SX, SX + 3))
            issued.append(c)
        for e in range(2):
            A("s_add_u32 m0, s%d, %d" % (sM0, b + WOFF + e * 1024))
            A("s_add_u32 s28, s%d, %d" % (sWg, (64 * c + 4 * e) * 1280))
            A("buffer_load_dwordx4 v%d, s[%d:%d], s28 offen lds" % (vWd, SWT, SWT + 3))
            issued.append(c)
    for c in range(D):
        dma(c)
    vSl, vSg = 12, 13
    A("v_lshrrev_b32 v%d, 4, v%d" % (t0, vLane))
    A("v_and_b32 v%d, 15, v%d" % (t1, vLane))
    A("v_mul_u32_u24 v%d, 272, v%d" % (vSl, t0))
    A("v_lshl_add_u32 v%d, v%d, 4, v%d" % (vSl, t1, vSl))
    A("s_mul_i32 s27, s%d, %d" % (sJ, 16 * 272))
    A("v_add_u32 v%d, s27, v%d" % (vSl, vSl))
    A("v_mul_u32_u24 v%d, 1280, v%d" % (vSg, t0))
    A("v_lshl_add_u32 v%d, v%d, 4, v%d" % (vSg, t1, vSg))
    for c in range(10):
        last = max(i for i, x in enumerate(issued) if x == c)
        A("s_waitcnt vmcnt(%d)" % (len(issued) - 1 - last))
        A("s_barrier")
        if c >= 2 and c - 2 + D <= 9:
            dma(c - 2 + D)
    A("s_barrier")
    for e in range(4):
        A("ds_read_b128 %s, v%d offset:%d" % (v(16 + 4 * e, 4), vSl, e * 4 * 272))
    A("s_add_u32 s28, s%d, s%d" % (sXg, sN0b))
    for e in range(4):
        A("s_waitcnt lgkmcnt(%d)" % (3 - e))
        A("buffer_store_dwordx4 %s, v%d, s[%d:%d], s28 offen offset:%d" % (v(16 + 4 * e, 4), vSg, SO, SO + 3, 0) if e == 0 else
          "s_add_u32 s29, s28, %d\nbuffer_store_dwordx4 %s, v%d, s[%d:%d], s29 offen" % (e * 4 * 1280, v(16 + 4 * e, 4), vSg, SO, SO + 3))
        if e: A("s_nop 0")
    stamp(A, timing, 3)
    dump_stamps(A, timing, 4, end, 160)
    A("s_branch %s" % end)
    A.label("q_comp")
    vXr, vWr = 8, 12
    XF = [[16, 20], [24, 28]]; WF = [[32, 36], [40, 44]]
    ACC = 64
    A("s_and_b32 s24, s%d, 1" % sW)
    A("s_lshl_b32 s24, s24, 13")
    x_read_setup(A, vXr, 24, 0, t0, t1, t2)
    A("v_lshrrev_b32 v%d, 5, v%d" % (t0, vLane))
    A("v_bfe_u32 v%d, v%d, 2, 2" % (t1, vLane))
    A("v_lshl_add_u32 v%d, v%d, 3, v%d" % (t0, t0, t1))
    A("v_lshlrev_b32 v%d, 8, v%d" % (t0, t0))
    A("v_bfe_u32 v%d, v%d, 1, 1" % (t2, vLane))
    A("v_lshl_add_u32 v%d, v%d, 3, v%d" % (t0, t2, t0))
    A("v_add_u32 v%d, %d, v%d" % (t0, WOFF, t0))
    A("v_and_b32 v%d, 1, v%d" % (t2, vLane))
    A("v_lshlrev_b32 v%d, 2, v%d" % (t2, t2))
    A("v_bfe_u32 v5, v%d, 4, 1" % vLane)
    A("v_or_b32 v%d, v%d, v5" % (t2, t2))
    A("s_lshr_b32 s25, s%d, 1" % sW)
    A("s_lshl_b32 s25, s25, 3")
    A("v_or_b32 v%d, s25, v%d" % (t2, t2))
    A("v_and_b32 v5, 1, v%d" % t1)
    A("v_lshlrev_b32 v5, 1, v5")
    A("v_xor_b32 v%d, v%d, v5" % (t2, t2))
    A("v_lshrrev_b32 v5, 1, v%d" % t1)
    A("v_lshlrev_b32 v5, 3, v5")
    A("v_xor_b32 v%d, v%d, v5" % (t2, t2))
    A("v_lshl_add_u32 v%d, v%d, 4, v%d" % (vWr, t2, t0))
    A("v_xor_b32 v%d, 2, v%d" % (t2, t2))
    A("v_lshl_add_u32 v%d, v%d, 4, v%d" % (vWr + 1, t2, t0))
    vSt = 14
    A("v_and_b32 v%d, 31, v%d" % (t0, vLane))
    A("v_mul_u32_u24 v%d, 272, v%d" % (vSt, t0))
    A("v_lshrrev_b32 v%d, 5, v%d" % (t0, vLane))
    A("v_lshl_add_u32 v%d, v%d, 6, v%d" % (vSt, t0, vSt))
    A("s_and_b32 s24, s%d, 1" % sW)
    A("s_mul_i32 s24, s24, %d" % (64 * 272))
    A("s_lshl_b32 s25, s25, 4")
    A("s_add_u32 s24, s24, s25")
    A("v_add_u32 v%d, s24, v%d" % (vSt, vSt))
    bias = [0]
    def set_bias(nb):
        d = nb - bias[0]
        if d:
            for r in list(range(vXr, vXr + 4)) + [vWr, vWr + 1]:
                A("v_add_u32 v%d, %d, v%d" % (r, d & 0xffffffff, r))
        bias[0] = nb
    def reads(S):
        c, s_ = divmod(S, 4); fb = S & 1
        b = (c % D) * BUF
        set_bias(b // 65536 * 65536)
        o = b - bias[0]
        for lg in range(2):
            A("ds_read_b128 %s, v%d offset:%d" % (v(XF[fb][lg], 4), vXr + s_, o + lg * 4096))
        for t in range(2):
            for h in range(2):
                A("ds_read_b64_tr_b16 %s, v%d offset:%d" % (v(WF[fb][t] + 2 * h, 2), vWr + t, o + s_ * 4096 + h * 1024))
    def mfma(S, i):
        fb = S & 1; lg, t = divmod(i, 2)
        a = ACC + 16 * (2 * lg + t)
        A("v_mfma_f32_32x32x16_bf16 %s, %s, %s, %s" % (v(a, 16), v(WF[fb][t], 4), v(XF[fb][lg], 4), "0" if S == 0 else v(a, 16)))
    A("s_barrier")
    stamp(A, timing, 1)
    reads(0)
    for S in range(40):
        c, s_ = divmod(S, 4)
        if S + 1 < 40:
            reads(S + 1)
            A("s_waitcnt lgkmcnt(6)")
        else:
            A("s_waitcnt lgkmcnt(0)")
        for i in range(4):
            mfma(S, i)
            if i == 0 and s_ == 2 and c + 1 < 10:
                A("s_barrier")
    stamp(A, timing, 2)
    A("s_nop 7")
    A("s_nop 3")
    for lg in range(2):
        for t in range(2):
            a = ACC + 16 * (2 * lg + t)
            for j in range(8):
                A("v_cvt_pk_bf16_f32 v%d, v%d, v%d" % (a + j, a + 2 * j, a + 2 * j + 1))
            for h in range(2):
                A("ds_write_b128 v%d, %s offset:%d" % (vSt, v(a + 4 * h, 4), lg * 32 * 272 + 32 * t + 16 * h))
    A("s_waitcnt lgkmcnt(0)")
    A("s_barrier")
    stamp(A, timing, 3)
    dump_stamps(A, timing, 4, end, 160)
    A("s_branch %s" % end)

def role_kv(A, end, timing):
    D = 5; XB = 65536; BUF = 16384
    SX, SK, SV, SO = 8, 12, 16, 20
    sRow0, sJ = 24, 25
    t0, t1, t2 = 2, 3, 4
    A("s_cmp_ge_u32 s%d, 12" % sW)
    A("s_cbranch_scc1 %s" % ("k1_wo" if AUX else end))
    A("s_load_dwordx2 s[32:33], s[0:1], 0")
    A("s_load_dwordx4 s[36:39], s[0:1], 88")
    A("s_load_dwordx2 s[4:5], s[0:1], 136")
    A("s_sub_u32 s%d, s2, 240" % sRow0)
    A("s_lshl_b32 s%d, s%d, 7" % (sRow0, sRow0))
    A("s_cmp_lt_u32 s%d, 4" % sW)
    A("s_cbranch_scc1 kv_comp")
    vX, vL16 = 8, 10
    A("s_sub_u32 s%d, s%d, 4" % (sJ, sW))
    x_dma_setup(A, vX, t0, t1)
    A("v_lshlrev_b32 v%d, 4, v%d" % (vL16, vLane))
    sXg, sM0 = 26, 27
    A("s_lshl_b32 s28, s%d, 4" % sJ)
    A("s_add_u32 s28, s28, s%d" % sRow0)
    A("s_mul_i32 s%d, s28, 1280" % sXg)
    A("s_lshl_b32 s%d, s%d, 11" % (sM0, sJ))
    A("s_waitcnt lgkmcnt(0)")
    srd(A, SX, 32, 0, NQ)
    srd(A, SK, 36, 0, 25600)
    srd(A, SV, 38, 0, 25600)
    issued = []
    def dma(c):
        b = XB + (c % D) * BUF
        for e in range(2):
            A("s_add_u32 m0, s%d, %d" % (sM0, b + e * 1024))
            A("s_add_u32 s29, s%d, %d" % (sXg, c * 128))
            A("buffer_load_dwordx4 v%d, s[%d:%d], s29 offen lds" % (vX + e, SX, SX + 3))
            issued.append(c)
    A("s_lshl_b32 s30, s%d, 10" % sJ)
    for e in range(4):
        for (sr, base) in ((SK, 0), (SV, 32768)):
            A("s_add_u32 s29, s30, %d" % (e * 8192))
            A("s_add_u32 m0, s29, %d" % base)
            A("s_nop 0")
            A("buffer_load_dwordx4 v%d, s[%d:%d], s29 offen lds" % (vL16, sr, sr + 3))
            issued.append(0)
    for c in range(D):
        dma(c)
    for c in range(10):
        last = max(i for i, x in enumerate(issued) if x == c)
        A("s_waitcnt vmcnt(%d)" % (len(issued) - 1 - last))
        A("s_barrier")
        if c >= 2 and c - 2 + D <= 9:
            dma(c - 2 + D)
    A("s_branch %s" % end)
    A.label("kv_comp")
    vXr, vWr = 8, 12
    XF = [16, 20]; KF = [24, 28]; VF = [32, 36]
    DK, DV = 64, 80
    A("s_lshl_b32 s26, s%d, 12" % sW)
    x_read_setup(A, vXr, 26, XB, t0, t1, t2)
    set_off = XB
    A("v_lshrrev_b32 v%d, 5, v%d" % (t0, vLane))
    A("v_bfe_u32 v%d, v%d, 2, 2" % (t1, vLane))
    A("v_lshl_add_u32 v%d, v%d, 3, v%d" % (t0, t0, t1))
    A("v_mul_u32_u24 v%d, 40, v%d" % (vWr, t0))
    A("v_bfe_u32 v%d, v%d, 4, 1" % (t0, vLane))
    A("v_lshl_add_u32 v%d, v%d, 5, v%d" % (vWr, t0, vWr))
    A("v_and_b32 v%d, 3, v%d" % (t0, vLane))
    A("v_lshl_add_u32 v%d, v%d, 3, v%d" % (vWr, t0, vWr))
    def reads(S):
        c, s_ = divmod(S, 4); fb = S & 1
        o = (c % D) * BUF
        if o >= 65536:
            A("v_add_u32 v%d, %d, v%d" % (t0, 65536, vXr + s_))
            A("ds_read_b128 %s, v%d offset:%d" % (v(XF[fb], 4), t0, o - 65536))
        else:
            A("ds_read_b128 %s, v%d offset:%d" % (v(XF[fb], 4), vXr + s_, o))
        for h in range(2):
            A("ds_read_b64_tr_b16 %s, v%d offset:%d" % (v(KF[fb] + 2 * h, 2), vWr, S * 640 + h * 160))
        for h in range(2):
            A("ds_read_b64_tr_b16 %s, v%d offset:%d" % (v(VF[fb] + 2 * h, 2), vWr, 32768 + S * 640 + h * 160))
    A("s_barrier")
    reads(0)
    for S in range(40):
        c, s_ = divmod(S, 4); fb = S & 1
        if S + 1 < 40:
            reads(S + 1)
            A("s_waitcnt lgkmcnt(5)")
        else:
            A("s_waitcnt lgkmcnt(0)")
        A("v_mfma_f32_32x32x16_bf16 %s, %s, %s, %s" % (v(DK, 16), v(KF[fb], 4), v(XF[fb], 4), "0" if S == 0 else v(DK, 16)))
        if s_ == 2 and c + 1 < 10:
            A("s_barrier")
        A("v_mfma_f32_32x32x16_bf16 %s, %s, %s, %s" % (v(DV, 16), v(XF[fb], 4), v(VF[fb], 4), "0" if S == 0 else v(DV, 16)))
    A("s_waitcnt lgkmcnt(0)")
    srd(A, SO, 4, WS_KV, NKV)
    A("s_lshr_b32 s26, s%d, 5" % sRow0)
    A("s_add_u32 s26, s26, s%d" % sW)
    A("s_mul_i32 s26, s26, 2560")
    vK1, vK2, vV = 8, 9, 10
    A("v_and_b32 v%d, 31, v%d" % (t0, vLane))
    A("v_lshrrev_b32 v%d, 5, v%d" % (t1, vLane))
    A("v_lshlrev_b32 v%d, 4, v%d" % (vK1, t0))
    A("v_lshl_add_u32 v%d, v%d, 3, v%d" % (vK1, t1, vK1))
    A("v_lshlrev_b32 v%d, 30, v%d" % (vK2, t1))
    A("v_lshl_add_u32 v%d, v%d, 3, v%d" % (vK2, t0, vK2))
    A("v_mul_u32_u24 v%d, 320, v%d" % (vV, t1))
    A("v_lshl_add_u32 v%d, v%d, 4, v%d" % (vV, t0, vV))
    A("v_cmp_gt_u32 vcc, 20, v%d" % t0)
    A("v_mov_b32 v%d, 0x40000000" % t2)
    A("s_nop 1")
    A("v_cndmask_b32 v%d, v%d, v%d, vcc" % (vV, t2, vV))
    A("s_nop 7")
    for j in range(6):
        A("v_cvt_pk_bf16_f32 v%d, v%d, v%d" % (16 + j, DK + 2 * j, DK + 2 * j + 1))
    for j in range(6):
        A("v_lshlrev_b32 v%d, 16, v%d" % (DK + 2 * j, 16 + j))
        A("v_and_b32 v%d, 0xffff0000, v%d" % (DK + 2 * j + 1, 16 + j))
    A("s_mov_b32 s27, 0x%x" % f32bits(CSCALE))
    for r in range(12):
        A("v_mul_f32 v%d, s27, v%d" % (DK + r, DK + r))
    for j in range(6):
        A("v_cvt_pk_bf16_f32 v%d, v%d, v%d" % (16 + j, DK + 2 * j, DK + 2 * j + 1))
    for j in range(8):
        A("v_cvt_pk_bf16_f32 v%d, v%d, v%d" % (24 + j, DV + 2 * j, DV + 2 * j + 1))
    A("buffer_store_dwordx2 %s, v%d, s[%d:%d], s26 offen" % (v(16, 2), vK1, SO, SO + 3))
    A("buffer_store_dwordx2 %s, v%d, s[%d:%d], s26 offen offset:512" % (v(18, 2), vK1, SO, SO + 3))
    A("buffer_store_dwordx2 %s, v%d, s[%d:%d], s26 offen offset:1024" % (v(20, 2), vK2, SO, SO + 3))
    A("buffer_store_dwordx4 %s, v%d, s[%d:%d], s26 offen offset:1280" % (v(24, 4), vV, SO, SO + 3))
    A("buffer_store_dwordx4 %s, v%d, s[%d:%d], s26 offen offset:1920" % (v(28, 4), vV, SO, SO + 3))
    A("s_branch %s" % end)

AUX = True
WS_WF  = 0x0300000
WS_CNT = 0x02C0000
NWF = 819200

def role_gate(A, end):
    SX, SGW, SG = 8, 12, 16
    NR = 7
    GX, GW, XU, WU = 16, 60, 68, 80
    A("s_load_dwordx2 s[32:33], s[0:1], 0")
    A("s_load_dwordx2 s[34:35], s[0:1], 112")
    A("s_load_dwordx2 s[4:5], s[0:1], 136")
    A("s_sub_u32 s20, s2, 160")
    A("s_lshl_b32 s20, s20, 2")
    A("s_add_u32 s20, s20, s%d" % sW)
    A("s_sub_u32 s20, s20, 12")
    A("v_mul_u32_u24 v2, 20, v%d" % vLane)
    A("v_mov_b32 v3, 0")
    A("s_mul_i32 s21, s20, 1280")
    A("s_lshl_b32 s22, s20, 2")
    A("s_waitcnt lgkmcnt(0)")
    srd(A, SX, 32, 0, NQ)
    srd(A, SGW, 34, 0, 1280)
    srd(A, SG, 4, WS_G, 8192)
    A("buffer_load_dwordx4 %s, v2, s[%d:%d], 0 offen" % (v(GW, 4), SGW, SGW + 3))
    A("buffer_load_dword v%d, v2, s[%d:%d], 0 offen offset:16" % (GW + 4, SGW, SGW + 3))
    for j in range(NR):
        A("s_add_u32 s23, s21, %d" % (j * 320 * 1280))
        A("buffer_load_dwordx4 %s, v2, s[%d:%d], s23 offen" % (v(GX + 6 * j, 4), SX, SX + 3))
        A("buffer_load_dword v%d, v2, s[%d:%d], s23 offen offset:16" % (GX + 6 * j + 4, SX, SX + 3))
    A("s_barrier")
    A("s_waitcnt vmcnt(%d)" % (2 * NR))
    for q in range(5):
        A("v_lshlrev_b32 v%d, 16, v%d" % (WU + 2 * q, GW + q))
        A("v_and_b32 v%d, 0xffff0000, v%d" % (WU + 2 * q + 1, GW + q))
    for j in range(NR):
        X = GX + 6 * j
        if j: A("s_barrier")
        if j == 0: A("s_waitcnt vmcnt(%d)" % (2 * (NR - 1)))
        if j == 1: A("s_waitcnt vmcnt(0)")
        for q in range(5):
            A("v_lshlrev_b32 v%d, 16, v%d" % (XU + 2 * q, X + q))
            A("v_and_b32 v%d, 0xffff0000, v%d" % (XU + 2 * q + 1, X + q))
        for q in range(10):
            A("v_mul_f32 v%d, v%d, v%d" % (XU + q, XU + q, WU + q))
        for q in range(5):
            A("v_cvt_pk_bf16_f32 v%d, v%d, v%d" % (X + q, XU + 2 * q, XU + 2 * q + 1))
        for q in range(5):
            A("v_lshlrev_b32 v%d, 16, v%d" % (XU + 2 * q, X + q))
            A("v_and_b32 v%d, 0xffff0000, v%d" % (XU + 2 * q + 1, X + q))
        for q in range(5):
            A("v_add_f32 v%d, v%d, v%d" % (XU + q, XU + q, XU + 5 + q))
        A("v_add_f32 v%d, v%d, v%d" % (XU, XU, XU + 1))
        A("v_add_f32 v%d, v%d, v%d" % (XU + 2, XU + 2, XU + 3))
        A("v_add_f32 v%d, v%d, v%d" % (XU, XU, XU + 4))
        A("v_add_f32 v%d, v%d, v%d" % (XU, XU, XU + 2))
        for ctl in ("row_shr:1", "row_shr:2", "row_shr:4", "row_shr:8"):
            A("s_nop 1")
            A("v_add_f32_dpp v%d, v%d, v%d %s row_mask:0xf bank_mask:0xf bound_ctrl:0" % (XU, XU, XU, ctl))
        A("s_nop 1")
        A("v_add_f32_dpp v%d, v%d, v%d row_bcast:15 row_mask:0xa bank_mask:0xf" % (XU, XU, XU))
        A("s_nop 1")
        A("v_add_f32_dpp v%d, v%d, v%d row_bcast:31 row_mask:0xc bank_mask:0xf" % (XU, XU, XU))
        A("v_cvt_pk_bf16_f32 v%d, v%d, v%d" % (XU, XU, XU))
        A("v_lshlrev_b32 v%d, 16, v%d" % (XU, XU))
        A("v_mul_f32 v%d, 0xbfb8aa3b, v%d" % (XU, XU))
        A("v_exp_f32 v%d, v%d" % (XU, XU))
        A("s_nop 0")
        A("v_add_f32 v%d, 1.0, v%d" % (XU, XU))
        A("v_rcp_f32 v%d, v%d" % (XU, XU))
        A("s_nop 0")
        A("v_cvt_pk_bf16_f32 v%d, v%d, v%d" % (XU, XU, XU))
        A("v_lshlrev_b32 v%d, 16, v%d" % (X, XU))
        A("s_add_u32 s23, s22, %d" % (j * 320 * 4))
        A("s_mov_b32 exec_lo, 0")
        A("s_mov_b32 exec_hi, 0x80000000")
        A("buffer_store_dword v%d, v3, s[%d:%d], s23 offen" % (X, SG, SG + 3))
        A("s_mov_b64 exec, -1")
    A("s_branch %s" % end)

def role_wo(A, end):
    SWO, SWF, SC = 8, 12, 16
    A("s_load_dwordx2 s[32:33], s[0:1], 104")
    A("s_load_dwordx2 s[4:5], s[0:1], 136")
    A("s_sub_u32 s20, s2, 240")
    A("s_lshl_b32 s20, s20, 2")
    A("s_add_u32 s20, s20, s%d" % sW)
    A("s_sub_u32 s20, s20, 12")
    A("v_lshrrev_b32 v2, 4, v%d" % vLane)
    A("v_and_b32 v3, 15, v%d" % vLane)
    A("v_mul_u32_u24 v4, %d, v2" % (8 * 1280))
    A("v_lshl_add_u32 v4, v3, 4, v4")
    A("v_lshrrev_b32 v5, 1, v3")
    A("v_mul_u32_u24 v5, 20480, v5")
    A("v_lshl_add_u32 v5, v2, 8, v5")
    A("v_and_b32 v6, 1, v3")
    A("v_lshl_add_u32 v5, v6, 7, v5")
    A("v_lshlrev_b32 v6, 7, v%d" % vLane)
    A("v_mov_b32 v7, 0")
    A("s_mov_b32 s40, 0x05040100")
    A("s_mov_b32 s41, 0x07060302")
    for n in range(2):
        A("s_add_u32 s21, s20, %d" % (64 * n))
        A("s_mul_i32 s22, s21, 205")
        A("s_lshr_b32 s22, s22, 10")
        A("s_mul_i32 s23, s22, 5")
        A("s_sub_u32 s23, s21, s23")
        A("s_mul_i32 s24, s22, %d" % (32 * 1280))
        A("s_lshl_b32 s25, s23, 8")
        A("s_add_u32 s%d, s24, s25" % (26 + 3 * n))
        A("s_add_u32 s%d, s%d, 5120" % (27 + 3 * n, 26 + 3 * n))
        A("s_mul_i32 s24, s23, %d" % (8 * 20480))
        A("s_lshl_b32 s25, s22, 10")
        A("s_add_u32 s%d, s24, s25" % (28 + 3 * n))
        A("s_cmp_ge_u32 s21, 100")
        A("s_cselect_b32 s%d, 0x1000000, s%d" % (28 + 3 * n, 28 + 3 * n))
    A("s_waitcnt lgkmcnt(0)")
    srd(A, SWO, 32, 0, 640 * 1280)
    srd(A, SWF, 4, WS_WF, NWF)
    srd(A, SC, 4, WS_CNT, 4096)
    L = [16, 48]; Pk = [80, 16]
    for n in range(2):
        for e in range(8):
            A("buffer_load_dwordx4 %s, v4, s[%d:%d], s%d offen offset:%d" % (v(L[n] + 4 * e, 4), SWO, SWO + 3, 26 + 3 * n + (e >> 2), (e & 3) * 1280))
    A("s_cmp_eq_u32 s20, 0")
    A("s_cbranch_scc0 k1_wo_nz")
    A("buffer_store_dword v7, v6, s[%d:%d], 0 offen" % (SC, SC + 3))
    A.label("k1_wo_nz")
    A("s_barrier")
    A("s_waitcnt vmcnt(0)")
    for n in range(2):
        for cc in range(8):
            for m in range(4):
                A("v_perm_b32 v%d, v%d, v%d, s%d" % (Pk[n] + 4 * cc + m, L[n] + 4 * (2 * m + 1) + (cc >> 1), L[n] + 4 * (2 * m) + (cc >> 1), 40 + (cc & 1)))
            A("buffer_store_dwordx4 %s, v5, s[%d:%d], s%d offen offset:%d" % (v(Pk[n] + 4 * cc, 4), SWF, SWF + 3, 28 + 3 * n, cc * 16))
    A("s_branch %s" % end)

CH = 34816
TAB = 17408
UB = 4 * CH
UP = 4576
CP0 = 2048
CPS = 4160
EX2 = 20480

GROWS = {0: [11], 1: [10], 2: [9], 3: [8], 4: [3], 5: [2], 6: [1], 7: [0],
         256: [14, 15], 258: [13], 260: [12, 7, 6], 262: [5], 264: [4],
         512: [18], 516: [17], 520: [16], 768: [22], 772: [21], 776: [20],
         1024: [25], 1032: [24], 1280: [27], 1288: [26], 1536: [29], 1544: [28], 1792: [31], 1800: [30]}

def role_ssm(A, end, timing):
    t0, t1, t2, t3 = 2, 3, 4, 5
    sD0, sCH, sHF = 7, 8, 9
    SX, SAT = 12, 36
    A("s_load_dwordx16 s[16:31], s[0:1], 0")
    A("s_load_dwordx2 s[32:33], s[0:1], 64")
    A("s_load_dwordx2 s[4:5], s[0:1], 136")
    A("s_and_b32 s10, s2, 7")
    A("s_mul_i32 s10, s10, 20")
    A("s_lshr_b32 s11, s2, 3")
    A("s_add_u32 s10, s10, s11")
    A("s_lshl_b32 s%d, s10, 2" % sD0)
    A("s_cmp_lt_u32 s%d, 8" % sW)
    A("s_cbranch_scc1 ssm_main")
    A("s_sub_u32 s10, s%d, 8" % sW)
    A("v_mul_u32_u24 v%d, 1280, v%d" % (t0, vLane))
    A("s_mul_i32 s11, s10, %d" % (256 * 1280))
    A("s_lshl_b32 s34, s%d, 1" % sD0)
    A("s_add_u32 s11, s11, s34")
    A("s_waitcnt lgkmcnt(0)")
    srd(A, SX, 16, 0, NQ)
    for e in range(4):
        A("s_add_u32 s34, s11, %d" % (e * 64 * 1280))
        A("buffer_load_dwordx2 %s, v%d, s[%d:%d], s34 offen %s" % (v(8 + 2 * e, 2), t0, SX, SX + 3, GMOD))
    A("v_mov_b32 v16, 0"); A("v_mov_b32 v17, 0"); A("v_mov_b32 v18, 0"); A("v_mov_b32 v19, 0")
    A("s_mul_i32 s34, s10, %d" % UP)
    A("s_add_u32 s34, s34, %d" % UB)
    A("v_lshlrev_b32 v%d, 4, v%d" % (t1, vLane))
    A("v_add_u32 v%d, s34, v%d" % (t1, t1))
    A("s_cmp_lt_u32 s10, 4")
    A("s_cbranch_scc0 ssm_nz")
    A("s_mov_b32 exec_lo, 0x3fffffff")
    A("s_mov_b32 exec_hi, 0")
    A("ds_write_b128 v%d, v[16:19]" % t1)
    A("s_mov_b64 exec, -1")
    A.label("ssm_nz")
    A("s_lshl_b32 s34, s10, 9")
    A("s_add_u32 s34, s34, %d" % (UB + 480))
    A("v_lshlrev_b32 v%d, 1, v%d" % (t1, vLane))
    A("v_add_u32 v%d, s34, v%d" % (t1, t1))
    for e in range(4):
        A("s_waitcnt vmcnt(%d)" % (3 - e))
        for cc in range(4):
            A("ds_write_b16%s v%d, v%d offset:%d" % ("_d16_hi" if cc & 1 else "", t1, 8 + 2 * e + (cc >> 1), cc * UP + e * 128))
    A("s_waitcnt lgkmcnt(0)")
    stamp(A, timing, 1)
    dump_stamps(A, timing, 2, end, 0)
    A("s_branch %s" % end)

    A.label("ssm_main")
    A("s_lshr_b32 s%d, s%d, 1" % (sCH, sW))
    A("s_and_b32 s%d, s%d, 1" % (sHF, sW))
    P = 8
    for i in range(6): A("v_mov_b32 v%d, 0" % (P + i))
    A("s_add_u32 s10, s%d, s%d" % (sD0, sCH))
    A("s_lshl_b32 s11, s10, 8")
    A("s_lshl_b32 s34, s%d, 7" % sHF)
    A("s_add_u32 s11, s11, s34")
    A("v_lshlrev_b32 v%d, 1, v%d" % (t0, vLane))
    A("v_add_u32 v%d, s11, v%d" % (t0, t0))
    A("s_lshl_b32 s11, s%d, 1" % sD0)
    A("s_waitcnt lgkmcnt(0)")
    for i in range(6):
        A("global_load_short_d16_hi v%d, v%d, s[%d:%d]" % (P + i, t0, 18 + 2 * i, 19 + 2 * i))
    A("s_load_dwordx2 s[34:35], s[30:31], s11")
    A("s_load_dwordx2 s[40:41], s[32:33], s11")
    srd(A, SAT, 4, WS_AT, NQ)
    vTab = 50
    A("s_mul_i32 s42, s%d, %d" % (sW, TAB))
    A("v_lshlrev_b32 v%d, 2, v%d" % (vTab, vLane))
    A("v_add_u32 v%d, s42, v%d" % (vTab, vTab))
    A("s_waitcnt lgkmcnt(0)")
    for (src, dst) in ((34, 43), (40, 44)):
        A("s_bitcmp1_b32 s%d, 1" % sCH)
        A("s_cselect_b32 s%d, s%d, s%d" % (dst, src + 1, src))
        A("s_lshl_b32 s45, s%d, 16" % dst)
        A("s_and_b32 s%d, s%d, 0xffff0000" % (dst, dst))
        A("s_bitcmp1_b32 s%d, 0" % sCH)
        A("s_cselect_b32 s%d, s%d, s45" % (dst, dst))
    sDskip = 44
    vDT = 6
    A("v_mov_b32 v%d, s43" % vDT)
    A("v_mul_f32 v%d, 0x%x, v%d" % (vDT, f32bits(LOG2E), vDT))
    A("v_exp_f32 v%d, v%d" % (vDT, vDT))
    A("s_nop 0")
    A("v_cvt_pk_bf16_f32 v%d, v%d, v%d" % (vDT, vDT, vDT))
    A("v_and_b32 v%d, 0xffff0000, v%d" % (vDT, vDT))
    Z, E1, E2, E4, W8, E256, E512, E1024, CB = 14, 16, 18, 20, 22, 24, 26, 28, 30
    GA, GB, FA, FB, T1, T2 = 32, 34, 38, 40, 42, 44
    PK = [46, 47, 48, 49]
    A("s_waitcnt vmcnt(0)")
    A("v_mul_f32 v%d, v%d, v%d" % (Z, vDT, P + 0))
    A("v_mul_f32 v%d, v%d, v%d" % (Z + 1, vDT, P + 1))
    A("v_mul_f32 v%d, v%d, v%d" % (P + 2, vDT, P + 2))
    A("v_mul_f32 v%d, v%d, v%d" % (P + 3, vDT, P + 3))
    A("v_mul_f32 v%d, 0x%x, v%d" % (Z, f32bits(LOG2E), Z))
    A("v_mul_f32 v%d, 0x%x, v%d" % (Z + 1, f32bits(1.0 / (2 * math.pi)), Z + 1))
    def cmul(d, a, b, t, conj=False):
        A("v_pk_mul_f32 %s, %s, %s op_sel_hi:[0,1]" % (v(t, 2), v(b, 2), v(a, 2)))
        A("v_pk_fma_f32 %s, %s, %s, %s op_sel:[1,1,0] op_sel_hi:[1,0,1] %s:[1,0,0]" % (v(d, 2), v(b, 2), v(a, 2), v(t, 2), "neg_hi" if conj else "neg_lo"))
    def anchor(d, m):
        if m == 1:
            A("v_exp_f32 v%d, v%d" % (t0, Z))
            A("v_fract_f32 v%d, v%d" % (t1, Z + 1))
        else:
            A("v_mul_f32 v%d, %s, v%d" % (t0, "%d.0" % m if m in (2, 4) else "0x%x" % f32bits(float(m)), Z))
            A("v_mul_f32 v%d, %s, v%d" % (t1, "%d.0" % m if m in (2, 4) else "0x%x" % f32bits(float(m)), Z + 1))
            A("v_exp_f32 v%d, v%d" % (t0, t0))
            A("v_fract_f32 v%d, v%d" % (t1, t1))
        A("v_cos_f32 v%d, v%d" % (d, t1))
        A("v_sin_f32 v%d, v%d" % (d + 1, t1))
        A("s_nop 0")
        A("v_mul_f32 v%d, v%d, v%d" % (d, d, t0))
        A("v_mul_f32 v%d, v%d, v%d" % (d + 1, d + 1, t0))
    anchor(W8, 8)
    anchor(E1, 1)
    cmul(CB, P + 4, P + 2, T1)
    A("v_xor_b32 v%d, 0x80000000, v%d" % (CB + 1, CB + 1))
    anchor(E256, 256)
    anchor(E512, 512)
    anchor(E1024, 1024)
    cmul(E2, E1, E1, T1)
    cmul(E4, E2, E2, T2)
    pki = [0]
    def put(src, rows):
        pk = PK[pki[0] & 3]; pki[0] += 1
        A("v_cvt_pk_bf16_f32 v%d, v%d, v%d" % (pk, src, src + 1))
        for r in rows:
            A("ds_write_b32 v%d, v%d offset:%d" % (vTab, pk, r * 272))
    fops = []
    fops.append(lambda: (A("v_mov_b32 v%d, 0x3f80" % PK[3]), A("ds_write_b32 v%d, v%d offset:%d" % (vTab, PK[3], 32 * 272))))
    fops.append(lambda: put(W8, [33]))
    cur = W8
    fr = [FA, FB]
    for j in range(2, 32):
        d = fr[j & 1]
        fops.append((lambda d=d, cur=cur, j=j: (cmul(d, cur, W8, T1), put(d, [32 + j]))))
        cur = d
    gops = []
    def gstep(d, a, b, base):
        gops.append(lambda: (cmul(d, a, b, T2, conj=True), put(d, GROWS[base])))
    gops.append(lambda: put(CB, GROWS[0]))
    g = [GA, GB]
    prev = CB
    for k in range(1, 8):
        gstep(g[k & 1], prev, E1, k); prev = g[k & 1]
    G256, G512, G1024, G1536 = 36, 52, 54, 56
    gstep(G256, CB, E256, 256)
    prev = G256
    for k, base in enumerate((258, 260, 262, 264)):
        gstep(g[k & 1], prev, E2, base); prev = g[k & 1]
    gstep(G512, CB, E512, 512)
    gstep(GA, G512, E4, 516); gstep(GB, GA, E4, 520)
    gstep(G256, G512, E256, 768)
    gstep(GA, G256, E4, 772); gstep(GB, GA, E4, 776)
    gstep(G1024, CB, E1024, 1024)
    gstep(GA, G1024, W8, 1032)
    gstep(GB, G1024, E256, 1280); gstep(GA, GB, W8, 1288)
    gstep(G1536, G1024, E512, 1536); gstep(GA, G1536, W8, 1544)
    gstep(GB, G1536, E256, 1792); gstep(GA, GB, W8, 1800)
    n = max(len(fops), len(gops))
    for i in range(n):
        if i < len(fops): fops[i]()
        if i < len(gops): gops[i]()
    stamp(A, timing, 1)
    AF, BF, DK = 64, 96, 16
    A("v_and_b32 v%d, 31, v%d" % (t0, vLane))
    A("v_mul_u32_u24 v%d, 272, v%d" % (t0, t0))
    A("v_lshrrev_b32 v%d, 5, v%d" % (t1, vLane))
    A("v_lshl_add_u32 v%d, v%d, 4, v%d" % (t0, t1, t0))
    A("v_add_u32 v%d, s42, v%d" % (t0, t0))
    for t in range(8):
        A("ds_read_b128 %s, v%d offset:%d" % (v(AF + 4 * t, 4), t0, 32 * t))
        A("ds_read_b128 %s, v%d offset:%d" % (v(BF + 4 * t, 4), t0, 32 * 272 + 32 * t))
    for t in range(8):
        A("s_waitcnt lgkmcnt(%d)" % (14 - 2 * t))
        A("v_mfma_f32_32x32x16_bf16 %s, %s, %s, %s" % (v(DK, 16), v(AF + 4 * t, 4), v(BF + 4 * t, 4), "0" if t == 0 else v(DK, 16)))
    vL16 = 7
    A("v_lshlrev_b32 v%d, 4, v%d" % (vL16, vLane))
    A("v_add_u32 v%d, s42, v%d" % (t0, vL16))
    A("s_xor_b32 s45, s%d, 1" % sW)
    A("s_mul_i32 s45, s45, %d" % TAB)
    A("v_add_u32 v%d, s45, v%d" % (t1, vL16))
    A("s_mul_i32 s46, s%d, %d" % (sCH, CH))
    A("s_nop 7")
    A("s_nop 1")
    A("s_cmp_eq_u32 s%d, 0" % sHF)
    A("s_cbranch_scc0 ssm_x1")
    A("ds_write_b128 v%d, %s" % (t0, v(DK + 8, 4)))
    A("ds_write_b128 v%d, %s offset:1024" % (t0, v(DK + 12, 4)))
    A("s_branch ssm_x2")
    A.label("ssm_x1")
    A("ds_write_b128 v%d, %s" % (t0, v(DK, 4)))
    A("ds_write_b128 v%d, %s offset:1024" % (t0, v(DK + 4, 4)))
    A.label("ssm_x2")
    A("s_waitcnt lgkmcnt(0)")
    A("s_barrier")
    stamp(A, timing, 2)
    R = 32
    A("ds_read_b128 %s, v%d" % (v(R, 4), t1))
    A("ds_read_b128 %s, v%d offset:1024" % (v(R + 4, 4), t1))
    A("v_and_b32 v%d, 31, v%d" % (t2, vLane))
    A("v_lshrrev_b32 v%d, 5, v%d" % (t3, vLane))
    A("v_lshlrev_b32 v%d, 4, v%d" % (t2, t2))
    A("s_add_u32 s47, s46, %d" % (CP0 + 4080))
    A("v_sub_u32 v%d, s47, v%d" % (t2, t2))
    A("s_waitcnt lgkmcnt(0)")
    A("s_cmp_eq_u32 s%d, 0" % sHF)
    A("s_cbranch_scc0 ssm_y1")
    for r in range(8): A("v_add_f32 v%d, v%d, v%d" % (DK + r, DK + r, R + r))
    A("v_lshlrev_b32 v%d, 9, v%d" % (t3, t3))
    A("v_sub_u32 v%d, v%d, v%d" % (t2, t2, t3))
    for j in range(4): A("v_cvt_pk_bf16_f32 v%d, v%d, v%d" % (R + j, DK + 2 * j, DK + 2 * j + 1))
    A("ds_write_b128 v%d, %s" % (t2, v(R, 4)))
    A("v_mov_b32 v%d, 0" % (R + 4)); A("v_mov_b32 v%d, 0" % (R + 5)); A("v_mov_b32 v%d, 0" % (R + 6)); A("v_mov_b32 v%d, 0" % (R + 7))
    A("s_add_u32 s47, s46, %d" % (CP0 + 4096))
    A("v_add_u32 v%d, s47, v%d" % (t3, vL16))
    A("s_mov_b64 exec, 0xf")
    A("ds_write_b128 v%d, %s" % (t3, v(R + 4, 4)))
    A("s_mov_b64 exec, -1")
    A("s_branch ssm_y2")
    A.label("ssm_y1")
    for r in range(8): A("v_add_f32 v%d, v%d, v%d" % (DK + r, DK + 8 + r, R + r))
    A("v_lshlrev_b32 v%d, 9, v%d" % (R + 12, t3))
    A("v_sub_u32 v%d, v%d, v%d" % (R + 12, t2, R + 12))
    A("v_subrev_u32 v%d, 1024, v%d" % (R + 12, R + 12))
    A("v_cvt_pk_bf16_f32 v%d, v%d, v%d" % (R + 0, DK + 0, DK + 0))
    A("v_cvt_pk_bf16_f32 v%d, v%d, v%d" % (R + 1, DK + 1, DK + 1))
    A("v_cvt_pk_bf16_f32 v%d, v%d, v%d" % (R + 2, DK + 1, DK + 2))
    A("v_cvt_pk_bf16_f32 v%d, v%d, v%d" % (R + 3, DK + 2, DK + 2))
    A("ds_write_b128 v%d, %s" % (R + 12, v(R, 4)))
    A("v_lshlrev_b32 v%d, 10, v%d" % (R + 13, t3))
    A("v_sub_u32 v%d, v%d, v%d" % (R + 13, t2, R + 13))
    A("v_subrev_u32 v%d, 2560, v%d" % (R + 13, R + 13))
    A("v_and_b32 v%d, 1, v%d" % (R + 14, vLane))
    A("v_cmp_eq_u32 vcc, 1, v%d" % (R + 14))
    A("s_nop 1")
    for k in range(2):
        K8, K0 = DK + 4 + 2 * k, DK + 5 + 2 * k
        o = R + 4 + 4 * k
        A("v_cndmask_b32 v%d, v%d, v%d, vcc" % (R + 15, K0, K8))
        A("v_cvt_pk_bf16_f32 v%d, v%d, v%d" % (o + 0, K8, K8))
        A("v_cvt_pk_bf16_f32 v%d, v%d, v%d" % (o + 1, K8, R + 15))
        A("v_cvt_pk_bf16_f32 v%d, v%d, v%d" % (o + 2, K0, K0))
        A("v_mov_b32 v%d, v%d" % (o + 3, o + 2))
    A("ds_write_b128 v%d, %s offset:512" % (R + 13, v(R + 4, 4)))
    A("ds_write_b128 v%d, %s" % (R + 13, v(R + 8, 4)))
    A.label("ssm_y2")
    A("s_waitcnt lgkmcnt(0)")
    A("s_barrier")
    stamp(A, timing, 3)
    A("s_lshl_b32 s47, s%d, 11" % sHF)
    A("s_add_u32 s47, s47, s46")
    A("s_add_u32 s47, s47, %d" % CP0)
    A("v_add_u32 v%d, s47, v%d" % (t0, vL16))
    for it in range(2):
        d = 32 + 8 * it
        A("ds_read_b128 %s, v%d offset:%d" % (v(d, 4), t0, it * 1024))
        A("ds_read_b64 %s, v%d offset:%d" % (v(d + 4, 2), t0, it * 1024 + 16))
    A("v_lshrrev_b32 v%d, 2, v%d" % (t1, vLane))
    A("v_mul_u32_u24 v%d, %d, v%d" % (t1, CPS, t1))
    A("v_and_b32 v%d, 3, v%d" % (t2, vLane))
    A("v_lshl_add_u32 v%d, v%d, 4, v%d" % (t1, t2, t1))
    A("s_add_u32 s47, s46, %d" % (CP0 + CPS + 4096))
    A("v_add_u32 v%d, s47, v%d" % (t1, t1))
    for r in range(4): A("v_mov_b32 v%d, 0" % (60 + r))
    A("s_cmp_eq_u32 s%d, 0" % sHF)
    A("s_cbranch_scc0 ssm_z1")
    A("s_mov_b64 exec, 0xfff")
    A("ds_write_b128 v%d, v[60:63]" % t1)
    A("s_mov_b64 exec, -1")
    A.label("ssm_z1")
    A("v_add_u32 v64, %d, v%d" % (2 * CPS, t0))
    A("v_add_u32 v65, %d, v%d" % (2 * CPS + 1024, t0))
    A("s_waitcnt lgkmcnt(0)")
    for it in range(2):
        d = 32 + 8 * it; e = 48 + 8 * it
        for i in range(4): A("v_alignbit_b32 v%d, v%d, v%d, 16" % (e + i, d + i + 1, d + i))
        for i in range(4): A("v_alignbit_b32 v%d, v%d, v%d, 16" % (e + 4 + i, d + i + 2, d + i + 1))
        A("ds_write_b128 v%d, %s offset:%d" % (t0, v(e, 4), it * 1024 + CPS))
        A("ds_write2_b32 v%d, v%d, v%d offset0:0 offset1:1" % (64 + it, d + 1, d + 2))
        A("ds_write2_b32 v%d, v%d, v%d offset0:2 offset1:3" % (64 + it, d + 3, d + 4))
        A("ds_write_b128 v%d, %s offset:%d" % (t0, v(e + 4, 4), it * 1024 + 3 * CPS))
    AF, BF, DC = 32, 64, 96
    vAlo, vAhi, vB = 8, 9, 10
    A("v_and_b32 v%d, 3, v%d" % (t1, vLane))
    A("v_sub_u32 v%d, 3, v%d" % (t1, t1))
    A("v_mul_u32_u24 v%d, %d, v%d" % (vAlo, CPS, t1))
    A("v_bfe_u32 v%d, v%d, 2, 2" % (t1, vLane))
    A("v_lshrrev_b32 v%d, 4, v%d" % (t2, vLane))
    A("v_lshlrev_b32 v%d, 1, v%d" % (t3, t2))
    A("v_sub_u32 v%d, v%d, v%d" % (t3, t3, t1))
    A("v_lshl_add_u32 v%d, v%d, 3, v%d" % (vAlo, t3, vAlo))
    A("s_lshl_b32 s47, s%d, 8" % sHF)
    A("s_sub_u32 s48, s46, s47")
    A("s_add_u32 s48, s48, %d" % (CP0 + 8 * 507 - 3584))
    A("v_add_u32 v%d, s48, v%d" % (vAlo, vAlo))
    A("v_add_u32 v%d, 2048, v%d" % (vAhi, vAlo))
    A("v_and_b32 v%d, 15, v%d" % (t1, vLane))
    A("v_lshlrev_b32 v%d, 5, v%d" % (vB, t1))
    A("v_lshl_add_u32 v%d, v%d, 4, v%d" % (vB, t2, vB))
    A("s_mul_i32 s48, s%d, %d" % (sCH, UP))
    A("s_add_u32 s48, s48, %d" % (UB + 448))
    A("s_sub_u32 s49, s48, s47")
    A("v_add_u32 v%d, s49, v%d" % (vB, vB))
    vU, vO = 11, 12
    A("v_lshlrev_b32 v%d, 5, v%d" % (vO, t1))
    A("v_lshl_add_u32 v%d, v%d, 3, v%d" % (vO, t2, vO))
    A("s_lshl_b32 s47, s%d, 11" % sHF)
    A("s_add_u32 s49, s48, s47")
    A("s_add_u32 s49, s49, 32")
    A("v_add_u32 v%d, s49, v%d" % (vU, vO))
    A("s_add_u32 s10, s%d, s%d" % (sD0, sCH))
    A("s_lshl_b32 s10, s10, 12")
    A("s_add_u32 s10, s10, s47")
    A("s_add_u32 s47, s46, %d" % EX2)
    A("s_lshl_b32 s48, s%d, 12" % sHF)
    A("s_add_u32 s49, s47, s48")
    A("v_add_u32 v%d, s49, v%d" % (13, vL16))
    A("s_xor_b32 s48, s48, 4096")
    A("s_add_u32 s49, s47, s48")
    A("v_add_u32 v%d, s49, v%d" % (14, vL16))
    A("s_waitcnt lgkmcnt(0)")
    A("s_barrier")
    stamp(A, timing, 4)
    for cl in range(4):
        if cl:
            A("v_subrev_u32 v%d, 64, v%d" % (vAlo, vAlo))
            A("v_subrev_u32 v%d, 64, v%d" % (vB, vB))
        seq = [("B", 0)]
        for a in range(8): seq += [("A", a, 0), ("A", a, 1)]
        seq += [("B", b) for b in range(1, 8)]
        for x in seq:
            if x[0] == "A":
                i, h = x[1], x[2]
                A("ds_read_b64 %s, v%d offset:%d" % (v(AF + 4 * i + 2 * h, 2), vAlo, 512 * (7 - i) + 8 * h))
            else:
                A("ds_read_b128 %s, v%d offset:%d" % (v(BF + 4 * x[1], 4), vB, 512 * x[1]))
        pos = {x: n for n, x in enumerate(seq)}
        waited = -1
        for b in range(8):
            for a in range(8 - b):
                need = max(pos[("A", a, 1)], pos[("B", b)])
                if need > waited:
                    cnt = len(seq) - 1 - need
                    if cnt <= 15:
                        A("s_waitcnt lgkmcnt(%d)" % cnt)
                        waited = need
                    elif len(seq) - 1 - 15 > waited:
                        A("s_waitcnt lgkmcnt(15)")
                        waited = len(seq) - 1 - 15
                c = a + b
                first = (cl == 0 and b == 0)
                A("v_mfma_f32_16x16x32_bf16 %s, %s, %s, %s" % (v(DC + 4 * c, 4), v(AF + 4 * a, 4), v(BF + 4 * b, 4), "0" if first else v(DC + 4 * c, 4)))
    stamp(A, timing, 5)
    A("s_nop 7")
    A("s_cmp_eq_u32 s%d, 0" % sHF)
    A("s_cbranch_scc0 ssm_w1")
    for k in range(4): A("ds_write_b128 v13, %s offset:%d" % (v(DC + 16 + 4 * k, 4), 1024 * k))
    A("s_branch ssm_w2")
    A.label("ssm_w1")
    for k in range(4): A("ds_write_b128 v13, %s offset:%d" % (v(DC + 4 * k, 4), 1024 * k))
    A.label("ssm_w2")
    U = 32
    for k in range(4): A("ds_read_b64 %s, v%d offset:%d" % (v(U + 2 * k, 2), vU, 512 * k))
    A("s_waitcnt lgkmcnt(0)")
    A("s_barrier")
    R = 64
    for k in range(4): A("ds_read_b128 %s, v14 offset:%d" % (v(R + 4 * k, 4), 1024 * k))
    UF = 40
    for k in range(8):
        A("v_lshlrev_b32 v%d, 16, v%d" % (UF + 2 * k, U + k))
        A("v_and_b32 v%d, 0xffff0000, v%d" % (UF + 2 * k + 1, U + k))
    for r in range(16): A("v_mul_f32 v%d, s%d, v%d" % (UF + r, sDskip, UF + r))
    for k in range(8): A("v_cvt_pk_bf16_f32 v%d, v%d, v%d" % (U + k, UF + 2 * k, UF + 2 * k + 1))
    for k in range(8):
        A("v_lshlrev_b32 v%d, 16, v%d" % (UF + 2 * k, U + k))
        A("v_and_b32 v%d, 0xffff0000, v%d" % (UF + 2 * k + 1, U + k))
    A("s_waitcnt lgkmcnt(0)")
    A("s_cmp_eq_u32 s%d, 0" % sHF)
    A("s_cbranch_scc0 ssm_v1")
    for r in range(16): A("v_add_f32 v%d, v%d, v%d" % (DC + r, DC + r, R + r))
    A("s_branch ssm_v2")
    A.label("ssm_v1")
    for r in range(16): A("v_add_f32 v%d, v%d, v%d" % (DC + r, DC + 16 + r, R + r))
    A.label("ssm_v2")
    for k in range(8): A("v_cvt_pk_bf16_f32 v%d, v%d, v%d" % (U + k, DC + 2 * k, DC + 2 * k + 1))
    for k in range(8):
        A("v_lshlrev_b32 v%d, 16, v%d" % (DC + 2 * k, U + k))
        A("v_and_b32 v%d, 0xffff0000, v%d" % (DC + 2 * k + 1, U + k))
    for r in range(16): A("v_add_f32 v%d, v%d, v%d" % (DC + r, DC + r, UF + r))
    for k in range(8): A("v_cvt_pk_bf16_f32 v%d, v%d, v%d" % (U + k, DC + 2 * k, DC + 2 * k + 1))
    for k in range(4):
        A("buffer_store_dwordx2 %s, v%d, s[%d:%d], s10 offen offset:%d" % (v(U + 2 * k, 2), vO, SAT, SAT + 3, 512 * k))
    stamp(A, timing, 6)
    dump_stamps(A, timing, 7, end, 0)
    A("s_branch %s" % end)

def gen_k1(name="k1_kernel", timing=False):
    A = Asm()
    end = name + "_end"
    A("s_cmp_ge_u32 s2, 256")
    A("s_cbranch_scc1 %s" % end)
    stamp(A, timing, 0)
    A("v_lshrrev_b32 v2, 6, v0")
    A("v_and_b32 v%d, 63, v0" % vLane)
    A("v_readfirstlane_b32 s%d, v2" % sW)
    A("s_cmp_lt_u32 s2, 160")
    A("s_cbranch_scc1 k1_ssm")
    A("s_cmp_lt_u32 s2, 240")
    A("s_cbranch_scc1 k1_q")
    role_kv(A, end, timing)
    A.label("k1_q")
    role_q(A, end, timing)
    if AUX:
        A.label("k1_gate")
        role_gate(A, end)
        A.label("k1_wo")
        role_wo(A, end)
    A.label("k1_ssm")
    role_ssm(A, end, timing)
    A.label(end)
    A("s_endpgm")
    return dict(name=name, grid=256, block=1024, lds=163840, body=A.text(), vgpr=128)

if __name__ == "__main__":
    import sys
    tm = False
    for a in sys.argv[2:]:
        if a.startswith("t"): tm = int(a[1:]) if len(a) > 1 else True
    for a in sys.argv[2:]:
        if a.startswith("g:"): GMOD = a[2:].replace("+", " ")
    k = gen_k1(timing=tm)
    open(sys.argv[1], "w").write(compose([k]))
```

```python
from asmlib import *

WS_WF  = 0x0300000
WS_CNT = 0x02C0000
NWF = 819200

def gen_k23(name="k23_kernel", force_fallback=False, timing=False, lowmask=0xffff, spin=200000, twg=0):
    A = Asm()
    Q1 = {"A": 4, "B": 10}; Q2 = {"A": 8, "B": 14}
    S = {"A": 16, "B": 32}; O = {"A": 48, "B": 64}; P = {"A": 80, "B": 88}
    K1 = [96, 102]; K2 = [100, 106]; V = [108, 116]
    aK1, aK2, aV = 1, 2, 3
    T0, T1, T2, T3 = 124, 125, 126, 127
    aDMA = 128
    vL16, vL16b, vAo, vC4 = 129, 130, 131, 132
    WF = 136
    AV = 236
    GV = 248
    OMG = 251
    SRD_KV, SRD_Q, SRD_X = 8, 12, 16
    SRD_WF, SRD_AT, SRD_G, SRD_OUT = 60, 64, 68, 72
    sW, sKH, sRP, sROW, sDMA, sJ = 6, 7, 20, 21, 22, 23
    sMASK = 24
    sWF0, sL0, sN0, sG8 = 76, 77, 78, 79
    sLT = [80, 81, 82]; sNT = [83, 84, 85]; sTAU = [86, 87, 88]
    sLOW = 98
    nst = [0]
    def stamp():
        if timing:
            A("s_memtime s[%d:%d]" % (40 + 2 * nst[0], 41 + 2 * nst[0])); nst[0] += 1
    end = name + "_end"
    A("s_cmp_ge_u32 s2, 256")
    A("s_cbranch_scc1 %s" % end)
    A("s_load_dwordx2 s[4:5], s[0:1], 136")
    A("s_load_dwordx2 s[92:93], s[0:1], 120")
    if timing:
        A("s_load_dwordx2 s[94:95], s[0:1], 128")
    stamp()
    A("v_lshrrev_b32 v%d, 6, v0" % T0)
    A("v_and_b32 v%d, 63, v0" % T1)
    A("v_and_b32 v%d, 31, v0" % T2)
    A("v_readfirstlane_b32 s%d, v%d" % (sW, T0))
    A("v_bfe_u32 v%d, v0, 5, 1" % T3)
    qa, qb = 16, 17
    A("v_mul_u32_u24 v%d, 40, v%d" % (qa, T2))
    A("v_lshlrev_b32 v%d, 30, v%d" % (qb, T3))
    A("v_add3_u32 v%d, v%d, v%d, 32" % (qb, qb, qa))
    A("v_lshl_add_u32 v%d, v%d, 4, v%d" % (qa, T3, qa))
    A("v_lshlrev_b32 v%d, 4, v%d" % (vL16, T1))
    A("v_mov_b32 v%d, v%d" % (aDMA, vL16))
    A("s_lshr_b32 s%d, s%d, 2" % (sKH, sW))
    A("s_and_b32 s%d, s%d, 3" % (sRP, sW))
    A("s_lshl_b32 s%d, s2, 3" % sROW)
    A("s_lshl_b32 s26, s%d, 1" % sRP)
    A("s_add_u32 s%d, s%d, s26" % (sROW, sROW))
    A("s_mul_i32 s27, s%d, 1280" % sROW)
    A("s_mul_i32 s28, s%d, 81920" % sKH)
    A("s_lshl_b32 s26, s%d, 12" % sRP)
    A("s_add_u32 s%d, s28, s26" % sDMA)
    A("s_waitcnt lgkmcnt(0)")
    srd(A, SRD_KV, 4, WS_KV, NKV)
    def dma_round():
        A("s_mov_b32 m0, s%d" % sDMA)
        A("s_nop 0")
        for k in range(4):
            A("buffer_load_dwordx4 v%d, s[%d:%d], s%d offen offset:%d lds" % (aDMA, SRD_KV, SRD_KV + 3, sDMA, k * 1024))
        A("s_add_u32 s%d, s%d, 16384" % (sDMA, sDMA))
    dma_round()
    srd(A, SRD_Q, 4, WS_Q, NQ)
    A("buffer_load_dwordx4 %s, v%d, s[%d:%d], s27 offen" % (v(Q1["A"], 4), qa, SRD_Q, SRD_Q + 3))
    A("buffer_load_dwordx2 %s, v%d, s[%d:%d], s27 offen" % (v(Q2["A"], 2), qb, SRD_Q, SRD_Q + 3))
    A("buffer_load_dwordx4 %s, v%d, s[%d:%d], s27 offen offset:1280" % (v(Q1["B"], 4), qa, SRD_Q, SRD_Q + 3))
    A("buffer_load_dwordx2 %s, v%d, s[%d:%d], s27 offen offset:1280" % (v(Q2["B"], 2), qb, SRD_Q, SRD_Q + 3))
    srd(A, SRD_X, 4, WS_O, NQ)
    srd(A, SRD_WF, 4, WS_WF, NWF)
    srd(A, SRD_AT, 4, WS_AT, NQ)
    srd(A, SRD_G, 4, WS_G, 8192)
    srd(A, SRD_OUT, 92, 0, NQ)
    A("v_add_u32 v%d, s28, v%d" % (aK1, vL16))
    A("v_lshlrev_b32 v%d, 3, v%d" % (aK2, T2))
    A("v_add_u32 v%d, s28, v%d" % (aK2, aK2))
    A("v_mul_u32_u24 v%d, 320, v%d" % (aV, T3))
    A("v_lshl_add_u32 v%d, v%d, 4, v%d" % (aV, T2, aV))
    A("v_add_u32 v%d, s28, v%d" % (aV, aV))
    A("s_mov_b32 s%d, 0x000fffff" % sMASK)
    A("s_mov_b32 s%d, 0x000fffff" % (sMASK + 1))
    A("v_cmp_eq_u32 vcc, 20, v%d" % T2)
    A("v_mov_b32 v19, 0x3f803f80")
    A("v_mov_b32 v%d, 0" % T0)
    A("v_cndmask_b32 v%d, v%d, v19, vcc" % (T0, T0))
    for r in range(16):
        A("v_mov_b32 v%d, v%d" % (V[0] + r, T0))
    for r in range(32):
        A("v_mov_b32 v%d, 0" % (O["A"] + r))
    for r in range(8):
        A("v_mov_b32 v%d, 0" % (P["B"] + r))
    for r in range(12):
        A("v_mov_b32 v%d, 0" % (AV + r))
    A("s_lshr_b32 s%d, s2, 3" % sG8)
    A("s_and_b32 s29, s2, 7")
    A("s_mul_i32 s%d, s29, 80" % sN0)
    A("s_mul_i32 s%d, s29, 102400" % sWF0)
    A("s_mul_i32 s30, s%d, 5120" % sRP)
    A("s_add_u32 s%d, s%d, s30" % (sWF0, sWF0))
    A("s_lshl_b32 s%d, s%d, 6" % (sL0, sG8))
    A("s_lshl_b32 s30, s%d, 5" % sKH)
    A("s_add_u32 s%d, s%d, s30" % (sL0, sL0))
    for m in range(3):
        A("s_add_u32 s%d, s%d, %d" % (sTAU[m], sRP, 4 * m))
        if m == 2:
            A("s_sub_u32 s30, s%d, 4" % sTAU[m])
            A("s_cmp_lt_u32 s%d, 10" % sTAU[m])
            A("s_cselect_b32 s%d, s%d, s30" % (sTAU[m], sTAU[m]))
        A("s_cmp_ge_u32 s%d, 5" % sTAU[m])
        A("s_cselect_b32 s%d, 1, 0" % sLT[m])
        A("s_mul_i32 s30, s%d, 5" % sLT[m])
        A("s_sub_u32 s%d, s%d, s30" % (sNT[m], sTAU[m]))
    A("v_add_u32 v%d, 1024, v%d" % (vL16b, vL16))
    A("v_lshrrev_b32 v%d, 4, v%d" % (vAo, T1))
    A("v_and_b32 v%d, 15, v%d" % (vC4, T1))
    A("v_lshlrev_b32 v%d, 14, v%d" % (vAo, vAo))
    A("v_lshl_add_u32 v%d, v%d, 1, v%d" % (vAo, vC4, vAo))
    A("v_lshlrev_b32 v%d, 2, v%d" % (vC4, vC4))
    A("s_mov_b32 s%d, 0x%x" % (sLOW, lowmask))
    A("s_mov_b32 s%d, 0" % sJ)
    A("s_waitcnt vmcnt(0)")
    A("s_barrier")
    stamp()
    A("ds_read_b128 %s, v%d" % (v(K1[0], 4), aK1))
    A("ds_read_b64 %s, v%d offset:1024" % (v(K2[0], 2), aK2))
    A("s_waitcnt lgkmcnt(0)")
    A("v_mfma_f32_32x32x16_bf16 %s, %s, %s, 0" % (v(S["A"], 16), v(K1[0], 4), v(Q1["A"], 4)))
    A("v_mfma_f32_32x32x8_bf16 %s, %s, %s, %s" % (v(S["A"], 16), v(K2[0], 2), v(Q2["A"], 2), v(S["A"], 16)))
    A("s_nop 7")
    A("s_nop 3")

    def H(cur, kb, vb, reads, do_qk=True):
        oth = "B" if cur == "A" else "A"
        Sc, Pc = S[cur], P[cur]
        So, Po, Oo = S[oth], P[oth], O[oth]
        if reads:
            for r in reads:
                A(r)
        M = []
        if do_qk:
            M.append("v_mfma_f32_32x32x16_bf16 %s, %s, %s, 0" % (v(So, 16), v(K1[kb], 4), v(Q1[oth], 4)))
            M.append("v_mfma_f32_32x32x8_bf16 %s, %s, %s, %s" % (v(So, 16), v(K2[kb], 2), v(Q2[oth], 2), v(So, 16)))
        M.append("v_mfma_f32_32x32x16_bf16 %s, %s, %s, %s" % (v(Oo, 16), v(V[vb], 4), v(Po, 4), v(Oo, 16)))
        M.append("v_mfma_f32_32x32x16_bf16 %s, %s, %s, %s" % (v(Oo, 16), v(V[vb] + 4, 4), v(Po + 4, 4), v(Oo, 16)))
        while len(M) < 4:
            M.insert(0, None)
        E = ["v_exp_f32 v%d, v%d" % (Sc + r, Sc + r) for r in range(16)]
        C = ["v_cvt_pk_bf16_f32 v%d, v%d, v%d" % (Pc + j, Sc + 2 * j, Sc + 2 * j + 1) for j in range(8)]
        for g in range(4):
            if M[g]: A(M[g])
            for r in range(4): A(E[4 * g + r])
            if g >= 1:
                A(C[2 * (g - 1)]); A(C[2 * (g - 1) + 1])
        A(C[6]); A(C[7])

    def reads(kb, koff, vb, voff):
        R = []
        if kb is not None:
            R.append("ds_read_b128 %s, v%d offset:%d" % (v(K1[kb], 4), aK1, koff))
            R.append("ds_read_b64 %s, v%d offset:%d" % (v(K2[kb], 2), aK2, koff + 1024))
        R.append("s_mov_b64 exec, s[%d:%d]" % (sMASK, sMASK + 1))
        R.append("ds_read_b128 %s, v%d offset:%d" % (v(V[vb], 4), aV, voff + 1280))
        R.append("ds_read_b128 %s, v%d offset:%d" % (v(V[vb] + 4, 4), aV, voff + 1280 + 640))
        R.append("s_mov_b64 exec, -1")
        return R

    def prefetch3():
        for t in range(5):
            A("s_add_u32 s30, s%d, %d" % (sWF0, t * 20480))
            for i in range(5):
                d = WF + (i * 5 + t) * 4
                if i == 0: A("buffer_load_dwordx4 %s, v%d, s[%d:%d], s30 offen" % (v(d, 4), vL16, SRD_WF, SRD_WF + 3))
                else: A("buffer_load_dwordx4 %s, v%d, s[%d:%d], s30 offen offset:%d" % (v(d, 4), vL16b, SRD_WF, SRD_WF + 3, (i - 1) * 1024))
        for m in range(3):
            A("s_lshl_b32 s31, s%d, 4" % sLT[m])
            A("s_add_u32 s31, s31, s%d" % sL0)
            A("s_lshl_b32 s32, s%d, 4" % sNT[m])
            A("s_add_u32 s32, s32, s%d" % sN0)
            A("s_lshl_b32 s32, s32, 12")
            A("s_lshl_b32 s33, s31, 1")
            A("s_add_u32 s32, s32, s33")
            for r in range(4):
                A("s_add_u32 s30, s32, %d" % (r * 4096))
                A("buffer_load_short_d16_hi v%d, v%d, s[%d:%d], s30 offen" % (AV + 4 * m + r, vAo, SRD_AT, SRD_AT + 3))
            A("s_lshl_b32 s33, s31, 2")
            A("buffer_load_dword v%d, v%d, s[%d:%d], s33 offen" % (GV + m, vC4, SRD_G, SRD_G + 3))

    loop = name + "_loop"
    A.label(loop)
    sk1 = name + "_sk1"; sk2 = name + "_sk2"; sk3 = name + "_sk3"
    A("s_cmp_eq_u32 s%d, 2" % sJ)
    A("s_cbranch_scc0 %s" % sk1)
    A("s_waitcnt vmcnt(4)")
    A("s_barrier")
    A.label(sk1)
    A("s_cmp_lt_u32 s%d, 4" % sJ)
    A("s_cbranch_scc0 %s_skd" % name)
    dma_round()
    A.label(name + "_skd")
    A("s_cmp_eq_u32 s%d, 5" % sJ)
    A("s_cbranch_scc0 %s" % sk2)
    A("s_waitcnt vmcnt(0)")
    A("s_barrier")
    prefetch3()
    A.label(sk2)
    A("s_bitcmp1_b32 s%d, s%d" % (sLOW, sJ))
    A("s_cbranch_scc0 %s_lp" % name)
    A("s_setprio 0")
    A.label(name + "_lp")
    H("A", 0, 1, reads(1, 2560, 0, 0))
    A("s_cmp_eq_u32 s%d, 0" % sKH)
    A("s_cbranch_scc1 %s_dp" % name)
    A("s_setprio 1")
    A.label(name + "_dp")
    H("B", 1, 0, ["s_waitcnt lgkmcnt(0)"])
    H("A", 1, 0, reads(0, 5120, 1, 2560))
    H("B", 0, 1, ["s_waitcnt lgkmcnt(0)"])
    A("v_add_u32 v%d, 5120, v%d" % (aK1, aK1))
    A("v_add_u32 v%d, 5120, v%d" % (aK2, aK2))
    A("v_add_u32 v%d, 5120, v%d" % (aV, aV))
    A("s_add_u32 s%d, s%d, 1" % (sJ, sJ))
    A("s_cmp_lt_u32 s%d, 15" % sJ)
    A("s_cbranch_scc1 %s" % loop)
    H("A", 0, 1, reads(1, 2560, 0, 0))
    H("B", 1, 0, ["s_waitcnt lgkmcnt(0)"])
    H("A", 1, 0, reads(None, 0, 1, 2560))
    H("B", 0, 1, ["s_waitcnt lgkmcnt(0)"], do_qk=False)
    A("s_nop 1")
    A("v_mfma_f32_32x32x16_bf16 %s, %s, %s, %s" % (v(O["B"], 16), v(V[1], 4), v(P["B"], 4), v(O["B"], 16)))
    A("v_mfma_f32_32x32x16_bf16 %s, %s, %s, %s" % (v(O["B"], 16), v(V[1] + 4, 4), v(P["B"] + 4, 4), v(O["B"], 16)))
    A("s_setprio 0")
    stamp()
    A("s_barrier")
    A("s_mul_i32 s29, s%d, 3072" % sW)
    A("s_xor_b32 s30, s%d, 4" % sW)
    A("s_mul_i32 s30, s30, 3072")
    A("v_add_u32 v%d, s30, v%d" % (aK2, vL16))
    A("v_add_u32 v%d, s29, v%d" % (aK1, vL16))
    A("s_nop 7")
    R = S["A"]; T = S["B"]
    lab1 = name + "_x1"; lab2 = name + "_x2"; lab3 = name + "_x3"; lab4 = name + "_x4"
    A("s_cmp_eq_u32 s%d, 0" % sKH)
    A("s_cbranch_scc0 %s" % lab1)
    for k in range(3):
        A("ds_write_b128 v%d, %s offset:%d" % (aK1, v(O["B"] + 4 * k, 4), k * 1024))
    A("s_branch %s" % lab2)
    A.label(lab1)
    for k in range(3):
        A("ds_write_b128 v%d, %s offset:%d" % (aK1, v(O["A"] + 4 * k, 4), k * 1024))
    A.label(lab2)
    A("s_waitcnt lgkmcnt(0)")
    A("s_barrier")
    for k in range(3):
        A("ds_read_b128 %s, v%d offset:%d" % (v(R + 4 * k, 4), aK2, k * 1024))
    A("s_cmp_eq_u32 s%d, 0" % sKH)
    A("s_cbranch_scc0 %s" % lab3)
    A("s_waitcnt lgkmcnt(0)")
    for r in range(12):
        A("v_add_f32 v%d, v%d, v%d" % (T + r, O["A"] + r, R + r))
    A("s_branch %s" % lab4)
    A.label(lab3)
    A("s_waitcnt lgkmcnt(0)")
    for r in range(12):
        A("v_add_f32 v%d, v%d, v%d" % (T + r, O["B"] + r, R + r))
    for r in range(4): A("v_mov_b32 v%d, v%d" % (Q1["A"] + r, Q1["B"] + r))
    for r in range(2): A("v_mov_b32 v%d, v%d" % (Q2["A"] + r, Q2["B"] + r))
    A.label(lab4)
    A("s_mov_b32 s32, 0")
    norm = name + "_norm"; fb = name + "_fb"; st = name + "_st"
    A.label(norm)
    A("v_mov_b32 v%d, v%d" % (R + 0, T + 8))
    A("v_mov_b32 v%d, v%d" % (R + 1, T + 8))
    A("s_nop 1")
    A("v_permlane32_swap_b32 v%d, v%d" % (R + 0, R + 1))
    A("s_cmp_eq_u32 s32, 1")
    A("s_cbranch_scc1 %s" % st)
    A("v_max3_f32 v%d, |v%d|, |v%d|, |v%d|" % (R + 2, T + 0, T + 1, T + 2))
    A("v_max3_f32 v%d, |v%d|, |v%d|, |v%d|" % (R + 3, T + 3, T + 4, T + 5))
    A("v_max3_f32 v%d, |v%d|, |v%d|, |v%d|" % (R + 4, T + 6, T + 7, T + 8))
    A("v_max3_f32 v%d, |v%d|, |v%d|, |v%d|" % (R + 5, T + 9, T + 10, T + 11))
    A("v_max3_f32 v%d, v%d, v%d, v%d" % (R + 2, R + 2, R + 3, R + 4))
    A("v_max_f32 v%d, v%d, v%d" % (R + 2, R + 2, R + 5))
    A("v_mov_b32 v%d, 0x%x" % (R + 3, (127 - 30) << 23))
    A("v_mov_b32 v%d, 0x%x" % (R + 4, (127 + 30) << 23))
    A("v_mov_b32 v%d, 0x%x" % (R + 5, (127 + 120) << 23))
    A("v_cmp_ge_f32 s[34:35], v%d, v%d" % (R + 1, R + 3))
    A("v_cmp_le_f32 s[36:37], v%d, v%d" % (R + 1, R + 4))
    A("v_cmp_le_f32 s[38:39], v%d, v%d" % (R + 2, R + 5))
    A("s_nop 1")
    A("s_and_b64 s[34:35], s[34:35], s[36:37]")
    A("s_and_b64 s[34:35], s[34:35], s[38:39]")
    if force_fallback:
        A("s_mov_b64 s[34:35], 0")
    A("s_cmp_eq_u64 s[34:35], -1")
    A("s_cbranch_scc0 %s" % fb)
    A.label(st)
    A("v_rcp_f32 v%d, v%d" % (R + 1, R + 1))
    STG = 32768
    A("s_lshl_b32 s31, s%d, 1" % sRP)
    A("s_add_u32 s31, s31, s%d" % sKH)
    A("s_mul_i32 s31, s31, 1296")
    A("s_add_u32 s31, s31, %d" % STG)
    A("v_mul_u32_u24 v%d, 40, v%d" % (R + 6, T2))
    A("v_add_u32 v%d, s31, v%d" % (R + 6, R + 6))
    A("v_lshl_add_u32 v%d, v%d, 3, v%d" % (R + 7, T3, R + 6))
    for r in range(12):
        A("v_mul_f32 v%d, v%d, v%d" % (T + r, T + r, R + 1))
    for j in range(6):
        A("v_cvt_pk_bf16_f32 v%d, v%d, v%d" % (R + 8 + j, T + 2 * j, T + 2 * j + 1))
    A("ds_write_b64 v%d, %s" % (R + 7, v(R + 8, 2)))
    A("ds_write_b64 v%d, %s offset:16" % (R + 7, v(R + 10, 2)))
    A("s_mov_b32 exec_hi, 0")
    A("ds_write_b64 v%d, %s offset:32" % (R + 6, v(R + 12, 2)))
    A("s_mov_b64 exec, -1")
    A("v_and_b32 v%d, 7, v%d" % (R + 0, T1))
    A("v_lshrrev_b32 v%d, 3, v%d" % (R + 1, T1))
    A("v_mul_u32_u24 v%d, 1296, v%d" % (R + 2, R + 0))
    A("v_lshl_add_u32 v%d, v%d, 4, v%d" % (R + 2, R + 1, R + 2))
    A("s_lshl_b32 s31, s%d, 7" % sW)
    A("s_add_u32 s31, s31, %d" % STG)
    A("v_add_u32 v%d, s31, v%d" % (R + 2, R + 2))
    A("v_lshlrev_b32 v%d, 8, v%d" % (R + 3, R + 1))
    A("v_lshl_add_u32 v%d, v%d, 4, v%d" % (R + 3, R + 0, R + 3))
    A("s_lshr_b32 s31, s2, 1")
    A("s_mul_i32 s31, s31, 20480")
    A("s_and_b32 s33, s2, 1")
    A("s_lshl_b32 s33, s33, 7")
    A("s_add_u32 s31, s31, s33")
    A("s_lshl_b32 s33, s%d, 11" % sW)
    A("s_add_u32 s31, s31, s33")
    A("s_waitcnt lgkmcnt(0)")
    A("s_barrier")
    A("ds_read_b128 %s, v%d" % (v(R + 8, 4), R + 2))
    A("s_cmp_lt_u32 s%d, 2" % sW)
    A("s_cbranch_scc0 %s_o1" % name)
    A("ds_read_b128 %s, v%d offset:1024" % (v(R + 12, 4), R + 2))
    A("s_add_u32 s33, s31, 16384")
    A("s_waitcnt lgkmcnt(0)")
    A("buffer_store_dwordx4 %s, v%d, s[%d:%d], s33 offen sc1" % (v(R + 12, 4), R + 3, SRD_X, SRD_X + 3))
    A.label(name + "_o1")
    A("s_waitcnt lgkmcnt(0)")
    A("buffer_store_dwordx4 %s, v%d, s[%d:%d], s31 offen sc1" % (v(R + 8, 4), R + 3, SRD_X, SRD_X + 3))
    stamp()
    A("s_lshl_b32 s33, s%d, 7" % sG8)
    A("s_add_u32 s33, s33, 0x%x" % WS_CNT)
    A("v_mov_b32 v%d, s33" % (R + 0))
    A("v_mov_b32 v%d, 1" % (R + 1))
    A("s_waitcnt vmcnt(0)")
    A("s_barrier")
    A("s_cmp_eq_u32 s%d, 0" % sW)
    A("s_cbranch_scc0 %s_na" % name)
    A("s_mov_b64 exec, 1")
    A("global_atomic_add v%d, v%d, s[4:5] sc1" % (R + 0, R + 1))
    A("s_mov_b64 exec, -1")
    A.label(name + "_na")
    stamp()
    for m in range(3):
        A("v_sub_f32 v%d, 1.0, v%d" % (OMG + m, GV + m))
        for r in range(4):
            A("v_mul_f32 v%d, v%d, v%d" % (AV + 4 * m + r, AV + 4 * m + r, GV + m))
    for m in range(3):
        A("v_cvt_pk_bf16_f32 v%d, v%d, v%d" % (OMG + m, OMG + m, OMG + m))
        for j in range(2):
            A("v_cvt_pk_bf16_f32 v%d, v%d, v%d" % (T + 2 * m + j, AV + 4 * m + 2 * j, AV + 4 * m + 2 * j + 1))
    for m in range(3):
        A("v_and_b32 v%d, 0xffff0000, v%d" % (OMG + m, OMG + m))
        for j in range(2):
            A("v_lshlrev_b32 v%d, 16, v%d" % (AV + 4 * m + 2 * j, T + 2 * m + j))
            A("v_and_b32 v%d, 0xffff0000, v%d" % (AV + 4 * m + 2 * j + 1, T + 2 * m + j))
    sX0, sX1 = 34, 35
    A("s_lshr_b32 s%d, s%d, 4" % (sX0, sL0))
    A("s_mul_i32 s%d, s%d, 20480" % (sX0, sX0))
    A("s_mul_i32 s30, s%d, 5120" % sRP)
    A("s_add_u32 s%d, s%d, s30" % (sX0, sX0))
    A("s_add_u32 s%d, s%d, 20480" % (sX1, sX0))
    vPW, vPR = 2, 1
    A("s_mul_i32 s30, s%d, 40960" % sKH)
    A("s_lshl_b32 s31, s%d, 10" % sRP)
    A("s_add_u32 s31, s31, s30")
    A("v_add_u32 v%d, s31, v%d" % (vPW, vL16))
    A("v_add_u32 v%d, s30, v%d" % (vPR, vL16))
    A("s_cmp_eq_u32 s%d, 0" % sW)
    A("s_cbranch_scc0 %s_pd" % name)
    A("s_mov_b32 s30, 0")
    A.label(name + "_pl")
    A("global_load_dword v%d, v%d, s[4:5] sc1" % (R + 1, R + 0))
    A("s_waitcnt vmcnt(0)")
    A("v_readfirstlane_b32 s31, v%d" % (R + 1))
    A("s_add_u32 s30, s30, 1")
    A("s_cmp_ge_u32 s31, 8")
    A("s_cbranch_scc1 %s_pd" % name)
    A("s_cmp_lt_u32 s30, %d" % spin)
    A("s_cbranch_scc0 %s_pd" % name)
    A("s_sleep 1")
    A("s_branch %s_pl" % name)
    A.label(name + "_pd")
    A("s_barrier")
    stamp()
    XF, ACC = 16, 56
    for i in range(5):
        for lt2 in range(2):
            d = XF + (lt2 * 5 + i) * 4
            so = sX1 if lt2 else sX0
            if i == 0: A("buffer_load_dwordx4 %s, v%d, s[%d:%d], s%d offen sc1" % (v(d, 4), vL16, SRD_X, SRD_X + 3, so))
            else: A("buffer_load_dwordx4 %s, v%d, s[%d:%d], s%d offen offset:%d sc1" % (v(d, 4), vL16b, SRD_X, SRD_X + 3, so, (i - 1) * 1024))
    for i in range(5):
        for lt2 in range(2):
            A("s_waitcnt vmcnt(%d)" % (9 - (2 * i + lt2)))
            for t in range(5):
                a = ACC + (lt2 * 5 + t) * 4
                A("v_mfma_f32_16x16x32_bf16 %s, %s, %s, %s" % (v(a, 4), v(WF + (i * 5 + t) * 4, 4), v(XF + (lt2 * 5 + i) * 4, 4), "0" if i == 0 else v(a, 4)))
    stamp()
    A("s_nop 3")
    for tau in range(10):
        A("ds_write_b128 v%d, %s offset:%d" % (vPW, v(ACC + 4 * tau, 4), tau * 4096))
    for m in range(3):
        A("s_lshl_b32 s30, s%d, 12" % sTAU[m])
        A("v_add_u32 v%d, s30, v%d" % (4 + m, vPR))
    A("v_and_b32 v%d, 15, v%d" % (8, T1))
    A("v_lshrrev_b32 v%d, 4, v%d" % (9, T1))
    A("v_mul_u32_u24 v%d, 1280, v%d" % (8, 8))
    A("v_lshl_add_u32 v%d, v%d, 3, v%d" % (8, 9, 8))
    for m in range(3):
        A("s_lshl_b32 s31, s%d, 4" % sLT[m])
        A("s_add_u32 s31, s31, s%d" % sL0)
        A("s_mul_i32 s31, s31, 1280")
        A("s_lshl_b32 s33, s%d, 4" % sNT[m])
        A("s_add_u32 s33, s33, s%d" % sN0)
        A("s_lshl_b32 s33, s33, 1")
        A("s_add_u32 s%d, s31, s33" % (36 + m))
    A("s_waitcnt lgkmcnt(0)")
    A("s_barrier")
    PR = 16
    for m in range(3):
        for src in range(4):
            A("ds_read_b128 %s, v%d offset:%d" % (v(PR + 16 * m + 4 * src, 4), 4 + m, src * 1024))
    for m in range(3):
        b = PR + 16 * m
        A("s_waitcnt lgkmcnt(%d)" % (8 - 4 * m))
        for r in range(4): A("v_add_f32 v%d, v%d, v%d" % (b + r, b + r, b + 4 + r))
        for r in range(4): A("v_add_f32 v%d, v%d, v%d" % (b + 8 + r, b + 8 + r, b + 12 + r))
        for r in range(4): A("v_add_f32 v%d, v%d, v%d" % (b + r, b + r, b + 8 + r))
        for j in range(2): A("v_cvt_pk_bf16_f32 v%d, v%d, v%d" % (b + 4 + j, b + 2 * j, b + 2 * j + 1))
        for j in range(2):
            A("v_lshlrev_b32 v%d, 16, v%d" % (b + 2 * j, b + 4 + j))
            A("v_and_b32 v%d, 0xffff0000, v%d" % (b + 2 * j + 1, b + 4 + j))
        for r in range(4): A("v_mul_f32 v%d, v%d, v%d" % (b + r, b + r, OMG + m))
        for j in range(2): A("v_cvt_pk_bf16_f32 v%d, v%d, v%d" % (b + 4 + j, b + 2 * j, b + 2 * j + 1))
        for j in range(2):
            A("v_lshlrev_b32 v%d, 16, v%d" % (b + 2 * j, b + 4 + j))
            A("v_and_b32 v%d, 0xffff0000, v%d" % (b + 2 * j + 1, b + 4 + j))
        for r in range(4): A("v_add_f32 v%d, v%d, v%d" % (b + r, b + r, AV + 4 * m + r))
        for j in range(2): A("v_cvt_pk_bf16_f32 v%d, v%d, v%d" % (b + 4 + j, b + 2 * j, b + 2 * j + 1))
        if m == 2:
            A("s_cmp_ge_u32 s%d, 2" % sRP)
            A("s_cbranch_scc1 %s_ns" % name)
        A("buffer_store_dwordx2 %s, v8, s[%d:%d], s%d offen" % (v(b + 4, 2), SRD_OUT, SRD_OUT + 3, 36 + m))
    A.label(name + "_ns")
    stamp()
    if timing:
        A("s_waitcnt lgkmcnt(0)")
        A("s_cmp_eq_u32 s2, %d" % twg)
        A("s_cbranch_scc0 %s" % end)
        A("s_and_b32 s30, s%d, 3" % sW)
        A("s_cmp_eq_u32 s30, 0")
        A("s_cbranch_scc0 %s" % end)
        A("s_lshl_b32 s30, s%d, 6" % sKH)
        A("v_mov_b32 v2, s30")
        for i in range(1, nst[0]):
            A("s_sub_u32 s31, s%d, s40" % (40 + 2 * i))
            A("v_mov_b32 v3, s31")
            A("global_store_dword v2, v3, s[94:95] offset:%d" % (4 * (i - 1)))
    A("s_endpgm")
    A.label(fb)
    FK1, FK2, FV = K1[0], K2[0], V[0]
    FS = O["A"]; FM = O["B"]
    FP = P["A"]
    A("v_lshlrev_b32 v%d, 4, v%d" % (aK1, T1))
    A("v_lshlrev_b32 v%d, 3, v%d" % (aK2, T2))
    A("v_mul_u32_u24 v%d, 320, v%d" % (aV, T3))
    A("v_lshl_add_u32 v%d, v%d, 4, v%d" % (aV, T2, aV))
    A("v_cmp_gt_u32 vcc, 20, v%d" % T2)
    A("v_mov_b32 v%d, 0x40000000" % (R + 0))
    A("s_nop 1")
    A("v_cndmask_b32 v%d, v%d, v%d, vcc" % (aV, R + 0, aV))
    A("v_mov_b32 v%d, 0xff800000" % (R + 0))
    A("s_mov_b32 s33, 0")
    f1 = name + "_f1"
    A.label(f1)
    A("buffer_load_dwordx4 %s, v%d, s[%d:%d], s33 offen" % (v(FK1, 4), aK1, SRD_KV, SRD_KV + 3))
    A("buffer_load_dwordx2 %s, v%d, s[%d:%d], s33 offen offset:1024" % (v(FK2, 2), aK2, SRD_KV, SRD_KV + 3))
    A("s_waitcnt vmcnt(0)")
    A("v_mfma_f32_32x32x16_bf16 %s, %s, %s, 0" % (v(FS, 16), v(FK1, 4), v(Q1["A"], 4)))
    A("v_mfma_f32_32x32x8_bf16 %s, %s, %s, %s" % (v(FS, 16), v(FK2, 2), v(Q2["A"], 2), v(FS, 16)))
    A("s_nop 7")
    A("s_nop 7")
    for r in range(0, 16, 2):
        A("v_max3_f32 v%d, v%d, v%d, v%d" % (R + 0, R + 0, FS + r, FS + r + 1))
    A("s_add_u32 s33, s33, 2560")
    A("s_cmp_lt_u32 s33, %d" % NKV)
    A("s_cbranch_scc1 %s" % f1)
    A("v_mov_b32 v%d, v%d" % (R + 1, R + 0))
    A("s_nop 1")
    A("v_permlane32_swap_b32 v%d, v%d" % (R + 0, R + 1))
    A("s_nop 1")
    A("v_max_f32 v%d, v%d, v%d" % (R + 0, R + 0, R + 1))
    for r in range(16):
        A("v_mul_f32 v%d, -1.0, v%d" % (FM + r, R + 0))
    for r in range(16):
        A("v_mov_b32 v%d, 0" % (T + r))
    A("s_mov_b32 s33, 0")
    f2 = name + "_f2"
    A.label(f2)
    A("buffer_load_dwordx4 %s, v%d, s[%d:%d], s33 offen" % (v(FK1, 4), aK1, SRD_KV, SRD_KV + 3))
    A("buffer_load_dwordx2 %s, v%d, s[%d:%d], s33 offen offset:1024" % (v(FK2, 2), aK2, SRD_KV, SRD_KV + 3))
    A("buffer_load_dwordx4 %s, v%d, s[%d:%d], s33 offen offset:1280" % (v(FV, 4), aV, SRD_KV, SRD_KV + 3))
    A("buffer_load_dwordx4 %s, v%d, s[%d:%d], s33 offen offset:1920" % (v(FV + 4, 4), aV, SRD_KV, SRD_KV + 3))
    A("s_waitcnt vmcnt(0)")
    A("v_mfma_f32_32x32x16_bf16 %s, %s, %s, %s" % (v(FS, 16), v(FK1, 4), v(Q1["A"], 4), v(FM, 16)))
    A("v_mfma_f32_32x32x8_bf16 %s, %s, %s, %s" % (v(FS, 16), v(FK2, 2), v(Q2["A"], 2), v(FS, 16)))
    for r in range(8):
        A("v_or_b32 v%d, v%d, v%d" % (FV + r, FV + r, T0))
    A("s_nop 7")
    A("s_nop 7")
    for r in range(16):
        A("v_exp_f32 v%d, v%d" % (FS + r, FS + r))
    A("s_nop 0")
    for j in range(8):
        A("v_cvt_pk_bf16_f32 v%d, v%d, v%d" % (FP + j, FS + 2 * j, FS + 2 * j + 1))
    A("s_nop 1")
    A("v_mfma_f32_32x32x16_bf16 %s, %s, %s, %s" % (v(T, 16), v(FV, 4), v(FP, 4), v(T, 16)))
    A("v_mfma_f32_32x32x16_bf16 %s, %s, %s, %s" % (v(T, 16), v(FV + 4, 4), v(FP + 4, 4), v(T, 16)))
    A("s_add_u32 s33, s33, 2560")
    A("s_cmp_lt_u32 s33, %d" % NKV)
    A("s_cbranch_scc1 %s" % f2)
    A("s_nop 7")
    A("s_nop 7")
    A("s_mov_b32 s32, 1")
    A("s_branch %s" % norm)
    A.label(end)
    A("s_endpgm")
    return dict(name=name, grid=256, block=512, lds=163840, body=A.text(), vgpr=256)

if __name__ == "__main__":
    import sys
    k = gen_k23(force_fallback=("fb" in sys.argv), timing=("t" in sys.argv))
    open(sys.argv[1], "w").write(compose([k]))
```

```python
import sys
from asmlib import *
import k1, k23
NAME = "gated_mix__ssm_conv_s4__grouped_kv_mqa__prompt"
def build(fb=False, timing=False, twg=0, k1t=False):
    a = k1.gen_k1("k1_kernel", timing=k1t)
    b = k23.gen_k23(NAME + "_kernel", force_fallback=fb, timing=timing, twg=twg)
    hdr = open("cdna_kernels/%s.s.ref" % NAME).read().split("; Override launch")[0]
    return hdr + compose([a, b])
if __name__ == "__main__":
    twg = 0
    for a in sys.argv[2:]:
        if a.startswith("w"): twg = int(a[1:])
    open(sys.argv[1], "w").write(build(fb="fb" in sys.argv, timing="t" in sys.argv, twg=twg))
```

```python
from asmlib import *

WS_WF  = 0x0300000
WS_CNT = 0x02C0000
NWF = 819200

def gen_k23(name="k23_kernel", force_fallback=False, timing=False, lowmask=0xffff, spin=200000, twg=0, xcd=True, itst=False, PF0=16, BAR2=6, SIDEG=1):
    A = Asm()
    Q1 = {"A": 4, "B": 10}; Q2 = {"A": 8, "B": 14}
    S = {"A": 16, "B": 32}; O = {"A": 48, "B": 64}; P = {"A": 80, "B": 88}
    K1 = [96, 102]; K2 = [100, 106]; V = [108, 116]
    aK1, aK2, aV = 1, 2, 3
    T0, T1, T2, T3 = 124, 125, 126, 127
    aDMA = 128
    vL16, vL16b, vAo, vC4 = 129, 130, 131, 132
    WF = 136
    AV = 236
    GV = 248
    OMG = 251
    SRD_KV, SRD_Q, SRD_X = 8, 12, 16
    SRD_WF, SRD_AT, SRD_G, SRD_OUT = 60, 64, 68, 72
    sW, sKH, sRP, sROW, sDMA, sJ = 6, 7, 20, 21, 22, 23
    sMASK = 24
    sWF0, sL0, sN0, sG8 = 76, 77, 78, 79
    sLT = [80, 81, 82]; sNT = [83, 84, 85]; sTAU = [86, 87, 88]
    sLOW = 98
    nst = [0]
    def stamp():
        if timing:
            A("s_memtime s[%d:%d]" % (40 + 2 * nst[0], 41 + 2 * nst[0])); nst[0] += 1
    end = name + "_end"
    A("s_cmp_ge_u32 s2, 256")
    A("s_cbranch_scc1 %s" % end)
    A("s_load_dwordx2 s[4:5], s[0:1], 136")
    A("s_load_dwordx2 s[92:93], s[0:1], 120")
    if timing: A("s_mov_b32 s99, s2")
    if xcd:
        A("s_and_b32 s26, s2, 7")
        A("s_lshl_b32 s26, s26, 5")
        A("s_lshr_b32 s27, s2, 6")
        A("s_lshl_b32 s27, s27, 3")
        A("s_bfe_u32 s28, s2, 0x30003")
        A("s_or_b32 s26, s26, s27")
        A("s_or_b32 s2, s26, s28")
    if timing:
        A("s_load_dwordx2 s[94:95], s[0:1], 128")
    stamp()
    A("v_lshrrev_b32 v%d, 6, v0" % T0)
    A("v_and_b32 v%d, 63, v0" % T1)
    A("v_and_b32 v%d, 31, v0" % T2)
    A("v_readfirstlane_b32 s%d, v%d" % (sW, T0))
    A("v_bfe_u32 v%d, v0, 5, 1" % T3)
    qa, qb = 16, 17
    A("v_mul_u32_u24 v%d, 40, v%d" % (qa, T2))
    A("v_lshlrev_b32 v%d, 30, v%d" % (qb, T3))
    A("v_add3_u32 v%d, v%d, v%d, 32" % (qb, qb, qa))
    A("v_lshl_add_u32 v%d, v%d, 4, v%d" % (qa, T3, qa))
    A("v_lshlrev_b32 v%d, 4, v%d" % (vL16, T1))
    A("v_mov_b32 v%d, v%d" % (aDMA, vL16))
    A("s_lshr_b32 s%d, s%d, 2" % (sKH, sW))
    A("s_and_b32 s%d, s%d, 3" % (sRP, sW))
    A("s_lshl_b32 s%d, s2, 3" % sROW)
    A("s_lshl_b32 s26, s%d, 1" % sRP)
    A("s_add_u32 s%d, s%d, s26" % (sROW, sROW))
    A("s_mul_i32 s27, s%d, 1280" % sROW)
    A("s_mul_i32 s28, s%d, 81920" % sKH)
    A("s_lshl_b32 s26, s%d, 12" % sRP)
    A("s_add_u32 s%d, s28, s26" % sDMA)
    A("s_waitcnt lgkmcnt(0)")
    srd(A, SRD_KV, 4, WS_KV, NKV)
    def dma_round():
        A("s_mov_b32 m0, s%d" % sDMA)
        A("s_nop 0")
        for k in range(4):
            A("buffer_load_dwordx4 v%d, s[%d:%d], s%d offen offset:%d lds" % (aDMA, SRD_KV, SRD_KV + 3, sDMA, k * 1024))
        A("s_add_u32 s%d, s%d, 16384" % (sDMA, sDMA))
    dma_round()
    srd(A, SRD_Q, 4, WS_Q, NQ)
    A("buffer_load_dwordx4 %s, v%d, s[%d:%d], s27 offen" % (v(Q1["A"], 4), qa, SRD_Q, SRD_Q + 3))
    A("buffer_load_dwordx2 %s, v%d, s[%d:%d], s27 offen" % (v(Q2["A"], 2), qb, SRD_Q, SRD_Q + 3))
    A("buffer_load_dwordx4 %s, v%d, s[%d:%d], s27 offen offset:1280" % (v(Q1["B"], 4), qa, SRD_Q, SRD_Q + 3))
    A("buffer_load_dwordx2 %s, v%d, s[%d:%d], s27 offen offset:1280" % (v(Q2["B"], 2), qb, SRD_Q, SRD_Q + 3))
    srd(A, SRD_X, 4, WS_O, NQ)
    srd(A, SRD_WF, 4, WS_WF, NWF)
    srd(A, SRD_AT, 4, WS_AT, NQ)
    srd(A, SRD_G, 4, WS_G, 8192)
    srd(A, SRD_OUT, 92, 0, NQ)
    A("v_add_u32 v%d, s28, v%d" % (aK1, vL16))
    A("v_lshlrev_b32 v%d, 3, v%d" % (aK2, T2))
    A("v_add_u32 v%d, s28, v%d" % (aK2, aK2))
    A("v_mul_u32_u24 v%d, 320, v%d" % (aV, T3))
    A("v_lshl_add_u32 v%d, v%d, 4, v%d" % (aV, T2, aV))
    A("v_add_u32 v%d, s28, v%d" % (aV, aV))
    A("s_mov_b32 s%d, 0x000fffff" % sMASK)
    A("s_mov_b32 s%d, 0x000fffff" % (sMASK + 1))
    A("v_cmp_eq_u32 vcc, 20, v%d" % T2)
    A("v_mov_b32 v19, 0x3f803f80")
    A("v_mov_b32 v%d, 0" % T0)
    A("v_cndmask_b32 v%d, v%d, v19, vcc" % (T0, T0))
    for r in range(16):
        A("v_mov_b32 v%d, v%d" % (V[0] + r, T0))
    for r in range(32):
        A("v_mov_b32 v%d, 0" % (O["A"] + r))
    for r in range(8):
        A("v_mov_b32 v%d, 0" % (P["B"] + r))
    for r in range(12):
        A("v_mov_b32 v%d, 0" % (AV + r))
    A("s_lshr_b32 s%d, s2, 3" % sG8)
    A("s_and_b32 s29, s2, 7")
    A("s_mul_i32 s%d, s29, 80" % sN0)
    A("s_mul_i32 s%d, s29, 102400" % sWF0)
    A("s_mul_i32 s30, s%d, 5120" % sRP)
    A("s_add_u32 s%d, s%d, s30" % (sWF0, sWF0))
    A("s_lshl_b32 s%d, s%d, 6" % (sL0, sG8))
    A("s_lshl_b32 s30, s%d, 5" % sKH)
    A("s_add_u32 s%d, s%d, s30" % (sL0, sL0))
    for m in range(3):
        A("s_add_u32 s%d, s%d, %d" % (sTAU[m], sRP, 4 * m))
        if m == 2:
            A("s_sub_u32 s30, s%d, 4" % sTAU[m])
            A("s_cmp_lt_u32 s%d, 10" % sTAU[m])
            A("s_cselect_b32 s%d, s%d, s30" % (sTAU[m], sTAU[m]))
        A("s_cmp_ge_u32 s%d, 5" % sTAU[m])
        A("s_cselect_b32 s%d, 1, 0" % sLT[m])
        A("s_mul_i32 s30, s%d, 5" % sLT[m])
        A("s_sub_u32 s%d, s%d, s30" % (sNT[m], sTAU[m]))
    A("v_add_u32 v%d, 1024, v%d" % (vL16b, vL16))
    A("v_lshrrev_b32 v%d, 4, v%d" % (vAo, T1))
    A("v_and_b32 v%d, 15, v%d" % (vC4, T1))
    A("v_lshlrev_b32 v%d, 14, v%d" % (vAo, vAo))
    A("v_lshl_add_u32 v%d, v%d, 1, v%d" % (vAo, vC4, vAo))
    A("v_lshlrev_b32 v%d, 2, v%d" % (vC4, vC4))
    A("s_mov_b32 s%d, 0" % sJ)
    A("s_waitcnt vmcnt(0)")
    A("s_barrier")
    stamp()
    A("ds_read_b128 %s, v%d" % (v(K1[0], 4), aK1))
    A("ds_read_b64 %s, v%d offset:1024" % (v(K2[0], 2), aK2))
    A("s_waitcnt lgkmcnt(0)")
    A("v_mfma_f32_32x32x16_bf16 %s, %s, %s, 0" % (v(S["A"], 16), v(K1[0], 4), v(Q1["A"], 4)))
    A("v_mfma_f32_32x32x8_bf16 %s, %s, %s, %s" % (v(S["A"], 16), v(K2[0], 2), v(Q2["A"], 2), v(S["A"], 16)))
    A("s_nop 7")
    A("s_nop 3")

    def H(cur, kb, vb, reads, do_qk=True, side=None):
        oth = "B" if cur == "A" else "A"
        Sc, Pc = S[cur], P[cur]
        So, Po, Oo = S[oth], P[oth], O[oth]
        if reads:
            for r in reads:
                A(r)
        M = []
        if do_qk:
            M.append("v_mfma_f32_32x32x16_bf16 %s, %s, %s, 0" % (v(So, 16), v(K1[kb], 4), v(Q1[oth], 4)))
            M.append("v_mfma_f32_32x32x8_bf16 %s, %s, %s, %s" % (v(So, 16), v(K2[kb], 2), v(Q2[oth], 2), v(So, 16)))
        M.append("v_mfma_f32_32x32x16_bf16 %s, %s, %s, %s" % (v(Oo, 16), v(V[vb], 4), v(Po, 4), v(Oo, 16)))
        M.append("v_mfma_f32_32x32x16_bf16 %s, %s, %s, %s" % (v(Oo, 16), v(V[vb] + 4, 4), v(Po + 4, 4), v(Oo, 16)))
        while len(M) < 4:
            M.insert(0, None)
        E = ["v_exp_f32 v%d, v%d" % (Sc + r, Sc + r) for r in range(16)]
        C = ["v_cvt_pk_bf16_f32 v%d, v%d, v%d" % (Pc + j, Sc + 2 * j, Sc + 2 * j + 1) for j in range(8)]
        for g in range(4):
            if M[g]: A(M[g])
            for r in range(4): A(E[4 * g + r])
            if g >= 1:
                A(C[2 * (g - 1)]); A(C[2 * (g - 1) + 1])
            if g == SIDEG and side:
                for x in side: A(x)
        A(C[6]); A(C[7])

    def reads(kb, koff, vb, voff):
        R = []
        if kb is not None:
            R.append("ds_read_b128 %s, v%d offset:%d" % (v(K1[kb], 4), aK1, koff))
            R.append("ds_read_b64 %s, v%d offset:%d" % (v(K2[kb], 2), aK2, koff + 1024))
        R.append("s_mov_b64 exec, s[%d:%d]" % (sMASK, sMASK + 1))
        R.append("ds_read_b128 %s, v%d offset:%d" % (v(V[vb], 4), aV, voff + 1280))
        R.append("ds_read_b128 %s, v%d offset:%d" % (v(V[vb] + 4, 4), aV, voff + 1280 + 640))
        R.append("s_mov_b64 exec, -1")
        return R

    def prefetch3_list():
        L = []
        for t in range(5):
            for i in range(5):
                d = WF + (i * 5 + t) * 4
                g = ["s_add_u32 s30, s%d, %d" % (sWF0, t * 20480)]
                if i == 0: g.append("buffer_load_dwordx4 %s, v%d, s[%d:%d], s30 offen" % (v(d, 4), vL16, SRD_WF, SRD_WF + 3))
                else: g.append("buffer_load_dwordx4 %s, v%d, s[%d:%d], s30 offen offset:%d" % (v(d, 4), vL16b, SRD_WF, SRD_WF + 3, (i - 1) * 1024))
                L.append(g)
        for m in range(3):
            pre = ["s_lshl_b32 s31, s%d, 4" % sLT[m],
                   "s_add_u32 s31, s31, s%d" % sL0,
                   "s_lshl_b32 s32, s%d, 4" % sNT[m],
                   "s_add_u32 s32, s32, s%d" % sN0,
                   "s_lshl_b32 s32, s32, 12",
                   "s_lshl_b32 s33, s31, 1",
                   "s_add_u32 s32, s32, s33"]
            for r in range(4):
                g = (pre if r == 0 else []) + ["s_add_u32 s30, s32, %d" % (r * 4096),
                     "buffer_load_short_d16_hi v%d, v%d, s[%d:%d], s30 offen" % (AV + 4 * m + r, vAo, SRD_AT, SRD_AT + 3)]
                L.append(g)
            L.append(["s_lshl_b32 s33, s31, 2",
                      "buffer_load_dword v%d, v%d, s[%d:%d], s33 offen" % (GV + m, vC4, SRD_G, SRD_G + 3)])
        return L

    def dma_list():
        L = []
        for r in range(1, 5):
            for k in range(4):
                g = []
                if k == 0: g += ["s_mov_b32 m0, s%d" % sDMA, "s_nop 0"]
                g.append("buffer_load_dwordx4 v%d, s[%d:%d], s%d offen offset:%d lds" % (aDMA, SRD_KV, SRD_KV + 3, sDMA, k * 1024))
                if k == 3: g.append("s_add_u32 s%d, s%d, 16384" % (sDMA, sDMA))
                L.append(g)
        return L

    side = {}
    dl = dma_list(); pl = prefetch3_list()
    for n, g in enumerate(dl): side[n] = g
    for n, g in enumerate(pl): side[PF0 + n] = g
    assert PF0 >= 16 and PF0 + len(pl) <= 64
    def issued_before(h): return sum(1 for k_ in side if k_ < h)
    A("s_cmp_eq_u32 s%d, 1" % sKH)
    A("s_cselect_b64 vcc, -1, 0")
    bumped = False
    base = 0
    for it in range(16):
        if it == 2:
            A("s_waitcnt vmcnt(%d)" % (issued_before(8) - 4))
            A("s_barrier")
        if it == BAR2:
            A("s_waitcnt vmcnt(%d)" % (issued_before(4 * BAR2) - 16))
            A("s_barrier")
        if it == 8:
            A("v_add_u32 v%d, %d, v%d" % (aK1, 40960, aK1))
            A("v_add_u32 v%d, %d, v%d" % (aK2, 40960, aK2))
            A("v_add_u32 v%d, %d, v%d" % (aV, 40960, aV))
            base = 40960
        o = it * 5120 - base
        if itst and it >= 1:
            A("s_memtime s[96:97]")
        if (lowmask >> it) & 1:
            A("s_setprio 0")
        last = it == 15
        H("A", 0, 1, reads(1, o + 2560, 0, o), side=side.get(4 * it))
        if (lowmask >> it) & 1 or it == 0:
            lb = A.newlabel(name + "_p")
            A("s_cbranch_vccz %s" % lb)
            A("s_setprio 1")
            A.label(lb)
        w = ["s_waitcnt lgkmcnt(0)"]
        if itst and it >= 1: w.append("v_writelane_b32 v254, s96, %d" % it)
        H("B", 1, 0, w, side=side.get(4 * it + 1))
        H("A", 1, 0, reads(None if last else 0, o + 5120, 1, o + 2560), side=side.get(4 * it + 2))
        H("B", 0, 1, ["s_waitcnt lgkmcnt(0)"], do_qk=not last, side=side.get(4 * it + 3))
    A("s_nop 1")
    A("v_mfma_f32_32x32x16_bf16 %s, %s, %s, %s" % (v(O["B"], 16), v(V[1], 4), v(P["B"], 4), v(O["B"], 16)))
    A("v_mfma_f32_32x32x16_bf16 %s, %s, %s, %s" % (v(O["B"], 16), v(V[1] + 4, 4), v(P["B"] + 4, 4), v(O["B"], 16)))
    A("s_setprio 0")
    stamp()
    A("s_barrier")
    A("s_mul_i32 s29, s%d, 3072" % sW)
    A("s_xor_b32 s30, s%d, 4" % sW)
    A("s_mul_i32 s30, s30, 3072")
    A("v_add_u32 v%d, s30, v%d" % (aK2, vL16))
    A("v_add_u32 v%d, s29, v%d" % (aK1, vL16))
    A("s_nop 7")
    R = S["A"]; T = S["B"]
    lab1 = name + "_x1"; lab2 = name + "_x2"; lab3 = name + "_x3"; lab4 = name + "_x4"
    A("s_cmp_eq_u32 s%d, 0" % sKH)
    A("s_cbranch_scc0 %s" % lab1)
    for k in range(3):
        A("ds_write_b128 v%d, %s offset:%d" % (aK1, v(O["B"] + 4 * k, 4), k * 1024))
    A("s_branch %s" % lab2)
    A.label(lab1)
    for k in range(3):
        A("ds_write_b128 v%d, %s offset:%d" % (aK1, v(O["A"] + 4 * k, 4), k * 1024))
    A.label(lab2)
    A("s_waitcnt lgkmcnt(0)")
    A("s_barrier")
    for k in range(3):
        A("ds_read_b128 %s, v%d offset:%d" % (v(R + 4 * k, 4), aK2, k * 1024))
    A("s_cmp_eq_u32 s%d, 0" % sKH)
    A("s_cbranch_scc0 %s" % lab3)
    A("s_waitcnt lgkmcnt(0)")
    for r in range(12):
        A("v_add_f32 v%d, v%d, v%d" % (T + r, O["A"] + r, R + r))
    A("s_branch %s" % lab4)
    A.label(lab3)
    A("s_waitcnt lgkmcnt(0)")
    for r in range(12):
        A("v_add_f32 v%d, v%d, v%d" % (T + r, O["B"] + r, R + r))
    for r in range(4): A("v_mov_b32 v%d, v%d" % (Q1["A"] + r, Q1["B"] + r))
    for r in range(2): A("v_mov_b32 v%d, v%d" % (Q2["A"] + r, Q2["B"] + r))
    A.label(lab4)
    A("s_mov_b32 s32, 0")
    norm = name + "_norm"; fb = name + "_fb"; st = name + "_st"
    A.label(norm)
    A("v_mov_b32 v%d, v%d" % (R + 0, T + 8))
    A("v_mov_b32 v%d, v%d" % (R + 1, T + 8))
    A("s_nop 1")
    A("v_permlane32_swap_b32 v%d, v%d" % (R + 0, R + 1))
    A("s_cmp_eq_u32 s32, 1")
    A("s_cbranch_scc1 %s" % st)
    A("v_max3_f32 v%d, |v%d|, |v%d|, |v%d|" % (R + 2, T + 0, T + 1, T + 2))
    A("v_max3_f32 v%d, |v%d|, |v%d|, |v%d|" % (R + 3, T + 3, T + 4, T + 5))
    A("v_max3_f32 v%d, |v%d|, |v%d|, |v%d|" % (R + 4, T + 6, T + 7, T + 8))
    A("v_max3_f32 v%d, |v%d|, |v%d|, |v%d|" % (R + 5, T + 9, T + 10, T + 11))
    A("v_max3_f32 v%d, v%d, v%d, v%d" % (R + 2, R + 2, R + 3, R + 4))
    A("v_max_f32 v%d, v%d, v%d" % (R + 2, R + 2, R + 5))
    A("v_mov_b32 v%d, 0x%x" % (R + 3, (127 - 30) << 23))
    A("v_mov_b32 v%d, 0x%x" % (R + 4, (127 + 30) << 23))
    A("v_mov_b32 v%d, 0x%x" % (R + 5, (127 + 120) << 23))
    A("v_cmp_ge_f32 s[34:35], v%d, v%d" % (R + 1, R + 3))
    A("v_cmp_le_f32 s[36:37], v%d, v%d" % (R + 1, R + 4))
    A("v_cmp_le_f32 s[38:39], v%d, v%d" % (R + 2, R + 5))
    A("s_nop 1")
    A("s_and_b64 s[34:35], s[34:35], s[36:37]")
    A("s_and_b64 s[34:35], s[34:35], s[38:39]")
    if force_fallback:
        A("s_mov_b64 s[34:35], 0")
    A("s_cmp_eq_u64 s[34:35], -1")
    A("s_cbranch_scc0 %s" % fb)
    A.label(st)
    A("v_rcp_f32 v%d, v%d" % (R + 1, R + 1))
    STG = 32768
    A("s_lshl_b32 s31, s%d, 1" % sRP)
    A("s_add_u32 s31, s31, s%d" % sKH)
    A("s_mul_i32 s31, s31, 1296")
    A("s_add_u32 s31, s31, %d" % STG)
    A("v_mul_u32_u24 v%d, 40, v%d" % (R + 6, T2))
    A("v_add_u32 v%d, s31, v%d" % (R + 6, R + 6))
    A("v_lshl_add_u32 v%d, v%d, 3, v%d" % (R + 7, T3, R + 6))
    for r in range(12):
        A("v_mul_f32 v%d, v%d, v%d" % (T + r, T + r, R + 1))
    for j in range(6):
        A("v_cvt_pk_bf16_f32 v%d, v%d, v%d" % (R + 8 + j, T + 2 * j, T + 2 * j + 1))
    A("ds_write_b64 v%d, %s" % (R + 7, v(R + 8, 2)))
    A("ds_write_b64 v%d, %s offset:16" % (R + 7, v(R + 10, 2)))
    A("s_mov_b32 exec_hi, 0")
    A("ds_write_b64 v%d, %s offset:32" % (R + 6, v(R + 12, 2)))
    A("s_mov_b64 exec, -1")
    A("v_and_b32 v%d, 7, v%d" % (R + 0, T1))
    A("v_lshrrev_b32 v%d, 3, v%d" % (R + 1, T1))
    A("v_mul_u32_u24 v%d, 1296, v%d" % (R + 2, R + 0))
    A("v_lshl_add_u32 v%d, v%d, 4, v%d" % (R + 2, R + 1, R + 2))
    A("s_lshl_b32 s31, s%d, 7" % sW)
    A("s_add_u32 s31, s31, %d" % STG)
    A("v_add_u32 v%d, s31, v%d" % (R + 2, R + 2))
    A("v_lshlrev_b32 v%d, 8, v%d" % (R + 3, R + 1))
    A("v_lshl_add_u32 v%d, v%d, 4, v%d" % (R + 3, R + 0, R + 3))
    A("s_lshr_b32 s31, s2, 1")
    A("s_mul_i32 s31, s31, 20480")
    A("s_and_b32 s33, s2, 1")
    A("s_lshl_b32 s33, s33, 7")
    A("s_add_u32 s31, s31, s33")
    A("s_lshl_b32 s33, s%d, 11" % sW)
    A("s_add_u32 s31, s31, s33")
    A("s_waitcnt lgkmcnt(0)")
    A("s_barrier")
    A("ds_read_b128 %s, v%d" % (v(R + 8, 4), R + 2))
    A("s_cmp_lt_u32 s%d, 2" % sW)
    A("s_cbranch_scc0 %s_o1" % name)
    A("ds_read_b128 %s, v%d offset:1024" % (v(R + 12, 4), R + 2))
    A("s_add_u32 s33, s31, 16384")
    A("s_waitcnt lgkmcnt(0)")
    A("buffer_store_dwordx4 %s, v%d, s[%d:%d], s33 offen sc1" % (v(R + 12, 4), R + 3, SRD_X, SRD_X + 3))
    A.label(name + "_o1")
    A("s_waitcnt lgkmcnt(0)")
    A("buffer_store_dwordx4 %s, v%d, s[%d:%d], s31 offen sc1" % (v(R + 8, 4), R + 3, SRD_X, SRD_X + 3))
    stamp()
    A("s_lshl_b32 s33, s%d, 7" % sG8)
    A("s_add_u32 s33, s33, 0x%x" % WS_CNT)
    A("v_mov_b32 v%d, s33" % (R + 0))
    A("v_mov_b32 v%d, 1" % (R + 1))
    A("s_waitcnt vmcnt(0)")
    A("s_barrier")
    A("s_cmp_eq_u32 s%d, 0" % sW)
    A("s_cbranch_scc0 %s_na" % name)
    A("s_mov_b64 exec, 1")
    A("global_atomic_add v%d, v%d, s[4:5] sc1" % (R + 0, R + 1))
    A("s_mov_b64 exec, -1")
    A.label(name + "_na")
    stamp()
    for m in range(3):
        A("v_sub_f32 v%d, 1.0, v%d" % (OMG + m, GV + m))
        for r in range(4):
            A("v_mul_f32 v%d, v%d, v%d" % (AV + 4 * m + r, AV + 4 * m + r, GV + m))
    for m in range(3):
        A("v_cvt_pk_bf16_f32 v%d, v%d, v%d" % (OMG + m, OMG + m, OMG + m))
        for j in range(2):
            A("v_cvt_pk_bf16_f32 v%d, v%d, v%d" % (T + 2 * m + j, AV + 4 * m + 2 * j, AV + 4 * m + 2 * j + 1))
    for m in range(3):
        A("v_and_b32 v%d, 0xffff0000, v%d" % (OMG + m, OMG + m))
        for j in range(2):
            A("v_lshlrev_b32 v%d, 16, v%d" % (AV + 4 * m + 2 * j, T + 2 * m + j))
            A("v_and_b32 v%d, 0xffff0000, v%d" % (AV + 4 * m + 2 * j + 1, T + 2 * m + j))
    sX0, sX1 = 34, 35
    A("s_lshr_b32 s%d, s%d, 4" % (sX0, sL0))
    A("s_mul_i32 s%d, s%d, 20480" % (sX0, sX0))
    A("s_mul_i32 s30, s%d, 5120" % sRP)
    A("s_add_u32 s%d, s%d, s30" % (sX0, sX0))
    A("s_add_u32 s%d, s%d, 20480" % (sX1, sX0))
    vPW, vPR = 2, 1
    A("s_mul_i32 s30, s%d, 40960" % sKH)
    A("s_lshl_b32 s31, s%d, 10" % sRP)
    A("s_add_u32 s31, s31, s30")
    A("v_add_u32 v%d, s31, v%d" % (vPW, vL16))
    A("v_add_u32 v%d, s30, v%d" % (vPR, vL16))
    A("s_cmp_eq_u32 s%d, 0" % sW)
    A("s_cbranch_scc0 %s_pd" % name)
    A("s_mov_b32 s30, 0")
    A.label(name + "_pl")
    A("global_load_dword v%d, v%d, s[4:5] sc1" % (R + 1, R + 0))
    A("s_waitcnt vmcnt(0)")
    A("v_readfirstlane_b32 s31, v%d" % (R + 1))
    A("s_add_u32 s30, s30, 1")
    A("s_cmp_ge_u32 s31, 8")
    A("s_cbranch_scc1 %s_pd" % name)
    A("s_cmp_lt_u32 s30, %d" % spin)
    A("s_cbranch_scc0 %s_pd" % name)
    A("s_sleep 1")
    A("s_branch %s_pl" % name)
    A.label(name + "_pd")
    A("s_barrier")
    stamp()
    XF, ACC = 16, 56
    for i in range(5):
        for lt2 in range(2):
            d = XF + (lt2 * 5 + i) * 4
            so = sX1 if lt2 else sX0
            if i == 0: A("buffer_load_dwordx4 %s, v%d, s[%d:%d], s%d offen sc1" % (v(d, 4), vL16, SRD_X, SRD_X + 3, so))
            else: A("buffer_load_dwordx4 %s, v%d, s[%d:%d], s%d offen offset:%d sc1" % (v(d, 4), vL16b, SRD_X, SRD_X + 3, so, (i - 1) * 1024))
    for i in range(5):
        for lt2 in range(2):
            A("s_waitcnt vmcnt(%d)" % (9 - (2 * i + lt2)))
            for t in range(5):
                a = ACC + (lt2 * 5 + t) * 4
                A("v_mfma_f32_16x16x32_bf16 %s, %s, %s, %s" % (v(a, 4), v(WF + (i * 5 + t) * 4, 4), v(XF + (lt2 * 5 + i) * 4, 4), "0" if i == 0 else v(a, 4)))
    stamp()
    A("s_nop 3")
    for tau in range(10):
        A("ds_write_b128 v%d, %s offset:%d" % (vPW, v(ACC + 4 * tau, 4), tau * 4096))
    for m in range(3):
        A("s_lshl_b32 s30, s%d, 12" % sTAU[m])
        A("v_add_u32 v%d, s30, v%d" % (4 + m, vPR))
    A("v_and_b32 v%d, 15, v%d" % (8, T1))
    A("v_lshrrev_b32 v%d, 4, v%d" % (9, T1))
    A("v_mul_u32_u24 v%d, 1280, v%d" % (8, 8))
    A("v_lshl_add_u32 v%d, v%d, 3, v%d" % (8, 9, 8))
    for m in range(3):
        A("s_lshl_b32 s31, s%d, 4" % sLT[m])
        A("s_add_u32 s31, s31, s%d" % sL0)
        A("s_mul_i32 s31, s31, 1280")
        A("s_lshl_b32 s33, s%d, 4" % sNT[m])
        A("s_add_u32 s33, s33, s%d" % sN0)
        A("s_lshl_b32 s33, s33, 1")
        A("s_add_u32 s%d, s31, s33" % (36 + m))
    A("s_waitcnt lgkmcnt(0)")
    A("s_barrier")
    PR = 16
    for m in range(3):
        for src in range(4):
            A("ds_read_b128 %s, v%d offset:%d" % (v(PR + 16 * m + 4 * src, 4), 4 + m, src * 1024))
    for m in range(3):
        b = PR + 16 * m
        A("s_waitcnt lgkmcnt(%d)" % (8 - 4 * m))
        for r in range(4): A("v_add_f32 v%d, v%d, v%d" % (b + r, b + r, b + 4 + r))
        for r in range(4): A("v_add_f32 v%d, v%d, v%d" % (b + 8 + r, b + 8 + r, b + 12 + r))
        for r in range(4): A("v_add_f32 v%d, v%d, v%d" % (b + r, b + r, b + 8 + r))
        for j in range(2): A("v_cvt_pk_bf16_f32 v%d, v%d, v%d" % (b + 4 + j, b + 2 * j, b + 2 * j + 1))
        for j in range(2):
            A("v_lshlrev_b32 v%d, 16, v%d" % (b + 2 * j, b + 4 + j))
            A("v_and_b32 v%d, 0xffff0000, v%d" % (b + 2 * j + 1, b + 4 + j))
        for r in range(4): A("v_mul_f32 v%d, v%d, v%d" % (b + r, b + r, OMG + m))
        for j in range(2): A("v_cvt_pk_bf16_f32 v%d, v%d, v%d" % (b + 4 + j, b + 2 * j, b + 2 * j + 1))
        for j in range(2):
            A("v_lshlrev_b32 v%d, 16, v%d" % (b + 2 * j, b + 4 + j))
            A("v_and_b32 v%d, 0xffff0000, v%d" % (b + 2 * j + 1, b + 4 + j))
        for r in range(4): A("v_add_f32 v%d, v%d, v%d" % (b + r, b + r, AV + 4 * m + r))
        for j in range(2): A("v_cvt_pk_bf16_f32 v%d, v%d, v%d" % (b + 4 + j, b + 2 * j, b + 2 * j + 1))
        if m == 2:
            A("s_cmp_ge_u32 s%d, 2" % sRP)
            A("s_cbranch_scc1 %s_ns" % name)
        A("buffer_store_dwordx2 %s, v8, s[%d:%d], s%d offen" % (v(b + 4, 2), SRD_OUT, SRD_OUT + 3, 36 + m))
    A.label(name + "_ns")
    stamp()
    if timing:
        A("s_waitcnt lgkmcnt(0)")
        A("s_cmp_eq_u32 s99, %d" % twg)
        A("s_cbranch_scc0 %s" % end)
        A("s_and_b32 s30, s%d, 3" % sW)
        A("s_cmp_eq_u32 s30, 0")
        A("s_cbranch_scc0 %s" % end)
        A("s_lshl_b32 s30, s%d, 6" % sKH)
        A("v_mov_b32 v2, s30")
        if itst:
            A("v_subrev_u32 v254, s40, v254")
            A("s_lshl_b32 s31, s%d, 6" % sKH)
            A("v_lshl_add_u32 v3, v%d, 2, s31" % T1)
            A("s_mov_b64 exec, 0xffff")
            A("global_store_dword v3, v254, s[94:95] offset:128")
            A("s_mov_b64 exec, -1")
        for i in range(1, nst[0]):
            A("s_sub_u32 s31, s%d, s40" % (40 + 2 * i))
            A("v_mov_b32 v3, s31")
            A("global_store_dword v2, v3, s[94:95] offset:%d" % (4 * (i - 1)))
    A("s_endpgm")
    A.label(fb)
    FK1, FK2, FV = K1[0], K2[0], V[0]
    FS = O["A"]; FM = O["B"]
    FP = P["A"]
    A("v_lshlrev_b32 v%d, 4, v%d" % (aK1, T1))
    A("v_lshlrev_b32 v%d, 3, v%d" % (aK2, T2))
    A("v_mul_u32_u24 v%d, 320, v%d" % (aV, T3))
    A("v_lshl_add_u32 v%d, v%d, 4, v%d" % (aV, T2, aV))
    A("v_cmp_gt_u32 vcc, 20, v%d" % T2)
    A("v_mov_b32 v%d, 0x40000000" % (R + 0))
    A("s_nop 1")
    A("v_cndmask_b32 v%d, v%d, v%d, vcc" % (aV, R + 0, aV))
    A("v_mov_b32 v%d, 0xff800000" % (R + 0))
    A("s_mov_b32 s33, 0")
    f1 = name + "_f1"
    A.label(f1)
    A("buffer_load_dwordx4 %s, v%d, s[%d:%d], s33 offen" % (v(FK1, 4), aK1, SRD_KV, SRD_KV + 3))
    A("buffer_load_dwordx2 %s, v%d, s[%d:%d], s33 offen offset:1024" % (v(FK2, 2), aK2, SRD_KV, SRD_KV + 3))
    A("s_waitcnt vmcnt(0)")
    A("v_mfma_f32_32x32x16_bf16 %s, %s, %s, 0" % (v(FS, 16), v(FK1, 4), v(Q1["A"], 4)))
    A("v_mfma_f32_32x32x8_bf16 %s, %s, %s, %s" % (v(FS, 16), v(FK2, 2), v(Q2["A"], 2), v(FS, 16)))
    A("s_nop 7")
    A("s_nop 7")
    for r in range(0, 16, 2):
        A("v_max3_f32 v%d, v%d, v%d, v%d" % (R + 0, R + 0, FS + r, FS + r + 1))
    A("s_add_u32 s33, s33, 2560")
    A("s_cmp_lt_u32 s33, %d" % NKV)
    A("s_cbranch_scc1 %s" % f1)
    A("v_mov_b32 v%d, v%d" % (R + 1, R + 0))
    A("s_nop 1")
    A("v_permlane32_swap_b32 v%d, v%d" % (R + 0, R + 1))
    A("s_nop 1")
    A("v_max_f32 v%d, v%d, v%d" % (R + 0, R + 0, R + 1))
    for r in range(16):
        A("v_mul_f32 v%d, -1.0, v%d" % (FM + r, R + 0))
    for r in range(16):
        A("v_mov_b32 v%d, 0" % (T + r))
    A("s_mov_b32 s33, 0")
    f2 = name + "_f2"
    A.label(f2)
    A("buffer_load_dwordx4 %s, v%d, s[%d:%d], s33 offen" % (v(FK1, 4), aK1, SRD_KV, SRD_KV + 3))
    A("buffer_load_dwordx2 %s, v%d, s[%d:%d], s33 offen offset:1024" % (v(FK2, 2), aK2, SRD_KV, SRD_KV + 3))
    A("buffer_load_dwordx4 %s, v%d, s[%d:%d], s33 offen offset:1280" % (v(FV, 4), aV, SRD_KV, SRD_KV + 3))
    A("buffer_load_dwordx4 %s, v%d, s[%d:%d], s33 offen offset:1920" % (v(FV + 4, 4), aV, SRD_KV, SRD_KV + 3))
    A("s_waitcnt vmcnt(0)")
    A("v_mfma_f32_32x32x16_bf16 %s, %s, %s, %s" % (v(FS, 16), v(FK1, 4), v(Q1["A"], 4), v(FM, 16)))
    A("v_mfma_f32_32x32x8_bf16 %s, %s, %s, %s" % (v(FS, 16), v(FK2, 2), v(Q2["A"], 2), v(FS, 16)))
    for r in range(8):
        A("v_or_b32 v%d, v%d, v%d" % (FV + r, FV + r, T0))
    A("s_nop 7")
    A("s_nop 7")
    for r in range(16):
        A("v_exp_f32 v%d, v%d" % (FS + r, FS + r))
    A("s_nop 0")
    for j in range(8):
        A("v_cvt_pk_bf16_f32 v%d, v%d, v%d" % (FP + j, FS + 2 * j, FS + 2 * j + 1))
    A("s_nop 1")
    A("v_mfma_f32_32x32x16_bf16 %s, %s, %s, %s" % (v(T, 16), v(FV, 4), v(FP, 4), v(T, 16)))
    A("v_mfma_f32_32x32x16_bf16 %s, %s, %s, %s" % (v(T, 16), v(FV + 4, 4), v(FP + 4, 4), v(T, 16)))
    A("s_add_u32 s33, s33, 2560")
    A("s_cmp_lt_u32 s33, %d" % NKV)
    A("s_cbranch_scc1 %s" % f2)
    A("s_nop 7")
    A("s_nop 7")
    A("s_mov_b32 s32, 1")
    A("s_branch %s" % norm)
    A.label(end)
    A("s_endpgm")
    return dict(name=name, grid=256, block=512, lds=163840, body=A.text(), vgpr=256)

if __name__ == "__main__":
    import sys
    k = gen_k23(force_fallback=("fb" in sys.argv), timing=("t" in sys.argv))
    open(sys.argv[1], "w").write(compose([k]))
```

```python
import sys
from asmlib import *
import k1, k23b as k23
NAME = "gated_mix__ssm_conv_s4__grouped_kv_mqa__prompt"
def build(fb=False, timing=False, twg=0, k1t=False, **kw):
    a = k1.gen_k1("k1_kernel", timing=k1t)
    b = k23.gen_k23(NAME + "_kernel", force_fallback=fb, timing=timing, twg=twg, **kw)
    hdr = open("cdna_kernels/%s.s.ref" % NAME).read().split("; Override launch")[0]
    return hdr + compose([a, b])
if __name__ == "__main__":
    twg = 0
    for a in sys.argv[2:]:
        if a.startswith("w"): twg = int(a[1:])
    kw = {}
    for a in sys.argv[2:]:
        if "=" in a:
            k_, v_ = a.split("="); kw[k_] = eval(v_)
    open(sys.argv[1], "w").write(build(fb="fb" in sys.argv, timing="t" in sys.argv, twg=twg, **kw))
```

```python
import sys
from asmlib import *
import k1, k23b as k23
NAME = "gated_mix__ssm_conv_s4__grouped_kv_mqa__prompt"
def instrument(k, kidx, sel=0):
    name = k["name"]; end = name + "_end"
    L = k["body"].split("\n")
    assert L[0].strip().startswith("s_cmp_ge_u32 s2, 256") and L[1].strip() == "s_cbranch_scc1 " + end, L[:2]
    L[1] = "    s_cbranch_scc1 %s_raw" % name
    L.insert(2, "    s_memrealtime s[98:99]")
    L.insert(3, "    s_mov_b32 s101, s2")
    out = []
    seen_end = False
    for ln in L:
        if ln.strip() == "s_endpgm" and not seen_end:
            out.append("    s_branch " + end); continue
        if ln.strip() == end + ":":
            seen_end = True
            out.append(ln)
            out.append("    s_cmp_eq_u32 s6, 0")
            out.append("    s_cbranch_scc0 %s_raw" % name)
            out.append("    s_and_b32 s90, s101, 31")
            out.append("    s_cmp_eq_u32 s90, %d" % sel)
            out.append("    s_cbranch_scc0 %s_raw" % name)
            out.append("    s_waitcnt vmcnt(0) lgkmcnt(0)")
            out.append("    s_memrealtime s[90:91]")
            out.append("    s_load_dwordx2 s[4:5], s[0:1], 128")
            out.append("    s_mov_b64 exec, 1")
            out.append("    s_waitcnt lgkmcnt(0)")
            out.append("    s_and_b32 s98, s98, 0xffff")
            out.append("    s_lshl_b32 s90, s90, 16")
            out.append("    s_or_b32 s98, s98, s90")
            out.append("    s_lshr_b32 s90, s101, 5")
            out.append("    s_lshl_b32 s90, s90, 2")
            if kidx:
                out.append("    s_sub_u32 s4, s4, %d" % (512 * kidx - 32 * kidx))
                out.append("    s_subb_u32 s5, s5, 0")
            out.append("    v_mov_b32 v2, s90")
            out.append("    v_mov_b32 v4, s98")
            out.append("    global_store_dword v2, v4, s[4:5]")
            out.append(name + "_raw:")
            continue
        out.append(ln)
    k = dict(k); k["body"] = "\n".join(out)
    return k
if __name__ == "__main__":
    hdr = open("cdna_kernels/%s.s.ref" % NAME).read().split("; Override launch")[0]
    a = k1.gen_k1("k1_kernel"); b = k23.gen_k23(NAME + "_kernel")
    open(sys.argv[1], "w").write(hdr + compose([instrument(a, 0), instrument(b, 1)]))
```

```python
import sys
from asmlib import *
import k1, k23b as k23
NAME = "gated_mix__ssm_conv_s4__grouped_kv_mqa__prompt"
def instrument(k, kidx, sel=0):
    name = k["name"]; end = name + "_end"
    L = k["body"].split("\n")
    assert L[0].strip().startswith("s_cmp_ge_u32 s2, 256") and L[1].strip() == "s_cbranch_scc1 " + end, L[:2]
    L[1] = "    s_cbranch_scc1 %s_raw" % name
    L.insert(2, "    s_memrealtime s[98:99]")
    L.insert(3, "    s_mov_b32 s101, s2")
    out = []
    seen_end = False
    for ln in L:
        if ln.strip() == "s_endpgm" and not seen_end:
            out.append("    s_branch " + end); continue
        if ln.strip() == end + ":":
            seen_end = True
            out.append(ln)
            out.append("    s_cmp_eq_u32 s6, 0")
            out.append("    s_cbranch_scc0 %s_raw" % name)
            out.append("    s_and_b32 s90, s101, 31")
            out.append("    s_cmp_eq_u32 s90, %d" % sel)
            out.append("    s_cbranch_scc0 %s_raw" % name)
            out.append("    s_waitcnt vmcnt(0) lgkmcnt(0)")
            out.append("    s_memrealtime s[90:91]")
            out.append("    s_load_dwordx2 s[4:5], s[0:1], %d" % (128 if kidx else 136))
            out.append("    s_mov_b64 exec, 1")
            out.append("    s_waitcnt lgkmcnt(0)")
            out.append("    s_and_b32 s98, s98, 0xffff")
            out.append("    s_lshl_b32 s90, s90, 16")
            out.append("    s_or_b32 s98, s98, s90")
            out.append("    s_lshr_b32 s90, s101, 5")
            out.append("    s_lshl_b32 s90, s90, 2")
            if not kidx:
                out.append("    s_add_u32 s90, s90, 0x2C8000")
            out.append("    v_mov_b32 v2, s90")
            out.append("    v_mov_b32 v4, s98")
            out.append("    global_store_dword v2, v4, s[4:5]")
            if kidx:
                out.append("    s_load_dwordx2 s[92:93], s[0:1], 136")
                out.append("    v_add_u32 v3, 0x2C8000, v2")
                out.append("    s_waitcnt lgkmcnt(0)")
                out.append("    global_load_dword v5, v3, s[92:93]")
                out.append("    s_waitcnt vmcnt(0)")
                out.append("    global_store_dword v2, v5, s[4:5] offset:32")
            out.append(name + "_raw:")
            continue
        out.append(ln)
    k = dict(k); k["body"] = "\n".join(out)
    return k
if __name__ == "__main__":
    hdr = open("cdna_kernels/%s.s.ref" % NAME).read().split("; Override launch")[0]
    a = k1.gen_k1("k1_kernel"); b = k23.gen_k23(NAME + "_kernel")
    open(sys.argv[1], "w").write(hdr + compose([instrument(a, 0), instrument(b, 1)]))
```

```python
from asmlib import *
import struct, math

def f32bits(x):
    return struct.unpack("<I", struct.pack("<f", x))[0]

GMOD = ""
AMP = None
V3 = True
LPRIO = 3
B0 = True
QINIT = 5
QSTEP = 1
GDELAY = 0
WDELAY = 0
LOG2E = 1.4426950408889634
CSCALE = (20 ** -0.5) * LOG2E

sW = 6
vLane = 1

def stamp(A, timing, n):
    if timing is not False: A("s_memtime s[%d:%d]" % (60 + 2 * n, 61 + 2 * n))

def dump_stamps(A, timing, nst, end, wg, vt=2):
    if timing is False or (timing is not True and (timing >= 160) != (wg >= 160)): return
    if timing is not True: wg = timing
    if AMP is not None:
        a_, b_, w_ = AMP
        if b_ >= nst: return
        A("s_waitcnt lgkmcnt(0)")
        A("s_cmp_eq_u32 s2, %d" % wg)
        A("s_cbranch_scc0 %s" % end)
        A("s_cmp_eq_u32 s%d, %d" % (sW, w_))
        A("s_cbranch_scc0 %s" % end)
        A("s_load_dwordx2 s[40:41], s[0:1], 136")
        A("v_mov_b32 v%d, 0x2C8000" % vt)
        A("s_sub_u32 s51, s%d, s%d" % (60 + 2 * b_, 60 + 2 * a_))
        A("v_mov_b32 v%d, s51" % (vt + 1))
        A("s_waitcnt lgkmcnt(0)")
        A("global_store_dword v%d, v%d, s[40:41]" % (vt, vt + 1))
        return
    A("s_waitcnt lgkmcnt(0)")
    A("s_cmp_eq_u32 s2, %d" % wg)
    A("s_cbranch_scc0 %s" % end)
    A("s_load_dwordx2 s[40:41], s[0:1], 128")
    A("s_and_b32 s50, s%d, 3" % sW)
    A("s_cmp_eq_u32 s50, 0")
    A("s_cbranch_scc0 %s" % end)
    A("s_lshl_b32 s50, s%d, 4" % sW)
    A("v_mov_b32 v%d, s50" % vt)
    A("s_waitcnt lgkmcnt(0)")
    for i in range(1, nst):
        A("s_sub_u32 s51, s%d, s60" % (60 + 2 * i))
        A("v_mov_b32 v%d, s51" % (vt + 1))
        A("global_store_dword v%d, v%d, s[40:41] offset:%d" % (vt, vt + 1, 4 * (i - 1)))

def x_dma_setup(A, vX, t0, t1):
    for e in range(2):
        A("v_lshrrev_b32 v%d, 3, v%d" % (t0, vLane))
        if e: A("v_add_u32 v%d, 8, v%d" % (t0, t0))
        A("v_mul_u32_u24 v%d, 1280, v%d" % (vX + e, t0))
        A("v_lshrrev_b32 v%d, 4, v%d" % (t0, vLane))
        if e: A("v_add_u32 v%d, 4, v%d" % (t0, t0))
        A("v_and_b32 v%d, 7, v%d" % (t1, vLane))
        A("v_xor_b32 v%d, v%d, v%d" % (t0, t0, t1))
        A("v_lshl_add_u32 v%d, v%d, 4, v%d" % (vX + e, t0, vX + e))

def x_read_setup(A, vXr, sRowOff128, xbase, t0, t1, t2):
    A("v_and_b32 v%d, 31, v%d" % (t0, vLane))
    A("v_bfe_u32 v%d, v%d, 1, 3" % (t1, vLane))
    A("v_lshrrev_b32 v%d, 5, v%d" % (t2, vLane))
    A("v_xor_b32 v%d, v%d, v%d" % (t1, t1, t2))
    A("v_lshlrev_b32 v%d, 7, v%d" % (t0, t0))
    A("v_add_u32 v%d, s%d, v%d" % (t0, sRowOff128, t0))
    if xbase: A("v_add_u32 v%d, %d, v%d" % (t0, xbase, t0))
    for s_ in range(4):
        A("v_xor_b32 v%d, %d, v%d" % (t2, 2 * s_, t1))
        A("v_lshl_add_u32 v%d, v%d, 4, v%d" % (vXr + s_, t2, t0))

def role_q(A, end, timing):
    D = 5; BUF = 32768; WOFF = 16384
    SX, SWT, SO = 8, 12, 16
    sRow0, sN0b, sJ = 20, 21, 22
    t0, t1, t2 = 2, 3, 4
    A("s_cmp_ge_u32 s%d, 12" % sW)
    A("s_cbranch_scc1 %s" % end)
    A("s_load_dwordx2 s[32:33], s[0:1], 0")
    A("s_load_dwordx2 s[34:35], s[0:1], 80")
    A("s_load_dwordx2 s[4:5], s[0:1], 136")
    A("s_sub_u32 s23, s2, 160")
    A("s_and_b32 s%d, s23, 15" % sRow0)
    A("s_lshl_b32 s%d, s%d, 7" % (sRow0, sRow0))
    A("s_lshr_b32 s%d, s23, 4" % sN0b)
    A("s_lshl_b32 s%d, s%d, 8" % (sN0b, sN0b))
    A("s_cmp_lt_u32 s%d, 4" % sW)
    A("s_cbranch_scc1 q_comp")
    vX, vWd = 8, 10
    A("s_sub_u32 s%d, s%d, 4" % (sJ, sW))
    x_dma_setup(A, vX, t0, t1)
    A("v_lshrrev_b32 v%d, 4, v%d" % (t0, vLane))
    A("v_mul_u32_u24 v%d, 1280, v%d" % (vWd, t0))
    A("v_and_b32 v%d, 1, v%d" % (t1, t0))
    A("v_lshlrev_b32 v%d, 1, v%d" % (t1, t1))
    A("v_lshrrev_b32 v%d, 1, v%d" % (t0, t0))
    A("v_lshl_add_u32 v%d, v%d, 3, v%d" % (t1, t0, t1))
    A("v_and_b32 v%d, 15, v%d" % (t0, vLane))
    A("v_xor_b32 v%d, v%d, v%d" % (t0, t0, t1))
    A("v_lshl_add_u32 v%d, v%d, 4, v%d" % (vWd, t0, vWd))
    sXg, sWg, sM0 = 24, 25, 26
    A("s_lshl_b32 s27, s%d, 4" % sJ)
    A("s_add_u32 s27, s27, s%d" % sRow0)
    A("s_mul_i32 s%d, s27, 1280" % sXg)
    A("s_mul_i32 s%d, s%d, %d" % (sWg, sJ, 8 * 1280))
    A("s_add_u32 s%d, s%d, s%d" % (sWg, sWg, sN0b))
    A("s_lshl_b32 s%d, s%d, 11" % (sM0, sJ))
    A("s_waitcnt lgkmcnt(0)")
    srd(A, SX, 32, 0, NQ)
    srd(A, SWT, 34, 0, 640 * 1280)
    srd(A, SO, 4, WS_Q, NQ)
    issued = []
    def dma(c):
        b = (c % D) * BUF
        for e in range(2):
            A("s_add_u32 m0, s%d, %d" % (sM0, b + e * 1024))
            A("s_add_u32 s28, s%d, %d" % (sXg, c * 128))
            A("buffer_load_dwordx4 v%d, s[%d:%d], s28 offen lds" % (vX + e, SX, SX + 3))
            issued.append(c)
        for e in range(2):
            A("s_add_u32 m0, s%d, %d" % (sM0, b + WOFF + e * 1024))
            A("s_add_u32 s28, s%d, %d" % (sWg, (64 * c + 4 * e) * 1280))
            A("buffer_load_dwordx4 v%d, s[%d:%d], s28 offen lds" % (vWd, SWT, SWT + 3))
            issued.append(c)
    for c in range(QINIT):
        dma(c)
    vSl, vSg = 12, 13
    A("v_lshrrev_b32 v%d, 4, v%d" % (t0, vLane))
    A("v_and_b32 v%d, 15, v%d" % (t1, vLane))
    A("v_mul_u32_u24 v%d, 272, v%d" % (vSl, t0))
    A("v_lshl_add_u32 v%d, v%d, 4, v%d" % (vSl, t1, vSl))
    A("s_mul_i32 s27, s%d, %d" % (sJ, 16 * 272))
    A("v_add_u32 v%d, s27, v%d" % (vSl, vSl))
    A("v_mul_u32_u24 v%d, 1280, v%d" % (vSg, t0))
    A("v_lshl_add_u32 v%d, v%d, 4, v%d" % (vSg, t1, vSg))
    for c in range(10):
        last = max(i for i, x in enumerate(issued) if x == c)
        A("s_waitcnt vmcnt(%d)" % (len(issued) - 1 - last))
        A("s_barrier")
        nxt = max(issued) + 1
        k_ = 0
        while nxt <= 9 and nxt - D + 2 <= c and k_ < QSTEP:
            dma(nxt); nxt += 1; k_ += 1
    A("s_barrier")
    for e in range(4):
        A("ds_read_b128 %s, v%d offset:%d" % (v(16 + 4 * e, 4), vSl, e * 4 * 272))
    A("s_add_u32 s28, s%d, s%d" % (sXg, sN0b))
    for e in range(4):
        A("s_waitcnt lgkmcnt(%d)" % (3 - e))
        A("buffer_store_dwordx4 %s, v%d, s[%d:%d], s28 offen offset:%d" % (v(16 + 4 * e, 4), vSg, SO, SO + 3, 0) if e == 0 else
          "s_add_u32 s29, s28, %d\nbuffer_store_dwordx4 %s, v%d, s[%d:%d], s29 offen" % (e * 4 * 1280, v(16 + 4 * e, 4), vSg, SO, SO + 3))
        if e: A("s_nop 0")
    stamp(A, timing, 3)
    dump_stamps(A, timing, 4, end, 160)
    A("s_branch %s" % end)
    A.label("q_comp")
    vXr, vWr = 8, 12
    XF = [[16, 20], [24, 28]]; WF = [[32, 36], [40, 44]]
    ACC = 64
    A("s_and_b32 s24, s%d, 1" % sW)
    A("s_lshl_b32 s24, s24, 13")
    x_read_setup(A, vXr, 24, 0, t0, t1, t2)
    A("v_lshrrev_b32 v%d, 5, v%d" % (t0, vLane))
    A("v_bfe_u32 v%d, v%d, 2, 2" % (t1, vLane))
    A("v_lshl_add_u32 v%d, v%d, 3, v%d" % (t0, t0, t1))
    A("v_lshlrev_b32 v%d, 8, v%d" % (t0, t0))
    A("v_bfe_u32 v%d, v%d, 1, 1" % (t2, vLane))
    A("v_lshl_add_u32 v%d, v%d, 3, v%d" % (t0, t2, t0))
    A("v_add_u32 v%d, %d, v%d" % (t0, WOFF, t0))
    A("v_and_b32 v%d, 1, v%d" % (t2, vLane))
    A("v_lshlrev_b32 v%d, 2, v%d" % (t2, t2))
    A("v_bfe_u32 v5, v%d, 4, 1" % vLane)
    A("v_or_b32 v%d, v%d, v5" % (t2, t2))
    A("s_lshr_b32 s25, s%d, 1" % sW)
    A("s_lshl_b32 s25, s25, 3")
    A("v_or_b32 v%d, s25, v%d" % (t2, t2))
    A("v_and_b32 v5, 1, v%d" % t1)
    A("v_lshlrev_b32 v5, 1, v5")
    A("v_xor_b32 v%d, v%d, v5" % (t2, t2))
    A("v_lshrrev_b32 v5, 1, v%d" % t1)
    A("v_lshlrev_b32 v5, 3, v5")
    A("v_xor_b32 v%d, v%d, v5" % (t2, t2))
    A("v_lshl_add_u32 v%d, v%d, 4, v%d" % (vWr, t2, t0))
    A("v_xor_b32 v%d, 2, v%d" % (t2, t2))
    A("v_lshl_add_u32 v%d, v%d, 4, v%d" % (vWr + 1, t2, t0))
    vSt = 14
    A("v_and_b32 v%d, 31, v%d" % (t0, vLane))
    A("v_mul_u32_u24 v%d, 272, v%d" % (vSt, t0))
    A("v_lshrrev_b32 v%d, 5, v%d" % (t0, vLane))
    A("v_lshl_add_u32 v%d, v%d, 6, v%d" % (vSt, t0, vSt))
    A("s_and_b32 s24, s%d, 1" % sW)
    A("s_mul_i32 s24, s24, %d" % (64 * 272))
    A("s_lshl_b32 s25, s25, 4")
    A("s_add_u32 s24, s24, s25")
    A("v_add_u32 v%d, s24, v%d" % (vSt, vSt))
    bias = [0]
    def set_bias(nb):
        d = nb - bias[0]
        if d:
            for r in list(range(vXr, vXr + 4)) + [vWr, vWr + 1]:
                A("v_add_u32 v%d, %d, v%d" % (r, d & 0xffffffff, r))
        bias[0] = nb
    def reads(S):
        c, s_ = divmod(S, 4); fb = S & 1
        b = (c % D) * BUF
        set_bias(b // 65536 * 65536)
        o = b - bias[0]
        for lg in range(2):
            A("ds_read_b128 %s, v%d offset:%d" % (v(XF[fb][lg], 4), vXr + s_, o + lg * 4096))
        for t in range(2):
            for h in range(2):
                A("ds_read_b64_tr_b16 %s, v%d offset:%d" % (v(WF[fb][t] + 2 * h, 2), vWr + t, o + s_ * 4096 + h * 1024))
    def mfma(S, i):
        fb = S & 1; lg, t = divmod(i, 2)
        a = ACC + 16 * (2 * lg + t)
        A("v_mfma_f32_32x32x16_bf16 %s, %s, %s, %s" % (v(a, 16), v(WF[fb][t], 4), v(XF[fb][lg], 4), "0" if S == 0 else v(a, 16)))
    A("s_barrier")
    stamp(A, timing, 1)
    reads(0)
    for S in range(40):
        c, s_ = divmod(S, 4)
        if S + 1 < 40:
            reads(S + 1)
            A("s_waitcnt lgkmcnt(6)")
        else:
            A("s_waitcnt lgkmcnt(0)")
        for i in range(4):
            mfma(S, i)
            if i == 0 and s_ == 2 and c + 1 < 10:
                A("s_barrier")
    stamp(A, timing, 2)
    A("s_nop 7")
    A("s_nop 3")
    for lg in range(2):
        for t in range(2):
            a = ACC + 16 * (2 * lg + t)
            for j in range(8):
                A("v_cvt_pk_bf16_f32 v%d, v%d, v%d" % (a + j, a + 2 * j, a + 2 * j + 1))
            for h in range(2):
                A("ds_write_b128 v%d, %s offset:%d" % (vSt, v(a + 4 * h, 4), lg * 32 * 272 + 32 * t + 16 * h))
    A("s_waitcnt lgkmcnt(0)")
    A("s_barrier")
    stamp(A, timing, 3)
    dump_stamps(A, timing, 4, end, 160)
    A("s_branch %s" % end)

def role_kv(A, end, timing):
    D = 5; XB = 65536; BUF = 16384
    SX, SK, SV, SO = 8, 12, 16, 20
    sRow0, sJ = 24, 25
    t0, t1, t2 = 2, 3, 4
    A("s_cmp_ge_u32 s%d, 12" % sW)
    A("s_cbranch_scc1 %s" % ("k1_wo" if AUX else end))
    A("s_load_dwordx2 s[32:33], s[0:1], 0")
    A("s_load_dwordx4 s[36:39], s[0:1], 88")
    A("s_load_dwordx2 s[4:5], s[0:1], 136")
    A("s_sub_u32 s%d, s2, 240" % sRow0)
    A("s_lshl_b32 s%d, s%d, 7" % (sRow0, sRow0))
    A("s_cmp_lt_u32 s%d, 4" % sW)
    A("s_cbranch_scc1 kv_comp")
    vX, vL16 = 8, 10
    A("s_sub_u32 s%d, s%d, 4" % (sJ, sW))
    x_dma_setup(A, vX, t0, t1)
    A("v_lshlrev_b32 v%d, 4, v%d" % (vL16, vLane))
    sXg, sM0 = 26, 27
    A("s_lshl_b32 s28, s%d, 4" % sJ)
    A("s_add_u32 s28, s28, s%d" % sRow0)
    A("s_mul_i32 s%d, s28, 1280" % sXg)
    A("s_lshl_b32 s%d, s%d, 11" % (sM0, sJ))
    A("s_waitcnt lgkmcnt(0)")
    srd(A, SX, 32, 0, NQ)
    srd(A, SK, 36, 0, 25600)
    srd(A, SV, 38, 0, 25600)
    issued = []
    def dma(c):
        b = XB + (c % D) * BUF
        for e in range(2):
            A("s_add_u32 m0, s%d, %d" % (sM0, b + e * 1024))
            A("s_add_u32 s29, s%d, %d" % (sXg, c * 128))
            A("buffer_load_dwordx4 v%d, s[%d:%d], s29 offen lds" % (vX + e, SX, SX + 3))
            issued.append(c)
    A("s_lshl_b32 s30, s%d, 10" % sJ)
    for e in range(4):
        for (sr, base) in ((SK, 0), (SV, 32768)):
            A("s_add_u32 s29, s30, %d" % (e * 8192))
            A("s_add_u32 m0, s29, %d" % base)
            A("s_nop 0")
            A("buffer_load_dwordx4 v%d, s[%d:%d], s29 offen lds" % (vL16, sr, sr + 3))
            issued.append(0)
    for c in range(D):
        dma(c)
    for c in range(10):
        last = max(i for i, x in enumerate(issued) if x == c)
        A("s_waitcnt vmcnt(%d)" % (len(issued) - 1 - last))
        A("s_barrier")
        if c >= 2 and c - 2 + D <= 9:
            dma(c - 2 + D)
    A("s_branch %s" % end)
    A.label("kv_comp")
    vXr, vWr = 8, 12
    XF = [16, 20]; KF = [24, 28]; VF = [32, 36]
    DK, DV = 64, 80
    A("s_lshl_b32 s26, s%d, 12" % sW)
    x_read_setup(A, vXr, 26, XB, t0, t1, t2)
    set_off = XB
    A("v_lshrrev_b32 v%d, 5, v%d" % (t0, vLane))
    A("v_bfe_u32 v%d, v%d, 2, 2" % (t1, vLane))
    A("v_lshl_add_u32 v%d, v%d, 3, v%d" % (t0, t0, t1))
    A("v_mul_u32_u24 v%d, 40, v%d" % (vWr, t0))
    A("v_bfe_u32 v%d, v%d, 4, 1" % (t0, vLane))
    A("v_lshl_add_u32 v%d, v%d, 5, v%d" % (vWr, t0, vWr))
    A("v_and_b32 v%d, 3, v%d" % (t0, vLane))
    A("v_lshl_add_u32 v%d, v%d, 3, v%d" % (vWr, t0, vWr))
    def reads(S):
        c, s_ = divmod(S, 4); fb = S & 1
        o = (c % D) * BUF
        if o >= 65536:
            A("v_add_u32 v%d, %d, v%d" % (t0, 65536, vXr + s_))
            A("ds_read_b128 %s, v%d offset:%d" % (v(XF[fb], 4), t0, o - 65536))
        else:
            A("ds_read_b128 %s, v%d offset:%d" % (v(XF[fb], 4), vXr + s_, o))
        for h in range(2):
            A("ds_read_b64_tr_b16 %s, v%d offset:%d" % (v(KF[fb] + 2 * h, 2), vWr, S * 640 + h * 160))
        for h in range(2):
            A("ds_read_b64_tr_b16 %s, v%d offset:%d" % (v(VF[fb] + 2 * h, 2), vWr, 32768 + S * 640 + h * 160))
    A("s_barrier")
    reads(0)
    for S in range(40):
        c, s_ = divmod(S, 4); fb = S & 1
        if S + 1 < 40:
            reads(S + 1)
            A("s_waitcnt lgkmcnt(5)")
        else:
            A("s_waitcnt lgkmcnt(0)")
        A("v_mfma_f32_32x32x16_bf16 %s, %s, %s, %s" % (v(DK, 16), v(KF[fb], 4), v(XF[fb], 4), "0" if S == 0 else v(DK, 16)))
        if s_ == 2 and c + 1 < 10:
            A("s_barrier")
        A("v_mfma_f32_32x32x16_bf16 %s, %s, %s, %s" % (v(DV, 16), v(XF[fb], 4), v(VF[fb], 4), "0" if S == 0 else v(DV, 16)))
    A("s_waitcnt lgkmcnt(0)")
    srd(A, SO, 4, WS_KV, NKV)
    A("s_lshr_b32 s26, s%d, 5" % sRow0)
    A("s_add_u32 s26, s26, s%d" % sW)
    A("s_mul_i32 s26, s26, 2560")
    vK1, vK2, vV = 8, 9, 10
    A("v_and_b32 v%d, 31, v%d" % (t0, vLane))
    A("v_lshrrev_b32 v%d, 5, v%d" % (t1, vLane))
    A("v_lshlrev_b32 v%d, 4, v%d" % (vK1, t0))
    A("v_lshl_add_u32 v%d, v%d, 3, v%d" % (vK1, t1, vK1))
    A("v_lshlrev_b32 v%d, 30, v%d" % (vK2, t1))
    A("v_lshl_add_u32 v%d, v%d, 3, v%d" % (vK2, t0, vK2))
    A("v_mul_u32_u24 v%d, 320, v%d" % (vV, t1))
    A("v_lshl_add_u32 v%d, v%d, 4, v%d" % (vV, t0, vV))
    A("v_cmp_gt_u32 vcc, 20, v%d" % t0)
    A("v_mov_b32 v%d, 0x40000000" % t2)
    A("s_nop 1")
    A("v_cndmask_b32 v%d, v%d, v%d, vcc" % (vV, t2, vV))
    A("s_nop 7")
    for j in range(6):
        A("v_cvt_pk_bf16_f32 v%d, v%d, v%d" % (16 + j, DK + 2 * j, DK + 2 * j + 1))
    for j in range(6):
        A("v_lshlrev_b32 v%d, 16, v%d" % (DK + 2 * j, 16 + j))
        A("v_and_b32 v%d, 0xffff0000, v%d" % (DK + 2 * j + 1, 16 + j))
    A("s_mov_b32 s27, 0x%x" % f32bits(CSCALE))
    for r in range(12):
        A("v_mul_f32 v%d, s27, v%d" % (DK + r, DK + r))
    for j in range(6):
        A("v_cvt_pk_bf16_f32 v%d, v%d, v%d" % (16 + j, DK + 2 * j, DK + 2 * j + 1))
    for j in range(8):
        A("v_cvt_pk_bf16_f32 v%d, v%d, v%d" % (24 + j, DV + 2 * j, DV + 2 * j + 1))
    A("buffer_store_dwordx2 %s, v%d, s[%d:%d], s26 offen" % (v(16, 2), vK1, SO, SO + 3))
    A("buffer_store_dwordx2 %s, v%d, s[%d:%d], s26 offen offset:512" % (v(18, 2), vK1, SO, SO + 3))
    A("buffer_store_dwordx2 %s, v%d, s[%d:%d], s26 offen offset:1024" % (v(20, 2), vK2, SO, SO + 3))
    A("buffer_store_dwordx4 %s, v%d, s[%d:%d], s26 offen offset:1280" % (v(24, 4), vV, SO, SO + 3))
    A("buffer_store_dwordx4 %s, v%d, s[%d:%d], s26 offen offset:1920" % (v(28, 4), vV, SO, SO + 3))
    A("s_branch %s" % end)

AUX = True
WS_WF  = 0x0300000
WS_CNT = 0x02C0000
NWF = 819200

def gate_row(A, X, XU, WU, SG, vZero, sOff):
    for q in range(5):
        A("v_lshlrev_b32 v%d, 16, v%d" % (XU + 2 * q, X + q))
        A("v_and_b32 v%d, 0xffff0000, v%d" % (XU + 2 * q + 1, X + q))
    for q in range(10):
        A("v_mul_f32 v%d, v%d, v%d" % (XU + q, XU + q, WU + q))
    for q in range(5):
        A("v_cvt_pk_bf16_f32 v%d, v%d, v%d" % (X + q, XU + 2 * q, XU + 2 * q + 1))
    for q in range(5):
        A("v_lshlrev_b32 v%d, 16, v%d" % (XU + 2 * q, X + q))
        A("v_and_b32 v%d, 0xffff0000, v%d" % (XU + 2 * q + 1, X + q))
    for q in range(5):
        A("v_add_f32 v%d, v%d, v%d" % (XU + q, XU + q, XU + 5 + q))
    A("v_add_f32 v%d, v%d, v%d" % (XU, XU, XU + 1))
    A("v_add_f32 v%d, v%d, v%d" % (XU + 2, XU + 2, XU + 3))
    A("v_add_f32 v%d, v%d, v%d" % (XU, XU, XU + 4))
    A("v_add_f32 v%d, v%d, v%d" % (XU, XU, XU + 2))
    for ctl in ("row_shr:1", "row_shr:2", "row_shr:4", "row_shr:8"):
        A("s_nop 1")
        A("v_add_f32_dpp v%d, v%d, v%d %s row_mask:0xf bank_mask:0xf bound_ctrl:0" % (XU, XU, XU, ctl))
    A("s_nop 1")
    A("v_add_f32_dpp v%d, v%d, v%d row_bcast:15 row_mask:0xa bank_mask:0xf" % (XU, XU, XU))
    A("s_nop 1")
    A("v_add_f32_dpp v%d, v%d, v%d row_bcast:31 row_mask:0xc bank_mask:0xf" % (XU, XU, XU))
    A("v_cvt_pk_bf16_f32 v%d, v%d, v%d" % (XU, XU, XU))
    A("v_lshlrev_b32 v%d, 16, v%d" % (XU, XU))
    A("v_mul_f32 v%d, 0xbfb8aa3b, v%d" % (XU, XU))
    A("v_exp_f32 v%d, v%d" % (XU, XU))
    A("s_nop 0")
    A("v_add_f32 v%d, 1.0, v%d" % (XU, XU))
    A("v_rcp_f32 v%d, v%d" % (XU, XU))
    A("s_nop 0")
    A("v_cvt_pk_bf16_f32 v%d, v%d, v%d" % (XU, XU, XU))
    A("v_lshlrev_b32 v%d, 16, v%d" % (X, XU))
    A("s_mov_b32 exec_lo, 0")
    A("s_mov_b32 exec_hi, 0x80000000")
    A("buffer_store_dword v%d, v%d, s[%d:%d], s%d offen" % (X, vZero, SG, SG + 3, sOff))
    A("s_mov_b64 exec, -1")

def role_wo(A, end):
    SWO, SWF, SC = 8, 12, 16
    A("s_load_dwordx2 s[32:33], s[0:1], 104")
    A("s_load_dwordx2 s[4:5], s[0:1], 136")
    A("s_sub_u32 s20, s2, 240")
    A("s_lshl_b32 s20, s20, 2")
    A("s_add_u32 s20, s20, s%d" % sW)
    A("s_sub_u32 s20, s20, 12")
    A("v_lshrrev_b32 v2, 4, v%d" % vLane)
    A("v_and_b32 v3, 15, v%d" % vLane)
    A("v_mul_u32_u24 v4, %d, v2" % (8 * 1280))
    A("v_lshl_add_u32 v4, v3, 4, v4")
    A("v_lshrrev_b32 v5, 1, v3")
    A("v_mul_u32_u24 v5, 20480, v5")
    A("v_lshl_add_u32 v5, v2, 8, v5")
    A("v_and_b32 v6, 1, v3")
    A("v_lshl_add_u32 v5, v6, 7, v5")
    A("v_lshlrev_b32 v6, 7, v%d" % vLane)
    A("v_mov_b32 v7, 0")
    A("s_mov_b32 s40, 0x05040100")
    A("s_mov_b32 s41, 0x07060302")
    for n in range(2):
        A("s_add_u32 s21, s20, %d" % (64 * n))
        A("s_mul_i32 s22, s21, 205")
        A("s_lshr_b32 s22, s22, 10")
        A("s_mul_i32 s23, s22, 5")
        A("s_sub_u32 s23, s21, s23")
        A("s_mul_i32 s24, s22, %d" % (32 * 1280))
        A("s_lshl_b32 s25, s23, 8")
        A("s_add_u32 s%d, s24, s25" % (26 + 3 * n))
        A("s_add_u32 s%d, s%d, 5120" % (27 + 3 * n, 26 + 3 * n))
        A("s_mul_i32 s24, s23, %d" % (8 * 20480))
        A("s_lshl_b32 s25, s22, 10")
        A("s_add_u32 s%d, s24, s25" % (28 + 3 * n))
        A("s_cmp_ge_u32 s21, 100")
        A("s_cselect_b32 s%d, 0x1000000, s%d" % (28 + 3 * n, 28 + 3 * n))
    A("s_waitcnt lgkmcnt(0)")
    srd(A, SWO, 32, 0, 640 * 1280)
    srd(A, SWF, 4, WS_WF, NWF)
    srd(A, SC, 4, WS_CNT, 4096)
    L = [16, 48]; Pk = [80, 16]
    for _ in range(WDELAY): A("s_barrier")
    for n in range(2):
        for e in range(8):
            A("buffer_load_dwordx4 %s, v4, s[%d:%d], s%d offen offset:%d" % (v(L[n] + 4 * e, 4), SWO, SWO + 3, 26 + 3 * n + (e >> 2), (e & 3) * 1280))
    A("s_cmp_eq_u32 s20, 0")
    A("s_cbranch_scc0 k1_wo_nz")
    A("buffer_store_dword v7, v6, s[%d:%d], 0 offen" % (SC, SC + 3))
    A.label("k1_wo_nz")
    A("s_barrier")
    A("s_waitcnt vmcnt(0)")
    for n in range(2):
        for cc in range(8):
            for m in range(4):
                A("v_perm_b32 v%d, v%d, v%d, s%d" % (Pk[n] + 4 * cc + m, L[n] + 4 * (2 * m + 1) + (cc >> 1), L[n] + 4 * (2 * m) + (cc >> 1), 40 + (cc & 1)))
            A("buffer_store_dwordx4 %s, v5, s[%d:%d], s%d offen offset:%d" % (v(Pk[n] + 4 * cc, 4), SWF, SWF + 3, 28 + 3 * n, cc * 16))
    A("s_branch %s" % end)

CH = 34816
TAB = 17408
UB = 4 * CH
UP = 4576
CP0 = 2048
CPS = 4160
EX2 = 20480

GROWS = {0: [11], 1: [10], 2: [9], 3: [8], 4: [3], 5: [2], 6: [1], 7: [0],
         256: [14, 15], 258: [13], 260: [12, 7, 6], 262: [5], 264: [4],
         512: [18], 516: [17], 520: [16], 768: [22], 772: [21], 776: [20],
         1024: [25], 1032: [24], 1280: [27], 1288: [26], 1536: [29], 1544: [28], 1792: [31], 1800: [30]}

def role_ssm(A, end, timing):
    t0, t1, t2, t3 = 2, 3, 4, 5
    sD0, sCH, sHF = 7, 8, 9
    SX, SAT = 12, 36
    A("s_load_dwordx16 s[16:31], s[0:1], 0")
    A("s_load_dwordx2 s[32:33], s[0:1], 64")
    A("s_load_dwordx2 s[4:5], s[0:1], 136")
    A("s_and_b32 s10, s2, 7")
    A("s_mul_i32 s10, s10, 20")
    A("s_lshr_b32 s11, s2, 3")
    A("s_add_u32 s10, s10, s11")
    A("s_lshl_b32 s%d, s10, 2" % sD0)
    A("s_cmp_lt_u32 s%d, 8" % sW)
    A("s_cbranch_scc1 ssm_main")
    if LPRIO: A("s_setprio %d" % LPRIO)
    if AUX: A("s_load_dwordx2 s[36:37], s[0:1], 112")
    A("s_sub_u32 s10, s%d, 8" % sW)
    A("v_mul_u32_u24 v%d, 1280, v%d" % (t0, vLane))
    A("s_mul_i32 s11, s10, %d" % (256 * 1280))
    A("s_lshl_b32 s34, s%d, 1" % sD0)
    A("s_add_u32 s11, s11, s34")
    A("s_waitcnt lgkmcnt(0)")
    srd(A, SX, 16, 0, NQ)
    if B0: A("s_barrier")
    for e in range(4):
        A("s_add_u32 s34, s11, %d" % (e * 64 * 1280))
        A("buffer_load_dwordx2 %s, v%d, s[%d:%d], s34 offen %s" % (v(8 + 2 * e, 2), t0, SX, SX + 3, GMOD))
    NG = 0
    if AUX:
        GX, GW, XU, WU, SGW, SG = 32, 44, 52, 64, 40, 44
        NG = 0
        A("s_lshl_b32 s38, s2, 3")
        A("s_add_u32 s38, s38, s10")
        A("s_mul_i32 s39, s38, 1280")
        A("v_mul_u32_u24 v24, 20, v%d" % vLane)
        A("v_mov_b32 v25, 0")
        srd(A, SGW, 36, 0, 1280)
        srd(A, SG, 4, WS_G, 8192)
    A("v_mov_b32 v16, 0"); A("v_mov_b32 v17, 0"); A("v_mov_b32 v18, 0"); A("v_mov_b32 v19, 0")
    A("s_mul_i32 s34, s10, %d" % UP)
    A("s_add_u32 s34, s34, %d" % UB)
    A("v_lshlrev_b32 v%d, 4, v%d" % (t1, vLane))
    A("v_add_u32 v%d, s34, v%d" % (t1, t1))
    A("s_cmp_lt_u32 s10, 4")
    A("s_cbranch_scc0 ssm_nz")
    A("s_mov_b32 exec_lo, 0x3fffffff")
    A("s_mov_b32 exec_hi, 0")
    A("ds_write_b128 v%d, v[16:19]" % t1)
    A("s_mov_b64 exec, -1")
    A.label("ssm_nz")
    A("s_lshl_b32 s34, s10, 9")
    A("s_add_u32 s34, s34, %d" % (UB + 480))
    A("v_lshlrev_b32 v%d, 1, v%d" % (t1, vLane))
    A("v_add_u32 v%d, s34, v%d" % (t1, t1))
    if V3:
        A("s_barrier")
        A("s_barrier")
    for e in range(4):
        A("s_waitcnt vmcnt(%d)" % (3 - e + NG))
        for cc in range(4):
            A("ds_write_b16%s v%d, v%d offset:%d" % ("_d16_hi" if cc & 1 else "", t1, 8 + 2 * e + (cc >> 1), cc * UP + e * 128))
    if AUX:
        for j in range(2):
            A("s_add_u32 s48, s39, %d" % (j * 1280 * 1280))
            A("buffer_load_dwordx4 %s, v24, s[%d:%d], s48 offen" % (v(GX + 6 * j, 4), SX, SX + 3))
            A("buffer_load_dword v%d, v24, s[%d:%d], s48 offen offset:16" % (GX + 6 * j + 4, SX, SX + 3))
        A("buffer_load_dwordx4 %s, v24, s[%d:%d], 0 offen" % (v(GW, 4), SGW, SGW + 3))
        A("buffer_load_dword v%d, v24, s[%d:%d], 0 offen offset:16" % (GW + 4, SGW, SGW + 3))
    A("s_waitcnt lgkmcnt(0)")
    stamp(A, timing, 1)
    if V3: A("s_barrier")
    if AUX:
        A("s_setprio 0")
        A("s_waitcnt vmcnt(0)")
        for q in range(5):
            A("v_lshlrev_b32 v%d, 16, v%d" % (WU + 2 * q, GW + q))
            A("v_and_b32 v%d, 0xffff0000, v%d" % (WU + 2 * q + 1, GW + q))
        A("s_lshl_b32 s48, s38, 2")
        gate_row(A, GX, XU, WU, SG, 25, 48)
        A("s_cmp_ge_u32 s38, 768")
        A("s_cbranch_scc1 ssm_ng")
        A("s_add_u32 s49, s48, %d" % (1280 * 4))
        gate_row(A, GX + 6, XU, WU, SG, 25, 49)
        A.label("ssm_ng")
    dump_stamps(A, timing, 2, end, 0)
    A("s_branch %s" % end)

    A.label("ssm_main")
    A("s_lshr_b32 s%d, s%d, 1" % (sCH, sW))
    A("s_and_b32 s%d, s%d, 1" % (sHF, sW))
    P = 8
    for i in range(6): A("v_mov_b32 v%d, 0" % (P + i))
    A("s_add_u32 s10, s%d, s%d" % (sD0, sCH))
    A("s_lshl_b32 s11, s10, 8")
    A("s_lshl_b32 s34, s%d, 7" % sHF)
    A("s_add_u32 s11, s11, s34")
    A("v_lshlrev_b32 v%d, 1, v%d" % (t0, vLane))
    A("v_add_u32 v%d, s11, v%d" % (t0, t0))
    A("s_lshl_b32 s11, s%d, 1" % sD0)
    A("s_waitcnt lgkmcnt(0)")
    for i in range(6):
        A("global_load_short_d16_hi v%d, v%d, s[%d:%d]" % (P + i, t0, 18 + 2 * i, 19 + 2 * i))
    A("s_load_dwordx2 s[34:35], s[30:31], s11")
    A("s_load_dwordx2 s[40:41], s[32:33], s11")
    if B0: A("s_barrier")
    srd(A, SAT, 4, WS_AT, NQ)
    vTab = 50
    A("s_mul_i32 s42, s%d, %d" % (sW, TAB))
    A("v_lshlrev_b32 v%d, 2, v%d" % (vTab, vLane))
    A("v_add_u32 v%d, s42, v%d" % (vTab, vTab))
    A("s_waitcnt lgkmcnt(0)")
    for (src, dst) in ((34, 43), (40, 44)):
        A("s_bitcmp1_b32 s%d, 1" % sCH)
        A("s_cselect_b32 s%d, s%d, s%d" % (dst, src + 1, src))
        A("s_lshl_b32 s45, s%d, 16" % dst)
        A("s_and_b32 s%d, s%d, 0xffff0000" % (dst, dst))
        A("s_bitcmp1_b32 s%d, 0" % sCH)
        A("s_cselect_b32 s%d, s%d, s45" % (dst, dst))
    sDskip = 44
    vDT = 6
    A("v_mov_b32 v%d, s43" % vDT)
    A("v_mul_f32 v%d, 0x%x, v%d" % (vDT, f32bits(LOG2E), vDT))
    A("v_exp_f32 v%d, v%d" % (vDT, vDT))
    A("s_nop 0")
    A("v_cvt_pk_bf16_f32 v%d, v%d, v%d" % (vDT, vDT, vDT))
    A("v_and_b32 v%d, 0xffff0000, v%d" % (vDT, vDT))
    Z, E1, E2, E4, W8, E256, E512, E1024, CB = 14, 16, 18, 20, 22, 24, 26, 28, 30
    GA, GB, FA, FB, T1, T2 = 32, 34, 38, 40, 42, 44
    PK = [46, 47, 48, 49]
    A("s_waitcnt vmcnt(0)")
    stamp(A, timing, 7)
    A("v_mul_f32 v%d, v%d, v%d" % (Z, vDT, P + 0))
    A("v_mul_f32 v%d, v%d, v%d" % (Z + 1, vDT, P + 1))
    A("v_mul_f32 v%d, v%d, v%d" % (P + 2, vDT, P + 2))
    A("v_mul_f32 v%d, v%d, v%d" % (P + 3, vDT, P + 3))
    A("v_mul_f32 v%d, 0x%x, v%d" % (Z, f32bits(LOG2E), Z))
    A("v_mul_f32 v%d, 0x%x, v%d" % (Z + 1, f32bits(1.0 / (2 * math.pi)), Z + 1))
    def cmul(d, a, b, t, conj=False):
        A("v_pk_mul_f32 %s, %s, %s op_sel_hi:[0,1]" % (v(t, 2), v(b, 2), v(a, 2)))
        A("v_pk_fma_f32 %s, %s, %s, %s op_sel:[1,1,0] op_sel_hi:[1,0,1] %s:[1,0,0]" % (v(d, 2), v(b, 2), v(a, 2), v(t, 2), "neg_hi" if conj else "neg_lo"))
    def anchor(d, m):
        if m == 1:
            A("v_exp_f32 v%d, v%d" % (t0, Z))
            A("v_fract_f32 v%d, v%d" % (t1, Z + 1))
        else:
            A("v_mul_f32 v%d, %s, v%d" % (t0, "%d.0" % m if m in (2, 4) else "0x%x" % f32bits(float(m)), Z))
            A("v_mul_f32 v%d, %s, v%d" % (t1, "%d.0" % m if m in (2, 4) else "0x%x" % f32bits(float(m)), Z + 1))
            A("v_exp_f32 v%d, v%d" % (t0, t0))
            A("v_fract_f32 v%d, v%d" % (t1, t1))
        A("v_cos_f32 v%d, v%d" % (d, t1))
        A("v_sin_f32 v%d, v%d" % (d + 1, t1))
        A("s_nop 0")
        A("v_mul_f32 v%d, v%d, v%d" % (d, d, t0))
        A("v_mul_f32 v%d, v%d, v%d" % (d + 1, d + 1, t0))
    anchor(W8, 8)
    anchor(E1, 1)
    cmul(CB, P + 4, P + 2, T1)
    A("v_xor_b32 v%d, 0x80000000, v%d" % (CB + 1, CB + 1))
    anchor(E256, 256)
    anchor(E512, 512)
    anchor(E1024, 1024)
    cmul(E2, E1, E1, T1)
    cmul(E4, E2, E2, T2)
    pki = [0]
    def put(src, rows):
        pk = PK[pki[0] & 3]; pki[0] += 1
        A("v_cvt_pk_bf16_f32 v%d, v%d, v%d" % (pk, src, src + 1))
        for r in rows:
            A("ds_write_b32 v%d, v%d offset:%d" % (vTab, pk, r * 272))
    fops = []
    fops.append(lambda: (A("v_mov_b32 v%d, 0x3f80" % PK[3]), A("ds_write_b32 v%d, v%d offset:%d" % (vTab, PK[3], 32 * 272))))
    fops.append(lambda: put(W8, [33]))
    cur = W8
    fr = [FA, FB]
    for j in range(2, 32):
        d = fr[j & 1]
        fops.append((lambda d=d, cur=cur, j=j: (cmul(d, cur, W8, T1), put(d, [32 + j]))))
        cur = d
    gops = []
    def gstep(d, a, b, base):
        gops.append(lambda: (cmul(d, a, b, T2, conj=True), put(d, GROWS[base])))
    gops.append(lambda: put(CB, GROWS[0]))
    g = [GA, GB]
    prev = CB
    for k in range(1, 8):
        gstep(g[k & 1], prev, E1, k); prev = g[k & 1]
    G256, G512, G1024, G1536 = 36, 52, 54, 56
    gstep(G256, CB, E256, 256)
    prev = G256
    for k, base in enumerate((258, 260, 262, 264)):
        gstep(g[k & 1], prev, E2, base); prev = g[k & 1]
    gstep(G512, CB, E512, 512)
    gstep(GA, G512, E4, 516); gstep(GB, GA, E4, 520)
    gstep(G256, G512, E256, 768)
    gstep(GA, G256, E4, 772); gstep(GB, GA, E4, 776)
    gstep(G1024, CB, E1024, 1024)
    gstep(GA, G1024, W8, 1032)
    gstep(GB, G1024, E256, 1280); gstep(GA, GB, W8, 1288)
    gstep(G1536, G1024, E512, 1536); gstep(GA, G1536, W8, 1544)
    gstep(GB, G1536, E256, 1792); gstep(GA, GB, W8, 1800)
    n = max(len(fops), len(gops))
    for i in range(n):
        if i < len(fops): fops[i]()
        if i < len(gops): gops[i]()
    stamp(A, timing, 1)
    AF, BF, DK = 64, 96, 16
    A("v_and_b32 v%d, 31, v%d" % (t0, vLane))
    A("v_mul_u32_u24 v%d, 272, v%d" % (t0, t0))
    A("v_lshrrev_b32 v%d, 5, v%d" % (t1, vLane))
    A("v_lshl_add_u32 v%d, v%d, 4, v%d" % (t0, t1, t0))
    A("v_add_u32 v%d, s42, v%d" % (t0, t0))
    for t in range(8):
        A("ds_read_b128 %s, v%d offset:%d" % (v(AF + 4 * t, 4), t0, 32 * t))
        A("ds_read_b128 %s, v%d offset:%d" % (v(BF + 4 * t, 4), t0, 32 * 272 + 32 * t))
    for t in range(8):
        A("s_waitcnt lgkmcnt(%d)" % (14 - 2 * t))
        A("v_mfma_f32_32x32x16_bf16 %s, %s, %s, %s" % (v(DK, 16), v(AF + 4 * t, 4), v(BF + 4 * t, 4), "0" if t == 0 else v(DK, 16)))
    vL16 = 7
    A("v_lshlrev_b32 v%d, 4, v%d" % (vL16, vLane))
    A("v_add_u32 v%d, s42, v%d" % (t0, vL16))
    A("s_xor_b32 s45, s%d, 1" % sW)
    A("s_mul_i32 s45, s45, %d" % TAB)
    A("v_add_u32 v%d, s45, v%d" % (t1, vL16))
    A("s_mul_i32 s46, s%d, %d" % (sCH, CH))
    A("s_nop 7")
    A("s_nop 1")
    A("s_cmp_eq_u32 s%d, 0" % sHF)
    A("s_cbranch_scc0 ssm_x1")
    A("ds_write_b128 v%d, %s" % (t0, v(DK + 8, 4)))
    A("ds_write_b128 v%d, %s offset:1024" % (t0, v(DK + 12, 4)))
    A("s_branch ssm_x2")
    A.label("ssm_x1")
    A("ds_write_b128 v%d, %s" % (t0, v(DK, 4)))
    A("ds_write_b128 v%d, %s offset:1024" % (t0, v(DK + 4, 4)))
    A.label("ssm_x2")
    A("s_waitcnt lgkmcnt(0)")
    A("s_barrier")
    stamp(A, timing, 2)
    R = 32
    A("ds_read_b128 %s, v%d" % (v(R, 4), t1))
    A("ds_read_b128 %s, v%d offset:1024" % (v(R + 4, 4), t1))
    A("v_and_b32 v%d, 31, v%d" % (t2, vLane))
    A("v_lshrrev_b32 v%d, 5, v%d" % (t3, vLane))
    A("v_lshlrev_b32 v%d, 4, v%d" % (t2, t2))
    A("s_add_u32 s47, s46, %d" % (CP0 + 4080))
    A("v_sub_u32 v%d, s47, v%d" % (t2, t2))
    A("s_waitcnt lgkmcnt(0)")
    A("s_cmp_eq_u32 s%d, 0" % sHF)
    A("s_cbranch_scc0 ssm_y1")
    for r in range(8): A("v_add_f32 v%d, v%d, v%d" % (DK + r, DK + r, R + r))
    A("v_lshlrev_b32 v%d, 9, v%d" % (t3, t3))
    A("v_sub_u32 v%d, v%d, v%d" % (t2, t2, t3))
    for j in range(4): A("v_cvt_pk_bf16_f32 v%d, v%d, v%d" % (R + j, DK + 2 * j, DK + 2 * j + 1))
    A("ds_write_b128 v%d, %s" % (t2, v(R, 4)))
    A("v_mov_b32 v%d, 0" % (R + 4)); A("v_mov_b32 v%d, 0" % (R + 5)); A("v_mov_b32 v%d, 0" % (R + 6)); A("v_mov_b32 v%d, 0" % (R + 7))
    A("s_add_u32 s47, s46, %d" % (CP0 + 4096))
    A("v_add_u32 v%d, s47, v%d" % (t3, vL16))
    A("s_mov_b64 exec, 0xf")
    A("ds_write_b128 v%d, %s" % (t3, v(R + 4, 4)))
    A("s_mov_b64 exec, -1")
    A("s_branch ssm_y2")
    A.label("ssm_y1")
    for r in range(8): A("v_add_f32 v%d, v%d, v%d" % (DK + r, DK + 8 + r, R + r))
    A("v_lshlrev_b32 v%d, 9, v%d" % (R + 12, t3))
    A("v_sub_u32 v%d, v%d, v%d" % (R + 12, t2, R + 12))
    A("v_subrev_u32 v%d, 1024, v%d" % (R + 12, R + 12))
    A("v_cvt_pk_bf16_f32 v%d, v%d, v%d" % (R + 0, DK + 0, DK + 0))
    A("v_cvt_pk_bf16_f32 v%d, v%d, v%d" % (R + 1, DK + 1, DK + 1))
    A("v_cvt_pk_bf16_f32 v%d, v%d, v%d" % (R + 2, DK + 1, DK + 2))
    A("v_cvt_pk_bf16_f32 v%d, v%d, v%d" % (R + 3, DK + 2, DK + 2))
    A("ds_write_b128 v%d, %s" % (R + 12, v(R, 4)))
    A("v_lshlrev_b32 v%d, 10, v%d" % (R + 13, t3))
    A("v_sub_u32 v%d, v%d, v%d" % (R + 13, t2, R + 13))
    A("v_subrev_u32 v%d, 2560, v%d" % (R + 13, R + 13))
    A("v_and_b32 v%d, 1, v%d" % (R + 14, vLane))
    A("v_cmp_eq_u32 vcc, 1, v%d" % (R + 14))
    A("s_nop 1")
    for k in range(2):
        K8, K0 = DK + 4 + 2 * k, DK + 5 + 2 * k
        o = R + 4 + 4 * k
        A("v_cndmask_b32 v%d, v%d, v%d, vcc" % (R + 15, K0, K8))
        A("v_cvt_pk_bf16_f32 v%d, v%d, v%d" % (o + 0, K8, K8))
        A("v_cvt_pk_bf16_f32 v%d, v%d, v%d" % (o + 1, K8, R + 15))
        A("v_cvt_pk_bf16_f32 v%d, v%d, v%d" % (o + 2, K0, K0))
        A("v_mov_b32 v%d, v%d" % (o + 3, o + 2))
    A("ds_write_b128 v%d, %s offset:512" % (R + 13, v(R + 4, 4)))
    A("ds_write_b128 v%d, %s" % (R + 13, v(R + 8, 4)))
    A.label("ssm_y2")
    A("s_waitcnt lgkmcnt(0)")
    A("s_barrier")
    stamp(A, timing, 3)
    A("s_lshl_b32 s47, s%d, 11" % sHF)
    A("s_add_u32 s47, s47, s46")
    A("s_add_u32 s47, s47, %d" % CP0)
    A("v_add_u32 v%d, s47, v%d" % (t0, vL16))
    for it in range(2):
        d = 32 + 8 * it
        A("ds_read_b128 %s, v%d offset:%d" % (v(d, 4), t0, it * 1024))
        A("ds_read_b64 %s, v%d offset:%d" % (v(d + 4, 2), t0, it * 1024 + 16))
    A("v_lshrrev_b32 v%d, 2, v%d" % (t1, vLane))
    A("v_mul_u32_u24 v%d, %d, v%d" % (t1, CPS, t1))
    A("v_and_b32 v%d, 3, v%d" % (t2, vLane))
    A("v_lshl_add_u32 v%d, v%d, 4, v%d" % (t1, t2, t1))
    A("s_add_u32 s47, s46, %d" % (CP0 + CPS + 4096))
    A("v_add_u32 v%d, s47, v%d" % (t1, t1))
    for r in range(4): A("v_mov_b32 v%d, 0" % (60 + r))
    A("s_cmp_eq_u32 s%d, 0" % sHF)
    A("s_cbranch_scc0 ssm_z1")
    A("s_mov_b64 exec, 0xfff")
    A("ds_write_b128 v%d, v[60:63]" % t1)
    A("s_mov_b64 exec, -1")
    A.label("ssm_z1")
    A("v_add_u32 v64, %d, v%d" % (2 * CPS, t0))
    A("v_add_u32 v65, %d, v%d" % (2 * CPS + 1024, t0))
    A("s_waitcnt lgkmcnt(0)")
    for it in range(2):
        d = 32 + 8 * it; e = 48 + 8 * it
        for i in range(4): A("v_alignbit_b32 v%d, v%d, v%d, 16" % (e + i, d + i + 1, d + i))
        for i in range(4): A("v_alignbit_b32 v%d, v%d, v%d, 16" % (e + 4 + i, d + i + 2, d + i + 1))
        A("ds_write_b128 v%d, %s offset:%d" % (t0, v(e, 4), it * 1024 + CPS))
        A("ds_write2_b32 v%d, v%d, v%d offset0:0 offset1:1" % (64 + it, d + 1, d + 2))
        A("ds_write2_b32 v%d, v%d, v%d offset0:2 offset1:3" % (64 + it, d + 3, d + 4))
        A("ds_write_b128 v%d, %s offset:%d" % (t0, v(e + 4, 4), it * 1024 + 3 * CPS))
    AF, BF, DC = 32, 64, 96
    vAlo, vAhi, vB = 8, 9, 10
    A("v_and_b32 v%d, 3, v%d" % (t1, vLane))
    A("v_sub_u32 v%d, 3, v%d" % (t1, t1))
    A("v_mul_u32_u24 v%d, %d, v%d" % (vAlo, CPS, t1))
    A("v_bfe_u32 v%d, v%d, 2, 2" % (t1, vLane))
    A("v_lshrrev_b32 v%d, 4, v%d" % (t2, vLane))
    A("v_lshlrev_b32 v%d, 1, v%d" % (t3, t2))
    A("v_sub_u32 v%d, v%d, v%d" % (t3, t3, t1))
    A("v_lshl_add_u32 v%d, v%d, 3, v%d" % (vAlo, t3, vAlo))
    A("s_lshl_b32 s47, s%d, 8" % sHF)
    A("s_sub_u32 s48, s46, s47")
    A("s_add_u32 s48, s48, %d" % (CP0 + 8 * 507 - 3584))
    A("v_add_u32 v%d, s48, v%d" % (vAlo, vAlo))
    A("v_add_u32 v%d, 2048, v%d" % (vAhi, vAlo))
    A("v_and_b32 v%d, 15, v%d" % (t1, vLane))
    A("v_lshlrev_b32 v%d, 5, v%d" % (vB, t1))
    A("v_lshl_add_u32 v%d, v%d, 4, v%d" % (vB, t2, vB))
    A("s_mul_i32 s48, s%d, %d" % (sCH, UP))
    A("s_add_u32 s48, s48, %d" % (UB + 448))
    A("s_sub_u32 s49, s48, s47")
    A("v_add_u32 v%d, s49, v%d" % (vB, vB))
    vU, vO = 11, 12
    A("v_lshlrev_b32 v%d, 5, v%d" % (vO, t1))
    A("v_lshl_add_u32 v%d, v%d, 3, v%d" % (vO, t2, vO))
    A("s_lshl_b32 s47, s%d, 11" % sHF)
    A("s_add_u32 s49, s48, s47")
    A("s_add_u32 s49, s49, 32")
    A("v_add_u32 v%d, s49, v%d" % (vU, vO))
    A("s_add_u32 s10, s%d, s%d" % (sD0, sCH))
    A("s_lshl_b32 s10, s10, 12")
    A("s_add_u32 s10, s10, s47")
    A("s_add_u32 s47, s46, %d" % EX2)
    A("s_lshl_b32 s48, s%d, 12" % sHF)
    A("s_add_u32 s49, s47, s48")
    A("v_add_u32 v%d, s49, v%d" % (13, vL16))
    A("s_xor_b32 s48, s48, 4096")
    A("s_add_u32 s49, s47, s48")
    A("v_add_u32 v%d, s49, v%d" % (14, vL16))
    A("s_waitcnt lgkmcnt(0)")
    stamp(A, timing, 8)
    A("s_barrier")
    stamp(A, timing, 4)
    for cl in range(4):
        if cl:
            A("v_subrev_u32 v%d, 64, v%d" % (vAlo, vAlo))
            A("v_subrev_u32 v%d, 64, v%d" % (vB, vB))
        seq = [("B", 0)]
        for a in range(8): seq += [("A", a, 0), ("A", a, 1)]
        seq += [("B", b) for b in range(1, 8)]
        for x in seq:
            if x[0] == "A":
                i, h = x[1], x[2]
                A("ds_read_b64 %s, v%d offset:%d" % (v(AF + 4 * i + 2 * h, 2), vAlo, 512 * (7 - i) + 8 * h))
            else:
                A("ds_read_b128 %s, v%d offset:%d" % (v(BF + 4 * x[1], 4), vB, 512 * x[1]))
        pos = {x: n for n, x in enumerate(seq)}
        waited = -1
        for b in range(8):
            for a in range(8 - b):
                need = max(pos[("A", a, 1)], pos[("B", b)])
                if need > waited:
                    cnt = len(seq) - 1 - need
                    if cnt <= 15:
                        A("s_waitcnt lgkmcnt(%d)" % cnt)
                        waited = need
                    elif len(seq) - 1 - 15 > waited:
                        A("s_waitcnt lgkmcnt(15)")
                        waited = len(seq) - 1 - 15
                c = a + b
                first = (cl == 0 and b == 0)
                A("v_mfma_f32_16x16x32_bf16 %s, %s, %s, %s" % (v(DC + 4 * c, 4), v(AF + 4 * a, 4), v(BF + 4 * b, 4), "0" if first else v(DC + 4 * c, 4)))
    stamp(A, timing, 5)
    A("s_nop 7")
    A("s_cmp_eq_u32 s%d, 0" % sHF)
    A("s_cbranch_scc0 ssm_w1")
    for k in range(4): A("ds_write_b128 v13, %s offset:%d" % (v(DC + 16 + 4 * k, 4), 1024 * k))
    A("s_branch ssm_w2")
    A.label("ssm_w1")
    for k in range(4): A("ds_write_b128 v13, %s offset:%d" % (v(DC + 4 * k, 4), 1024 * k))
    A.label("ssm_w2")
    U = 32
    for k in range(4): A("ds_read_b64 %s, v%d offset:%d" % (v(U + 2 * k, 2), vU, 512 * k))
    A("s_waitcnt lgkmcnt(0)")
    A("s_barrier")
    R = 64
    for k in range(4): A("ds_read_b128 %s, v14 offset:%d" % (v(R + 4 * k, 4), 1024 * k))
    UF = 40
    for k in range(8):
        A("v_lshlrev_b32 v%d, 16, v%d" % (UF + 2 * k, U + k))
        A("v_and_b32 v%d, 0xffff0000, v%d" % (UF + 2 * k + 1, U + k))
    for r in range(16): A("v_mul_f32 v%d, s%d, v%d" % (UF + r, sDskip, UF + r))
    for k in range(8): A("v_cvt_pk_bf16_f32 v%d, v%d, v%d" % (U + k, UF + 2 * k, UF + 2 * k + 1))
    for k in range(8):
        A("v_lshlrev_b32 v%d, 16, v%d" % (UF + 2 * k, U + k))
        A("v_and_b32 v%d, 0xffff0000, v%d" % (UF + 2 * k + 1, U + k))
    A("s_waitcnt lgkmcnt(0)")
    A("s_cmp_eq_u32 s%d, 0" % sHF)
    A("s_cbranch_scc0 ssm_v1")
    for r in range(16): A("v_add_f32 v%d, v%d, v%d" % (DC + r, DC + r, R + r))
    A("s_branch ssm_v2")
    A.label("ssm_v1")
    for r in range(16): A("v_add_f32 v%d, v%d, v%d" % (DC + r, DC + 16 + r, R + r))
    A.label("ssm_v2")
    for k in range(8): A("v_cvt_pk_bf16_f32 v%d, v%d, v%d" % (U + k, DC + 2 * k, DC + 2 * k + 1))
    for k in range(8):
        A("v_lshlrev_b32 v%d, 16, v%d" % (DC + 2 * k, U + k))
        A("v_and_b32 v%d, 0xffff0000, v%d" % (DC + 2 * k + 1, U + k))
    for r in range(16): A("v_add_f32 v%d, v%d, v%d" % (DC + r, DC + r, UF + r))
    for k in range(8): A("v_cvt_pk_bf16_f32 v%d, v%d, v%d" % (U + k, DC + 2 * k, DC + 2 * k + 1))
    for k in range(4):
        A("buffer_store_dwordx2 %s, v%d, s[%d:%d], s10 offen offset:%d" % (v(U + 2 * k, 2), vO, SAT, SAT + 3, 512 * k))
    stamp(A, timing, 6)
    dump_stamps(A, timing, 9, end, 0)
    A("s_branch %s" % end)

def gen_k1(name="k1_kernel", timing=False):
    A = Asm()
    end = name + "_end"
    A("s_cmp_ge_u32 s2, 256")
    A("s_cbranch_scc1 %s" % end)
    stamp(A, timing, 0)
    A("v_lshrrev_b32 v2, 6, v0")
    A("v_and_b32 v%d, 63, v0" % vLane)
    A("v_readfirstlane_b32 s%d, v2" % sW)
    A("s_cmp_lt_u32 s2, 160")
    A("s_cbranch_scc1 k1_ssm")
    A("s_cmp_lt_u32 s2, 240")
    A("s_cbranch_scc1 k1_q")
    role_kv(A, end, timing)
    A.label("k1_q")
    role_q(A, end, timing)
    if AUX:
        A.label("k1_wo")
        role_wo(A, end)
    A.label("k1_ssm")
    role_ssm(A, end, timing)
    A.label(end)
    A("s_endpgm")
    return dict(name=name, grid=256, block=1024, lds=163840, body=A.text(), vgpr=128)

if __name__ == "__main__":
    import sys
    tm = False
    for a in sys.argv[2:]:
        if a.startswith("t"): tm = int(a[1:]) if len(a) > 1 else True
    for a in sys.argv[2:]:
        if a.startswith("g:"): GMOD = a[2:].replace("+", " ")
    k = gen_k1(timing=tm)
    open(sys.argv[1], "w").write(compose([k]))
```

```python
from asmlib import *

WS_WF  = 0x0300000
WS_CNT = 0x02C0000
NWF = 819200

def gen_k23(name="k23_kernel", force_fallback=False, timing=False, lowmask=0xffff, spin=200000, twg=0, xcd=True, itst=False, PF0=16, BAR2=6, SIDEG=1, amp=None, nosync=False):
    A = Asm()
    Q1 = {"A": 4, "B": 10}; Q2 = {"A": 8, "B": 14}
    S = {"A": 16, "B": 32}; O = {"A": 48, "B": 64}; P = {"A": 80, "B": 88}
    K1 = [96, 102]; K2 = [100, 106]; V = [108, 116]
    aK1, aK2, aV = 1, 2, 3
    T0, T1, T2, T3 = 124, 125, 126, 127
    aDMA = 128
    vL16, vL16b, vAo, vC4 = 129, 130, 131, 132
    WF = 136
    AV = 236
    GV = 248
    OMG = 251
    SRD_KV, SRD_Q, SRD_X = 8, 12, 16
    SRD_WF, SRD_AT, SRD_G, SRD_OUT = 60, 64, 68, 72
    sW, sKH, sRP, sROW, sDMA, sJ = 6, 7, 20, 21, 22, 23
    sMASK = 24
    sWF0, sL0, sN0, sG8 = 76, 77, 78, 79
    sLT = [80, 81, 82]; sNT = [83, 84, 85]; sTAU = [86, 87, 88]
    sLOW = 98
    nst = [0]
    def stamp():
        if timing:
            A("s_memtime s[%d:%d]" % (40 + 2 * nst[0], 41 + 2 * nst[0])); nst[0] += 1
    end = name + "_end"
    A("s_cmp_ge_u32 s2, 256")
    A("s_cbranch_scc1 %s" % end)
    A("s_load_dwordx2 s[4:5], s[0:1], 136")
    A("s_load_dwordx2 s[92:93], s[0:1], 120")
    if timing: A("s_mov_b32 s99, s2")
    if xcd:
        A("s_and_b32 s26, s2, 7")
        A("s_lshl_b32 s26, s26, 5")
        A("s_lshr_b32 s27, s2, 6")
        A("s_lshl_b32 s27, s27, 3")
        A("s_bfe_u32 s28, s2, 0x30003")
        A("s_or_b32 s26, s26, s27")
        A("s_or_b32 s2, s26, s28")
    if timing:
        A("s_load_dwordx2 s[94:95], s[0:1], 128")
    stamp()
    A("v_lshrrev_b32 v%d, 6, v0" % T0)
    A("v_and_b32 v%d, 63, v0" % T1)
    A("v_and_b32 v%d, 31, v0" % T2)
    A("v_readfirstlane_b32 s%d, v%d" % (sW, T0))
    A("v_bfe_u32 v%d, v0, 5, 1" % T3)
    qa, qb = 16, 17
    A("v_mul_u32_u24 v%d, 40, v%d" % (qa, T2))
    A("v_lshlrev_b32 v%d, 30, v%d" % (qb, T3))
    A("v_add3_u32 v%d, v%d, v%d, 32" % (qb, qb, qa))
    A("v_lshl_add_u32 v%d, v%d, 4, v%d" % (qa, T3, qa))
    A("v_lshlrev_b32 v%d, 4, v%d" % (vL16, T1))
    A("v_mov_b32 v%d, v%d" % (aDMA, vL16))
    A("s_lshr_b32 s%d, s%d, 2" % (sKH, sW))
    A("s_and_b32 s%d, s%d, 3" % (sRP, sW))
    A("s_lshl_b32 s%d, s2, 3" % sROW)
    A("s_lshl_b32 s26, s%d, 1" % sRP)
    A("s_add_u32 s%d, s%d, s26" % (sROW, sROW))
    A("s_mul_i32 s27, s%d, 1280" % sROW)
    A("s_mul_i32 s28, s%d, 81920" % sKH)
    A("s_lshl_b32 s26, s%d, 12" % sRP)
    A("s_add_u32 s%d, s28, s26" % sDMA)
    A("s_waitcnt lgkmcnt(0)")
    srd(A, SRD_KV, 4, WS_KV, NKV)
    def dma_round():
        A("s_mov_b32 m0, s%d" % sDMA)
        A("s_nop 0")
        for k in range(4):
            A("buffer_load_dwordx4 v%d, s[%d:%d], s%d offen offset:%d lds" % (aDMA, SRD_KV, SRD_KV + 3, sDMA, k * 1024))
        A("s_add_u32 s%d, s%d, 16384" % (sDMA, sDMA))
    dma_round()
    srd(A, SRD_Q, 4, WS_Q, NQ)
    A("buffer_load_dwordx4 %s, v%d, s[%d:%d], s27 offen" % (v(Q1["A"], 4), qa, SRD_Q, SRD_Q + 3))
    A("buffer_load_dwordx2 %s, v%d, s[%d:%d], s27 offen" % (v(Q2["A"], 2), qb, SRD_Q, SRD_Q + 3))
    A("buffer_load_dwordx4 %s, v%d, s[%d:%d], s27 offen offset:1280" % (v(Q1["B"], 4), qa, SRD_Q, SRD_Q + 3))
    A("buffer_load_dwordx2 %s, v%d, s[%d:%d], s27 offen offset:1280" % (v(Q2["B"], 2), qb, SRD_Q, SRD_Q + 3))
    srd(A, SRD_X, 4, WS_O, NQ)
    srd(A, SRD_WF, 4, WS_WF, NWF)
    srd(A, SRD_AT, 4, WS_AT, NQ)
    srd(A, SRD_G, 4, WS_G, 8192)
    srd(A, SRD_OUT, 92, 0, NQ)
    A("v_add_u32 v%d, s28, v%d" % (aK1, vL16))
    A("v_lshlrev_b32 v%d, 3, v%d" % (aK2, T2))
    A("v_add_u32 v%d, s28, v%d" % (aK2, aK2))
    A("v_mul_u32_u24 v%d, 320, v%d" % (aV, T3))
    A("v_lshl_add_u32 v%d, v%d, 4, v%d" % (aV, T2, aV))
    A("v_add_u32 v%d, s28, v%d" % (aV, aV))
    A("s_mov_b32 s%d, 0x000fffff" % sMASK)
    A("s_mov_b32 s%d, 0x000fffff" % (sMASK + 1))
    A("v_cmp_eq_u32 vcc, 20, v%d" % T2)
    A("v_mov_b32 v19, 0x3f803f80")
    A("v_mov_b32 v%d, 0" % T0)
    A("v_cndmask_b32 v%d, v%d, v19, vcc" % (T0, T0))
    for r in range(16):
        A("v_mov_b32 v%d, v%d" % (V[0] + r, T0))
    for r in range(32):
        A("v_mov_b32 v%d, 0" % (O["A"] + r))
    for r in range(8):
        A("v_mov_b32 v%d, 0" % (P["B"] + r))
    for r in range(12):
        A("v_mov_b32 v%d, 0" % (AV + r))
    A("s_lshr_b32 s%d, s2, 3" % sG8)
    A("s_and_b32 s29, s2, 7")
    A("s_mul_i32 s%d, s29, 80" % sN0)
    A("s_mul_i32 s%d, s29, 102400" % sWF0)
    A("s_mul_i32 s30, s%d, 5120" % sRP)
    A("s_add_u32 s%d, s%d, s30" % (sWF0, sWF0))
    A("s_lshl_b32 s%d, s%d, 6" % (sL0, sG8))
    A("s_lshl_b32 s30, s%d, 5" % sKH)
    A("s_add_u32 s%d, s%d, s30" % (sL0, sL0))
    for m in range(3):
        A("s_add_u32 s%d, s%d, %d" % (sTAU[m], sRP, 4 * m))
        if m == 2:
            A("s_sub_u32 s30, s%d, 4" % sTAU[m])
            A("s_cmp_lt_u32 s%d, 10" % sTAU[m])
            A("s_cselect_b32 s%d, s%d, s30" % (sTAU[m], sTAU[m]))
        A("s_cmp_ge_u32 s%d, 5" % sTAU[m])
        A("s_cselect_b32 s%d, 1, 0" % sLT[m])
        A("s_mul_i32 s30, s%d, 5" % sLT[m])
        A("s_sub_u32 s%d, s%d, s30" % (sNT[m], sTAU[m]))
    A("v_add_u32 v%d, 1024, v%d" % (vL16b, vL16))
    A("v_lshrrev_b32 v%d, 4, v%d" % (vAo, T1))
    A("v_and_b32 v%d, 15, v%d" % (vC4, T1))
    A("v_lshlrev_b32 v%d, 14, v%d" % (vAo, vAo))
    A("v_lshl_add_u32 v%d, v%d, 1, v%d" % (vAo, vC4, vAo))
    A("v_lshlrev_b32 v%d, 2, v%d" % (vC4, vC4))
    A("s_mov_b32 s%d, 0" % sJ)
    A("s_waitcnt vmcnt(0)")
    A("s_barrier")
    stamp()
    A("ds_read_b128 %s, v%d" % (v(K1[0], 4), aK1))
    A("ds_read_b64 %s, v%d offset:1024" % (v(K2[0], 2), aK2))
    A("s_waitcnt lgkmcnt(0)")
    A("v_mfma_f32_32x32x16_bf16 %s, %s, %s, 0" % (v(S["A"], 16), v(K1[0], 4), v(Q1["A"], 4)))
    A("v_mfma_f32_32x32x8_bf16 %s, %s, %s, %s" % (v(S["A"], 16), v(K2[0], 2), v(Q2["A"], 2), v(S["A"], 16)))
    A("s_nop 7")
    A("s_nop 3")

    def H(cur, kb, vb, reads, do_qk=True, side=None):
        oth = "B" if cur == "A" else "A"
        Sc, Pc = S[cur], P[cur]
        So, Po, Oo = S[oth], P[oth], O[oth]
        if reads:
            for r in reads:
                A(r)
        M = []
        if do_qk:
            M.append("v_mfma_f32_32x32x16_bf16 %s, %s, %s, 0" % (v(So, 16), v(K1[kb], 4), v(Q1[oth], 4)))
            M.append("v_mfma_f32_32x32x8_bf16 %s, %s, %s, %s" % (v(So, 16), v(K2[kb], 2), v(Q2[oth], 2), v(So, 16)))
        M.append("v_mfma_f32_32x32x16_bf16 %s, %s, %s, %s" % (v(Oo, 16), v(V[vb], 4), v(Po, 4), v(Oo, 16)))
        M.append("v_mfma_f32_32x32x16_bf16 %s, %s, %s, %s" % (v(Oo, 16), v(V[vb] + 4, 4), v(Po + 4, 4), v(Oo, 16)))
        while len(M) < 4:
            M.insert(0, None)
        E = ["v_exp_f32 v%d, v%d" % (Sc + r, Sc + r) for r in range(16)]
        C = ["v_cvt_pk_bf16_f32 v%d, v%d, v%d" % (Pc + j, Sc + 2 * j, Sc + 2 * j + 1) for j in range(8)]
        for g in range(4):
            if M[g]: A(M[g])
            for r in range(4): A(E[4 * g + r])
            if g >= 1:
                A(C[2 * (g - 1)]); A(C[2 * (g - 1) + 1])
            if g == SIDEG and side:
                for x in side: A(x)
        A(C[6]); A(C[7])

    def reads(kb, koff, vb, voff):
        R = []
        if kb is not None:
            R.append("ds_read_b128 %s, v%d offset:%d" % (v(K1[kb], 4), aK1, koff))
            R.append("ds_read_b64 %s, v%d offset:%d" % (v(K2[kb], 2), aK2, koff + 1024))
        R.append("s_mov_b64 exec, s[%d:%d]" % (sMASK, sMASK + 1))
        R.append("ds_read_b128 %s, v%d offset:%d" % (v(V[vb], 4), aV, voff + 1280))
        R.append("ds_read_b128 %s, v%d offset:%d" % (v(V[vb] + 4, 4), aV, voff + 1280 + 640))
        R.append("s_mov_b64 exec, -1")
        return R

    def prefetch3_list():
        L = []
        for t in range(5):
            for i in range(5):
                d = WF + (i * 5 + t) * 4
                g = ["s_add_u32 s30, s%d, %d" % (sWF0, t * 20480)]
                if i == 0: g.append("buffer_load_dwordx4 %s, v%d, s[%d:%d], s30 offen" % (v(d, 4), vL16, SRD_WF, SRD_WF + 3))
                else: g.append("buffer_load_dwordx4 %s, v%d, s[%d:%d], s30 offen offset:%d" % (v(d, 4), vL16b, SRD_WF, SRD_WF + 3, (i - 1) * 1024))
                L.append(g)
        for m in range(3):
            pre = ["s_lshl_b32 s31, s%d, 4" % sLT[m],
                   "s_add_u32 s31, s31, s%d" % sL0,
                   "s_lshl_b32 s32, s%d, 4" % sNT[m],
                   "s_add_u32 s32, s32, s%d" % sN0,
                   "s_lshl_b32 s32, s32, 12",
                   "s_lshl_b32 s33, s31, 1",
                   "s_add_u32 s32, s32, s33"]
            for r in range(4):
                g = (pre if r == 0 else []) + ["s_add_u32 s30, s32, %d" % (r * 4096),
                     "buffer_load_short_d16_hi v%d, v%d, s[%d:%d], s30 offen" % (AV + 4 * m + r, vAo, SRD_AT, SRD_AT + 3)]
                L.append(g)
            L.append(["s_lshl_b32 s33, s31, 2",
                      "buffer_load_dword v%d, v%d, s[%d:%d], s33 offen" % (GV + m, vC4, SRD_G, SRD_G + 3)])
        return L

    def dma_list():
        L = []
        for r in range(1, 5):
            for k in range(4):
                g = []
                if k == 0: g += ["s_mov_b32 m0, s%d" % sDMA, "s_nop 0"]
                g.append("buffer_load_dwordx4 v%d, s[%d:%d], s%d offen offset:%d lds" % (aDMA, SRD_KV, SRD_KV + 3, sDMA, k * 1024))
                if k == 3: g.append("s_add_u32 s%d, s%d, 16384" % (sDMA, sDMA))
                L.append(g)
        return L

    side = {}
    dl = dma_list(); pl = prefetch3_list()
    for n, g in enumerate(dl): side[n] = g
    for n, g in enumerate(pl): side[PF0 + n] = g
    assert PF0 >= 16 and PF0 + len(pl) <= 64
    def issued_before(h): return sum(1 for k_ in side if k_ < h)
    A("s_cmp_eq_u32 s%d, 1" % sKH)
    A("s_cselect_b64 vcc, -1, 0")
    bumped = False
    base = 0
    for it in range(16):
        if it == 2:
            A("s_waitcnt vmcnt(%d)" % (issued_before(8) - 4))
            A("s_barrier")
        if it == BAR2:
            A("s_waitcnt vmcnt(%d)" % (issued_before(4 * BAR2) - 16))
            A("s_barrier")
        if it == 8:
            A("v_add_u32 v%d, %d, v%d" % (aK1, 40960, aK1))
            A("v_add_u32 v%d, %d, v%d" % (aK2, 40960, aK2))
            A("v_add_u32 v%d, %d, v%d" % (aV, 40960, aV))
            base = 40960
        o = it * 5120 - base
        if itst and it >= 1:
            A("s_memtime s[96:97]")
        if (lowmask >> it) & 1:
            A("s_setprio 0")
        last = it == 15
        H("A", 0, 1, reads(1, o + 2560, 0, o), side=side.get(4 * it))
        if (lowmask >> it) & 1 or it == 0:
            lb = A.newlabel(name + "_p")
            A("s_cbranch_vccz %s" % lb)
            A("s_setprio 1")
            A.label(lb)
        w = ["s_waitcnt lgkmcnt(0)"]
        if itst and it >= 1: w.append("v_writelane_b32 v254, s96, %d" % it)
        H("B", 1, 0, w, side=side.get(4 * it + 1))
        H("A", 1, 0, reads(None if last else 0, o + 5120, 1, o + 2560), side=side.get(4 * it + 2))
        H("B", 0, 1, ["s_waitcnt lgkmcnt(0)"], do_qk=not last, side=side.get(4 * it + 3))
    A("s_nop 1")
    A("v_mfma_f32_32x32x16_bf16 %s, %s, %s, %s" % (v(O["B"], 16), v(V[1], 4), v(P["B"], 4), v(O["B"], 16)))
    A("v_mfma_f32_32x32x16_bf16 %s, %s, %s, %s" % (v(O["B"], 16), v(V[1] + 4, 4), v(P["B"] + 4, 4), v(O["B"], 16)))
    A("s_setprio 0")
    stamp()
    A("s_barrier")
    A("s_mul_i32 s29, s%d, 3072" % sW)
    A("s_xor_b32 s30, s%d, 4" % sW)
    A("s_mul_i32 s30, s30, 3072")
    A("v_add_u32 v%d, s30, v%d" % (aK2, vL16))
    A("v_add_u32 v%d, s29, v%d" % (aK1, vL16))
    A("s_nop 7")
    R = S["A"]; T = S["B"]
    lab1 = name + "_x1"; lab2 = name + "_x2"; lab3 = name + "_x3"; lab4 = name + "_x4"
    A("s_cmp_eq_u32 s%d, 0" % sKH)
    A("s_cbranch_scc0 %s" % lab1)
    for k in range(3):
        A("ds_write_b128 v%d, %s offset:%d" % (aK1, v(O["B"] + 4 * k, 4), k * 1024))
    A("s_branch %s" % lab2)
    A.label(lab1)
    for k in range(3):
        A("ds_write_b128 v%d, %s offset:%d" % (aK1, v(O["A"] + 4 * k, 4), k * 1024))
    A.label(lab2)
    A("s_waitcnt lgkmcnt(0)")
    A("s_barrier")
    for k in range(3):
        A("ds_read_b128 %s, v%d offset:%d" % (v(R + 4 * k, 4), aK2, k * 1024))
    A("s_cmp_eq_u32 s%d, 0" % sKH)
    A("s_cbranch_scc0 %s" % lab3)
    A("s_waitcnt lgkmcnt(0)")
    for r in range(12):
        A("v_add_f32 v%d, v%d, v%d" % (T + r, O["A"] + r, R + r))
    A("s_branch %s" % lab4)
    A.label(lab3)
    A("s_waitcnt lgkmcnt(0)")
    for r in range(12):
        A("v_add_f32 v%d, v%d, v%d" % (T + r, O["B"] + r, R + r))
    for r in range(4): A("v_mov_b32 v%d, v%d" % (Q1["A"] + r, Q1["B"] + r))
    for r in range(2): A("v_mov_b32 v%d, v%d" % (Q2["A"] + r, Q2["B"] + r))
    A.label(lab4)
    A("s_mov_b32 s32, 0")
    norm = name + "_norm"; fb = name + "_fb"; st = name + "_st"
    A.label(norm)
    A("v_mov_b32 v%d, v%d" % (R + 0, T + 8))
    A("v_mov_b32 v%d, v%d" % (R + 1, T + 8))
    A("s_nop 1")
    A("v_permlane32_swap_b32 v%d, v%d" % (R + 0, R + 1))
    A("s_cmp_eq_u32 s32, 1")
    A("s_cbranch_scc1 %s" % st)
    A("v_max3_f32 v%d, |v%d|, |v%d|, |v%d|" % (R + 2, T + 0, T + 1, T + 2))
    A("v_max3_f32 v%d, |v%d|, |v%d|, |v%d|" % (R + 3, T + 3, T + 4, T + 5))
    A("v_max3_f32 v%d, |v%d|, |v%d|, |v%d|" % (R + 4, T + 6, T + 7, T + 8))
    A("v_max3_f32 v%d, |v%d|, |v%d|, |v%d|" % (R + 5, T + 9, T + 10, T + 11))
    A("v_max3_f32 v%d, v%d, v%d, v%d" % (R + 2, R + 2, R + 3, R + 4))
    A("v_max_f32 v%d, v%d, v%d" % (R + 2, R + 2, R + 5))
    A("v_mov_b32 v%d, 0x%x" % (R + 3, (127 - 30) << 23))
    A("v_mov_b32 v%d, 0x%x" % (R + 4, (127 + 30) << 23))
    A("v_mov_b32 v%d, 0x%x" % (R + 5, (127 + 120) << 23))
    A("v_cmp_ge_f32 s[34:35], v%d, v%d" % (R + 1, R + 3))
    A("v_cmp_le_f32 s[36:37], v%d, v%d" % (R + 1, R + 4))
    A("v_cmp_le_f32 s[38:39], v%d, v%d" % (R + 2, R + 5))
    A("s_nop 1")
    A("s_and_b64 s[34:35], s[34:35], s[36:37]")
    A("s_and_b64 s[34:35], s[34:35], s[38:39]")
    if force_fallback:
        A("s_mov_b64 s[34:35], 0")
    A("s_cmp_eq_u64 s[34:35], -1")
    A("s_cbranch_scc0 %s" % fb)
    A.label(st)
    A("v_rcp_f32 v%d, v%d" % (R + 1, R + 1))
    STG = 32768
    A("s_lshl_b32 s31, s%d, 1" % sRP)
    A("s_add_u32 s31, s31, s%d" % sKH)
    A("s_mul_i32 s31, s31, 1296")
    A("s_add_u32 s31, s31, %d" % STG)
    A("v_mul_u32_u24 v%d, 40, v%d" % (R + 6, T2))
    A("v_add_u32 v%d, s31, v%d" % (R + 6, R + 6))
    A("v_lshl_add_u32 v%d, v%d, 3, v%d" % (R + 7, T3, R + 6))
    for r in range(12):
        A("v_mul_f32 v%d, v%d, v%d" % (T + r, T + r, R + 1))
    for j in range(6):
        A("v_cvt_pk_bf16_f32 v%d, v%d, v%d" % (R + 8 + j, T + 2 * j, T + 2 * j + 1))
    A("ds_write_b64 v%d, %s" % (R + 7, v(R + 8, 2)))
    A("ds_write_b64 v%d, %s offset:16" % (R + 7, v(R + 10, 2)))
    A("s_mov_b32 exec_hi, 0")
    A("ds_write_b64 v%d, %s offset:32" % (R + 6, v(R + 12, 2)))
    A("s_mov_b64 exec, -1")
    A("v_and_b32 v%d, 7, v%d" % (R + 0, T1))
    A("v_lshrrev_b32 v%d, 3, v%d" % (R + 1, T1))
    A("v_mul_u32_u24 v%d, 1296, v%d" % (R + 2, R + 0))
    A("v_lshl_add_u32 v%d, v%d, 4, v%d" % (R + 2, R + 1, R + 2))
    A("s_lshl_b32 s31, s%d, 7" % sW)
    A("s_add_u32 s31, s31, %d" % STG)
    A("v_add_u32 v%d, s31, v%d" % (R + 2, R + 2))
    A("v_lshlrev_b32 v%d, 8, v%d" % (R + 3, R + 1))
    A("v_lshl_add_u32 v%d, v%d, 4, v%d" % (R + 3, R + 0, R + 3))
    A("s_lshr_b32 s31, s2, 1")
    A("s_mul_i32 s31, s31, 20480")
    A("s_and_b32 s33, s2, 1")
    A("s_lshl_b32 s33, s33, 7")
    A("s_add_u32 s31, s31, s33")
    A("s_lshl_b32 s33, s%d, 11" % sW)
    A("s_add_u32 s31, s31, s33")
    A("s_waitcnt lgkmcnt(0)")
    A("s_barrier")
    A("ds_read_b128 %s, v%d" % (v(R + 8, 4), R + 2))
    A("s_cmp_lt_u32 s%d, 2" % sW)
    A("s_cbranch_scc0 %s_o1" % name)
    A("ds_read_b128 %s, v%d offset:1024" % (v(R + 12, 4), R + 2))
    A("s_add_u32 s33, s31, 16384")
    A("s_waitcnt lgkmcnt(0)")
    A("buffer_store_dwordx4 %s, v%d, s[%d:%d], s33 offen sc1" % (v(R + 12, 4), R + 3, SRD_X, SRD_X + 3))
    A.label(name + "_o1")
    A("s_waitcnt lgkmcnt(0)")
    A("buffer_store_dwordx4 %s, v%d, s[%d:%d], s31 offen sc1" % (v(R + 8, 4), R + 3, SRD_X, SRD_X + 3))
    stamp()
    A("s_lshl_b32 s33, s%d, 7" % sG8)
    A("s_add_u32 s33, s33, 0x%x" % WS_CNT)
    A("v_mov_b32 v%d, s33" % (R + 0))
    A("v_mov_b32 v%d, 1" % (R + 1))
    if nosync:
        A("s_waitcnt vmcnt(2)")
        A("s_branch %s_na" % name)
    A("s_waitcnt vmcnt(0)")
    A("s_barrier")
    A("s_cmp_eq_u32 s%d, 0" % sW)
    A("s_cbranch_scc0 %s_na" % name)
    A("s_mov_b64 exec, 1")
    A("global_atomic_add v%d, v%d, s[4:5] sc1" % (R + 0, R + 1))
    A("s_mov_b64 exec, -1")
    A.label(name + "_na")
    stamp()
    for m in range(3):
        A("v_sub_f32 v%d, 1.0, v%d" % (OMG + m, GV + m))
        for r in range(4):
            A("v_mul_f32 v%d, v%d, v%d" % (AV + 4 * m + r, AV + 4 * m + r, GV + m))
    for m in range(3):
        A("v_cvt_pk_bf16_f32 v%d, v%d, v%d" % (OMG + m, OMG + m, OMG + m))
        for j in range(2):
            A("v_cvt_pk_bf16_f32 v%d, v%d, v%d" % (T + 2 * m + j, AV + 4 * m + 2 * j, AV + 4 * m + 2 * j + 1))
    for m in range(3):
        A("v_and_b32 v%d, 0xffff0000, v%d" % (OMG + m, OMG + m))
        for j in range(2):
            A("v_lshlrev_b32 v%d, 16, v%d" % (AV + 4 * m + 2 * j, T + 2 * m + j))
            A("v_and_b32 v%d, 0xffff0000, v%d" % (AV + 4 * m + 2 * j + 1, T + 2 * m + j))
    sX0, sX1 = 34, 35
    A("s_lshr_b32 s%d, s%d, 4" % (sX0, sL0))
    A("s_mul_i32 s%d, s%d, 20480" % (sX0, sX0))
    A("s_mul_i32 s30, s%d, 5120" % sRP)
    A("s_add_u32 s%d, s%d, s30" % (sX0, sX0))
    A("s_add_u32 s%d, s%d, 20480" % (sX1, sX0))
    vPW, vPR = 2, 1
    A("s_mul_i32 s30, s%d, 40960" % sKH)
    A("s_lshl_b32 s31, s%d, 10" % sRP)
    A("s_add_u32 s31, s31, s30")
    A("v_add_u32 v%d, s31, v%d" % (vPW, vL16))
    A("v_add_u32 v%d, s30, v%d" % (vPR, vL16))
    if nosync: A("s_branch %s_pe" % name)
    A("s_cmp_eq_u32 s%d, 0" % sW)
    A("s_cbranch_scc0 %s_pd" % name)
    A("s_mov_b32 s30, 0")
    A.label(name + "_pl")
    A("global_load_dword v%d, v%d, s[4:5] sc1" % (R + 1, R + 0))
    A("s_waitcnt vmcnt(0)")
    A("v_readfirstlane_b32 s31, v%d" % (R + 1))
    A("s_add_u32 s30, s30, 1")
    A("s_cmp_ge_u32 s31, 8")
    A("s_cbranch_scc1 %s_pd" % name)
    A("s_cmp_lt_u32 s30, %d" % spin)
    A("s_cbranch_scc0 %s_pd" % name)
    A("s_sleep 1")
    A("s_branch %s_pl" % name)
    A.label(name + "_pd")
    A("s_barrier")
    A.label(name + "_pe")
    stamp()
    XF, ACC = 16, 56
    for i in range(5):
        for lt2 in range(2):
            d = XF + (lt2 * 5 + i) * 4
            so = sX1 if lt2 else sX0
            if i == 0: A("buffer_load_dwordx4 %s, v%d, s[%d:%d], s%d offen sc1" % (v(d, 4), vL16, SRD_X, SRD_X + 3, so))
            else: A("buffer_load_dwordx4 %s, v%d, s[%d:%d], s%d offen offset:%d sc1" % (v(d, 4), vL16b, SRD_X, SRD_X + 3, so, (i - 1) * 1024))
    for i in range(5):
        for lt2 in range(2):
            A("s_waitcnt vmcnt(%d)" % (9 - (2 * i + lt2)))
            for t in range(5):
                a = ACC + (lt2 * 5 + t) * 4
                A("v_mfma_f32_16x16x32_bf16 %s, %s, %s, %s" % (v(a, 4), v(WF + (i * 5 + t) * 4, 4), v(XF + (lt2 * 5 + i) * 4, 4), "0" if i == 0 else v(a, 4)))
    stamp()
    A("s_nop 3")
    for tau in range(10):
        A("ds_write_b128 v%d, %s offset:%d" % (vPW, v(ACC + 4 * tau, 4), tau * 4096))
    for m in range(3):
        A("s_lshl_b32 s30, s%d, 12" % sTAU[m])
        A("v_add_u32 v%d, s30, v%d" % (4 + m, vPR))
    A("v_and_b32 v%d, 15, v%d" % (8, T1))
    A("v_lshrrev_b32 v%d, 4, v%d" % (9, T1))
    A("v_mul_u32_u24 v%d, 1280, v%d" % (8, 8))
    A("v_lshl_add_u32 v%d, v%d, 3, v%d" % (8, 9, 8))
    for m in range(3):
        A("s_lshl_b32 s31, s%d, 4" % sLT[m])
        A("s_add_u32 s31, s31, s%d" % sL0)
        A("s_mul_i32 s31, s31, 1280")
        A("s_lshl_b32 s33, s%d, 4" % sNT[m])
        A("s_add_u32 s33, s33, s%d" % sN0)
        A("s_lshl_b32 s33, s33, 1")
        A("s_add_u32 s%d, s31, s33" % (36 + m))
    A("s_waitcnt lgkmcnt(0)")
    A("s_barrier")
    PR = 16
    for m in range(3):
        for src in range(4):
            A("ds_read_b128 %s, v%d offset:%d" % (v(PR + 16 * m + 4 * src, 4), 4 + m, src * 1024))
    for m in range(3):
        b = PR + 16 * m
        A("s_waitcnt lgkmcnt(%d)" % (8 - 4 * m))
        for r in range(4): A("v_add_f32 v%d, v%d, v%d" % (b + r, b + r, b + 4 + r))
        for r in range(4): A("v_add_f32 v%d, v%d, v%d" % (b + 8 + r, b + 8 + r, b + 12 + r))
        for r in range(4): A("v_add_f32 v%d, v%d, v%d" % (b + r, b + r, b + 8 + r))
        for j in range(2): A("v_cvt_pk_bf16_f32 v%d, v%d, v%d" % (b + 4 + j, b + 2 * j, b + 2 * j + 1))
        for j in range(2):
            A("v_lshlrev_b32 v%d, 16, v%d" % (b + 2 * j, b + 4 + j))
            A("v_and_b32 v%d, 0xffff0000, v%d" % (b + 2 * j + 1, b + 4 + j))
        for r in range(4): A("v_mul_f32 v%d, v%d, v%d" % (b + r, b + r, OMG + m))
        for j in range(2): A("v_cvt_pk_bf16_f32 v%d, v%d, v%d" % (b + 4 + j, b + 2 * j, b + 2 * j + 1))
        for j in range(2):
            A("v_lshlrev_b32 v%d, 16, v%d" % (b + 2 * j, b + 4 + j))
            A("v_and_b32 v%d, 0xffff0000, v%d" % (b + 2 * j + 1, b + 4 + j))
        for r in range(4): A("v_add_f32 v%d, v%d, v%d" % (b + r, b + r, AV + 4 * m + r))
        for j in range(2): A("v_cvt_pk_bf16_f32 v%d, v%d, v%d" % (b + 4 + j, b + 2 * j, b + 2 * j + 1))
        if m == 2:
            A("s_cmp_ge_u32 s%d, 2" % sRP)
            A("s_cbranch_scc1 %s_ns" % name)
        A("buffer_store_dwordx2 %s, v8, s[%d:%d], s%d offen" % (v(b + 4, 2), SRD_OUT, SRD_OUT + 3, 36 + m))
    A.label(name + "_ns")
    stamp()
    if timing and amp is not None:
        a_, b_, w_ = amp
        A("s_waitcnt lgkmcnt(0)")
        A("s_cmp_eq_u32 s99, %d" % twg)
        A("s_cbranch_scc0 %s" % end)
        A("s_cmp_eq_u32 s%d, %d" % (sW, w_))
        A("s_cbranch_scc0 %s" % end)
        A("s_memrealtime s[90:91]")
        if a_ < 0:
            A("v_mov_b32 v2, 0x2C8000")
            A("global_load_dword v3, v2, s[4:5]")
            A("s_waitcnt vmcnt(0)")
            A("v_readfirstlane_b32 s94, v3")
            A("s_memrealtime s[90:91]")
        else:
            A("s_sub_u32 s94, s%d, s%d" % (40 + 2 * b_, 40 + 2 * a_))
        A("s_lshr_b32 s94, s94, 3")
        A("s_min_u32 s94, s94, 10000")
        A("s_mov_b32 s95, 0")
        A("s_waitcnt lgkmcnt(0)")
        lp = name + "_spin"
        A.label(lp)
        A("s_memrealtime s[96:97]")
        A("s_waitcnt lgkmcnt(0)")
        A("s_add_u32 s95, s95, 1")
        A("s_cmp_ge_u32 s95, 100000")
        A("s_cbranch_scc1 %s" % end)
        A("s_sub_u32 s96, s96, s90")
        A("s_cmp_lt_u32 s96, s94")
        A("s_cbranch_scc1 %s" % lp)
    elif timing:
        A("s_waitcnt lgkmcnt(0)")
        A("s_cmp_eq_u32 s99, %d" % twg)
        A("s_cbranch_scc0 %s" % end)
        A("s_and_b32 s30, s%d, 3" % sW)
        A("s_cmp_eq_u32 s30, 0")
        A("s_cbranch_scc0 %s" % end)
        A("s_lshl_b32 s30, s%d, 6" % sKH)
        A("v_mov_b32 v2, s30")
        if itst:
            A("v_subrev_u32 v254, s40, v254")
            A("s_lshl_b32 s31, s%d, 6" % sKH)
            A("v_lshl_add_u32 v3, v%d, 2, s31" % T1)
            A("s_mov_b64 exec, 0xffff")
            A("global_store_dword v3, v254, s[94:95] offset:128")
            A("s_mov_b64 exec, -1")
        for i in range(1, nst[0]):
            A("s_sub_u32 s31, s%d, s40" % (40 + 2 * i))
            A("v_mov_b32 v3, s31")
            A("global_store_dword v2, v3, s[94:95] offset:%d" % (4 * (i - 1)))
    A("s_endpgm")
    A.label(fb)
    FK1, FK2, FV = K1[0], K2[0], V[0]
    FS = O["A"]; FM = O["B"]
    FP = P["A"]
    A("v_lshlrev_b32 v%d, 4, v%d" % (aK1, T1))
    A("v_lshlrev_b32 v%d, 3, v%d" % (aK2, T2))
    A("v_mul_u32_u24 v%d, 320, v%d" % (aV, T3))
    A("v_lshl_add_u32 v%d, v%d, 4, v%d" % (aV, T2, aV))
    A("v_cmp_gt_u32 vcc, 20, v%d" % T2)
    A("v_mov_b32 v%d, 0x40000000" % (R + 0))
    A("s_nop 1")
    A("v_cndmask_b32 v%d, v%d, v%d, vcc" % (aV, R + 0, aV))
    A("v_mov_b32 v%d, 0xff800000" % (R + 0))
    A("s_mov_b32 s33, 0")
    f1 = name + "_f1"
    A.label(f1)
    A("buffer_load_dwordx4 %s, v%d, s[%d:%d], s33 offen" % (v(FK1, 4), aK1, SRD_KV, SRD_KV + 3))
    A("buffer_load_dwordx2 %s, v%d, s[%d:%d], s33 offen offset:1024" % (v(FK2, 2), aK2, SRD_KV, SRD_KV + 3))
    A("s_waitcnt vmcnt(0)")
    A("v_mfma_f32_32x32x16_bf16 %s, %s, %s, 0" % (v(FS, 16), v(FK1, 4), v(Q1["A"], 4)))
    A("v_mfma_f32_32x32x8_bf16 %s, %s, %s, %s" % (v(FS, 16), v(FK2, 2), v(Q2["A"], 2), v(FS, 16)))
    A("s_nop 7")
    A("s_nop 7")
    for r in range(0, 16, 2):
        A("v_max3_f32 v%d, v%d, v%d, v%d" % (R + 0, R + 0, FS + r, FS + r + 1))
    A("s_add_u32 s33, s33, 2560")
    A("s_cmp_lt_u32 s33, %d" % NKV)
    A("s_cbranch_scc1 %s" % f1)
    A("v_mov_b32 v%d, v%d" % (R + 1, R + 0))
    A("s_nop 1")
    A("v_permlane32_swap_b32 v%d, v%d" % (R + 0, R + 1))
    A("s_nop 1")
    A("v_max_f32 v%d, v%d, v%d" % (R + 0, R + 0, R + 1))
    for r in range(16):
        A("v_mul_f32 v%d, -1.0, v%d" % (FM + r, R + 0))
    for r in range(16):
        A("v_mov_b32 v%d, 0" % (T + r))
    A("s_mov_b32 s33, 0")
    f2 = name + "_f2"
    A.label(f2)
    A("buffer_load_dwordx4 %s, v%d, s[%d:%d], s33 offen" % (v(FK1, 4), aK1, SRD_KV, SRD_KV + 3))
    A("buffer_load_dwordx2 %s, v%d, s[%d:%d], s33 offen offset:1024" % (v(FK2, 2), aK2, SRD_KV, SRD_KV + 3))
    A("buffer_load_dwordx4 %s, v%d, s[%d:%d], s33 offen offset:1280" % (v(FV, 4), aV, SRD_KV, SRD_KV + 3))
    A("buffer_load_dwordx4 %s, v%d, s[%d:%d], s33 offen offset:1920" % (v(FV + 4, 4), aV, SRD_KV, SRD_KV + 3))
    A("s_waitcnt vmcnt(0)")
    A("v_mfma_f32_32x32x16_bf16 %s, %s, %s, %s" % (v(FS, 16), v(FK1, 4), v(Q1["A"], 4), v(FM, 16)))
    A("v_mfma_f32_32x32x8_bf16 %s, %s, %s, %s" % (v(FS, 16), v(FK2, 2), v(Q2["A"], 2), v(FS, 16)))
    for r in range(8):
        A("v_or_b32 v%d, v%d, v%d" % (FV + r, FV + r, T0))
    A("s_nop 7")
    A("s_nop 7")
    for r in range(16):
        A("v_exp_f32 v%d, v%d" % (FS + r, FS + r))
    A("s_nop 0")
    for j in range(8):
        A("v_cvt_pk_bf16_f32 v%d, v%d, v%d" % (FP + j, FS + 2 * j, FS + 2 * j + 1))
    A("s_nop 1")
    A("v_mfma_f32_32x32x16_bf16 %s, %s, %s, %s" % (v(T, 16), v(FV, 4), v(FP, 4), v(T, 16)))
    A("v_mfma_f32_32x32x16_bf16 %s, %s, %s, %s" % (v(T, 16), v(FV + 4, 4), v(FP + 4, 4), v(T, 16)))
    A("s_add_u32 s33, s33, 2560")
    A("s_cmp_lt_u32 s33, %d" % NKV)
    A("s_cbranch_scc1 %s" % f2)
    A("s_nop 7")
    A("s_nop 7")
    A("s_mov_b32 s32, 1")
    A("s_branch %s" % norm)
    A.label(end)
    A("s_endpgm")
    return dict(name=name, grid=256, block=512, lds=163840, body=A.text(), vgpr=256)

if __name__ == "__main__":
    import sys
    k = gen_k23(force_fallback=("fb" in sys.argv), timing=("t" in sys.argv))
    open(sys.argv[1], "w").write(compose([k]))
```

```python
import sys
from asmlib import *
import k1, k23b as k23
NAME = "gated_mix__ssm_conv_s4__grouped_kv_mqa__prompt"
def build(fb=False, timing=False, twg=0, k1t=False, **kw):
    a = k1.gen_k1("k1_kernel", timing=k1t)
    b = k23.gen_k23(NAME + "_kernel", force_fallback=fb, timing=timing, twg=twg, **kw)
    hdr = open("cdna_kernels/%s.s.ref" % NAME).read().split("; Override launch")[0]
    return hdr + compose([a, b])
if __name__ == "__main__":
    twg = 0
    for a in sys.argv[2:]:
        if a.startswith("w"): twg = int(a[1:])
    kw = {}
    for a in sys.argv[2:]:
        if "=" in a:
            k_, v_ = a.split("="); kw[k_] = eval(v_)
    if "k1t" in kw: k1t = kw.pop("k1t")
    else: k1t = False
    for k_ in list(kw):
        if k_.startswith("K1_"): setattr(k1, k_[3:], kw.pop(k_))
    if "k1amp" in kw:
        k1.AMP = kw.pop("k1amp"); kw["amp"] = (-1, 0, 0)
    open(sys.argv[1], "w").write(build(fb="fb" in sys.argv, timing="t" in sys.argv, twg=twg, k1t=k1t, **kw))
```

```python
from asmlib import *
import struct, math

def f32bits(x):
    return struct.unpack("<I", struct.pack("<f", x))[0]

GMOD = ""
AMP = None
V3 = True
LPRIO = 3
B0 = True
QINIT = 5
QSTEP = 1
GDELAY = 0
WDELAY = 0
LOG2E = 1.4426950408889634
CSCALE = (20 ** -0.5) * LOG2E

sW = 6
vLane = 1

def stamp(A, timing, n):
    if timing is not False: A("s_memtime s[%d:%d]" % (60 + 2 * n, 61 + 2 * n))

def dump_stamps(A, timing, nst, end, wg, vt=2):
    if timing is False or (timing is not True and (timing >= 160) != (wg >= 160)): return
    if timing is not True: wg = timing
    if AMP is not None:
        a_, b_, w_ = AMP
        if b_ >= nst: return
        A("s_waitcnt lgkmcnt(0)")
        A("s_cmp_eq_u32 s2, %d" % wg)
        A("s_cbranch_scc0 %s" % end)
        A("s_cmp_eq_u32 s%d, %d" % (sW, w_))
        A("s_cbranch_scc0 %s" % end)
        A("s_load_dwordx2 s[40:41], s[0:1], 136")
        A("v_mov_b32 v%d, 0x2C8000" % vt)
        A("s_sub_u32 s51, s%d, s%d" % (60 + 2 * b_, 60 + 2 * a_))
        A("v_mov_b32 v%d, s51" % (vt + 1))
        A("s_waitcnt lgkmcnt(0)")
        A("global_store_dword v%d, v%d, s[40:41]" % (vt, vt + 1))
        return
    A("s_waitcnt lgkmcnt(0)")
    A("s_cmp_eq_u32 s2, %d" % wg)
    A("s_cbranch_scc0 %s" % end)
    A("s_load_dwordx2 s[40:41], s[0:1], 128")
    A("s_and_b32 s50, s%d, 3" % sW)
    A("s_cmp_eq_u32 s50, 0")
    A("s_cbranch_scc0 %s" % end)
    A("s_lshl_b32 s50, s%d, 4" % sW)
    A("v_mov_b32 v%d, s50" % vt)
    A("s_waitcnt lgkmcnt(0)")
    for i in range(1, nst):
        A("s_sub_u32 s51, s%d, s60" % (60 + 2 * i))
        A("v_mov_b32 v%d, s51" % (vt + 1))
        A("global_store_dword v%d, v%d, s[40:41] offset:%d" % (vt, vt + 1, 4 * (i - 1)))

def x_dma_setup(A, vX, t0, t1):
    for e in range(2):
        A("v_lshrrev_b32 v%d, 3, v%d" % (t0, vLane))
        if e: A("v_add_u32 v%d, 8, v%d" % (t0, t0))
        A("v_mul_u32_u24 v%d, 1280, v%d" % (vX + e, t0))
        A("v_lshrrev_b32 v%d, 4, v%d" % (t0, vLane))
        if e: A("v_add_u32 v%d, 4, v%d" % (t0, t0))
        A("v_and_b32 v%d, 7, v%d" % (t1, vLane))
        A("v_xor_b32 v%d, v%d, v%d" % (t0, t0, t1))
        A("v_lshl_add_u32 v%d, v%d, 4, v%d" % (vX + e, t0, vX + e))

def x_read_setup(A, vXr, sRowOff128, xbase, t0, t1, t2):
    A("v_and_b32 v%d, 31, v%d" % (t0, vLane))
    A("v_bfe_u32 v%d, v%d, 1, 3" % (t1, vLane))
    A("v_lshrrev_b32 v%d, 5, v%d" % (t2, vLane))
    A("v_xor_b32 v%d, v%d, v%d" % (t1, t1, t2))
    A("v_lshlrev_b32 v%d, 7, v%d" % (t0, t0))
    A("v_add_u32 v%d, s%d, v%d" % (t0, sRowOff128, t0))
    if xbase: A("v_add_u32 v%d, %d, v%d" % (t0, xbase, t0))
    for s_ in range(4):
        A("v_xor_b32 v%d, %d, v%d" % (t2, 2 * s_, t1))
        A("v_lshl_add_u32 v%d, v%d, 4, v%d" % (vXr + s_, t2, t0))

def role_q(A, end, timing):
    D = 5; BUF = 32768; WOFF = 16384
    SX, SWT, SO = 8, 12, 16
    sRow0, sN0b, sJ = 20, 21, 22
    t0, t1, t2 = 2, 3, 4
    A("s_cmp_ge_u32 s%d, 12" % sW)
    A("s_cbranch_scc1 %s" % end)
    A("s_load_dwordx2 s[32:33], s[0:1], 0")
    A("s_load_dwordx2 s[34:35], s[0:1], 80")
    A("s_load_dwordx2 s[4:5], s[0:1], 136")
    A("s_sub_u32 s23, s2, 160")
    A("s_and_b32 s%d, s23, 15" % sRow0)
    A("s_lshl_b32 s%d, s%d, 7" % (sRow0, sRow0))
    A("s_lshr_b32 s%d, s23, 4" % sN0b)
    A("s_lshl_b32 s%d, s%d, 8" % (sN0b, sN0b))
    A("s_cmp_lt_u32 s%d, 4" % sW)
    A("s_cbranch_scc1 q_comp")
    vX, vWd = 8, 10
    A("s_sub_u32 s%d, s%d, 4" % (sJ, sW))
    x_dma_setup(A, vX, t0, t1)
    A("v_lshrrev_b32 v%d, 4, v%d" % (t0, vLane))
    A("v_mul_u32_u24 v%d, 1280, v%d" % (vWd, t0))
    A("v_and_b32 v%d, 1, v%d" % (t1, t0))
    A("v_lshlrev_b32 v%d, 1, v%d" % (t1, t1))
    A("v_lshrrev_b32 v%d, 1, v%d" % (t0, t0))
    A("v_lshl_add_u32 v%d, v%d, 3, v%d" % (t1, t0, t1))
    A("v_and_b32 v%d, 15, v%d" % (t0, vLane))
    A("v_xor_b32 v%d, v%d, v%d" % (t0, t0, t1))
    A("v_lshl_add_u32 v%d, v%d, 4, v%d" % (vWd, t0, vWd))
    sXg, sWg, sM0 = 24, 25, 26
    A("s_lshl_b32 s27, s%d, 4" % sJ)
    A("s_add_u32 s27, s27, s%d" % sRow0)
    A("s_mul_i32 s%d, s27, 1280" % sXg)
    A("s_mul_i32 s%d, s%d, %d" % (sWg, sJ, 8 * 1280))
    A("s_add_u32 s%d, s%d, s%d" % (sWg, sWg, sN0b))
    A("s_lshl_b32 s%d, s%d, 11" % (sM0, sJ))
    A("s_waitcnt lgkmcnt(0)")
    srd(A, SX, 32, 0, NQ)
    srd(A, SWT, 34, 0, 640 * 1280)
    srd(A, SO, 4, WS_Q, NQ)
    issued = []
    def dma(c):
        b = (c % D) * BUF
        for e in range(2):
            A("s_add_u32 m0, s%d, %d" % (sM0, b + e * 1024))
            A("s_add_u32 s28, s%d, %d" % (sXg, c * 128))
            A("buffer_load_dwordx4 v%d, s[%d:%d], s28 offen lds" % (vX + e, SX, SX + 3))
            issued.append(c)
        for e in range(2):
            A("s_add_u32 m0, s%d, %d" % (sM0, b + WOFF + e * 1024))
            A("s_add_u32 s28, s%d, %d" % (sWg, (64 * c + 4 * e) * 1280))
            A("buffer_load_dwordx4 v%d, s[%d:%d], s28 offen lds" % (vWd, SWT, SWT + 3))
            issued.append(c)
    for c in range(QINIT):
        dma(c)
    vSl, vSg = 12, 13
    A("v_lshrrev_b32 v%d, 4, v%d" % (t0, vLane))
    A("v_and_b32 v%d, 15, v%d" % (t1, vLane))
    A("v_mul_u32_u24 v%d, 272, v%d" % (vSl, t0))
    A("v_lshl_add_u32 v%d, v%d, 4, v%d" % (vSl, t1, vSl))
    A("s_mul_i32 s27, s%d, %d" % (sJ, 16 * 272))
    A("v_add_u32 v%d, s27, v%d" % (vSl, vSl))
    A("v_mul_u32_u24 v%d, 1280, v%d" % (vSg, t0))
    A("v_lshl_add_u32 v%d, v%d, 4, v%d" % (vSg, t1, vSg))
    for c in range(10):
        last = max(i for i, x in enumerate(issued) if x == c)
        A("s_waitcnt vmcnt(%d)" % (len(issued) - 1 - last))
        A("s_barrier")
        nxt = max(issued) + 1
        k_ = 0
        while nxt <= 9 and nxt - D + 2 <= c and k_ < QSTEP:
            dma(nxt); nxt += 1; k_ += 1
    A("s_barrier")
    for e in range(4):
        A("ds_read_b128 %s, v%d offset:%d" % (v(16 + 4 * e, 4), vSl, e * 4 * 272))
    A("s_add_u32 s28, s%d, s%d" % (sXg, sN0b))
    for e in range(4):
        A("s_waitcnt lgkmcnt(%d)" % (3 - e))
        A("buffer_store_dwordx4 %s, v%d, s[%d:%d], s28 offen offset:%d" % (v(16 + 4 * e, 4), vSg, SO, SO + 3, 0) if e == 0 else
          "s_add_u32 s29, s28, %d\nbuffer_store_dwordx4 %s, v%d, s[%d:%d], s29 offen" % (e * 4 * 1280, v(16 + 4 * e, 4), vSg, SO, SO + 3))
        if e: A("s_nop 0")
    stamp(A, timing, 3)
    dump_stamps(A, timing, 4, end, 160)
    A("s_branch %s" % end)
    A.label("q_comp")
    vXr, vWr = 8, 12
    XF = [[16, 20], [24, 28]]; WF = [[32, 36], [40, 44]]
    ACC = 64
    A("s_and_b32 s24, s%d, 1" % sW)
    A("s_lshl_b32 s24, s24, 13")
    x_read_setup(A, vXr, 24, 0, t0, t1, t2)
    A("v_lshrrev_b32 v%d, 5, v%d" % (t0, vLane))
    A("v_bfe_u32 v%d, v%d, 2, 2" % (t1, vLane))
    A("v_lshl_add_u32 v%d, v%d, 3, v%d" % (t0, t0, t1))
    A("v_lshlrev_b32 v%d, 8, v%d" % (t0, t0))
    A("v_bfe_u32 v%d, v%d, 1, 1" % (t2, vLane))
    A("v_lshl_add_u32 v%d, v%d, 3, v%d" % (t0, t2, t0))
    A("v_add_u32 v%d, %d, v%d" % (t0, WOFF, t0))
    A("v_and_b32 v%d, 1, v%d" % (t2, vLane))
    A("v_lshlrev_b32 v%d, 2, v%d" % (t2, t2))
    A("v_bfe_u32 v5, v%d, 4, 1" % vLane)
    A("v_or_b32 v%d, v%d, v5" % (t2, t2))
    A("s_lshr_b32 s25, s%d, 1" % sW)
    A("s_lshl_b32 s25, s25, 3")
    A("v_or_b32 v%d, s25, v%d" % (t2, t2))
    A("v_and_b32 v5, 1, v%d" % t1)
    A("v_lshlrev_b32 v5, 1, v5")
    A("v_xor_b32 v%d, v%d, v5" % (t2, t2))
    A("v_lshrrev_b32 v5, 1, v%d" % t1)
    A("v_lshlrev_b32 v5, 3, v5")
    A("v_xor_b32 v%d, v%d, v5" % (t2, t2))
    A("v_lshl_add_u32 v%d, v%d, 4, v%d" % (vWr, t2, t0))
    A("v_xor_b32 v%d, 2, v%d" % (t2, t2))
    A("v_lshl_add_u32 v%d, v%d, 4, v%d" % (vWr + 1, t2, t0))
    vSt = 14
    A("v_and_b32 v%d, 31, v%d" % (t0, vLane))
    A("v_mul_u32_u24 v%d, 272, v%d" % (vSt, t0))
    A("v_lshrrev_b32 v%d, 5, v%d" % (t0, vLane))
    A("v_lshl_add_u32 v%d, v%d, 6, v%d" % (vSt, t0, vSt))
    A("s_and_b32 s24, s%d, 1" % sW)
    A("s_mul_i32 s24, s24, %d" % (64 * 272))
    A("s_lshl_b32 s25, s25, 4")
    A("s_add_u32 s24, s24, s25")
    A("v_add_u32 v%d, s24, v%d" % (vSt, vSt))
    bias = [0]
    def set_bias(nb):
        d = nb - bias[0]
        if d:
            for r in list(range(vXr, vXr + 4)) + [vWr, vWr + 1]:
                A("v_add_u32 v%d, %d, v%d" % (r, d & 0xffffffff, r))
        bias[0] = nb
    def reads(S):
        c, s_ = divmod(S, 4); fb = S & 1
        b = (c % D) * BUF
        set_bias(b // 65536 * 65536)
        o = b - bias[0]
        for lg in range(2):
            A("ds_read_b128 %s, v%d offset:%d" % (v(XF[fb][lg], 4), vXr + s_, o + lg * 4096))
        for t in range(2):
            for h in range(2):
                A("ds_read_b64_tr_b16 %s, v%d offset:%d" % (v(WF[fb][t] + 2 * h, 2), vWr + t, o + s_ * 4096 + h * 1024))
    def mfma(S, i):
        fb = S & 1; lg, t = divmod(i, 2)
        a = ACC + 16 * (2 * lg + t)
        A("v_mfma_f32_32x32x16_bf16 %s, %s, %s, %s" % (v(a, 16), v(WF[fb][t], 4), v(XF[fb][lg], 4), "0" if S == 0 else v(a, 16)))
    A("s_barrier")
    stamp(A, timing, 1)
    qst = [4]
    reads(0)
    for S in range(40):
        c, s_ = divmod(S, 4)
        if S + 1 < 40:
            reads(S + 1)
            A("s_waitcnt lgkmcnt(6)")
        else:
            A("s_waitcnt lgkmcnt(0)")
        for i in range(4):
            mfma(S, i)
            if i == 0 and s_ == 2 and c + 1 < 10:
                A("s_barrier")
                if QST and c in (0, 2, 4, 6, 8): stamp(A, timing, qst[0]); qst[0] += 1
    stamp(A, timing, 2)
    A("s_nop 7")
    A("s_nop 3")
    for lg in range(2):
        for t in range(2):
            a = ACC + 16 * (2 * lg + t)
            for j in range(8):
                A("v_cvt_pk_bf16_f32 v%d, v%d, v%d" % (a + j, a + 2 * j, a + 2 * j + 1))
            for h in range(2):
                A("ds_write_b128 v%d, %s offset:%d" % (vSt, v(a + 4 * h, 4), lg * 32 * 272 + 32 * t + 16 * h))
    A("s_waitcnt lgkmcnt(0)")
    A("s_barrier")
    stamp(A, timing, 3)
    dump_stamps(A, timing, 9 if QST else 4, end, 160)
    A("s_branch %s" % end)

def role_kv(A, end, timing):
    D = 5; XB = 65536; BUF = 16384
    SX, SK, SV, SO = 8, 12, 16, 20
    sRow0, sJ = 24, 25
    t0, t1, t2 = 2, 3, 4
    A("s_cmp_ge_u32 s%d, 12" % sW)
    A("s_cbranch_scc1 %s" % ("k1_wo" if AUX else end))
    A("s_load_dwordx2 s[32:33], s[0:1], 0")
    A("s_load_dwordx4 s[36:39], s[0:1], 88")
    A("s_load_dwordx2 s[4:5], s[0:1], 136")
    A("s_sub_u32 s%d, s2, 240" % sRow0)
    A("s_lshl_b32 s%d, s%d, 7" % (sRow0, sRow0))
    A("s_cmp_lt_u32 s%d, 4" % sW)
    A("s_cbranch_scc1 kv_comp")
    vX, vL16 = 8, 10
    A("s_sub_u32 s%d, s%d, 4" % (sJ, sW))
    x_dma_setup(A, vX, t0, t1)
    A("v_lshlrev_b32 v%d, 4, v%d" % (vL16, vLane))
    sXg, sM0 = 26, 27
    A("s_lshl_b32 s28, s%d, 4" % sJ)
    A("s_add_u32 s28, s28, s%d" % sRow0)
    A("s_mul_i32 s%d, s28, 1280" % sXg)
    A("s_lshl_b32 s%d, s%d, 11" % (sM0, sJ))
    A("s_waitcnt lgkmcnt(0)")
    srd(A, SX, 32, 0, NQ)
    srd(A, SK, 36, 0, 25600)
    srd(A, SV, 38, 0, 25600)
    issued = []
    def dma(c):
        b = XB + (c % D) * BUF
        for e in range(2):
            A("s_add_u32 m0, s%d, %d" % (sM0, b + e * 1024))
            A("s_add_u32 s29, s%d, %d" % (sXg, c * 128))
            A("buffer_load_dwordx4 v%d, s[%d:%d], s29 offen lds" % (vX + e, SX, SX + 3))
            issued.append(c)
    A("s_lshl_b32 s30, s%d, 10" % sJ)
    for e in range(4):
        for (sr, base) in ((SK, 0), (SV, 32768)):
            A("s_add_u32 s29, s30, %d" % (e * 8192))
            A("s_add_u32 m0, s29, %d" % base)
            A("s_nop 0")
            A("buffer_load_dwordx4 v%d, s[%d:%d], s29 offen lds" % (vL16, sr, sr + 3))
            issued.append(0)
    for c in range(D):
        dma(c)
    for c in range(10):
        last = max(i for i, x in enumerate(issued) if x == c)
        A("s_waitcnt vmcnt(%d)" % (len(issued) - 1 - last))
        A("s_barrier")
        if c >= 2 and c - 2 + D <= 9:
            dma(c - 2 + D)
    A("s_branch %s" % end)
    A.label("kv_comp")
    vXr, vWr = 8, 12
    XF = [16, 20]; KF = [24, 28]; VF = [32, 36]
    DK, DV = 64, 80
    A("s_lshl_b32 s26, s%d, 12" % sW)
    x_read_setup(A, vXr, 26, XB, t0, t1, t2)
    set_off = XB
    A("v_lshrrev_b32 v%d, 5, v%d" % (t0, vLane))
    A("v_bfe_u32 v%d, v%d, 2, 2" % (t1, vLane))
    A("v_lshl_add_u32 v%d, v%d, 3, v%d" % (t0, t0, t1))
    A("v_mul_u32_u24 v%d, 40, v%d" % (vWr, t0))
    A("v_bfe_u32 v%d, v%d, 4, 1" % (t0, vLane))
    A("v_lshl_add_u32 v%d, v%d, 5, v%d" % (vWr, t0, vWr))
    A("v_and_b32 v%d, 3, v%d" % (t0, vLane))
    A("v_lshl_add_u32 v%d, v%d, 3, v%d" % (vWr, t0, vWr))
    def reads(S):
        c, s_ = divmod(S, 4); fb = S & 1
        o = (c % D) * BUF
        if o >= 65536:
            A("v_add_u32 v%d, %d, v%d" % (t0, 65536, vXr + s_))
            A("ds_read_b128 %s, v%d offset:%d" % (v(XF[fb], 4), t0, o - 65536))
        else:
            A("ds_read_b128 %s, v%d offset:%d" % (v(XF[fb], 4), vXr + s_, o))
        for h in range(2):
            A("ds_read_b64_tr_b16 %s, v%d offset:%d" % (v(KF[fb] + 2 * h, 2), vWr, S * 640 + h * 160))
        for h in range(2):
            A("ds_read_b64_tr_b16 %s, v%d offset:%d" % (v(VF[fb] + 2 * h, 2), vWr, 32768 + S * 640 + h * 160))
    A("s_barrier")
    reads(0)
    for S in range(40):
        c, s_ = divmod(S, 4); fb = S & 1
        if S + 1 < 40:
            reads(S + 1)
            A("s_waitcnt lgkmcnt(5)")
        else:
            A("s_waitcnt lgkmcnt(0)")
        A("v_mfma_f32_32x32x16_bf16 %s, %s, %s, %s" % (v(DK, 16), v(KF[fb], 4), v(XF[fb], 4), "0" if S == 0 else v(DK, 16)))
        if s_ == 2 and c + 1 < 10:
            A("s_barrier")
        A("v_mfma_f32_32x32x16_bf16 %s, %s, %s, %s" % (v(DV, 16), v(XF[fb], 4), v(VF[fb], 4), "0" if S == 0 else v(DV, 16)))
    A("s_waitcnt lgkmcnt(0)")
    srd(A, SO, 4, WS_KV, NKV)
    A("s_lshr_b32 s26, s%d, 5" % sRow0)
    A("s_add_u32 s26, s26, s%d" % sW)
    A("s_mul_i32 s26, s26, 2560")
    vK1, vK2, vV = 8, 9, 10
    A("v_and_b32 v%d, 31, v%d" % (t0, vLane))
    A("v_lshrrev_b32 v%d, 5, v%d" % (t1, vLane))
    A("v_lshlrev_b32 v%d, 4, v%d" % (vK1, t0))
    A("v_lshl_add_u32 v%d, v%d, 3, v%d" % (vK1, t1, vK1))
    A("v_lshlrev_b32 v%d, 30, v%d" % (vK2, t1))
    A("v_lshl_add_u32 v%d, v%d, 3, v%d" % (vK2, t0, vK2))
    A("v_mul_u32_u24 v%d, 320, v%d" % (vV, t1))
    A("v_lshl_add_u32 v%d, v%d, 4, v%d" % (vV, t0, vV))
    A("v_cmp_gt_u32 vcc, 20, v%d" % t0)
    A("v_mov_b32 v%d, 0x40000000" % t2)
    A("s_nop 1")
    A("v_cndmask_b32 v%d, v%d, v%d, vcc" % (vV, t2, vV))
    A("s_nop 7")
    for j in range(6):
        A("v_cvt_pk_bf16_f32 v%d, v%d, v%d" % (16 + j, DK + 2 * j, DK + 2 * j + 1))
    for j in range(6):
        A("v_lshlrev_b32 v%d, 16, v%d" % (DK + 2 * j, 16 + j))
        A("v_and_b32 v%d, 0xffff0000, v%d" % (DK + 2 * j + 1, 16 + j))
    A("s_mov_b32 s27, 0x%x" % f32bits(CSCALE))
    for r in range(12):
        A("v_mul_f32 v%d, s27, v%d" % (DK + r, DK + r))
    for j in range(6):
        A("v_cvt_pk_bf16_f32 v%d, v%d, v%d" % (16 + j, DK + 2 * j, DK + 2 * j + 1))
    for j in range(8):
        A("v_cvt_pk_bf16_f32 v%d, v%d, v%d" % (24 + j, DV + 2 * j, DV + 2 * j + 1))
    A("buffer_store_dwordx2 %s, v%d, s[%d:%d], s26 offen" % (v(16, 2), vK1, SO, SO + 3))
    A("buffer_store_dwordx2 %s, v%d, s[%d:%d], s26 offen offset:512" % (v(18, 2), vK1, SO, SO + 3))
    A("buffer_store_dwordx2 %s, v%d, s[%d:%d], s26 offen offset:1024" % (v(20, 2), vK2, SO, SO + 3))
    A("buffer_store_dwordx4 %s, v%d, s[%d:%d], s26 offen offset:1280" % (v(24, 4), vV, SO, SO + 3))
    A("buffer_store_dwordx4 %s, v%d, s[%d:%d], s26 offen offset:1920" % (v(28, 4), vV, SO, SO + 3))
    A("s_branch %s" % end)

AUX = True
WS_WF  = 0x0300000
WS_CNT = 0x02C0000
NWF = 819200

def gate_row(A, X, XU, WU, SG, vZero, sOff):
    for q in range(5):
        A("v_lshlrev_b32 v%d, 16, v%d" % (XU + 2 * q, X + q))
        A("v_and_b32 v%d, 0xffff0000, v%d" % (XU + 2 * q + 1, X + q))
    for q in range(10):
        A("v_mul_f32 v%d, v%d, v%d" % (XU + q, XU + q, WU + q))
    for q in range(5):
        A("v_cvt_pk_bf16_f32 v%d, v%d, v%d" % (X + q, XU + 2 * q, XU + 2 * q + 1))
    for q in range(5):
        A("v_lshlrev_b32 v%d, 16, v%d" % (XU + 2 * q, X + q))
        A("v_and_b32 v%d, 0xffff0000, v%d" % (XU + 2 * q + 1, X + q))
    for q in range(5):
        A("v_add_f32 v%d, v%d, v%d" % (XU + q, XU + q, XU + 5 + q))
    A("v_add_f32 v%d, v%d, v%d" % (XU, XU, XU + 1))
    A("v_add_f32 v%d, v%d, v%d" % (XU + 2, XU + 2, XU + 3))
    A("v_add_f32 v%d, v%d, v%d" % (XU, XU, XU + 4))
    A("v_add_f32 v%d, v%d, v%d" % (XU, XU, XU + 2))
    for ctl in ("row_shr:1", "row_shr:2", "row_shr:4", "row_shr:8"):
        A("s_nop 1")
        A("v_add_f32_dpp v%d, v%d, v%d %s row_mask:0xf bank_mask:0xf bound_ctrl:0" % (XU, XU, XU, ctl))
    A("s_nop 1")
    A("v_add_f32_dpp v%d, v%d, v%d row_bcast:15 row_mask:0xa bank_mask:0xf" % (XU, XU, XU))
    A("s_nop 1")
    A("v_add_f32_dpp v%d, v%d, v%d row_bcast:31 row_mask:0xc bank_mask:0xf" % (XU, XU, XU))
    A("v_cvt_pk_bf16_f32 v%d, v%d, v%d" % (XU, XU, XU))
    A("v_lshlrev_b32 v%d, 16, v%d" % (XU, XU))
    A("v_mul_f32 v%d, 0xbfb8aa3b, v%d" % (XU, XU))
    A("v_exp_f32 v%d, v%d" % (XU, XU))
    A("s_nop 0")
    A("v_add_f32 v%d, 1.0, v%d" % (XU, XU))
    A("v_rcp_f32 v%d, v%d" % (XU, XU))
    A("s_nop 0")
    A("v_cvt_pk_bf16_f32 v%d, v%d, v%d" % (XU, XU, XU))
    A("v_lshlrev_b32 v%d, 16, v%d" % (X, XU))
    A("s_mov_b32 exec_lo, 0")
    A("s_mov_b32 exec_hi, 0x80000000")
    A("buffer_store_dword v%d, v%d, s[%d:%d], s%d offen" % (X, vZero, SG, SG + 3, sOff))
    A("s_mov_b64 exec, -1")

def role_wo(A, end):
    SWO, SWF, SC = 8, 12, 16
    A("s_load_dwordx2 s[32:33], s[0:1], 104")
    A("s_load_dwordx2 s[4:5], s[0:1], 136")
    A("s_sub_u32 s20, s2, 240")
    A("s_lshl_b32 s20, s20, 2")
    A("s_add_u32 s20, s20, s%d" % sW)
    A("s_sub_u32 s20, s20, 12")
    A("v_lshrrev_b32 v2, 4, v%d" % vLane)
    A("v_and_b32 v3, 15, v%d" % vLane)
    A("v_mul_u32_u24 v4, %d, v2" % (8 * 1280))
    A("v_lshl_add_u32 v4, v3, 4, v4")
    A("v_lshrrev_b32 v5, 1, v3")
    A("v_mul_u32_u24 v5, 20480, v5")
    A("v_lshl_add_u32 v5, v2, 8, v5")
    A("v_and_b32 v6, 1, v3")
    A("v_lshl_add_u32 v5, v6, 7, v5")
    A("v_lshlrev_b32 v6, 7, v%d" % vLane)
    A("v_mov_b32 v7, 0")
    A("s_mov_b32 s40, 0x05040100")
    A("s_mov_b32 s41, 0x07060302")
    for n in range(2):
        A("s_add_u32 s21, s20, %d" % (64 * n))
        A("s_mul_i32 s22, s21, 205")
        A("s_lshr_b32 s22, s22, 10")
        A("s_mul_i32 s23, s22, 5")
        A("s_sub_u32 s23, s21, s23")
        A("s_mul_i32 s24, s22, %d" % (32 * 1280))
        A("s_lshl_b32 s25, s23, 8")
        A("s_add_u32 s%d, s24, s25" % (26 + 3 * n))
        A("s_add_u32 s%d, s%d, 5120" % (27 + 3 * n, 26 + 3 * n))
        A("s_mul_i32 s24, s23, %d" % (8 * 20480))
        A("s_lshl_b32 s25, s22, 10")
        A("s_add_u32 s%d, s24, s25" % (28 + 3 * n))
        A("s_cmp_ge_u32 s21, 100")
        A("s_cselect_b32 s%d, 0x1000000, s%d" % (28 + 3 * n, 28 + 3 * n))
    A("s_waitcnt lgkmcnt(0)")
    srd(A, SWO, 32, 0, 640 * 1280)
    srd(A, SWF, 4, WS_WF, NWF)
    srd(A, SC, 4, WS_CNT, 4096)
    L = [16, 48]; Pk = [80, 16]
    for _ in range(WDELAY): A("s_barrier")
    for n in range(2):
        for e in range(8):
            A("buffer_load_dwordx4 %s, v4, s[%d:%d], s%d offen offset:%d" % (v(L[n] + 4 * e, 4), SWO, SWO + 3, 26 + 3 * n + (e >> 2), (e & 3) * 1280))
    A("s_cmp_eq_u32 s20, 0")
    A("s_cbranch_scc0 k1_wo_nz")
    A("buffer_store_dword v7, v6, s[%d:%d], 0 offen" % (SC, SC + 3))
    A.label("k1_wo_nz")
    A("s_barrier")
    A("s_waitcnt vmcnt(0)")
    for n in range(2):
        for cc in range(8):
            for m in range(4):
                A("v_perm_b32 v%d, v%d, v%d, s%d" % (Pk[n] + 4 * cc + m, L[n] + 4 * (2 * m + 1) + (cc >> 1), L[n] + 4 * (2 * m) + (cc >> 1), 40 + (cc & 1)))
            A("buffer_store_dwordx4 %s, v5, s[%d:%d], s%d offen offset:%d" % (v(Pk[n] + 4 * cc, 4), SWF, SWF + 3, 28 + 3 * n, cc * 16))
    A("s_branch %s" % end)

CH = 34816
TAB = 17408
UB = 4 * CH
UP = 4576
CP0 = 2048
CPS = 4160
EX2 = 20480

GROWS = {0: [11], 1: [10], 2: [9], 3: [8], 4: [3], 5: [2], 6: [1], 7: [0],
         256: [14, 15], 258: [13], 260: [12, 7, 6], 262: [5], 264: [4],
         512: [18], 516: [17], 520: [16], 768: [22], 772: [21], 776: [20],
         1024: [25], 1032: [24], 1280: [27], 1288: [26], 1536: [29], 1544: [28], 1792: [31], 1800: [30]}

def role_ssm(A, end, timing):
    t0, t1, t2, t3 = 2, 3, 4, 5
    sD0, sCH, sHF = 7, 8, 9
    SX, SAT = 12, 36
    A("s_load_dwordx16 s[16:31], s[0:1], 0")
    A("s_load_dwordx2 s[32:33], s[0:1], 64")
    A("s_load_dwordx2 s[4:5], s[0:1], 136")
    A("s_and_b32 s10, s2, 7")
    A("s_mul_i32 s10, s10, 20")
    A("s_lshr_b32 s11, s2, 3")
    A("s_add_u32 s10, s10, s11")
    A("s_lshl_b32 s%d, s10, 2" % sD0)
    A("s_cmp_lt_u32 s%d, 8" % sW)
    A("s_cbranch_scc1 ssm_main")
    if LPRIO: A("s_setprio %d" % LPRIO)
    if AUX: A("s_load_dwordx2 s[36:37], s[0:1], 112")
    A("s_sub_u32 s10, s%d, 8" % sW)
    A("v_mul_u32_u24 v%d, 1280, v%d" % (t0, vLane))
    A("s_mul_i32 s11, s10, %d" % (256 * 1280))
    A("s_lshl_b32 s34, s%d, 1" % sD0)
    A("s_add_u32 s11, s11, s34")
    A("s_waitcnt lgkmcnt(0)")
    srd(A, SX, 16, 0, NQ)
    if B0: A("s_barrier")
    for e in range(4):
        A("s_add_u32 s34, s11, %d" % (e * 64 * 1280))
        A("buffer_load_dwordx2 %s, v%d, s[%d:%d], s34 offen %s" % (v(8 + 2 * e, 2), t0, SX, SX + 3, GMOD))
    NG = 0
    if AUX:
        GX, GW, XU, WU, SGW, SG = 32, 44, 52, 64, 40, 44
        NG = 0
        A("s_lshl_b32 s38, s2, 3")
        A("s_add_u32 s38, s38, s10")
        A("s_mul_i32 s39, s38, 1280")
        A("v_mul_u32_u24 v24, 20, v%d" % vLane)
        A("v_mov_b32 v25, 0")
        srd(A, SGW, 36, 0, 1280)
        srd(A, SG, 4, WS_G, 8192)
    A("v_mov_b32 v16, 0"); A("v_mov_b32 v17, 0"); A("v_mov_b32 v18, 0"); A("v_mov_b32 v19, 0")
    A("s_mul_i32 s34, s10, %d" % UP)
    A("s_add_u32 s34, s34, %d" % UB)
    A("v_lshlrev_b32 v%d, 4, v%d" % (t1, vLane))
    A("v_add_u32 v%d, s34, v%d" % (t1, t1))
    A("s_cmp_lt_u32 s10, 4")
    A("s_cbranch_scc0 ssm_nz")
    A("s_mov_b32 exec_lo, 0x3fffffff")
    A("s_mov_b32 exec_hi, 0")
    A("ds_write_b128 v%d, v[16:19]" % t1)
    A("s_mov_b64 exec, -1")
    A.label("ssm_nz")
    A("s_lshl_b32 s34, s10, 9")
    A("s_add_u32 s34, s34, %d" % (UB + 480))
    A("v_lshlrev_b32 v%d, 1, v%d" % (t1, vLane))
    A("v_add_u32 v%d, s34, v%d" % (t1, t1))
    if V3:
        A("s_barrier")
        A("s_barrier")
    for e in range(4):
        A("s_waitcnt vmcnt(%d)" % (3 - e + NG))
        for cc in range(4):
            A("ds_write_b16%s v%d, v%d offset:%d" % ("_d16_hi" if cc & 1 else "", t1, 8 + 2 * e + (cc >> 1), cc * UP + e * 128))
    if AUX:
        for j in range(2):
            A("s_add_u32 s48, s39, %d" % (j * 1280 * 1280))
            A("buffer_load_dwordx4 %s, v24, s[%d:%d], s48 offen" % (v(GX + 6 * j, 4), SX, SX + 3))
            A("buffer_load_dword v%d, v24, s[%d:%d], s48 offen offset:16" % (GX + 6 * j + 4, SX, SX + 3))
        A("buffer_load_dwordx4 %s, v24, s[%d:%d], 0 offen" % (v(GW, 4), SGW, SGW + 3))
        A("buffer_load_dword v%d, v24, s[%d:%d], 0 offen offset:16" % (GW + 4, SGW, SGW + 3))
    A("s_waitcnt lgkmcnt(0)")
    stamp(A, timing, 1)
    if V3: A("s_barrier")
    if AUX:
        A("s_setprio 0")
        A("s_waitcnt vmcnt(0)")
        for q in range(5):
            A("v_lshlrev_b32 v%d, 16, v%d" % (WU + 2 * q, GW + q))
            A("v_and_b32 v%d, 0xffff0000, v%d" % (WU + 2 * q + 1, GW + q))
        A("s_lshl_b32 s48, s38, 2")
        gate_row(A, GX, XU, WU, SG, 25, 48)
        A("s_cmp_ge_u32 s38, 768")
        A("s_cbranch_scc1 ssm_ng")
        A("s_add_u32 s49, s48, %d" % (1280 * 4))
        gate_row(A, GX + 6, XU, WU, SG, 25, 49)
        A.label("ssm_ng")
    dump_stamps(A, timing, 2, end, 0)
    A("s_branch %s" % end)

    A.label("ssm_main")
    A("s_lshr_b32 s%d, s%d, 1" % (sCH, sW))
    A("s_and_b32 s%d, s%d, 1" % (sHF, sW))
    P = 8
    for i in range(6): A("v_mov_b32 v%d, 0" % (P + i))
    A("s_add_u32 s10, s%d, s%d" % (sD0, sCH))
    A("s_lshl_b32 s11, s10, 8")
    A("s_lshl_b32 s34, s%d, 7" % sHF)
    A("s_add_u32 s11, s11, s34")
    A("v_lshlrev_b32 v%d, 1, v%d" % (t0, vLane))
    A("v_add_u32 v%d, s11, v%d" % (t0, t0))
    A("s_lshl_b32 s11, s%d, 1" % sD0)
    A("s_waitcnt lgkmcnt(0)")
    for i in range(6):
        A("global_load_short_d16_hi v%d, v%d, s[%d:%d]" % (P + i, t0, 18 + 2 * i, 19 + 2 * i))
    A("s_load_dwordx2 s[34:35], s[30:31], s11")
    A("s_load_dwordx2 s[40:41], s[32:33], s11")
    if B0: A("s_barrier")
    srd(A, SAT, 4, WS_AT, NQ)
    vTab = 50
    A("s_mul_i32 s42, s%d, %d" % (sW, TAB))
    A("v_lshlrev_b32 v%d, 2, v%d" % (vTab, vLane))
    A("v_add_u32 v%d, s42, v%d" % (vTab, vTab))
    A("s_waitcnt lgkmcnt(0)")
    for (src, dst) in ((34, 43), (40, 44)):
        A("s_bitcmp1_b32 s%d, 1" % sCH)
        A("s_cselect_b32 s%d, s%d, s%d" % (dst, src + 1, src))
        A("s_lshl_b32 s45, s%d, 16" % dst)
        A("s_and_b32 s%d, s%d, 0xffff0000" % (dst, dst))
        A("s_bitcmp1_b32 s%d, 0" % sCH)
        A("s_cselect_b32 s%d, s%d, s45" % (dst, dst))
    sDskip = 44
    vDT = 6
    A("v_mov_b32 v%d, s43" % vDT)
    A("v_mul_f32 v%d, 0x%x, v%d" % (vDT, f32bits(LOG2E), vDT))
    A("v_exp_f32 v%d, v%d" % (vDT, vDT))
    A("s_nop 0")
    A("v_cvt_pk_bf16_f32 v%d, v%d, v%d" % (vDT, vDT, vDT))
    A("v_and_b32 v%d, 0xffff0000, v%d" % (vDT, vDT))
    Z, E1, E2, E4, W8, E256, E512, E1024, CB = 14, 16, 18, 20, 22, 24, 26, 28, 30
    GA, GB, FA, FB, T1, T2 = 32, 34, 38, 40, 42, 44
    PK = [46, 47, 48, 49]
    A("s_waitcnt vmcnt(0)")
    stamp(A, timing, 7)
    A("v_mul_f32 v%d, v%d, v%d" % (Z, vDT, P + 0))
    A("v_mul_f32 v%d, v%d, v%d" % (Z + 1, vDT, P + 1))
    A("v_mul_f32 v%d, v%d, v%d" % (P + 2, vDT, P + 2))
    A("v_mul_f32 v%d, v%d, v%d" % (P + 3, vDT, P + 3))
    A("v_mul_f32 v%d, 0x%x, v%d" % (Z, f32bits(LOG2E), Z))
    A("v_mul_f32 v%d, 0x%x, v%d" % (Z + 1, f32bits(1.0 / (2 * math.pi)), Z + 1))
    def cmul(d, a, b, t, conj=False):
        A("v_pk_mul_f32 %s, %s, %s op_sel_hi:[0,1]" % (v(t, 2), v(b, 2), v(a, 2)))
        A("v_pk_fma_f32 %s, %s, %s, %s op_sel:[1,1,0] op_sel_hi:[1,0,1] %s:[1,0,0]" % (v(d, 2), v(b, 2), v(a, 2), v(t, 2), "neg_hi" if conj else "neg_lo"))
    def anchor(d, m):
        if m == 1:
            A("v_exp_f32 v%d, v%d" % (t0, Z))
            A("v_fract_f32 v%d, v%d" % (t1, Z + 1))
        else:
            A("v_mul_f32 v%d, %s, v%d" % (t0, "%d.0" % m if m in (2, 4) else "0x%x" % f32bits(float(m)), Z))
            A("v_mul_f32 v%d, %s, v%d" % (t1, "%d.0" % m if m in (2, 4) else "0x%x" % f32bits(float(m)), Z + 1))
            A("v_exp_f32 v%d, v%d" % (t0, t0))
            A("v_fract_f32 v%d, v%d" % (t1, t1))
        A("v_cos_f32 v%d, v%d" % (d, t1))
        A("v_sin_f32 v%d, v%d" % (d + 1, t1))
        A("s_nop 0")
        A("v_mul_f32 v%d, v%d, v%d" % (d, d, t0))
        A("v_mul_f32 v%d, v%d, v%d" % (d + 1, d + 1, t0))
    anchor(W8, 8)
    anchor(E1, 1)
    cmul(CB, P + 4, P + 2, T1)
    A("v_xor_b32 v%d, 0x80000000, v%d" % (CB + 1, CB + 1))
    anchor(E256, 256)
    anchor(E512, 512)
    anchor(E1024, 1024)
    cmul(E2, E1, E1, T1)
    cmul(E4, E2, E2, T2)
    pki = [0]
    def put(src, rows):
        pk = PK[pki[0] & 3]; pki[0] += 1
        A("v_cvt_pk_bf16_f32 v%d, v%d, v%d" % (pk, src, src + 1))
        for r in rows:
            A("ds_write_b32 v%d, v%d offset:%d" % (vTab, pk, r * 272))
    fops = []
    fops.append(lambda: (A("v_mov_b32 v%d, 0x3f80" % PK[3]), A("ds_write_b32 v%d, v%d offset:%d" % (vTab, PK[3], 32 * 272))))
    fops.append(lambda: put(W8, [33]))
    cur = W8
    fr = [FA, FB]
    for j in range(2, 32):
        d = fr[j & 1]
        fops.append((lambda d=d, cur=cur, j=j: (cmul(d, cur, W8, T1), put(d, [32 + j]))))
        cur = d
    gops = []
    def gstep(d, a, b, base):
        gops.append(lambda: (cmul(d, a, b, T2, conj=True), put(d, GROWS[base])))
    gops.append(lambda: put(CB, GROWS[0]))
    g = [GA, GB]
    prev = CB
    for k in range(1, 8):
        gstep(g[k & 1], prev, E1, k); prev = g[k & 1]
    G256, G512, G1024, G1536 = 36, 52, 54, 56
    gstep(G256, CB, E256, 256)
    prev = G256
    for k, base in enumerate((258, 260, 262, 264)):
        gstep(g[k & 1], prev, E2, base); prev = g[k & 1]
    gstep(G512, CB, E512, 512)
    gstep(GA, G512, E4, 516); gstep(GB, GA, E4, 520)
    gstep(G256, G512, E256, 768)
    gstep(GA, G256, E4, 772); gstep(GB, GA, E4, 776)
    gstep(G1024, CB, E1024, 1024)
    gstep(GA, G1024, W8, 1032)
    gstep(GB, G1024, E256, 1280); gstep(GA, GB, W8, 1288)
    gstep(G1536, G1024, E512, 1536); gstep(GA, G1536, W8, 1544)
    gstep(GB, G1536, E256, 1792); gstep(GA, GB, W8, 1800)
    n = max(len(fops), len(gops))
    for i in range(n):
        if i < len(fops): fops[i]()
        if i < len(gops): gops[i]()
    stamp(A, timing, 1)
    AF, BF, DK = 64, 96, 16
    A("v_and_b32 v%d, 31, v%d" % (t0, vLane))
    A("v_mul_u32_u24 v%d, 272, v%d" % (t0, t0))
    A("v_lshrrev_b32 v%d, 5, v%d" % (t1, vLane))
    A("v_lshl_add_u32 v%d, v%d, 4, v%d" % (t0, t1, t0))
    A("v_add_u32 v%d, s42, v%d" % (t0, t0))
    for t in range(8):
        A("ds_read_b128 %s, v%d offset:%d" % (v(AF + 4 * t, 4), t0, 32 * t))
        A("ds_read_b128 %s, v%d offset:%d" % (v(BF + 4 * t, 4), t0, 32 * 272 + 32 * t))
    for t in range(8):
        A("s_waitcnt lgkmcnt(%d)" % (14 - 2 * t))
        A("v_mfma_f32_32x32x16_bf16 %s, %s, %s, %s" % (v(DK, 16), v(AF + 4 * t, 4), v(BF + 4 * t, 4), "0" if t == 0 else v(DK, 16)))
    vL16 = 7
    A("v_lshlrev_b32 v%d, 4, v%d" % (vL16, vLane))
    A("v_add_u32 v%d, s42, v%d" % (t0, vL16))
    A("s_xor_b32 s45, s%d, 1" % sW)
    A("s_mul_i32 s45, s45, %d" % TAB)
    A("v_add_u32 v%d, s45, v%d" % (t1, vL16))
    A("s_mul_i32 s46, s%d, %d" % (sCH, CH))
    A("s_nop 7")
    A("s_nop 1")
    A("s_cmp_eq_u32 s%d, 0" % sHF)
    A("s_cbranch_scc0 ssm_x1")
    A("ds_write_b128 v%d, %s" % (t0, v(DK + 8, 4)))
    A("ds_write_b128 v%d, %s offset:1024" % (t0, v(DK + 12, 4)))
    A("s_branch ssm_x2")
    A.label("ssm_x1")
    A("ds_write_b128 v%d, %s" % (t0, v(DK, 4)))
    A("ds_write_b128 v%d, %s offset:1024" % (t0, v(DK + 4, 4)))
    A.label("ssm_x2")
    A("s_waitcnt lgkmcnt(0)")
    A("s_barrier")
    stamp(A, timing, 2)
    R = 32
    A("ds_read_b128 %s, v%d" % (v(R, 4), t1))
    A("ds_read_b128 %s, v%d offset:1024" % (v(R + 4, 4), t1))
    A("v_and_b32 v%d, 31, v%d" % (t2, vLane))
    A("v_lshrrev_b32 v%d, 5, v%d" % (t3, vLane))
    A("v_lshlrev_b32 v%d, 4, v%d" % (t2, t2))
    A("s_add_u32 s47, s46, %d" % (CP0 + 4080))
    A("v_sub_u32 v%d, s47, v%d" % (t2, t2))
    A("s_waitcnt lgkmcnt(0)")
    A("s_cmp_eq_u32 s%d, 0" % sHF)
    A("s_cbranch_scc0 ssm_y1")
    for r in range(8): A("v_add_f32 v%d, v%d, v%d" % (DK + r, DK + r, R + r))
    A("v_lshlrev_b32 v%d, 9, v%d" % (t3, t3))
    A("v_sub_u32 v%d, v%d, v%d" % (t2, t2, t3))
    for j in range(4): A("v_cvt_pk_bf16_f32 v%d, v%d, v%d" % (R + j, DK + 2 * j, DK + 2 * j + 1))
    A("ds_write_b128 v%d, %s" % (t2, v(R, 4)))
    A("v_mov_b32 v%d, 0" % (R + 4)); A("v_mov_b32 v%d, 0" % (R + 5)); A("v_mov_b32 v%d, 0" % (R + 6)); A("v_mov_b32 v%d, 0" % (R + 7))
    A("s_add_u32 s47, s46, %d" % (CP0 + 4096))
    A("v_add_u32 v%d, s47, v%d" % (t3, vL16))
    A("s_mov_b64 exec, 0xf")
    A("ds_write_b128 v%d, %s" % (t3, v(R + 4, 4)))
    A("s_mov_b64 exec, -1")
    A("s_branch ssm_y2")
    A.label("ssm_y1")
    for r in range(8): A("v_add_f32 v%d, v%d, v%d" % (DK + r, DK + 8 + r, R + r))
    A("v_lshlrev_b32 v%d, 9, v%d" % (R + 12, t3))
    A("v_sub_u32 v%d, v%d, v%d" % (R + 12, t2, R + 12))
    A("v_subrev_u32 v%d, 1024, v%d" % (R + 12, R + 12))
    A("v_cvt_pk_bf16_f32 v%d, v%d, v%d" % (R + 0, DK + 0, DK + 0))
    A("v_cvt_pk_bf16_f32 v%d, v%d, v%d" % (R + 1, DK + 1, DK + 1))
    A("v_cvt_pk_bf16_f32 v%d, v%d, v%d" % (R + 2, DK + 1, DK + 2))
    A("v_cvt_pk_bf16_f32 v%d, v%d, v%d" % (R + 3, DK + 2, DK + 2))
    A("ds_write_b128 v%d, %s" % (R + 12, v(R, 4)))
    A("v_lshlrev_b32 v%d, 10, v%d" % (R + 13, t3))
    A("v_sub_u32 v%d, v%d, v%d" % (R + 13, t2, R + 13))
    A("v_subrev_u32 v%d, 2560, v%d" % (R + 13, R + 13))
    A("v_and_b32 v%d, 1, v%d" % (R + 14, vLane))
    A("v_cmp_eq_u32 vcc, 1, v%d" % (R + 14))
    A("s_nop 1")
    for k in range(2):
        K8, K0 = DK + 4 + 2 * k, DK + 5 + 2 * k
        o = R + 4 + 4 * k
        A("v_cndmask_b32 v%d, v%d, v%d, vcc" % (R + 15, K0, K8))
        A("v_cvt_pk_bf16_f32 v%d, v%d, v%d" % (o + 0, K8, K8))
        A("v_cvt_pk_bf16_f32 v%d, v%d, v%d" % (o + 1, K8, R + 15))
        A("v_cvt_pk_bf16_f32 v%d, v%d, v%d" % (o + 2, K0, K0))
        A("v_mov_b32 v%d, v%d" % (o + 3, o + 2))
    A("ds_write_b128 v%d, %s offset:512" % (R + 13, v(R + 4, 4)))
    A("ds_write_b128 v%d, %s" % (R + 13, v(R + 8, 4)))
    A.label("ssm_y2")
    A("s_waitcnt lgkmcnt(0)")
    A("s_barrier")
    stamp(A, timing, 3)
    A("s_lshl_b32 s47, s%d, 11" % sHF)
    A("s_add_u32 s47, s47, s46")
    A("s_add_u32 s47, s47, %d" % CP0)
    A("v_add_u32 v%d, s47, v%d" % (t0, vL16))
    for it in range(2):
        d = 32 + 8 * it
        A("ds_read_b128 %s, v%d offset:%d" % (v(d, 4), t0, it * 1024))
        A("ds_read_b64 %s, v%d offset:%d" % (v(d + 4, 2), t0, it * 1024 + 16))
    A("v_lshrrev_b32 v%d, 2, v%d" % (t1, vLane))
    A("v_mul_u32_u24 v%d, %d, v%d" % (t1, CPS, t1))
    A("v_and_b32 v%d, 3, v%d" % (t2, vLane))
    A("v_lshl_add_u32 v%d, v%d, 4, v%d" % (t1, t2, t1))
    A("s_add_u32 s47, s46, %d" % (CP0 + CPS + 4096))
    A("v_add_u32 v%d, s47, v%d" % (t1, t1))
    for r in range(4): A("v_mov_b32 v%d, 0" % (60 + r))
    A("s_cmp_eq_u32 s%d, 0" % sHF)
    A("s_cbranch_scc0 ssm_z1")
    A("s_mov_b64 exec, 0xfff")
    A("ds_write_b128 v%d, v[60:63]" % t1)
    A("s_mov_b64 exec, -1")
    A.label("ssm_z1")
    A("v_add_u32 v64, %d, v%d" % (2 * CPS, t0))
    A("v_add_u32 v65, %d, v%d" % (2 * CPS + 1024, t0))
    A("s_waitcnt lgkmcnt(0)")
    for it in range(2):
        d = 32 + 8 * it; e = 48 + 8 * it
        for i in range(4): A("v_alignbit_b32 v%d, v%d, v%d, 16" % (e + i, d + i + 1, d + i))
        for i in range(4): A("v_alignbit_b32 v%d, v%d, v%d, 16" % (e + 4 + i, d + i + 2, d + i + 1))
        A("ds_write_b128 v%d, %s offset:%d" % (t0, v(e, 4), it * 1024 + CPS))
        A("ds_write2_b32 v%d, v%d, v%d offset0:0 offset1:1" % (64 + it, d + 1, d + 2))
        A("ds_write2_b32 v%d, v%d, v%d offset0:2 offset1:3" % (64 + it, d + 3, d + 4))
        A("ds_write_b128 v%d, %s offset:%d" % (t0, v(e + 4, 4), it * 1024 + 3 * CPS))
    AF, BF, DC = 32, 64, 96
    vAlo, vAhi, vB = 8, 9, 10
    A("v_and_b32 v%d, 3, v%d" % (t1, vLane))
    A("v_sub_u32 v%d, 3, v%d" % (t1, t1))
    A("v_mul_u32_u24 v%d, %d, v%d" % (vAlo, CPS, t1))
    A("v_bfe_u32 v%d, v%d, 2, 2" % (t1, vLane))
    A("v_lshrrev_b32 v%d, 4, v%d" % (t2, vLane))
    A("v_lshlrev_b32 v%d, 1, v%d" % (t3, t2))
    A("v_sub_u32 v%d, v%d, v%d" % (t3, t3, t1))
    A("v_lshl_add_u32 v%d, v%d, 3, v%d" % (vAlo, t3, vAlo))
    A("s_lshl_b32 s47, s%d, 8" % sHF)
    A("s_sub_u32 s48, s46, s47")
    A("s_add_u32 s48, s48, %d" % (CP0 + 8 * 507 - 3584))
    A("v_add_u32 v%d, s48, v%d" % (vAlo, vAlo))
    A("v_add_u32 v%d, 2048, v%d" % (vAhi, vAlo))
    A("v_and_b32 v%d, 15, v%d" % (t1, vLane))
    A("v_lshlrev_b32 v%d, 5, v%d" % (vB, t1))
    A("v_lshl_add_u32 v%d, v%d, 4, v%d" % (vB, t2, vB))
    A("s_mul_i32 s48, s%d, %d" % (sCH, UP))
    A("s_add_u32 s48, s48, %d" % (UB + 448))
    A("s_sub_u32 s49, s48, s47")
    A("v_add_u32 v%d, s49, v%d" % (vB, vB))
    vU, vO = 11, 12
    A("v_lshlrev_b32 v%d, 5, v%d" % (vO, t1))
    A("v_lshl_add_u32 v%d, v%d, 3, v%d" % (vO, t2, vO))
    A("s_lshl_b32 s47, s%d, 11" % sHF)
    A("s_add_u32 s49, s48, s47")
    A("s_add_u32 s49, s49, 32")
    A("v_add_u32 v%d, s49, v%d" % (vU, vO))
    A("s_add_u32 s10, s%d, s%d" % (sD0, sCH))
    A("s_lshl_b32 s10, s10, 12")
    A("s_add_u32 s10, s10, s47")
    A("s_add_u32 s47, s46, %d" % EX2)
    A("s_lshl_b32 s48, s%d, 12" % sHF)
    A("s_add_u32 s49, s47, s48")
    A("v_add_u32 v%d, s49, v%d" % (13, vL16))
    A("s_xor_b32 s48, s48, 4096")
    A("s_add_u32 s49, s47, s48")
    A("v_add_u32 v%d, s49, v%d" % (14, vL16))
    A("s_waitcnt lgkmcnt(0)")
    stamp(A, timing, 8)
    A("s_barrier")
    stamp(A, timing, 4)
    for cl in range(4):
        if cl:
            A("v_subrev_u32 v%d, 64, v%d" % (vAlo, vAlo))
            A("v_subrev_u32 v%d, 64, v%d" % (vB, vB))
        seq = [("B", 0)]
        for a in range(8): seq += [("A", a, 0), ("A", a, 1)]
        seq += [("B", b) for b in range(1, 8)]
        for x in seq:
            if x[0] == "A":
                i, h = x[1], x[2]
                A("ds_read_b64 %s, v%d offset:%d" % (v(AF + 4 * i + 2 * h, 2), vAlo, 512 * (7 - i) + 8 * h))
            else:
                A("ds_read_b128 %s, v%d offset:%d" % (v(BF + 4 * x[1], 4), vB, 512 * x[1]))
        pos = {x: n for n, x in enumerate(seq)}
        waited = -1
        for b in range(8):
            for a in range(8 - b):
                need = max(pos[("A", a, 1)], pos[("B", b)])
                if need > waited:
                    cnt = len(seq) - 1 - need
                    if cnt <= 15:
                        A("s_waitcnt lgkmcnt(%d)" % cnt)
                        waited = need
                    elif len(seq) - 1 - 15 > waited:
                        A("s_waitcnt lgkmcnt(15)")
                        waited = len(seq) - 1 - 15
                c = a + b
                first = (cl == 0 and b == 0)
                A("v_mfma_f32_16x16x32_bf16 %s, %s, %s, %s" % (v(DC + 4 * c, 4), v(AF + 4 * a, 4), v(BF + 4 * b, 4), "0" if first else v(DC + 4 * c, 4)))
    stamp(A, timing, 5)
    A("s_nop 7")
    A("s_cmp_eq_u32 s%d, 0" % sHF)
    A("s_cbranch_scc0 ssm_w1")
    for k in range(4): A("ds_write_b128 v13, %s offset:%d" % (v(DC + 16 + 4 * k, 4), 1024 * k))
    A("s_branch ssm_w2")
    A.label("ssm_w1")
    for k in range(4): A("ds_write_b128 v13, %s offset:%d" % (v(DC + 4 * k, 4), 1024 * k))
    A.label("ssm_w2")
    U = 32
    for k in range(4): A("ds_read_b64 %s, v%d offset:%d" % (v(U + 2 * k, 2), vU, 512 * k))
    A("s_waitcnt lgkmcnt(0)")
    A("s_barrier")
    R = 64
    for k in range(4): A("ds_read_b128 %s, v14 offset:%d" % (v(R + 4 * k, 4), 1024 * k))
    UF = 40
    for k in range(8):
        A("v_lshlrev_b32 v%d, 16, v%d" % (UF + 2 * k, U + k))
        A("v_and_b32 v%d, 0xffff0000, v%d" % (UF + 2 * k + 1, U + k))
    for r in range(16): A("v_mul_f32 v%d, s%d, v%d" % (UF + r, sDskip, UF + r))
    for k in range(8): A("v_cvt_pk_bf16_f32 v%d, v%d, v%d" % (U + k, UF + 2 * k, UF + 2 * k + 1))
    for k in range(8):
        A("v_lshlrev_b32 v%d, 16, v%d" % (UF + 2 * k, U + k))
        A("v_and_b32 v%d, 0xffff0000, v%d" % (UF + 2 * k + 1, U + k))
    A("s_waitcnt lgkmcnt(0)")
    A("s_cmp_eq_u32 s%d, 0" % sHF)
    A("s_cbranch_scc0 ssm_v1")
    for r in range(16): A("v_add_f32 v%d, v%d, v%d" % (DC + r, DC + r, R + r))
    A("s_branch ssm_v2")
    A.label("ssm_v1")
    for r in range(16): A("v_add_f32 v%d, v%d, v%d" % (DC + r, DC + 16 + r, R + r))
    A.label("ssm_v2")
    for k in range(8): A("v_cvt_pk_bf16_f32 v%d, v%d, v%d" % (U + k, DC + 2 * k, DC + 2 * k + 1))
    for k in range(8):
        A("v_lshlrev_b32 v%d, 16, v%d" % (DC + 2 * k, U + k))
        A("v_and_b32 v%d, 0xffff0000, v%d" % (DC + 2 * k + 1, U + k))
    for r in range(16): A("v_add_f32 v%d, v%d, v%d" % (DC + r, DC + r, UF + r))
    for k in range(8): A("v_cvt_pk_bf16_f32 v%d, v%d, v%d" % (U + k, DC + 2 * k, DC + 2 * k + 1))
    for k in range(4):
        A("buffer_store_dwordx2 %s, v%d, s[%d:%d], s10 offen offset:%d" % (v(U + 2 * k, 2), vO, SAT, SAT + 3, 512 * k))
    stamp(A, timing, 6)
    dump_stamps(A, timing, 9, end, 0)
    A("s_branch %s" % end)


FL = 157696
LPRIO2 = 2
GXCD = True
SPIN = 100000
PHASES = [[0, 1, 2, 3], [4, 5], [6, 7]]

def flag_set(A, vaddr, vval, off):
    A("s_mov_b64 exec, 1")
    A("ds_write_b32 v%d, v%d offset:%d" % (vaddr, vval, off))
    A("s_mov_b64 exec, -1")

def flag_wait(A, vaddr, off, label, vt=2):
    A("s_mov_b32 s59, 0")
    A.label(label)
    A("ds_read_b32 v%d, v%d offset:%d" % (vt, vaddr, off))
    A("s_waitcnt lgkmcnt(0)")
    A("v_cmp_le_u32 vcc, 4, v%d" % vt)
    A("s_nop 3")
    A("s_cmp_eq_u64 vcc, -1")
    A("s_cbranch_scc1 %s_d" % label)
    A("s_add_u32 s59, s59, 1")
    A("s_cmp_lt_u32 s59, %d" % SPIN)
    A("s_cbranch_scc0 %s_d" % label)
    A("s_sleep 1")
    A("s_branch %s" % label)
    A.label(label + "_d")

def conv_phases(A, timing, vA, vB, AF, BF, DC, vFc, vFu):
    mf = []
    for p, bl in enumerate(PHASES):
        amax = 7 - bl[0]
        for cl in range(4):
            for a in range(amax, -1, -1):
                for b in bl:
                    if a + b <= 7: mf.append((p, cl, a, b))
    def aslot(p, cl, a):
        na = 8 - PHASES[p][0]
        return (a + na * (cl % (8 // na))) % 8
    def bslot(p, cl, b):
        nb = len(PHASES[p])
        return (b - PHASES[p][0] + nb * (cl % (8 // nb))) % 8
    reads = {}
    for n, (p, cl, a, b) in enumerate(mf):
        ta, tb = ("A", p, cl, a), ("B", p, cl, b)
        if ta not in reads:
            r = AF + 4 * aslot(p, cl, a)
            reads[ta] = dict(kind="A", slot=aslot(p, cl, a), first=n, last=n, p=p,
                             txt=["ds_read_b64 %s, v%d offset:%d" % (v(r + 2 * h, 2), vA, 512 * (7 - a) + 8 * h + 64 * (3 - cl)) for h in range(2)])
        if tb not in reads:
            r = BF + 4 * bslot(p, cl, b)
            reads[tb] = dict(kind="B", slot=bslot(p, cl, b), first=n, last=n, p=p,
                             txt=["ds_read_b128 %s, v%d offset:%d" % (v(r, 4), vB, 512 * b + 64 * (3 - cl))])
        reads[ta]["last"] = n; reads[tb]["last"] = n
    pstart = {}
    for n, m in enumerate(mf): pstart.setdefault(m[0], n)
    for t, r in reads.items():
        prev = [q["last"] for q in reads.values() if q["kind"] == r["kind"] and q["slot"] == r["slot"] and q["last"] < r["first"]]
        e = max(prev) + 1 if prev else 0
        if r["kind"] == "B": e = max(e, pstart[r["p"]])
        r["e"] = e
        for q in reads.values():
            if q is not r and q["kind"] == r["kind"] and q["slot"] == r["slot"]:
                assert q["last"] < r["first"] or q["first"] > r["last"]
    order = []; state = {"done": 0}
    issued = set()
    def issue_ready(n, only=None):
        rd = sorted([t for t, r in reads.items() if t not in issued and r["e"] <= n and (only is None or r["kind"] == only)], key=lambda t: reads[t]["first"])
        for t in rd:
            for x in reads[t]["txt"]:
                A(x); order.append(t)
            issued.add(t)
    def need(tag):
        idx = max(i for i, x in enumerate(order) if x == tag)
        if idx < state["done"]: return
        cnt = min(len(order) - 1 - idx, 15)
        A("s_waitcnt lgkmcnt(%d)" % cnt)
        state["done"] = len(order) - cnt
        assert state["done"] > idx
    first = set()
    for n, (p, cl, a, b) in enumerate(mf):
        if n == pstart[p]:
            if p == 0: flag_wait(A, vFc, 0, "ssm_fp0")
            else:
                issue_ready(n, only="A")
                flag_wait(A, vFu, 4 * (PHASES[p][-1] >> 1), "ssm_fp%d" % p)
            state["done"] = len(order)
            stamp(A, timing, 4 if p == 0 else (9 if p == 1 else 10))
        issue_ready(n)
        need(("B", p, cl, b)); need(("A", p, cl, a))
        c = a + b
        A("v_mfma_f32_16x16x32_bf16 %s, %s, %s, %s" % (v(DC + 4 * c, 4), v(AF + 4 * aslot(p, cl, a), 4), v(BF + 4 * bslot(p, cl, b), 4), v(DC + 4 * c, 4) if c in first else "0"))
        first.add(c)

def role_ssm3(A, end, timing):
    t0, t1, t2, t3 = 2, 3, 4, 5
    sD0, sCH, sHF = 7, 8, 9
    SX, SAT = 12, 36
    A("s_load_dwordx16 s[16:31], s[0:1], 0")
    A("s_load_dwordx2 s[32:33], s[0:1], 64")
    A("s_load_dwordx2 s[4:5], s[0:1], 136")
    A("s_and_b32 s10, s2, 7")
    A("s_mul_i32 s10, s10, 20")
    A("s_lshr_b32 s11, s2, 3")
    A("s_add_u32 s10, s10, s11")
    A("s_lshl_b32 s%d, s10, 2" % sD0)
    A("s_cmp_lt_u32 s%d, 8" % sW)
    A("s_cbranch_scc1 ssm_main")
    A("s_cmp_lt_u32 s%d, 12" % sW)
    A("s_cbranch_scc0 ssm_lp2")
    A("s_setprio %d" % LPRIO)
    A("s_branch ssm_lp3")
    A.label("ssm_lp2")
    A("s_setprio %d" % LPRIO2)
    A.label("ssm_lp3")
    A("s_load_dwordx2 s[36:37], s[0:1], 112")
    A("s_sub_u32 s10, s%d, 8" % sW)
    A("s_lshr_b32 s50, s10, 2")
    A("s_and_b32 s51, s10, 3")
    A("s_lshl_b32 s52, s50, 10")
    A("s_lshl_b32 s53, s51, 7")
    A("s_add_u32 s52, s52, s53")
    A("v_mul_u32_u24 v%d, 1280, v%d" % (t0, vLane))
    A("s_mul_i32 s11, s52, 1280")
    A("s_lshl_b32 s34, s%d, 1" % sD0)
    A("s_add_u32 s11, s11, s34")
    A("v_mov_b32 v16, 0"); A("v_mov_b32 v17, 0"); A("v_mov_b32 v18, 0"); A("v_mov_b32 v19, 0")
    A("s_mul_i32 s34, s10, %d" % UP)
    A("s_add_u32 s34, s34, %d" % UB)
    A("v_lshlrev_b32 v%d, 4, v%d" % (t1, vLane))
    A("v_add_u32 v%d, s34, v%d" % (t1, t1))
    A("s_cmp_lt_u32 s10, 4")
    A("s_cbranch_scc0 ssm_nz")
    A("s_mov_b32 exec_lo, 0x3fffffff")
    A("s_mov_b32 exec_hi, 0")
    A("ds_write_b128 v%d, v[16:19]" % t1)
    A("s_mov_b64 exec, -1")
    A.label("ssm_nz")
    A("s_cmp_eq_u32 s10, 4")
    A("s_cbranch_scc0 ssm_nf")
    A("v_lshlrev_b32 v%d, 2, v%d" % (t1, vLane))
    A("v_add_u32 v%d, %d, v%d" % (t1, FL, t1))
    A("ds_write_b32 v%d, v16" % t1)
    A.label("ssm_nf")
    A("s_lshl_b32 s34, s52, 1")
    A("s_add_u32 s34, s34, %d" % (UB + 480))
    A("v_lshlrev_b32 v%d, 1, v%d" % (t1, vLane))
    A("v_add_u32 v%d, s34, v%d" % (t1, t1))
    A("s_lshl_b32 s34, s50, 3")
    A("s_add_u32 s34, s34, %d" % (FL + 128))
    A("v_mov_b32 v20, s34")
    A("v_mov_b32 v21, 1")
    A("s_waitcnt lgkmcnt(0)")
    srd(A, SX, 16, 0, NQ)
    A("s_barrier")
    EO = [0, 64, 512, 576]
    for e in range(4):
        A("s_add_u32 s34, s11, %d" % (EO[e] * 1280))
        A("buffer_load_dwordx2 %s, v%d, s[%d:%d], s34 offen %s" % (v(8 + 2 * e, 2), t0, SX, SX + 3, GMOD))
    stamp(A, timing, 2)
    GX, GW, XU, WU, SGW, SG = 32, 44, 52, 64, 40, 44
    if GXCD:
        A("s_lshr_b32 s38, s2, 3")
        A("s_lshl_b32 s38, s38, 3")
        A("s_add_u32 s38, s38, s10")
        A("s_and_b32 s54, s2, 7")
        A("s_lshl_b32 s54, s54, 7")
        for (dst, add) in ((55, 0), (56, 160)):
            A("s_add_u32 s57, s38, %d" % add)
            A("s_lshr_b32 s58, s57, 7")
            A("s_lshl_b32 s58, s58, 10")
            A("s_and_b32 s57, s57, 127")
            A("s_add_u32 s57, s57, s58")
            A("s_add_u32 s%d, s57, s54" % dst)
        A("s_cmp_ge_u32 s38, 96")
        A("s_cselect_b32 s56, 0x100000, s56")
    else:
        A("s_lshl_b32 s38, s2, 3")
        A("s_add_u32 s55, s38, s10")
        A("s_add_u32 s56, s55, 1280")
    A("v_mul_u32_u24 v24, 20, v%d" % vLane)
    A("v_mov_b32 v25, 0")
    srd(A, SGW, 36, 0, 1280)
    srd(A, SG, 4, WS_G, 8192)
    for e in range(4):
        A("s_waitcnt vmcnt(%d)" % (3 - e))
        for cc in range(4):
            A("ds_write_b16%s v%d, v%d offset:%d" % ("_d16_hi" if cc & 1 else "", t1, 8 + 2 * e + (cc >> 1), cc * UP + EO[e] * 2))
        if e & 1:
            A("s_waitcnt lgkmcnt(0)")
            A("s_mov_b64 exec, 1")
            A("ds_add_u32 v20, v21 offset:%d" % (4 * (e >> 1)))
            A("s_mov_b64 exec, -1")
            stamp(A, timing, 1 if e == 1 else 3)
    for j in range(2):
        A("s_min_u32 s48, s%d, 2048" % (55 + j))
        A("s_mul_i32 s48, s48, 1280")
        A("buffer_load_dwordx4 %s, v24, s[%d:%d], s48 offen" % (v(GX + 6 * j, 4), SX, SX + 3))
        A("buffer_load_dword v%d, v24, s[%d:%d], s48 offen offset:16" % (GX + 6 * j + 4, SX, SX + 3))
    A("buffer_load_dwordx4 %s, v24, s[%d:%d], 0 offen" % (v(GW, 4), SGW, SGW + 3))
    A("buffer_load_dword v%d, v24, s[%d:%d], 0 offen offset:16" % (GW + 4, SGW, SGW + 3))
    A("s_setprio 0")
    A("s_waitcnt vmcnt(0)")
    for q in range(5):
        A("v_lshlrev_b32 v%d, 16, v%d" % (WU + 2 * q, GW + q))
        A("v_and_b32 v%d, 0xffff0000, v%d" % (WU + 2 * q + 1, GW + q))
    A("s_lshl_b32 s48, s55, 2")
    gate_row(A, GX, XU, WU, SG, 25, 48)
    A("s_cmp_ge_u32 s56, 2048")
    A("s_cbranch_scc1 ssm_ng")
    A("s_lshl_b32 s49, s56, 2")
    gate_row(A, GX + 6, XU, WU, SG, 25, 49)
    A.label("ssm_ng")
    dump_stamps(A, timing, 4, end, 0)
    A("s_branch %s" % end)

    A.label("ssm_main")
    A("s_lshr_b32 s%d, s%d, 1" % (sCH, sW))
    A("s_and_b32 s%d, s%d, 1" % (sHF, sW))
    P = 8
    for i in range(6): A("v_mov_b32 v%d, 0" % (P + i))
    A("s_add_u32 s10, s%d, s%d" % (sD0, sCH))
    A("s_lshl_b32 s11, s10, 8")
    A("s_lshl_b32 s34, s%d, 7" % sHF)
    A("s_add_u32 s11, s11, s34")
    A("v_lshlrev_b32 v%d, 1, v%d" % (t0, vLane))
    A("v_add_u32 v%d, s11, v%d" % (t0, t0))
    A("s_lshl_b32 s11, s%d, 1" % sD0)
    A("s_waitcnt lgkmcnt(0)")
    for i in range(6):
        A("global_load_short_d16_hi v%d, v%d, s[%d:%d]" % (P + i, t0, 18 + 2 * i, 19 + 2 * i))
    A("s_load_dwordx2 s[34:35], s[30:31], s11")
    A("s_load_dwordx2 s[40:41], s[32:33], s11")
    if B0: A("s_barrier")
    srd(A, SAT, 4, WS_AT, NQ)
    vTab = 50
    A("s_mul_i32 s42, s%d, %d" % (sW, TAB))
    A("v_lshlrev_b32 v%d, 2, v%d" % (vTab, vLane))
    A("v_add_u32 v%d, s42, v%d" % (vTab, vTab))
    A("s_waitcnt lgkmcnt(0)")
    for (src, dst) in ((34, 43), (40, 44)):
        A("s_bitcmp1_b32 s%d, 1" % sCH)
        A("s_cselect_b32 s%d, s%d, s%d" % (dst, src + 1, src))
        A("s_lshl_b32 s45, s%d, 16" % dst)
        A("s_and_b32 s%d, s%d, 0xffff0000" % (dst, dst))
        A("s_bitcmp1_b32 s%d, 0" % sCH)
        A("s_cselect_b32 s%d, s%d, s45" % (dst, dst))
    sDskip = 44
    vDT = 6
    A("v_mov_b32 v%d, s43" % vDT)
    A("v_mul_f32 v%d, 0x%x, v%d" % (vDT, f32bits(LOG2E), vDT))
    A("v_exp_f32 v%d, v%d" % (vDT, vDT))
    A("s_nop 0")
    A("v_cvt_pk_bf16_f32 v%d, v%d, v%d" % (vDT, vDT, vDT))
    A("v_and_b32 v%d, 0xffff0000, v%d" % (vDT, vDT))
    Z, E1, E2, E4, W8, E256, E512, E1024, CB = 14, 16, 18, 20, 22, 24, 26, 28, 30
    GA, GB, FA, FB, T1, T2 = 32, 34, 38, 40, 42, 44
    PK = [46, 47, 48, 49]
    A("s_waitcnt vmcnt(0)")
    stamp(A, timing, 7)
    A("v_mul_f32 v%d, v%d, v%d" % (Z, vDT, P + 0))
    A("v_mul_f32 v%d, v%d, v%d" % (Z + 1, vDT, P + 1))
    A("v_mul_f32 v%d, v%d, v%d" % (P + 2, vDT, P + 2))
    A("v_mul_f32 v%d, v%d, v%d" % (P + 3, vDT, P + 3))
    A("v_mul_f32 v%d, 0x%x, v%d" % (Z, f32bits(LOG2E), Z))
    A("v_mul_f32 v%d, 0x%x, v%d" % (Z + 1, f32bits(1.0 / (2 * math.pi)), Z + 1))
    def cmul(d, a, b, t, conj=False):
        A("v_pk_mul_f32 %s, %s, %s op_sel_hi:[0,1]" % (v(t, 2), v(b, 2), v(a, 2)))
        A("v_pk_fma_f32 %s, %s, %s, %s op_sel:[1,1,0] op_sel_hi:[1,0,1] %s:[1,0,0]" % (v(d, 2), v(b, 2), v(a, 2), v(t, 2), "neg_hi" if conj else "neg_lo"))
    def anchor(d, m):
        if m == 1:
            A("v_exp_f32 v%d, v%d" % (t0, Z))
            A("v_fract_f32 v%d, v%d" % (t1, Z + 1))
        else:
            A("v_mul_f32 v%d, %s, v%d" % (t0, "%d.0" % m if m in (2, 4) else "0x%x" % f32bits(float(m)), Z))
            A("v_mul_f32 v%d, %s, v%d" % (t1, "%d.0" % m if m in (2, 4) else "0x%x" % f32bits(float(m)), Z + 1))
            A("v_exp_f32 v%d, v%d" % (t0, t0))
            A("v_fract_f32 v%d, v%d" % (t1, t1))
        A("v_cos_f32 v%d, v%d" % (d, t1))
        A("v_sin_f32 v%d, v%d" % (d + 1, t1))
        A("s_nop 0")
        A("v_mul_f32 v%d, v%d, v%d" % (d, d, t0))
        A("v_mul_f32 v%d, v%d, v%d" % (d + 1, d + 1, t0))
    anchor(W8, 8)
    anchor(E1, 1)
    cmul(CB, P + 4, P + 2, T1)
    A("v_xor_b32 v%d, 0x80000000, v%d" % (CB + 1, CB + 1))
    anchor(E256, 256)
    anchor(E512, 512)
    anchor(E1024, 1024)
    cmul(E2, E1, E1, T1)
    cmul(E4, E2, E2, T2)
    pki = [0]
    def put(src, rows):
        pk = PK[pki[0] & 3]; pki[0] += 1
        A("v_cvt_pk_bf16_f32 v%d, v%d, v%d" % (pk, src, src + 1))
        for r in rows:
            A("ds_write_b32 v%d, v%d offset:%d" % (vTab, pk, r * 272))
    fops = []
    fops.append(lambda: (A("v_mov_b32 v%d, 0x3f80" % PK[3]), A("ds_write_b32 v%d, v%d offset:%d" % (vTab, PK[3], 32 * 272))))
    fops.append(lambda: put(W8, [33]))
    cur = W8
    fr = [FA, FB]
    for j in range(2, 32):
        d = fr[j & 1]
        fops.append((lambda d=d, cur=cur, j=j: (cmul(d, cur, W8, T1), put(d, [32 + j]))))
        cur = d
    gops = []
    def gstep(d, a, b, base):
        gops.append(lambda: (cmul(d, a, b, T2, conj=True), put(d, GROWS[base])))
    gops.append(lambda: put(CB, GROWS[0]))
    g = [GA, GB]
    prev = CB
    for k in range(1, 8):
        gstep(g[k & 1], prev, E1, k); prev = g[k & 1]
    G256, G512, G1024, G1536 = 36, 52, 54, 56
    gstep(G256, CB, E256, 256)
    prev = G256
    for k, base in enumerate((258, 260, 262, 264)):
        gstep(g[k & 1], prev, E2, base); prev = g[k & 1]
    gstep(G512, CB, E512, 512)
    gstep(GA, G512, E4, 516); gstep(GB, GA, E4, 520)
    gstep(G256, G512, E256, 768)
    gstep(GA, G256, E4, 772); gstep(GB, GA, E4, 776)
    gstep(G1024, CB, E1024, 1024)
    gstep(GA, G1024, W8, 1032)
    gstep(GB, G1024, E256, 1280); gstep(GA, GB, W8, 1288)
    gstep(G1536, G1024, E512, 1536); gstep(GA, G1536, W8, 1544)
    gstep(GB, G1536, E256, 1792); gstep(GA, GB, W8, 1800)
    n = max(len(fops), len(gops))
    for i in range(n):
        if i < len(fops): fops[i]()
        if i < len(gops): gops[i]()
    stamp(A, timing, 1)
    A("s_lshl_b32 s45, s%d, 2" % sW)
    A("s_add_u32 s45, s45, %d" % FL)
    A("v_mov_b32 v58, s45")
    A("s_xor_b32 s45, s45, 4")
    A("v_mov_b32 v59, s45")
    A("v_mov_b32 v51, 4")
    AF, BF, DK = 64, 96, 16
    A("v_and_b32 v%d, 31, v%d" % (t0, vLane))
    A("v_mul_u32_u24 v%d, 272, v%d" % (t0, t0))
    A("v_lshrrev_b32 v%d, 5, v%d" % (t1, vLane))
    A("v_lshl_add_u32 v%d, v%d, 4, v%d" % (t0, t1, t0))
    A("v_add_u32 v%d, s42, v%d" % (t0, t0))
    for t in range(8):
        A("ds_read_b128 %s, v%d offset:%d" % (v(AF + 4 * t, 4), t0, 32 * t))
        A("ds_read_b128 %s, v%d offset:%d" % (v(BF + 4 * t, 4), t0, 32 * 272 + 32 * t))
    for t in range(8):
        A("s_waitcnt lgkmcnt(%d)" % (14 - 2 * t))
        A("v_mfma_f32_32x32x16_bf16 %s, %s, %s, %s" % (v(DK, 16), v(AF + 4 * t, 4), v(BF + 4 * t, 4), "0" if t == 0 else v(DK, 16)))
    vL16 = 7
    A("v_lshlrev_b32 v%d, 4, v%d" % (vL16, vLane))
    A("v_add_u32 v%d, s42, v%d" % (t0, vL16))
    A("s_xor_b32 s45, s%d, 1" % sW)
    A("s_mul_i32 s45, s45, %d" % TAB)
    A("v_add_u32 v%d, s45, v%d" % (t1, vL16))
    A("s_mul_i32 s46, s%d, %d" % (sCH, CH))
    A("s_nop 7")
    A("s_nop 1")
    A("s_cmp_eq_u32 s%d, 0" % sHF)
    A("s_cbranch_scc0 ssm_x1")
    A("ds_write_b128 v%d, %s" % (t0, v(DK + 8, 4)))
    A("ds_write_b128 v%d, %s offset:1024" % (t0, v(DK + 12, 4)))
    A("s_branch ssm_x2")
    A.label("ssm_x1")
    A("ds_write_b128 v%d, %s" % (t0, v(DK, 4)))
    A("ds_write_b128 v%d, %s offset:1024" % (t0, v(DK + 4, 4)))
    A.label("ssm_x2")
    A("s_waitcnt lgkmcnt(0)")
    flag_set(A, 58, 51, 0)
    flag_wait(A, 59, 0, "ssm_fx")
    stamp(A, timing, 2)
    R = 32
    A("ds_read_b128 %s, v%d" % (v(R, 4), t1))
    A("ds_read_b128 %s, v%d offset:1024" % (v(R + 4, 4), t1))
    A("v_and_b32 v%d, 31, v%d" % (t2, vLane))
    A("v_lshrrev_b32 v%d, 5, v%d" % (t3, vLane))
    A("v_lshlrev_b32 v%d, 4, v%d" % (t2, t2))
    A("s_add_u32 s47, s46, %d" % (CP0 + 4080))
    A("v_sub_u32 v%d, s47, v%d" % (t2, t2))
    A("s_waitcnt lgkmcnt(0)")
    A("s_cmp_eq_u32 s%d, 0" % sHF)
    A("s_cbranch_scc0 ssm_y1")
    for r in range(8): A("v_add_f32 v%d, v%d, v%d" % (DK + r, DK + r, R + r))
    A("v_lshlrev_b32 v%d, 9, v%d" % (t3, t3))
    A("v_sub_u32 v%d, v%d, v%d" % (t2, t2, t3))
    for j in range(4): A("v_cvt_pk_bf16_f32 v%d, v%d, v%d" % (R + j, DK + 2 * j, DK + 2 * j + 1))
    A("ds_write_b128 v%d, %s" % (t2, v(R, 4)))
    A("v_mov_b32 v%d, 0" % (R + 4)); A("v_mov_b32 v%d, 0" % (R + 5)); A("v_mov_b32 v%d, 0" % (R + 6)); A("v_mov_b32 v%d, 0" % (R + 7))
    A("s_add_u32 s47, s46, %d" % (CP0 + 4096))
    A("v_add_u32 v%d, s47, v%d" % (t3, vL16))
    A("s_mov_b64 exec, 0xf")
    A("ds_write_b128 v%d, %s" % (t3, v(R + 4, 4)))
    A("s_mov_b64 exec, -1")
    A("s_branch ssm_y2")
    A.label("ssm_y1")
    for r in range(8): A("v_add_f32 v%d, v%d, v%d" % (DK + r, DK + 8 + r, R + r))
    A("v_lshlrev_b32 v%d, 9, v%d" % (R + 12, t3))
    A("v_sub_u32 v%d, v%d, v%d" % (R + 12, t2, R + 12))
    A("v_subrev_u32 v%d, 1024, v%d" % (R + 12, R + 12))
    A("v_cvt_pk_bf16_f32 v%d, v%d, v%d" % (R + 0, DK + 0, DK + 0))
    A("v_cvt_pk_bf16_f32 v%d, v%d, v%d" % (R + 1, DK + 1, DK + 1))
    A("v_cvt_pk_bf16_f32 v%d, v%d, v%d" % (R + 2, DK + 1, DK + 2))
    A("v_cvt_pk_bf16_f32 v%d, v%d, v%d" % (R + 3, DK + 2, DK + 2))
    A("ds_write_b128 v%d, %s" % (R + 12, v(R, 4)))
    A("v_lshlrev_b32 v%d, 10, v%d" % (R + 13, t3))
    A("v_sub_u32 v%d, v%d, v%d" % (R + 13, t2, R + 13))
    A("v_subrev_u32 v%d, 2560, v%d" % (R + 13, R + 13))
    A("v_and_b32 v%d, 1, v%d" % (R + 14, vLane))
    A("v_cmp_eq_u32 vcc, 1, v%d" % (R + 14))
    A("s_nop 1")
    for k in range(2):
        K8, K0 = DK + 4 + 2 * k, DK + 5 + 2 * k
        o = R + 4 + 4 * k
        A("v_cndmask_b32 v%d, v%d, v%d, vcc" % (R + 15, K0, K8))
        A("v_cvt_pk_bf16_f32 v%d, v%d, v%d" % (o + 0, K8, K8))
        A("v_cvt_pk_bf16_f32 v%d, v%d, v%d" % (o + 1, K8, R + 15))
        A("v_cvt_pk_bf16_f32 v%d, v%d, v%d" % (o + 2, K0, K0))
        A("v_mov_b32 v%d, v%d" % (o + 3, o + 2))
    A("ds_write_b128 v%d, %s offset:512" % (R + 13, v(R + 4, 4)))
    A("ds_write_b128 v%d, %s" % (R + 13, v(R + 8, 4)))
    A.label("ssm_y2")
    A("s_waitcnt lgkmcnt(0)")
    flag_set(A, 58, 51, 32)
    flag_wait(A, 59, 32, "ssm_fd")
    stamp(A, timing, 3)
    A("s_lshl_b32 s47, s%d, 11" % sHF)
    A("s_add_u32 s47, s47, s46")
    A("s_add_u32 s47, s47, %d" % CP0)
    A("v_add_u32 v%d, s47, v%d" % (t0, vL16))
    for it in range(2):
        d = 32 + 8 * it
        A("ds_read_b128 %s, v%d offset:%d" % (v(d, 4), t0, it * 1024))
        A("ds_read_b64 %s, v%d offset:%d" % (v(d + 4, 2), t0, it * 1024 + 16))
    A("v_lshrrev_b32 v%d, 2, v%d" % (t1, vLane))
    A("v_mul_u32_u24 v%d, %d, v%d" % (t1, CPS, t1))
    A("v_and_b32 v%d, 3, v%d" % (t2, vLane))
    A("v_lshl_add_u32 v%d, v%d, 4, v%d" % (t1, t2, t1))
    A("s_add_u32 s47, s46, %d" % (CP0 + CPS + 4096))
    A("v_add_u32 v%d, s47, v%d" % (t1, t1))
    for r in range(4): A("v_mov_b32 v%d, 0" % (60 + r))
    A("s_cmp_eq_u32 s%d, 0" % sHF)
    A("s_cbranch_scc0 ssm_z1")
    A("s_mov_b64 exec, 0xfff")
    A("ds_write_b128 v%d, v[60:63]" % t1)
    A("s_mov_b64 exec, -1")
    A.label("ssm_z1")
    A("v_add_u32 v64, %d, v%d" % (2 * CPS, t0))
    A("v_add_u32 v65, %d, v%d" % (2 * CPS + 1024, t0))
    A("s_waitcnt lgkmcnt(0)")
    for it in range(2):
        d = 32 + 8 * it; e = 48 + 8 * it
        for i in range(4): A("v_alignbit_b32 v%d, v%d, v%d, 16" % (e + i, d + i + 1, d + i))
        for i in range(4): A("v_alignbit_b32 v%d, v%d, v%d, 16" % (e + 4 + i, d + i + 2, d + i + 1))
        A("ds_write_b128 v%d, %s offset:%d" % (t0, v(e, 4), it * 1024 + CPS))
        A("ds_write2_b32 v%d, v%d, v%d offset0:0 offset1:1" % (64 + it, d + 1, d + 2))
        A("ds_write2_b32 v%d, v%d, v%d offset0:2 offset1:3" % (64 + it, d + 3, d + 4))
        A("ds_write_b128 v%d, %s offset:%d" % (t0, v(e + 4, 4), it * 1024 + 3 * CPS))
    AF, BF, DC = 32, 64, 96
    vAlo, vAhi, vB = 8, 9, 10
    A("v_and_b32 v%d, 3, v%d" % (t1, vLane))
    A("v_sub_u32 v%d, 3, v%d" % (t1, t1))
    A("v_mul_u32_u24 v%d, %d, v%d" % (vAlo, CPS, t1))
    A("v_bfe_u32 v%d, v%d, 2, 2" % (t1, vLane))
    A("v_lshrrev_b32 v%d, 4, v%d" % (t2, vLane))
    A("v_lshlrev_b32 v%d, 1, v%d" % (t3, t2))
    A("v_sub_u32 v%d, v%d, v%d" % (t3, t3, t1))
    A("v_lshl_add_u32 v%d, v%d, 3, v%d" % (vAlo, t3, vAlo))
    A("s_lshl_b32 s47, s%d, 8" % sHF)
    A("s_sub_u32 s48, s46, s47")
    A("s_add_u32 s48, s48, %d" % (CP0 + 8 * 507 - 3584))
    A("v_add_u32 v%d, s48, v%d" % (vAlo, vAlo))
    A("v_add_u32 v%d, 2048, v%d" % (vAhi, vAlo))
    A("v_and_b32 v%d, 15, v%d" % (t1, vLane))
    A("v_lshlrev_b32 v%d, 5, v%d" % (vB, t1))
    A("v_lshl_add_u32 v%d, v%d, 4, v%d" % (vB, t2, vB))
    A("s_mul_i32 s48, s%d, %d" % (sCH, UP))
    A("s_add_u32 s48, s48, %d" % (UB + 448))
    A("s_sub_u32 s49, s48, s47")
    A("v_add_u32 v%d, s49, v%d" % (vB, vB))
    vU, vO = 11, 12
    A("v_lshlrev_b32 v%d, 5, v%d" % (vO, t1))
    A("v_lshl_add_u32 v%d, v%d, 3, v%d" % (vO, t2, vO))
    A("s_lshl_b32 s47, s%d, 11" % sHF)
    A("s_add_u32 s49, s48, s47")
    A("s_add_u32 s49, s49, 32")
    A("v_add_u32 v%d, s49, v%d" % (vU, vO))
    A("s_add_u32 s10, s%d, s%d" % (sD0, sCH))
    A("s_lshl_b32 s10, s10, 12")
    A("s_add_u32 s10, s10, s47")
    A("s_add_u32 s47, s46, %d" % EX2)
    A("s_lshl_b32 s48, s%d, 12" % sHF)
    A("s_add_u32 s49, s47, s48")
    A("v_add_u32 v%d, s49, v%d" % (13, vL16))
    A("s_xor_b32 s48, s48, 4096")
    A("s_add_u32 s49, s47, s48")
    A("v_add_u32 v%d, s49, v%d" % (14, vL16))
    vFo, vFp, vFc, vFu, vF4 = 16, 17, 18, 19, 20
    A("s_lshl_b32 s45, s%d, 2" % sW)
    A("s_add_u32 s45, s45, %d" % FL)
    A("v_mov_b32 v%d, s45" % vFo)
    A("s_xor_b32 s45, s45, 4")
    A("v_mov_b32 v%d, s45" % vFp)
    A("v_mov_b32 v%d, 4" % vF4)
    A("v_mov_b32 v%d, %d" % (vFu, FL + 128))
    A("v_add_u32 v%d, 64, v%d" % (vFc, vFp))
    A("s_mov_b32 s45, %d" % (FL + 128))
    A("v_writelane_b32 v%d, s45, 1" % vFc)
    A("s_mov_b32 s45, %d" % (FL + 132))
    A("v_writelane_b32 v%d, s45, 2" % vFc)
    A("v_subrev_u32 v%d, 192, v%d" % (vAlo, vAlo))
    A("v_subrev_u32 v%d, 192, v%d" % (vB, vB))
    A("s_waitcnt lgkmcnt(0)")
    flag_set(A, vFo, vF4, 64)
    stamp(A, timing, 8)
    conv_phases(A, timing, vAlo, vB, AF, BF, DC, vFc, vFu)
    stamp(A, timing, 5)
    A("s_nop 7")
    A("s_cmp_eq_u32 s%d, 0" % sHF)
    A("s_cbranch_scc0 ssm_w1")
    for k in range(4): A("ds_write_b128 v13, %s offset:%d" % (v(DC + 16 + 4 * k, 4), 1024 * k))
    A("s_branch ssm_w2")
    A.label("ssm_w1")
    for k in range(4): A("ds_write_b128 v13, %s offset:%d" % (v(DC + 4 * k, 4), 1024 * k))
    A.label("ssm_w2")
    U = 32
    for k in range(4): A("ds_read_b64 %s, v%d offset:%d" % (v(U + 2 * k, 2), vU, 512 * k))
    A("s_waitcnt lgkmcnt(0)")
    flag_set(A, vFo, vF4, 96)
    flag_wait(A, vFp, 96, "ssm_fe")
    R = 64
    for k in range(4): A("ds_read_b128 %s, v14 offset:%d" % (v(R + 4 * k, 4), 1024 * k))
    UF = 40
    for k in range(8):
        A("v_lshlrev_b32 v%d, 16, v%d" % (UF + 2 * k, U + k))
        A("v_and_b32 v%d, 0xffff0000, v%d" % (UF + 2 * k + 1, U + k))
    for r in range(16): A("v_mul_f32 v%d, s%d, v%d" % (UF + r, sDskip, UF + r))
    for k in range(8): A("v_cvt_pk_bf16_f32 v%d, v%d, v%d" % (U + k, UF + 2 * k, UF + 2 * k + 1))
    for k in range(8):
        A("v_lshlrev_b32 v%d, 16, v%d" % (UF + 2 * k, U + k))
        A("v_and_b32 v%d, 0xffff0000, v%d" % (UF + 2 * k + 1, U + k))
    A("s_waitcnt lgkmcnt(0)")
    A("s_cmp_eq_u32 s%d, 0" % sHF)
    A("s_cbranch_scc0 ssm_v1")
    for r in range(16): A("v_add_f32 v%d, v%d, v%d" % (DC + r, DC + r, R + r))
    A("s_branch ssm_v2")
    A.label("ssm_v1")
    for r in range(16): A("v_add_f32 v%d, v%d, v%d" % (DC + r, DC + 16 + r, R + r))
    A.label("ssm_v2")
    for k in range(8): A("v_cvt_pk_bf16_f32 v%d, v%d, v%d" % (U + k, DC + 2 * k, DC + 2 * k + 1))
    for k in range(8):
        A("v_lshlrev_b32 v%d, 16, v%d" % (DC + 2 * k, U + k))
        A("v_and_b32 v%d, 0xffff0000, v%d" % (DC + 2 * k + 1, U + k))
    for r in range(16): A("v_add_f32 v%d, v%d, v%d" % (DC + r, DC + r, UF + r))
    for k in range(8): A("v_cvt_pk_bf16_f32 v%d, v%d, v%d" % (U + k, DC + 2 * k, DC + 2 * k + 1))
    for k in range(4):
        A("buffer_store_dwordx2 %s, v%d, s[%d:%d], s10 offen offset:%d" % (v(U + 2 * k, 2), vO, SAT, SAT + 3, 512 * k))
    stamp(A, timing, 6)
    dump_stamps(A, timing, 11, end, 0)
    A("s_branch %s" % end)

SSM2 = False
SSM3 = True
RS = 2056
NGR = 29
FBASE = NGR * RS
UB2 = 125440
UCH, UCB = 9120, 4576
KB2 = 16 * RS
KCH, CPS2 = 8448, 4224
EX3 = 69632
DROW = [7, 6, 5, 4, 264, 262, 260, 260, 3, 2, 1, 0, 260, 258, 256, 256, 520, 516, 512, -1, 776, 772, 768, 255, 1032, 1024, 1288, 1280, 1544, 1536, 1800, 1792]
SROWMAP = {7: 6, 12: 6, 15: 14, 29: 7, 30: 12, 31: 15}
SROW = {}
for r_, b_ in enumerate(DROW): SROW.setdefault(b_, SROWMAP.get(r_, r_))
PIPE = True
QST = False
NOSSM = False
NOQ = False

def role_ssm2(A, end, timing):
    t0, t1, t2, t3 = 2, 3, 4, 5
    sD0, sCH, sHF = 7, 8, 9
    SX, SAT = 12, 36
    A("s_load_dwordx16 s[16:31], s[0:1], 0")
    A("s_load_dwordx2 s[32:33], s[0:1], 64")
    A("s_load_dwordx2 s[4:5], s[0:1], 136")
    A("s_and_b32 s10, s2, 7")
    A("s_mul_i32 s10, s10, 20")
    A("s_lshr_b32 s11, s2, 3")
    A("s_add_u32 s10, s10, s11")
    A("s_lshl_b32 s%d, s10, 2" % sD0)
    A("s_cmp_lt_u32 s%d, 8" % sW)
    A("s_cbranch_scc1 ssm_main")
    if LPRIO: A("s_setprio %d" % LPRIO)
    A("s_load_dwordx2 s[36:37], s[0:1], 112")
    A("s_sub_u32 s10, s%d, 8" % sW)
    A("v_mul_u32_u24 v%d, 2560, v%d" % (t0, vLane))
    A("s_mul_i32 s11, s10, %d" % (128 * 1280))
    A("s_lshl_b32 s34, s%d, 1" % sD0)
    A("s_add_u32 s11, s11, s34")
    A("s_add_u32 s35, s11, %d" % (1024 * 1280))
    GX, GW, XU, WU, SGW, SG = 32, 44, 52, 64, 40, 44
    A("s_lshl_b32 s38, s2, 3")
    A("s_add_u32 s38, s38, s10")
    A("s_mul_i32 s39, s38, 1280")
    A("s_add_u32 s48, s39, %d" % (1280 * 1280))
    A("v_mul_u32_u24 v24, 20, v%d" % vLane)
    A("v_mov_b32 v25, 0")
    A("s_waitcnt lgkmcnt(0)")
    srd(A, SX, 16, 0, NQ)
    srd(A, SGW, 36, 0, 1280)
    srd(A, SG, 4, WS_G, 8192)
    if B0: A("s_barrier")
    for e in range(2):
        A("buffer_load_dwordx2 %s, v%d, s[%d:%d], s11 offen offset:%d %s" % (v(8 + 2 * e, 2), t0, SX, SX + 3, 1280 * e, GMOD))
    for j in range(2):
        A("buffer_load_dwordx4 %s, v24, s[%d:%d], s%d offen" % (v(GX + 6 * j, 4), SX, SX + 3, 48 if j else 39))
        A("buffer_load_dword v%d, v24, s[%d:%d], s%d offen offset:16" % (GX + 6 * j + 4, SX, SX + 3, 48 if j else 39))
    A("buffer_load_dwordx4 %s, v24, s[%d:%d], 0 offen" % (v(GW, 4), SGW, SGW + 3))
    A("buffer_load_dword v%d, v24, s[%d:%d], 0 offen offset:16" % (GW + 4, SGW, SGW + 3))
    for e in range(2):
        A("buffer_load_dwordx2 %s, v%d, s[%d:%d], s35 offen offset:%d %s" % (v(12 + 2 * e, 2), t0, SX, SX + 3, 1280 * e, GMOD))
    A("v_mov_b32 v16, 0"); A("v_mov_b32 v17, 0"); A("v_mov_b32 v18, 0"); A("v_mov_b32 v19, 0")
    A("s_lshr_b32 s34, s10, 1")
    A("s_mul_i32 s34, s34, %d" % UCH)
    A("s_and_b32 s50, s10, 1")
    A("s_mul_i32 s50, s50, %d" % UCB)
    A("s_add_u32 s34, s34, s50")
    A("s_add_u32 s34, s34, %d" % UB2)
    A("v_lshlrev_b32 v%d, 4, v%d" % (t1, vLane))
    A("v_add_u32 v%d, s34, v%d" % (t1, t1))
    A("s_mov_b32 exec_lo, 0x1fffffff")
    A("s_mov_b32 exec_hi, 0")
    A("ds_write_b128 v%d, v[16:19]" % t1)
    A("s_mov_b64 exec, -1")
    A("s_lshl_b32 s34, s10, 8")
    A("s_add_u32 s34, s34, %d" % (UB2 + 452))
    A("v_lshlrev_b32 v%d, 2, v%d" % (t1, vLane))
    A("v_add_u32 v%d, s34, v%d" % (t1, t1))
    A("s_mov_b32 s52, 0x05040100")
    A("s_mov_b32 s53, 0x07060302")
    A("s_waitcnt lgkmcnt(0)")
    A("s_barrier")
    def uwrite(q):
        r = 8 + 4 * q
        for c in range(4):
            A("v_perm_b32 v%d, v%d, v%d, s%d" % (16 + c, r + 2 + (c >> 1), r + (c >> 1), 52 + (c & 1)))
        for c in range(4):
            A("ds_write_b32 v%d, v%d offset:%d" % (t1, 16 + c, 2048 * q + c * UCH))
            A("ds_write_b32 v%d, v%d offset:%d" % (t1, 16 + c, 2048 * q + c * UCH + 4572))
        A("s_waitcnt lgkmcnt(0)")
    A("s_waitcnt vmcnt(8)")
    uwrite(0)
    stamp(A, timing, 1)
    A("s_barrier")
    A("s_setprio 0")
    A("s_waitcnt vmcnt(2)")
    for q in range(5):
        A("v_lshlrev_b32 v%d, 16, v%d" % (WU + 2 * q, GW + q))
        A("v_and_b32 v%d, 0xffff0000, v%d" % (WU + 2 * q + 1, GW + q))
    A("s_lshl_b32 s48, s38, 2")
    gate_row(A, GX, XU, WU, SG, 25, 48)
    A("s_add_u32 s49, s48, %d" % (1280 * 4))
    gate_row(A, GX + 6, XU, WU, SG, 25, 49)
    if LPRIO: A("s_setprio %d" % LPRIO)
    stamp(A, timing, 2)
    A("s_waitcnt vmcnt(2)")
    uwrite(1)
    stamp(A, timing, 3)
    A("s_barrier")
    dump_stamps(A, timing, 4, end, 0)
    A("s_branch %s" % end)

    A.label("ssm_main")
    A("s_lshr_b32 s%d, s%d, 1" % (sCH, sW))
    A("s_and_b32 s%d, s%d, 1" % (sHF, sW))
    P = 8
    for i in range(6): A("v_mov_b32 v%d, 0" % (P + i))
    A("s_add_u32 s10, s%d, s%d" % (sD0, sCH))
    A("s_lshl_b32 s11, s10, 8")
    A("s_lshl_b32 s34, s%d, 7" % sHF)
    A("s_add_u32 s11, s11, s34")
    A("v_lshlrev_b32 v%d, 1, v%d" % (t0, vLane))
    A("v_add_u32 v%d, s11, v%d" % (t0, t0))
    A("s_lshl_b32 s11, s%d, 1" % sD0)
    A("s_waitcnt lgkmcnt(0)")
    for i in range(6):
        A("global_load_short_d16_hi v%d, v%d, s[%d:%d]" % (P + i, t0, 18 + 2 * i, 19 + 2 * i))
    A("s_load_dwordx2 s[34:35], s[30:31], s11")
    A("s_load_dwordx2 s[40:41], s[32:33], s11")
    if B0: A("s_barrier")
    srd(A, SAT, 4, WS_AT, NQ)
    vL16 = 7
    vGA, vFA = 58, 59
    vXS, vXR = 60, 61
    vXS1, vXR1 = 62, 63
    vKW = 120
    vA, vB, vU, vO, vES, vER = 121, 122, 123, 124, 125, 126
    sMG, sMF = 42, 43
    A("s_lshl_b32 s%d, s%d, 8" % (sMG, sW))
    A("s_add_u32 s%d, s%d, %d" % (sMF, sMG, FBASE))
    A("v_lshlrev_b32 v%d, 4, v%d" % (vL16, vLane))
    A("v_and_b32 v%d, 31, v%d" % (t1, vLane))
    A("v_lshrrev_b32 v%d, 5, v%d" % (t2, vLane))
    A("v_mul_u32_u24 v%d, %d, v%d" % (vFA, RS, t1))
    A("v_mov_b32 v%d, v%d" % (t3, t1))
    for r_, s_ in sorted(SROWMAP.items()):
        A("v_writelane_b32 v%d, %d, %d" % (t3, s_, r_))
        A("v_writelane_b32 v%d, %d, %d" % (t3, s_, r_ + 32))
    A("v_mul_u32_u24 v%d, %d, v%d" % (vGA, RS, t3))
    A("v_lshl_add_u32 v%d, v%d, 4, v%d" % (vGA, t2, vGA))
    A("v_add_u32 v%d, s%d, v%d" % (vGA, sMG, vGA))
    A("v_lshl_add_u32 v%d, v%d, 4, v%d" % (vFA, t2, vFA))
    A("v_add_u32 v%d, s%d, v%d" % (vFA, sMF, vFA))
    A("v_lshrrev_b32 v%d, 4, v%d" % (t3, vLane))
    A("v_mul_u32_u24 v%d, %d, v%d" % (vXS, 2 * RS, t3))
    A("v_and_b32 v%d, 15, v%d" % (t0, vLane))
    A("v_lshl_add_u32 v%d, v%d, 4, v%d" % (vXS, t0, vXS))
    A("s_xor_b32 s45, s%d, 256" % sMG)
    A("v_add_u32 v%d, s45, v%d" % (vXR, vXS))
    A("v_add_u32 v%d, s%d, v%d" % (vXS, sMG, vXS))
    A("v_lshlrev_b32 v%d, 2, v%d" % (vXS1, vLane))
    A("v_add_u32 v%d, %d, v%d" % (vXS1, RS, vXS1))
    A("v_add_u32 v%d, s45, v%d" % (vXR1, vXS1))
    A("v_add_u32 v%d, s%d, v%d" % (vXS1, sMG, vXS1))
    A("s_mul_i32 s46, s%d, %d" % (sCH, KCH))
    A("s_add_u32 s46, s46, %d" % KB2)
    A("s_add_u32 s47, s46, 4080")
    A("v_lshlrev_b32 v%d, 4, v%d" % (vKW, t1))
    A("v_sub_u32 v%d, s47, v%d" % (vKW, vKW))
    A("s_mov_b32 s52, 0"); A("s_mov_b32 s53, -1")
    A("s_mov_b32 s54, 1"); A("s_mov_b32 s55, 1")
    A("s_mov_b32 s56, 0xaaaaaaaa"); A("s_mov_b32 s57, 0xaaaaaaaa")
    A("v_and_b32 v%d, 1, v%d" % (vA, t0))
    A("v_xor_b32 v%d, 1, v%d" % (vA, vA))
    A("v_mul_u32_u24 v%d, %d, v%d" % (vA, CPS2, vA))
    A("v_lshrrev_b32 v%d, 1, v%d" % (vB, t0))
    A("v_lshlrev_b32 v%d, 3, v%d" % (vU, vB))
    A("v_sub_u32 v%d, v%d, v%d" % (vA, vA, vU))
    A("v_lshl_add_u32 v%d, v%d, 4, v%d" % (vA, t3, vA))
    A("s_lshl_b32 s47, s%d, 8" % sHF)
    A("s_sub_u32 s48, s46, s47")
    A("s_add_u32 s48, s48, %d" % (4088 - 3584 - 192))
    A("v_add_u32 v%d, s48, v%d" % (vA, vA))
    A("v_lshlrev_b32 v%d, 6, v%d" % (vO, vB))
    A("v_lshl_add_u32 v%d, v%d, 4, v%d" % (vO, t3, vO))
    A("v_and_b32 v%d, 1, v%d" % (vU, t0))
    A("v_mul_u32_u24 v%d, %d, v%d" % (vB, UCB, vU))
    A("v_add_u32 v%d, v%d, v%d" % (vB, vB, vO))
    A("s_mul_i32 s48, s%d, %d" % (sCH, UCH))
    A("s_add_u32 s48, s48, %d" % (UB2 + 448))
    A("s_sub_u32 s49, s48, s47")
    A("s_sub_u32 s49, s49, 192")
    A("v_add_u32 v%d, s49, v%d" % (vB, vB))
    A("v_lshl_add_u32 v%d, v%d, 2, v%d" % (vO, vU, vO))
    A("s_lshl_b32 s47, s%d, 11" % sHF)
    A("s_add_u32 s49, s48, s47")
    A("s_add_u32 s49, s49, %d" % UCB)
    A("v_add_u32 v%d, s49, v%d" % (vU, vO))
    A("s_add_u32 s50, s%d, s%d" % (sD0, sCH))
    A("s_lshl_b32 s50, s50, 12")
    A("s_add_u32 s50, s50, s47")
    sOut = 50
    A("s_lshl_b32 s48, s%d, 12" % sW)
    A("s_add_u32 s49, s48, %d" % EX3)
    A("v_add_u32 v%d, s49, v%d" % (vES, vL16))
    A("s_xor_b32 s49, s49, 4096")
    A("v_add_u32 v%d, s49, v%d" % (vER, vL16))
    A("s_waitcnt lgkmcnt(0)")
    for (src, dst) in ((34, 58), (40, 44)):
        A("s_bitcmp1_b32 s%d, 1" % sCH)
        A("s_cselect_b32 s%d, s%d, s%d" % (dst, src + 1, src))
        A("s_lshl_b32 s45, s%d, 16" % dst)
        A("s_and_b32 s%d, s%d, 0xffff0000" % (dst, dst))
        A("s_bitcmp1_b32 s%d, 0" % sCH)
        A("s_cselect_b32 s%d, s%d, s45" % (dst, dst))
    sDskip = 44
    vDT = 6
    A("v_mov_b32 v%d, s58" % vDT)
    A("v_mul_f32 v%d, 0x%x, v%d" % (vDT, f32bits(LOG2E), vDT))
    A("v_exp_f32 v%d, v%d" % (vDT, vDT))
    A("s_mov_b32 m0, s%d" % sMF)
    A("v_cvt_pk_bf16_f32 v%d, v%d, v%d" % (vDT, vDT, vDT))
    A("v_and_b32 v%d, 0xffff0000, v%d" % (vDT, vDT))
    Z, E1, E2, E4, W8, E256, E512, E1024, CB, EM1, W16 = 14, 16, 18, 20, 22, 24, 26, 28, 30, 64, 66
    GA, GB, T1, T2 = 32, 34, 42, 44
    FR = [38, 40, 68, 70]
    G256, G512, G1024, G1536 = 36, 52, 54, 56
    PK = [46, 47, 48, 49]
    A("v_mov_b32 v%d, 0x3f80" % PK[3])
    A("ds_write_addtid_b32 v%d offset:0" % PK[3])
    A("s_waitcnt vmcnt(0)")
    stamp(A, timing, 7)
    A("v_mul_f32 v%d, v%d, v%d" % (Z, vDT, P + 0))
    A("v_mul_f32 v%d, v%d, v%d" % (Z + 1, vDT, P + 1))
    A("v_mul_f32 v%d, v%d, v%d" % (P + 2, vDT, P + 2))
    A("v_mul_f32 v%d, v%d, v%d" % (P + 3, vDT, P + 3))
    A("v_mul_f32 v%d, 0x%x, v%d" % (Z, f32bits(LOG2E), Z))
    A("v_mul_f32 v%d, 0x%x, v%d" % (Z + 1, f32bits(1.0 / (2 * math.pi)), Z + 1))
    def cmul(d, a, b, t, conj=False):
        A("v_pk_mul_f32 %s, %s, %s op_sel_hi:[0,1]" % (v(t, 2), v(b, 2), v(a, 2)))
        A("v_pk_fma_f32 %s, %s, %s, %s op_sel:[1,1,0] op_sel_hi:[1,0,1] %s:[1,0,0]" % (v(d, 2), v(b, 2), v(a, 2), v(t, 2), "neg_hi" if conj else "neg_lo"))
    A("v_exp_f32 v%d, v%d" % (t0, Z))
    A("v_fract_f32 v%d, v%d" % (t1, Z + 1))
    A("v_exp_f32 v%d, -v%d" % (t2, Z))
    A("v_cos_f32 v%d, v%d" % (E1, t1))
    A("v_sin_f32 v%d, v%d" % (E1 + 1, t1))
    A("v_mul_f32 v%d, 0x%x, v%d" % (Z, f32bits(256.0), Z))
    A("v_mul_f32 v%d, 0x%x, v%d" % (Z + 1, f32bits(256.0), Z + 1))
    A("v_mul_f32 v%d, v%d, v%d" % (EM1, E1, t2))
    A("v_mul_f32 v%d, -v%d, v%d" % (EM1 + 1, E1 + 1, t2))
    A("v_mul_f32 v%d, v%d, v%d" % (E1, E1, t0))
    A("v_mul_f32 v%d, v%d, v%d" % (E1 + 1, E1 + 1, t0))
    A("v_exp_f32 v%d, v%d" % (t0, Z))
    A("v_fract_f32 v%d, v%d" % (t1, Z + 1))
    cmul(E2, E1, E1, T1)
    A("v_cos_f32 v%d, v%d" % (E256, t1))
    A("v_sin_f32 v%d, v%d" % (E256 + 1, t1))
    cmul(E4, E2, E2, T1)
    cmul(CB, P + 4, P + 2, T2)
    cmul(W8, E4, E4, T1)
    A("v_xor_b32 v%d, 0x80000000, v%d" % (CB + 1, CB + 1))
    A("v_mul_f32 v%d, v%d, v%d" % (E256, E256, t0))
    A("v_mul_f32 v%d, v%d, v%d" % (E256 + 1, E256 + 1, t0))
    cmul(W16, W8, W8, T1)
    cmul(E512, E256, E256, T2)
    cmul(E1024, E512, E512, T2)
    fitems = [(None, W8, 1), (None, W16, 2)]
    regs = {1: W8, 2: W16}
    for j in range(3, 32):
        d = FR[j & 3]
        fitems.append(((lambda d=d, s=regs[j - 2]: cmul(d, s, W16, T1)), d, j))
        regs[j] = d
    gitems = []
    def gstep(d, a, b, base):
        gitems.append(((lambda: cmul(d, a, b, T2, conj=True)), d, SROW[base]))
    gitems.append((None, CB, SROW[0]))
    g = [GA, GB]
    gstep(G256, CB, E256, 256)
    prev = CB
    for k in range(1, 8):
        gstep(g[k & 1], prev, E1, k); prev = g[k & 1]
    gstep(GA, CB, EM1, -1)
    gstep(GB, G256, EM1, 255)
    gstep(G512, CB, E512, 512)
    prev = G256
    for k, base in enumerate((258, 260, 262, 264)):
        gstep(g[k & 1], prev, E2, base); prev = g[k & 1]
    gstep(G1024, CB, E1024, 1024)
    gstep(GA, G512, E4, 516); gstep(GB, GA, E4, 520)
    gstep(G256, G512, E256, 768)
    gstep(GA, G256, E4, 772); gstep(GB, GA, E4, 776)
    gstep(GA, G1024, W8, 1032)
    gstep(GB, G1024, E256, 1280); gstep(GA, GB, W8, 1288)
    gstep(G1536, G1024, E512, 1536); gstep(GA, G1536, W8, 1544)
    gstep(GB, G1536, E256, 1792); gstep(GA, GB, W8, 1800)
    assert len(gitems) == NGR and len(fitems) == 31
    cur_m0 = ["F"]
    def setm0(x):
        if cur_m0[0] != x:
            A("s_mov_b32 m0, s%d" % (sMF if x == "F" else sMG)); cur_m0[0] = x
            return True
        return False
    rnd = 0
    fi = gi = 0
    while fi < len(fitems) or gi < len(gitems):
        fs = fitems[fi:fi + 2]; gs = gitems[gi:gi + 2]; fi += 2; gi += 2
        out = []
        seq = []
        for k in range(2):
            if k < len(fs): seq.append(("F", fs[k]))
            if k < len(gs): seq.append(("G", gs[k]))
        for n_, (kind, (fn, src, row)) in enumerate(seq):
            if fn: fn()
            A("v_cvt_pk_bf16_f32 v%d, v%d, v%d" % (PK[n_], src, src + 1))
            out.append((kind, PK[n_], row))
        order = ["F", "G"] if cur_m0[0] == "F" else ["G", "F"]
        for kind in order:
            ws = [o for o in out if o[0] == kind]
            if not ws: continue
            if setm0(kind): A("s_nop 0")
            for (_, pk, row) in ws:
                A("ds_write_addtid_b32 v%d offset:%d" % (pk, row * RS))
    stamp(A, timing, 1)
    AF, BF, DK = 64, 80, 16
    A("s_waitcnt lgkmcnt(0)")
    rd = []
    for t in range(8):
        for h in range(2): rd.append("ds_read_b64 %s, v%d offset:%d" % (v(AF + 4 * (t & 3) + 2 * h, 2), vGA, 32 * t + 8 * h))
        for h in range(2): rd.append("ds_read_b64 %s, v%d offset:%d" % (v(BF + 4 * (t & 3) + 2 * h, 2), vFA, 32 * t + 8 * h))
    for x in rd[:16]: A(x)
    issued = 16
    for t in range(8):
        need = 4 * (t + 1)
        A("s_waitcnt lgkmcnt(%d)" % (issued - need))
        A("v_mfma_f32_32x32x16_bf16 %s, %s, %s, %s" % (v(DK, 16), v(AF + 4 * (t & 3), 4), v(BF + 4 * (t & 3), 4), "0" if t == 0 else v(DK, 16)))
        for x in rd[issued:issued + 4]: A(x)
        issued = min(32, issued + 4)
    A("s_nop 7")
    A("s_nop 3")
    A("s_cmp_eq_u32 s%d, 0" % sHF)
    A("s_cbranch_scc0 ssm_x1")
    A("ds_write_b128 v%d, %s" % (vXS, v(DK + 8, 4)))
    A("ds_write_b128 v%d, %s offset:%d" % (vXS, v(DK + 12, 4), 8 * RS))
    A("s_branch ssm_x2")
    A.label("ssm_x1")
    A("ds_write_b128 v%d, %s" % (vXS, v(DK, 4)))
    A("ds_write_b128 v%d, %s offset:%d" % (vXS, v(DK + 4, 4), 8 * RS))
    A("ds_write_b32 v%d, v%d" % (vXS1, DK + 11))
    A.label("ssm_x2")
    A("s_waitcnt lgkmcnt(0)")
    A("s_barrier")
    stamp(A, timing, 2)
    R = 32
    A("ds_read_b128 %s, v%d" % (v(R, 4), vXR))
    A("ds_read_b128 %s, v%d offset:%d" % (v(R + 4, 4), vXR, 8 * RS))
    A("v_lshrrev_b32 v%d, 5, v%d" % (t3, vLane))
    A("s_cmp_eq_u32 s%d, 0" % sHF)
    A("s_cbranch_scc0 ssm_y1")
    A("ds_read_b32 v%d, v%d" % (R + 8, vXR1))
    A("v_lshlrev_b32 v%d, 9, v%d" % (t3, t3))
    A("v_sub_u32 v%d, v%d, v%d" % (t2, vKW, t3))
    A("v_lshrrev_b32 v%d, 2, v%d" % (t0, vLane))
    A("v_mul_u32_u24 v%d, %d, v%d" % (t0, CPS2, t0))
    A("v_and_b32 v%d, 3, v%d" % (t1, vLane))
    A("v_lshl_add_u32 v%d, v%d, 4, v%d" % (t0, t1, t0))
    A("s_add_u32 s47, s46, 4096")
    A("v_add_u32 v%d, s47, v%d" % (t0, t0))
    for r in range(4): A("v_mov_b32 v%d, 0" % (R + 12 + r))
    A("s_mov_b64 exec, 0xff")
    A("ds_write_b128 v%d, %s" % (t0, v(R + 12, 4)))
    A("s_mov_b64 exec, -1")
    A("s_waitcnt lgkmcnt(1)")
    for r in range(8): A("v_add_f32 v%d, v%d, v%d" % (DK + r, DK + r, R + r))
    A("v_add_f32 v%d, v%d, v%d" % (DK + 11, DK + 11, R + 8))
    for j in range(4): A("v_cvt_pk_bf16_f32 v%d, v%d, v%d" % (R + j, DK + 2 * j, DK + 2 * j + 1))
    A("ds_write_b128 v%d, %s" % (t2, v(R, 4)))
    A("v_cndmask_b32 v%d, v%d, v%d, s[52:53]" % (R + 9, DK + 11, DK + 7))
    A("v_cndmask_b32 v%d, 0, v%d, s[52:53]" % (R + 10, DK + 11))
    A("v_cndmask_b32 v%d, v%d, v%d, s[54:55]" % (R + 9, R + 9, R + 10))
    for j in range(3): A("v_cvt_pk_bf16_f32 v%d, v%d, v%d" % (R + 4 + j, DK + 2 * j + 1, DK + 2 * j + 2))
    A("v_cvt_pk_bf16_f32 v%d, v%d, v%d" % (R + 7, DK + 7, R + 9))
    A("ds_write_b128 v%d, %s offset:%d" % (t2, v(R + 4, 4), CPS2))
    A("s_branch ssm_y2")
    A.label("ssm_y1")
    A("v_lshlrev_b32 v%d, 9, v%d" % (R + 12, t3))
    A("v_sub_u32 v%d, v%d, v%d" % (R + 12, vKW, R + 12))
    A("v_subrev_u32 v%d, 1024, v%d" % (R + 12, R + 12))
    A("v_lshlrev_b32 v%d, 10, v%d" % (R + 13, t3))
    A("v_sub_u32 v%d, v%d, v%d" % (R + 13, vKW, R + 13))
    A("v_subrev_u32 v%d, 2560, v%d" % (R + 13, R + 13))
    A("s_waitcnt lgkmcnt(0)")
    for r in range(8): A("v_add_f32 v%d, v%d, v%d" % (DK + r, DK + 8 + r, R + r))
    K8, K4, K0 = DK, DK + 1, DK + 2
    A("v_cvt_pk_bf16_f32 v%d, v%d, v%d" % (R + 0, K8, K8))
    A("v_cvt_pk_bf16_f32 v%d, v%d, v%d" % (R + 1, K4, K4))
    A("v_cvt_pk_bf16_f32 v%d, v%d, v%d" % (R + 2, K4, K0))
    A("v_cvt_pk_bf16_f32 v%d, v%d, v%d" % (R + 3, K0, K0))
    A("ds_write_b128 v%d, %s" % (R + 12, v(R, 4)))
    A("v_cvt_pk_bf16_f32 v%d, v%d, v%d" % (R + 4, K8, K4))
    A("v_mov_b32 v%d, v%d" % (R + 5, R + 1))
    A("v_mov_b32 v%d, v%d" % (R + 6, R + 3))
    A("v_mov_b32 v%d, v%d" % (R + 7, R + 3))
    A("ds_write_b128 v%d, %s offset:%d" % (R + 12, v(R + 4, 4), CPS2))
    for k in range(2):
        K8, K0 = DK + 4 + 2 * k, DK + 5 + 2 * k
        o = 72 + 8 * k
        A("v_cndmask_b32 v%d, v%d, v%d, s[56:57]" % (R + 15, K0, K8))
        A("v_cvt_pk_bf16_f32 v%d, v%d, v%d" % (o + 0, K8, K8))
        A("v_cvt_pk_bf16_f32 v%d, v%d, v%d" % (o + 1, K8, R + 15))
        A("v_cvt_pk_bf16_f32 v%d, v%d, v%d" % (o + 2, K0, K0))
        A("v_mov_b32 v%d, v%d" % (o + 3, o + 2))
        A("ds_write_b128 v%d, %s offset:%d" % (R + 13, v(o, 4), 512 * (1 - k)))
        A("v_mov_b32 v%d, v%d" % (o + 4, o + 0))
        A("v_cvt_pk_bf16_f32 v%d, v%d, v%d" % (o + 5, R + 15, K0))
        A("v_mov_b32 v%d, v%d" % (o + 6, o + 2))
        A("v_mov_b32 v%d, v%d" % (o + 7, o + 2))
        A("ds_write_b128 v%d, %s offset:%d" % (R + 13, v(o + 4, 4), 512 * (1 - k) + CPS2))
    A.label("ssm_y2")
    AF, BFS, DC = 16, [48, 64], 80
    units = [(0, cl) for cl in range(4)] + [(1, cl) for cl in range(4)]
    def a_list(ph): return list(range(7, -1, -1)) if ph == 0 else list(range(3, -1, -1))
    def b_list(ph): return [0, 1, 2, 3] if ph == 0 else [4, 5, 6, 7]
    def a_reads(ph, cl, a): return ["ds_read_b64 %s, v%d offset:%d" % (v(AF + 4 * a + 2 * h, 2), vA, 512 * (7 - a) + 8 * h + 64 * (3 - cl)) for h in range(2)]
    def b_read(ph, cl, b, buf): return "ds_read_b128 %s, v%d offset:%d" % (v(BFS[buf] + 4 * (b & 3), 4), vB, 512 * b + 64 * (3 - cl))
    order = []
    state = {"done": 0}
    def issue(tag, text):
        A(text); order.append(tag)
    def need(tag):
        idx = max(i for i, x in enumerate(order) if x == tag)
        if idx < state["done"]: return
        cnt = len(order) - 1 - idx
        if cnt > 15: cnt = 15
        A("s_waitcnt lgkmcnt(%d)" % cnt)
        state["done"] = len(order) - cnt
        assert state["done"] > idx
    A("s_waitcnt lgkmcnt(0)")
    stamp(A, timing, 8)
    A("s_barrier")
    stamp(A, timing, 3)
    for b in b_list(0): issue(("B", 0, b), b_read(0, 0, b, 0))
    for a in a_list(0):
        for x in a_reads(0, 0, a): issue(("A", 0, a), x)
    first = set()
    for u, (ph, cl) in enumerate(units):
        buf = u & 1
        nxt = units[u + 1] if u + 1 < len(units) else None
        if u == 4:
            stamp(A, timing, 4)
            A("s_barrier")
            for b in b_list(1): issue(("B", u, b), b_read(1, cl, b, buf))
        if nxt and u + 1 != 4:
            for b in b_list(nxt[0]): issue(("B", u + 1, b), b_read(nxt[0], nxt[1], b, buf ^ 1))
        for a in a_list(ph):
            for b in b_list(ph):
                if a + b > 7: continue
                need(("B", u, b)); need(("A", u, a))
                c = a + b
                acc = v(DC + 4 * c, 4) if c in first else "0"
                first.add(c)
                A("v_mfma_f32_16x16x32_bf16 %s, %s, %s, %s" % (v(DC + 4 * c, 4), v(AF + 4 * a, 4), v(BFS[buf] + 4 * (b & 3), 4), acc))
            if nxt and a in a_list(nxt[0]):
                for x in a_reads(nxt[0], nxt[1], a): issue(("A", u + 1, a), x)
    stamp(A, timing, 5)
    U = 16
    for k in range(4): A("ds_read2_b32 %s, v%d offset0:%d offset1:%d" % (v(U + 2 * k, 2), vU if k < 2 else 13, 128 * (k & 1), 128 * (k & 1) + 2)) if k < 2 else None
    A("v_add_u32 v13, 1024, v%d" % vU)
    for k in range(2, 4): A("ds_read2_b32 %s, v13 offset0:%d offset1:%d" % (v(U + 2 * k, 2), 128 * (k & 1), 128 * (k & 1) + 2))
    A("s_nop 3")
    A("s_cmp_eq_u32 s%d, 0" % sHF)
    A("s_cbranch_scc0 ssm_w1")
    for k in range(4): A("ds_write_b128 v%d, %s offset:%d" % (vES, v(DC + 16 + 4 * k, 4), 1024 * k))
    A("s_branch ssm_w2")
    A.label("ssm_w1")
    for k in range(4): A("ds_write_b128 v%d, %s offset:%d" % (vES, v(DC + 4 * k, 4), 1024 * k))
    A.label("ssm_w2")
    UF = 32
    A("s_waitcnt lgkmcnt(4)")
    for k in range(8):
        A("v_lshlrev_b32 v%d, 16, v%d" % (UF + 2 * k, U + k))
        A("v_and_b32 v%d, 0xffff0000, v%d" % (UF + 2 * k + 1, U + k))
    for r in range(16): A("v_mul_f32 v%d, s%d, v%d" % (UF + r, sDskip, UF + r))
    for k in range(8): A("v_cvt_pk_bf16_f32 v%d, v%d, v%d" % (U + k, UF + 2 * k, UF + 2 * k + 1))
    A("s_waitcnt lgkmcnt(0)")
    A("s_barrier")
    R = 48
    for k in range(4): A("ds_read_b128 %s, v%d offset:%d" % (v(R + 4 * k, 4), vER, 1024 * k))
    for k in range(8):
        A("v_lshlrev_b32 v%d, 16, v%d" % (UF + 2 * k, U + k))
        A("v_and_b32 v%d, 0xffff0000, v%d" % (UF + 2 * k + 1, U + k))
    A("s_cmp_eq_u32 s%d, 0" % sHF)
    A("s_cbranch_scc1 ssm_v1")
    for r in range(16): A("v_mov_b32 v%d, v%d" % (DC + r, DC + 16 + r))
    A.label("ssm_v1")
    for k in range(4):
        A("s_waitcnt lgkmcnt(%d)" % (3 - k))
        for r in range(4): A("v_add_f32 v%d, v%d, v%d" % (DC + 4 * k + r, DC + 4 * k + r, R + 4 * k + r))
        for j in range(2): A("v_cvt_pk_bf16_f32 v%d, v%d, v%d" % (U + 2 * k + j, DC + 4 * k + 2 * j, DC + 4 * k + 2 * j + 1))
        for j in range(2):
            A("v_lshlrev_b32 v%d, 16, v%d" % (DC + 4 * k + 2 * j, U + 2 * k + j))
            A("v_and_b32 v%d, 0xffff0000, v%d" % (DC + 4 * k + 2 * j + 1, U + 2 * k + j))
        for r in range(4): A("v_add_f32 v%d, v%d, v%d" % (DC + 4 * k + r, DC + 4 * k + r, UF + 4 * k + r))
        for j in range(2): A("v_cvt_pk_bf16_f32 v%d, v%d, v%d" % (U + 2 * k + j, DC + 4 * k + 2 * j, DC + 4 * k + 2 * j + 1))
        for j in range(2):
            A("buffer_store_dword v%d, v%d, s[%d:%d], s%d offen offset:%d" % (U + 2 * k + j, vO, SAT, SAT + 3, sOut, 512 * k + 8 * j))
    stamp(A, timing, 6)
    dump_stamps(A, timing, 9, end, 0)
    A("s_branch %s" % end)

def gen_k1(name="k1_kernel", timing=False):
    A = Asm()
    end = name + "_end"
    A("s_cmp_ge_u32 s2, 256")
    A("s_cbranch_scc1 %s" % end)
    stamp(A, timing, 0)
    A("v_lshrrev_b32 v2, 6, v0")
    A("v_and_b32 v%d, 63, v0" % vLane)
    A("v_readfirstlane_b32 s%d, v2" % sW)
    A("s_cmp_lt_u32 s2, 160")
    A("s_cbranch_scc1 %s" % (end if NOSSM else "k1_ssm"))
    if NOQ: A("s_branch %s" % end)
    A("s_cmp_lt_u32 s2, 240")
    A("s_cbranch_scc1 k1_q")
    role_kv(A, end, timing)
    A.label("k1_q")
    role_q(A, end, timing)
    if AUX:
        A.label("k1_wo")
        role_wo(A, end)
    A.label("k1_ssm")
    (role_ssm3 if SSM3 else role_ssm2 if SSM2 else role_ssm)(A, end, timing)
    A.label(end)
    A("s_endpgm")
    return dict(name=name, grid=256, block=1024, lds=163840, body=A.text(), vgpr=128)

if __name__ == "__main__":
    import sys
    tm = False
    for a in sys.argv[2:]:
        if a.startswith("t"): tm = int(a[1:]) if len(a) > 1 else True
    for a in sys.argv[2:]:
        if a.startswith("g:"): GMOD = a[2:].replace("+", " ")
    k = gen_k1(timing=tm)
    open(sys.argv[1], "w").write(compose([k]))
```

```python
from asmlib import *
import struct, math

def f32bits(x):
    return struct.unpack("<I", struct.pack("<f", x))[0]

GMOD = ""
AMP = None
V3 = True
LPRIO = 3
B0 = True
QINIT = 5
QSTEP = 1
GDELAY = 0
QROT = True
QORD = [[0,2,1,3,4,6,5,7,8,9],[2,0,3,1,6,4,7,5,9,8]]
QORD_ROT = [[0,1,2,3,4,5,6,7,8,9],[5,6,7,8,9,0,1,2,3,4]]
WDELAY = 0
LOG2E = 1.4426950408889634
CSCALE = (20 ** -0.5) * LOG2E

sW = 6
vLane = 1

def stamp(A, timing, n):
    if timing is not False: A("s_memtime s[%d:%d]" % (60 + 2 * n, 61 + 2 * n))

def dump_stamps(A, timing, nst, end, wg, vt=2):
    if timing is False or (timing is not True and (timing >= 160) != (wg >= 160)): return
    if timing is not True: wg = timing
    if AMP is not None:
        a_, b_, w_ = AMP
        if b_ >= nst: return
        A("s_waitcnt lgkmcnt(0)")
        A("s_cmp_eq_u32 s2, %d" % wg)
        A("s_cbranch_scc0 %s" % end)
        A("s_cmp_eq_u32 s%d, %d" % (sW, w_))
        A("s_cbranch_scc0 %s" % end)
        A("s_load_dwordx2 s[40:41], s[0:1], 136")
        A("v_mov_b32 v%d, 0x2C8000" % vt)
        A("s_sub_u32 s51, s%d, s%d" % (60 + 2 * b_, 60 + 2 * a_))
        A("v_mov_b32 v%d, s51" % (vt + 1))
        A("s_waitcnt lgkmcnt(0)")
        A("global_store_dword v%d, v%d, s[40:41]" % (vt, vt + 1))
        return
    A("s_waitcnt lgkmcnt(0)")
    A("s_cmp_eq_u32 s2, %d" % wg)
    A("s_cbranch_scc0 %s" % end)
    A("s_load_dwordx2 s[40:41], s[0:1], 128")
    A("s_and_b32 s50, s%d, 3" % sW)
    A("s_cmp_eq_u32 s50, 0")
    A("s_cbranch_scc0 %s" % end)
    A("s_lshl_b32 s50, s%d, 4" % sW)
    A("v_mov_b32 v%d, s50" % vt)
    A("s_waitcnt lgkmcnt(0)")
    for i in range(1, nst):
        A("s_sub_u32 s51, s%d, s60" % (60 + 2 * i))
        A("v_mov_b32 v%d, s51" % (vt + 1))
        A("global_store_dword v%d, v%d, s[40:41] offset:%d" % (vt, vt + 1, 4 * (i - 1)))

def x_dma_setup(A, vX, t0, t1):
    for e in range(2):
        A("v_lshrrev_b32 v%d, 3, v%d" % (t0, vLane))
        if e: A("v_add_u32 v%d, 8, v%d" % (t0, t0))
        A("v_mul_u32_u24 v%d, 1280, v%d" % (vX + e, t0))
        A("v_lshrrev_b32 v%d, 4, v%d" % (t0, vLane))
        if e: A("v_add_u32 v%d, 4, v%d" % (t0, t0))
        A("v_and_b32 v%d, 7, v%d" % (t1, vLane))
        A("v_xor_b32 v%d, v%d, v%d" % (t0, t0, t1))
        A("v_lshl_add_u32 v%d, v%d, 4, v%d" % (vX + e, t0, vX + e))

def x_read_setup(A, vXr, sRowOff128, xbase, t0, t1, t2):
    A("v_and_b32 v%d, 31, v%d" % (t0, vLane))
    A("v_bfe_u32 v%d, v%d, 1, 3" % (t1, vLane))
    A("v_lshrrev_b32 v%d, 5, v%d" % (t2, vLane))
    A("v_xor_b32 v%d, v%d, v%d" % (t1, t1, t2))
    A("v_lshlrev_b32 v%d, 7, v%d" % (t0, t0))
    A("v_add_u32 v%d, s%d, v%d" % (t0, sRowOff128, t0))
    if xbase: A("v_add_u32 v%d, %d, v%d" % (t0, xbase, t0))
    for s_ in range(4):
        A("v_xor_b32 v%d, %d, v%d" % (t2, 2 * s_, t1))
        A("v_lshl_add_u32 v%d, v%d, 4, v%d" % (vXr + s_, t2, t0))

def role_q(A, end, timing):
    D = 5; BUF = 32768; WOFF = 16384
    SX, SWT, SO = 8, 12, 16
    sRow0, sN0b, sJ = 20, 21, 22
    t0, t1, t2 = 2, 3, 4
    A("s_cmp_ge_u32 s%d, 12" % sW)
    A("s_cbranch_scc1 %s" % end)
    A("s_load_dwordx2 s[32:33], s[0:1], 0")
    A("s_load_dwordx2 s[34:35], s[0:1], 80")
    A("s_load_dwordx2 s[4:5], s[0:1], 136")
    A("s_sub_u32 s23, s2, 160")
    A("s_and_b32 s%d, s23, 15" % sRow0)
    A("s_lshl_b32 s%d, s%d, 7" % (sRow0, sRow0))
    A("s_lshr_b32 s%d, s23, 4" % sN0b)
    A("s_lshl_b32 s%d, s%d, 8" % (sN0b, sN0b))
    A("s_cmp_lt_u32 s%d, 4" % sW)
    A("s_cbranch_scc1 q_comp")
    vX, vWd = 8, 10
    A("s_sub_u32 s%d, s%d, 4" % (sJ, sW))
    x_dma_setup(A, vX, t0, t1)
    A("v_lshrrev_b32 v%d, 4, v%d" % (t0, vLane))
    A("v_mul_u32_u24 v%d, 1280, v%d" % (vWd, t0))
    A("v_and_b32 v%d, 1, v%d" % (t1, t0))
    A("v_lshlrev_b32 v%d, 1, v%d" % (t1, t1))
    A("v_lshrrev_b32 v%d, 1, v%d" % (t0, t0))
    A("v_lshl_add_u32 v%d, v%d, 3, v%d" % (t1, t0, t1))
    A("v_and_b32 v%d, 15, v%d" % (t0, vLane))
    A("v_xor_b32 v%d, v%d, v%d" % (t0, t0, t1))
    A("v_lshl_add_u32 v%d, v%d, 4, v%d" % (vWd, t0, vWd))
    sXg, sWg, sM0 = 24, 25, 26
    A("s_lshl_b32 s27, s%d, 4" % sJ)
    A("s_add_u32 s27, s27, s%d" % sRow0)
    A("s_mul_i32 s%d, s27, 1280" % sXg)
    A("s_mul_i32 s%d, s%d, %d" % (sWg, sJ, 8 * 1280))
    A("s_add_u32 s%d, s%d, s%d" % (sWg, sWg, sN0b))
    A("s_lshl_b32 s%d, s%d, 11" % (sM0, sJ))
    A("s_waitcnt lgkmcnt(0)")
    srd(A, SX, 32, 0, NQ)
    srd(A, SWT, 34, 0, 640 * 1280)
    srd(A, SO, 4, WS_Q, NQ)
    issued = []
    QOFF = QORD
    if QROT:
        A("s_lshr_b32 s36, s23, 4")
        A("s_lshl_b32 s36, s36, 1")
        A("s_bfe_u32 s37, s23, 0x10003")
    def dma(c):
        b = (c % D) * BUF
        if QROT:
            A("s_cmp_eq_u32 s37, 1")
            A("s_cselect_b32 s29, %d, %d" % (QOFF[1][c], QOFF[0][c]))
            A("s_add_u32 s29, s29, s36")
            A("s_cmp_ge_u32 s29, 10")
            A("s_cselect_b32 s30, 10, 0")
            A("s_sub_u32 s29, s29, s30")
            A("s_lshl_b32 s30, s29, 7")
            A("s_add_u32 s30, s30, s%d" % sXg)
            A("s_mul_i32 s31, s29, %d" % (64 * 1280))
            A("s_add_u32 s31, s31, s%d" % sWg)
            for e in range(2):
                A("s_add_u32 m0, s%d, %d" % (sM0, b + e * 1024))
                A("s_nop 0")
                A("buffer_load_dwordx4 v%d, s[%d:%d], s30 offen lds" % (vX + e, SX, SX + 3))
                issued.append(c)
            for e in range(2):
                A("s_add_u32 m0, s%d, %d" % (sM0, b + WOFF + e * 1024))
                A("s_add_u32 s28, s31, %d" % (4 * e * 1280))
                A("buffer_load_dwordx4 v%d, s[%d:%d], s28 offen lds" % (vWd, SWT, SWT + 3))
                issued.append(c)
            return
        for e in range(2):
            A("s_add_u32 m0, s%d, %d" % (sM0, b + e * 1024))
            A("s_add_u32 s28, s%d, %d" % (sXg, c * 128))
            A("buffer_load_dwordx4 v%d, s[%d:%d], s28 offen lds" % (vX + e, SX, SX + 3))
            issued.append(c)
        for e in range(2):
            A("s_add_u32 m0, s%d, %d" % (sM0, b + WOFF + e * 1024))
            A("s_add_u32 s28, s%d, %d" % (sWg, (64 * c + 4 * e) * 1280))
            A("buffer_load_dwordx4 v%d, s[%d:%d], s28 offen lds" % (vWd, SWT, SWT + 3))
            issued.append(c)
    for c in range(QINIT):
        dma(c)
    vSl, vSg = 12, 13
    A("v_lshrrev_b32 v%d, 4, v%d" % (t0, vLane))
    A("v_and_b32 v%d, 15, v%d" % (t1, vLane))
    A("v_mul_u32_u24 v%d, 272, v%d" % (vSl, t0))
    A("v_lshl_add_u32 v%d, v%d, 4, v%d" % (vSl, t1, vSl))
    A("s_mul_i32 s27, s%d, %d" % (sJ, 16 * 272))
    A("v_add_u32 v%d, s27, v%d" % (vSl, vSl))
    A("v_mul_u32_u24 v%d, 1280, v%d" % (vSg, t0))
    A("v_lshl_add_u32 v%d, v%d, 4, v%d" % (vSg, t1, vSg))
    for c in range(10):
        last = max(i for i, x in enumerate(issued) if x == c)
        A("s_waitcnt vmcnt(%d)" % (len(issued) - 1 - last))
        A("s_barrier")
        nxt = max(issued) + 1
        k_ = 0
        while nxt <= 9 and nxt - D + 2 <= c and k_ < QSTEP:
            dma(nxt); nxt += 1; k_ += 1
    A("s_barrier")
    for e in range(4):
        A("ds_read_b128 %s, v%d offset:%d" % (v(16 + 4 * e, 4), vSl, e * 4 * 272))
    A("s_add_u32 s28, s%d, s%d" % (sXg, sN0b))
    for e in range(4):
        A("s_waitcnt lgkmcnt(%d)" % (3 - e))
        A("buffer_store_dwordx4 %s, v%d, s[%d:%d], s28 offen offset:%d" % (v(16 + 4 * e, 4), vSg, SO, SO + 3, 0) if e == 0 else
          "s_add_u32 s29, s28, %d\nbuffer_store_dwordx4 %s, v%d, s[%d:%d], s29 offen" % (e * 4 * 1280, v(16 + 4 * e, 4), vSg, SO, SO + 3))
        if e: A("s_nop 0")
    stamp(A, timing, 3)
    dump_stamps(A, timing, 4, end, 160)
    A("s_branch %s" % end)
    A.label("q_comp")
    vXr, vWr = 8, 12
    XF = [[16, 20], [24, 28]]; WF = [[32, 36], [40, 44]]
    ACC = 64
    A("s_and_b32 s24, s%d, 1" % sW)
    A("s_lshl_b32 s24, s24, 13")
    x_read_setup(A, vXr, 24, 0, t0, t1, t2)
    A("v_lshrrev_b32 v%d, 5, v%d" % (t0, vLane))
    A("v_bfe_u32 v%d, v%d, 2, 2" % (t1, vLane))
    A("v_lshl_add_u32 v%d, v%d, 3, v%d" % (t0, t0, t1))
    A("v_lshlrev_b32 v%d, 8, v%d" % (t0, t0))
    A("v_bfe_u32 v%d, v%d, 1, 1" % (t2, vLane))
    A("v_lshl_add_u32 v%d, v%d, 3, v%d" % (t0, t2, t0))
    A("v_add_u32 v%d, %d, v%d" % (t0, WOFF, t0))
    A("v_and_b32 v%d, 1, v%d" % (t2, vLane))
    A("v_lshlrev_b32 v%d, 2, v%d" % (t2, t2))
    A("v_bfe_u32 v5, v%d, 4, 1" % vLane)
    A("v_or_b32 v%d, v%d, v5" % (t2, t2))
    A("s_lshr_b32 s25, s%d, 1" % sW)
    A("s_lshl_b32 s25, s25, 3")
    A("v_or_b32 v%d, s25, v%d" % (t2, t2))
    A("v_and_b32 v5, 1, v%d" % t1)
    A("v_lshlrev_b32 v5, 1, v5")
    A("v_xor_b32 v%d, v%d, v5" % (t2, t2))
    A("v_lshrrev_b32 v5, 1, v%d" % t1)
    A("v_lshlrev_b32 v5, 3, v5")
    A("v_xor_b32 v%d, v%d, v5" % (t2, t2))
    A("v_lshl_add_u32 v%d, v%d, 4, v%d" % (vWr, t2, t0))
    A("v_xor_b32 v%d, 2, v%d" % (t2, t2))
    A("v_lshl_add_u32 v%d, v%d, 4, v%d" % (vWr + 1, t2, t0))
    vSt = 14
    A("v_and_b32 v%d, 31, v%d" % (t0, vLane))
    A("v_mul_u32_u24 v%d, 272, v%d" % (vSt, t0))
    A("v_lshrrev_b32 v%d, 5, v%d" % (t0, vLane))
    A("v_lshl_add_u32 v%d, v%d, 6, v%d" % (vSt, t0, vSt))
    A("s_and_b32 s24, s%d, 1" % sW)
    A("s_mul_i32 s24, s24, %d" % (64 * 272))
    A("s_lshl_b32 s25, s25, 4")
    A("s_add_u32 s24, s24, s25")
    A("v_add_u32 v%d, s24, v%d" % (vSt, vSt))
    bias = [0]
    def set_bias(nb):
        d = nb - bias[0]
        if d:
            for r in list(range(vXr, vXr + 4)) + [vWr, vWr + 1]:
                A("v_add_u32 v%d, %d, v%d" % (r, d & 0xffffffff, r))
        bias[0] = nb
    def reads(S):
        c, s_ = divmod(S, 4); fb = S & 1
        b = (c % D) * BUF
        set_bias(b // 65536 * 65536)
        o = b - bias[0]
        for lg in range(2):
            A("ds_read_b128 %s, v%d offset:%d" % (v(XF[fb][lg], 4), vXr + s_, o + lg * 4096))
        for t in range(2):
            for h in range(2):
                A("ds_read_b64_tr_b16 %s, v%d offset:%d" % (v(WF[fb][t] + 2 * h, 2), vWr + t, o + s_ * 4096 + h * 1024))
    def mfma(S, i):
        fb = S & 1; lg, t = divmod(i, 2)
        a = ACC + 16 * (2 * lg + t)
        A("v_mfma_f32_32x32x16_bf16 %s, %s, %s, %s" % (v(a, 16), v(WF[fb][t], 4), v(XF[fb][lg], 4), "0" if S == 0 else v(a, 16)))
    A("s_barrier")
    stamp(A, timing, 1)
    qst = [4]
    reads(0)
    for S in range(40):
        c, s_ = divmod(S, 4)
        if S + 1 < 40:
            reads(S + 1)
            A("s_waitcnt lgkmcnt(6)")
        else:
            A("s_waitcnt lgkmcnt(0)")
        for i in range(4):
            mfma(S, i)
            if i == 0 and s_ == 2 and c + 1 < 10:
                A("s_barrier")
                if QST and c in (0, 2, 4, 6, 8): stamp(A, timing, qst[0]); qst[0] += 1
    stamp(A, timing, 2)
    A("s_nop 7")
    A("s_nop 3")
    for lg in range(2):
        for t in range(2):
            a = ACC + 16 * (2 * lg + t)
            for j in range(8):
                A("v_cvt_pk_bf16_f32 v%d, v%d, v%d" % (a + j, a + 2 * j, a + 2 * j + 1))
            for h in range(2):
                A("ds_write_b128 v%d, %s offset:%d" % (vSt, v(a + 4 * h, 4), lg * 32 * 272 + 32 * t + 16 * h))
    A("s_waitcnt lgkmcnt(0)")
    A("s_barrier")
    stamp(A, timing, 3)
    dump_stamps(A, timing, 9 if QST else 4, end, 160)
    A("s_branch %s" % end)

def role_kv(A, end, timing):
    D = 5; XB = 65536; BUF = 16384
    SX, SK, SV, SO = 8, 12, 16, 20
    sRow0, sJ = 24, 25
    t0, t1, t2 = 2, 3, 4
    A("s_cmp_ge_u32 s%d, 12" % sW)
    A("s_cbranch_scc1 %s" % ("k1_wo" if AUX and not (SSM3 and WOSSM) else end))
    A("s_load_dwordx2 s[32:33], s[0:1], 0")
    A("s_load_dwordx4 s[36:39], s[0:1], 88")
    A("s_load_dwordx2 s[4:5], s[0:1], 136")
    A("s_sub_u32 s%d, s2, 240" % sRow0)
    A("s_lshl_b32 s%d, s%d, 7" % (sRow0, sRow0))
    A("s_cmp_lt_u32 s%d, 4" % sW)
    A("s_cbranch_scc1 kv_comp")
    vX, vL16 = 8, 10
    A("s_sub_u32 s%d, s%d, 4" % (sJ, sW))
    x_dma_setup(A, vX, t0, t1)
    A("v_lshlrev_b32 v%d, 4, v%d" % (vL16, vLane))
    sXg, sM0 = 26, 27
    A("s_lshl_b32 s28, s%d, 4" % sJ)
    A("s_add_u32 s28, s28, s%d" % sRow0)
    A("s_mul_i32 s%d, s28, 1280" % sXg)
    A("s_lshl_b32 s%d, s%d, 11" % (sM0, sJ))
    A("s_waitcnt lgkmcnt(0)")
    srd(A, SX, 32, 0, NQ)
    srd(A, SK, 36, 0, 25600)
    srd(A, SV, 38, 0, 25600)
    issued = []
    def dma(c):
        b = XB + (c % D) * BUF
        for e in range(2):
            A("s_add_u32 m0, s%d, %d" % (sM0, b + e * 1024))
            A("s_add_u32 s29, s%d, %d" % (sXg, c * 128))
            A("buffer_load_dwordx4 v%d, s[%d:%d], s29 offen lds" % (vX + e, SX, SX + 3))
            issued.append(c)
    A("s_lshl_b32 s30, s%d, 10" % sJ)
    for e in range(4):
        for (sr, base) in ((SK, 0), (SV, 32768)):
            A("s_add_u32 s29, s30, %d" % (e * 8192))
            A("s_add_u32 m0, s29, %d" % base)
            A("s_nop 0")
            A("buffer_load_dwordx4 v%d, s[%d:%d], s29 offen lds" % (vL16, sr, sr + 3))
            issued.append(0)
    for c in range(D):
        dma(c)
    for c in range(10):
        last = max(i for i, x in enumerate(issued) if x == c)
        A("s_waitcnt vmcnt(%d)" % (len(issued) - 1 - last))
        A("s_barrier")
        if c >= 2 and c - 2 + D <= 9:
            dma(c - 2 + D)
    A("s_branch %s" % end)
    A.label("kv_comp")
    vXr, vWr = 8, 12
    XF = [16, 20]; KF = [24, 28]; VF = [32, 36]
    DK, DV = 64, 80
    A("s_lshl_b32 s26, s%d, 12" % sW)
    x_read_setup(A, vXr, 26, XB, t0, t1, t2)
    set_off = XB
    A("v_lshrrev_b32 v%d, 5, v%d" % (t0, vLane))
    A("v_bfe_u32 v%d, v%d, 2, 2" % (t1, vLane))
    A("v_lshl_add_u32 v%d, v%d, 3, v%d" % (t0, t0, t1))
    A("v_mul_u32_u24 v%d, 40, v%d" % (vWr, t0))
    A("v_bfe_u32 v%d, v%d, 4, 1" % (t0, vLane))
    A("v_lshl_add_u32 v%d, v%d, 5, v%d" % (vWr, t0, vWr))
    A("v_and_b32 v%d, 3, v%d" % (t0, vLane))
    A("v_lshl_add_u32 v%d, v%d, 3, v%d" % (vWr, t0, vWr))
    def reads(S):
        c, s_ = divmod(S, 4); fb = S & 1
        o = (c % D) * BUF
        if o >= 65536:
            A("v_add_u32 v%d, %d, v%d" % (t0, 65536, vXr + s_))
            A("ds_read_b128 %s, v%d offset:%d" % (v(XF[fb], 4), t0, o - 65536))
        else:
            A("ds_read_b128 %s, v%d offset:%d" % (v(XF[fb], 4), vXr + s_, o))
        for h in range(2):
            A("ds_read_b64_tr_b16 %s, v%d offset:%d" % (v(KF[fb] + 2 * h, 2), vWr, S * 640 + h * 160))
        for h in range(2):
            A("ds_read_b64_tr_b16 %s, v%d offset:%d" % (v(VF[fb] + 2 * h, 2), vWr, 32768 + S * 640 + h * 160))
    A("s_barrier")
    reads(0)
    for S in range(40):
        c, s_ = divmod(S, 4); fb = S & 1
        if S + 1 < 40:
            reads(S + 1)
            A("s_waitcnt lgkmcnt(5)")
        else:
            A("s_waitcnt lgkmcnt(0)")
        A("v_mfma_f32_32x32x16_bf16 %s, %s, %s, %s" % (v(DK, 16), v(KF[fb], 4), v(XF[fb], 4), "0" if S == 0 else v(DK, 16)))
        if s_ == 2 and c + 1 < 10:
            A("s_barrier")
        A("v_mfma_f32_32x32x16_bf16 %s, %s, %s, %s" % (v(DV, 16), v(XF[fb], 4), v(VF[fb], 4), "0" if S == 0 else v(DV, 16)))
    A("s_waitcnt lgkmcnt(0)")
    srd(A, SO, 4, WS_KV, NKV)
    A("s_lshr_b32 s26, s%d, 5" % sRow0)
    A("s_add_u32 s26, s26, s%d" % sW)
    A("s_mul_i32 s26, s26, 2560")
    vK1, vK2, vV = 8, 9, 10
    A("v_and_b32 v%d, 31, v%d" % (t0, vLane))
    A("v_lshrrev_b32 v%d, 5, v%d" % (t1, vLane))
    A("v_lshlrev_b32 v%d, 4, v%d" % (vK1, t0))
    A("v_lshl_add_u32 v%d, v%d, 3, v%d" % (vK1, t1, vK1))
    A("v_lshlrev_b32 v%d, 30, v%d" % (vK2, t1))
    A("v_lshl_add_u32 v%d, v%d, 3, v%d" % (vK2, t0, vK2))
    A("v_mul_u32_u24 v%d, 320, v%d" % (vV, t1))
    A("v_lshl_add_u32 v%d, v%d, 4, v%d" % (vV, t0, vV))
    A("v_cmp_gt_u32 vcc, 20, v%d" % t0)
    A("v_mov_b32 v%d, 0x40000000" % t2)
    A("s_nop 1")
    A("v_cndmask_b32 v%d, v%d, v%d, vcc" % (vV, t2, vV))
    A("s_nop 7")
    for j in range(6):
        A("v_cvt_pk_bf16_f32 v%d, v%d, v%d" % (16 + j, DK + 2 * j, DK + 2 * j + 1))
    for j in range(6):
        A("v_lshlrev_b32 v%d, 16, v%d" % (DK + 2 * j, 16 + j))
        A("v_and_b32 v%d, 0xffff0000, v%d" % (DK + 2 * j + 1, 16 + j))
    A("s_mov_b32 s27, 0x%x" % f32bits(CSCALE))
    for r in range(12):
        A("v_mul_f32 v%d, s27, v%d" % (DK + r, DK + r))
    for j in range(6):
        A("v_cvt_pk_bf16_f32 v%d, v%d, v%d" % (16 + j, DK + 2 * j, DK + 2 * j + 1))
    for j in range(8):
        A("v_cvt_pk_bf16_f32 v%d, v%d, v%d" % (24 + j, DV + 2 * j, DV + 2 * j + 1))
    A("buffer_store_dwordx2 %s, v%d, s[%d:%d], s26 offen" % (v(16, 2), vK1, SO, SO + 3))
    A("buffer_store_dwordx2 %s, v%d, s[%d:%d], s26 offen offset:512" % (v(18, 2), vK1, SO, SO + 3))
    A("buffer_store_dwordx2 %s, v%d, s[%d:%d], s26 offen offset:1024" % (v(20, 2), vK2, SO, SO + 3))
    A("buffer_store_dwordx4 %s, v%d, s[%d:%d], s26 offen offset:1280" % (v(24, 4), vV, SO, SO + 3))
    A("buffer_store_dwordx4 %s, v%d, s[%d:%d], s26 offen offset:1920" % (v(28, 4), vV, SO, SO + 3))
    A("s_branch %s" % end)

AUX = True
WS_WF  = 0x0300000
WS_CNT = 0x02C0000
NWF = 819200

def gate_row(A, X, XU, WU, SG, vZero, sOff):
    for q in range(5):
        A("v_lshlrev_b32 v%d, 16, v%d" % (XU + 2 * q, X + q))
        A("v_and_b32 v%d, 0xffff0000, v%d" % (XU + 2 * q + 1, X + q))
    for q in range(10):
        A("v_mul_f32 v%d, v%d, v%d" % (XU + q, XU + q, WU + q))
    for q in range(5):
        A("v_cvt_pk_bf16_f32 v%d, v%d, v%d" % (X + q, XU + 2 * q, XU + 2 * q + 1))
    for q in range(5):
        A("v_lshlrev_b32 v%d, 16, v%d" % (XU + 2 * q, X + q))
        A("v_and_b32 v%d, 0xffff0000, v%d" % (XU + 2 * q + 1, X + q))
    for q in range(5):
        A("v_add_f32 v%d, v%d, v%d" % (XU + q, XU + q, XU + 5 + q))
    A("v_add_f32 v%d, v%d, v%d" % (XU, XU, XU + 1))
    A("v_add_f32 v%d, v%d, v%d" % (XU + 2, XU + 2, XU + 3))
    A("v_add_f32 v%d, v%d, v%d" % (XU, XU, XU + 4))
    A("v_add_f32 v%d, v%d, v%d" % (XU, XU, XU + 2))
    for ctl in ("row_shr:1", "row_shr:2", "row_shr:4", "row_shr:8"):
        A("s_nop 1")
        A("v_add_f32_dpp v%d, v%d, v%d %s row_mask:0xf bank_mask:0xf bound_ctrl:0" % (XU, XU, XU, ctl))
    A("s_nop 1")
    A("v_add_f32_dpp v%d, v%d, v%d row_bcast:15 row_mask:0xa bank_mask:0xf" % (XU, XU, XU))
    A("s_nop 1")
    A("v_add_f32_dpp v%d, v%d, v%d row_bcast:31 row_mask:0xc bank_mask:0xf" % (XU, XU, XU))
    A("v_cvt_pk_bf16_f32 v%d, v%d, v%d" % (XU, XU, XU))
    A("v_lshlrev_b32 v%d, 16, v%d" % (XU, XU))
    A("v_mul_f32 v%d, 0xbfb8aa3b, v%d" % (XU, XU))
    A("v_exp_f32 v%d, v%d" % (XU, XU))
    A("s_nop 0")
    A("v_add_f32 v%d, 1.0, v%d" % (XU, XU))
    A("v_rcp_f32 v%d, v%d" % (XU, XU))
    A("s_nop 0")
    A("v_cvt_pk_bf16_f32 v%d, v%d, v%d" % (XU, XU, XU))
    A("v_lshlrev_b32 v%d, 16, v%d" % (X, XU))
    A("s_mov_b32 exec_lo, 0")
    A("s_mov_b32 exec_hi, 0x80000000")
    A("buffer_store_dword v%d, v%d, s[%d:%d], s%d offen" % (X, vZero, SG, SG + 3, sOff))
    A("s_mov_b64 exec, -1")

def role_wo(A, end):
    SWO, SWF, SC = 8, 12, 16
    A("s_load_dwordx2 s[32:33], s[0:1], 104")
    A("s_load_dwordx2 s[4:5], s[0:1], 136")
    A("s_sub_u32 s20, s2, 240")
    A("s_lshl_b32 s20, s20, 2")
    A("s_add_u32 s20, s20, s%d" % sW)
    A("s_sub_u32 s20, s20, 12")
    A("v_lshrrev_b32 v2, 4, v%d" % vLane)
    A("v_and_b32 v3, 15, v%d" % vLane)
    A("v_mul_u32_u24 v4, %d, v2" % (8 * 1280))
    A("v_lshl_add_u32 v4, v3, 4, v4")
    A("v_lshrrev_b32 v5, 1, v3")
    A("v_mul_u32_u24 v5, 20480, v5")
    A("v_lshl_add_u32 v5, v2, 8, v5")
    A("v_and_b32 v6, 1, v3")
    A("v_lshl_add_u32 v5, v6, 7, v5")
    A("v_lshlrev_b32 v6, 7, v%d" % vLane)
    A("v_mov_b32 v7, 0")
    A("s_mov_b32 s40, 0x05040100")
    A("s_mov_b32 s41, 0x07060302")
    for n in range(2):
        A("s_add_u32 s21, s20, %d" % (64 * n))
        A("s_mul_i32 s22, s21, 205")
        A("s_lshr_b32 s22, s22, 10")
        A("s_mul_i32 s23, s22, 5")
        A("s_sub_u32 s23, s21, s23")
        A("s_mul_i32 s24, s22, %d" % (32 * 1280))
        A("s_lshl_b32 s25, s23, 8")
        A("s_add_u32 s%d, s24, s25" % (26 + 3 * n))
        A("s_add_u32 s%d, s%d, 5120" % (27 + 3 * n, 26 + 3 * n))
        A("s_mul_i32 s24, s23, %d" % (8 * 20480))
        A("s_lshl_b32 s25, s22, 10")
        A("s_add_u32 s%d, s24, s25" % (28 + 3 * n))
        A("s_cmp_ge_u32 s21, 100")
        A("s_cselect_b32 s%d, 0x1000000, s%d" % (28 + 3 * n, 28 + 3 * n))
    A("s_waitcnt lgkmcnt(0)")
    srd(A, SWO, 32, 0, 640 * 1280)
    srd(A, SWF, 4, WS_WF, NWF)
    srd(A, SC, 4, WS_CNT, 4096)
    L = [16, 48]; Pk = [80, 16]
    for _ in range(WDELAY): A("s_barrier")
    for n in range(2):
        for e in range(8):
            A("buffer_load_dwordx4 %s, v4, s[%d:%d], s%d offen offset:%d" % (v(L[n] + 4 * e, 4), SWO, SWO + 3, 26 + 3 * n + (e >> 2), (e & 3) * 1280))
    A("s_cmp_eq_u32 s20, 0")
    A("s_cbranch_scc0 k1_wo_nz")
    A("buffer_store_dword v7, v6, s[%d:%d], 0 offen" % (SC, SC + 3))
    A.label("k1_wo_nz")
    A("s_barrier")
    A("s_waitcnt vmcnt(0)")
    for n in range(2):
        for cc in range(8):
            for m in range(4):
                A("v_perm_b32 v%d, v%d, v%d, s%d" % (Pk[n] + 4 * cc + m, L[n] + 4 * (2 * m + 1) + (cc >> 1), L[n] + 4 * (2 * m) + (cc >> 1), 40 + (cc & 1)))
            A("buffer_store_dwordx4 %s, v5, s[%d:%d], s%d offen offset:%d" % (v(Pk[n] + 4 * cc, 4), SWF, SWF + 3, 28 + 3 * n, cc * 16))
    A("s_branch %s" % end)

CH = 34816
TAB = 17408
UB = 4 * CH
UP = 4576
CP0 = 2048
CPS = 4160
EX2 = 20480

GROWS = {0: [11], 1: [10], 2: [9], 3: [8], 4: [3], 5: [2], 6: [1], 7: [0],
         256: [14, 15], 258: [13], 260: [12, 7, 6], 262: [5], 264: [4],
         512: [18], 516: [17], 520: [16], 768: [22], 772: [21], 776: [20],
         1024: [25], 1032: [24], 1280: [27], 1288: [26], 1536: [29], 1544: [28], 1792: [31], 1800: [30]}

def role_ssm(A, end, timing):
    t0, t1, t2, t3 = 2, 3, 4, 5
    sD0, sCH, sHF = 7, 8, 9
    SX, SAT = 12, 36
    A("s_load_dwordx16 s[16:31], s[0:1], 0")
    A("s_load_dwordx2 s[32:33], s[0:1], 64")
    A("s_load_dwordx2 s[4:5], s[0:1], 136")
    A("s_and_b32 s10, s2, 7")
    A("s_mul_i32 s10, s10, 20")
    A("s_lshr_b32 s11, s2, 3")
    A("s_add_u32 s10, s10, s11")
    A("s_lshl_b32 s%d, s10, 2" % sD0)
    A("s_cmp_lt_u32 s%d, 8" % sW)
    A("s_cbranch_scc1 ssm_main")
    if LPRIO: A("s_setprio %d" % LPRIO)
    if AUX: A("s_load_dwordx2 s[36:37], s[0:1], 112")
    A("s_sub_u32 s10, s%d, 8" % sW)
    A("v_mul_u32_u24 v%d, 1280, v%d" % (t0, vLane))
    A("s_mul_i32 s11, s10, %d" % (256 * 1280))
    A("s_lshl_b32 s34, s%d, 1" % sD0)
    A("s_add_u32 s11, s11, s34")
    A("s_waitcnt lgkmcnt(0)")
    srd(A, SX, 16, 0, NQ)
    if B0: A("s_barrier")
    for e in range(4):
        A("s_add_u32 s34, s11, %d" % (e * 64 * 1280))
        A("buffer_load_dwordx2 %s, v%d, s[%d:%d], s34 offen %s" % (v(8 + 2 * e, 2), t0, SX, SX + 3, GMOD))
    NG = 0
    if AUX:
        GX, GW, XU, WU, SGW, SG = 32, 44, 52, 64, 40, 44
        NG = 0
        A("s_lshl_b32 s38, s2, 3")
        A("s_add_u32 s38, s38, s10")
        A("s_mul_i32 s39, s38, 1280")
        A("v_mul_u32_u24 v24, 20, v%d" % vLane)
        A("v_mov_b32 v25, 0")
        srd(A, SGW, 36, 0, 1280)
        srd(A, SG, 4, WS_G, 8192)
    A("v_mov_b32 v16, 0"); A("v_mov_b32 v17, 0"); A("v_mov_b32 v18, 0"); A("v_mov_b32 v19, 0")
    A("s_mul_i32 s34, s10, %d" % UP)
    A("s_add_u32 s34, s34, %d" % UB)
    A("v_lshlrev_b32 v%d, 4, v%d" % (t1, vLane))
    A("v_add_u32 v%d, s34, v%d" % (t1, t1))
    A("s_cmp_lt_u32 s10, 4")
    A("s_cbranch_scc0 ssm_nz")
    A("s_mov_b32 exec_lo, 0x3fffffff")
    A("s_mov_b32 exec_hi, 0")
    A("ds_write_b128 v%d, v[16:19]" % t1)
    A("s_mov_b64 exec, -1")
    A.label("ssm_nz")
    A("s_lshl_b32 s34, s10, 9")
    A("s_add_u32 s34, s34, %d" % (UB + 480))
    A("v_lshlrev_b32 v%d, 1, v%d" % (t1, vLane))
    A("v_add_u32 v%d, s34, v%d" % (t1, t1))
    if V3:
        A("s_barrier")
        A("s_barrier")
    for e in range(4):
        A("s_waitcnt vmcnt(%d)" % (3 - e + NG))
        for cc in range(4):
            A("ds_write_b16%s v%d, v%d offset:%d" % ("_d16_hi" if cc & 1 else "", t1, 8 + 2 * e + (cc >> 1), cc * UP + e * 128))
    if AUX:
        for j in range(2):
            A("s_add_u32 s48, s39, %d" % (j * 1280 * 1280))
            A("buffer_load_dwordx4 %s, v24, s[%d:%d], s48 offen" % (v(GX + 6 * j, 4), SX, SX + 3))
            A("buffer_load_dword v%d, v24, s[%d:%d], s48 offen offset:16" % (GX + 6 * j + 4, SX, SX + 3))
        A("buffer_load_dwordx4 %s, v24, s[%d:%d], 0 offen" % (v(GW, 4), SGW, SGW + 3))
        A("buffer_load_dword v%d, v24, s[%d:%d], 0 offen offset:16" % (GW + 4, SGW, SGW + 3))
    A("s_waitcnt lgkmcnt(0)")
    stamp(A, timing, 1)
    if V3: A("s_barrier")
    if AUX:
        A("s_setprio 0")
        A("s_waitcnt vmcnt(0)")
        for q in range(5):
            A("v_lshlrev_b32 v%d, 16, v%d" % (WU + 2 * q, GW + q))
            A("v_and_b32 v%d, 0xffff0000, v%d" % (WU + 2 * q + 1, GW + q))
        A("s_lshl_b32 s48, s38, 2")
        gate_row(A, GX, XU, WU, SG, 25, 48)
        A("s_cmp_ge_u32 s38, 768")
        A("s_cbranch_scc1 ssm_ng")
        A("s_add_u32 s49, s48, %d" % (1280 * 4))
        gate_row(A, GX + 6, XU, WU, SG, 25, 49)
        A.label("ssm_ng")
    dump_stamps(A, timing, 2, end, 0)
    A("s_branch %s" % end)

    A.label("ssm_main")
    A("s_lshr_b32 s%d, s%d, 1" % (sCH, sW))
    A("s_and_b32 s%d, s%d, 1" % (sHF, sW))
    P = 8
    for i in range(6): A("v_mov_b32 v%d, 0" % (P + i))
    A("s_add_u32 s10, s%d, s%d" % (sD0, sCH))
    A("s_lshl_b32 s11, s10, 8")
    A("s_lshl_b32 s34, s%d, 7" % sHF)
    A("s_add_u32 s11, s11, s34")
    A("v_lshlrev_b32 v%d, 1, v%d" % (t0, vLane))
    A("v_add_u32 v%d, s11, v%d" % (t0, t0))
    A("s_lshl_b32 s11, s%d, 1" % sD0)
    A("s_waitcnt lgkmcnt(0)")
    for i in range(6):
        A("global_load_short_d16_hi v%d, v%d, s[%d:%d]" % (P + i, t0, 18 + 2 * i, 19 + 2 * i))
    A("s_load_dwordx2 s[34:35], s[30:31], s11")
    A("s_load_dwordx2 s[40:41], s[32:33], s11")
    if B0: A("s_barrier")
    srd(A, SAT, 4, WS_AT, NQ)
    vTab = 50
    A("s_mul_i32 s42, s%d, %d" % (sW, TAB))
    A("v_lshlrev_b32 v%d, 2, v%d" % (vTab, vLane))
    A("v_add_u32 v%d, s42, v%d" % (vTab, vTab))
    A("s_waitcnt lgkmcnt(0)")
    for (src, dst) in ((34, 43), (40, 44)):
        A("s_bitcmp1_b32 s%d, 1" % sCH)
        A("s_cselect_b32 s%d, s%d, s%d" % (dst, src + 1, src))
        A("s_lshl_b32 s45, s%d, 16" % dst)
        A("s_and_b32 s%d, s%d, 0xffff0000" % (dst, dst))
        A("s_bitcmp1_b32 s%d, 0" % sCH)
        A("s_cselect_b32 s%d, s%d, s45" % (dst, dst))
    sDskip = 44
    vDT = 6
    A("v_mov_b32 v%d, s43" % vDT)
    A("v_mul_f32 v%d, 0x%x, v%d" % (vDT, f32bits(LOG2E), vDT))
    A("v_exp_f32 v%d, v%d" % (vDT, vDT))
    A("s_nop 0")
    A("v_cvt_pk_bf16_f32 v%d, v%d, v%d" % (vDT, vDT, vDT))
    A("v_and_b32 v%d, 0xffff0000, v%d" % (vDT, vDT))
    Z, E1, E2, E4, W8, E256, E512, E1024, CB = 14, 16, 18, 20, 22, 24, 26, 28, 30
    GA, GB, FA, FB, T1, T2 = 32, 34, 38, 40, 42, 44
    PK = [46, 47, 48, 49]
    A("s_waitcnt vmcnt(0)")
    stamp(A, timing, 7)
    A("v_mul_f32 v%d, v%d, v%d" % (Z, vDT, P + 0))
    A("v_mul_f32 v%d, v%d, v%d" % (Z + 1, vDT, P + 1))
    A("v_mul_f32 v%d, v%d, v%d" % (P + 2, vDT, P + 2))
    A("v_mul_f32 v%d, v%d, v%d" % (P + 3, vDT, P + 3))
    A("v_mul_f32 v%d, 0x%x, v%d" % (Z, f32bits(LOG2E), Z))
    A("v_mul_f32 v%d, 0x%x, v%d" % (Z + 1, f32bits(1.0 / (2 * math.pi)), Z + 1))
    def cmul(d, a, b, t, conj=False):
        A("v_pk_mul_f32 %s, %s, %s op_sel_hi:[0,1]" % (v(t, 2), v(b, 2), v(a, 2)))
        A("v_pk_fma_f32 %s, %s, %s, %s op_sel:[1,1,0] op_sel_hi:[1,0,1] %s:[1,0,0]" % (v(d, 2), v(b, 2), v(a, 2), v(t, 2), "neg_hi" if conj else "neg_lo"))
    def anchor(d, m):
        if m == 1:
            A("v_exp_f32 v%d, v%d" % (t0, Z))
            A("v_fract_f32 v%d, v%d" % (t1, Z + 1))
        else:
            A("v_mul_f32 v%d, %s, v%d" % (t0, "%d.0" % m if m in (2, 4) else "0x%x" % f32bits(float(m)), Z))
            A("v_mul_f32 v%d, %s, v%d" % (t1, "%d.0" % m if m in (2, 4) else "0x%x" % f32bits(float(m)), Z + 1))
            A("v_exp_f32 v%d, v%d" % (t0, t0))
            A("v_fract_f32 v%d, v%d" % (t1, t1))
        A("v_cos_f32 v%d, v%d" % (d, t1))
        A("v_sin_f32 v%d, v%d" % (d + 1, t1))
        A("s_nop 0")
        A("v_mul_f32 v%d, v%d, v%d" % (d, d, t0))
        A("v_mul_f32 v%d, v%d, v%d" % (d + 1, d + 1, t0))
    anchor(W8, 8)
    anchor(E1, 1)
    cmul(CB, P + 4, P + 2, T1)
    A("v_xor_b32 v%d, 0x80000000, v%d" % (CB + 1, CB + 1))
    anchor(E256, 256)
    anchor(E512, 512)
    anchor(E1024, 1024)
    cmul(E2, E1, E1, T1)
    cmul(E4, E2, E2, T2)
    pki = [0]
    def put(src, rows):
        pk = PK[pki[0] & 3]; pki[0] += 1
        A("v_cvt_pk_bf16_f32 v%d, v%d, v%d" % (pk, src, src + 1))
        for r in rows:
            A("ds_write_b32 v%d, v%d offset:%d" % (vTab, pk, r * 272))
    fops = []
    fops.append(lambda: (A("v_mov_b32 v%d, 0x3f80" % PK[3]), A("ds_write_b32 v%d, v%d offset:%d" % (vTab, PK[3], 32 * 272))))
    fops.append(lambda: put(W8, [33]))
    cur = W8
    fr = [FA, FB]
    for j in range(2, 32):
        d = fr[j & 1]
        fops.append((lambda d=d, cur=cur, j=j: (cmul(d, cur, W8, T1), put(d, [32 + j]))))
        cur = d
    gops = []
    def gstep(d, a, b, base):
        gops.append(lambda: (cmul(d, a, b, T2, conj=True), put(d, GROWS[base])))
    gops.append(lambda: put(CB, GROWS[0]))
    g = [GA, GB]
    prev = CB
    for k in range(1, 8):
        gstep(g[k & 1], prev, E1, k); prev = g[k & 1]
    G256, G512, G1024, G1536 = 36, 52, 54, 56
    gstep(G256, CB, E256, 256)
    prev = G256
    for k, base in enumerate((258, 260, 262, 264)):
        gstep(g[k & 1], prev, E2, base); prev = g[k & 1]
    gstep(G512, CB, E512, 512)
    gstep(GA, G512, E4, 516); gstep(GB, GA, E4, 520)
    gstep(G256, G512, E256, 768)
    gstep(GA, G256, E4, 772); gstep(GB, GA, E4, 776)
    gstep(G1024, CB, E1024, 1024)
    gstep(GA, G1024, W8, 1032)
    gstep(GB, G1024, E256, 1280); gstep(GA, GB, W8, 1288)
    gstep(G1536, G1024, E512, 1536); gstep(GA, G1536, W8, 1544)
    gstep(GB, G1536, E256, 1792); gstep(GA, GB, W8, 1800)
    n = max(len(fops), len(gops))
    for i in range(n):
        if i < len(fops): fops[i]()
        if i < len(gops): gops[i]()
    stamp(A, timing, 1)
    AF, BF, DK = 64, 96, 16
    A("v_and_b32 v%d, 31, v%d" % (t0, vLane))
    A("v_mul_u32_u24 v%d, 272, v%d" % (t0, t0))
    A("v_lshrrev_b32 v%d, 5, v%d" % (t1, vLane))
    A("v_lshl_add_u32 v%d, v%d, 4, v%d" % (t0, t1, t0))
    A("v_add_u32 v%d, s42, v%d" % (t0, t0))
    for t in range(8):
        A("ds_read_b128 %s, v%d offset:%d" % (v(AF + 4 * t, 4), t0, 32 * t))
        A("ds_read_b128 %s, v%d offset:%d" % (v(BF + 4 * t, 4), t0, 32 * 272 + 32 * t))
    for t in range(8):
        A("s_waitcnt lgkmcnt(%d)" % (14 - 2 * t))
        A("v_mfma_f32_32x32x16_bf16 %s, %s, %s, %s" % (v(DK, 16), v(AF + 4 * t, 4), v(BF + 4 * t, 4), "0" if t == 0 else v(DK, 16)))
    vL16 = 7
    A("v_lshlrev_b32 v%d, 4, v%d" % (vL16, vLane))
    A("v_add_u32 v%d, s42, v%d" % (t0, vL16))
    A("s_xor_b32 s45, s%d, 1" % sW)
    A("s_mul_i32 s45, s45, %d" % TAB)
    A("v_add_u32 v%d, s45, v%d" % (t1, vL16))
    A("s_mul_i32 s46, s%d, %d" % (sCH, CH))
    A("s_nop 7")
    A("s_nop 1")
    A("s_cmp_eq_u32 s%d, 0" % sHF)
    A("s_cbranch_scc0 ssm_x1")
    A("ds_write_b128 v%d, %s" % (t0, v(DK + 8, 4)))
    A("ds_write_b128 v%d, %s offset:1024" % (t0, v(DK + 12, 4)))
    A("s_branch ssm_x2")
    A.label("ssm_x1")
    A("ds_write_b128 v%d, %s" % (t0, v(DK, 4)))
    A("ds_write_b128 v%d, %s offset:1024" % (t0, v(DK + 4, 4)))
    A.label("ssm_x2")
    A("s_waitcnt lgkmcnt(0)")
    A("s_barrier")
    stamp(A, timing, 2)
    R = 32
    A("ds_read_b128 %s, v%d" % (v(R, 4), t1))
    A("ds_read_b128 %s, v%d offset:1024" % (v(R + 4, 4), t1))
    A("v_and_b32 v%d, 31, v%d" % (t2, vLane))
    A("v_lshrrev_b32 v%d, 5, v%d" % (t3, vLane))
    A("v_lshlrev_b32 v%d, 4, v%d" % (t2, t2))
    A("s_add_u32 s47, s46, %d" % (CP0 + 4080))
    A("v_sub_u32 v%d, s47, v%d" % (t2, t2))
    A("s_waitcnt lgkmcnt(0)")
    A("s_cmp_eq_u32 s%d, 0" % sHF)
    A("s_cbranch_scc0 ssm_y1")
    for r in range(8): A("v_add_f32 v%d, v%d, v%d" % (DK + r, DK + r, R + r))
    A("v_lshlrev_b32 v%d, 9, v%d" % (t3, t3))
    A("v_sub_u32 v%d, v%d, v%d" % (t2, t2, t3))
    for j in range(4): A("v_cvt_pk_bf16_f32 v%d, v%d, v%d" % (R + j, DK + 2 * j, DK + 2 * j + 1))
    A("ds_write_b128 v%d, %s" % (t2, v(R, 4)))
    A("v_mov_b32 v%d, 0" % (R + 4)); A("v_mov_b32 v%d, 0" % (R + 5)); A("v_mov_b32 v%d, 0" % (R + 6)); A("v_mov_b32 v%d, 0" % (R + 7))
    A("s_add_u32 s47, s46, %d" % (CP0 + 4096))
    A("v_add_u32 v%d, s47, v%d" % (t3, vL16))
    A("s_mov_b64 exec, 0xf")
    A("ds_write_b128 v%d, %s" % (t3, v(R + 4, 4)))
    A("s_mov_b64 exec, -1")
    A("s_branch ssm_y2")
    A.label("ssm_y1")
    for r in range(8): A("v_add_f32 v%d, v%d, v%d" % (DK + r, DK + 8 + r, R + r))
    A("v_lshlrev_b32 v%d, 9, v%d" % (R + 12, t3))
    A("v_sub_u32 v%d, v%d, v%d" % (R + 12, t2, R + 12))
    A("v_subrev_u32 v%d, 1024, v%d" % (R + 12, R + 12))
    A("v_cvt_pk_bf16_f32 v%d, v%d, v%d" % (R + 0, DK + 0, DK + 0))
    A("v_cvt_pk_bf16_f32 v%d, v%d, v%d" % (R + 1, DK + 1, DK + 1))
    A("v_cvt_pk_bf16_f32 v%d, v%d, v%d" % (R + 2, DK + 1, DK + 2))
    A("v_cvt_pk_bf16_f32 v%d, v%d, v%d" % (R + 3, DK + 2, DK + 2))
    A("ds_write_b128 v%d, %s" % (R + 12, v(R, 4)))
    A("v_lshlrev_b32 v%d, 10, v%d" % (R + 13, t3))
    A("v_sub_u32 v%d, v%d, v%d" % (R + 13, t2, R + 13))
    A("v_subrev_u32 v%d, 2560, v%d" % (R + 13, R + 13))
    A("v_and_b32 v%d, 1, v%d" % (R + 14, vLane))
    A("v_cmp_eq_u32 vcc, 1, v%d" % (R + 14))
    A("s_nop 1")
    for k in range(2):
        K8, K0 = DK + 4 + 2 * k, DK + 5 + 2 * k
        o = R + 4 + 4 * k
        A("v_cndmask_b32 v%d, v%d, v%d, vcc" % (R + 15, K0, K8))
        A("v_cvt_pk_bf16_f32 v%d, v%d, v%d" % (o + 0, K8, K8))
        A("v_cvt_pk_bf16_f32 v%d, v%d, v%d" % (o + 1, K8, R + 15))
        A("v_cvt_pk_bf16_f32 v%d, v%d, v%d" % (o + 2, K0, K0))
        A("v_mov_b32 v%d, v%d" % (o + 3, o + 2))
    A("ds_write_b128 v%d, %s offset:512" % (R + 13, v(R + 4, 4)))
    A("ds_write_b128 v%d, %s" % (R + 13, v(R + 8, 4)))
    A.label("ssm_y2")
    A("s_waitcnt lgkmcnt(0)")
    A("s_barrier")
    stamp(A, timing, 3)
    A("s_lshl_b32 s47, s%d, 11" % sHF)
    A("s_add_u32 s47, s47, s46")
    A("s_add_u32 s47, s47, %d" % CP0)
    A("v_add_u32 v%d, s47, v%d" % (t0, vL16))
    for it in range(2):
        d = 32 + 8 * it
        A("ds_read_b128 %s, v%d offset:%d" % (v(d, 4), t0, it * 1024))
        A("ds_read_b64 %s, v%d offset:%d" % (v(d + 4, 2), t0, it * 1024 + 16))
    A("v_lshrrev_b32 v%d, 2, v%d" % (t1, vLane))
    A("v_mul_u32_u24 v%d, %d, v%d" % (t1, CPS, t1))
    A("v_and_b32 v%d, 3, v%d" % (t2, vLane))
    A("v_lshl_add_u32 v%d, v%d, 4, v%d" % (t1, t2, t1))
    A("s_add_u32 s47, s46, %d" % (CP0 + CPS + 4096))
    A("v_add_u32 v%d, s47, v%d" % (t1, t1))
    for r in range(4): A("v_mov_b32 v%d, 0" % (60 + r))
    A("s_cmp_eq_u32 s%d, 0" % sHF)
    A("s_cbranch_scc0 ssm_z1")
    A("s_mov_b64 exec, 0xfff")
    A("ds_write_b128 v%d, v[60:63]" % t1)
    A("s_mov_b64 exec, -1")
    A.label("ssm_z1")
    A("v_add_u32 v64, %d, v%d" % (2 * CPS, t0))
    A("v_add_u32 v65, %d, v%d" % (2 * CPS + 1024, t0))
    A("s_waitcnt lgkmcnt(0)")
    for it in range(2):
        d = 32 + 8 * it; e = 48 + 8 * it
        for i in range(4): A("v_alignbit_b32 v%d, v%d, v%d, 16" % (e + i, d + i + 1, d + i))
        for i in range(4): A("v_alignbit_b32 v%d, v%d, v%d, 16" % (e + 4 + i, d + i + 2, d + i + 1))
        A("ds_write_b128 v%d, %s offset:%d" % (t0, v(e, 4), it * 1024 + CPS))
        A("ds_write2_b32 v%d, v%d, v%d offset0:0 offset1:1" % (64 + it, d + 1, d + 2))
        A("ds_write2_b32 v%d, v%d, v%d offset0:2 offset1:3" % (64 + it, d + 3, d + 4))
        A("ds_write_b128 v%d, %s offset:%d" % (t0, v(e + 4, 4), it * 1024 + 3 * CPS))
    AF, BF, DC = 32, 64, 96
    vAlo, vAhi, vB = 8, 9, 10
    A("v_and_b32 v%d, 3, v%d" % (t1, vLane))
    A("v_sub_u32 v%d, 3, v%d" % (t1, t1))
    A("v_mul_u32_u24 v%d, %d, v%d" % (vAlo, CPS, t1))
    A("v_bfe_u32 v%d, v%d, 2, 2" % (t1, vLane))
    A("v_lshrrev_b32 v%d, 4, v%d" % (t2, vLane))
    A("v_lshlrev_b32 v%d, 1, v%d" % (t3, t2))
    A("v_sub_u32 v%d, v%d, v%d" % (t3, t3, t1))
    A("v_lshl_add_u32 v%d, v%d, 3, v%d" % (vAlo, t3, vAlo))
    A("s_lshl_b32 s47, s%d, 8" % sHF)
    A("s_sub_u32 s48, s46, s47")
    A("s_add_u32 s48, s48, %d" % (CP0 + 8 * 507 - 3584))
    A("v_add_u32 v%d, s48, v%d" % (vAlo, vAlo))
    A("v_add_u32 v%d, 2048, v%d" % (vAhi, vAlo))
    A("v_and_b32 v%d, 15, v%d" % (t1, vLane))
    A("v_lshlrev_b32 v%d, 5, v%d" % (vB, t1))
    A("v_lshl_add_u32 v%d, v%d, 4, v%d" % (vB, t2, vB))
    A("s_mul_i32 s48, s%d, %d" % (sCH, UP))
    A("s_add_u32 s48, s48, %d" % (UB + 448))
    A("s_sub_u32 s49, s48, s47")
    A("v_add_u32 v%d, s49, v%d" % (vB, vB))
    vU, vO = 11, 12
    A("v_lshlrev_b32 v%d, 5, v%d" % (vO, t1))
    A("v_lshl_add_u32 v%d, v%d, 3, v%d" % (vO, t2, vO))
    A("s_lshl_b32 s47, s%d, 11" % sHF)
    A("s_add_u32 s49, s48, s47")
    A("s_add_u32 s49, s49, 32")
    A("v_add_u32 v%d, s49, v%d" % (vU, vO))
    A("s_add_u32 s10, s%d, s%d" % (sD0, sCH))
    A("s_lshl_b32 s10, s10, 12")
    A("s_add_u32 s10, s10, s47")
    A("s_add_u32 s47, s46, %d" % EX2)
    A("s_lshl_b32 s48, s%d, 12" % sHF)
    A("s_add_u32 s49, s47, s48")
    A("v_add_u32 v%d, s49, v%d" % (13, vL16))
    A("s_xor_b32 s48, s48, 4096")
    A("s_add_u32 s49, s47, s48")
    A("v_add_u32 v%d, s49, v%d" % (14, vL16))
    A("s_waitcnt lgkmcnt(0)")
    stamp(A, timing, 8)
    A("s_barrier")
    stamp(A, timing, 4)
    for cl in range(4):
        if cl:
            A("v_subrev_u32 v%d, 64, v%d" % (vAlo, vAlo))
            A("v_subrev_u32 v%d, 64, v%d" % (vB, vB))
        seq = [("B", 0)]
        for a in range(8): seq += [("A", a, 0), ("A", a, 1)]
        seq += [("B", b) for b in range(1, 8)]
        for x in seq:
            if x[0] == "A":
                i, h = x[1], x[2]
                A("ds_read_b64 %s, v%d offset:%d" % (v(AF + 4 * i + 2 * h, 2), vAlo, 512 * (7 - i) + 8 * h))
            else:
                A("ds_read_b128 %s, v%d offset:%d" % (v(BF + 4 * x[1], 4), vB, 512 * x[1]))
        pos = {x: n for n, x in enumerate(seq)}
        waited = -1
        for b in range(8):
            for a in range(8 - b):
                need = max(pos[("A", a, 1)], pos[("B", b)])
                if need > waited:
                    cnt = len(seq) - 1 - need
                    if cnt <= 15:
                        A("s_waitcnt lgkmcnt(%d)" % cnt)
                        waited = need
                    elif len(seq) - 1 - 15 > waited:
                        A("s_waitcnt lgkmcnt(15)")
                        waited = len(seq) - 1 - 15
                c = a + b
                first = (cl == 0 and b == 0)
                A("v_mfma_f32_16x16x32_bf16 %s, %s, %s, %s" % (v(DC + 4 * c, 4), v(AF + 4 * a, 4), v(BF + 4 * b, 4), "0" if first else v(DC + 4 * c, 4)))
    stamp(A, timing, 5)
    A("s_nop 7")
    A("s_cmp_eq_u32 s%d, 0" % sHF)
    A("s_cbranch_scc0 ssm_w1")
    for k in range(4): A("ds_write_b128 v13, %s offset:%d" % (v(DC + 16 + 4 * k, 4), 1024 * k))
    A("s_branch ssm_w2")
    A.label("ssm_w1")
    for k in range(4): A("ds_write_b128 v13, %s offset:%d" % (v(DC + 4 * k, 4), 1024 * k))
    A.label("ssm_w2")
    U = 32
    for k in range(4): A("ds_read_b64 %s, v%d offset:%d" % (v(U + 2 * k, 2), vU, 512 * k))
    A("s_waitcnt lgkmcnt(0)")
    A("s_barrier")
    R = 64
    for k in range(4): A("ds_read_b128 %s, v14 offset:%d" % (v(R + 4 * k, 4), 1024 * k))
    UF = 40
    for k in range(8):
        A("v_lshlrev_b32 v%d, 16, v%d" % (UF + 2 * k, U + k))
        A("v_and_b32 v%d, 0xffff0000, v%d" % (UF + 2 * k + 1, U + k))
    for r in range(16): A("v_mul_f32 v%d, s%d, v%d" % (UF + r, sDskip, UF + r))
    for k in range(8): A("v_cvt_pk_bf16_f32 v%d, v%d, v%d" % (U + k, UF + 2 * k, UF + 2 * k + 1))
    for k in range(8):
        A("v_lshlrev_b32 v%d, 16, v%d" % (UF + 2 * k, U + k))
        A("v_and_b32 v%d, 0xffff0000, v%d" % (UF + 2 * k + 1, U + k))
    A("s_waitcnt lgkmcnt(0)")
    A("s_cmp_eq_u32 s%d, 0" % sHF)
    A("s_cbranch_scc0 ssm_v1")
    for r in range(16): A("v_add_f32 v%d, v%d, v%d" % (DC + r, DC + r, R + r))
    A("s_branch ssm_v2")
    A.label("ssm_v1")
    for r in range(16): A("v_add_f32 v%d, v%d, v%d" % (DC + r, DC + 16 + r, R + r))
    A.label("ssm_v2")
    for k in range(8): A("v_cvt_pk_bf16_f32 v%d, v%d, v%d" % (U + k, DC + 2 * k, DC + 2 * k + 1))
    for k in range(8):
        A("v_lshlrev_b32 v%d, 16, v%d" % (DC + 2 * k, U + k))
        A("v_and_b32 v%d, 0xffff0000, v%d" % (DC + 2 * k + 1, U + k))
    for r in range(16): A("v_add_f32 v%d, v%d, v%d" % (DC + r, DC + r, UF + r))
    for k in range(8): A("v_cvt_pk_bf16_f32 v%d, v%d, v%d" % (U + k, DC + 2 * k, DC + 2 * k + 1))
    for k in range(4):
        A("buffer_store_dwordx2 %s, v%d, s[%d:%d], s10 offen offset:%d" % (v(U + 2 * k, 2), vO, SAT, SAT + 3, 512 * k))
    stamp(A, timing, 6)
    dump_stamps(A, timing, 9, end, 0)
    A("s_branch %s" % end)


FL = 157696
LPRIO2 = 2
GXCD = True
WOSSM = True
WOWAVE = 8
SPIN = 100000
UROT = True
UROTM = 5
UEARLY = False
PHASES = [[0, 1, 2, 3], [4, 5, 6, 7]]

def flag_set(A, vaddr, vval, off):
    A("s_mov_b64 exec, 1")
    A("ds_write_b32 v%d, v%d offset:%d" % (vaddr, vval, off))
    A("s_mov_b64 exec, -1")

def flag_wait(A, vaddr, off, label, vt=2):
    A("s_mov_b32 s59, 0")
    A.label(label)
    A("ds_read_b32 v%d, v%d offset:%d" % (vt, vaddr, off))
    A("s_waitcnt lgkmcnt(0)")
    A("v_cmp_le_u32 vcc, 4, v%d" % vt)
    A("s_nop 3")
    A("s_cmp_eq_u64 vcc, -1")
    A("s_cbranch_scc1 %s_d" % label)
    A("s_add_u32 s59, s59, 1")
    A("s_cmp_lt_u32 s59, %d" % SPIN)
    A("s_cbranch_scc0 %s_d" % label)
    A("s_sleep 1")
    A("s_branch %s" % label)
    A.label(label + "_d")

def conv_phases(A, timing, vA, vB, AF, BF, DC, vFc, vFu):
    mf = []
    for p, bl in enumerate(PHASES):
        amax = 7 - bl[0]
        for cl in range(4):
            for a in range(amax, -1, -1):
                for b in bl:
                    if a + b <= 7: mf.append((p, cl, a, b))
    def aslot(p, cl, a):
        na = 8 - PHASES[p][0]
        return (a + na * (cl % (8 // na))) % 8
    def bslot(p, cl, b):
        nb = len(PHASES[p])
        return (b - PHASES[p][0] + nb * (cl % (8 // nb))) % 8
    reads = {}
    for n, (p, cl, a, b) in enumerate(mf):
        ta, tb = ("A", p, cl, a), ("B", p, cl, b)
        if ta not in reads:
            r = AF + 4 * aslot(p, cl, a)
            reads[ta] = dict(kind="A", slot=aslot(p, cl, a), first=n, last=n, p=p,
                             txt=["ds_read_b64 %s, v%d offset:%d" % (v(r + 2 * h, 2), vA, 512 * (7 - a) + 8 * h + 64 * (3 - cl)) for h in range(2)])
        if tb not in reads:
            r = BF + 4 * bslot(p, cl, b)
            reads[tb] = dict(kind="B", slot=bslot(p, cl, b), first=n, last=n, p=p,
                             txt=["ds_read_b128 %s, v%d offset:%d" % (v(r, 4), vB, 512 * b + 64 * (3 - cl))])
        reads[ta]["last"] = n; reads[tb]["last"] = n
    pstart = {}
    for n, m in enumerate(mf): pstart.setdefault(m[0], n)
    for t, r in reads.items():
        prev = [q["last"] for q in reads.values() if q["kind"] == r["kind"] and q["slot"] == r["slot"] and q["last"] < r["first"]]
        e = max(prev) + 1 if prev else 0
        if r["kind"] == "B": e = max(e, pstart[r["p"]])
        r["e"] = e
        for q in reads.values():
            if q is not r and q["kind"] == r["kind"] and q["slot"] == r["slot"]:
                assert q["last"] < r["first"] or q["first"] > r["last"]
    order = []; state = {"done": 0}
    issued = set()
    def issue_ready(n, only=None):
        rd = sorted([t for t, r in reads.items() if t not in issued and r["e"] <= n and (only is None or r["kind"] == only)], key=lambda t: reads[t]["first"])
        for t in rd:
            for x in reads[t]["txt"]:
                A(x); order.append(t)
            issued.add(t)
    def need(tag):
        idx = max(i for i, x in enumerate(order) if x == tag)
        if idx < state["done"]: return
        cnt = min(len(order) - 1 - idx, 15)
        A("s_waitcnt lgkmcnt(%d)" % cnt)
        state["done"] = len(order) - cnt
        assert state["done"] > idx
    first = set()
    for n, (p, cl, a, b) in enumerate(mf):
        if n == pstart[p]:
            if p == 0: flag_wait(A, vFc, 0, "ssm_fp0")
            else:
                issue_ready(n, only="A")
                flag_wait(A, vFu, 4 if UROT else 4 * (PHASES[p][-1] >> 1), "ssm_fp%d" % p)
            state["done"] = len(order)
            stamp(A, timing, 4 if p == 0 else (9 if p == 1 else 10))
        issue_ready(n)
        need(("B", p, cl, b)); need(("A", p, cl, a))
        c = a + b
        A("v_mfma_f32_16x16x32_bf16 %s, %s, %s, %s" % (v(DC + 4 * c, 4), v(AF + 4 * aslot(p, cl, a), 4), v(BF + 4 * bslot(p, cl, b), 4), v(DC + 4 * c, 4) if c in first else "0"))
        first.add(c)

def role_ssm3(A, end, timing):
    t0, t1, t2, t3 = 2, 3, 4, 5
    sD0, sCH, sHF = 7, 8, 9
    SX, SAT = 12, 36
    A("s_load_dwordx16 s[16:31], s[0:1], 0")
    A("s_load_dwordx2 s[32:33], s[0:1], 64")
    A("s_load_dwordx2 s[4:5], s[0:1], 136")
    A("s_and_b32 s10, s2, 7")
    A("s_mul_i32 s10, s10, 20")
    A("s_lshr_b32 s11, s2, 3")
    A("s_add_u32 s10, s10, s11")
    A("s_lshl_b32 s%d, s10, 2" % sD0)
    A("s_cmp_lt_u32 s%d, 8" % sW)
    A("s_cbranch_scc1 ssm_main")
    A("s_cmp_lt_u32 s%d, 12" % sW)
    A("s_cbranch_scc0 ssm_lp2")
    A("s_setprio %d" % LPRIO)
    A("s_branch ssm_lp3")
    A.label("ssm_lp2")
    A("s_setprio %d" % LPRIO2)
    A.label("ssm_lp3")
    A("s_load_dwordx2 s[36:37], s[0:1], 112")
    if WOSSM: A("s_load_dwordx2 s[82:83], s[0:1], 104")
    A("s_sub_u32 s10, s%d, 8" % sW)
    A("s_lshr_b32 s50, s10, 2")
    A("s_and_b32 s51, s10, 3")
    if UROT:
        A("s_lshr_b32 s53, s2, 3")
        A("s_mul_i32 s53, s53, %d" % UROTM)
        A("s_add_u32 s53, s53, s51")
        for e in range(4):
            A("s_add_u32 s52, s53, %d" % (4 * e))
            A("s_and_b32 s52, s52, 15")
            A("s_lshl_b32 s52, s52, 6")
            A("s_lshl_b32 s54, s50, 10")
            A("s_add_u32 s%d, s52, s54" % (84 + e))
    else:
        A("s_lshl_b32 s52, s50, 10")
        A("s_lshl_b32 s53, s51, 7")
        A("s_add_u32 s52, s52, s53")
        for e, eo in enumerate([0, 64, 512, 576]):
            A("s_add_u32 s%d, s52, %d" % (84 + e, eo))
    A("v_mul_u32_u24 v%d, 1280, v%d" % (t0, vLane))
    A("s_lshl_b32 s11, s%d, 1" % sD0)
    A("v_mov_b32 v16, 0"); A("v_mov_b32 v17, 0"); A("v_mov_b32 v18, 0"); A("v_mov_b32 v19, 0")
    A("s_mul_i32 s34, s10, %d" % UP)
    A("s_add_u32 s34, s34, %d" % UB)
    A("v_lshlrev_b32 v%d, 4, v%d" % (t1, vLane))
    A("v_add_u32 v%d, s34, v%d" % (t1, t1))
    A("s_cmp_lt_u32 s10, 4")
    A("s_cbranch_scc0 ssm_nz")
    A("s_mov_b32 exec_lo, 0x3fffffff")
    A("s_mov_b32 exec_hi, 0")
    A("ds_write_b128 v%d, v[16:19]" % t1)
    A("s_mov_b64 exec, -1")
    A.label("ssm_nz")
    A("s_cmp_eq_u32 s10, 4")
    A("s_cbranch_scc0 ssm_nf")
    A("v_lshlrev_b32 v%d, 2, v%d" % (t1, vLane))
    A("v_add_u32 v%d, %d, v%d" % (t1, FL, t1))
    A("ds_write_b32 v%d, v16" % t1)
    A.label("ssm_nf")
    A("v_lshlrev_b32 v%d, 1, v%d" % (t1, vLane))
    A("v_add_u32 v%d, %d, v%d" % (t1, UB + 480, t1))
    for e in range(4):
        A("s_lshl_b32 s34, s%d, 1" % (84 + e))
        A("v_add_u32 v%d, s34, v%d" % (4 + e, t1))
    A("s_lshl_b32 s34, s50, %d" % (2 if UROT else 3))
    A("s_add_u32 s34, s34, %d" % (FL + 128))
    A("v_mov_b32 v20, s34")
    A("v_mov_b32 v21, 1")
    A("s_waitcnt lgkmcnt(0)")
    srd(A, SX, 16, 0, NQ)
    if not UEARLY: A("s_barrier")
    for e in range(4):
        A("s_mul_i32 s34, s%d, 1280" % (84 + e))
        A("s_add_u32 s34, s34, s11")
        A("buffer_load_dwordx2 %s, v%d, s[%d:%d], s34 offen %s" % (v(8 + 2 * e, 2), t0, SX, SX + 3, GMOD))
    if UEARLY: A("s_barrier")
    stamp(A, timing, 2)
    GX, GW, XU, WU, SGW, SG = 32, 44, 52, 64, 40, 44
    if GXCD:
        A("s_lshr_b32 s38, s2, 3")
        A("s_lshl_b32 s38, s38, 3")
        A("s_add_u32 s38, s38, s10")
        A("s_and_b32 s54, s2, 7")
        A("s_lshl_b32 s54, s54, 7")
        for (dst, add) in ((55, 0), (56, 160)):
            A("s_add_u32 s57, s38, %d" % add)
            A("s_lshr_b32 s58, s57, 7")
            A("s_lshl_b32 s58, s58, 10")
            A("s_and_b32 s57, s57, 127")
            A("s_add_u32 s57, s57, s58")
            A("s_add_u32 s%d, s57, s54" % dst)
        A("s_cmp_ge_u32 s38, 96")
        A("s_cselect_b32 s56, 0x100000, s56")
    else:
        A("s_lshl_b32 s38, s2, 3")
        A("s_add_u32 s55, s38, s10")
        A("s_add_u32 s56, s55, 1280")
    A("v_mul_u32_u24 v24, 20, v%d" % vLane)
    A("v_mov_b32 v25, 0")
    srd(A, SGW, 36, 0, 1280)
    srd(A, SG, 4, WS_G, 8192)
    for e in range(4):
        A("s_waitcnt vmcnt(%d)" % (3 - e))
        for cc in range(4):
            A("ds_write_b16%s v%d, v%d offset:%d" % ("_d16_hi" if cc & 1 else "", 4 + e, 8 + 2 * e + (cc >> 1), cc * UP))
        if (e == 3) if UROT else (e & 1):
            A("s_waitcnt lgkmcnt(0)")
            A("s_mov_b64 exec, 1")
            A("ds_add_u32 v20, v21 offset:%d" % (0 if UROT else 4 * (e >> 1)))
            A("s_mov_b64 exec, -1")
            stamp(A, timing, 1 if e == 1 else 3)
    for j in range(2):
        A("s_min_u32 s48, s%d, 2048" % (55 + j))
        A("s_mul_i32 s48, s48, 1280")
        A("buffer_load_dwordx4 %s, v24, s[%d:%d], s48 offen" % (v(GX + 6 * j, 4), SX, SX + 3))
        A("buffer_load_dword v%d, v24, s[%d:%d], s48 offen offset:16" % (GX + 6 * j + 4, SX, SX + 3))
    A("buffer_load_dwordx4 %s, v24, s[%d:%d], 0 offen" % (v(GW, 4), SGW, SGW + 3))
    A("buffer_load_dword v%d, v24, s[%d:%d], 0 offen offset:16" % (GW + 4, SGW, SGW + 3))
    A("s_setprio 0")
    def gates():
        for q in range(5):
            A("v_lshlrev_b32 v%d, 16, v%d" % (WU + 2 * q, GW + q))
            A("v_and_b32 v%d, 0xffff0000, v%d" % (WU + 2 * q + 1, GW + q))
        A("s_lshl_b32 s48, s55, 2")
        gate_row(A, GX, XU, WU, SG, 25, 48)
        lb = A.newlabel("ssm_ng")
        A("s_cmp_ge_u32 s56, 2048")
        A("s_cbranch_scc1 %s" % lb)
        A("s_lshl_b32 s49, s56, 2")
        gate_row(A, GX + 6, XU, WU, SG, 25, 49)
        A.label(lb)
    if WOSSM:
        SWO, SWF, SC = 84, 88, 92
        A("s_cmp_eq_u32 s%d, %d" % (sW, WOWAVE))
        A("s_cbranch_scc0 ssm_nwo")
        A("s_cmp_lt_u32 s2, 100")
        A("s_cbranch_scc0 ssm_nwo")
        A("v_lshrrev_b32 v28, 4, v%d" % vLane)
        A("v_and_b32 v29, 15, v%d" % vLane)
        A("v_mul_u32_u24 v26, %d, v28" % (8 * 1280))
        A("v_lshl_add_u32 v26, v29, 4, v26")
        A("v_lshrrev_b32 v27, 1, v29")
        A("v_mul_u32_u24 v27, 20480, v27")
        A("v_lshl_add_u32 v27, v28, 8, v27")
        A("v_and_b32 v28, 1, v29")
        A("v_lshl_add_u32 v27, v28, 7, v27")
        A("v_lshlrev_b32 v28, 7, v%d" % vLane)
        A("s_mov_b32 s50, 0x05040100")
        A("s_mov_b32 s51, 0x07060302")
        A("s_mul_i32 s52, s2, 205")
        A("s_lshr_b32 s52, s52, 10")
        A("s_mul_i32 s53, s52, 5")
        A("s_sub_u32 s53, s2, s53")
        A("s_mul_i32 s54, s52, %d" % (32 * 1280))
        A("s_lshl_b32 s57, s53, 8")
        A("s_add_u32 s96, s54, s57")
        A("s_add_u32 s97, s96, 5120")
        A("s_mul_i32 s54, s53, %d" % (8 * 20480))
        A("s_lshl_b32 s57, s52, 10")
        A("s_add_u32 s58, s54, s57")
        srd(A, SWO, 82, 0, 640 * 1280)
        srd(A, SWF, 4, WS_WF, NWF)
        srd(A, SC, 4, WS_CNT, 4096)
        LW = 80
        for e in range(8):
            A("buffer_load_dwordx4 %s, v26, s[%d:%d], s%d offen offset:%d" % (v(LW + 4 * e, 4), SWO, SWO + 3, 96 + (e >> 2), (e & 3) * 1280))
        A("s_cmp_eq_u32 s2, 0")
        A("s_cbranch_scc0 ssm_wnz")
        A("buffer_store_dword v25, v28, s[%d:%d], 0 offen" % (SC, SC + 3))
        A("s_waitcnt vmcnt(9)")
        A("s_branch ssm_wn2")
        A.label("ssm_wnz")
        A("s_waitcnt vmcnt(8)")
        A.label("ssm_wn2")
        gates()
        A("s_waitcnt vmcnt(0)")
        for cc in range(8):
            pk = 112 + 4 * (cc & 3)
            for m in range(4):
                A("v_perm_b32 v%d, v%d, v%d, s%d" % (pk + m, LW + 4 * (2 * m + 1) + (cc >> 1), LW + 4 * (2 * m) + (cc >> 1), 50 + (cc & 1)))
            A("buffer_store_dwordx4 %s, v27, s[%d:%d], s58 offen offset:%d" % (v(pk, 4), SWF, SWF + 3, cc * 16))
        A("s_branch ssm_ldone")
        A.label("ssm_nwo")
    A("s_waitcnt vmcnt(0)")
    gates()
    A.label("ssm_ldone")
    dump_stamps(A, timing, 4, end, 0)
    A("s_branch %s" % end)

    A.label("ssm_main")
    A("s_lshr_b32 s%d, s%d, 1" % (sCH, sW))
    A("s_and_b32 s%d, s%d, 1" % (sHF, sW))
    P = 8
    for i in range(6): A("v_mov_b32 v%d, 0" % (P + i))
    A("s_add_u32 s10, s%d, s%d" % (sD0, sCH))
    A("s_lshl_b32 s11, s10, 8")
    A("s_lshl_b32 s34, s%d, 7" % sHF)
    A("s_add_u32 s11, s11, s34")
    A("v_lshlrev_b32 v%d, 1, v%d" % (t0, vLane))
    A("v_add_u32 v%d, s11, v%d" % (t0, t0))
    A("s_lshl_b32 s11, s%d, 1" % sD0)
    A("s_waitcnt lgkmcnt(0)")
    for i in range(6):
        A("global_load_short_d16_hi v%d, v%d, s[%d:%d]" % (P + i, t0, 18 + 2 * i, 19 + 2 * i))
    A("s_load_dwordx2 s[34:35], s[30:31], s11")
    A("s_load_dwordx2 s[40:41], s[32:33], s11")
    if B0: A("s_barrier")
    srd(A, SAT, 4, WS_AT, NQ)
    vTab = 50
    A("s_mul_i32 s42, s%d, %d" % (sW, TAB))
    A("v_lshlrev_b32 v%d, 2, v%d" % (vTab, vLane))
    A("v_add_u32 v%d, s42, v%d" % (vTab, vTab))
    A("s_waitcnt lgkmcnt(0)")
    for (src, dst) in ((34, 43), (40, 44)):
        A("s_bitcmp1_b32 s%d, 1" % sCH)
        A("s_cselect_b32 s%d, s%d, s%d" % (dst, src + 1, src))
        A("s_lshl_b32 s45, s%d, 16" % dst)
        A("s_and_b32 s%d, s%d, 0xffff0000" % (dst, dst))
        A("s_bitcmp1_b32 s%d, 0" % sCH)
        A("s_cselect_b32 s%d, s%d, s45" % (dst, dst))
    sDskip = 44
    vDT = 6
    A("v_mov_b32 v%d, s43" % vDT)
    A("v_mul_f32 v%d, 0x%x, v%d" % (vDT, f32bits(LOG2E), vDT))
    A("v_exp_f32 v%d, v%d" % (vDT, vDT))
    A("s_nop 0")
    A("v_cvt_pk_bf16_f32 v%d, v%d, v%d" % (vDT, vDT, vDT))
    A("v_and_b32 v%d, 0xffff0000, v%d" % (vDT, vDT))
    Z, E1, E2, E4, W8, E256, E512, E1024, CB = 14, 16, 18, 20, 22, 24, 26, 28, 30
    GA, GB, FA, FB, T1, T2 = 32, 34, 38, 40, 42, 44
    PK = [46, 47, 48, 49]
    A("s_waitcnt vmcnt(0)")
    stamp(A, timing, 7)
    A("v_mul_f32 v%d, v%d, v%d" % (Z, vDT, P + 0))
    A("v_mul_f32 v%d, v%d, v%d" % (Z + 1, vDT, P + 1))
    A("v_mul_f32 v%d, v%d, v%d" % (P + 2, vDT, P + 2))
    A("v_mul_f32 v%d, v%d, v%d" % (P + 3, vDT, P + 3))
    A("v_mul_f32 v%d, 0x%x, v%d" % (Z, f32bits(LOG2E), Z))
    A("v_mul_f32 v%d, 0x%x, v%d" % (Z + 1, f32bits(1.0 / (2 * math.pi)), Z + 1))
    def cmul(d, a, b, t, conj=False):
        A("v_pk_mul_f32 %s, %s, %s op_sel_hi:[0,1]" % (v(t, 2), v(b, 2), v(a, 2)))
        A("v_pk_fma_f32 %s, %s, %s, %s op_sel:[1,1,0] op_sel_hi:[1,0,1] %s:[1,0,0]" % (v(d, 2), v(b, 2), v(a, 2), v(t, 2), "neg_hi" if conj else "neg_lo"))
    def anchor(d, m):
        if m == 1:
            A("v_exp_f32 v%d, v%d" % (t0, Z))
            A("v_fract_f32 v%d, v%d" % (t1, Z + 1))
        else:
            A("v_mul_f32 v%d, %s, v%d" % (t0, "%d.0" % m if m in (2, 4) else "0x%x" % f32bits(float(m)), Z))
            A("v_mul_f32 v%d, %s, v%d" % (t1, "%d.0" % m if m in (2, 4) else "0x%x" % f32bits(float(m)), Z + 1))
            A("v_exp_f32 v%d, v%d" % (t0, t0))
            A("v_fract_f32 v%d, v%d" % (t1, t1))
        A("v_cos_f32 v%d, v%d" % (d, t1))
        A("v_sin_f32 v%d, v%d" % (d + 1, t1))
        A("s_nop 0")
        A("v_mul_f32 v%d, v%d, v%d" % (d, d, t0))
        A("v_mul_f32 v%d, v%d, v%d" % (d + 1, d + 1, t0))
    anchor(W8, 8)
    anchor(E1, 1)
    cmul(CB, P + 4, P + 2, T1)
    A("v_xor_b32 v%d, 0x80000000, v%d" % (CB + 1, CB + 1))
    anchor(E256, 256)
    anchor(E512, 512)
    anchor(E1024, 1024)
    cmul(E2, E1, E1, T1)
    cmul(E4, E2, E2, T2)
    pki = [0]
    def put(src, rows):
        pk = PK[pki[0] & 3]; pki[0] += 1
        A("v_cvt_pk_bf16_f32 v%d, v%d, v%d" % (pk, src, src + 1))
        for r in rows:
            A("ds_write_b32 v%d, v%d offset:%d" % (vTab, pk, r * 272))
    fops = []
    fops.append(lambda: (A("v_mov_b32 v%d, 0x3f80" % PK[3]), A("ds_write_b32 v%d, v%d offset:%d" % (vTab, PK[3], 32 * 272))))
    fops.append(lambda: put(W8, [33]))
    cur = W8
    fr = [FA, FB]
    for j in range(2, 32):
        d = fr[j & 1]
        fops.append((lambda d=d, cur=cur, j=j: (cmul(d, cur, W8, T1), put(d, [32 + j]))))
        cur = d
    gops = []
    def gstep(d, a, b, base):
        gops.append(lambda: (cmul(d, a, b, T2, conj=True), put(d, GROWS[base])))
    gops.append(lambda: put(CB, GROWS[0]))
    g = [GA, GB]
    prev = CB
    for k in range(1, 8):
        gstep(g[k & 1], prev, E1, k); prev = g[k & 1]
    G256, G512, G1024, G1536 = 36, 52, 54, 56
    gstep(G256, CB, E256, 256)
    prev = G256
    for k, base in enumerate((258, 260, 262, 264)):
        gstep(g[k & 1], prev, E2, base); prev = g[k & 1]
    gstep(G512, CB, E512, 512)
    gstep(GA, G512, E4, 516); gstep(GB, GA, E4, 520)
    gstep(G256, G512, E256, 768)
    gstep(GA, G256, E4, 772); gstep(GB, GA, E4, 776)
    gstep(G1024, CB, E1024, 1024)
    gstep(GA, G1024, W8, 1032)
    gstep(GB, G1024, E256, 1280); gstep(GA, GB, W8, 1288)
    gstep(G1536, G1024, E512, 1536); gstep(GA, G1536, W8, 1544)
    gstep(GB, G1536, E256, 1792); gstep(GA, GB, W8, 1800)
    n = max(len(fops), len(gops))
    for i in range(n):
        if i < len(fops): fops[i]()
        if i < len(gops): gops[i]()
    stamp(A, timing, 1)
    A("s_lshl_b32 s45, s%d, 2" % sW)
    A("s_add_u32 s45, s45, %d" % FL)
    A("v_mov_b32 v58, s45")
    A("s_xor_b32 s45, s45, 4")
    A("v_mov_b32 v59, s45")
    A("v_mov_b32 v51, 4")
    AF, BF, DK = 64, 96, 16
    A("v_and_b32 v%d, 31, v%d" % (t0, vLane))
    A("v_mul_u32_u24 v%d, 272, v%d" % (t0, t0))
    A("v_lshrrev_b32 v%d, 5, v%d" % (t1, vLane))
    A("v_lshl_add_u32 v%d, v%d, 4, v%d" % (t0, t1, t0))
    A("v_add_u32 v%d, s42, v%d" % (t0, t0))
    for t in range(8):
        A("ds_read_b128 %s, v%d offset:%d" % (v(AF + 4 * t, 4), t0, 32 * t))
        A("ds_read_b128 %s, v%d offset:%d" % (v(BF + 4 * t, 4), t0, 32 * 272 + 32 * t))
    for t in range(8):
        A("s_waitcnt lgkmcnt(%d)" % (14 - 2 * t))
        A("v_mfma_f32_32x32x16_bf16 %s, %s, %s, %s" % (v(DK, 16), v(AF + 4 * t, 4), v(BF + 4 * t, 4), "0" if t == 0 else v(DK, 16)))
    vL16 = 7
    A("v_lshlrev_b32 v%d, 4, v%d" % (vL16, vLane))
    A("v_add_u32 v%d, s42, v%d" % (t0, vL16))
    A("s_xor_b32 s45, s%d, 1" % sW)
    A("s_mul_i32 s45, s45, %d" % TAB)
    A("v_add_u32 v%d, s45, v%d" % (t1, vL16))
    A("s_mul_i32 s46, s%d, %d" % (sCH, CH))
    A("s_nop 7")
    A("s_nop 1")
    A("s_cmp_eq_u32 s%d, 0" % sHF)
    A("s_cbranch_scc0 ssm_x1")
    A("ds_write_b128 v%d, %s" % (t0, v(DK + 8, 4)))
    A("ds_write_b128 v%d, %s offset:1024" % (t0, v(DK + 12, 4)))
    A("s_branch ssm_x2")
    A.label("ssm_x1")
    A("ds_write_b128 v%d, %s" % (t0, v(DK, 4)))
    A("ds_write_b128 v%d, %s offset:1024" % (t0, v(DK + 4, 4)))
    A.label("ssm_x2")
    A("s_waitcnt lgkmcnt(0)")
    flag_set(A, 58, 51, 0)
    flag_wait(A, 59, 0, "ssm_fx")
    stamp(A, timing, 2)
    R = 32
    A("ds_read_b128 %s, v%d" % (v(R, 4), t1))
    A("ds_read_b128 %s, v%d offset:1024" % (v(R + 4, 4), t1))
    A("v_and_b32 v%d, 31, v%d" % (t2, vLane))
    A("v_lshrrev_b32 v%d, 5, v%d" % (t3, vLane))
    A("v_lshlrev_b32 v%d, 4, v%d" % (t2, t2))
    A("s_add_u32 s47, s46, %d" % (CP0 + 4080))
    A("v_sub_u32 v%d, s47, v%d" % (t2, t2))
    A("s_waitcnt lgkmcnt(0)")
    A("s_cmp_eq_u32 s%d, 0" % sHF)
    A("s_cbranch_scc0 ssm_y1")
    for r in range(8): A("v_add_f32 v%d, v%d, v%d" % (DK + r, DK + r, R + r))
    A("v_lshlrev_b32 v%d, 9, v%d" % (t3, t3))
    A("v_sub_u32 v%d, v%d, v%d" % (t2, t2, t3))
    for j in range(4): A("v_cvt_pk_bf16_f32 v%d, v%d, v%d" % (R + j, DK + 2 * j, DK + 2 * j + 1))
    A("ds_write_b128 v%d, %s" % (t2, v(R, 4)))
    A("v_mov_b32 v%d, 0" % (R + 4)); A("v_mov_b32 v%d, 0" % (R + 5)); A("v_mov_b32 v%d, 0" % (R + 6)); A("v_mov_b32 v%d, 0" % (R + 7))
    A("s_add_u32 s47, s46, %d" % (CP0 + 4096))
    A("v_add_u32 v%d, s47, v%d" % (t3, vL16))
    A("s_mov_b64 exec, 0xf")
    A("ds_write_b128 v%d, %s" % (t3, v(R + 4, 4)))
    A("s_mov_b64 exec, -1")
    A("s_branch ssm_y2")
    A.label("ssm_y1")
    for r in range(8): A("v_add_f32 v%d, v%d, v%d" % (DK + r, DK + 8 + r, R + r))
    A("v_lshlrev_b32 v%d, 9, v%d" % (R + 12, t3))
    A("v_sub_u32 v%d, v%d, v%d" % (R + 12, t2, R + 12))
    A("v_subrev_u32 v%d, 1024, v%d" % (R + 12, R + 12))
    A("v_cvt_pk_bf16_f32 v%d, v%d, v%d" % (R + 0, DK + 0, DK + 0))
    A("v_cvt_pk_bf16_f32 v%d, v%d, v%d" % (R + 1, DK + 1, DK + 1))
    A("v_cvt_pk_bf16_f32 v%d, v%d, v%d" % (R + 2, DK + 1, DK + 2))
    A("v_cvt_pk_bf16_f32 v%d, v%d, v%d" % (R + 3, DK + 2, DK + 2))
    A("ds_write_b128 v%d, %s" % (R + 12, v(R, 4)))
    A("v_lshlrev_b32 v%d, 10, v%d" % (R + 13, t3))
    A("v_sub_u32 v%d, v%d, v%d" % (R + 13, t2, R + 13))
    A("v_subrev_u32 v%d, 2560, v%d" % (R + 13, R + 13))
    A("v_and_b32 v%d, 1, v%d" % (R + 14, vLane))
    A("v_cmp_eq_u32 vcc, 1, v%d" % (R + 14))
    A("s_nop 1")
    for k in range(2):
        K8, K0 = DK + 4 + 2 * k, DK + 5 + 2 * k
        o = R + 4 + 4 * k
        A("v_cndmask_b32 v%d, v%d, v%d, vcc" % (R + 15, K0, K8))
        A("v_cvt_pk_bf16_f32 v%d, v%d, v%d" % (o + 0, K8, K8))
        A("v_cvt_pk_bf16_f32 v%d, v%d, v%d" % (o + 1, K8, R + 15))
        A("v_cvt_pk_bf16_f32 v%d, v%d, v%d" % (o + 2, K0, K0))
        A("v_mov_b32 v%d, v%d" % (o + 3, o + 2))
    A("ds_write_b128 v%d, %s offset:512" % (R + 13, v(R + 4, 4)))
    A("ds_write_b128 v%d, %s" % (R + 13, v(R + 8, 4)))
    A.label("ssm_y2")
    A("s_waitcnt lgkmcnt(0)")
    flag_set(A, 58, 51, 32)
    flag_wait(A, 59, 32, "ssm_fd")
    stamp(A, timing, 3)
    A("s_lshl_b32 s47, s%d, 11" % sHF)
    A("s_add_u32 s47, s47, s46")
    A("s_add_u32 s47, s47, %d" % CP0)
    A("v_add_u32 v%d, s47, v%d" % (t0, vL16))
    for it in range(2):
        d = 32 + 8 * it
        A("ds_read_b128 %s, v%d offset:%d" % (v(d, 4), t0, it * 1024))
        A("ds_read_b64 %s, v%d offset:%d" % (v(d + 4, 2), t0, it * 1024 + 16))
    A("v_lshrrev_b32 v%d, 2, v%d" % (t1, vLane))
    A("v_mul_u32_u24 v%d, %d, v%d" % (t1, CPS, t1))
    A("v_and_b32 v%d, 3, v%d" % (t2, vLane))
    A("v_lshl_add_u32 v%d, v%d, 4, v%d" % (t1, t2, t1))
    A("s_add_u32 s47, s46, %d" % (CP0 + CPS + 4096))
    A("v_add_u32 v%d, s47, v%d" % (t1, t1))
    for r in range(4): A("v_mov_b32 v%d, 0" % (60 + r))
    A("s_cmp_eq_u32 s%d, 0" % sHF)
    A("s_cbranch_scc0 ssm_z1")
    A("s_mov_b64 exec, 0xfff")
    A("ds_write_b128 v%d, v[60:63]" % t1)
    A("s_mov_b64 exec, -1")
    A.label("ssm_z1")
    A("v_add_u32 v64, %d, v%d" % (2 * CPS, t0))
    A("v_add_u32 v65, %d, v%d" % (2 * CPS + 1024, t0))
    A("s_waitcnt lgkmcnt(0)")
    for it in range(2):
        d = 32 + 8 * it; e = 48 + 8 * it
        for i in range(4): A("v_alignbit_b32 v%d, v%d, v%d, 16" % (e + i, d + i + 1, d + i))
        for i in range(4): A("v_alignbit_b32 v%d, v%d, v%d, 16" % (e + 4 + i, d + i + 2, d + i + 1))
        A("ds_write_b128 v%d, %s offset:%d" % (t0, v(e, 4), it * 1024 + CPS))
        A("ds_write2_b32 v%d, v%d, v%d offset0:0 offset1:1" % (64 + it, d + 1, d + 2))
        A("ds_write2_b32 v%d, v%d, v%d offset0:2 offset1:3" % (64 + it, d + 3, d + 4))
        A("ds_write_b128 v%d, %s offset:%d" % (t0, v(e + 4, 4), it * 1024 + 3 * CPS))
    AF, BF, DC = 32, 64, 96
    vAlo, vAhi, vB = 8, 9, 10
    A("v_and_b32 v%d, 3, v%d" % (t1, vLane))
    A("v_sub_u32 v%d, 3, v%d" % (t1, t1))
    A("v_mul_u32_u24 v%d, %d, v%d" % (vAlo, CPS, t1))
    A("v_bfe_u32 v%d, v%d, 2, 2" % (t1, vLane))
    A("v_lshrrev_b32 v%d, 4, v%d" % (t2, vLane))
    A("v_lshlrev_b32 v%d, 1, v%d" % (t3, t2))
    A("v_sub_u32 v%d, v%d, v%d" % (t3, t3, t1))
    A("v_lshl_add_u32 v%d, v%d, 3, v%d" % (vAlo, t3, vAlo))
    A("s_lshl_b32 s47, s%d, 8" % sHF)
    A("s_sub_u32 s48, s46, s47")
    A("s_add_u32 s48, s48, %d" % (CP0 + 8 * 507 - 3584))
    A("v_add_u32 v%d, s48, v%d" % (vAlo, vAlo))
    A("v_add_u32 v%d, 2048, v%d" % (vAhi, vAlo))
    A("v_and_b32 v%d, 15, v%d" % (t1, vLane))
    A("v_lshlrev_b32 v%d, 5, v%d" % (vB, t1))
    A("v_lshl_add_u32 v%d, v%d, 4, v%d" % (vB, t2, vB))
    A("s_mul_i32 s48, s%d, %d" % (sCH, UP))
    A("s_add_u32 s48, s48, %d" % (UB + 448))
    A("s_sub_u32 s49, s48, s47")
    A("v_add_u32 v%d, s49, v%d" % (vB, vB))
    vU, vO = 11, 12
    A("v_lshlrev_b32 v%d, 5, v%d" % (vO, t1))
    A("v_lshl_add_u32 v%d, v%d, 3, v%d" % (vO, t2, vO))
    A("s_lshl_b32 s47, s%d, 11" % sHF)
    A("s_add_u32 s49, s48, s47")
    A("s_add_u32 s49, s49, 32")
    A("v_add_u32 v%d, s49, v%d" % (vU, vO))
    A("s_add_u32 s10, s%d, s%d" % (sD0, sCH))
    A("s_lshl_b32 s10, s10, 12")
    A("s_add_u32 s10, s10, s47")
    A("s_add_u32 s47, s46, %d" % EX2)
    A("s_lshl_b32 s48, s%d, 12" % sHF)
    A("s_add_u32 s49, s47, s48")
    A("v_add_u32 v%d, s49, v%d" % (13, vL16))
    A("s_xor_b32 s48, s48, 4096")
    A("s_add_u32 s49, s47, s48")
    A("v_add_u32 v%d, s49, v%d" % (14, vL16))
    vFo, vFp, vFc, vFu, vF4 = 16, 17, 18, 19, 20
    A("s_lshl_b32 s45, s%d, 2" % sW)
    A("s_add_u32 s45, s45, %d" % FL)
    A("v_mov_b32 v%d, s45" % vFo)
    A("s_xor_b32 s45, s45, 4")
    A("v_mov_b32 v%d, s45" % vFp)
    A("v_mov_b32 v%d, 4" % vF4)
    A("v_mov_b32 v%d, %d" % (vFu, FL + 128))
    A("v_add_u32 v%d, 64, v%d" % (vFc, vFp))
    A("s_mov_b32 s45, %d" % (FL + 128))
    A("v_writelane_b32 v%d, s45, 1" % vFc)
    if not UROT:
        A("s_mov_b32 s45, %d" % (FL + 132))
        A("v_writelane_b32 v%d, s45, 2" % vFc)
    A("v_subrev_u32 v%d, 192, v%d" % (vAlo, vAlo))
    A("v_subrev_u32 v%d, 192, v%d" % (vB, vB))
    A("s_waitcnt lgkmcnt(0)")
    flag_set(A, vFo, vF4, 64)
    stamp(A, timing, 8)
    conv_phases(A, timing, vAlo, vB, AF, BF, DC, vFc, vFu)
    stamp(A, timing, 5)
    A("s_nop 7")
    A("s_cmp_eq_u32 s%d, 0" % sHF)
    A("s_cbranch_scc0 ssm_w1")
    for k in range(4): A("ds_write_b128 v13, %s offset:%d" % (v(DC + 16 + 4 * k, 4), 1024 * k))
    A("s_branch ssm_w2")
    A.label("ssm_w1")
    for k in range(4): A("ds_write_b128 v13, %s offset:%d" % (v(DC + 4 * k, 4), 1024 * k))
    A.label("ssm_w2")
    U = 32
    for k in range(4): A("ds_read_b64 %s, v%d offset:%d" % (v(U + 2 * k, 2), vU, 512 * k))
    A("s_waitcnt lgkmcnt(0)")
    flag_set(A, vFo, vF4, 96)
    flag_wait(A, vFp, 96, "ssm_fe")
    R = 64
    for k in range(4): A("ds_read_b128 %s, v14 offset:%d" % (v(R + 4 * k, 4), 1024 * k))
    UF = 40
    for k in range(8):
        A("v_lshlrev_b32 v%d, 16, v%d" % (UF + 2 * k, U + k))
        A("v_and_b32 v%d, 0xffff0000, v%d" % (UF + 2 * k + 1, U + k))
    for r in range(16): A("v_mul_f32 v%d, s%d, v%d" % (UF + r, sDskip, UF + r))
    for k in range(8): A("v_cvt_pk_bf16_f32 v%d, v%d, v%d" % (U + k, UF + 2 * k, UF + 2 * k + 1))
    for k in range(8):
        A("v_lshlrev_b32 v%d, 16, v%d" % (UF + 2 * k, U + k))
        A("v_and_b32 v%d, 0xffff0000, v%d" % (UF + 2 * k + 1, U + k))
    A("s_waitcnt lgkmcnt(0)")
    A("s_cmp_eq_u32 s%d, 0" % sHF)
    A("s_cbranch_scc0 ssm_v1")
    for r in range(16): A("v_add_f32 v%d, v%d, v%d" % (DC + r, DC + r, R + r))
    A("s_branch ssm_v2")
    A.label("ssm_v1")
    for r in range(16): A("v_add_f32 v%d, v%d, v%d" % (DC + r, DC + 16 + r, R + r))
    A.label("ssm_v2")
    for k in range(8): A("v_cvt_pk_bf16_f32 v%d, v%d, v%d" % (U + k, DC + 2 * k, DC + 2 * k + 1))
    for k in range(8):
        A("v_lshlrev_b32 v%d, 16, v%d" % (DC + 2 * k, U + k))
        A("v_and_b32 v%d, 0xffff0000, v%d" % (DC + 2 * k + 1, U + k))
    for r in range(16): A("v_add_f32 v%d, v%d, v%d" % (DC + r, DC + r, UF + r))
    for k in range(8): A("v_cvt_pk_bf16_f32 v%d, v%d, v%d" % (U + k, DC + 2 * k, DC + 2 * k + 1))
    for k in range(4):
        A("buffer_store_dwordx2 %s, v%d, s[%d:%d], s10 offen offset:%d" % (v(U + 2 * k, 2), vO, SAT, SAT + 3, 512 * k))
    stamp(A, timing, 6)
    dump_stamps(A, timing, 11, end, 0)
    A("s_branch %s" % end)

SSM2 = False
SSM3 = True
RS = 2056
NGR = 29
FBASE = NGR * RS
UB2 = 125440
UCH, UCB = 9120, 4576
KB2 = 16 * RS
KCH, CPS2 = 8448, 4224
EX3 = 69632
DROW = [7, 6, 5, 4, 264, 262, 260, 260, 3, 2, 1, 0, 260, 258, 256, 256, 520, 516, 512, -1, 776, 772, 768, 255, 1032, 1024, 1288, 1280, 1544, 1536, 1800, 1792]
SROWMAP = {7: 6, 12: 6, 15: 14, 29: 7, 30: 12, 31: 15}
SROW = {}
for r_, b_ in enumerate(DROW): SROW.setdefault(b_, SROWMAP.get(r_, r_))
PIPE = True
QST = False
NOSSM = False
NOQ = False

def role_ssm2(A, end, timing):
    t0, t1, t2, t3 = 2, 3, 4, 5
    sD0, sCH, sHF = 7, 8, 9
    SX, SAT = 12, 36
    A("s_load_dwordx16 s[16:31], s[0:1], 0")
    A("s_load_dwordx2 s[32:33], s[0:1], 64")
    A("s_load_dwordx2 s[4:5], s[0:1], 136")
    A("s_and_b32 s10, s2, 7")
    A("s_mul_i32 s10, s10, 20")
    A("s_lshr_b32 s11, s2, 3")
    A("s_add_u32 s10, s10, s11")
    A("s_lshl_b32 s%d, s10, 2" % sD0)
    A("s_cmp_lt_u32 s%d, 8" % sW)
    A("s_cbranch_scc1 ssm_main")
    if LPRIO: A("s_setprio %d" % LPRIO)
    A("s_load_dwordx2 s[36:37], s[0:1], 112")
    A("s_sub_u32 s10, s%d, 8" % sW)
    A("v_mul_u32_u24 v%d, 2560, v%d" % (t0, vLane))
    A("s_mul_i32 s11, s10, %d" % (128 * 1280))
    A("s_lshl_b32 s34, s%d, 1" % sD0)
    A("s_add_u32 s11, s11, s34")
    A("s_add_u32 s35, s11, %d" % (1024 * 1280))
    GX, GW, XU, WU, SGW, SG = 32, 44, 52, 64, 40, 44
    A("s_lshl_b32 s38, s2, 3")
    A("s_add_u32 s38, s38, s10")
    A("s_mul_i32 s39, s38, 1280")
    A("s_add_u32 s48, s39, %d" % (1280 * 1280))
    A("v_mul_u32_u24 v24, 20, v%d" % vLane)
    A("v_mov_b32 v25, 0")
    A("s_waitcnt lgkmcnt(0)")
    srd(A, SX, 16, 0, NQ)
    srd(A, SGW, 36, 0, 1280)
    srd(A, SG, 4, WS_G, 8192)
    if B0: A("s_barrier")
    for e in range(2):
        A("buffer_load_dwordx2 %s, v%d, s[%d:%d], s11 offen offset:%d %s" % (v(8 + 2 * e, 2), t0, SX, SX + 3, 1280 * e, GMOD))
    for j in range(2):
        A("buffer_load_dwordx4 %s, v24, s[%d:%d], s%d offen" % (v(GX + 6 * j, 4), SX, SX + 3, 48 if j else 39))
        A("buffer_load_dword v%d, v24, s[%d:%d], s%d offen offset:16" % (GX + 6 * j + 4, SX, SX + 3, 48 if j else 39))
    A("buffer_load_dwordx4 %s, v24, s[%d:%d], 0 offen" % (v(GW, 4), SGW, SGW + 3))
    A("buffer_load_dword v%d, v24, s[%d:%d], 0 offen offset:16" % (GW + 4, SGW, SGW + 3))
    for e in range(2):
        A("buffer_load_dwordx2 %s, v%d, s[%d:%d], s35 offen offset:%d %s" % (v(12 + 2 * e, 2), t0, SX, SX + 3, 1280 * e, GMOD))
    A("v_mov_b32 v16, 0"); A("v_mov_b32 v17, 0"); A("v_mov_b32 v18, 0"); A("v_mov_b32 v19, 0")
    A("s_lshr_b32 s34, s10, 1")
    A("s_mul_i32 s34, s34, %d" % UCH)
    A("s_and_b32 s50, s10, 1")
    A("s_mul_i32 s50, s50, %d" % UCB)
    A("s_add_u32 s34, s34, s50")
    A("s_add_u32 s34, s34, %d" % UB2)
    A("v_lshlrev_b32 v%d, 4, v%d" % (t1, vLane))
    A("v_add_u32 v%d, s34, v%d" % (t1, t1))
    A("s_mov_b32 exec_lo, 0x1fffffff")
    A("s_mov_b32 exec_hi, 0")
    A("ds_write_b128 v%d, v[16:19]" % t1)
    A("s_mov_b64 exec, -1")
    A("s_lshl_b32 s34, s10, 8")
    A("s_add_u32 s34, s34, %d" % (UB2 + 452))
    A("v_lshlrev_b32 v%d, 2, v%d" % (t1, vLane))
    A("v_add_u32 v%d, s34, v%d" % (t1, t1))
    A("s_mov_b32 s52, 0x05040100")
    A("s_mov_b32 s53, 0x07060302")
    A("s_waitcnt lgkmcnt(0)")
    A("s_barrier")
    def uwrite(q):
        r = 8 + 4 * q
        for c in range(4):
            A("v_perm_b32 v%d, v%d, v%d, s%d" % (16 + c, r + 2 + (c >> 1), r + (c >> 1), 52 + (c & 1)))
        for c in range(4):
            A("ds_write_b32 v%d, v%d offset:%d" % (t1, 16 + c, 2048 * q + c * UCH))
            A("ds_write_b32 v%d, v%d offset:%d" % (t1, 16 + c, 2048 * q + c * UCH + 4572))
        A("s_waitcnt lgkmcnt(0)")
    A("s_waitcnt vmcnt(8)")
    uwrite(0)
    stamp(A, timing, 1)
    A("s_barrier")
    A("s_setprio 0")
    A("s_waitcnt vmcnt(2)")
    for q in range(5):
        A("v_lshlrev_b32 v%d, 16, v%d" % (WU + 2 * q, GW + q))
        A("v_and_b32 v%d, 0xffff0000, v%d" % (WU + 2 * q + 1, GW + q))
    A("s_lshl_b32 s48, s38, 2")
    gate_row(A, GX, XU, WU, SG, 25, 48)
    A("s_add_u32 s49, s48, %d" % (1280 * 4))
    gate_row(A, GX + 6, XU, WU, SG, 25, 49)
    if LPRIO: A("s_setprio %d" % LPRIO)
    stamp(A, timing, 2)
    A("s_waitcnt vmcnt(2)")
    uwrite(1)
    stamp(A, timing, 3)
    A("s_barrier")
    dump_stamps(A, timing, 4, end, 0)
    A("s_branch %s" % end)

    A.label("ssm_main")
    A("s_lshr_b32 s%d, s%d, 1" % (sCH, sW))
    A("s_and_b32 s%d, s%d, 1" % (sHF, sW))
    P = 8
    for i in range(6): A("v_mov_b32 v%d, 0" % (P + i))
    A("s_add_u32 s10, s%d, s%d" % (sD0, sCH))
    A("s_lshl_b32 s11, s10, 8")
    A("s_lshl_b32 s34, s%d, 7" % sHF)
    A("s_add_u32 s11, s11, s34")
    A("v_lshlrev_b32 v%d, 1, v%d" % (t0, vLane))
    A("v_add_u32 v%d, s11, v%d" % (t0, t0))
    A("s_lshl_b32 s11, s%d, 1" % sD0)
    A("s_waitcnt lgkmcnt(0)")
    for i in range(6):
        A("global_load_short_d16_hi v%d, v%d, s[%d:%d]" % (P + i, t0, 18 + 2 * i, 19 + 2 * i))
    A("s_load_dwordx2 s[34:35], s[30:31], s11")
    A("s_load_dwordx2 s[40:41], s[32:33], s11")
    if B0: A("s_barrier")
    srd(A, SAT, 4, WS_AT, NQ)
    vL16 = 7
    vGA, vFA = 58, 59
    vXS, vXR = 60, 61
    vXS1, vXR1 = 62, 63
    vKW = 120
    vA, vB, vU, vO, vES, vER = 121, 122, 123, 124, 125, 126
    sMG, sMF = 42, 43
    A("s_lshl_b32 s%d, s%d, 8" % (sMG, sW))
    A("s_add_u32 s%d, s%d, %d" % (sMF, sMG, FBASE))
    A("v_lshlrev_b32 v%d, 4, v%d" % (vL16, vLane))
    A("v_and_b32 v%d, 31, v%d" % (t1, vLane))
    A("v_lshrrev_b32 v%d, 5, v%d" % (t2, vLane))
    A("v_mul_u32_u24 v%d, %d, v%d" % (vFA, RS, t1))
    A("v_mov_b32 v%d, v%d" % (t3, t1))
    for r_, s_ in sorted(SROWMAP.items()):
        A("v_writelane_b32 v%d, %d, %d" % (t3, s_, r_))
        A("v_writelane_b32 v%d, %d, %d" % (t3, s_, r_ + 32))
    A("v_mul_u32_u24 v%d, %d, v%d" % (vGA, RS, t3))
    A("v_lshl_add_u32 v%d, v%d, 4, v%d" % (vGA, t2, vGA))
    A("v_add_u32 v%d, s%d, v%d" % (vGA, sMG, vGA))
    A("v_lshl_add_u32 v%d, v%d, 4, v%d" % (vFA, t2, vFA))
    A("v_add_u32 v%d, s%d, v%d" % (vFA, sMF, vFA))
    A("v_lshrrev_b32 v%d, 4, v%d" % (t3, vLane))
    A("v_mul_u32_u24 v%d, %d, v%d" % (vXS, 2 * RS, t3))
    A("v_and_b32 v%d, 15, v%d" % (t0, vLane))
    A("v_lshl_add_u32 v%d, v%d, 4, v%d" % (vXS, t0, vXS))
    A("s_xor_b32 s45, s%d, 256" % sMG)
    A("v_add_u32 v%d, s45, v%d" % (vXR, vXS))
    A("v_add_u32 v%d, s%d, v%d" % (vXS, sMG, vXS))
    A("v_lshlrev_b32 v%d, 2, v%d" % (vXS1, vLane))
    A("v_add_u32 v%d, %d, v%d" % (vXS1, RS, vXS1))
    A("v_add_u32 v%d, s45, v%d" % (vXR1, vXS1))
    A("v_add_u32 v%d, s%d, v%d" % (vXS1, sMG, vXS1))
    A("s_mul_i32 s46, s%d, %d" % (sCH, KCH))
    A("s_add_u32 s46, s46, %d" % KB2)
    A("s_add_u32 s47, s46, 4080")
    A("v_lshlrev_b32 v%d, 4, v%d" % (vKW, t1))
    A("v_sub_u32 v%d, s47, v%d" % (vKW, vKW))
    A("s_mov_b32 s52, 0"); A("s_mov_b32 s53, -1")
    A("s_mov_b32 s54, 1"); A("s_mov_b32 s55, 1")
    A("s_mov_b32 s56, 0xaaaaaaaa"); A("s_mov_b32 s57, 0xaaaaaaaa")
    A("v_and_b32 v%d, 1, v%d" % (vA, t0))
    A("v_xor_b32 v%d, 1, v%d" % (vA, vA))
    A("v_mul_u32_u24 v%d, %d, v%d" % (vA, CPS2, vA))
    A("v_lshrrev_b32 v%d, 1, v%d" % (vB, t0))
    A("v_lshlrev_b32 v%d, 3, v%d" % (vU, vB))
    A("v_sub_u32 v%d, v%d, v%d" % (vA, vA, vU))
    A("v_lshl_add_u32 v%d, v%d, 4, v%d" % (vA, t3, vA))
    A("s_lshl_b32 s47, s%d, 8" % sHF)
    A("s_sub_u32 s48, s46, s47")
    A("s_add_u32 s48, s48, %d" % (4088 - 3584 - 192))
    A("v_add_u32 v%d, s48, v%d" % (vA, vA))
    A("v_lshlrev_b32 v%d, 6, v%d" % (vO, vB))
    A("v_lshl_add_u32 v%d, v%d, 4, v%d" % (vO, t3, vO))
    A("v_and_b32 v%d, 1, v%d" % (vU, t0))
    A("v_mul_u32_u24 v%d, %d, v%d" % (vB, UCB, vU))
    A("v_add_u32 v%d, v%d, v%d" % (vB, vB, vO))
    A("s_mul_i32 s48, s%d, %d" % (sCH, UCH))
    A("s_add_u32 s48, s48, %d" % (UB2 + 448))
    A("s_sub_u32 s49, s48, s47")
    A("s_sub_u32 s49, s49, 192")
    A("v_add_u32 v%d, s49, v%d" % (vB, vB))
    A("v_lshl_add_u32 v%d, v%d, 2, v%d" % (vO, vU, vO))
    A("s_lshl_b32 s47, s%d, 11" % sHF)
    A("s_add_u32 s49, s48, s47")
    A("s_add_u32 s49, s49, %d" % UCB)
    A("v_add_u32 v%d, s49, v%d" % (vU, vO))
    A("s_add_u32 s50, s%d, s%d" % (sD0, sCH))
    A("s_lshl_b32 s50, s50, 12")
    A("s_add_u32 s50, s50, s47")
    sOut = 50
    A("s_lshl_b32 s48, s%d, 12" % sW)
    A("s_add_u32 s49, s48, %d" % EX3)
    A("v_add_u32 v%d, s49, v%d" % (vES, vL16))
    A("s_xor_b32 s49, s49, 4096")
    A("v_add_u32 v%d, s49, v%d" % (vER, vL16))
    A("s_waitcnt lgkmcnt(0)")
    for (src, dst) in ((34, 58), (40, 44)):
        A("s_bitcmp1_b32 s%d, 1" % sCH)
        A("s_cselect_b32 s%d, s%d, s%d" % (dst, src + 1, src))
        A("s_lshl_b32 s45, s%d, 16" % dst)
        A("s_and_b32 s%d, s%d, 0xffff0000" % (dst, dst))
        A("s_bitcmp1_b32 s%d, 0" % sCH)
        A("s_cselect_b32 s%d, s%d, s45" % (dst, dst))
    sDskip = 44
    vDT = 6
    A("v_mov_b32 v%d, s58" % vDT)
    A("v_mul_f32 v%d, 0x%x, v%d" % (vDT, f32bits(LOG2E), vDT))
    A("v_exp_f32 v%d, v%d" % (vDT, vDT))
    A("s_mov_b32 m0, s%d" % sMF)
    A("v_cvt_pk_bf16_f32 v%d, v%d, v%d" % (vDT, vDT, vDT))
    A("v_and_b32 v%d, 0xffff0000, v%d" % (vDT, vDT))
    Z, E1, E2, E4, W8, E256, E512, E1024, CB, EM1, W16 = 14, 16, 18, 20, 22, 24, 26, 28, 30, 64, 66
    GA, GB, T1, T2 = 32, 34, 42, 44
    FR = [38, 40, 68, 70]
    G256, G512, G1024, G1536 = 36, 52, 54, 56
    PK = [46, 47, 48, 49]
    A("v_mov_b32 v%d, 0x3f80" % PK[3])
    A("ds_write_addtid_b32 v%d offset:0" % PK[3])
    A("s_waitcnt vmcnt(0)")
    stamp(A, timing, 7)
    A("v_mul_f32 v%d, v%d, v%d" % (Z, vDT, P + 0))
    A("v_mul_f32 v%d, v%d, v%d" % (Z + 1, vDT, P + 1))
    A("v_mul_f32 v%d, v%d, v%d" % (P + 2, vDT, P + 2))
    A("v_mul_f32 v%d, v%d, v%d" % (P + 3, vDT, P + 3))
    A("v_mul_f32 v%d, 0x%x, v%d" % (Z, f32bits(LOG2E), Z))
    A("v_mul_f32 v%d, 0x%x, v%d" % (Z + 1, f32bits(1.0 / (2 * math.pi)), Z + 1))
    def cmul(d, a, b, t, conj=False):
        A("v_pk_mul_f32 %s, %s, %s op_sel_hi:[0,1]" % (v(t, 2), v(b, 2), v(a, 2)))
        A("v_pk_fma_f32 %s, %s, %s, %s op_sel:[1,1,0] op_sel_hi:[1,0,1] %s:[1,0,0]" % (v(d, 2), v(b, 2), v(a, 2), v(t, 2), "neg_hi" if conj else "neg_lo"))
    A("v_exp_f32 v%d, v%d" % (t0, Z))
    A("v_fract_f32 v%d, v%d" % (t1, Z + 1))
    A("v_exp_f32 v%d, -v%d" % (t2, Z))
    A("v_cos_f32 v%d, v%d" % (E1, t1))
    A("v_sin_f32 v%d, v%d" % (E1 + 1, t1))
    A("v_mul_f32 v%d, 0x%x, v%d" % (Z, f32bits(256.0), Z))
    A("v_mul_f32 v%d, 0x%x, v%d" % (Z + 1, f32bits(256.0), Z + 1))
    A("v_mul_f32 v%d, v%d, v%d" % (EM1, E1, t2))
    A("v_mul_f32 v%d, -v%d, v%d" % (EM1 + 1, E1 + 1, t2))
    A("v_mul_f32 v%d, v%d, v%d" % (E1, E1, t0))
    A("v_mul_f32 v%d, v%d, v%d" % (E1 + 1, E1 + 1, t0))
    A("v_exp_f32 v%d, v%d" % (t0, Z))
    A("v_fract_f32 v%d, v%d" % (t1, Z + 1))
    cmul(E2, E1, E1, T1)
    A("v_cos_f32 v%d, v%d" % (E256, t1))
    A("v_sin_f32 v%d, v%d" % (E256 + 1, t1))
    cmul(E4, E2, E2, T1)
    cmul(CB, P + 4, P + 2, T2)
    cmul(W8, E4, E4, T1)
    A("v_xor_b32 v%d, 0x80000000, v%d" % (CB + 1, CB + 1))
    A("v_mul_f32 v%d, v%d, v%d" % (E256, E256, t0))
    A("v_mul_f32 v%d, v%d, v%d" % (E256 + 1, E256 + 1, t0))
    cmul(W16, W8, W8, T1)
    cmul(E512, E256, E256, T2)
    cmul(E1024, E512, E512, T2)
    fitems = [(None, W8, 1), (None, W16, 2)]
    regs = {1: W8, 2: W16}
    for j in range(3, 32):
        d = FR[j & 3]
        fitems.append(((lambda d=d, s=regs[j - 2]: cmul(d, s, W16, T1)), d, j))
        regs[j] = d
    gitems = []
    def gstep(d, a, b, base):
        gitems.append(((lambda: cmul(d, a, b, T2, conj=True)), d, SROW[base]))
    gitems.append((None, CB, SROW[0]))
    g = [GA, GB]
    gstep(G256, CB, E256, 256)
    prev = CB
    for k in range(1, 8):
        gstep(g[k & 1], prev, E1, k); prev = g[k & 1]
    gstep(GA, CB, EM1, -1)
    gstep(GB, G256, EM1, 255)
    gstep(G512, CB, E512, 512)
    prev = G256
    for k, base in enumerate((258, 260, 262, 264)):
        gstep(g[k & 1], prev, E2, base); prev = g[k & 1]
    gstep(G1024, CB, E1024, 1024)
    gstep(GA, G512, E4, 516); gstep(GB, GA, E4, 520)
    gstep(G256, G512, E256, 768)
    gstep(GA, G256, E4, 772); gstep(GB, GA, E4, 776)
    gstep(GA, G1024, W8, 1032)
    gstep(GB, G1024, E256, 1280); gstep(GA, GB, W8, 1288)
    gstep(G1536, G1024, E512, 1536); gstep(GA, G1536, W8, 1544)
    gstep(GB, G1536, E256, 1792); gstep(GA, GB, W8, 1800)
    assert len(gitems) == NGR and len(fitems) == 31
    cur_m0 = ["F"]
    def setm0(x):
        if cur_m0[0] != x:
            A("s_mov_b32 m0, s%d" % (sMF if x == "F" else sMG)); cur_m0[0] = x
            return True
        return False
    rnd = 0
    fi = gi = 0
    while fi < len(fitems) or gi < len(gitems):
        fs = fitems[fi:fi + 2]; gs = gitems[gi:gi + 2]; fi += 2; gi += 2
        out = []
        seq = []
        for k in range(2):
            if k < len(fs): seq.append(("F", fs[k]))
            if k < len(gs): seq.append(("G", gs[k]))
        for n_, (kind, (fn, src, row)) in enumerate(seq):
            if fn: fn()
            A("v_cvt_pk_bf16_f32 v%d, v%d, v%d" % (PK[n_], src, src + 1))
            out.append((kind, PK[n_], row))
        order = ["F", "G"] if cur_m0[0] == "F" else ["G", "F"]
        for kind in order:
            ws = [o for o in out if o[0] == kind]
            if not ws: continue
            if setm0(kind): A("s_nop 0")
            for (_, pk, row) in ws:
                A("ds_write_addtid_b32 v%d offset:%d" % (pk, row * RS))
    stamp(A, timing, 1)
    AF, BF, DK = 64, 80, 16
    A("s_waitcnt lgkmcnt(0)")
    rd = []
    for t in range(8):
        for h in range(2): rd.append("ds_read_b64 %s, v%d offset:%d" % (v(AF + 4 * (t & 3) + 2 * h, 2), vGA, 32 * t + 8 * h))
        for h in range(2): rd.append("ds_read_b64 %s, v%d offset:%d" % (v(BF + 4 * (t & 3) + 2 * h, 2), vFA, 32 * t + 8 * h))
    for x in rd[:16]: A(x)
    issued = 16
    for t in range(8):
        need = 4 * (t + 1)
        A("s_waitcnt lgkmcnt(%d)" % (issued - need))
        A("v_mfma_f32_32x32x16_bf16 %s, %s, %s, %s" % (v(DK, 16), v(AF + 4 * (t & 3), 4), v(BF + 4 * (t & 3), 4), "0" if t == 0 else v(DK, 16)))
        for x in rd[issued:issued + 4]: A(x)
        issued = min(32, issued + 4)
    A("s_nop 7")
    A("s_nop 3")
    A("s_cmp_eq_u32 s%d, 0" % sHF)
    A("s_cbranch_scc0 ssm_x1")
    A("ds_write_b128 v%d, %s" % (vXS, v(DK + 8, 4)))
    A("ds_write_b128 v%d, %s offset:%d" % (vXS, v(DK + 12, 4), 8 * RS))
    A("s_branch ssm_x2")
    A.label("ssm_x1")
    A("ds_write_b128 v%d, %s" % (vXS, v(DK, 4)))
    A("ds_write_b128 v%d, %s offset:%d" % (vXS, v(DK + 4, 4), 8 * RS))
    A("ds_write_b32 v%d, v%d" % (vXS1, DK + 11))
    A.label("ssm_x2")
    A("s_waitcnt lgkmcnt(0)")
    A("s_barrier")
    stamp(A, timing, 2)
    R = 32
    A("ds_read_b128 %s, v%d" % (v(R, 4), vXR))
    A("ds_read_b128 %s, v%d offset:%d" % (v(R + 4, 4), vXR, 8 * RS))
    A("v_lshrrev_b32 v%d, 5, v%d" % (t3, vLane))
    A("s_cmp_eq_u32 s%d, 0" % sHF)
    A("s_cbranch_scc0 ssm_y1")
    A("ds_read_b32 v%d, v%d" % (R + 8, vXR1))
    A("v_lshlrev_b32 v%d, 9, v%d" % (t3, t3))
    A("v_sub_u32 v%d, v%d, v%d" % (t2, vKW, t3))
    A("v_lshrrev_b32 v%d, 2, v%d" % (t0, vLane))
    A("v_mul_u32_u24 v%d, %d, v%d" % (t0, CPS2, t0))
    A("v_and_b32 v%d, 3, v%d" % (t1, vLane))
    A("v_lshl_add_u32 v%d, v%d, 4, v%d" % (t0, t1, t0))
    A("s_add_u32 s47, s46, 4096")
    A("v_add_u32 v%d, s47, v%d" % (t0, t0))
    for r in range(4): A("v_mov_b32 v%d, 0" % (R + 12 + r))
    A("s_mov_b64 exec, 0xff")
    A("ds_write_b128 v%d, %s" % (t0, v(R + 12, 4)))
    A("s_mov_b64 exec, -1")
    A("s_waitcnt lgkmcnt(1)")
    for r in range(8): A("v_add_f32 v%d, v%d, v%d" % (DK + r, DK + r, R + r))
    A("v_add_f32 v%d, v%d, v%d" % (DK + 11, DK + 11, R + 8))
    for j in range(4): A("v_cvt_pk_bf16_f32 v%d, v%d, v%d" % (R + j, DK + 2 * j, DK + 2 * j + 1))
    A("ds_write_b128 v%d, %s" % (t2, v(R, 4)))
    A("v_cndmask_b32 v%d, v%d, v%d, s[52:53]" % (R + 9, DK + 11, DK + 7))
    A("v_cndmask_b32 v%d, 0, v%d, s[52:53]" % (R + 10, DK + 11))
    A("v_cndmask_b32 v%d, v%d, v%d, s[54:55]" % (R + 9, R + 9, R + 10))
    for j in range(3): A("v_cvt_pk_bf16_f32 v%d, v%d, v%d" % (R + 4 + j, DK + 2 * j + 1, DK + 2 * j + 2))
    A("v_cvt_pk_bf16_f32 v%d, v%d, v%d" % (R + 7, DK + 7, R + 9))
    A("ds_write_b128 v%d, %s offset:%d" % (t2, v(R + 4, 4), CPS2))
    A("s_branch ssm_y2")
    A.label("ssm_y1")
    A("v_lshlrev_b32 v%d, 9, v%d" % (R + 12, t3))
    A("v_sub_u32 v%d, v%d, v%d" % (R + 12, vKW, R + 12))
    A("v_subrev_u32 v%d, 1024, v%d" % (R + 12, R + 12))
    A("v_lshlrev_b32 v%d, 10, v%d" % (R + 13, t3))
    A("v_sub_u32 v%d, v%d, v%d" % (R + 13, vKW, R + 13))
    A("v_subrev_u32 v%d, 2560, v%d" % (R + 13, R + 13))
    A("s_waitcnt lgkmcnt(0)")
    for r in range(8): A("v_add_f32 v%d, v%d, v%d" % (DK + r, DK + 8 + r, R + r))
    K8, K4, K0 = DK, DK + 1, DK + 2
    A("v_cvt_pk_bf16_f32 v%d, v%d, v%d" % (R + 0, K8, K8))
    A("v_cvt_pk_bf16_f32 v%d, v%d, v%d" % (R + 1, K4, K4))
    A("v_cvt_pk_bf16_f32 v%d, v%d, v%d" % (R + 2, K4, K0))
    A("v_cvt_pk_bf16_f32 v%d, v%d, v%d" % (R + 3, K0, K0))
    A("ds_write_b128 v%d, %s" % (R + 12, v(R, 4)))
    A("v_cvt_pk_bf16_f32 v%d, v%d, v%d" % (R + 4, K8, K4))
    A("v_mov_b32 v%d, v%d" % (R + 5, R + 1))
    A("v_mov_b32 v%d, v%d" % (R + 6, R + 3))
    A("v_mov_b32 v%d, v%d" % (R + 7, R + 3))
    A("ds_write_b128 v%d, %s offset:%d" % (R + 12, v(R + 4, 4), CPS2))
    for k in range(2):
        K8, K0 = DK + 4 + 2 * k, DK + 5 + 2 * k
        o = 72 + 8 * k
        A("v_cndmask_b32 v%d, v%d, v%d, s[56:57]" % (R + 15, K0, K8))
        A("v_cvt_pk_bf16_f32 v%d, v%d, v%d" % (o + 0, K8, K8))
        A("v_cvt_pk_bf16_f32 v%d, v%d, v%d" % (o + 1, K8, R + 15))
        A("v_cvt_pk_bf16_f32 v%d, v%d, v%d" % (o + 2, K0, K0))
        A("v_mov_b32 v%d, v%d" % (o + 3, o + 2))
        A("ds_write_b128 v%d, %s offset:%d" % (R + 13, v(o, 4), 512 * (1 - k)))
        A("v_mov_b32 v%d, v%d" % (o + 4, o + 0))
        A("v_cvt_pk_bf16_f32 v%d, v%d, v%d" % (o + 5, R + 15, K0))
        A("v_mov_b32 v%d, v%d" % (o + 6, o + 2))
        A("v_mov_b32 v%d, v%d" % (o + 7, o + 2))
        A("ds_write_b128 v%d, %s offset:%d" % (R + 13, v(o + 4, 4), 512 * (1 - k) + CPS2))
    A.label("ssm_y2")
    AF, BFS, DC = 16, [48, 64], 80
    units = [(0, cl) for cl in range(4)] + [(1, cl) for cl in range(4)]
    def a_list(ph): return list(range(7, -1, -1)) if ph == 0 else list(range(3, -1, -1))
    def b_list(ph): return [0, 1, 2, 3] if ph == 0 else [4, 5, 6, 7]
    def a_reads(ph, cl, a): return ["ds_read_b64 %s, v%d offset:%d" % (v(AF + 4 * a + 2 * h, 2), vA, 512 * (7 - a) + 8 * h + 64 * (3 - cl)) for h in range(2)]
    def b_read(ph, cl, b, buf): return "ds_read_b128 %s, v%d offset:%d" % (v(BFS[buf] + 4 * (b & 3), 4), vB, 512 * b + 64 * (3 - cl))
    order = []
    state = {"done": 0}
    def issue(tag, text):
        A(text); order.append(tag)
    def need(tag):
        idx = max(i for i, x in enumerate(order) if x == tag)
        if idx < state["done"]: return
        cnt = len(order) - 1 - idx
        if cnt > 15: cnt = 15
        A("s_waitcnt lgkmcnt(%d)" % cnt)
        state["done"] = len(order) - cnt
        assert state["done"] > idx
    A("s_waitcnt lgkmcnt(0)")
    stamp(A, timing, 8)
    A("s_barrier")
    stamp(A, timing, 3)
    for b in b_list(0): issue(("B", 0, b), b_read(0, 0, b, 0))
    for a in a_list(0):
        for x in a_reads(0, 0, a): issue(("A", 0, a), x)
    first = set()
    for u, (ph, cl) in enumerate(units):
        buf = u & 1
        nxt = units[u + 1] if u + 1 < len(units) else None
        if u == 4:
            stamp(A, timing, 4)
            A("s_barrier")
            for b in b_list(1): issue(("B", u, b), b_read(1, cl, b, buf))
        if nxt and u + 1 != 4:
            for b in b_list(nxt[0]): issue(("B", u + 1, b), b_read(nxt[0], nxt[1], b, buf ^ 1))
        for a in a_list(ph):
            for b in b_list(ph):
                if a + b > 7: continue
                need(("B", u, b)); need(("A", u, a))
                c = a + b
                acc = v(DC + 4 * c, 4) if c in first else "0"
                first.add(c)
                A("v_mfma_f32_16x16x32_bf16 %s, %s, %s, %s" % (v(DC + 4 * c, 4), v(AF + 4 * a, 4), v(BFS[buf] + 4 * (b & 3), 4), acc))
            if nxt and a in a_list(nxt[0]):
                for x in a_reads(nxt[0], nxt[1], a): issue(("A", u + 1, a), x)
    stamp(A, timing, 5)
    U = 16
    for k in range(4): A("ds_read2_b32 %s, v%d offset0:%d offset1:%d" % (v(U + 2 * k, 2), vU if k < 2 else 13, 128 * (k & 1), 128 * (k & 1) + 2)) if k < 2 else None
    A("v_add_u32 v13, 1024, v%d" % vU)
    for k in range(2, 4): A("ds_read2_b32 %s, v13 offset0:%d offset1:%d" % (v(U + 2 * k, 2), 128 * (k & 1), 128 * (k & 1) + 2))
    A("s_nop 3")
    A("s_cmp_eq_u32 s%d, 0" % sHF)
    A("s_cbranch_scc0 ssm_w1")
    for k in range(4): A("ds_write_b128 v%d, %s offset:%d" % (vES, v(DC + 16 + 4 * k, 4), 1024 * k))
    A("s_branch ssm_w2")
    A.label("ssm_w1")
    for k in range(4): A("ds_write_b128 v%d, %s offset:%d" % (vES, v(DC + 4 * k, 4), 1024 * k))
    A.label("ssm_w2")
    UF = 32
    A("s_waitcnt lgkmcnt(4)")
    for k in range(8):
        A("v_lshlrev_b32 v%d, 16, v%d" % (UF + 2 * k, U + k))
        A("v_and_b32 v%d, 0xffff0000, v%d" % (UF + 2 * k + 1, U + k))
    for r in range(16): A("v_mul_f32 v%d, s%d, v%d" % (UF + r, sDskip, UF + r))
    for k in range(8): A("v_cvt_pk_bf16_f32 v%d, v%d, v%d" % (U + k, UF + 2 * k, UF + 2 * k + 1))
    A("s_waitcnt lgkmcnt(0)")
    A("s_barrier")
    R = 48
    for k in range(4): A("ds_read_b128 %s, v%d offset:%d" % (v(R + 4 * k, 4), vER, 1024 * k))
    for k in range(8):
        A("v_lshlrev_b32 v%d, 16, v%d" % (UF + 2 * k, U + k))
        A("v_and_b32 v%d, 0xffff0000, v%d" % (UF + 2 * k + 1, U + k))
    A("s_cmp_eq_u32 s%d, 0" % sHF)
    A("s_cbranch_scc1 ssm_v1")
    for r in range(16): A("v_mov_b32 v%d, v%d" % (DC + r, DC + 16 + r))
    A.label("ssm_v1")
    for k in range(4):
        A("s_waitcnt lgkmcnt(%d)" % (3 - k))
        for r in range(4): A("v_add_f32 v%d, v%d, v%d" % (DC + 4 * k + r, DC + 4 * k + r, R + 4 * k + r))
        for j in range(2): A("v_cvt_pk_bf16_f32 v%d, v%d, v%d" % (U + 2 * k + j, DC + 4 * k + 2 * j, DC + 4 * k + 2 * j + 1))
        for j in range(2):
            A("v_lshlrev_b32 v%d, 16, v%d" % (DC + 4 * k + 2 * j, U + 2 * k + j))
            A("v_and_b32 v%d, 0xffff0000, v%d" % (DC + 4 * k + 2 * j + 1, U + 2 * k + j))
        for r in range(4): A("v_add_f32 v%d, v%d, v%d" % (DC + 4 * k + r, DC + 4 * k + r, UF + 4 * k + r))
        for j in range(2): A("v_cvt_pk_bf16_f32 v%d, v%d, v%d" % (U + 2 * k + j, DC + 4 * k + 2 * j, DC + 4 * k + 2 * j + 1))
        for j in range(2):
            A("buffer_store_dword v%d, v%d, s[%d:%d], s%d offen offset:%d" % (U + 2 * k + j, vO, SAT, SAT + 3, sOut, 512 * k + 8 * j))
    stamp(A, timing, 6)
    dump_stamps(A, timing, 9, end, 0)
    A("s_branch %s" % end)

def gen_k1(name="k1_kernel", timing=False):
    A = Asm()
    end = name + "_end"
    A("s_cmp_ge_u32 s2, 256")
    A("s_cbranch_scc1 %s" % end)
    stamp(A, timing, 0)
    A("v_lshrrev_b32 v2, 6, v0")
    A("v_and_b32 v%d, 63, v0" % vLane)
    A("v_readfirstlane_b32 s%d, v2" % sW)
    A("s_cmp_lt_u32 s2, 160")
    A("s_cbranch_scc1 %s" % (end if NOSSM else "k1_ssm"))
    if NOQ: A("s_branch %s" % end)
    A("s_cmp_lt_u32 s2, 240")
    A("s_cbranch_scc1 k1_q")
    role_kv(A, end, timing)
    A.label("k1_q")
    role_q(A, end, timing)
    if AUX and not (SSM3 and WOSSM):
        A.label("k1_wo")
        role_wo(A, end)
    A.label("k1_ssm")
    (role_ssm3 if SSM3 else role_ssm2 if SSM2 else role_ssm)(A, end, timing)
    A.label(end)
    A("s_endpgm")
    return dict(name=name, grid=256, block=1024, lds=163840, body=A.text(), vgpr=128)

if __name__ == "__main__":
    import sys
    tm = False
    for a in sys.argv[2:]:
        if a.startswith("t"): tm = int(a[1:]) if len(a) > 1 else True
    for a in sys.argv[2:]:
        if a.startswith("g:"): GMOD = a[2:].replace("+", " ")
    k = gen_k1(timing=tm)
    open(sys.argv[1], "w").write(compose([k]))
```

```python
from asmlib import *
import struct, math

def f32bits(x):
    return struct.unpack("<I", struct.pack("<f", x))[0]

GMOD = ""
FUSED = False
SC1 = ""
HOOK = {}
STG2 = 36864
AMP = None
V3 = True
LPRIO = 3
B0 = True
QINIT = 5
QSTEP = 1
GDELAY = 0
QROT = True
QORD = [[0,2,1,3,4,6,5,7,8,9],[2,0,3,1,6,4,7,5,9,8]]
QORD_ROT = [[0,1,2,3,4,5,6,7,8,9],[5,6,7,8,9,0,1,2,3,4]]
WDELAY = 0
LOG2E = 1.4426950408889634
CSCALE = (20 ** -0.5) * LOG2E

sW = 6
vLane = 1

def stamp(A, timing, n):
    if timing is not False: A("s_memtime s[%d:%d]" % (60 + 2 * n, 61 + 2 * n))

def dump_stamps(A, timing, nst, end, wg, vt=2):
    if timing is False or (timing is not True and (timing >= 160) != (wg >= 160)): return
    if timing is not True: wg = timing
    if AMP is not None:
        a_, b_, w_ = AMP
        if b_ >= nst: return
        A("s_waitcnt lgkmcnt(0)")
        A("s_cmp_eq_u32 s2, %d" % wg)
        A("s_cbranch_scc0 %s" % end)
        A("s_cmp_eq_u32 s%d, %d" % (sW, w_))
        A("s_cbranch_scc0 %s" % end)
        A("s_load_dwordx2 s[40:41], s[0:1], 136")
        A("v_mov_b32 v%d, 0x2C8000" % vt)
        A("s_sub_u32 s51, s%d, s%d" % (60 + 2 * b_, 60 + 2 * a_))
        A("v_mov_b32 v%d, s51" % (vt + 1))
        A("s_waitcnt lgkmcnt(0)")
        A("global_store_dword v%d, v%d, s[40:41]" % (vt, vt + 1))
        return
    A("s_waitcnt lgkmcnt(0)")
    A("s_cmp_eq_u32 s2, %d" % wg)
    A("s_cbranch_scc0 %s" % end)
    A("s_load_dwordx2 s[40:41], s[0:1], 128")
    A("s_and_b32 s50, s%d, 3" % sW)
    A("s_cmp_eq_u32 s50, 0")
    A("s_cbranch_scc0 %s" % end)
    A("s_lshl_b32 s50, s%d, 4" % sW)
    A("v_mov_b32 v%d, s50" % vt)
    A("s_waitcnt lgkmcnt(0)")
    for i in range(1, nst):
        A("s_sub_u32 s51, s%d, s60" % (60 + 2 * i))
        A("v_mov_b32 v%d, s51" % (vt + 1))
        A("global_store_dword v%d, v%d, s[40:41] offset:%d" % (vt, vt + 1, 4 * (i - 1)))

def x_dma_setup(A, vX, t0, t1):
    for e in range(2):
        A("v_lshrrev_b32 v%d, 3, v%d" % (t0, vLane))
        if e: A("v_add_u32 v%d, 8, v%d" % (t0, t0))
        A("v_mul_u32_u24 v%d, 1280, v%d" % (vX + e, t0))
        A("v_lshrrev_b32 v%d, 4, v%d" % (t0, vLane))
        if e: A("v_add_u32 v%d, 4, v%d" % (t0, t0))
        A("v_and_b32 v%d, 7, v%d" % (t1, vLane))
        A("v_xor_b32 v%d, v%d, v%d" % (t0, t0, t1))
        A("v_lshl_add_u32 v%d, v%d, 4, v%d" % (vX + e, t0, vX + e))

def x_read_setup(A, vXr, sRowOff128, xbase, t0, t1, t2):
    A("v_and_b32 v%d, 31, v%d" % (t0, vLane))
    A("v_bfe_u32 v%d, v%d, 1, 3" % (t1, vLane))
    A("v_lshrrev_b32 v%d, 5, v%d" % (t2, vLane))
    A("v_xor_b32 v%d, v%d, v%d" % (t1, t1, t2))
    A("v_lshlrev_b32 v%d, 7, v%d" % (t0, t0))
    A("v_add_u32 v%d, s%d, v%d" % (t0, sRowOff128, t0))
    if xbase: A("v_add_u32 v%d, %d, v%d" % (t0, xbase, t0))
    for s_ in range(4):
        A("v_xor_b32 v%d, %d, v%d" % (t2, 2 * s_, t1))
        A("v_lshl_add_u32 v%d, v%d, 4, v%d" % (vXr + s_, t2, t0))

def role_q(A, end, timing):
    D = 5; BUF = 32768; WOFF = 16384
    SX, SWT, SO = 8, 12, 16
    sRow0, sN0b, sJ = 20, 21, 22
    t0, t1, t2 = 2, 3, 4
    A("s_cmp_ge_u32 s%d, 12" % sW)
    A("s_cbranch_scc1 %s" % ("q_poison" if (OPERM or FUSED) else end))
    A("s_load_dwordx2 s[32:33], s[0:1], 0")
    A("s_load_dwordx2 s[34:35], s[0:1], 80")
    A("s_load_dwordx2 s[4:5], s[0:1], 136")
    A("s_sub_u32 s23, s2, 160")
    A("s_and_b32 s%d, s23, 15" % sRow0)
    A("s_lshl_b32 s%d, s%d, 7" % (sRow0, sRow0))
    A("s_lshr_b32 s%d, s23, 4" % sN0b)
    A("s_lshl_b32 s%d, s%d, 8" % (sN0b, sN0b))
    A("s_cmp_lt_u32 s%d, 4" % sW)
    A("s_cbranch_scc1 q_comp")
    vX, vWd = 8, 10
    A("s_sub_u32 s%d, s%d, 4" % (sJ, sW))
    x_dma_setup(A, vX, t0, t1)
    A("v_lshrrev_b32 v%d, 4, v%d" % (t0, vLane))
    A("v_mul_u32_u24 v%d, 1280, v%d" % (vWd, t0))
    A("v_and_b32 v%d, 1, v%d" % (t1, t0))
    A("v_lshlrev_b32 v%d, 1, v%d" % (t1, t1))
    A("v_lshrrev_b32 v%d, 1, v%d" % (t0, t0))
    A("v_lshl_add_u32 v%d, v%d, 3, v%d" % (t1, t0, t1))
    A("v_and_b32 v%d, 15, v%d" % (t0, vLane))
    A("v_xor_b32 v%d, v%d, v%d" % (t0, t0, t1))
    A("v_lshl_add_u32 v%d, v%d, 4, v%d" % (vWd, t0, vWd))
    sXg, sWg, sM0 = 24, 25, 26
    A("s_lshl_b32 s27, s%d, 4" % sJ)
    A("s_add_u32 s27, s27, s%d" % sRow0)
    A("s_mul_i32 s%d, s27, 1280" % sXg)
    A("s_mul_i32 s%d, s%d, %d" % (sWg, sJ, 8 * 1280))
    A("s_add_u32 s%d, s%d, s%d" % (sWg, sWg, sN0b))
    A("s_lshl_b32 s%d, s%d, 11" % (sM0, sJ))
    A("s_waitcnt lgkmcnt(0)")
    srd(A, SX, 32, 0, NQ)
    srd(A, SWT, 34, 0, 640 * 1280)
    srd(A, SO, 4, WS_Q, NQ)
    issued = []
    QOFF = QORD
    if QROT:
        A("s_lshr_b32 s36, s23, 4")
        A("s_lshl_b32 s36, s36, 1")
        A("s_bfe_u32 s37, s23, 0x10003")
    def dma(c):
        b = (c % D) * BUF
        if QROT:
            A("s_cmp_eq_u32 s37, 1")
            A("s_cselect_b32 s29, %d, %d" % (QOFF[1][c], QOFF[0][c]))
            A("s_add_u32 s29, s29, s36")
            A("s_cmp_ge_u32 s29, 10")
            A("s_cselect_b32 s30, 10, 0")
            A("s_sub_u32 s29, s29, s30")
            A("s_lshl_b32 s30, s29, 7")
            A("s_add_u32 s30, s30, s%d" % sXg)
            A("s_mul_i32 s31, s29, %d" % (64 * 1280))
            A("s_add_u32 s31, s31, s%d" % sWg)
            for e in range(2):
                A("s_add_u32 m0, s%d, %d" % (sM0, b + e * 1024))
                A("s_nop 0")
                A("buffer_load_dwordx4 v%d, s[%d:%d], s30 offen lds" % (vX + e, SX, SX + 3))
                issued.append(c)
            for e in range(2):
                A("s_add_u32 m0, s%d, %d" % (sM0, b + WOFF + e * 1024))
                A("s_add_u32 s28, s31, %d" % (4 * e * 1280))
                A("buffer_load_dwordx4 v%d, s[%d:%d], s28 offen lds" % (vWd, SWT, SWT + 3))
                issued.append(c)
            return
        for e in range(2):
            A("s_add_u32 m0, s%d, %d" % (sM0, b + e * 1024))
            A("s_add_u32 s28, s%d, %d" % (sXg, c * 128))
            A("buffer_load_dwordx4 v%d, s[%d:%d], s28 offen lds" % (vX + e, SX, SX + 3))
            issued.append(c)
        for e in range(2):
            A("s_add_u32 m0, s%d, %d" % (sM0, b + WOFF + e * 1024))
            A("s_add_u32 s28, s%d, %d" % (sWg, (64 * c + 4 * e) * 1280))
            A("buffer_load_dwordx4 v%d, s[%d:%d], s28 offen lds" % (vWd, SWT, SWT + 3))
            issued.append(c)
    for c in range(QINIT):
        dma(c)
    vSl, vSg = 12, 13
    A("v_lshrrev_b32 v%d, 4, v%d" % (t0, vLane))
    A("v_and_b32 v%d, 15, v%d" % (t1, vLane))
    A("v_mul_u32_u24 v%d, 272, v%d" % (vSl, t0))
    A("v_lshl_add_u32 v%d, v%d, 4, v%d" % (vSl, t1, vSl))
    A("s_mul_i32 s27, s%d, %d" % (sJ, 16 * 272))
    if FUSED:
        A("s_cmp_ge_u32 s%d, 4" % sJ)
        A("s_cselect_b32 s28, %d, 0" % (STG2 - 64 * 272))
        A("s_add_u32 s27, s27, s28")
    A("v_add_u32 v%d, s27, v%d" % (vSl, vSl))
    A("v_mul_u32_u24 v%d, 1280, v%d" % (vSg, t0))
    A("v_lshl_add_u32 v%d, v%d, 4, v%d" % (vSg, t1, vSg))
    for c in range(10):
        last = max(i for i, x in enumerate(issued) if x == c)
        A("s_waitcnt vmcnt(%d)" % (len(issued) - 1 - last))
        A("s_barrier")
        nxt = max(issued) + 1
        k_ = 0
        while nxt <= 9 and nxt - D + 2 <= c and k_ < QSTEP:
            dma(nxt); nxt += 1; k_ += 1
    A("s_barrier")
    for e in range(4):
        A("ds_read_b128 %s, v%d offset:%d" % (v(16 + 4 * e, 4), vSl, e * 4 * 272))
    A("s_add_u32 s28, s%d, s%d" % (sXg, sN0b))
    for e in range(4):
        A("s_waitcnt lgkmcnt(%d)" % (3 - e))
        A("buffer_store_dwordx4 %s, v%d, s[%d:%d], s28 offen offset:%d%s" % (v(16 + 4 * e, 4), vSg, SO, SO + 3, 0, SC1) if e == 0 else
          "s_add_u32 s29, s28, %d\nbuffer_store_dwordx4 %s, v%d, s[%d:%d], s29 offen%s" % (e * 4 * 1280, v(16 + 4 * e, 4), vSg, SO, SO + 3, SC1))
        if e: A("s_nop 0")
    stamp(A, timing, 3)
    dump_stamps(A, timing, 4, end, 160)
    if FUSED: HOOK["q_stored"](A, sRow0, sN0b, sJ)
    A("s_branch %s" % end)
    if FUSED:
        A.label("q_poison")
        HOOK["q_idle"](A, end)
    elif OPERM:
        A.label("q_poison")
        A("s_load_dwordx2 s[4:5], s[0:1], 136")
        A("s_sub_u32 s23, s2, 160")
        A("s_lshl_b32 s23, s23, 2")
        A("s_add_u32 s23, s23, s%d" % sW)
        A("s_sub_u32 s23, s23, 12")
        A("s_lshl_b32 s23, s23, 13")
        A("v_lshlrev_b32 v2, 4, v%d" % vLane)
        for r in range(4): A("v_mov_b32 v%d, -1" % (4 + r))
        A("s_waitcnt lgkmcnt(0)")
        srd(A, 8, 4, WS_O, NQ)
        for e in range(8):
            if e == 4: A("s_add_u32 s23, s23, 4096")
            A("buffer_store_dwordx4 v[4:7], v2, s[8:11], s23 offen offset:%d" % ((e & 3) * 1024))
        A("s_branch %s" % end)
    A.label("q_comp")
    vXr, vWr = 8, 12
    XF = [[16, 20], [24, 28]]; WF = [[32, 36], [40, 44]]
    ACC = 64
    A("s_and_b32 s24, s%d, 1" % sW)
    A("s_lshl_b32 s24, s24, 13")
    x_read_setup(A, vXr, 24, 0, t0, t1, t2)
    A("v_lshrrev_b32 v%d, 5, v%d" % (t0, vLane))
    A("v_bfe_u32 v%d, v%d, 2, 2" % (t1, vLane))
    A("v_lshl_add_u32 v%d, v%d, 3, v%d" % (t0, t0, t1))
    A("v_lshlrev_b32 v%d, 8, v%d" % (t0, t0))
    A("v_bfe_u32 v%d, v%d, 1, 1" % (t2, vLane))
    A("v_lshl_add_u32 v%d, v%d, 3, v%d" % (t0, t2, t0))
    A("v_add_u32 v%d, %d, v%d" % (t0, WOFF, t0))
    A("v_and_b32 v%d, 1, v%d" % (t2, vLane))
    A("v_lshlrev_b32 v%d, 2, v%d" % (t2, t2))
    A("v_bfe_u32 v5, v%d, 4, 1" % vLane)
    A("v_or_b32 v%d, v%d, v5" % (t2, t2))
    A("s_lshr_b32 s25, s%d, 1" % sW)
    A("s_lshl_b32 s25, s25, 3")
    A("v_or_b32 v%d, s25, v%d" % (t2, t2))
    A("v_and_b32 v5, 1, v%d" % t1)
    A("v_lshlrev_b32 v5, 1, v5")
    A("v_xor_b32 v%d, v%d, v5" % (t2, t2))
    A("v_lshrrev_b32 v5, 1, v%d" % t1)
    A("v_lshlrev_b32 v5, 3, v5")
    A("v_xor_b32 v%d, v%d, v5" % (t2, t2))
    A("v_lshl_add_u32 v%d, v%d, 4, v%d" % (vWr, t2, t0))
    A("v_xor_b32 v%d, 2, v%d" % (t2, t2))
    A("v_lshl_add_u32 v%d, v%d, 4, v%d" % (vWr + 1, t2, t0))
    vSt = 14
    A("v_and_b32 v%d, 31, v%d" % (t0, vLane))
    A("v_mul_u32_u24 v%d, 272, v%d" % (vSt, t0))
    A("v_lshrrev_b32 v%d, 5, v%d" % (t0, vLane))
    A("v_lshl_add_u32 v%d, v%d, 6, v%d" % (vSt, t0, vSt))
    A("s_and_b32 s24, s%d, 1" % sW)
    A("s_mul_i32 s24, s24, %d" % (STG2 if FUSED else 64 * 272))
    A("s_lshl_b32 s25, s25, 4")
    A("s_add_u32 s24, s24, s25")
    A("v_add_u32 v%d, s24, v%d" % (vSt, vSt))
    bias = [0]
    def set_bias(nb):
        d = nb - bias[0]
        if d:
            for r in list(range(vXr, vXr + 4)) + [vWr, vWr + 1]:
                A("v_add_u32 v%d, %d, v%d" % (r, d & 0xffffffff, r))
        bias[0] = nb
    def reads(S):
        c, s_ = divmod(S, 4); fb = S & 1
        b = (c % D) * BUF
        set_bias(b // 65536 * 65536)
        o = b - bias[0]
        for lg in range(2):
            A("ds_read_b128 %s, v%d offset:%d" % (v(XF[fb][lg], 4), vXr + s_, o + lg * 4096))
        for t in range(2):
            for h in range(2):
                A("ds_read_b64_tr_b16 %s, v%d offset:%d" % (v(WF[fb][t] + 2 * h, 2), vWr + t, o + s_ * 4096 + h * 1024))
    def mfma(S, i):
        fb = S & 1; lg, t = divmod(i, 2)
        a = ACC + 16 * (2 * lg + t)
        A("v_mfma_f32_32x32x16_bf16 %s, %s, %s, %s" % (v(a, 16), v(WF[fb][t], 4), v(XF[fb][lg], 4), "0" if S == 0 else v(a, 16)))
    A("s_barrier")
    stamp(A, timing, 1)
    qst = [4]
    reads(0)
    for S in range(40):
        c, s_ = divmod(S, 4)
        if S + 1 < 40:
            reads(S + 1)
            A("s_waitcnt lgkmcnt(6)")
        else:
            A("s_waitcnt lgkmcnt(0)")
        for i in range(4):
            mfma(S, i)
            if i == 0 and s_ == 2 and c + 1 < 10:
                A("s_barrier")
                if QST and c in (0, 2, 4, 6, 8): stamp(A, timing, qst[0]); qst[0] += 1
    stamp(A, timing, 2)
    A("s_nop 7")
    A("s_nop 3")
    for lg in range(2):
        for t in range(2):
            a = ACC + 16 * (2 * lg + t)
            for j in range(8):
                A("v_cvt_pk_bf16_f32 v%d, v%d, v%d" % (a + j, a + 2 * j, a + 2 * j + 1))
            for h in range(2):
                A("ds_write_b128 v%d, %s offset:%d" % (vSt, v(a + 4 * h, 4), lg * 32 * 272 + 32 * t + 16 * h))
    A("s_waitcnt lgkmcnt(0)")
    A("s_barrier")
    stamp(A, timing, 3)
    dump_stamps(A, timing, 9 if QST else 4, end, 160)
    A("s_branch %s" % end)

def role_kv(A, end, timing):
    D = 5; XB = 65536; BUF = 16384
    SX, SK, SV, SO = 8, 12, 16, 20
    sRow0, sJ = 24, 25
    t0, t1, t2 = 2, 3, 4
    A("s_cmp_ge_u32 s%d, 12" % sW)
    A("s_cbranch_scc1 %s" % ("kv_idle" if FUSED else "k1_wo" if AUX and not (SSM3 and WOSSM) else end))
    A("s_load_dwordx2 s[32:33], s[0:1], 0")
    A("s_load_dwordx4 s[36:39], s[0:1], 88")
    A("s_load_dwordx2 s[4:5], s[0:1], 136")
    A("s_sub_u32 s%d, s2, 240" % sRow0)
    A("s_lshl_b32 s%d, s%d, 7" % (sRow0, sRow0))
    A("s_cmp_lt_u32 s%d, 4" % sW)
    A("s_cbranch_scc1 kv_comp")
    vX, vL16 = 8, 10
    A("s_sub_u32 s%d, s%d, 4" % (sJ, sW))
    x_dma_setup(A, vX, t0, t1)
    A("v_lshlrev_b32 v%d, 4, v%d" % (vL16, vLane))
    sXg, sM0 = 26, 27
    A("s_lshl_b32 s28, s%d, 4" % sJ)
    A("s_add_u32 s28, s28, s%d" % sRow0)
    A("s_mul_i32 s%d, s28, 1280" % sXg)
    A("s_lshl_b32 s%d, s%d, 11" % (sM0, sJ))
    A("s_waitcnt lgkmcnt(0)")
    srd(A, SX, 32, 0, NQ)
    srd(A, SK, 36, 0, 25600)
    srd(A, SV, 38, 0, 25600)
    issued = []
    def dma(c):
        b = XB + (c % D) * BUF
        for e in range(2):
            A("s_add_u32 m0, s%d, %d" % (sM0, b + e * 1024))
            A("s_add_u32 s29, s%d, %d" % (sXg, c * 128))
            A("buffer_load_dwordx4 v%d, s[%d:%d], s29 offen lds" % (vX + e, SX, SX + 3))
            issued.append(c)
    A("s_lshl_b32 s30, s%d, 10" % sJ)
    for e in range(4):
        for (sr, base) in ((SK, 0), (SV, 32768)):
            A("s_add_u32 s29, s30, %d" % (e * 8192))
            A("s_add_u32 m0, s29, %d" % base)
            A("s_nop 0")
            A("buffer_load_dwordx4 v%d, s[%d:%d], s29 offen lds" % (vL16, sr, sr + 3))
            issued.append(0)
    for c in range(D):
        dma(c)
    for c in range(10):
        last = max(i for i, x in enumerate(issued) if x == c)
        A("s_waitcnt vmcnt(%d)" % (len(issued) - 1 - last))
        A("s_barrier")
        if c >= 2 and c - 2 + D <= 9:
            dma(c - 2 + D)
    if FUSED:
        A("s_branch kv_tail")
        A.label("kv_idle")
        for c in range(10): A("s_barrier")
        A.label("kv_tail")
        HOOK["kv_tail"](A, end)
    A("s_branch %s" % end)
    A.label("kv_comp")
    vXr, vWr = 8, 12
    XF = [16, 20]; KF = [24, 28]; VF = [32, 36]
    DK, DV = 64, 80
    A("s_lshl_b32 s26, s%d, 12" % sW)
    x_read_setup(A, vXr, 26, XB, t0, t1, t2)
    set_off = XB
    A("v_lshrrev_b32 v%d, 5, v%d" % (t0, vLane))
    A("v_bfe_u32 v%d, v%d, 2, 2" % (t1, vLane))
    A("v_lshl_add_u32 v%d, v%d, 3, v%d" % (t0, t0, t1))
    A("v_mul_u32_u24 v%d, 40, v%d" % (vWr, t0))
    A("v_bfe_u32 v%d, v%d, 4, 1" % (t0, vLane))
    A("v_lshl_add_u32 v%d, v%d, 5, v%d" % (vWr, t0, vWr))
    A("v_and_b32 v%d, 3, v%d" % (t0, vLane))
    A("v_lshl_add_u32 v%d, v%d, 3, v%d" % (vWr, t0, vWr))
    def reads(S):
        c, s_ = divmod(S, 4); fb = S & 1
        o = (c % D) * BUF
        if o >= 65536:
            A("v_add_u32 v%d, %d, v%d" % (t0, 65536, vXr + s_))
            A("ds_read_b128 %s, v%d offset:%d" % (v(XF[fb], 4), t0, o - 65536))
        else:
            A("ds_read_b128 %s, v%d offset:%d" % (v(XF[fb], 4), vXr + s_, o))
        for h in range(2):
            A("ds_read_b64_tr_b16 %s, v%d offset:%d" % (v(KF[fb] + 2 * h, 2), vWr, S * 640 + h * 160))
        for h in range(2):
            A("ds_read_b64_tr_b16 %s, v%d offset:%d" % (v(VF[fb] + 2 * h, 2), vWr, 32768 + S * 640 + h * 160))
    A("s_barrier")
    reads(0)
    for S in range(40):
        c, s_ = divmod(S, 4); fb = S & 1
        if S + 1 < 40:
            reads(S + 1)
            A("s_waitcnt lgkmcnt(5)")
        else:
            A("s_waitcnt lgkmcnt(0)")
        A("v_mfma_f32_32x32x16_bf16 %s, %s, %s, %s" % (v(DK, 16), v(KF[fb], 4), v(XF[fb], 4), "0" if S == 0 else v(DK, 16)))
        if s_ == 2 and c + 1 < 10:
            A("s_barrier")
        A("v_mfma_f32_32x32x16_bf16 %s, %s, %s, %s" % (v(DV, 16), v(XF[fb], 4), v(VF[fb], 4), "0" if S == 0 else v(DV, 16)))
    A("s_waitcnt lgkmcnt(0)")
    srd(A, SO, 4, WS_KV, NKV)
    A("s_lshr_b32 s26, s%d, 5" % sRow0)
    A("s_add_u32 s26, s26, s%d" % sW)
    A("s_mul_i32 s26, s26, 2560")
    vK1, vK2, vV = 8, 9, 10
    A("v_and_b32 v%d, 31, v%d" % (t0, vLane))
    A("v_lshrrev_b32 v%d, 5, v%d" % (t1, vLane))
    A("v_lshlrev_b32 v%d, 4, v%d" % (vK1, t0))
    A("v_lshl_add_u32 v%d, v%d, 3, v%d" % (vK1, t1, vK1))
    A("v_lshlrev_b32 v%d, 30, v%d" % (vK2, t1))
    A("v_lshl_add_u32 v%d, v%d, 3, v%d" % (vK2, t0, vK2))
    A("v_mul_u32_u24 v%d, 320, v%d" % (vV, t1))
    A("v_lshl_add_u32 v%d, v%d, 4, v%d" % (vV, t0, vV))
    A("v_cmp_gt_u32 vcc, 20, v%d" % t0)
    A("v_mov_b32 v%d, 0x40000000" % t2)
    A("s_nop 1")
    A("v_cndmask_b32 v%d, v%d, v%d, vcc" % (vV, t2, vV))
    A("s_nop 7")
    for j in range(6):
        A("v_cvt_pk_bf16_f32 v%d, v%d, v%d" % (16 + j, DK + 2 * j, DK + 2 * j + 1))
    for j in range(6):
        A("v_lshlrev_b32 v%d, 16, v%d" % (DK + 2 * j, 16 + j))
        A("v_and_b32 v%d, 0xffff0000, v%d" % (DK + 2 * j + 1, 16 + j))
    A("s_mov_b32 s27, 0x%x" % f32bits(CSCALE))
    for r in range(12):
        A("v_mul_f32 v%d, s27, v%d" % (DK + r, DK + r))
    for j in range(6):
        A("v_cvt_pk_bf16_f32 v%d, v%d, v%d" % (16 + j, DK + 2 * j, DK + 2 * j + 1))
    for j in range(8):
        A("v_cvt_pk_bf16_f32 v%d, v%d, v%d" % (24 + j, DV + 2 * j, DV + 2 * j + 1))
    A("buffer_store_dwordx2 %s, v%d, s[%d:%d], s26 offen%s" % (v(16, 2), vK1, SO, SO + 3, SC1))
    A("buffer_store_dwordx2 %s, v%d, s[%d:%d], s26 offen offset:512%s" % (v(18, 2), vK1, SO, SO + 3, SC1))
    A("buffer_store_dwordx2 %s, v%d, s[%d:%d], s26 offen offset:1024%s" % (v(20, 2), vK2, SO, SO + 3, SC1))
    A("buffer_store_dwordx4 %s, v%d, s[%d:%d], s26 offen offset:1280%s" % (v(24, 4), vV, SO, SO + 3, SC1))
    A("buffer_store_dwordx4 %s, v%d, s[%d:%d], s26 offen offset:1920%s" % (v(28, 4), vV, SO, SO + 3, SC1))
    if FUSED:
        A("s_waitcnt vmcnt(0)")
        A("s_branch kv_tail")
    A("s_branch %s" % end)

AUX = True
WS_WF  = 0x0300000
WS_CNT = 0x02C0000
NWF = 819200

def gate_row(A, X, XU, WU, SG, vZero, sOff):
    for q in range(5):
        A("v_lshlrev_b32 v%d, 16, v%d" % (XU + 2 * q, X + q))
        A("v_and_b32 v%d, 0xffff0000, v%d" % (XU + 2 * q + 1, X + q))
    for q in range(10):
        A("v_mul_f32 v%d, v%d, v%d" % (XU + q, XU + q, WU + q))
    for q in range(5):
        A("v_cvt_pk_bf16_f32 v%d, v%d, v%d" % (X + q, XU + 2 * q, XU + 2 * q + 1))
    for q in range(5):
        A("v_lshlrev_b32 v%d, 16, v%d" % (XU + 2 * q, X + q))
        A("v_and_b32 v%d, 0xffff0000, v%d" % (XU + 2 * q + 1, X + q))
    for q in range(5):
        A("v_add_f32 v%d, v%d, v%d" % (XU + q, XU + q, XU + 5 + q))
    A("v_add_f32 v%d, v%d, v%d" % (XU, XU, XU + 1))
    A("v_add_f32 v%d, v%d, v%d" % (XU + 2, XU + 2, XU + 3))
    A("v_add_f32 v%d, v%d, v%d" % (XU, XU, XU + 4))
    A("v_add_f32 v%d, v%d, v%d" % (XU, XU, XU + 2))
    for ctl in ("row_shr:1", "row_shr:2", "row_shr:4", "row_shr:8"):
        A("s_nop 1")
        A("v_add_f32_dpp v%d, v%d, v%d %s row_mask:0xf bank_mask:0xf bound_ctrl:0" % (XU, XU, XU, ctl))
    A("s_nop 1")
    A("v_add_f32_dpp v%d, v%d, v%d row_bcast:15 row_mask:0xa bank_mask:0xf" % (XU, XU, XU))
    A("s_nop 1")
    A("v_add_f32_dpp v%d, v%d, v%d row_bcast:31 row_mask:0xc bank_mask:0xf" % (XU, XU, XU))
    A("v_cvt_pk_bf16_f32 v%d, v%d, v%d" % (XU, XU, XU))
    A("v_lshlrev_b32 v%d, 16, v%d" % (XU, XU))
    A("v_mul_f32 v%d, 0xbfb8aa3b, v%d" % (XU, XU))
    A("v_exp_f32 v%d, v%d" % (XU, XU))
    A("s_nop 0")
    A("v_add_f32 v%d, 1.0, v%d" % (XU, XU))
    A("v_rcp_f32 v%d, v%d" % (XU, XU))
    A("s_nop 0")
    A("v_cvt_pk_bf16_f32 v%d, v%d, v%d" % (XU, XU, XU))
    A("v_lshlrev_b32 v%d, 16, v%d" % (X, XU))
    A("s_mov_b32 exec_lo, 0")
    A("s_mov_b32 exec_hi, 0x80000000")
    A("buffer_store_dword v%d, v%d, s[%d:%d], s%d offen%s" % (X, vZero, SG, SG + 3, sOff, SC1))
    A("s_mov_b64 exec, -1")

def role_wo(A, end):
    SWO, SWF, SC = 8, 12, 16
    A("s_load_dwordx2 s[32:33], s[0:1], 104")
    A("s_load_dwordx2 s[4:5], s[0:1], 136")
    A("s_sub_u32 s20, s2, 240")
    A("s_lshl_b32 s20, s20, 2")
    A("s_add_u32 s20, s20, s%d" % sW)
    A("s_sub_u32 s20, s20, 12")
    A("v_lshrrev_b32 v2, 4, v%d" % vLane)
    A("v_and_b32 v3, 15, v%d" % vLane)
    A("v_mul_u32_u24 v4, %d, v2" % (8 * 1280))
    A("v_lshl_add_u32 v4, v3, 4, v4")
    A("v_lshrrev_b32 v5, 1, v3")
    A("v_mul_u32_u24 v5, 20480, v5")
    A("v_lshl_add_u32 v5, v2, 8, v5")
    A("v_and_b32 v6, 1, v3")
    A("v_lshl_add_u32 v5, v6, 7, v5")
    A("v_lshlrev_b32 v6, 7, v%d" % vLane)
    A("v_mov_b32 v7, 0")
    A("s_mov_b32 s40, 0x05040100")
    A("s_mov_b32 s41, 0x07060302")
    for n in range(2):
        A("s_add_u32 s21, s20, %d" % (64 * n))
        A("s_mul_i32 s22, s21, 205")
        A("s_lshr_b32 s22, s22, 10")
        A("s_mul_i32 s23, s22, 5")
        A("s_sub_u32 s23, s21, s23")
        A("s_mul_i32 s24, s22, %d" % (32 * 1280))
        A("s_lshl_b32 s25, s23, 8")
        A("s_add_u32 s%d, s24, s25" % (26 + 3 * n))
        A("s_add_u32 s%d, s%d, 5120" % (27 + 3 * n, 26 + 3 * n))
        A("s_mul_i32 s24, s23, %d" % (8 * 20480))
        A("s_lshl_b32 s25, s22, 10")
        A("s_add_u32 s%d, s24, s25" % (28 + 3 * n))
        A("s_cmp_ge_u32 s21, 100")
        A("s_cselect_b32 s%d, 0x1000000, s%d" % (28 + 3 * n, 28 + 3 * n))
    A("s_waitcnt lgkmcnt(0)")
    srd(A, SWO, 32, 0, 640 * 1280)
    srd(A, SWF, 4, WS_WF, NWF)
    srd(A, SC, 4, WS_CNT, 4096)
    L = [16, 48]; Pk = [80, 16]
    for _ in range(WDELAY): A("s_barrier")
    for n in range(2):
        for e in range(8):
            A("buffer_load_dwordx4 %s, v4, s[%d:%d], s%d offen offset:%d" % (v(L[n] + 4 * e, 4), SWO, SWO + 3, 26 + 3 * n + (e >> 2), (e & 3) * 1280))
    A("s_cmp_eq_u32 s20, 0")
    A("s_cbranch_scc0 k1_wo_nz")
    A("buffer_store_dword v7, v6, s[%d:%d], 0 offen" % (SC, SC + 3))
    A.label("k1_wo_nz")
    A("s_barrier")
    A("s_waitcnt vmcnt(0)")
    for n in range(2):
        for cc in range(8):
            for m in range(4):
                A("v_perm_b32 v%d, v%d, v%d, s%d" % (Pk[n] + 4 * cc + m, L[n] + 4 * (2 * m + 1) + (cc >> 1), L[n] + 4 * (2 * m) + (cc >> 1), 40 + (cc & 1)))
            A("buffer_store_dwordx4 %s, v5, s[%d:%d], s%d offen offset:%d" % (v(Pk[n] + 4 * cc, 4), SWF, SWF + 3, 28 + 3 * n, cc * 16))
    A("s_branch %s" % end)

CH = 34816
TAB = 17408
UB = 4 * CH
UP = 4576
CP0 = 2048
CPS = 4160
EX2 = 20480

GROWS = {0: [11], 1: [10], 2: [9], 3: [8], 4: [3], 5: [2], 6: [1], 7: [0],
         256: [14, 15], 258: [13], 260: [12, 7, 6], 262: [5], 264: [4],
         512: [18], 516: [17], 520: [16], 768: [22], 772: [21], 776: [20],
         1024: [25], 1032: [24], 1280: [27], 1288: [26], 1536: [29], 1544: [28], 1792: [31], 1800: [30]}

def role_ssm(A, end, timing):
    t0, t1, t2, t3 = 2, 3, 4, 5
    sD0, sCH, sHF = 7, 8, 9
    SX, SAT = 12, 36
    A("s_load_dwordx16 s[16:31], s[0:1], 0")
    A("s_load_dwordx2 s[32:33], s[0:1], 64")
    A("s_load_dwordx2 s[4:5], s[0:1], 136")
    A("s_and_b32 s10, s2, 7")
    A("s_mul_i32 s10, s10, 20")
    A("s_lshr_b32 s11, s2, 3")
    A("s_add_u32 s10, s10, s11")
    A("s_lshl_b32 s%d, s10, 2" % sD0)
    A("s_cmp_lt_u32 s%d, 8" % sW)
    A("s_cbranch_scc1 ssm_main")
    if LPRIO: A("s_setprio %d" % LPRIO)
    if AUX: A("s_load_dwordx2 s[36:37], s[0:1], 112")
    A("s_sub_u32 s10, s%d, 8" % sW)
    A("v_mul_u32_u24 v%d, 1280, v%d" % (t0, vLane))
    A("s_mul_i32 s11, s10, %d" % (256 * 1280))
    A("s_lshl_b32 s34, s%d, 1" % sD0)
    A("s_add_u32 s11, s11, s34")
    A("s_waitcnt lgkmcnt(0)")
    srd(A, SX, 16, 0, NQ)
    if B0: A("s_barrier")
    for e in range(4):
        A("s_add_u32 s34, s11, %d" % (e * 64 * 1280))
        A("buffer_load_dwordx2 %s, v%d, s[%d:%d], s34 offen %s" % (v(8 + 2 * e, 2), t0, SX, SX + 3, GMOD))
    NG = 0
    if AUX:
        GX, GW, XU, WU, SGW, SG = 32, 44, 52, 64, 40, 44
        NG = 0
        A("s_lshl_b32 s38, s2, 3")
        A("s_add_u32 s38, s38, s10")
        A("s_mul_i32 s39, s38, 1280")
        A("v_mul_u32_u24 v24, 20, v%d" % vLane)
        A("v_mov_b32 v25, 0")
        srd(A, SGW, 36, 0, 1280)
        srd(A, SG, 4, WS_G, 8192)
    A("v_mov_b32 v16, 0"); A("v_mov_b32 v17, 0"); A("v_mov_b32 v18, 0"); A("v_mov_b32 v19, 0")
    A("s_mul_i32 s34, s10, %d" % UP)
    A("s_add_u32 s34, s34, %d" % UB)
    A("v_lshlrev_b32 v%d, 4, v%d" % (t1, vLane))
    A("v_add_u32 v%d, s34, v%d" % (t1, t1))
    A("s_cmp_lt_u32 s10, 4")
    A("s_cbranch_scc0 ssm_nz")
    A("s_mov_b32 exec_lo, 0x3fffffff")
    A("s_mov_b32 exec_hi, 0")
    A("ds_write_b128 v%d, v[16:19]" % t1)
    A("s_mov_b64 exec, -1")
    A.label("ssm_nz")
    A("s_lshl_b32 s34, s10, 9")
    A("s_add_u32 s34, s34, %d" % (UB + 480))
    A("v_lshlrev_b32 v%d, 1, v%d" % (t1, vLane))
    A("v_add_u32 v%d, s34, v%d" % (t1, t1))
    if V3:
        A("s_barrier")
        A("s_barrier")
    for e in range(4):
        A("s_waitcnt vmcnt(%d)" % (3 - e + NG))
        for cc in range(4):
            A("ds_write_b16%s v%d, v%d offset:%d" % ("_d16_hi" if cc & 1 else "", t1, 8 + 2 * e + (cc >> 1), cc * UP + e * 128))
    if AUX:
        for j in range(2):
            A("s_add_u32 s48, s39, %d" % (j * 1280 * 1280))
            A("buffer_load_dwordx4 %s, v24, s[%d:%d], s48 offen" % (v(GX + 6 * j, 4), SX, SX + 3))
            A("buffer_load_dword v%d, v24, s[%d:%d], s48 offen offset:16" % (GX + 6 * j + 4, SX, SX + 3))
        A("buffer_load_dwordx4 %s, v24, s[%d:%d], 0 offen" % (v(GW, 4), SGW, SGW + 3))
        A("buffer_load_dword v%d, v24, s[%d:%d], 0 offen offset:16" % (GW + 4, SGW, SGW + 3))
    A("s_waitcnt lgkmcnt(0)")
    stamp(A, timing, 1)
    if V3: A("s_barrier")
    if AUX:
        A("s_setprio 0")
        A("s_waitcnt vmcnt(0)")
        for q in range(5):
            A("v_lshlrev_b32 v%d, 16, v%d" % (WU + 2 * q, GW + q))
            A("v_and_b32 v%d, 0xffff0000, v%d" % (WU + 2 * q + 1, GW + q))
        A("s_lshl_b32 s48, s38, 2")
        gate_row(A, GX, XU, WU, SG, 25, 48)
        A("s_cmp_ge_u32 s38, 768")
        A("s_cbranch_scc1 ssm_ng")
        A("s_add_u32 s49, s48, %d" % (1280 * 4))
        gate_row(A, GX + 6, XU, WU, SG, 25, 49)
        A.label("ssm_ng")
    dump_stamps(A, timing, 2, end, 0)
    A("s_branch %s" % end)

    A.label("ssm_main")
    A("s_lshr_b32 s%d, s%d, 1" % (sCH, sW))
    A("s_and_b32 s%d, s%d, 1" % (sHF, sW))
    P = 8
    for i in range(6): A("v_mov_b32 v%d, 0" % (P + i))
    A("s_add_u32 s10, s%d, s%d" % (sD0, sCH))
    A("s_lshl_b32 s11, s10, 8")
    A("s_lshl_b32 s34, s%d, 7" % sHF)
    A("s_add_u32 s11, s11, s34")
    A("v_lshlrev_b32 v%d, 1, v%d" % (t0, vLane))
    A("v_add_u32 v%d, s11, v%d" % (t0, t0))
    A("s_lshl_b32 s11, s%d, 1" % sD0)
    A("s_waitcnt lgkmcnt(0)")
    for i in range(6):
        A("global_load_short_d16_hi v%d, v%d, s[%d:%d]" % (P + i, t0, 18 + 2 * i, 19 + 2 * i))
    A("s_load_dwordx2 s[34:35], s[30:31], s11")
    A("s_load_dwordx2 s[40:41], s[32:33], s11")
    if B0: A("s_barrier")
    srd(A, SAT, 4, WS_AT, NQ)
    vTab = 50
    A("s_mul_i32 s42, s%d, %d" % (sW, TAB))
    A("v_lshlrev_b32 v%d, 2, v%d" % (vTab, vLane))
    A("v_add_u32 v%d, s42, v%d" % (vTab, vTab))
    A("s_waitcnt lgkmcnt(0)")
    for (src, dst) in ((34, 43), (40, 44)):
        A("s_bitcmp1_b32 s%d, 1" % sCH)
        A("s_cselect_b32 s%d, s%d, s%d" % (dst, src + 1, src))
        A("s_lshl_b32 s45, s%d, 16" % dst)
        A("s_and_b32 s%d, s%d, 0xffff0000" % (dst, dst))
        A("s_bitcmp1_b32 s%d, 0" % sCH)
        A("s_cselect_b32 s%d, s%d, s45" % (dst, dst))
    sDskip = 44
    vDT = 6
    A("v_mov_b32 v%d, s43" % vDT)
    A("v_mul_f32 v%d, 0x%x, v%d" % (vDT, f32bits(LOG2E), vDT))
    A("v_exp_f32 v%d, v%d" % (vDT, vDT))
    A("s_nop 0")
    A("v_cvt_pk_bf16_f32 v%d, v%d, v%d" % (vDT, vDT, vDT))
    A("v_and_b32 v%d, 0xffff0000, v%d" % (vDT, vDT))
    Z, E1, E2, E4, W8, E256, E512, E1024, CB = 14, 16, 18, 20, 22, 24, 26, 28, 30
    GA, GB, FA, FB, T1, T2 = 32, 34, 38, 40, 42, 44
    PK = [46, 47, 48, 49]
    A("s_waitcnt vmcnt(0)")
    stamp(A, timing, 7)
    A("v_mul_f32 v%d, v%d, v%d" % (Z, vDT, P + 0))
    A("v_mul_f32 v%d, v%d, v%d" % (Z + 1, vDT, P + 1))
    A("v_mul_f32 v%d, v%d, v%d" % (P + 2, vDT, P + 2))
    A("v_mul_f32 v%d, v%d, v%d" % (P + 3, vDT, P + 3))
    A("v_mul_f32 v%d, 0x%x, v%d" % (Z, f32bits(LOG2E), Z))
    A("v_mul_f32 v%d, 0x%x, v%d" % (Z + 1, f32bits(1.0 / (2 * math.pi)), Z + 1))
    def cmul(d, a, b, t, conj=False):
        A("v_pk_mul_f32 %s, %s, %s op_sel_hi:[0,1]" % (v(t, 2), v(b, 2), v(a, 2)))
        A("v_pk_fma_f32 %s, %s, %s, %s op_sel:[1,1,0] op_sel_hi:[1,0,1] %s:[1,0,0]" % (v(d, 2), v(b, 2), v(a, 2), v(t, 2), "neg_hi" if conj else "neg_lo"))
    def anchor(d, m):
        if m == 1:
            A("v_exp_f32 v%d, v%d" % (t0, Z))
            A("v_fract_f32 v%d, v%d" % (t1, Z + 1))
        else:
            A("v_mul_f32 v%d, %s, v%d" % (t0, "%d.0" % m if m in (2, 4) else "0x%x" % f32bits(float(m)), Z))
            A("v_mul_f32 v%d, %s, v%d" % (t1, "%d.0" % m if m in (2, 4) else "0x%x" % f32bits(float(m)), Z + 1))
            A("v_exp_f32 v%d, v%d" % (t0, t0))
            A("v_fract_f32 v%d, v%d" % (t1, t1))
        A("v_cos_f32 v%d, v%d" % (d, t1))
        A("v_sin_f32 v%d, v%d" % (d + 1, t1))
        A("s_nop 0")
        A("v_mul_f32 v%d, v%d, v%d" % (d, d, t0))
        A("v_mul_f32 v%d, v%d, v%d" % (d + 1, d + 1, t0))
    anchor(W8, 8)
    anchor(E1, 1)
    cmul(CB, P + 4, P + 2, T1)
    A("v_xor_b32 v%d, 0x80000000, v%d" % (CB + 1, CB + 1))
    anchor(E256, 256)
    anchor(E512, 512)
    anchor(E1024, 1024)
    cmul(E2, E1, E1, T1)
    cmul(E4, E2, E2, T2)
    pki = [0]
    def put(src, rows):
        pk = PK[pki[0] & 3]; pki[0] += 1
        A("v_cvt_pk_bf16_f32 v%d, v%d, v%d" % (pk, src, src + 1))
        for r in rows:
            A("ds_write_b32 v%d, v%d offset:%d" % (vTab, pk, r * 272))
    fops = []
    fops.append(lambda: (A("v_mov_b32 v%d, 0x3f80" % PK[3]), A("ds_write_b32 v%d, v%d offset:%d" % (vTab, PK[3], 32 * 272))))
    fops.append(lambda: put(W8, [33]))
    cur = W8
    fr = [FA, FB]
    for j in range(2, 32):
        d = fr[j & 1]
        fops.append((lambda d=d, cur=cur, j=j: (cmul(d, cur, W8, T1), put(d, [32 + j]))))
        cur = d
    gops = []
    def gstep(d, a, b, base):
        gops.append(lambda: (cmul(d, a, b, T2, conj=True), put(d, GROWS[base])))
    gops.append(lambda: put(CB, GROWS[0]))
    g = [GA, GB]
    prev = CB
    for k in range(1, 8):
        gstep(g[k & 1], prev, E1, k); prev = g[k & 1]
    G256, G512, G1024, G1536 = 36, 52, 54, 56
    gstep(G256, CB, E256, 256)
    prev = G256
    for k, base in enumerate((258, 260, 262, 264)):
        gstep(g[k & 1], prev, E2, base); prev = g[k & 1]
    gstep(G512, CB, E512, 512)
    gstep(GA, G512, E4, 516); gstep(GB, GA, E4, 520)
    gstep(G256, G512, E256, 768)
    gstep(GA, G256, E4, 772); gstep(GB, GA, E4, 776)
    gstep(G1024, CB, E1024, 1024)
    gstep(GA, G1024, W8, 1032)
    gstep(GB, G1024, E256, 1280); gstep(GA, GB, W8, 1288)
    gstep(G1536, G1024, E512, 1536); gstep(GA, G1536, W8, 1544)
    gstep(GB, G1536, E256, 1792); gstep(GA, GB, W8, 1800)
    n = max(len(fops), len(gops))
    for i in range(n):
        if i < len(fops): fops[i]()
        if i < len(gops): gops[i]()
    stamp(A, timing, 1)
    AF, BF, DK = 64, 96, 16
    A("v_and_b32 v%d, 31, v%d" % (t0, vLane))
    A("v_mul_u32_u24 v%d, 272, v%d" % (t0, t0))
    A("v_lshrrev_b32 v%d, 5, v%d" % (t1, vLane))
    A("v_lshl_add_u32 v%d, v%d, 4, v%d" % (t0, t1, t0))
    A("v_add_u32 v%d, s42, v%d" % (t0, t0))
    for t in range(8):
        A("ds_read_b128 %s, v%d offset:%d" % (v(AF + 4 * t, 4), t0, 32 * t))
        A("ds_read_b128 %s, v%d offset:%d" % (v(BF + 4 * t, 4), t0, 32 * 272 + 32 * t))
    for t in range(8):
        A("s_waitcnt lgkmcnt(%d)" % (14 - 2 * t))
        A("v_mfma_f32_32x32x16_bf16 %s, %s, %s, %s" % (v(DK, 16), v(AF + 4 * t, 4), v(BF + 4 * t, 4), "0" if t == 0 else v(DK, 16)))
    vL16 = 7
    A("v_lshlrev_b32 v%d, 4, v%d" % (vL16, vLane))
    A("v_add_u32 v%d, s42, v%d" % (t0, vL16))
    A("s_xor_b32 s45, s%d, 1" % sW)
    A("s_mul_i32 s45, s45, %d" % TAB)
    A("v_add_u32 v%d, s45, v%d" % (t1, vL16))
    A("s_mul_i32 s46, s%d, %d" % (sCH, CH))
    A("s_nop 7")
    A("s_nop 1")
    A("s_cmp_eq_u32 s%d, 0" % sHF)
    A("s_cbranch_scc0 ssm_x1")
    A("ds_write_b128 v%d, %s" % (t0, v(DK + 8, 4)))
    A("ds_write_b128 v%d, %s offset:1024" % (t0, v(DK + 12, 4)))
    A("s_branch ssm_x2")
    A.label("ssm_x1")
    A("ds_write_b128 v%d, %s" % (t0, v(DK, 4)))
    A("ds_write_b128 v%d, %s offset:1024" % (t0, v(DK + 4, 4)))
    A.label("ssm_x2")
    A("s_waitcnt lgkmcnt(0)")
    A("s_barrier")
    stamp(A, timing, 2)
    R = 32
    A("ds_read_b128 %s, v%d" % (v(R, 4), t1))
    A("ds_read_b128 %s, v%d offset:1024" % (v(R + 4, 4), t1))
    A("v_and_b32 v%d, 31, v%d" % (t2, vLane))
    A("v_lshrrev_b32 v%d, 5, v%d" % (t3, vLane))
    A("v_lshlrev_b32 v%d, 4, v%d" % (t2, t2))
    A("s_add_u32 s47, s46, %d" % (CP0 + 4080))
    A("v_sub_u32 v%d, s47, v%d" % (t2, t2))
    A("s_waitcnt lgkmcnt(0)")
    A("s_cmp_eq_u32 s%d, 0" % sHF)
    A("s_cbranch_scc0 ssm_y1")
    for r in range(8): A("v_add_f32 v%d, v%d, v%d" % (DK + r, DK + r, R + r))
    A("v_lshlrev_b32 v%d, 9, v%d" % (t3, t3))
    A("v_sub_u32 v%d, v%d, v%d" % (t2, t2, t3))
    for j in range(4): A("v_cvt_pk_bf16_f32 v%d, v%d, v%d" % (R + j, DK + 2 * j, DK + 2 * j + 1))
    A("ds_write_b128 v%d, %s" % (t2, v(R, 4)))
    A("v_mov_b32 v%d, 0" % (R + 4)); A("v_mov_b32 v%d, 0" % (R + 5)); A("v_mov_b32 v%d, 0" % (R + 6)); A("v_mov_b32 v%d, 0" % (R + 7))
    A("s_add_u32 s47, s46, %d" % (CP0 + 4096))
    A("v_add_u32 v%d, s47, v%d" % (t3, vL16))
    A("s_mov_b64 exec, 0xf")
    A("ds_write_b128 v%d, %s" % (t3, v(R + 4, 4)))
    A("s_mov_b64 exec, -1")
    A("s_branch ssm_y2")
    A.label("ssm_y1")
    for r in range(8): A("v_add_f32 v%d, v%d, v%d" % (DK + r, DK + 8 + r, R + r))
    A("v_lshlrev_b32 v%d, 9, v%d" % (R + 12, t3))
    A("v_sub_u32 v%d, v%d, v%d" % (R + 12, t2, R + 12))
    A("v_subrev_u32 v%d, 1024, v%d" % (R + 12, R + 12))
    A("v_cvt_pk_bf16_f32 v%d, v%d, v%d" % (R + 0, DK + 0, DK + 0))
    A("v_cvt_pk_bf16_f32 v%d, v%d, v%d" % (R + 1, DK + 1, DK + 1))
    A("v_cvt_pk_bf16_f32 v%d, v%d, v%d" % (R + 2, DK + 1, DK + 2))
    A("v_cvt_pk_bf16_f32 v%d, v%d, v%d" % (R + 3, DK + 2, DK + 2))
    A("ds_write_b128 v%d, %s" % (R + 12, v(R, 4)))
    A("v_lshlrev_b32 v%d, 10, v%d" % (R + 13, t3))
    A("v_sub_u32 v%d, v%d, v%d" % (R + 13, t2, R + 13))
    A("v_subrev_u32 v%d, 2560, v%d" % (R + 13, R + 13))
    A("v_and_b32 v%d, 1, v%d" % (R + 14, vLane))
    A("v_cmp_eq_u32 vcc, 1, v%d" % (R + 14))
    A("s_nop 1")
    for k in range(2):
        K8, K0 = DK + 4 + 2 * k, DK + 5 + 2 * k
        o = R + 4 + 4 * k
        A("v_cndmask_b32 v%d, v%d, v%d, vcc" % (R + 15, K0, K8))
        A("v_cvt_pk_bf16_f32 v%d, v%d, v%d" % (o + 0, K8, K8))
        A("v_cvt_pk_bf16_f32 v%d, v%d, v%d" % (o + 1, K8, R + 15))
        A("v_cvt_pk_bf16_f32 v%d, v%d, v%d" % (o + 2, K0, K0))
        A("v_mov_b32 v%d, v%d" % (o + 3, o + 2))
    A("ds_write_b128 v%d, %s offset:512" % (R + 13, v(R + 4, 4)))
    A("ds_write_b128 v%d, %s" % (R + 13, v(R + 8, 4)))
    A.label("ssm_y2")
    A("s_waitcnt lgkmcnt(0)")
    A("s_barrier")
    stamp(A, timing, 3)
    A("s_lshl_b32 s47, s%d, 11" % sHF)
    A("s_add_u32 s47, s47, s46")
    A("s_add_u32 s47, s47, %d" % CP0)
    A("v_add_u32 v%d, s47, v%d" % (t0, vL16))
    for it in range(2):
        d = 32 + 8 * it
        A("ds_read_b128 %s, v%d offset:%d" % (v(d, 4), t0, it * 1024))
        A("ds_read_b64 %s, v%d offset:%d" % (v(d + 4, 2), t0, it * 1024 + 16))
    A("v_lshrrev_b32 v%d, 2, v%d" % (t1, vLane))
    A("v_mul_u32_u24 v%d, %d, v%d" % (t1, CPS, t1))
    A("v_and_b32 v%d, 3, v%d" % (t2, vLane))
    A("v_lshl_add_u32 v%d, v%d, 4, v%d" % (t1, t2, t1))
    A("s_add_u32 s47, s46, %d" % (CP0 + CPS + 4096))
    A("v_add_u32 v%d, s47, v%d" % (t1, t1))
    for r in range(4): A("v_mov_b32 v%d, 0" % (60 + r))
    A("s_cmp_eq_u32 s%d, 0" % sHF)
    A("s_cbranch_scc0 ssm_z1")
    A("s_mov_b64 exec, 0xfff")
    A("ds_write_b128 v%d, v[60:63]" % t1)
    A("s_mov_b64 exec, -1")
    A.label("ssm_z1")
    A("v_add_u32 v64, %d, v%d" % (2 * CPS, t0))
    A("v_add_u32 v65, %d, v%d" % (2 * CPS + 1024, t0))
    A("s_waitcnt lgkmcnt(0)")
    for it in range(2):
        d = 32 + 8 * it; e = 48 + 8 * it
        for i in range(4): A("v_alignbit_b32 v%d, v%d, v%d, 16" % (e + i, d + i + 1, d + i))
        for i in range(4): A("v_alignbit_b32 v%d, v%d, v%d, 16" % (e + 4 + i, d + i + 2, d + i + 1))
        A("ds_write_b128 v%d, %s offset:%d" % (t0, v(e, 4), it * 1024 + CPS))
        A("ds_write2_b32 v%d, v%d, v%d offset0:0 offset1:1" % (64 + it, d + 1, d + 2))
        A("ds_write2_b32 v%d, v%d, v%d offset0:2 offset1:3" % (64 + it, d + 3, d + 4))
        A("ds_write_b128 v%d, %s offset:%d" % (t0, v(e + 4, 4), it * 1024 + 3 * CPS))
    AF, BF, DC = 32, 64, 96
    vAlo, vAhi, vB = 8, 9, 10
    A("v_and_b32 v%d, 3, v%d" % (t1, vLane))
    A("v_sub_u32 v%d, 3, v%d" % (t1, t1))
    A("v_mul_u32_u24 v%d, %d, v%d" % (vAlo, CPS, t1))
    A("v_bfe_u32 v%d, v%d, 2, 2" % (t1, vLane))
    A("v_lshrrev_b32 v%d, 4, v%d" % (t2, vLane))
    A("v_lshlrev_b32 v%d, 1, v%d" % (t3, t2))
    A("v_sub_u32 v%d, v%d, v%d" % (t3, t3, t1))
    A("v_lshl_add_u32 v%d, v%d, 3, v%d" % (vAlo, t3, vAlo))
    A("s_lshl_b32 s47, s%d, 8" % sHF)
    A("s_sub_u32 s48, s46, s47")
    A("s_add_u32 s48, s48, %d" % (CP0 + 8 * 507 - 3584))
    A("v_add_u32 v%d, s48, v%d" % (vAlo, vAlo))
    A("v_add_u32 v%d, 2048, v%d" % (vAhi, vAlo))
    A("v_and_b32 v%d, 15, v%d" % (t1, vLane))
    A("v_lshlrev_b32 v%d, 5, v%d" % (vB, t1))
    A("v_lshl_add_u32 v%d, v%d, 4, v%d" % (vB, t2, vB))
    A("s_mul_i32 s48, s%d, %d" % (sCH, UP))
    A("s_add_u32 s48, s48, %d" % (UB + 448))
    A("s_sub_u32 s49, s48, s47")
    A("v_add_u32 v%d, s49, v%d" % (vB, vB))
    vU, vO = 11, 12
    A("v_lshlrev_b32 v%d, 5, v%d" % (vO, t1))
    A("v_lshl_add_u32 v%d, v%d, 3, v%d" % (vO, t2, vO))
    A("s_lshl_b32 s47, s%d, 11" % sHF)
    A("s_add_u32 s49, s48, s47")
    A("s_add_u32 s49, s49, 32")
    A("v_add_u32 v%d, s49, v%d" % (vU, vO))
    A("s_add_u32 s10, s%d, s%d" % (sD0, sCH))
    A("s_lshl_b32 s10, s10, 12")
    A("s_add_u32 s10, s10, s47")
    A("s_add_u32 s47, s46, %d" % EX2)
    A("s_lshl_b32 s48, s%d, 12" % sHF)
    A("s_add_u32 s49, s47, s48")
    A("v_add_u32 v%d, s49, v%d" % (13, vL16))
    A("s_xor_b32 s48, s48, 4096")
    A("s_add_u32 s49, s47, s48")
    A("v_add_u32 v%d, s49, v%d" % (14, vL16))
    A("s_waitcnt lgkmcnt(0)")
    stamp(A, timing, 8)
    A("s_barrier")
    stamp(A, timing, 4)
    for cl in range(4):
        if cl:
            A("v_subrev_u32 v%d, 64, v%d" % (vAlo, vAlo))
            A("v_subrev_u32 v%d, 64, v%d" % (vB, vB))
        seq = [("B", 0)]
        for a in range(8): seq += [("A", a, 0), ("A", a, 1)]
        seq += [("B", b) for b in range(1, 8)]
        for x in seq:
            if x[0] == "A":
                i, h = x[1], x[2]
                A("ds_read_b64 %s, v%d offset:%d" % (v(AF + 4 * i + 2 * h, 2), vAlo, 512 * (7 - i) + 8 * h))
            else:
                A("ds_read_b128 %s, v%d offset:%d" % (v(BF + 4 * x[1], 4), vB, 512 * x[1]))
        pos = {x: n for n, x in enumerate(seq)}
        waited = -1
        for b in range(8):
            for a in range(8 - b):
                need = max(pos[("A", a, 1)], pos[("B", b)])
                if need > waited:
                    cnt = len(seq) - 1 - need
                    if cnt <= 15:
                        A("s_waitcnt lgkmcnt(%d)" % cnt)
                        waited = need
                    elif len(seq) - 1 - 15 > waited:
                        A("s_waitcnt lgkmcnt(15)")
                        waited = len(seq) - 1 - 15
                c = a + b
                first = (cl == 0 and b == 0)
                A("v_mfma_f32_16x16x32_bf16 %s, %s, %s, %s" % (v(DC + 4 * c, 4), v(AF + 4 * a, 4), v(BF + 4 * b, 4), "0" if first else v(DC + 4 * c, 4)))
    stamp(A, timing, 5)
    A("s_nop 7")
    A("s_cmp_eq_u32 s%d, 0" % sHF)
    A("s_cbranch_scc0 ssm_w1")
    for k in range(4): A("ds_write_b128 v13, %s offset:%d" % (v(DC + 16 + 4 * k, 4), 1024 * k))
    A("s_branch ssm_w2")
    A.label("ssm_w1")
    for k in range(4): A("ds_write_b128 v13, %s offset:%d" % (v(DC + 4 * k, 4), 1024 * k))
    A.label("ssm_w2")
    U = 32
    for k in range(4): A("ds_read_b64 %s, v%d offset:%d" % (v(U + 2 * k, 2), vU, 512 * k))
    A("s_waitcnt lgkmcnt(0)")
    A("s_barrier")
    R = 64
    for k in range(4): A("ds_read_b128 %s, v14 offset:%d" % (v(R + 4 * k, 4), 1024 * k))
    UF = 40
    for k in range(8):
        A("v_lshlrev_b32 v%d, 16, v%d" % (UF + 2 * k, U + k))
        A("v_and_b32 v%d, 0xffff0000, v%d" % (UF + 2 * k + 1, U + k))
    for r in range(16): A("v_mul_f32 v%d, s%d, v%d" % (UF + r, sDskip, UF + r))
    for k in range(8): A("v_cvt_pk_bf16_f32 v%d, v%d, v%d" % (U + k, UF + 2 * k, UF + 2 * k + 1))
    for k in range(8):
        A("v_lshlrev_b32 v%d, 16, v%d" % (UF + 2 * k, U + k))
        A("v_and_b32 v%d, 0xffff0000, v%d" % (UF + 2 * k + 1, U + k))
    A("s_waitcnt lgkmcnt(0)")
    A("s_cmp_eq_u32 s%d, 0" % sHF)
    A("s_cbranch_scc0 ssm_v1")
    for r in range(16): A("v_add_f32 v%d, v%d, v%d" % (DC + r, DC + r, R + r))
    A("s_branch ssm_v2")
    A.label("ssm_v1")
    for r in range(16): A("v_add_f32 v%d, v%d, v%d" % (DC + r, DC + 16 + r, R + r))
    A.label("ssm_v2")
    for k in range(8): A("v_cvt_pk_bf16_f32 v%d, v%d, v%d" % (U + k, DC + 2 * k, DC + 2 * k + 1))
    for k in range(8):
        A("v_lshlrev_b32 v%d, 16, v%d" % (DC + 2 * k, U + k))
        A("v_and_b32 v%d, 0xffff0000, v%d" % (DC + 2 * k + 1, U + k))
    for r in range(16): A("v_add_f32 v%d, v%d, v%d" % (DC + r, DC + r, UF + r))
    for k in range(8): A("v_cvt_pk_bf16_f32 v%d, v%d, v%d" % (U + k, DC + 2 * k, DC + 2 * k + 1))
    for k in range(4):
        A("buffer_store_dwordx2 %s, v%d, s[%d:%d], s10 offen offset:%d" % (v(U + 2 * k, 2), vO, SAT, SAT + 3, 512 * k))
    stamp(A, timing, 6)
    dump_stamps(A, timing, 9, end, 0)
    A("s_branch %s" % end)


FL = 157696
LPRIO2 = 2
GXCD = True
WOSSM = True
OPERM = False
WOWAVE = 8
SPIN = 100000
UROT = True
UROTM = 5
UEARLY = False
PHASES = [[0, 1, 2, 3], [4, 5, 6, 7]]

def flag_set(A, vaddr, vval, off):
    A("s_mov_b64 exec, 1")
    A("ds_write_b32 v%d, v%d offset:%d" % (vaddr, vval, off))
    A("s_mov_b64 exec, -1")

def flag_wait(A, vaddr, off, label, vt=2):
    A("s_mov_b32 s59, 0")
    A.label(label)
    A("ds_read_b32 v%d, v%d offset:%d" % (vt, vaddr, off))
    A("s_waitcnt lgkmcnt(0)")
    A("v_cmp_le_u32 vcc, 4, v%d" % vt)
    A("s_nop 3")
    A("s_cmp_eq_u64 vcc, -1")
    A("s_cbranch_scc1 %s_d" % label)
    A("s_add_u32 s59, s59, 1")
    A("s_cmp_lt_u32 s59, %d" % SPIN)
    A("s_cbranch_scc0 %s_d" % label)
    A("s_sleep 1")
    A("s_branch %s" % label)
    A.label(label + "_d")

def conv_phases(A, timing, vA, vB, AF, BF, DC, vFc, vFu):
    mf = []
    for p, bl in enumerate(PHASES):
        amax = 7 - bl[0]
        for cl in range(4):
            for a in range(amax, -1, -1):
                for b in bl:
                    if a + b <= 7: mf.append((p, cl, a, b))
    def aslot(p, cl, a):
        na = 8 - PHASES[p][0]
        return (a + na * (cl % (8 // na))) % 8
    def bslot(p, cl, b):
        nb = len(PHASES[p])
        return (b - PHASES[p][0] + nb * (cl % (8 // nb))) % 8
    reads = {}
    for n, (p, cl, a, b) in enumerate(mf):
        ta, tb = ("A", p, cl, a), ("B", p, cl, b)
        if ta not in reads:
            r = AF + 4 * aslot(p, cl, a)
            reads[ta] = dict(kind="A", slot=aslot(p, cl, a), first=n, last=n, p=p,
                             txt=["ds_read_b64 %s, v%d offset:%d" % (v(r + 2 * h, 2), vA, 512 * (7 - a) + 8 * h + 64 * (3 - cl)) for h in range(2)])
        if tb not in reads:
            r = BF + 4 * bslot(p, cl, b)
            reads[tb] = dict(kind="B", slot=bslot(p, cl, b), first=n, last=n, p=p,
                             txt=["ds_read_b128 %s, v%d offset:%d" % (v(r, 4), vB, 512 * b + 64 * (3 - cl))])
        reads[ta]["last"] = n; reads[tb]["last"] = n
    pstart = {}
    for n, m in enumerate(mf): pstart.setdefault(m[0], n)
    for t, r in reads.items():
        prev = [q["last"] for q in reads.values() if q["kind"] == r["kind"] and q["slot"] == r["slot"] and q["last"] < r["first"]]
        e = max(prev) + 1 if prev else 0
        if r["kind"] == "B": e = max(e, pstart[r["p"]])
        r["e"] = e
        for q in reads.values():
            if q is not r and q["kind"] == r["kind"] and q["slot"] == r["slot"]:
                assert q["last"] < r["first"] or q["first"] > r["last"]
    order = []; state = {"done": 0}
    issued = set()
    def issue_ready(n, only=None):
        rd = sorted([t for t, r in reads.items() if t not in issued and r["e"] <= n and (only is None or r["kind"] == only)], key=lambda t: reads[t]["first"])
        for t in rd:
            for x in reads[t]["txt"]:
                A(x); order.append(t)
            issued.add(t)
    def need(tag):
        idx = max(i for i, x in enumerate(order) if x == tag)
        if idx < state["done"]: return
        cnt = min(len(order) - 1 - idx, 15)
        A("s_waitcnt lgkmcnt(%d)" % cnt)
        state["done"] = len(order) - cnt
        assert state["done"] > idx
    first = set()
    for n, (p, cl, a, b) in enumerate(mf):
        if n == pstart[p]:
            if p == 0: flag_wait(A, vFc, 0, "ssm_fp0")
            else:
                issue_ready(n, only="A")
                flag_wait(A, vFu, 4 if UROT else 4 * (PHASES[p][-1] >> 1), "ssm_fp%d" % p)
            state["done"] = len(order)
            stamp(A, timing, 4 if p == 0 else (9 if p == 1 else 10))
        issue_ready(n)
        need(("B", p, cl, b)); need(("A", p, cl, a))
        c = a + b
        A("v_mfma_f32_16x16x32_bf16 %s, %s, %s, %s" % (v(DC + 4 * c, 4), v(AF + 4 * aslot(p, cl, a), 4), v(BF + 4 * bslot(p, cl, b), 4), v(DC + 4 * c, 4) if c in first else "0"))
        first.add(c)

def role_ssm3(A, end, timing):
    t0, t1, t2, t3 = 2, 3, 4, 5
    sD0, sCH, sHF = 7, 8, 9
    SX, SAT = 12, 36
    A("s_load_dwordx16 s[16:31], s[0:1], 0")
    A("s_load_dwordx2 s[32:33], s[0:1], 64")
    A("s_load_dwordx2 s[4:5], s[0:1], 136")
    A("s_and_b32 s10, s2, 7")
    A("s_mul_i32 s10, s10, 20")
    A("s_lshr_b32 s11, s2, 3")
    A("s_add_u32 s10, s10, s11")
    A("s_lshl_b32 s%d, s10, 2" % sD0)
    A("s_cmp_lt_u32 s%d, 8" % sW)
    A("s_cbranch_scc1 ssm_main")
    A("s_cmp_lt_u32 s%d, 12" % sW)
    A("s_cbranch_scc0 ssm_lp2")
    A("s_setprio %d" % LPRIO)
    A("s_branch ssm_lp3")
    A.label("ssm_lp2")
    A("s_setprio %d" % LPRIO2)
    A.label("ssm_lp3")
    A("s_load_dwordx2 s[36:37], s[0:1], 112")
    if WOSSM: A("s_load_dwordx2 s[82:83], s[0:1], 104")
    A("s_sub_u32 s10, s%d, 8" % sW)
    A("s_lshr_b32 s50, s10, 2")
    A("s_and_b32 s51, s10, 3")
    if UROT:
        A("s_lshr_b32 s53, s2, 3")
        A("s_mul_i32 s53, s53, %d" % UROTM)
        A("s_add_u32 s53, s53, s51")
        for e in range(4):
            A("s_add_u32 s52, s53, %d" % (4 * e))
            A("s_and_b32 s52, s52, 15")
            A("s_lshl_b32 s52, s52, 6")
            A("s_lshl_b32 s54, s50, 10")
            A("s_add_u32 s%d, s52, s54" % (84 + e))
    else:
        A("s_lshl_b32 s52, s50, 10")
        A("s_lshl_b32 s53, s51, 7")
        A("s_add_u32 s52, s52, s53")
        for e, eo in enumerate([0, 64, 512, 576]):
            A("s_add_u32 s%d, s52, %d" % (84 + e, eo))
    A("v_mul_u32_u24 v%d, 1280, v%d" % (t0, vLane))
    A("s_lshl_b32 s11, s%d, 1" % sD0)
    A("v_mov_b32 v16, 0"); A("v_mov_b32 v17, 0"); A("v_mov_b32 v18, 0"); A("v_mov_b32 v19, 0")
    A("s_mul_i32 s34, s10, %d" % UP)
    A("s_add_u32 s34, s34, %d" % UB)
    A("v_lshlrev_b32 v%d, 4, v%d" % (t1, vLane))
    A("v_add_u32 v%d, s34, v%d" % (t1, t1))
    A("s_cmp_lt_u32 s10, 4")
    A("s_cbranch_scc0 ssm_nz")
    A("s_mov_b32 exec_lo, 0x3fffffff")
    A("s_mov_b32 exec_hi, 0")
    A("ds_write_b128 v%d, v[16:19]" % t1)
    A("s_mov_b64 exec, -1")
    A.label("ssm_nz")
    A("s_cmp_eq_u32 s10, 4")
    A("s_cbranch_scc0 ssm_nf")
    A("v_lshlrev_b32 v%d, 2, v%d" % (t1, vLane))
    A("v_add_u32 v%d, %d, v%d" % (t1, FL, t1))
    A("ds_write_b32 v%d, v16" % t1)
    A.label("ssm_nf")
    A("v_lshlrev_b32 v%d, 1, v%d" % (t1, vLane))
    A("v_add_u32 v%d, %d, v%d" % (t1, UB + 480, t1))
    for e in range(4):
        A("s_lshl_b32 s34, s%d, 1" % (84 + e))
        A("v_add_u32 v%d, s34, v%d" % (4 + e, t1))
    A("s_lshl_b32 s34, s50, %d" % (2 if UROT else 3))
    A("s_add_u32 s34, s34, %d" % (FL + 128))
    A("v_mov_b32 v20, s34")
    A("v_mov_b32 v21, 1")
    A("s_waitcnt lgkmcnt(0)")
    srd(A, SX, 16, 0, NQ)
    if not UEARLY: A("s_barrier")
    for e in range(4):
        A("s_mul_i32 s34, s%d, 1280" % (84 + e))
        A("s_add_u32 s34, s34, s11")
        A("buffer_load_dwordx2 %s, v%d, s[%d:%d], s34 offen %s" % (v(8 + 2 * e, 2), t0, SX, SX + 3, GMOD))
    if UEARLY: A("s_barrier")
    stamp(A, timing, 2)
    GX, GW, XU, WU, SGW, SG = 32, 44, 52, 64, 40, 44
    if GXCD:
        A("s_lshr_b32 s38, s2, 3")
        A("s_lshl_b32 s38, s38, 3")
        A("s_add_u32 s38, s38, s10")
        A("s_and_b32 s54, s2, 7")
        A("s_lshl_b32 s54, s54, 7")
        for (dst, add) in ((55, 0), (56, 160)):
            A("s_add_u32 s57, s38, %d" % add)
            A("s_lshr_b32 s58, s57, 7")
            A("s_lshl_b32 s58, s58, 10")
            A("s_and_b32 s57, s57, 127")
            A("s_add_u32 s57, s57, s58")
            A("s_add_u32 s%d, s57, s54" % dst)
        A("s_cmp_ge_u32 s38, 96")
        A("s_cselect_b32 s56, 0x100000, s56")
    else:
        A("s_lshl_b32 s38, s2, 3")
        A("s_add_u32 s55, s38, s10")
        A("s_add_u32 s56, s55, 1280")
    A("v_mul_u32_u24 v24, 20, v%d" % vLane)
    A("v_mov_b32 v25, 0")
    srd(A, SGW, 36, 0, 1280)
    srd(A, SG, 4, WS_G, 8192)
    for e in range(4):
        A("s_waitcnt vmcnt(%d)" % (3 - e))
        for cc in range(4):
            A("ds_write_b16%s v%d, v%d offset:%d" % ("_d16_hi" if cc & 1 else "", 4 + e, 8 + 2 * e + (cc >> 1), cc * UP))
        if (e == 3) if UROT else (e & 1):
            A("s_waitcnt lgkmcnt(0)")
            A("s_mov_b64 exec, 1")
            A("ds_add_u32 v20, v21 offset:%d" % (0 if UROT else 4 * (e >> 1)))
            A("s_mov_b64 exec, -1")
            stamp(A, timing, 1 if e == 1 else 3)
    for j in range(2):
        A("s_min_u32 s48, s%d, 2048" % (55 + j))
        A("s_mul_i32 s48, s48, 1280")
        A("buffer_load_dwordx4 %s, v24, s[%d:%d], s48 offen" % (v(GX + 6 * j, 4), SX, SX + 3))
        A("buffer_load_dword v%d, v24, s[%d:%d], s48 offen offset:16" % (GX + 6 * j + 4, SX, SX + 3))
    A("buffer_load_dwordx4 %s, v24, s[%d:%d], 0 offen" % (v(GW, 4), SGW, SGW + 3))
    A("buffer_load_dword v%d, v24, s[%d:%d], 0 offen offset:16" % (GW + 4, SGW, SGW + 3))
    A("s_setprio 0")
    def gates():
        for q in range(5):
            A("v_lshlrev_b32 v%d, 16, v%d" % (WU + 2 * q, GW + q))
            A("v_and_b32 v%d, 0xffff0000, v%d" % (WU + 2 * q + 1, GW + q))
        A("s_lshl_b32 s48, s55, 2")
        gate_row(A, GX, XU, WU, SG, 25, 48)
        lb = A.newlabel("ssm_ng")
        A("s_cmp_ge_u32 s56, 2048")
        A("s_cbranch_scc1 %s" % lb)
        A("s_lshl_b32 s49, s56, 2")
        gate_row(A, GX + 6, XU, WU, SG, 25, 49)
        A.label(lb)
    if WOSSM:
        SWO, SWF, SC = 84, 88, 92
        A("s_cmp_eq_u32 s%d, %d" % (sW, WOWAVE))
        A("s_cbranch_scc0 ssm_nwo")
        A("s_cmp_lt_u32 s2, 100")
        A("s_cbranch_scc0 ssm_nwo")
        A("v_lshrrev_b32 v28, 4, v%d" % vLane)
        A("v_and_b32 v29, 15, v%d" % vLane)
        if not OPERM:
            A("v_mul_u32_u24 v26, %d, v28" % (8 * 1280))
            A("v_lshl_add_u32 v26, v29, 4, v26")
        A("v_lshrrev_b32 v27, 1, v29")
        A("v_mul_u32_u24 v27, 20480, v27")
        A("v_lshl_add_u32 v27, v28, 8, v27")
        A("v_and_b32 v28, 1, v29")
        A("v_lshl_add_u32 v27, v28, 7, v27")
        A("v_lshlrev_b32 v28, 7, v%d" % vLane)
        A("s_mov_b32 s50, 0x05040100")
        A("s_mov_b32 s51, 0x07060302")
        A("s_mul_i32 s52, s2, 205")
        A("s_lshr_b32 s52, s52, 10")
        A("s_mul_i32 s53, s52, 5")
        A("s_sub_u32 s53, s2, s53")
        if OPERM:
            tab = [0, 8, 4, 12, 20, 28, 24, 32, 16, 36]
            tc = sum(t << (6 * i) for i, t in enumerate(tab))
            A("s_mov_b32 s90, 0x%x" % (tc & 0xffffffff))
            A("s_mov_b32 s91, 0x%x" % (tc >> 32))
            A("s_lshl_b32 s54, s52, 5")
            A("v_lshrrev_b32 v30, 4, v%d" % vLane)
            A("v_lshlrev_b32 v30, 3, v30")
            A("v_add_u32 v30, s54, v30")
            for (dst, add) in ((26, 0), (22, 4)):
                A("v_add_u32 v31, %d, v30" % add)
                A("v_mul_u32_u24 v23, 1639, v31")
                A("v_lshrrev_b32 v23, 16, v23")
                A("v_mul_u32_u24 v%d, 40, v23" % dst)
                A("v_sub_u32 v31, v31, v%d" % dst)
                A("v_lshrrev_b32 v31, 2, v31")
                A("v_mul_u32_u24 v31, 6, v31")
                A("v_lshrrev_b64 v[16:17], v31, s[90:91]")
                A("v_and_b32 v23, 63, v16")
                A("v_add_u32 v%d, v%d, v23" % (dst, dst))
                A("v_mul_u32_u24 v%d, 1280, v%d" % (dst, dst))
                A("v_lshl_add_u32 v%d, v29, 4, v%d" % (dst, dst))
            A("s_lshl_b32 s96, s53, 8")
        else:
            A("s_mul_i32 s54, s52, %d" % (32 * 1280))
            A("s_lshl_b32 s57, s53, 8")
            A("s_add_u32 s96, s54, s57")
            A("s_add_u32 s97, s96, 5120")
        A("s_mul_i32 s54, s53, %d" % (8 * 20480))
        A("s_lshl_b32 s57, s52, 10")
        A("s_add_u32 s58, s54, s57")
        srd(A, SWO, 82, 0, 640 * 1280)
        srd(A, SWF, 4, WS_WF, NWF)
        srd(A, SC, 4, WS_CNT, 4096)
        LW = 80
        for e in range(8):
            if OPERM: A("buffer_load_dwordx4 %s, v%d, s[%d:%d], s96 offen offset:%d" % (v(LW + 4 * e, 4), 22 if e >> 2 else 26, SWO, SWO + 3, (e & 3) * 1280))
            else: A("buffer_load_dwordx4 %s, v26, s[%d:%d], s%d offen offset:%d" % (v(LW + 4 * e, 4), SWO, SWO + 3, 96 + (e >> 2), (e & 3) * 1280))
        A("s_cmp_eq_u32 s2, 0")
        A("s_cbranch_scc0 ssm_wnz")
        A("buffer_store_dword v25, v28, s[%d:%d], 0 offen" % (SC, SC + 3))
        A("s_waitcnt vmcnt(9)")
        A("s_branch ssm_wn2")
        A.label("ssm_wnz")
        A("s_waitcnt vmcnt(8)")
        A.label("ssm_wn2")
        gates()
        A("s_waitcnt vmcnt(0)")
        for cc in range(8):
            pk = 112 + 4 * (cc & 3)
            for m in range(4):
                A("v_perm_b32 v%d, v%d, v%d, s%d" % (pk + m, LW + 4 * (2 * m + 1) + (cc >> 1), LW + 4 * (2 * m) + (cc >> 1), 50 + (cc & 1)))
            A("buffer_store_dwordx4 %s, v27, s[%d:%d], s58 offen offset:%d%s" % (v(pk, 4), SWF, SWF + 3, cc * 16, SC1))
        A("s_branch ssm_ldone")
        A.label("ssm_nwo")
    A("s_waitcnt vmcnt(0)")
    gates()
    A.label("ssm_ldone")
    dump_stamps(A, timing, 4, end, 0)
    A("s_branch %s" % end)

    A.label("ssm_main")
    A("s_lshr_b32 s%d, s%d, 1" % (sCH, sW))
    A("s_and_b32 s%d, s%d, 1" % (sHF, sW))
    P = 8
    for i in range(6): A("v_mov_b32 v%d, 0" % (P + i))
    A("s_add_u32 s10, s%d, s%d" % (sD0, sCH))
    A("s_lshl_b32 s11, s10, 8")
    A("s_lshl_b32 s34, s%d, 7" % sHF)
    A("s_add_u32 s11, s11, s34")
    A("v_lshlrev_b32 v%d, 1, v%d" % (t0, vLane))
    A("v_add_u32 v%d, s11, v%d" % (t0, t0))
    A("s_lshl_b32 s11, s%d, 1" % sD0)
    A("s_waitcnt lgkmcnt(0)")
    for i in range(6):
        A("global_load_short_d16_hi v%d, v%d, s[%d:%d]" % (P + i, t0, 18 + 2 * i, 19 + 2 * i))
    A("s_load_dwordx2 s[34:35], s[30:31], s11")
    A("s_load_dwordx2 s[40:41], s[32:33], s11")
    if B0: A("s_barrier")
    srd(A, SAT, 4, WS_AT, NQ)
    vTab = 50
    A("s_mul_i32 s42, s%d, %d" % (sW, TAB))
    A("v_lshlrev_b32 v%d, 2, v%d" % (vTab, vLane))
    A("v_add_u32 v%d, s42, v%d" % (vTab, vTab))
    A("s_waitcnt lgkmcnt(0)")
    for (src, dst) in ((34, 43), (40, 44)):
        A("s_bitcmp1_b32 s%d, 1" % sCH)
        A("s_cselect_b32 s%d, s%d, s%d" % (dst, src + 1, src))
        A("s_lshl_b32 s45, s%d, 16" % dst)
        A("s_and_b32 s%d, s%d, 0xffff0000" % (dst, dst))
        A("s_bitcmp1_b32 s%d, 0" % sCH)
        A("s_cselect_b32 s%d, s%d, s45" % (dst, dst))
    sDskip = 44
    vDT = 6
    A("v_mov_b32 v%d, s43" % vDT)
    A("v_mul_f32 v%d, 0x%x, v%d" % (vDT, f32bits(LOG2E), vDT))
    A("v_exp_f32 v%d, v%d" % (vDT, vDT))
    A("s_nop 0")
    A("v_cvt_pk_bf16_f32 v%d, v%d, v%d" % (vDT, vDT, vDT))
    A("v_and_b32 v%d, 0xffff0000, v%d" % (vDT, vDT))
    Z, E1, E2, E4, W8, E256, E512, E1024, CB = 14, 16, 18, 20, 22, 24, 26, 28, 30
    GA, GB, FA, FB, T1, T2 = 32, 34, 38, 40, 42, 44
    PK = [46, 47, 48, 49]
    A("s_waitcnt vmcnt(0)")
    stamp(A, timing, 7)
    A("v_mul_f32 v%d, v%d, v%d" % (Z, vDT, P + 0))
    A("v_mul_f32 v%d, v%d, v%d" % (Z + 1, vDT, P + 1))
    A("v_mul_f32 v%d, v%d, v%d" % (P + 2, vDT, P + 2))
    A("v_mul_f32 v%d, v%d, v%d" % (P + 3, vDT, P + 3))
    A("v_mul_f32 v%d, 0x%x, v%d" % (Z, f32bits(LOG2E), Z))
    A("v_mul_f32 v%d, 0x%x, v%d" % (Z + 1, f32bits(1.0 / (2 * math.pi)), Z + 1))
    def cmul(d, a, b, t, conj=False):
        A("v_pk_mul_f32 %s, %s, %s op_sel_hi:[0,1]" % (v(t, 2), v(b, 2), v(a, 2)))
        A("v_pk_fma_f32 %s, %s, %s, %s op_sel:[1,1,0] op_sel_hi:[1,0,1] %s:[1,0,0]" % (v(d, 2), v(b, 2), v(a, 2), v(t, 2), "neg_hi" if conj else "neg_lo"))
    def anchor(d, m):
        if m == 1:
            A("v_exp_f32 v%d, v%d" % (t0, Z))
            A("v_fract_f32 v%d, v%d" % (t1, Z + 1))
        else:
            A("v_mul_f32 v%d, %s, v%d" % (t0, "%d.0" % m if m in (2, 4) else "0x%x" % f32bits(float(m)), Z))
            A("v_mul_f32 v%d, %s, v%d" % (t1, "%d.0" % m if m in (2, 4) else "0x%x" % f32bits(float(m)), Z + 1))
            A("v_exp_f32 v%d, v%d" % (t0, t0))
            A("v_fract_f32 v%d, v%d" % (t1, t1))
        A("v_cos_f32 v%d, v%d" % (d, t1))
        A("v_sin_f32 v%d, v%d" % (d + 1, t1))
        A("s_nop 0")
        A("v_mul_f32 v%d, v%d, v%d" % (d, d, t0))
        A("v_mul_f32 v%d, v%d, v%d" % (d + 1, d + 1, t0))
    anchor(W8, 8)
    anchor(E1, 1)
    cmul(CB, P + 4, P + 2, T1)
    A("v_xor_b32 v%d, 0x80000000, v%d" % (CB + 1, CB + 1))
    anchor(E256, 256)
    anchor(E512, 512)
    anchor(E1024, 1024)
    cmul(E2, E1, E1, T1)
    cmul(E4, E2, E2, T2)
    pki = [0]
    def put(src, rows):
        pk = PK[pki[0] & 3]; pki[0] += 1
        A("v_cvt_pk_bf16_f32 v%d, v%d, v%d" % (pk, src, src + 1))
        for r in rows:
            A("ds_write_b32 v%d, v%d offset:%d" % (vTab, pk, r * 272))
    fops = []
    fops.append(lambda: (A("v_mov_b32 v%d, 0x3f80" % PK[3]), A("ds_write_b32 v%d, v%d offset:%d" % (vTab, PK[3], 32 * 272))))
    fops.append(lambda: put(W8, [33]))
    cur = W8
    fr = [FA, FB]
    for j in range(2, 32):
        d = fr[j & 1]
        fops.append((lambda d=d, cur=cur, j=j: (cmul(d, cur, W8, T1), put(d, [32 + j]))))
        cur = d
    gops = []
    def gstep(d, a, b, base):
        gops.append(lambda: (cmul(d, a, b, T2, conj=True), put(d, GROWS[base])))
    gops.append(lambda: put(CB, GROWS[0]))
    g = [GA, GB]
    prev = CB
    for k in range(1, 8):
        gstep(g[k & 1], prev, E1, k); prev = g[k & 1]
    G256, G512, G1024, G1536 = 36, 52, 54, 56
    gstep(G256, CB, E256, 256)
    prev = G256
    for k, base in enumerate((258, 260, 262, 264)):
        gstep(g[k & 1], prev, E2, base); prev = g[k & 1]
    gstep(G512, CB, E512, 512)
    gstep(GA, G512, E4, 516); gstep(GB, GA, E4, 520)
    gstep(G256, G512, E256, 768)
    gstep(GA, G256, E4, 772); gstep(GB, GA, E4, 776)
    gstep(G1024, CB, E1024, 1024)
    gstep(GA, G1024, W8, 1032)
    gstep(GB, G1024, E256, 1280); gstep(GA, GB, W8, 1288)
    gstep(G1536, G1024, E512, 1536); gstep(GA, G1536, W8, 1544)
    gstep(GB, G1536, E256, 1792); gstep(GA, GB, W8, 1800)
    n = max(len(fops), len(gops))
    for i in range(n):
        if i < len(fops): fops[i]()
        if i < len(gops): gops[i]()
    stamp(A, timing, 1)
    A("s_lshl_b32 s45, s%d, 2" % sW)
    A("s_add_u32 s45, s45, %d" % FL)
    A("v_mov_b32 v58, s45")
    A("s_xor_b32 s45, s45, 4")
    A("v_mov_b32 v59, s45")
    A("v_mov_b32 v51, 4")
    AF, BF, DK = 64, 96, 16
    A("v_and_b32 v%d, 31, v%d" % (t0, vLane))
    A("v_mul_u32_u24 v%d, 272, v%d" % (t0, t0))
    A("v_lshrrev_b32 v%d, 5, v%d" % (t1, vLane))
    A("v_lshl_add_u32 v%d, v%d, 4, v%d" % (t0, t1, t0))
    A("v_add_u32 v%d, s42, v%d" % (t0, t0))
    for t in range(8):
        A("ds_read_b128 %s, v%d offset:%d" % (v(AF + 4 * t, 4), t0, 32 * t))
        A("ds_read_b128 %s, v%d offset:%d" % (v(BF + 4 * t, 4), t0, 32 * 272 + 32 * t))
    for t in range(8):
        A("s_waitcnt lgkmcnt(%d)" % (14 - 2 * t))
        A("v_mfma_f32_32x32x16_bf16 %s, %s, %s, %s" % (v(DK, 16), v(AF + 4 * t, 4), v(BF + 4 * t, 4), "0" if t == 0 else v(DK, 16)))
    vL16 = 7
    A("v_lshlrev_b32 v%d, 4, v%d" % (vL16, vLane))
    A("v_add_u32 v%d, s42, v%d" % (t0, vL16))
    A("s_xor_b32 s45, s%d, 1" % sW)
    A("s_mul_i32 s45, s45, %d" % TAB)
    A("v_add_u32 v%d, s45, v%d" % (t1, vL16))
    A("s_mul_i32 s46, s%d, %d" % (sCH, CH))
    A("s_nop 7")
    A("s_nop 1")
    A("s_cmp_eq_u32 s%d, 0" % sHF)
    A("s_cbranch_scc0 ssm_x1")
    A("ds_write_b128 v%d, %s" % (t0, v(DK + 8, 4)))
    A("ds_write_b128 v%d, %s offset:1024" % (t0, v(DK + 12, 4)))
    A("s_branch ssm_x2")
    A.label("ssm_x1")
    A("ds_write_b128 v%d, %s" % (t0, v(DK, 4)))
    A("ds_write_b128 v%d, %s offset:1024" % (t0, v(DK + 4, 4)))
    A.label("ssm_x2")
    A("s_waitcnt lgkmcnt(0)")
    flag_set(A, 58, 51, 0)
    flag_wait(A, 59, 0, "ssm_fx")
    stamp(A, timing, 2)
    R = 32
    A("ds_read_b128 %s, v%d" % (v(R, 4), t1))
    A("ds_read_b128 %s, v%d offset:1024" % (v(R + 4, 4), t1))
    A("v_and_b32 v%d, 31, v%d" % (t2, vLane))
    A("v_lshrrev_b32 v%d, 5, v%d" % (t3, vLane))
    A("v_lshlrev_b32 v%d, 4, v%d" % (t2, t2))
    A("s_add_u32 s47, s46, %d" % (CP0 + 4080))
    A("v_sub_u32 v%d, s47, v%d" % (t2, t2))
    A("s_waitcnt lgkmcnt(0)")
    A("s_cmp_eq_u32 s%d, 0" % sHF)
    A("s_cbranch_scc0 ssm_y1")
    for r in range(8): A("v_add_f32 v%d, v%d, v%d" % (DK + r, DK + r, R + r))
    A("v_lshlrev_b32 v%d, 9, v%d" % (t3, t3))
    A("v_sub_u32 v%d, v%d, v%d" % (t2, t2, t3))
    for j in range(4): A("v_cvt_pk_bf16_f32 v%d, v%d, v%d" % (R + j, DK + 2 * j, DK + 2 * j + 1))
    A("ds_write_b128 v%d, %s" % (t2, v(R, 4)))
    A("v_mov_b32 v%d, 0" % (R + 4)); A("v_mov_b32 v%d, 0" % (R + 5)); A("v_mov_b32 v%d, 0" % (R + 6)); A("v_mov_b32 v%d, 0" % (R + 7))
    A("s_add_u32 s47, s46, %d" % (CP0 + 4096))
    A("v_add_u32 v%d, s47, v%d" % (t3, vL16))
    A("s_mov_b64 exec, 0xf")
    A("ds_write_b128 v%d, %s" % (t3, v(R + 4, 4)))
    A("s_mov_b64 exec, -1")
    A("s_branch ssm_y2")
    A.label("ssm_y1")
    for r in range(8): A("v_add_f32 v%d, v%d, v%d" % (DK + r, DK + 8 + r, R + r))
    A("v_lshlrev_b32 v%d, 9, v%d" % (R + 12, t3))
    A("v_sub_u32 v%d, v%d, v%d" % (R + 12, t2, R + 12))
    A("v_subrev_u32 v%d, 1024, v%d" % (R + 12, R + 12))
    A("v_cvt_pk_bf16_f32 v%d, v%d, v%d" % (R + 0, DK + 0, DK + 0))
    A("v_cvt_pk_bf16_f32 v%d, v%d, v%d" % (R + 1, DK + 1, DK + 1))
    A("v_cvt_pk_bf16_f32 v%d, v%d, v%d" % (R + 2, DK + 1, DK + 2))
    A("v_cvt_pk_bf16_f32 v%d, v%d, v%d" % (R + 3, DK + 2, DK + 2))
    A("ds_write_b128 v%d, %s" % (R + 12, v(R, 4)))
    A("v_lshlrev_b32 v%d, 10, v%d" % (R + 13, t3))
    A("v_sub_u32 v%d, v%d, v%d" % (R + 13, t2, R + 13))
    A("v_subrev_u32 v%d, 2560, v%d" % (R + 13, R + 13))
    A("v_and_b32 v%d, 1, v%d" % (R + 14, vLane))
    A("v_cmp_eq_u32 vcc, 1, v%d" % (R + 14))
    A("s_nop 1")
    for k in range(2):
        K8, K0 = DK + 4 + 2 * k, DK + 5 + 2 * k
        o = R + 4 + 4 * k
        A("v_cndmask_b32 v%d, v%d, v%d, vcc" % (R + 15, K0, K8))
        A("v_cvt_pk_bf16_f32 v%d, v%d, v%d" % (o + 0, K8, K8))
        A("v_cvt_pk_bf16_f32 v%d, v%d, v%d" % (o + 1, K8, R + 15))
        A("v_cvt_pk_bf16_f32 v%d, v%d, v%d" % (o + 2, K0, K0))
        A("v_mov_b32 v%d, v%d" % (o + 3, o + 2))
    A("ds_write_b128 v%d, %s offset:512" % (R + 13, v(R + 4, 4)))
    A("ds_write_b128 v%d, %s" % (R + 13, v(R + 8, 4)))
    A.label("ssm_y2")
    A("s_waitcnt lgkmcnt(0)")
    flag_set(A, 58, 51, 32)
    flag_wait(A, 59, 32, "ssm_fd")
    stamp(A, timing, 3)
    A("s_lshl_b32 s47, s%d, 11" % sHF)
    A("s_add_u32 s47, s47, s46")
    A("s_add_u32 s47, s47, %d" % CP0)
    A("v_add_u32 v%d, s47, v%d" % (t0, vL16))
    for it in range(2):
        d = 32 + 8 * it
        A("ds_read_b128 %s, v%d offset:%d" % (v(d, 4), t0, it * 1024))
        A("ds_read_b64 %s, v%d offset:%d" % (v(d + 4, 2), t0, it * 1024 + 16))
    A("v_lshrrev_b32 v%d, 2, v%d" % (t1, vLane))
    A("v_mul_u32_u24 v%d, %d, v%d" % (t1, CPS, t1))
    A("v_and_b32 v%d, 3, v%d" % (t2, vLane))
    A("v_lshl_add_u32 v%d, v%d, 4, v%d" % (t1, t2, t1))
    A("s_add_u32 s47, s46, %d" % (CP0 + CPS + 4096))
    A("v_add_u32 v%d, s47, v%d" % (t1, t1))
    for r in range(4): A("v_mov_b32 v%d, 0" % (60 + r))
    A("s_cmp_eq_u32 s%d, 0" % sHF)
    A("s_cbranch_scc0 ssm_z1")
    A("s_mov_b64 exec, 0xfff")
    A("ds_write_b128 v%d, v[60:63]" % t1)
    A("s_mov_b64 exec, -1")
    A.label("ssm_z1")
    A("v_add_u32 v64, %d, v%d" % (2 * CPS, t0))
    A("v_add_u32 v65, %d, v%d" % (2 * CPS + 1024, t0))
    A("s_waitcnt lgkmcnt(0)")
    for it in range(2):
        d = 32 + 8 * it; e = 48 + 8 * it
        for i in range(4): A("v_alignbit_b32 v%d, v%d, v%d, 16" % (e + i, d + i + 1, d + i))
        for i in range(4): A("v_alignbit_b32 v%d, v%d, v%d, 16" % (e + 4 + i, d + i + 2, d + i + 1))
        A("ds_write_b128 v%d, %s offset:%d" % (t0, v(e, 4), it * 1024 + CPS))
        A("ds_write2_b32 v%d, v%d, v%d offset0:0 offset1:1" % (64 + it, d + 1, d + 2))
        A("ds_write2_b32 v%d, v%d, v%d offset0:2 offset1:3" % (64 + it, d + 3, d + 4))
        A("ds_write_b128 v%d, %s offset:%d" % (t0, v(e + 4, 4), it * 1024 + 3 * CPS))
    AF, BF, DC = 32, 64, 96
    vAlo, vAhi, vB = 8, 9, 10
    A("v_and_b32 v%d, 3, v%d" % (t1, vLane))
    A("v_sub_u32 v%d, 3, v%d" % (t1, t1))
    A("v_mul_u32_u24 v%d, %d, v%d" % (vAlo, CPS, t1))
    A("v_bfe_u32 v%d, v%d, 2, 2" % (t1, vLane))
    A("v_lshrrev_b32 v%d, 4, v%d" % (t2, vLane))
    A("v_lshlrev_b32 v%d, 1, v%d" % (t3, t2))
    A("v_sub_u32 v%d, v%d, v%d" % (t3, t3, t1))
    A("v_lshl_add_u32 v%d, v%d, 3, v%d" % (vAlo, t3, vAlo))
    A("s_lshl_b32 s47, s%d, 8" % sHF)
    A("s_sub_u32 s48, s46, s47")
    A("s_add_u32 s48, s48, %d" % (CP0 + 8 * 507 - 3584))
    A("v_add_u32 v%d, s48, v%d" % (vAlo, vAlo))
    A("v_add_u32 v%d, 2048, v%d" % (vAhi, vAlo))
    A("v_and_b32 v%d, 15, v%d" % (t1, vLane))
    A("v_lshlrev_b32 v%d, 5, v%d" % (vB, t1))
    A("v_lshl_add_u32 v%d, v%d, 4, v%d" % (vB, t2, vB))
    A("s_mul_i32 s48, s%d, %d" % (sCH, UP))
    A("s_add_u32 s48, s48, %d" % (UB + 448))
    A("s_sub_u32 s49, s48, s47")
    A("v_add_u32 v%d, s49, v%d" % (vB, vB))
    vU, vO = 11, 12
    A("v_lshlrev_b32 v%d, 5, v%d" % (vO, t1))
    A("v_lshl_add_u32 v%d, v%d, 3, v%d" % (vO, t2, vO))
    A("s_lshl_b32 s47, s%d, 11" % sHF)
    A("s_add_u32 s49, s48, s47")
    A("s_add_u32 s49, s49, 32")
    A("v_add_u32 v%d, s49, v%d" % (vU, vO))
    A("s_add_u32 s10, s%d, s%d" % (sD0, sCH))
    A("s_lshl_b32 s10, s10, 12")
    A("s_add_u32 s10, s10, s47")
    A("s_add_u32 s47, s46, %d" % EX2)
    A("s_lshl_b32 s48, s%d, 12" % sHF)
    A("s_add_u32 s49, s47, s48")
    A("v_add_u32 v%d, s49, v%d" % (13, vL16))
    A("s_xor_b32 s48, s48, 4096")
    A("s_add_u32 s49, s47, s48")
    A("v_add_u32 v%d, s49, v%d" % (14, vL16))
    vFo, vFp, vFc, vFu, vF4 = 16, 17, 18, 19, 20
    A("s_lshl_b32 s45, s%d, 2" % sW)
    A("s_add_u32 s45, s45, %d" % FL)
    A("v_mov_b32 v%d, s45" % vFo)
    A("s_xor_b32 s45, s45, 4")
    A("v_mov_b32 v%d, s45" % vFp)
    A("v_mov_b32 v%d, 4" % vF4)
    A("v_mov_b32 v%d, %d" % (vFu, FL + 128))
    A("v_add_u32 v%d, 64, v%d" % (vFc, vFp))
    A("s_mov_b32 s45, %d" % (FL + 128))
    A("v_writelane_b32 v%d, s45, 1" % vFc)
    if not UROT:
        A("s_mov_b32 s45, %d" % (FL + 132))
        A("v_writelane_b32 v%d, s45, 2" % vFc)
    A("v_subrev_u32 v%d, 192, v%d" % (vAlo, vAlo))
    A("v_subrev_u32 v%d, 192, v%d" % (vB, vB))
    A("s_waitcnt lgkmcnt(0)")
    flag_set(A, vFo, vF4, 64)
    stamp(A, timing, 8)
    conv_phases(A, timing, vAlo, vB, AF, BF, DC, vFc, vFu)
    stamp(A, timing, 5)
    A("s_nop 7")
    A("s_cmp_eq_u32 s%d, 0" % sHF)
    A("s_cbranch_scc0 ssm_w1")
    for k in range(4): A("ds_write_b128 v13, %s offset:%d" % (v(DC + 16 + 4 * k, 4), 1024 * k))
    A("s_branch ssm_w2")
    A.label("ssm_w1")
    for k in range(4): A("ds_write_b128 v13, %s offset:%d" % (v(DC + 4 * k, 4), 1024 * k))
    A.label("ssm_w2")
    U = 32
    for k in range(4): A("ds_read_b64 %s, v%d offset:%d" % (v(U + 2 * k, 2), vU, 512 * k))
    A("s_waitcnt lgkmcnt(0)")
    flag_set(A, vFo, vF4, 96)
    flag_wait(A, vFp, 96, "ssm_fe")
    R = 64
    for k in range(4): A("ds_read_b128 %s, v14 offset:%d" % (v(R + 4 * k, 4), 1024 * k))
    UF = 40
    for k in range(8):
        A("v_lshlrev_b32 v%d, 16, v%d" % (UF + 2 * k, U + k))
        A("v_and_b32 v%d, 0xffff0000, v%d" % (UF + 2 * k + 1, U + k))
    for r in range(16): A("v_mul_f32 v%d, s%d, v%d" % (UF + r, sDskip, UF + r))
    for k in range(8): A("v_cvt_pk_bf16_f32 v%d, v%d, v%d" % (U + k, UF + 2 * k, UF + 2 * k + 1))
    for k in range(8):
        A("v_lshlrev_b32 v%d, 16, v%d" % (UF + 2 * k, U + k))
        A("v_and_b32 v%d, 0xffff0000, v%d" % (UF + 2 * k + 1, U + k))
    A("s_waitcnt lgkmcnt(0)")
    A("s_cmp_eq_u32 s%d, 0" % sHF)
    A("s_cbranch_scc0 ssm_v1")
    for r in range(16): A("v_add_f32 v%d, v%d, v%d" % (DC + r, DC + r, R + r))
    A("s_branch ssm_v2")
    A.label("ssm_v1")
    for r in range(16): A("v_add_f32 v%d, v%d, v%d" % (DC + r, DC + 16 + r, R + r))
    A.label("ssm_v2")
    for k in range(8): A("v_cvt_pk_bf16_f32 v%d, v%d, v%d" % (U + k, DC + 2 * k, DC + 2 * k + 1))
    for k in range(8):
        A("v_lshlrev_b32 v%d, 16, v%d" % (DC + 2 * k, U + k))
        A("v_and_b32 v%d, 0xffff0000, v%d" % (DC + 2 * k + 1, U + k))
    for r in range(16): A("v_add_f32 v%d, v%d, v%d" % (DC + r, DC + r, UF + r))
    for k in range(8): A("v_cvt_pk_bf16_f32 v%d, v%d, v%d" % (U + k, DC + 2 * k, DC + 2 * k + 1))
    for k in range(4):
        A("buffer_store_dwordx2 %s, v%d, s[%d:%d], s10 offen offset:%d%s" % (v(U + 2 * k, 2), vO, SAT, SAT + 3, 512 * k, SC1))
    stamp(A, timing, 6)
    dump_stamps(A, timing, 11, end, 0)
    A("s_branch %s" % end)

SSM2 = False
SSM3 = True
RS = 2056
NGR = 29
FBASE = NGR * RS
UB2 = 125440
UCH, UCB = 9120, 4576
KB2 = 16 * RS
KCH, CPS2 = 8448, 4224
EX3 = 69632
DROW = [7, 6, 5, 4, 264, 262, 260, 260, 3, 2, 1, 0, 260, 258, 256, 256, 520, 516, 512, -1, 776, 772, 768, 255, 1032, 1024, 1288, 1280, 1544, 1536, 1800, 1792]
SROWMAP = {7: 6, 12: 6, 15: 14, 29: 7, 30: 12, 31: 15}
SROW = {}
for r_, b_ in enumerate(DROW): SROW.setdefault(b_, SROWMAP.get(r_, r_))
PIPE = True
QST = False
NOSSM = False
NOQ = False

def role_ssm2(A, end, timing):
    t0, t1, t2, t3 = 2, 3, 4, 5
    sD0, sCH, sHF = 7, 8, 9
    SX, SAT = 12, 36
    A("s_load_dwordx16 s[16:31], s[0:1], 0")
    A("s_load_dwordx2 s[32:33], s[0:1], 64")
    A("s_load_dwordx2 s[4:5], s[0:1], 136")
    A("s_and_b32 s10, s2, 7")
    A("s_mul_i32 s10, s10, 20")
    A("s_lshr_b32 s11, s2, 3")
    A("s_add_u32 s10, s10, s11")
    A("s_lshl_b32 s%d, s10, 2" % sD0)
    A("s_cmp_lt_u32 s%d, 8" % sW)
    A("s_cbranch_scc1 ssm_main")
    if LPRIO: A("s_setprio %d" % LPRIO)
    A("s_load_dwordx2 s[36:37], s[0:1], 112")
    A("s_sub_u32 s10, s%d, 8" % sW)
    A("v_mul_u32_u24 v%d, 2560, v%d" % (t0, vLane))
    A("s_mul_i32 s11, s10, %d" % (128 * 1280))
    A("s_lshl_b32 s34, s%d, 1" % sD0)
    A("s_add_u32 s11, s11, s34")
    A("s_add_u32 s35, s11, %d" % (1024 * 1280))
    GX, GW, XU, WU, SGW, SG = 32, 44, 52, 64, 40, 44
    A("s_lshl_b32 s38, s2, 3")
    A("s_add_u32 s38, s38, s10")
    A("s_mul_i32 s39, s38, 1280")
    A("s_add_u32 s48, s39, %d" % (1280 * 1280))
    A("v_mul_u32_u24 v24, 20, v%d" % vLane)
    A("v_mov_b32 v25, 0")
    A("s_waitcnt lgkmcnt(0)")
    srd(A, SX, 16, 0, NQ)
    srd(A, SGW, 36, 0, 1280)
    srd(A, SG, 4, WS_G, 8192)
    if B0: A("s_barrier")
    for e in range(2):
        A("buffer_load_dwordx2 %s, v%d, s[%d:%d], s11 offen offset:%d %s" % (v(8 + 2 * e, 2), t0, SX, SX + 3, 1280 * e, GMOD))
    for j in range(2):
        A("buffer_load_dwordx4 %s, v24, s[%d:%d], s%d offen" % (v(GX + 6 * j, 4), SX, SX + 3, 48 if j else 39))
        A("buffer_load_dword v%d, v24, s[%d:%d], s%d offen offset:16" % (GX + 6 * j + 4, SX, SX + 3, 48 if j else 39))
    A("buffer_load_dwordx4 %s, v24, s[%d:%d], 0 offen" % (v(GW, 4), SGW, SGW + 3))
    A("buffer_load_dword v%d, v24, s[%d:%d], 0 offen offset:16" % (GW + 4, SGW, SGW + 3))
    for e in range(2):
        A("buffer_load_dwordx2 %s, v%d, s[%d:%d], s35 offen offset:%d %s" % (v(12 + 2 * e, 2), t0, SX, SX + 3, 1280 * e, GMOD))
    A("v_mov_b32 v16, 0"); A("v_mov_b32 v17, 0"); A("v_mov_b32 v18, 0"); A("v_mov_b32 v19, 0")
    A("s_lshr_b32 s34, s10, 1")
    A("s_mul_i32 s34, s34, %d" % UCH)
    A("s_and_b32 s50, s10, 1")
    A("s_mul_i32 s50, s50, %d" % UCB)
    A("s_add_u32 s34, s34, s50")
    A("s_add_u32 s34, s34, %d" % UB2)
    A("v_lshlrev_b32 v%d, 4, v%d" % (t1, vLane))
    A("v_add_u32 v%d, s34, v%d" % (t1, t1))
    A("s_mov_b32 exec_lo, 0x1fffffff")
    A("s_mov_b32 exec_hi, 0")
    A("ds_write_b128 v%d, v[16:19]" % t1)
    A("s_mov_b64 exec, -1")
    A("s_lshl_b32 s34, s10, 8")
    A("s_add_u32 s34, s34, %d" % (UB2 + 452))
    A("v_lshlrev_b32 v%d, 2, v%d" % (t1, vLane))
    A("v_add_u32 v%d, s34, v%d" % (t1, t1))
    A("s_mov_b32 s52, 0x05040100")
    A("s_mov_b32 s53, 0x07060302")
    A("s_waitcnt lgkmcnt(0)")
    A("s_barrier")
    def uwrite(q):
        r = 8 + 4 * q
        for c in range(4):
            A("v_perm_b32 v%d, v%d, v%d, s%d" % (16 + c, r + 2 + (c >> 1), r + (c >> 1), 52 + (c & 1)))
        for c in range(4):
            A("ds_write_b32 v%d, v%d offset:%d" % (t1, 16 + c, 2048 * q + c * UCH))
            A("ds_write_b32 v%d, v%d offset:%d" % (t1, 16 + c, 2048 * q + c * UCH + 4572))
        A("s_waitcnt lgkmcnt(0)")
    A("s_waitcnt vmcnt(8)")
    uwrite(0)
    stamp(A, timing, 1)
    A("s_barrier")
    A("s_setprio 0")
    A("s_waitcnt vmcnt(2)")
    for q in range(5):
        A("v_lshlrev_b32 v%d, 16, v%d" % (WU + 2 * q, GW + q))
        A("v_and_b32 v%d, 0xffff0000, v%d" % (WU + 2 * q + 1, GW + q))
    A("s_lshl_b32 s48, s38, 2")
    gate_row(A, GX, XU, WU, SG, 25, 48)
    A("s_add_u32 s49, s48, %d" % (1280 * 4))
    gate_row(A, GX + 6, XU, WU, SG, 25, 49)
    if LPRIO: A("s_setprio %d" % LPRIO)
    stamp(A, timing, 2)
    A("s_waitcnt vmcnt(2)")
    uwrite(1)
    stamp(A, timing, 3)
    A("s_barrier")
    dump_stamps(A, timing, 4, end, 0)
    A("s_branch %s" % end)

    A.label("ssm_main")
    A("s_lshr_b32 s%d, s%d, 1" % (sCH, sW))
    A("s_and_b32 s%d, s%d, 1" % (sHF, sW))
    P = 8
    for i in range(6): A("v_mov_b32 v%d, 0" % (P + i))
    A("s_add_u32 s10, s%d, s%d" % (sD0, sCH))
    A("s_lshl_b32 s11, s10, 8")
    A("s_lshl_b32 s34, s%d, 7" % sHF)
    A("s_add_u32 s11, s11, s34")
    A("v_lshlrev_b32 v%d, 1, v%d" % (t0, vLane))
    A("v_add_u32 v%d, s11, v%d" % (t0, t0))
    A("s_lshl_b32 s11, s%d, 1" % sD0)
    A("s_waitcnt lgkmcnt(0)")
    for i in range(6):
        A("global_load_short_d16_hi v%d, v%d, s[%d:%d]" % (P + i, t0, 18 + 2 * i, 19 + 2 * i))
    A("s_load_dwordx2 s[34:35], s[30:31], s11")
    A("s_load_dwordx2 s[40:41], s[32:33], s11")
    if B0: A("s_barrier")
    srd(A, SAT, 4, WS_AT, NQ)
    vL16 = 7
    vGA, vFA = 58, 59
    vXS, vXR = 60, 61
    vXS1, vXR1 = 62, 63
    vKW = 120
    vA, vB, vU, vO, vES, vER = 121, 122, 123, 124, 125, 126
    sMG, sMF = 42, 43
    A("s_lshl_b32 s%d, s%d, 8" % (sMG, sW))
    A("s_add_u32 s%d, s%d, %d" % (sMF, sMG, FBASE))
    A("v_lshlrev_b32 v%d, 4, v%d" % (vL16, vLane))
    A("v_and_b32 v%d, 31, v%d" % (t1, vLane))
    A("v_lshrrev_b32 v%d, 5, v%d" % (t2, vLane))
    A("v_mul_u32_u24 v%d, %d, v%d" % (vFA, RS, t1))
    A("v_mov_b32 v%d, v%d" % (t3, t1))
    for r_, s_ in sorted(SROWMAP.items()):
        A("v_writelane_b32 v%d, %d, %d" % (t3, s_, r_))
        A("v_writelane_b32 v%d, %d, %d" % (t3, s_, r_ + 32))
    A("v_mul_u32_u24 v%d, %d, v%d" % (vGA, RS, t3))
    A("v_lshl_add_u32 v%d, v%d, 4, v%d" % (vGA, t2, vGA))
    A("v_add_u32 v%d, s%d, v%d" % (vGA, sMG, vGA))
    A("v_lshl_add_u32 v%d, v%d, 4, v%d" % (vFA, t2, vFA))
    A("v_add_u32 v%d, s%d, v%d" % (vFA, sMF, vFA))
    A("v_lshrrev_b32 v%d, 4, v%d" % (t3, vLane))
    A("v_mul_u32_u24 v%d, %d, v%d" % (vXS, 2 * RS, t3))
    A("v_and_b32 v%d, 15, v%d" % (t0, vLane))
    A("v_lshl_add_u32 v%d, v%d, 4, v%d" % (vXS, t0, vXS))
    A("s_xor_b32 s45, s%d, 256" % sMG)
    A("v_add_u32 v%d, s45, v%d" % (vXR, vXS))
    A("v_add_u32 v%d, s%d, v%d" % (vXS, sMG, vXS))
    A("v_lshlrev_b32 v%d, 2, v%d" % (vXS1, vLane))
    A("v_add_u32 v%d, %d, v%d" % (vXS1, RS, vXS1))
    A("v_add_u32 v%d, s45, v%d" % (vXR1, vXS1))
    A("v_add_u32 v%d, s%d, v%d" % (vXS1, sMG, vXS1))
    A("s_mul_i32 s46, s%d, %d" % (sCH, KCH))
    A("s_add_u32 s46, s46, %d" % KB2)
    A("s_add_u32 s47, s46, 4080")
    A("v_lshlrev_b32 v%d, 4, v%d" % (vKW, t1))
    A("v_sub_u32 v%d, s47, v%d" % (vKW, vKW))
    A("s_mov_b32 s52, 0"); A("s_mov_b32 s53, -1")
    A("s_mov_b32 s54, 1"); A("s_mov_b32 s55, 1")
    A("s_mov_b32 s56, 0xaaaaaaaa"); A("s_mov_b32 s57, 0xaaaaaaaa")
    A("v_and_b32 v%d, 1, v%d" % (vA, t0))
    A("v_xor_b32 v%d, 1, v%d" % (vA, vA))
    A("v_mul_u32_u24 v%d, %d, v%d" % (vA, CPS2, vA))
    A("v_lshrrev_b32 v%d, 1, v%d" % (vB, t0))
    A("v_lshlrev_b32 v%d, 3, v%d" % (vU, vB))
    A("v_sub_u32 v%d, v%d, v%d" % (vA, vA, vU))
    A("v_lshl_add_u32 v%d, v%d, 4, v%d" % (vA, t3, vA))
    A("s_lshl_b32 s47, s%d, 8" % sHF)
    A("s_sub_u32 s48, s46, s47")
    A("s_add_u32 s48, s48, %d" % (4088 - 3584 - 192))
    A("v_add_u32 v%d, s48, v%d" % (vA, vA))
    A("v_lshlrev_b32 v%d, 6, v%d" % (vO, vB))
    A("v_lshl_add_u32 v%d, v%d, 4, v%d" % (vO, t3, vO))
    A("v_and_b32 v%d, 1, v%d" % (vU, t0))
    A("v_mul_u32_u24 v%d, %d, v%d" % (vB, UCB, vU))
    A("v_add_u32 v%d, v%d, v%d" % (vB, vB, vO))
    A("s_mul_i32 s48, s%d, %d" % (sCH, UCH))
    A("s_add_u32 s48, s48, %d" % (UB2 + 448))
    A("s_sub_u32 s49, s48, s47")
    A("s_sub_u32 s49, s49, 192")
    A("v_add_u32 v%d, s49, v%d" % (vB, vB))
    A("v_lshl_add_u32 v%d, v%d, 2, v%d" % (vO, vU, vO))
    A("s_lshl_b32 s47, s%d, 11" % sHF)
    A("s_add_u32 s49, s48, s47")
    A("s_add_u32 s49, s49, %d" % UCB)
    A("v_add_u32 v%d, s49, v%d" % (vU, vO))
    A("s_add_u32 s50, s%d, s%d" % (sD0, sCH))
    A("s_lshl_b32 s50, s50, 12")
    A("s_add_u32 s50, s50, s47")
    sOut = 50
    A("s_lshl_b32 s48, s%d, 12" % sW)
    A("s_add_u32 s49, s48, %d" % EX3)
    A("v_add_u32 v%d, s49, v%d" % (vES, vL16))
    A("s_xor_b32 s49, s49, 4096")
    A("v_add_u32 v%d, s49, v%d" % (vER, vL16))
    A("s_waitcnt lgkmcnt(0)")
    for (src, dst) in ((34, 58), (40, 44)):
        A("s_bitcmp1_b32 s%d, 1" % sCH)
        A("s_cselect_b32 s%d, s%d, s%d" % (dst, src + 1, src))
        A("s_lshl_b32 s45, s%d, 16" % dst)
        A("s_and_b32 s%d, s%d, 0xffff0000" % (dst, dst))
        A("s_bitcmp1_b32 s%d, 0" % sCH)
        A("s_cselect_b32 s%d, s%d, s45" % (dst, dst))
    sDskip = 44
    vDT = 6
    A("v_mov_b32 v%d, s58" % vDT)
    A("v_mul_f32 v%d, 0x%x, v%d" % (vDT, f32bits(LOG2E), vDT))
    A("v_exp_f32 v%d, v%d" % (vDT, vDT))
    A("s_mov_b32 m0, s%d" % sMF)
    A("v_cvt_pk_bf16_f32 v%d, v%d, v%d" % (vDT, vDT, vDT))
    A("v_and_b32 v%d, 0xffff0000, v%d" % (vDT, vDT))
    Z, E1, E2, E4, W8, E256, E512, E1024, CB, EM1, W16 = 14, 16, 18, 20, 22, 24, 26, 28, 30, 64, 66
    GA, GB, T1, T2 = 32, 34, 42, 44
    FR = [38, 40, 68, 70]
    G256, G512, G1024, G1536 = 36, 52, 54, 56
    PK = [46, 47, 48, 49]
    A("v_mov_b32 v%d, 0x3f80" % PK[3])
    A("ds_write_addtid_b32 v%d offset:0" % PK[3])
    A("s_waitcnt vmcnt(0)")
    stamp(A, timing, 7)
    A("v_mul_f32 v%d, v%d, v%d" % (Z, vDT, P + 0))
    A("v_mul_f32 v%d, v%d, v%d" % (Z + 1, vDT, P + 1))
    A("v_mul_f32 v%d, v%d, v%d" % (P + 2, vDT, P + 2))
    A("v_mul_f32 v%d, v%d, v%d" % (P + 3, vDT, P + 3))
    A("v_mul_f32 v%d, 0x%x, v%d" % (Z, f32bits(LOG2E), Z))
    A("v_mul_f32 v%d, 0x%x, v%d" % (Z + 1, f32bits(1.0 / (2 * math.pi)), Z + 1))
    def cmul(d, a, b, t, conj=False):
        A("v_pk_mul_f32 %s, %s, %s op_sel_hi:[0,1]" % (v(t, 2), v(b, 2), v(a, 2)))
        A("v_pk_fma_f32 %s, %s, %s, %s op_sel:[1,1,0] op_sel_hi:[1,0,1] %s:[1,0,0]" % (v(d, 2), v(b, 2), v(a, 2), v(t, 2), "neg_hi" if conj else "neg_lo"))
    A("v_exp_f32 v%d, v%d" % (t0, Z))
    A("v_fract_f32 v%d, v%d" % (t1, Z + 1))
    A("v_exp_f32 v%d, -v%d" % (t2, Z))
    A("v_cos_f32 v%d, v%d" % (E1, t1))
    A("v_sin_f32 v%d, v%d" % (E1 + 1, t1))
    A("v_mul_f32 v%d, 0x%x, v%d" % (Z, f32bits(256.0), Z))
    A("v_mul_f32 v%d, 0x%x, v%d" % (Z + 1, f32bits(256.0), Z + 1))
    A("v_mul_f32 v%d, v%d, v%d" % (EM1, E1, t2))
    A("v_mul_f32 v%d, -v%d, v%d" % (EM1 + 1, E1 + 1, t2))
    A("v_mul_f32 v%d, v%d, v%d" % (E1, E1, t0))
    A("v_mul_f32 v%d, v%d, v%d" % (E1 + 1, E1 + 1, t0))
    A("v_exp_f32 v%d, v%d" % (t0, Z))
    A("v_fract_f32 v%d, v%d" % (t1, Z + 1))
    cmul(E2, E1, E1, T1)
    A("v_cos_f32 v%d, v%d" % (E256, t1))
    A("v_sin_f32 v%d, v%d" % (E256 + 1, t1))
    cmul(E4, E2, E2, T1)
    cmul(CB, P + 4, P + 2, T2)
    cmul(W8, E4, E4, T1)
    A("v_xor_b32 v%d, 0x80000000, v%d" % (CB + 1, CB + 1))
    A("v_mul_f32 v%d, v%d, v%d" % (E256, E256, t0))
    A("v_mul_f32 v%d, v%d, v%d" % (E256 + 1, E256 + 1, t0))
    cmul(W16, W8, W8, T1)
    cmul(E512, E256, E256, T2)
    cmul(E1024, E512, E512, T2)
    fitems = [(None, W8, 1), (None, W16, 2)]
    regs = {1: W8, 2: W16}
    for j in range(3, 32):
        d = FR[j & 3]
        fitems.append(((lambda d=d, s=regs[j - 2]: cmul(d, s, W16, T1)), d, j))
        regs[j] = d
    gitems = []
    def gstep(d, a, b, base):
        gitems.append(((lambda: cmul(d, a, b, T2, conj=True)), d, SROW[base]))
    gitems.append((None, CB, SROW[0]))
    g = [GA, GB]
    gstep(G256, CB, E256, 256)
    prev = CB
    for k in range(1, 8):
        gstep(g[k & 1], prev, E1, k); prev = g[k & 1]
    gstep(GA, CB, EM1, -1)
    gstep(GB, G256, EM1, 255)
    gstep(G512, CB, E512, 512)
    prev = G256
    for k, base in enumerate((258, 260, 262, 264)):
        gstep(g[k & 1], prev, E2, base); prev = g[k & 1]
    gstep(G1024, CB, E1024, 1024)
    gstep(GA, G512, E4, 516); gstep(GB, GA, E4, 520)
    gstep(G256, G512, E256, 768)
    gstep(GA, G256, E4, 772); gstep(GB, GA, E4, 776)
    gstep(GA, G1024, W8, 1032)
    gstep(GB, G1024, E256, 1280); gstep(GA, GB, W8, 1288)
    gstep(G1536, G1024, E512, 1536); gstep(GA, G1536, W8, 1544)
    gstep(GB, G1536, E256, 1792); gstep(GA, GB, W8, 1800)
    assert len(gitems) == NGR and len(fitems) == 31
    cur_m0 = ["F"]
    def setm0(x):
        if cur_m0[0] != x:
            A("s_mov_b32 m0, s%d" % (sMF if x == "F" else sMG)); cur_m0[0] = x
            return True
        return False
    rnd = 0
    fi = gi = 0
    while fi < len(fitems) or gi < len(gitems):
        fs = fitems[fi:fi + 2]; gs = gitems[gi:gi + 2]; fi += 2; gi += 2
        out = []
        seq = []
        for k in range(2):
            if k < len(fs): seq.append(("F", fs[k]))
            if k < len(gs): seq.append(("G", gs[k]))
        for n_, (kind, (fn, src, row)) in enumerate(seq):
            if fn: fn()
            A("v_cvt_pk_bf16_f32 v%d, v%d, v%d" % (PK[n_], src, src + 1))
            out.append((kind, PK[n_], row))
        order = ["F", "G"] if cur_m0[0] == "F" else ["G", "F"]
        for kind in order:
            ws = [o for o in out if o[0] == kind]
            if not ws: continue
            if setm0(kind): A("s_nop 0")
            for (_, pk, row) in ws:
                A("ds_write_addtid_b32 v%d offset:%d" % (pk, row * RS))
    stamp(A, timing, 1)
    AF, BF, DK = 64, 80, 16
    A("s_waitcnt lgkmcnt(0)")
    rd = []
    for t in range(8):
        for h in range(2): rd.append("ds_read_b64 %s, v%d offset:%d" % (v(AF + 4 * (t & 3) + 2 * h, 2), vGA, 32 * t + 8 * h))
        for h in range(2): rd.append("ds_read_b64 %s, v%d offset:%d" % (v(BF + 4 * (t & 3) + 2 * h, 2), vFA, 32 * t + 8 * h))
    for x in rd[:16]: A(x)
    issued = 16
    for t in range(8):
        need = 4 * (t + 1)
        A("s_waitcnt lgkmcnt(%d)" % (issued - need))
        A("v_mfma_f32_32x32x16_bf16 %s, %s, %s, %s" % (v(DK, 16), v(AF + 4 * (t & 3), 4), v(BF + 4 * (t & 3), 4), "0" if t == 0 else v(DK, 16)))
        for x in rd[issued:issued + 4]: A(x)
        issued = min(32, issued + 4)
    A("s_nop 7")
    A("s_nop 3")
    A("s_cmp_eq_u32 s%d, 0" % sHF)
    A("s_cbranch_scc0 ssm_x1")
    A("ds_write_b128 v%d, %s" % (vXS, v(DK + 8, 4)))
    A("ds_write_b128 v%d, %s offset:%d" % (vXS, v(DK + 12, 4), 8 * RS))
    A("s_branch ssm_x2")
    A.label("ssm_x1")
    A("ds_write_b128 v%d, %s" % (vXS, v(DK, 4)))
    A("ds_write_b128 v%d, %s offset:%d" % (vXS, v(DK + 4, 4), 8 * RS))
    A("ds_write_b32 v%d, v%d" % (vXS1, DK + 11))
    A.label("ssm_x2")
    A("s_waitcnt lgkmcnt(0)")
    A("s_barrier")
    stamp(A, timing, 2)
    R = 32
    A("ds_read_b128 %s, v%d" % (v(R, 4), vXR))
    A("ds_read_b128 %s, v%d offset:%d" % (v(R + 4, 4), vXR, 8 * RS))
    A("v_lshrrev_b32 v%d, 5, v%d" % (t3, vLane))
    A("s_cmp_eq_u32 s%d, 0" % sHF)
    A("s_cbranch_scc0 ssm_y1")
    A("ds_read_b32 v%d, v%d" % (R + 8, vXR1))
    A("v_lshlrev_b32 v%d, 9, v%d" % (t3, t3))
    A("v_sub_u32 v%d, v%d, v%d" % (t2, vKW, t3))
    A("v_lshrrev_b32 v%d, 2, v%d" % (t0, vLane))
    A("v_mul_u32_u24 v%d, %d, v%d" % (t0, CPS2, t0))
    A("v_and_b32 v%d, 3, v%d" % (t1, vLane))
    A("v_lshl_add_u32 v%d, v%d, 4, v%d" % (t0, t1, t0))
    A("s_add_u32 s47, s46, 4096")
    A("v_add_u32 v%d, s47, v%d" % (t0, t0))
    for r in range(4): A("v_mov_b32 v%d, 0" % (R + 12 + r))
    A("s_mov_b64 exec, 0xff")
    A("ds_write_b128 v%d, %s" % (t0, v(R + 12, 4)))
    A("s_mov_b64 exec, -1")
    A("s_waitcnt lgkmcnt(1)")
    for r in range(8): A("v_add_f32 v%d, v%d, v%d" % (DK + r, DK + r, R + r))
    A("v_add_f32 v%d, v%d, v%d" % (DK + 11, DK + 11, R + 8))
    for j in range(4): A("v_cvt_pk_bf16_f32 v%d, v%d, v%d" % (R + j, DK + 2 * j, DK + 2 * j + 1))
    A("ds_write_b128 v%d, %s" % (t2, v(R, 4)))
    A("v_cndmask_b32 v%d, v%d, v%d, s[52:53]" % (R + 9, DK + 11, DK + 7))
    A("v_cndmask_b32 v%d, 0, v%d, s[52:53]" % (R + 10, DK + 11))
    A("v_cndmask_b32 v%d, v%d, v%d, s[54:55]" % (R + 9, R + 9, R + 10))
    for j in range(3): A("v_cvt_pk_bf16_f32 v%d, v%d, v%d" % (R + 4 + j, DK + 2 * j + 1, DK + 2 * j + 2))
    A("v_cvt_pk_bf16_f32 v%d, v%d, v%d" % (R + 7, DK + 7, R + 9))
    A("ds_write_b128 v%d, %s offset:%d" % (t2, v(R + 4, 4), CPS2))
    A("s_branch ssm_y2")
    A.label("ssm_y1")
    A("v_lshlrev_b32 v%d, 9, v%d" % (R + 12, t3))
    A("v_sub_u32 v%d, v%d, v%d" % (R + 12, vKW, R + 12))
    A("v_subrev_u32 v%d, 1024, v%d" % (R + 12, R + 12))
    A("v_lshlrev_b32 v%d, 10, v%d" % (R + 13, t3))
    A("v_sub_u32 v%d, v%d, v%d" % (R + 13, vKW, R + 13))
    A("v_subrev_u32 v%d, 2560, v%d" % (R + 13, R + 13))
    A("s_waitcnt lgkmcnt(0)")
    for r in range(8): A("v_add_f32 v%d, v%d, v%d" % (DK + r, DK + 8 + r, R + r))
    K8, K4, K0 = DK, DK + 1, DK + 2
    A("v_cvt_pk_bf16_f32 v%d, v%d, v%d" % (R + 0, K8, K8))
    A("v_cvt_pk_bf16_f32 v%d, v%d, v%d" % (R + 1, K4, K4))
    A("v_cvt_pk_bf16_f32 v%d, v%d, v%d" % (R + 2, K4, K0))
    A("v_cvt_pk_bf16_f32 v%d, v%d, v%d" % (R + 3, K0, K0))
    A("ds_write_b128 v%d, %s" % (R + 12, v(R, 4)))
    A("v_cvt_pk_bf16_f32 v%d, v%d, v%d" % (R + 4, K8, K4))
    A("v_mov_b32 v%d, v%d" % (R + 5, R + 1))
    A("v_mov_b32 v%d, v%d" % (R + 6, R + 3))
    A("v_mov_b32 v%d, v%d" % (R + 7, R + 3))
    A("ds_write_b128 v%d, %s offset:%d" % (R + 12, v(R + 4, 4), CPS2))
    for k in range(2):
        K8, K0 = DK + 4 + 2 * k, DK + 5 + 2 * k
        o = 72 + 8 * k
        A("v_cndmask_b32 v%d, v%d, v%d, s[56:57]" % (R + 15, K0, K8))
        A("v_cvt_pk_bf16_f32 v%d, v%d, v%d" % (o + 0, K8, K8))
        A("v_cvt_pk_bf16_f32 v%d, v%d, v%d" % (o + 1, K8, R + 15))
        A("v_cvt_pk_bf16_f32 v%d, v%d, v%d" % (o + 2, K0, K0))
        A("v_mov_b32 v%d, v%d" % (o + 3, o + 2))
        A("ds_write_b128 v%d, %s offset:%d" % (R + 13, v(o, 4), 512 * (1 - k)))
        A("v_mov_b32 v%d, v%d" % (o + 4, o + 0))
        A("v_cvt_pk_bf16_f32 v%d, v%d, v%d" % (o + 5, R + 15, K0))
        A("v_mov_b32 v%d, v%d" % (o + 6, o + 2))
        A("v_mov_b32 v%d, v%d" % (o + 7, o + 2))
        A("ds_write_b128 v%d, %s offset:%d" % (R + 13, v(o + 4, 4), 512 * (1 - k) + CPS2))
    A.label("ssm_y2")
    AF, BFS, DC = 16, [48, 64], 80
    units = [(0, cl) for cl in range(4)] + [(1, cl) for cl in range(4)]
    def a_list(ph): return list(range(7, -1, -1)) if ph == 0 else list(range(3, -1, -1))
    def b_list(ph): return [0, 1, 2, 3] if ph == 0 else [4, 5, 6, 7]
    def a_reads(ph, cl, a): return ["ds_read_b64 %s, v%d offset:%d" % (v(AF + 4 * a + 2 * h, 2), vA, 512 * (7 - a) + 8 * h + 64 * (3 - cl)) for h in range(2)]
    def b_read(ph, cl, b, buf): return "ds_read_b128 %s, v%d offset:%d" % (v(BFS[buf] + 4 * (b & 3), 4), vB, 512 * b + 64 * (3 - cl))
    order = []
    state = {"done": 0}
    def issue(tag, text):
        A(text); order.append(tag)
    def need(tag):
        idx = max(i for i, x in enumerate(order) if x == tag)
        if idx < state["done"]: return
        cnt = len(order) - 1 - idx
        if cnt > 15: cnt = 15
        A("s_waitcnt lgkmcnt(%d)" % cnt)
        state["done"] = len(order) - cnt
        assert state["done"] > idx
    A("s_waitcnt lgkmcnt(0)")
    stamp(A, timing, 8)
    A("s_barrier")
    stamp(A, timing, 3)
    for b in b_list(0): issue(("B", 0, b), b_read(0, 0, b, 0))
    for a in a_list(0):
        for x in a_reads(0, 0, a): issue(("A", 0, a), x)
    first = set()
    for u, (ph, cl) in enumerate(units):
        buf = u & 1
        nxt = units[u + 1] if u + 1 < len(units) else None
        if u == 4:
            stamp(A, timing, 4)
            A("s_barrier")
            for b in b_list(1): issue(("B", u, b), b_read(1, cl, b, buf))
        if nxt and u + 1 != 4:
            for b in b_list(nxt[0]): issue(("B", u + 1, b), b_read(nxt[0], nxt[1], b, buf ^ 1))
        for a in a_list(ph):
            for b in b_list(ph):
                if a + b > 7: continue
                need(("B", u, b)); need(("A", u, a))
                c = a + b
                acc = v(DC + 4 * c, 4) if c in first else "0"
                first.add(c)
                A("v_mfma_f32_16x16x32_bf16 %s, %s, %s, %s" % (v(DC + 4 * c, 4), v(AF + 4 * a, 4), v(BFS[buf] + 4 * (b & 3), 4), acc))
            if nxt and a in a_list(nxt[0]):
                for x in a_reads(nxt[0], nxt[1], a): issue(("A", u + 1, a), x)
    stamp(A, timing, 5)
    U = 16
    for k in range(4): A("ds_read2_b32 %s, v%d offset0:%d offset1:%d" % (v(U + 2 * k, 2), vU if k < 2 else 13, 128 * (k & 1), 128 * (k & 1) + 2)) if k < 2 else None
    A("v_add_u32 v13, 1024, v%d" % vU)
    for k in range(2, 4): A("ds_read2_b32 %s, v13 offset0:%d offset1:%d" % (v(U + 2 * k, 2), 128 * (k & 1), 128 * (k & 1) + 2))
    A("s_nop 3")
    A("s_cmp_eq_u32 s%d, 0" % sHF)
    A("s_cbranch_scc0 ssm_w1")
    for k in range(4): A("ds_write_b128 v%d, %s offset:%d" % (vES, v(DC + 16 + 4 * k, 4), 1024 * k))
    A("s_branch ssm_w2")
    A.label("ssm_w1")
    for k in range(4): A("ds_write_b128 v%d, %s offset:%d" % (vES, v(DC + 4 * k, 4), 1024 * k))
    A.label("ssm_w2")
    UF = 32
    A("s_waitcnt lgkmcnt(4)")
    for k in range(8):
        A("v_lshlrev_b32 v%d, 16, v%d" % (UF + 2 * k, U + k))
        A("v_and_b32 v%d, 0xffff0000, v%d" % (UF + 2 * k + 1, U + k))
    for r in range(16): A("v_mul_f32 v%d, s%d, v%d" % (UF + r, sDskip, UF + r))
    for k in range(8): A("v_cvt_pk_bf16_f32 v%d, v%d, v%d" % (U + k, UF + 2 * k, UF + 2 * k + 1))
    A("s_waitcnt lgkmcnt(0)")
    A("s_barrier")
    R = 48
    for k in range(4): A("ds_read_b128 %s, v%d offset:%d" % (v(R + 4 * k, 4), vER, 1024 * k))
    for k in range(8):
        A("v_lshlrev_b32 v%d, 16, v%d" % (UF + 2 * k, U + k))
        A("v_and_b32 v%d, 0xffff0000, v%d" % (UF + 2 * k + 1, U + k))
    A("s_cmp_eq_u32 s%d, 0" % sHF)
    A("s_cbranch_scc1 ssm_v1")
    for r in range(16): A("v_mov_b32 v%d, v%d" % (DC + r, DC + 16 + r))
    A.label("ssm_v1")
    for k in range(4):
        A("s_waitcnt lgkmcnt(%d)" % (3 - k))
        for r in range(4): A("v_add_f32 v%d, v%d, v%d" % (DC + 4 * k + r, DC + 4 * k + r, R + 4 * k + r))
        for j in range(2): A("v_cvt_pk_bf16_f32 v%d, v%d, v%d" % (U + 2 * k + j, DC + 4 * k + 2 * j, DC + 4 * k + 2 * j + 1))
        for j in range(2):
            A("v_lshlrev_b32 v%d, 16, v%d" % (DC + 4 * k + 2 * j, U + 2 * k + j))
            A("v_and_b32 v%d, 0xffff0000, v%d" % (DC + 4 * k + 2 * j + 1, U + 2 * k + j))
        for r in range(4): A("v_add_f32 v%d, v%d, v%d" % (DC + 4 * k + r, DC + 4 * k + r, UF + 4 * k + r))
        for j in range(2): A("v_cvt_pk_bf16_f32 v%d, v%d, v%d" % (U + 2 * k + j, DC + 4 * k + 2 * j, DC + 4 * k + 2 * j + 1))
        for j in range(2):
            A("buffer_store_dword v%d, v%d, s[%d:%d], s%d offen offset:%d" % (U + 2 * k + j, vO, SAT, SAT + 3, sOut, 512 * k + 8 * j))
    stamp(A, timing, 6)
    dump_stamps(A, timing, 9, end, 0)
    A("s_branch %s" % end)

def gen_k1(name="k1_kernel", timing=False):
    A = Asm()
    end = name + "_end"
    A("s_cmp_ge_u32 s2, 256")
    A("s_cbranch_scc1 %s" % end)
    stamp(A, timing, 0)
    A("v_lshrrev_b32 v2, 6, v0")
    A("v_and_b32 v%d, 63, v0" % vLane)
    A("v_readfirstlane_b32 s%d, v2" % sW)
    A("s_cmp_lt_u32 s2, 160")
    A("s_cbranch_scc1 %s" % (end if NOSSM else "k1_ssm"))
    if NOQ: A("s_branch %s" % end)
    A("s_cmp_lt_u32 s2, 240")
    A("s_cbranch_scc1 k1_q")
    role_kv(A, end, timing)
    A.label("k1_q")
    role_q(A, end, timing)
    if AUX and not (SSM3 and WOSSM):
        A.label("k1_wo")
        role_wo(A, end)
    A.label("k1_ssm")
    (role_ssm3 if SSM3 else role_ssm2 if SSM2 else role_ssm)(A, end, timing)
    A.label(end)
    A("s_endpgm")
    return dict(name=name, grid=256, block=1024, lds=163840, body=A.text(), vgpr=128)

if __name__ == "__main__":
    import sys
    tm = False
    for a in sys.argv[2:]:
        if a.startswith("t"): tm = int(a[1:]) if len(a) > 1 else True
    for a in sys.argv[2:]:
        if a.startswith("g:"): GMOD = a[2:].replace("+", " ")
    k = gen_k1(timing=tm)
    open(sys.argv[1], "w").write(compose([k]))
```

```python
import sys
from asmlib import *
import k1

WS_WF  = 0x0300000
NWF = 819200
WS_T = 0x1000000

SPIN = 20000
PRIO = "toggle"
OWAIT = True
ROT = True
QSLEEP = 1
FSLEEP = 4
HSLEEP = 2

SLOT = [6, 13, 26, 31] + [s_ for s_ in range(32) if s_ not in (6, 13, 26, 31)]
QA1, QA2 = 98304, 63488
FLG = k1.FL
GO = FLG + 160
WS_QF = 0x02D0000
QFIRST = True
sW, vLane = 6, 1

class Stamps:
    def __init__(self, on): self.on = on; self.n = 0
    def __call__(self, A):
        if self.on:
            assert self.n < 10
            A("s_memrealtime s[%d:%d]" % (40 + 2 * self.n, 41 + 2 * self.n)); self.n += 1

def poll_flags(A, label, sd, st, off=128, n=2):
    A("v_min_u32 v2, %d, v%d" % (n - 1, vLane))
    A("v_lshlrev_b32 v2, 2, v2")
    A("s_mov_b32 s%d, 0" % st)
    A.label(label)
    A("global_load_dword v5, v2, s[%d:%d] offset:%d sc1" % (sd, sd + 1, off))
    A("s_waitcnt vmcnt(0)")
    A("v_cmp_eq_u32 vcc, 1, v5")
    A("s_add_u32 s%d, s%d, 1" % (st, st))
    A("s_nop 3")
    A("s_cmp_eq_u64 vcc, -1")
    A("s_cbranch_scc1 %s_d" % label)
    A("s_cmp_lt_u32 s%d, %d" % (st, SPIN))
    A("s_cbranch_scc0 %s_d" % label)
    A("s_sleep %d" % FSLEEP)
    A("s_branch %s" % label)
    A.label(label + "_d")

def arrive(A, label, sd, st, k, target, vb=3):
    A("v_mov_b32 v2, %d" % (4 * k))
    A("v_mov_b32 v%d, 1" % vb)
    A("s_mov_b64 exec, 1")
    A("global_atomic_add v5, v2, v%d, s[%d:%d] sc0 sc1" % (vb, sd, sd + 1))
    A("s_waitcnt vmcnt(0)")
    A("v_readfirstlane_b32 s%d, v5" % st)
    A("s_cmp_eq_u32 s%d, %d" % (st, target - 1))
    A("s_cbranch_scc0 %s" % label)
    A("global_store_dword v2, v%d, s[%d:%d] offset:128 sc1" % (vb, sd, sd + 1))
    A.label(label)
    A("s_mov_b64 exec, -1")

def vwg(A, dst, t0, t1):
    A("s_and_b32 s%d, s2, 7" % t0)
    A("s_lshl_b32 s%d, s%d, 5" % (t0, t0))
    A("s_lshr_b32 s%d, s2, 6" % t1)
    A("s_lshl_b32 s%d, s%d, 3" % (t1, t1))
    A("s_or_b32 s%d, s%d, s%d" % (t0, t0, t1))
    A("s_bfe_u32 s%d, s2, 0x30003" % t1)
    A("s_or_b32 s%d, s%d, s%d" % (dst, t0, t1))

def omark(A, sV, srdx, parts, t0, t1):
    A("v_lshrrev_b32 v2, 3, v%d" % vLane)
    A("v_lshlrev_b32 v2, 8, v2")
    A("v_and_b32 v3, 7, v%d" % vLane)
    A("v_lshl_add_u32 v2, v3, 4, v2")
    for r in range(4): A("v_mov_b32 v%d, -1" % (4 + r))
    A("s_lshr_b32 s%d, s%d, 1" % (t0, sV))
    A("s_mul_i32 s%d, s%d, 20480" % (t0, t0))
    A("s_and_b32 s%d, s%d, 1" % (t1, sV))
    A("s_lshl_b32 s%d, s%d, 7" % (t1, t1))
    A("s_add_u32 s%d, s%d, s%d" % (t0, t0, t1))

def q_stored(A, sRow0, sN0b, sJ):
    A("s_lshr_b32 s28, s%d, 4" % sRow0)
    A("s_add_u32 s28, s28, s%d" % sJ)
    A("s_lshl_b32 s28, s28, 8")
    A("s_lshr_b32 s29, s%d, 6" % sN0b)
    A("s_add_u32 s28, s28, s29")
    A("s_add_u32 s28, s28, 0x%x" % WS_QF)
    A("v_mov_b32 v2, s28")
    A("v_mov_b32 v3, 1")
    A("s_mov_b64 exec, 1")
    A("s_waitcnt vmcnt(0)")
    A("global_store_dword v2, v3, s[4:5] sc1")
    A("s_mov_b64 exec, -1")

def q_idle(A, end):
    A("s_load_dwordx2 s[4:5], s[0:1], 136")
    A("s_load_dwordx2 s[12:13], s[0:1], 128")
    A("s_sub_u32 s23, s2, 160")
    A("s_and_b32 s20, s23, 15")
    A("s_lshr_b32 s21, s23, 4")
    A("s_lshl_b32 s25, s20, 11")
    A("s_lshl_b32 s24, s21, 2")
    A("s_add_u32 s25, s25, s24")
    A("s_add_u32 s25, s25, 0x%x" % WS_QF)
    A("v_lshlrev_b32 v8, 8, v%d" % vLane)
    A("v_add_u32 v8, s25, v8")
    A("v_mov_b32 v9, 0")
    vwg(A, 26, 27, 28)
    omark(A, 26, 8, None, 27, 28)
    A("s_sub_u32 s24, s%d, 12" % sW)
    A("s_lshl_b32 s28, s24, 11")
    A("s_add_u32 s27, s27, s28")
    A("s_waitcnt lgkmcnt(0)")
    srd(A, 8, 4, WS_O, NQ)
    A("s_cmp_eq_u32 s%d, 12" % sW)
    A("s_cbranch_scc0 q_nz")
    A("s_mov_b64 exec, 0xff")
    A("global_store_dword v8, v9, s[4:5] sc1")
    A("s_mov_b64 exec, -1")
    A.label("q_nz")
    A("s_barrier")
    A("buffer_store_dwordx4 v[4:7], v2, s[8:11], s27 offen sc1")
    A("s_add_u32 s27, s27, %d" % (4 * 2048))
    A("buffer_store_dwordx4 v[4:7], v2, s[8:11], s27 offen sc1")
    A("s_cmp_lt_u32 s24, 2")
    A("s_cbranch_scc0 q_n3")
    A("s_add_u32 s27, s27, %d" % (4 * 2048))
    A("buffer_store_dwordx4 v[4:7], v2, s[8:11], s27 offen sc1")
    A.label("q_n3")
    A("s_barrier")
    A("s_waitcnt vmcnt(0)")
    A("s_barrier")
    A("v_mov_b32 v2, 0")
    A("v_mov_b32 v3, 1")
    A("v_mov_b32 v5, 0")
    A("s_cmp_eq_u32 s%d, 12" % sW)
    A("s_cbranch_scc0 q_na")
    A("s_mov_b64 exec, 1")
    A("global_atomic_add v5, v2, v3, s[12:13] sc0 sc1")
    A("s_mov_b64 exec, -1")
    A.label("q_na")
    for b in range(4, 8): A("s_barrier")
    A("s_waitcnt vmcnt(0)")
    A("v_readfirstlane_b32 s24, v5")
    A("s_cmp_eq_u32 s24, 79")
    A("s_cbranch_scc0 q_ar")
    A("s_mov_b64 exec, 1")
    A("global_store_dword v2, v3, s[12:13] offset:128 sc1")
    A("s_mov_b64 exec, -1")
    A.label("q_ar")
    A("s_barrier")
    A("v_min_u32 v2, 1, v%d" % vLane)
    A("v_lshlrev_b32 v2, 2, v2")
    A("global_load_dword v5, v2, s[12:13] offset:128 sc1")
    A("s_barrier")
    A("s_barrier")
    A("s_waitcnt vmcnt(0)")
    A("v_readfirstlane_b32 s24, v5")
    A("s_cmp_eq_u32 s24, 1")
    A("s_cbranch_scc1 q_fq")
    poll_flags(A, "q_pf1", 12, 24, off=128, n=1)
    A.label("q_fq")
    A("v_min_u32 v2, 1, v%d" % vLane)
    A("v_lshlrev_b32 v2, 2, v2")
    A("global_load_dword v5, v2, s[12:13] offset:128 sc1")
    A("s_barrier")
    poll_flags(A, "q_pf2", 12, 24, off=132, n=1)
    A("s_branch %s" % end)

def kv_tail(A, end):
    A("s_barrier")
    A("s_cmp_eq_u32 s%d, 8" % sW)
    A("s_cbranch_scc0 kv_np")
    A("s_load_dwordx2 s[12:13], s[0:1], 128")
    A("s_waitcnt lgkmcnt(0)")
    arrive(A, "kv_ar", 12, 24, 1, 16)
    poll_flags(A, "kv_pf", 12, 24)
    A.label("kv_np")
    A("s_barrier")

def phase2(A, name, end, force_fallback=False, timing=False):
    st = Stamps(timing)
    def dump():
        if not timing: return
        A("s_waitcnt vmcnt(0) lgkmcnt(0)")
        A("s_memrealtime s[38:39]")
        A("s_lshl_b32 s30, s3, 4")
        A("s_add_u32 s30, s30, s%d" % sW)
        A("s_lshl_b32 s30, s30, 6")
        A("s_add_u32 s30, s30, 0x%x" % WS_T)
        A("v_mov_b32 v2, s30")
        A("s_mov_b64 exec, 1")
        A("v_mov_b32 v3, s100")
        A("global_store_dword v2, v3, s[4:5]")
        for i in range(st.n):
            A("v_mov_b32 v3, s%d" % (40 + 2 * i))
            A("global_store_dword v2, v3, s[4:5] offset:%d" % (4 * (i + 1)))
        A("s_waitcnt lgkmcnt(0)")
        A("v_mov_b32 v3, s38")
        A("global_store_dword v2, v3, s[4:5] offset:%d" % (4 * (st.n + 1)))
        A("s_mov_b64 exec, -1")
    st(A)
    A("s_load_dwordx2 s[4:5], s[0:1], 136")
    A("s_load_dwordx2 s[92:93], s[0:1], 120")
    A("s_load_dwordx2 s[94:95], s[0:1], 128")
    A("s_mov_b32 s3, s2")
    vwg(A, 2, 26, 27)
    SRD_KV, SRD_Q, SRD_X = 8, 12, 16
    SRD_WF, SRD_AT, SRD_G, SRD_OUT = 60, 64, 68, 72
    sG8, sJ8 = 79, 78
    PA = 40960
    A("s_lshr_b32 s%d, s2, 3" % sG8)
    A("s_and_b32 s%d, s2, 7" % sJ8)
    A("s_cmp_ge_u32 s%d, 8" % sW)
    A("s_cbranch_scc1 %s_proj" % name)

    aK1, aK2, aV = 2, 3, 10
    Q1, Q2 = 4, 8
    S = [16, 32]; O = 48; P = [64, 72]
    K1 = [80, 84]; K2 = [88, 90]; V = [92, 100]
    T0, T1, T2, T3 = 108, 109, 110, 111
    sMASK = 24
    A("v_and_b32 v%d, 31, v%d" % (T2, vLane))
    A("v_lshrrev_b32 v%d, 5, v%d" % (T3, vLane))
    A("v_lshlrev_b32 v%d, 4, v%d" % (aK1, vLane))
    A("v_lshlrev_b32 v%d, 3, v%d" % (aK2, T2))
    A("v_mul_u32_u24 v%d, 320, v%d" % (aV, T3))
    A("v_lshl_add_u32 v%d, v%d, 4, v%d" % (aV, T2, aV))
    A("s_lshl_b32 s26, s%d, 10" % sW)
    A("s_add_u32 s26, s26, %d" % QA1)
    A("v_add_u32 v16, s26, v%d" % aK1)
    A("s_lshl_b32 s26, s%d, 8" % sW)
    A("s_add_u32 s26, s26, %d" % QA2)
    A("v_add_u32 v17, s26, v%d" % aK2)
    A("s_mov_b32 s%d, 0x000fffff" % sMASK)
    A("s_mov_b32 s%d, 0x000fffff" % (sMASK + 1))
    A("v_cmp_eq_u32 vcc, 20, v%d" % T2)
    A("v_mov_b32 v19, 0x3f803f80")
    A("v_mov_b32 v%d, 0" % T0)
    A("v_cndmask_b32 v%d, v%d, v19, vcc" % (T0, T0))
    for r in range(16):
        A("v_mov_b32 v%d, v%d" % (V[0] + r, T0))
    for r in range(16):
        A("v_mov_b32 v%d, 0" % (O + r))
    A("v_mov_b32 v%d, 0" % Q2); A("v_mov_b32 v%d, 0" % (Q2 + 1))
    A("s_cmp_ge_u32 s%d, 4" % sW)
    A("s_cselect_b64 vcc, -1, 0")
    base = {"K": 0, "V": 0}
    def rebase(kind, j):
        ad = SLOT[j >> 1] * 5120 + (j & 1) * 2560
        lo = base[kind]
        if not (0 <= ad - lo <= 65535 - 2560):
            nb = ad // 32768 * 32768
            for r in ((aK1, aK2) if kind == "K" else (aV,)):
                d = nb - lo
                if d >= 0: A("v_add_u32 v%d, %d, v%d" % (r, d, r))
                else: A("v_subrev_u32 v%d, %d, v%d" % (r, -d, r))
            base[kind] = nb
        return ad - base[kind]
    def readK(j):
        o = rebase("K", j)
        A("ds_read_b128 %s, v%d offset:%d" % (v(K1[j & 1], 4), aK1, o))
        A("ds_read_b64 %s, v%d offset:%d" % (v(K2[j & 1], 2), aK2, o + 1024))
    def readV(j):
        o = rebase("V", j)
        A("s_mov_b64 exec, s[%d:%d]" % (sMASK, sMASK + 1))
        A("ds_read_b128 %s, v%d offset:%d" % (v(V[j & 1], 4), aV, o + 1280))
        A("ds_read_b128 %s, v%d offset:%d" % (v(V[j & 1] + 4, 4), aV, o + 1280 + 640))
        A("s_mov_b64 exec, -1")
    def qk(j):
        return ["v_mfma_f32_32x32x16_bf16 %s, %s, %s, 0" % (v(S[j & 1], 16), v(K1[j & 1], 4), v(Q1, 4)),
                "v_mfma_f32_32x32x8_bf16 %s, %s, %s, %s" % (v(S[j & 1], 16), v(K2[j & 1], 2), v(Q2, 2), v(S[j & 1], 16))]
    def pv(j):
        return ["v_mfma_f32_32x32x16_bf16 %s, %s, %s, %s" % (v(O, 16), v(V[j & 1], 4), v(P[j & 1], 4), v(O, 16)),
                "v_mfma_f32_32x32x16_bf16 %s, %s, %s, %s" % (v(O, 16), v(V[j & 1] + 4, 4), v(P[j & 1] + 4, 4), v(O, 16))]
    A("s_waitcnt lgkmcnt(0)")
    st(A)
    A("s_barrier")
    st(A)
    A("ds_read_b128 %s, v16" % v(Q1, 4))
    A("s_mov_b32 exec_hi, 0")
    A("ds_read_b64 %s, v17" % v(Q2, 2))
    A("s_mov_b64 exec, -1")
    readK(0); readK(1)
    srd(A, SRD_KV, 4, WS_KV, NKV)
    srd(A, SRD_X, 4, WS_O, NQ)
    srd(A, SRD_AT, 4, WS_AT, NQ)
    srd(A, SRD_G, 4, WS_G, 8192)
    srd(A, SRD_OUT, 92, 0, NQ)
    A("s_waitcnt lgkmcnt(2)")
    for x in qk(0): A(x)
    A("s_nop 7")
    A("s_nop 3")
    jB2, jB3 = 6, 22
    for j in range(64):
        if j == jB2:
            A("s_waitcnt vmcnt(0)")
        if j == jB2 or j == jB3:
            A("s_barrier")
        if PRIO == "toggle" and j % 4 == 0:
            A("s_setprio 0")
        n = 0
        if j + 2 < 64:
            readK(j + 2); n += 2
        readV(j); n += 2
        A("s_waitcnt lgkmcnt(%d)" % n)
        M = (qk(j + 1) if j + 1 < 64 else [None, None]) + (pv(j - 1) if j >= 1 else [None, None])
        Sc, Pc = S[j & 1], P[j & 1]
        E = ["v_exp_f32 v%d, v%d" % (Sc + r, Sc + r) for r in range(16)]
        C = ["v_cvt_pk_bf16_f32 v%d, v%d, v%d" % (Pc + q, Sc + 2 * q, Sc + 2 * q + 1) for q in range(8)]
        for g in range(4):
            if M[g]: A(M[g])
            for r in range(4): A(E[4 * g + r])
            if g >= 1:
                A(C[2 * (g - 1)]); A(C[2 * (g - 1) + 1])
        A(C[6]); A(C[7])
        if PRIO == "toggle" and j % 4 == 0:
            lb = A.newlabel(name + "_p")
            A("s_cbranch_vccz %s" % lb)
            A("s_setprio 1")
            A.label(lb)
    A("s_waitcnt lgkmcnt(0)")
    A("s_nop 1")
    for x in pv(63): A(x)
    A("s_setprio 0")
    st(A)
    T = O; R = S[0]
    A("s_mov_b32 s32, 0")
    norm = name + "_norm"; fb = name + "_fb"; stl = name + "_st"
    A("v_and_b32 v%d, 7, v%d" % (R + 6, vLane))
    A("v_lshlrev_b32 v%d, 4, v%d" % (R + 6, R + 6))
    A("v_bfe_u32 v%d, v%d, 4, 1" % (R + 14, vLane))
    A("v_mul_u32_u24 v%d, %d, v%d" % (R + 14, 5 * 256, R + 14))
    A("v_add_u32 v%d, v%d, v%d" % (R + 6, R + 6, R + 14))
    A("v_bfe_u32 v%d, v%d, 3, 1" % (R + 14, vLane))
    A("v_lshl_add_u32 v%d, v%d, 9, v%d" % (R + 7, R + 14, R + 6))
    A("v_lshl_add_u32 v%d, v%d, 8, v%d" % (R + 7, T3, R + 7))
    A("v_lshl_add_u32 v%d, v%d, 3, v%d" % (R + 6, R + 14, R + 6))
    A("v_lshlrev_b32 v%d, 30, v%d" % (R + 14, T3))
    A("v_add3_u32 v%d, v%d, v%d, %d" % (R + 6, R + 6, R + 14, 0))
    A("s_lshr_b32 s27, s2, 1")
    A("s_mul_i32 s27, s27, 20480")
    A("s_and_b32 s26, s2, 1")
    A("s_lshl_b32 s26, s26, 7")
    A("s_add_u32 s27, s27, s26")
    A("s_mul_i32 s26, s%d, 2560" % sW)
    A("s_add_u32 s27, s27, s26")
    A("s_nop 7")
    A("s_nop 1")
    A.label(norm)
    A("v_mov_b32 v%d, v%d" % (R + 0, T + 8))
    A("v_mov_b32 v%d, v%d" % (R + 1, T + 8))
    A("s_nop 1")
    A("v_permlane32_swap_b32 v%d, v%d" % (R + 0, R + 1))
    A("s_cmp_eq_u32 s32, 1")
    A("s_cbranch_scc1 %s" % stl)
    A("v_max3_f32 v%d, |v%d|, |v%d|, |v%d|" % (R + 2, T + 0, T + 1, T + 2))
    A("v_max3_f32 v%d, |v%d|, |v%d|, |v%d|" % (R + 3, T + 3, T + 4, T + 5))
    A("v_max3_f32 v%d, |v%d|, |v%d|, |v%d|" % (R + 4, T + 6, T + 7, T + 8))
    A("v_max3_f32 v%d, |v%d|, |v%d|, |v%d|" % (R + 5, T + 9, T + 10, T + 11))
    A("v_max3_f32 v%d, v%d, v%d, v%d" % (R + 2, R + 2, R + 3, R + 4))
    A("v_max_f32 v%d, v%d, v%d" % (R + 2, R + 2, R + 5))
    A("v_mov_b32 v%d, 0x%x" % (R + 3, (127 - 30) << 23))
    A("v_mov_b32 v%d, 0x%x" % (R + 4, (127 + 30) << 23))
    A("v_mov_b32 v%d, 0x%x" % (R + 5, (127 + 120) << 23))
    A("v_cmp_ge_f32 s[34:35], v%d, v%d" % (R + 1, R + 3))
    A("v_cmp_le_f32 s[36:37], v%d, v%d" % (R + 1, R + 4))
    A("v_cmp_le_f32 s[38:39], v%d, v%d" % (R + 2, R + 5))
    A("s_nop 1")
    A("s_and_b64 s[34:35], s[34:35], s[36:37]")
    A("s_and_b64 s[34:35], s[34:35], s[38:39]")
    if force_fallback:
        A("s_mov_b64 s[34:35], 0")
    A("s_cmp_eq_u64 s[34:35], -1")
    A("s_cbranch_scc0 %s" % fb)
    A.label(stl)
    A("v_rcp_f32 v%d, v%d" % (R + 1, R + 1))
    A("s_nop 0")
    for r in range(12):
        A("v_mul_f32 v%d, v%d, v%d" % (T + r, T + r, R + 1))
    for j in range(6):
        A("v_cvt_pk_bf16_f32 v%d, v%d, v%d" % (R + 8 + j, T + 2 * j, T + 2 * j + 1))
    A("buffer_store_dwordx4 %s, v%d, s[%d:%d], s27 offen sc1" % (v(R + 8, 4), R + 7, SRD_X, SRD_X + 3))
    A("buffer_store_dwordx2 %s, v%d, s[%d:%d], s27 offen offset:1024 sc1" % (v(R + 12, 2), R + 6, SRD_X, SRD_X + 3))
    st(A)
    if OWAIT: A("s_waitcnt vmcnt(0)")
    A("s_barrier")
    st(A)
    sLH, sRP = 7, 20
    sL0, sN0 = 77, 76
    sLT = [80, 81, 82]; sNT = [83, 84, 85]; sTAU = [86, 87, 88]
    AV, GV, OMG = 64, 76, 80
    vAo, vC4, vPR = 2, 3, 10
    A("s_lshr_b32 s%d, s%d, 2" % (sLH, sW))
    A("s_and_b32 s%d, s%d, 3" % (sRP, sW))
    A("s_mul_i32 s%d, s%d, 80" % (sN0, sJ8))
    A("s_lshl_b32 s%d, s%d, 6" % (sL0, sG8))
    A("s_lshl_b32 s30, s%d, 5" % sLH)
    A("s_add_u32 s%d, s%d, s30" % (sL0, sL0))
    for m in range(3):
        A("s_add_u32 s%d, s%d, %d" % (sTAU[m], sRP, 4 * m))
        if m == 2:
            A("s_sub_u32 s30, s%d, 4" % sTAU[m])
            A("s_cmp_lt_u32 s%d, 10" % sTAU[m])
            A("s_cselect_b32 s%d, s%d, s30" % (sTAU[m], sTAU[m]))
        A("s_cmp_ge_u32 s%d, 5" % sTAU[m])
        A("s_cselect_b32 s%d, 1, 0" % sLT[m])
        A("s_mul_i32 s30, s%d, 5" % sLT[m])
        A("s_sub_u32 s%d, s%d, s30" % (sNT[m], sTAU[m]))
    A("v_lshrrev_b32 v%d, 4, v%d" % (vAo, vLane))
    A("v_and_b32 v%d, 15, v%d" % (vC4, vLane))
    A("v_mul_u32_u24 v8, 1280, v%d" % vC4)
    A("v_lshl_add_u32 v8, v%d, 3, v8" % vAo)
    A("v_lshlrev_b32 v%d, 14, v%d" % (vAo, vAo))
    A("v_lshl_add_u32 v%d, v%d, 1, v%d" % (vAo, vC4, vAo))
    A("v_lshlrev_b32 v%d, 2, v%d" % (vC4, vC4))
    for m in range(3):
        A("s_lshl_b32 s31, s%d, 4" % sLT[m])
        A("s_add_u32 s31, s31, s%d" % sL0)
        A("s_lshl_b32 s32, s%d, 4" % sNT[m])
        A("s_add_u32 s32, s32, s%d" % sN0)
        A("s_mul_i32 s33, s31, 1280")
        A("s_lshl_b32 s30, s32, 1")
        A("s_add_u32 s%d, s33, s30" % (36 + m))
        A("s_lshl_b32 s32, s32, 12")
        A("s_lshl_b32 s33, s31, 1")
        A("s_add_u32 s32, s32, s33")
        for r in range(4):
            A("s_add_u32 s30, s32, %d" % (r * 4096))
            A("buffer_load_short_d16_hi v%d, v%d, s[%d:%d], s30 offen sc1" % (AV + 4 * m + r, vAo, SRD_AT, SRD_AT + 3))
        A("s_lshl_b32 s33, s31, 2")
        A("buffer_load_dword v%d, v%d, s[%d:%d], s33 offen sc1" % (GV + m, vC4, SRD_G, SRD_G + 3))
    A("s_mul_i32 s30, s%d, 40960" % sLH)
    A("s_add_u32 s30, s30, %d" % PA)
    A("v_lshlrev_b32 v%d, 4, v%d" % (vPR, vLane))
    A("v_add_u32 v%d, s30, v%d" % (vPR, vPR))
    for m in range(3):
        A("s_lshl_b32 s30, s%d, 12" % sTAU[m])
        A("v_add_u32 v%d, s30, v%d" % (4 + m, vPR))
    A("s_waitcnt vmcnt(0)")
    for r in range(12):
        A("v_and_b32 v%d, 0xffff0000, v%d" % (AV + r, AV + r))
    TT = 84
    for m in range(3):
        A("v_sub_f32 v%d, 1.0, v%d" % (OMG + m, GV + m))
        for r in range(4):
            A("v_mul_f32 v%d, v%d, v%d" % (AV + 4 * m + r, AV + 4 * m + r, GV + m))
    for m in range(3):
        A("v_cvt_pk_bf16_f32 v%d, v%d, v%d" % (OMG + m, OMG + m, OMG + m))
        for j in range(2):
            A("v_cvt_pk_bf16_f32 v%d, v%d, v%d" % (TT + 2 * m + j, AV + 4 * m + 2 * j, AV + 4 * m + 2 * j + 1))
    for m in range(3):
        A("v_and_b32 v%d, 0xffff0000, v%d" % (OMG + m, OMG + m))
        for j in range(2):
            A("v_lshlrev_b32 v%d, 16, v%d" % (AV + 4 * m + 2 * j, TT + 2 * m + j))
            A("v_and_b32 v%d, 0xffff0000, v%d" % (AV + 4 * m + 2 * j + 1, TT + 2 * m + j))
    st(A)
    A("s_barrier")
    st(A)
    PR = 16
    for m in range(3):
        for src in range(4):
            A("ds_read_b128 %s, v%d offset:%d" % (v(PR + 16 * m + 4 * src, 4), 4 + m, src * 1024))
    for m in range(3):
        b = PR + 16 * m
        A("s_waitcnt lgkmcnt(%d)" % (8 - 4 * m))
        for r in range(4): A("v_add_f32 v%d, v%d, v%d" % (b + r, b + r, b + 4 + r))
        for r in range(4): A("v_add_f32 v%d, v%d, v%d" % (b + 8 + r, b + 8 + r, b + 12 + r))
        for r in range(4): A("v_add_f32 v%d, v%d, v%d" % (b + r, b + r, b + 8 + r))
        for j in range(2): A("v_cvt_pk_bf16_f32 v%d, v%d, v%d" % (b + 4 + j, b + 2 * j, b + 2 * j + 1))
        for j in range(2):
            A("v_lshlrev_b32 v%d, 16, v%d" % (b + 2 * j, b + 4 + j))
            A("v_and_b32 v%d, 0xffff0000, v%d" % (b + 2 * j + 1, b + 4 + j))
        for r in range(4): A("v_mul_f32 v%d, v%d, v%d" % (b + r, b + r, OMG + m))
        for j in range(2): A("v_cvt_pk_bf16_f32 v%d, v%d, v%d" % (b + 4 + j, b + 2 * j, b + 2 * j + 1))
        for j in range(2):
            A("v_lshlrev_b32 v%d, 16, v%d" % (b + 2 * j, b + 4 + j))
            A("v_and_b32 v%d, 0xffff0000, v%d" % (b + 2 * j + 1, b + 4 + j))
        for r in range(4): A("v_add_f32 v%d, v%d, v%d" % (b + r, b + r, AV + 4 * m + r))
        for j in range(2): A("v_cvt_pk_bf16_f32 v%d, v%d, v%d" % (b + 4 + j, b + 2 * j, b + 2 * j + 1))
        if m == 2:
            A("s_cmp_ge_u32 s%d, 2" % sRP)
            A("s_cbranch_scc1 %s_ns" % name)
        A("buffer_store_dwordx2 %s, v8, s[%d:%d], s%d offen" % (v(b + 4, 2), SRD_OUT, SRD_OUT + 3, 36 + m))
    A.label(name + "_ns")
    st(A)
    dump()
    A("s_branch %s" % end)

    A.label(fb)
    FK1, FK2, FV = K1[0], K2[0], V[0]
    FS = S[1]; FM = 112
    FP = P[0]
    A("v_lshlrev_b32 v%d, 4, v%d" % (aK1, vLane))
    A("v_lshlrev_b32 v%d, 3, v%d" % (aK2, T2))
    A("v_mul_u32_u24 v%d, 320, v%d" % (aV, T3))
    A("v_lshl_add_u32 v%d, v%d, 4, v%d" % (aV, T2, aV))
    A("v_cmp_gt_u32 vcc, 20, v%d" % T2)
    A("v_mov_b32 v%d, 0x40000000" % (R + 0))
    A("s_nop 1")
    A("v_cndmask_b32 v%d, v%d, v%d, vcc" % (aV, R + 0, aV))
    A("v_mov_b32 v%d, 0xff800000" % (R + 0))
    A("s_mov_b32 s33, 0")
    f1 = name + "_f1"
    A.label(f1)
    A("buffer_load_dwordx4 %s, v%d, s[%d:%d], s33 offen" % (v(FK1, 4), aK1, SRD_KV, SRD_KV + 3))
    A("buffer_load_dwordx2 %s, v%d, s[%d:%d], s33 offen offset:1024" % (v(FK2, 2), aK2, SRD_KV, SRD_KV + 3))
    A("s_waitcnt vmcnt(0)")
    A("v_mfma_f32_32x32x16_bf16 %s, %s, %s, 0" % (v(FS, 16), v(FK1, 4), v(Q1, 4)))
    A("v_mfma_f32_32x32x8_bf16 %s, %s, %s, %s" % (v(FS, 16), v(FK2, 2), v(Q2, 2), v(FS, 16)))
    A("s_nop 7")
    A("s_nop 7")
    for r in range(0, 16, 2):
        A("v_max3_f32 v%d, v%d, v%d, v%d" % (R + 0, R + 0, FS + r, FS + r + 1))
    A("s_add_u32 s33, s33, 2560")
    A("s_cmp_lt_u32 s33, %d" % NKV)
    A("s_cbranch_scc1 %s" % f1)
    A("v_mov_b32 v%d, v%d" % (R + 1, R + 0))
    A("s_nop 1")
    A("v_permlane32_swap_b32 v%d, v%d" % (R + 0, R + 1))
    A("s_nop 1")
    A("v_max_f32 v%d, v%d, v%d" % (R + 0, R + 0, R + 1))
    for r in range(16):
        A("v_mul_f32 v%d, -1.0, v%d" % (FM + r, R + 0))
    for r in range(16):
        A("v_mov_b32 v%d, 0" % (T + r))
    A("s_mov_b32 s33, 0")
    f2 = name + "_f2"
    A.label(f2)
    A("buffer_load_dwordx4 %s, v%d, s[%d:%d], s33 offen" % (v(FK1, 4), aK1, SRD_KV, SRD_KV + 3))
    A("buffer_load_dwordx2 %s, v%d, s[%d:%d], s33 offen offset:1024" % (v(FK2, 2), aK2, SRD_KV, SRD_KV + 3))
    A("buffer_load_dwordx4 %s, v%d, s[%d:%d], s33 offen offset:1280" % (v(FV, 4), aV, SRD_KV, SRD_KV + 3))
    A("buffer_load_dwordx4 %s, v%d, s[%d:%d], s33 offen offset:1920" % (v(FV + 4, 4), aV, SRD_KV, SRD_KV + 3))
    A("s_waitcnt vmcnt(0)")
    A("v_mfma_f32_32x32x16_bf16 %s, %s, %s, %s" % (v(FS, 16), v(FK1, 4), v(Q1, 4), v(FM, 16)))
    A("v_mfma_f32_32x32x8_bf16 %s, %s, %s, %s" % (v(FS, 16), v(FK2, 2), v(Q2, 2), v(FS, 16)))
    for r in range(8):
        A("v_or_b32 v%d, v%d, v%d" % (FV + r, FV + r, T0))
    A("s_nop 7")
    A("s_nop 7")
    for r in range(16):
        A("v_exp_f32 v%d, v%d" % (FS + r, FS + r))
    A("s_nop 0")
    for j in range(8):
        A("v_cvt_pk_bf16_f32 v%d, v%d, v%d" % (FP + j, FS + 2 * j, FS + 2 * j + 1))
    A("s_nop 1")
    A("v_mfma_f32_32x32x16_bf16 %s, %s, %s, %s" % (v(T, 16), v(FV, 4), v(FP, 4), v(T, 16)))
    A("v_mfma_f32_32x32x16_bf16 %s, %s, %s, %s" % (v(T, 16), v(FV + 4, 4), v(FP + 4, 4), v(T, 16)))
    A("s_add_u32 s33, s33, 2560")
    A("s_cmp_lt_u32 s33, %d" % NKV)
    A("s_cbranch_scc1 %s" % f2)
    A("s_nop 7")
    A("s_nop 7")
    A("s_mov_b32 s32, 1")
    A("s_branch %s" % norm)

    A.label(name + "_proj")
    st.n = 1
    sP, sKQ, sL2 = 20, 21, 22
    vL16, vPW, vWL = 0, 3, 12
    ACC = [4, 56]; XF, WF = 16, 64
    A("s_sub_u32 s%d, s%d, 8" % (sP, sW))
    A("s_and_b32 s%d, s%d, 3" % (sKQ, sP))
    A("s_lshr_b32 s%d, s%d, 2" % (sL2, sP))
    A("v_lshlrev_b32 v%d, 4, v%d" % (vL16, vLane))
    A("s_waitcnt lgkmcnt(0)")
    srd(A, SRD_KV, 4, WS_KV, NKV)
    srd(A, SRD_X, 4, WS_O, NQ)
    srd(A, SRD_Q, 4, WS_Q, NQ)
    A("s_cmp_ge_u32 s3, 160")
    A("s_cselect_b32 s26, 1, 0")
    A("s_cmp_lt_u32 s3, 240")
    A("s_cselect_b32 s26, s26, 0")
    A("s_cmp_eq_u32 s26, 1")
    A("s_cbranch_scc1 p_go")
    omark(A, 2, SRD_X, None, 27, 26)
    A("s_lshl_b32 s26, s%d, 11" % sP)
    A("s_add_u32 s27, s27, s26")
    A("buffer_store_dwordx4 v[4:7], v2, s[%d:%d], s27 offen sc1" % (SRD_X, SRD_X + 3))
    A("s_cmp_lt_u32 s%d, 2" % sP)
    A("s_cbranch_scc0 p_np2")
    A("s_add_u32 s27, s27, %d" % (8 * 2048))
    A("buffer_store_dwordx4 v[4:7], v2, s[%d:%d], s27 offen sc1" % (SRD_X, SRD_X + 3))
    A.label("p_np2")
    A("s_cmp_lt_u32 s3, 160")
    A("s_cbranch_scc0 p_go")
    A("s_cmp_eq_u32 s%d, 1" % sP)
    A("s_cbranch_scc0 p_nw")
    poll_flags(A, "p_pf", 94, 26)
    A("v_mov_b32 v2, %d" % GO)
    A("v_mov_b32 v3, 4")
    A("s_mov_b64 exec, 1")
    A("ds_write_b32 v2, v3")
    A("s_mov_b64 exec, -1")
    A.label("p_nw")
    A("v_mov_b32 v4, %d" % GO)
    A("v_lshlrev_b32 v5, 2, v%d" % vLane)
    A("v_add_u32 v5, %d, v5" % (FLG + 64))
    A("v_cmp_gt_u32 vcc, 8, v%d" % vLane)
    A("s_nop 1")
    A("v_cndmask_b32 v4, v4, v5, vcc")
    k1.flag_wait(A, 4, 0, "p_fk", vt=2)
    A.label("p_go")
    st(A)
    sRot, sU, sM = 23, 24, 25
    if ROT:
        A("s_lshl_b32 s%d, s%d, 2" % (sRot, sJ8))
        A("s_add_u32 s%d, s%d, s%d" % (sRot, sRot, sG8))
    else:
        A("s_mov_b32 s%d, 0" % sRot)
    def dma_unit(ubase):
        ent = [SLOT[u] if u >= 0 else 0 for u in range(ubase, min(ubase + 8, 32))]
        tc = sum(e << (5 * k) for k, e in enumerate(ent))
        A("s_mov_b32 s26, 0x%x" % (tc & 0xffffffff))
        A("s_mov_b32 s27, 0x%x" % (tc >> 32))
        A("s_mul_i32 s28, s%d, 5" % sP)
        A("s_lshr_b64 s[26:27], s[26:27], s28")
        A("s_and_b32 s26, s26, 31")
        A("s_mul_i32 s26, s26, 5120")
        A("s_add_u32 s28, s%d, %d" % (sP, ubase + 32))
        A("s_add_u32 s28, s28, s%d" % sRot)
        A("s_and_b32 s28, s28, 31")
        A("s_mul_i32 s28, s28, 5120")
        A("s_mov_b32 m0, s26")
        A("s_add_u32 s29, s28, 4096")
        for i in range(4):
            A("buffer_load_dwordx4 v%d, s[%d:%d], s28 offen offset:%d lds" % (vL16, SRD_KV, SRD_KV + 3, i * 1024))
        A("s_add_u32 m0, s26, 4096")
        A("s_nop 0")
        A("buffer_load_dwordx4 v%d, s[%d:%d], s29 offen lds" % (vL16, SRD_KV, SRD_KV + 3))
    A("s_cmp_ge_u32 s%d, 4" % sP)
    A("s_cbranch_scc0 p_ne")
    dma_unit(-4)
    A.label("p_ne")
    A("s_lshr_b32 s26, s2, 1")
    A("s_lshl_b32 s26, s26, 8")
    A("s_add_u32 s26, s26, 0x%x" % WS_QF)
    A("v_min_u32 v2, 4, v%d" % vLane)
    A("v_lshlrev_b32 v2, 2, v2")
    A("v_add_u32 v2, s26, v2")
    A("s_mov_b32 s26, 0")
    A.label("p_hl")
    A("global_load_dword v5, v2, s[4:5] sc1")
    A("s_waitcnt vmcnt(0)")
    A("v_cmp_eq_u32 vcc, 1, v5")
    A("s_add_u32 s26, s26, 1")
    A("s_nop 3")
    A("s_cmp_eq_u64 vcc, -1")
    A("s_cbranch_scc1 p_q")
    A("s_cmp_lt_u32 s26, %d" % SPIN)
    A("s_cbranch_scc0 p_q")
    A("s_sleep %d" % HSLEEP)
    A("s_branch p_hl")
    A.label("p_q")
    st(A)
    T2, T3 = 10, 11
    qa, qb, Q1, Q2, vC = 14, 15, 4, 8, 13
    A("v_lshrrev_b32 v%d, 5, v%d" % (T3, vLane))
    A("v_and_b32 v18, 7, v%d" % vLane)
    A("v_bfe_u32 v19, v%d, 3, 2" % vLane)
    A("v_mul_u32_u24 v%d, 1280, v18" % qa)
    A("v_mul_u32_u24 v19, 40, v19")
    A("v_add_u32 v%d, v%d, v19" % (qa, qa))
    A("v_lshlrev_b32 v%d, 30, v%d" % (qb, T3))
    A("v_add3_u32 v%d, v%d, v%d, 32" % (qb, qb, qa))
    A("v_lshl_add_u32 v%d, v%d, 4, v%d" % (qa, T3, qa))
    A("s_mul_i32 s27, s2, %d" % (8 * 1280))
    A("s_mul_i32 s26, s%d, 160" % sP)
    A("s_add_u32 s27, s27, s26")
    A("s_lshl_b32 s26, s%d, 10" % sP)
    A("s_add_u32 s26, s26, %d" % QA1)
    A("v_add_u32 v16, s26, v%d" % vL16)
    A("s_lshl_b32 s26, s%d, 8" % sP)
    A("s_add_u32 s26, s26, %d" % QA2)
    A("v_lshlrev_b32 v17, 3, v%d" % vLane)
    A("v_add_u32 v17, s26, v17")
    A("buffer_load_dwordx4 %s, v%d, s[%d:%d], s27 offen sc1" % (v(Q1, 4), qa, SRD_Q, SRD_Q + 3))
    A("buffer_load_dwordx2 %s, v%d, s[%d:%d], s27 offen sc1" % (v(Q2, 2), qb, SRD_Q, SRD_Q + 3))
    sX0, sX1, sWF0, sWL = 34, 35, 36, 37
    A("s_lshl_b32 s30, s%d, 2" % sG8)
    A("s_lshl_b32 s31, s%d, 1" % sL2)
    A("s_add_u32 s30, s30, s31")
    A("s_mul_i32 s%d, s30, 20480" % sX0)
    A("s_mul_i32 s31, s%d, 5120" % sKQ)
    A("s_add_u32 s%d, s%d, s31" % (sX0, sX0))
    A("s_add_u32 s%d, s%d, 20480" % (sX1, sX0))
    A("s_add_u32 s38, s%d, 4096" % sX0)
    A("s_add_u32 s39, s%d, 4096" % sX1)
    A("s_mul_i32 s%d, s%d, 102400" % (sWF0, sJ8))
    A("s_mul_i32 s31, s%d, 5120" % sKQ)
    A("s_add_u32 s%d, s%d, s31" % (sWF0, sWF0))
    A("s_mul_i32 s31, s%d, 20480" % sL2)
    A("s_add_u32 s%d, s%d, s31" % (sWL, sWF0))
    A("s_add_u32 s%d, s%d, %d" % (sWL, sWL, 3 * 20480))
    A("s_mul_i32 s30, s%d, 40960" % sL2)
    A("s_lshl_b32 s31, s%d, 10" % sKQ)
    A("s_add_u32 s31, s31, s30")
    A("s_add_u32 s31, s31, %d" % PA)
    A("v_add_u32 v%d, s31, v%d" % (vPW, vL16))
    A("s_mul_i32 s31, s%d, 10240" % sKQ)
    A("v_add_u32 v%d, s31, v%d" % (vWL, vL16))
    srd(A, SRD_WF, 4, WS_WF, NWF)
    A("s_waitcnt vmcnt(0)")
    A("ds_write_b128 v16, %s" % v(Q1, 4))
    A("s_mov_b32 exec_hi, 0")
    A("ds_write_b64 v17, %s" % v(Q2, 2))
    A("s_mov_b64 exec, -1")
    A("s_waitcnt lgkmcnt(0)")
    st(A)
    A("s_barrier")
    st(A)
    dma_unit(4)
    A("s_waitcnt vmcnt(0)")
    A("s_barrier")
    A("s_cmp_eq_u32 s%d, 4" % sP)
    A("s_cbranch_scc0 p_nd")
    arrive(A, "p_ar", 94, 30, 2, 256, vb=10)
    A.label("p_nd")
    dma_unit(12)
    dma_unit(20)
    A("s_cmp_lt_u32 s%d, 4" % sP)
    A("s_cbranch_scc0 p_nl")
    dma_unit(28)
    A.label("p_nl")
    A("s_waitcnt vmcnt(0)")
    A("s_barrier")
    st(A)
    poll_flags(A, "p_dl", 94, 30, off=136, n=1)
    for t in range(3):
        A("s_add_u32 s30, s%d, %d" % (sWF0, t * 20480))
        A("s_add_u32 s31, s30, 4096")
        for i in range(5):
            d = WF + (t * 5 + i) * 4
            if i < 4: A("buffer_load_dwordx4 %s, v%d, s[%d:%d], s30 offen offset:%d" % (v(d, 4), vL16, SRD_WF, SRD_WF + 3, i * 1024))
            else: A("buffer_load_dwordx4 %s, v%d, s[%d:%d], s31 offen" % (v(d, 4), vL16, SRD_WF, SRD_WF + 3))
    A("s_waitcnt vmcnt(0)")
    A("s_mul_i32 s30, s%d, 10240" % sKQ)
    A("s_mul_i32 s31, s%d, 5120" % sL2)
    A("s_add_u32 s30, s30, s31")
    A("s_mov_b32 m0, s30")
    A("s_nop 0")
    for i in range(4):
        A("buffer_load_dwordx4 v%d, s[%d:%d], s%d offen offset:%d lds" % (vL16, SRD_WF, SRD_WF + 3, sWL, i * 1024))
    A("s_add_u32 m0, s30, 4096")
    A("s_add_u32 s31, s%d, 4096" % sWL)
    A("buffer_load_dwordx4 v%d, s[%d:%d], s31 offen lds" % (vL16, SRD_WF, SRD_WF + 3))
    A("s_waitcnt vmcnt(0)")
    A("s_mov_b32 s30, 0")
    A("s_barrier")
    st(A)
    A("s_setprio 3")
    pl = name + "_pl"
    A.label(pl)
    for i in range(5):
        for lt2 in range(2):
            d = XF + (lt2 * 5 + i) * 4
            if i < 4: A("buffer_load_dwordx4 %s, v%d, s[%d:%d], s%d offen offset:%d sc1" % (v(d, 4), vL16, SRD_X, SRD_X + 3, sX1 if lt2 else sX0, i * 1024))
            else: A("buffer_load_dwordx4 %s, v%d, s[%d:%d], s%d offen sc1" % (v(d, 4), vL16, SRD_X, SRD_X + 3, 39 if lt2 else 38))
    def mm(t, slot):
        out = []
        for i in range(5):
            for lt2 in range(2):
                a = ACC[t & 1] + 4 * lt2
                out.append("v_mfma_f32_16x16x32_bf16 %s, %s, %s, %s" % (v(a, 4), v(WF + (slot * 5 + i) * 4, 4), v(XF + (lt2 * 5 + i) * 4, 4), "0" if i == 0 else v(a, 4)))
        return out
    m0_ = mm(0, 0)
    vC = 13
    for n in range(10):
        i, lt2 = divmod(n, 2)
        d = XF + (lt2 * 5 + i) * 4
        A("s_waitcnt vmcnt(%d)" % (9 - n))
        A(m0_[n])
        if n == 0:
            A("v_max3_u32 v%d, v%d, v%d, v%d" % (vC, d, d + 1, d + 2))
            A("v_max_u32 v%d, v%d, v%d" % (vC, vC, d + 3))
        else:
            A("v_max3_u32 v%d, v%d, v%d, v%d" % (vC, vC, d, d + 1))
            A("v_max3_u32 v%d, v%d, v%d, v%d" % (vC, vC, d + 2, d + 3))
    A("v_cmp_eq_u32 vcc, -1, v%d" % vC)
    A("s_add_u32 s30, s30, 1")
    A("s_nop 3")
    A("s_cmp_eq_u64 vcc, 0")
    A("s_cbranch_scc1 %s_d" % pl)
    A("s_cmp_lt_u32 s30, %d" % SPIN)
    A("s_cbranch_scc1 %s" % pl)
    A.label(pl + "_d")
    st(A)
    def wfl(tp, slot):
        for i in range(5):
            A("ds_read_b128 %s, v%d offset:%d" % (v(WF + (slot * 5 + i) * 4, 4), vWL, tp * 5120 + i * 1024))
    def pw(t):
        for lt2 in range(2):
            A("ds_write_b128 v%d, %s offset:%d" % (vPW, v(ACC[t & 1] + 4 * lt2, 4), (lt2 * 5 + t) * 4096))
    wfl(0, 0)
    for x in mm(1, 1): A(x)
    pw(0)
    wfl(1, 1)
    for x in mm(2, 2): A(x)
    pw(1)
    A("s_waitcnt lgkmcnt(9)")
    for x in mm(3, 0): A(x)
    pw(2)
    A("s_waitcnt lgkmcnt(4)")
    for x in mm(4, 1): A(x)
    pw(3)
    A("s_nop 7")
    pw(4)
    A("s_waitcnt lgkmcnt(0)")
    st(A)
    A("s_barrier")
    dump()
    A("s_branch %s" % end)

def gen_kf(name, force_fallback=False, timing=False):
    k1.FUSED = True; k1.SC1 = " sc1"; k1.OPERM = True
    k1.HOOK["q_idle"] = q_idle; k1.HOOK["kv_tail"] = kv_tail; k1.HOOK["q_stored"] = q_stored
    A = Asm()
    end = name + "_end"
    ph2 = name + "_ph2"
    A("s_cmp_ge_u32 s2, 256")
    A("s_cbranch_scc1 %s" % end)
    if timing: A("s_memrealtime s[100:101]")
    if QFIRST:
        A("s_add_u32 s2, s2, 160")
        A("s_and_b32 s2, s2, 255")
    A("v_lshrrev_b32 v2, 6, v0")
    A("v_and_b32 v%d, 63, v0" % vLane)
    A("v_readfirstlane_b32 s%d, v2" % sW)
    A("s_cmp_lt_u32 s2, 160")
    A("s_cbranch_scc1 k1_ssm")
    A("s_cmp_lt_u32 s2, 240")
    A("s_cbranch_scc1 k1_q")
    k1.role_kv(A, ph2, False)
    A.label("k1_q")
    k1.role_q(A, ph2, False)
    A.label("k1_ssm")
    k1.role_ssm3(A, ph2, False)
    A.label(ph2)
    phase2(A, name, end, force_fallback, timing)
    A.label(end)
    A("s_endpgm")
    return dict(name=name, grid=256, block=1024, lds=163840, body=A.text(), vgpr=128)

NAME = "gated_mix__ssm_conv_s4__grouped_kv_mqa__prompt"
if __name__ == "__main__":
    k1.QINIT = 2
    for a in sys.argv[2:]:
        if "=" in a:
            k_, v_ = a.split("=")
            if k_.startswith("K1_"): setattr(k1, k_[3:], eval(v_))
            else: globals()[k_] = eval(v_)
    kk = gen_kf(NAME + "_kernel", force_fallback="fb" in sys.argv, timing="t" in sys.argv)
    hdr = open("cdna_kernels/%s.s.ref" % NAME).read().split("; Override launch")[0]
    open(sys.argv[1], "w").write(hdr + compose([kk]))
```

```python
from asmlib import *
import struct, math

def f32bits(x):
    return struct.unpack("<I", struct.pack("<f", x))[0]

GMOD = ""
FUSED = False
SC1 = ""
HOOK = {}
STG2 = 36864
AMP = None
V3 = True
LPRIO = 3
B0 = True
QINIT = 5
QSTEP = 1
GDELAY = 0
QROT = True
QORD = [[0,2,1,3,4,6,5,7,8,9],[2,0,3,1,6,4,7,5,9,8]]
QORD_ROT = [[0,1,2,3,4,5,6,7,8,9],[5,6,7,8,9,0,1,2,3,4]]
WDELAY = 0
LOG2E = 1.4426950408889634
CSCALE = (20 ** -0.5) * LOG2E

sW = 6
vLane = 1

RTS = False
def stamp(A, timing, n):
    if RTS:
        A("s_memrealtime s[%d:%d]" % (60 + 2 * n, 61 + 2 * n)); return
    if timing is not False: A("s_memtime s[%d:%d]" % (60 + 2 * n, 61 + 2 * n))

def rts_clear(A):
    if RTS:
        for n in range(11): A("s_mov_b32 s%d, 0" % (60 + 2 * n))

def rts_dump(A, vt=2):
    if not RTS: return
    A("s_load_dwordx2 s[4:5], s[0:1], 136")
    A("s_memrealtime s[82:83]")
    A("s_waitcnt lgkmcnt(0)")
    A("s_lshl_b32 s98, s2, 4")
    A("s_add_u32 s98, s98, s%d" % sW)
    A("s_lshl_b32 s98, s98, 6")
    A("s_add_u32 s98, s98, 0x1080000")
    A("v_mov_b32 v%d, s98" % vt)
    A("s_mov_b64 exec, 1")
    for i in range(12):
        A("v_mov_b32 v%d, s%d" % (vt + 1, 60 + 2 * i))
        A("global_store_dword v%d, v%d, s[4:5] offset:%d" % (vt, vt + 1, 4 * i))
    A("s_mov_b64 exec, -1")

def dump_stamps(A, timing, nst, end, wg, vt=2):
    if RTS: return
    if timing is False or (timing is not True and (timing >= 160) != (wg >= 160)): return
    if timing is not True: wg = timing
    if AMP is not None:
        a_, b_, w_ = AMP
        if b_ >= nst: return
        A("s_waitcnt lgkmcnt(0)")
        A("s_cmp_eq_u32 s2, %d" % wg)
        A("s_cbranch_scc0 %s" % end)
        A("s_cmp_eq_u32 s%d, %d" % (sW, w_))
        A("s_cbranch_scc0 %s" % end)
        A("s_load_dwordx2 s[40:41], s[0:1], 136")
        A("v_mov_b32 v%d, 0x2C8000" % vt)
        A("s_sub_u32 s51, s%d, s%d" % (60 + 2 * b_, 60 + 2 * a_))
        A("v_mov_b32 v%d, s51" % (vt + 1))
        A("s_waitcnt lgkmcnt(0)")
        A("global_store_dword v%d, v%d, s[40:41]" % (vt, vt + 1))
        return
    A("s_waitcnt lgkmcnt(0)")
    A("s_cmp_eq_u32 s2, %d" % wg)
    A("s_cbranch_scc0 %s" % end)
    A("s_load_dwordx2 s[40:41], s[0:1], 128")
    A("s_and_b32 s50, s%d, 3" % sW)
    A("s_cmp_eq_u32 s50, 0")
    A("s_cbranch_scc0 %s" % end)
    A("s_lshl_b32 s50, s%d, 4" % sW)
    A("v_mov_b32 v%d, s50" % vt)
    A("s_waitcnt lgkmcnt(0)")
    for i in range(1, nst):
        A("s_sub_u32 s51, s%d, s60" % (60 + 2 * i))
        A("v_mov_b32 v%d, s51" % (vt + 1))
        A("global_store_dword v%d, v%d, s[40:41] offset:%d" % (vt, vt + 1, 4 * (i - 1)))

def x_dma_setup(A, vX, t0, t1):
    for e in range(2):
        A("v_lshrrev_b32 v%d, 3, v%d" % (t0, vLane))
        if e: A("v_add_u32 v%d, 8, v%d" % (t0, t0))
        A("v_mul_u32_u24 v%d, 1280, v%d" % (vX + e, t0))
        A("v_lshrrev_b32 v%d, 4, v%d" % (t0, vLane))
        if e: A("v_add_u32 v%d, 4, v%d" % (t0, t0))
        A("v_and_b32 v%d, 7, v%d" % (t1, vLane))
        A("v_xor_b32 v%d, v%d, v%d" % (t0, t0, t1))
        A("v_lshl_add_u32 v%d, v%d, 4, v%d" % (vX + e, t0, vX + e))

def x_read_setup(A, vXr, sRowOff128, xbase, t0, t1, t2):
    A("v_and_b32 v%d, 31, v%d" % (t0, vLane))
    A("v_bfe_u32 v%d, v%d, 1, 3" % (t1, vLane))
    A("v_lshrrev_b32 v%d, 5, v%d" % (t2, vLane))
    A("v_xor_b32 v%d, v%d, v%d" % (t1, t1, t2))
    A("v_lshlrev_b32 v%d, 7, v%d" % (t0, t0))
    A("v_add_u32 v%d, s%d, v%d" % (t0, sRowOff128, t0))
    if xbase: A("v_add_u32 v%d, %d, v%d" % (t0, xbase, t0))
    for s_ in range(4):
        A("v_xor_b32 v%d, %d, v%d" % (t2, 2 * s_, t1))
        A("v_lshl_add_u32 v%d, v%d, 4, v%d" % (vXr + s_, t2, t0))

def role_q(A, end, timing):
    D = 5; BUF = 32768; WOFF = 16384
    SX, SWT, SO = 8, 12, 16
    sRow0, sN0b, sJ = 20, 21, 22
    t0, t1, t2 = 2, 3, 4
    A("s_cmp_ge_u32 s%d, 12" % sW)
    A("s_cbranch_scc1 %s" % ("q_poison" if (OPERM or FUSED) else end))
    A("s_load_dwordx2 s[32:33], s[0:1], 0")
    A("s_load_dwordx2 s[34:35], s[0:1], 80")
    A("s_load_dwordx2 s[4:5], s[0:1], 136")
    A("s_sub_u32 s23, s2, 160")
    A("s_and_b32 s%d, s23, 15" % sRow0)
    A("s_lshl_b32 s%d, s%d, 7" % (sRow0, sRow0))
    A("s_lshr_b32 s%d, s23, 4" % sN0b)
    A("s_lshl_b32 s%d, s%d, 8" % (sN0b, sN0b))
    A("s_cmp_lt_u32 s%d, 4" % sW)
    A("s_cbranch_scc1 q_comp")
    vX, vWd = 8, 10
    A("s_sub_u32 s%d, s%d, 4" % (sJ, sW))
    x_dma_setup(A, vX, t0, t1)
    A("v_lshrrev_b32 v%d, 4, v%d" % (t0, vLane))
    A("v_mul_u32_u24 v%d, 1280, v%d" % (vWd, t0))
    A("v_and_b32 v%d, 1, v%d" % (t1, t0))
    A("v_lshlrev_b32 v%d, 1, v%d" % (t1, t1))
    A("v_lshrrev_b32 v%d, 1, v%d" % (t0, t0))
    A("v_lshl_add_u32 v%d, v%d, 3, v%d" % (t1, t0, t1))
    A("v_and_b32 v%d, 15, v%d" % (t0, vLane))
    A("v_xor_b32 v%d, v%d, v%d" % (t0, t0, t1))
    A("v_lshl_add_u32 v%d, v%d, 4, v%d" % (vWd, t0, vWd))
    sXg, sWg, sM0 = 24, 25, 26
    A("s_lshl_b32 s27, s%d, 4" % sJ)
    A("s_add_u32 s27, s27, s%d" % sRow0)
    A("s_mul_i32 s%d, s27, 1280" % sXg)
    A("s_mul_i32 s%d, s%d, %d" % (sWg, sJ, 8 * 1280))
    A("s_add_u32 s%d, s%d, s%d" % (sWg, sWg, sN0b))
    A("s_lshl_b32 s%d, s%d, 11" % (sM0, sJ))
    A("s_waitcnt lgkmcnt(0)")
    srd(A, SX, 32, 0, NQ)
    srd(A, SWT, 34, 0, 640 * 1280)
    srd(A, SO, 4, WS_Q, NQ)
    issued = []
    QOFF = QORD
    if QROT:
        A("s_lshr_b32 s36, s23, 4")
        A("s_lshl_b32 s36, s36, 1")
        A("s_bfe_u32 s37, s23, 0x10003")
    def dma(c):
        b = (c % D) * BUF
        if QROT:
            A("s_cmp_eq_u32 s37, 1")
            A("s_cselect_b32 s29, %d, %d" % (QOFF[1][c], QOFF[0][c]))
            A("s_add_u32 s29, s29, s36")
            A("s_cmp_ge_u32 s29, 10")
            A("s_cselect_b32 s30, 10, 0")
            A("s_sub_u32 s29, s29, s30")
            A("s_lshl_b32 s30, s29, 7")
            A("s_add_u32 s30, s30, s%d" % sXg)
            A("s_mul_i32 s31, s29, %d" % (64 * 1280))
            A("s_add_u32 s31, s31, s%d" % sWg)
            for e in range(2):
                A("s_add_u32 m0, s%d, %d" % (sM0, b + e * 1024))
                A("s_nop 0")
                A("buffer_load_dwordx4 v%d, s[%d:%d], s30 offen lds" % (vX + e, SX, SX + 3))
                issued.append(c)
            for e in range(2):
                A("s_add_u32 m0, s%d, %d" % (sM0, b + WOFF + e * 1024))
                A("s_add_u32 s28, s31, %d" % (4 * e * 1280))
                A("buffer_load_dwordx4 v%d, s[%d:%d], s28 offen lds" % (vWd, SWT, SWT + 3))
                issued.append(c)
            return
        for e in range(2):
            A("s_add_u32 m0, s%d, %d" % (sM0, b + e * 1024))
            A("s_add_u32 s28, s%d, %d" % (sXg, c * 128))
            A("buffer_load_dwordx4 v%d, s[%d:%d], s28 offen lds" % (vX + e, SX, SX + 3))
            issued.append(c)
        for e in range(2):
            A("s_add_u32 m0, s%d, %d" % (sM0, b + WOFF + e * 1024))
            A("s_add_u32 s28, s%d, %d" % (sWg, (64 * c + 4 * e) * 1280))
            A("buffer_load_dwordx4 v%d, s[%d:%d], s28 offen lds" % (vWd, SWT, SWT + 3))
            issued.append(c)
    for c in range(QINIT):
        dma(c)
    vSl, vSg = 12, 13
    A("v_lshrrev_b32 v%d, 4, v%d" % (t0, vLane))
    A("v_and_b32 v%d, 15, v%d" % (t1, vLane))
    A("v_mul_u32_u24 v%d, 272, v%d" % (vSl, t0))
    A("v_lshl_add_u32 v%d, v%d, 4, v%d" % (vSl, t1, vSl))
    A("s_mul_i32 s27, s%d, %d" % (sJ, 16 * 272))
    if FUSED:
        A("s_cmp_ge_u32 s%d, 4" % sJ)
        A("s_cselect_b32 s28, %d, 0" % (STG2 - 64 * 272))
        A("s_add_u32 s27, s27, s28")
    A("v_add_u32 v%d, s27, v%d" % (vSl, vSl))
    A("v_mul_u32_u24 v%d, 1280, v%d" % (vSg, t0))
    A("v_lshl_add_u32 v%d, v%d, 4, v%d" % (vSg, t1, vSg))
    for c in range(10):
        last = max(i for i, x in enumerate(issued) if x == c)
        A("s_waitcnt vmcnt(%d)" % (len(issued) - 1 - last))
        if RTS and c in (0, 1, 3, 5, 7, 9): stamp(A, timing, 4 + (0, 1, 3, 5, 7, 9).index(c))
        A("s_barrier")
        nxt = max(issued) + 1
        k_ = 0
        while nxt <= 9 and nxt - D + 2 <= c and k_ < QSTEP:
            dma(nxt); nxt += 1; k_ += 1
    A("s_barrier")
    if RTS: stamp(A, timing, 2)
    for e in range(4):
        A("ds_read_b128 %s, v%d offset:%d" % (v(16 + 4 * e, 4), vSl, e * 4 * 272))
    A("s_add_u32 s28, s%d, s%d" % (sXg, sN0b))
    for e in range(4):
        A("s_waitcnt lgkmcnt(%d)" % (3 - e))
        A("buffer_store_dwordx4 %s, v%d, s[%d:%d], s28 offen offset:%d%s" % (v(16 + 4 * e, 4), vSg, SO, SO + 3, 0, SC1) if e == 0 else
          "s_add_u32 s29, s28, %d\nbuffer_store_dwordx4 %s, v%d, s[%d:%d], s29 offen%s" % (e * 4 * 1280, v(16 + 4 * e, 4), vSg, SO, SO + 3, SC1))
        if e: A("s_nop 0")
    stamp(A, timing, 3)
    dump_stamps(A, timing, 4, end, 160)
    if FUSED: HOOK["q_stored"](A, sRow0, sN0b, sJ)
    A("s_branch %s" % end)
    if FUSED:
        A.label("q_poison")
        HOOK["q_idle"](A, end)
    elif OPERM:
        A.label("q_poison")
        A("s_load_dwordx2 s[4:5], s[0:1], 136")
        A("s_sub_u32 s23, s2, 160")
        A("s_lshl_b32 s23, s23, 2")
        A("s_add_u32 s23, s23, s%d" % sW)
        A("s_sub_u32 s23, s23, 12")
        A("s_lshl_b32 s23, s23, 13")
        A("v_lshlrev_b32 v2, 4, v%d" % vLane)
        for r in range(4): A("v_mov_b32 v%d, -1" % (4 + r))
        A("s_waitcnt lgkmcnt(0)")
        srd(A, 8, 4, WS_O, NQ)
        for e in range(8):
            if e == 4: A("s_add_u32 s23, s23, 4096")
            A("buffer_store_dwordx4 v[4:7], v2, s[8:11], s23 offen offset:%d" % ((e & 3) * 1024))
        A("s_branch %s" % end)
    A.label("q_comp")
    vXr, vWr = 8, 12
    XF = [[16, 20], [24, 28]]; WF = [[32, 36], [40, 44]]
    ACC = 64
    A("s_and_b32 s24, s%d, 1" % sW)
    A("s_lshl_b32 s24, s24, 13")
    x_read_setup(A, vXr, 24, 0, t0, t1, t2)
    A("v_lshrrev_b32 v%d, 5, v%d" % (t0, vLane))
    A("v_bfe_u32 v%d, v%d, 2, 2" % (t1, vLane))
    A("v_lshl_add_u32 v%d, v%d, 3, v%d" % (t0, t0, t1))
    A("v_lshlrev_b32 v%d, 8, v%d" % (t0, t0))
    A("v_bfe_u32 v%d, v%d, 1, 1" % (t2, vLane))
    A("v_lshl_add_u32 v%d, v%d, 3, v%d" % (t0, t2, t0))
    A("v_add_u32 v%d, %d, v%d" % (t0, WOFF, t0))
    A("v_and_b32 v%d, 1, v%d" % (t2, vLane))
    A("v_lshlrev_b32 v%d, 2, v%d" % (t2, t2))
    A("v_bfe_u32 v5, v%d, 4, 1" % vLane)
    A("v_or_b32 v%d, v%d, v5" % (t2, t2))
    A("s_lshr_b32 s25, s%d, 1" % sW)
    A("s_lshl_b32 s25, s25, 3")
    A("v_or_b32 v%d, s25, v%d" % (t2, t2))
    A("v_and_b32 v5, 1, v%d" % t1)
    A("v_lshlrev_b32 v5, 1, v5")
    A("v_xor_b32 v%d, v%d, v5" % (t2, t2))
    A("v_lshrrev_b32 v5, 1, v%d" % t1)
    A("v_lshlrev_b32 v5, 3, v5")
    A("v_xor_b32 v%d, v%d, v5" % (t2, t2))
    A("v_lshl_add_u32 v%d, v%d, 4, v%d" % (vWr, t2, t0))
    A("v_xor_b32 v%d, 2, v%d" % (t2, t2))
    A("v_lshl_add_u32 v%d, v%d, 4, v%d" % (vWr + 1, t2, t0))
    vSt = 14
    A("v_and_b32 v%d, 31, v%d" % (t0, vLane))
    A("v_mul_u32_u24 v%d, 272, v%d" % (vSt, t0))
    A("v_lshrrev_b32 v%d, 5, v%d" % (t0, vLane))
    A("v_lshl_add_u32 v%d, v%d, 6, v%d" % (vSt, t0, vSt))
    A("s_and_b32 s24, s%d, 1" % sW)
    A("s_mul_i32 s24, s24, %d" % (STG2 if FUSED else 64 * 272))
    A("s_lshl_b32 s25, s25, 4")
    A("s_add_u32 s24, s24, s25")
    A("v_add_u32 v%d, s24, v%d" % (vSt, vSt))
    bias = [0]
    def set_bias(nb):
        d = nb - bias[0]
        if d:
            for r in list(range(vXr, vXr + 4)) + [vWr, vWr + 1]:
                A("v_add_u32 v%d, %d, v%d" % (r, d & 0xffffffff, r))
        bias[0] = nb
    def reads(S):
        c, s_ = divmod(S, 4); fb = S & 1
        b = (c % D) * BUF
        set_bias(b // 65536 * 65536)
        o = b - bias[0]
        for lg in range(2):
            A("ds_read_b128 %s, v%d offset:%d" % (v(XF[fb][lg], 4), vXr + s_, o + lg * 4096))
        for t in range(2):
            for h in range(2):
                A("ds_read_b64_tr_b16 %s, v%d offset:%d" % (v(WF[fb][t] + 2 * h, 2), vWr + t, o + s_ * 4096 + h * 1024))
    def mfma(S, i):
        fb = S & 1; lg, t = divmod(i, 2)
        a = ACC + 16 * (2 * lg + t)
        A("v_mfma_f32_32x32x16_bf16 %s, %s, %s, %s" % (v(a, 16), v(WF[fb][t], 4), v(XF[fb][lg], 4), "0" if S == 0 else v(a, 16)))
    A("s_barrier")
    stamp(A, timing, 1)
    qst = [4]
    reads(0)
    for S in range(40):
        c, s_ = divmod(S, 4)
        if S + 1 < 40:
            reads(S + 1)
            A("s_waitcnt lgkmcnt(6)")
        else:
            A("s_waitcnt lgkmcnt(0)")
        for i in range(4):
            mfma(S, i)
            if i == 0 and s_ == 2 and c + 1 < 10:
                A("s_barrier")
                if QST and c in (0, 2, 4, 6, 8): stamp(A, timing, qst[0]); qst[0] += 1
    stamp(A, timing, 2)
    A("s_nop 7")
    A("s_nop 3")
    for lg in range(2):
        for t in range(2):
            a = ACC + 16 * (2 * lg + t)
            for j in range(8):
                A("v_cvt_pk_bf16_f32 v%d, v%d, v%d" % (a + j, a + 2 * j, a + 2 * j + 1))
            for h in range(2):
                A("ds_write_b128 v%d, %s offset:%d" % (vSt, v(a + 4 * h, 4), lg * 32 * 272 + 32 * t + 16 * h))
    A("s_waitcnt lgkmcnt(0)")
    A("s_barrier")
    stamp(A, timing, 3)
    dump_stamps(A, timing, 9 if QST else 4, end, 160)
    A("s_branch %s" % end)

def role_kv(A, end, timing):
    D = 5; XB = 65536; BUF = 16384
    SX, SK, SV, SO = 8, 12, 16, 20
    sRow0, sJ = 24, 25
    t0, t1, t2 = 2, 3, 4
    A("s_cmp_ge_u32 s%d, 12" % sW)
    A("s_cbranch_scc1 %s" % ("kv_idle" if FUSED else "k1_wo" if AUX and not (SSM3 and WOSSM) else end))
    A("s_load_dwordx2 s[32:33], s[0:1], 0")
    A("s_load_dwordx4 s[36:39], s[0:1], 88")
    A("s_load_dwordx2 s[4:5], s[0:1], 136")
    A("s_sub_u32 s%d, s2, 240" % sRow0)
    A("s_lshl_b32 s%d, s%d, 7" % (sRow0, sRow0))
    A("s_cmp_lt_u32 s%d, 4" % sW)
    A("s_cbranch_scc1 kv_comp")
    vX, vL16 = 8, 10
    A("s_sub_u32 s%d, s%d, 4" % (sJ, sW))
    x_dma_setup(A, vX, t0, t1)
    A("v_lshlrev_b32 v%d, 4, v%d" % (vL16, vLane))
    sXg, sM0 = 26, 27
    A("s_lshl_b32 s28, s%d, 4" % sJ)
    A("s_add_u32 s28, s28, s%d" % sRow0)
    A("s_mul_i32 s%d, s28, 1280" % sXg)
    A("s_lshl_b32 s%d, s%d, 11" % (sM0, sJ))
    A("s_waitcnt lgkmcnt(0)")
    srd(A, SX, 32, 0, NQ)
    srd(A, SK, 36, 0, 25600)
    srd(A, SV, 38, 0, 25600)
    issued = []
    def dma(c):
        b = XB + (c % D) * BUF
        for e in range(2):
            A("s_add_u32 m0, s%d, %d" % (sM0, b + e * 1024))
            A("s_add_u32 s29, s%d, %d" % (sXg, c * 128))
            A("buffer_load_dwordx4 v%d, s[%d:%d], s29 offen lds" % (vX + e, SX, SX + 3))
            issued.append(c)
    A("s_lshl_b32 s30, s%d, 10" % sJ)
    for e in range(4):
        for (sr, base) in ((SK, 0), (SV, 32768)):
            A("s_add_u32 s29, s30, %d" % (e * 8192))
            A("s_add_u32 m0, s29, %d" % base)
            A("s_nop 0")
            A("buffer_load_dwordx4 v%d, s[%d:%d], s29 offen lds" % (vL16, sr, sr + 3))
            issued.append(0)
    for c in range(D):
        dma(c)
    for c in range(10):
        last = max(i for i, x in enumerate(issued) if x == c)
        A("s_waitcnt vmcnt(%d)" % (len(issued) - 1 - last))
        if RTS and c in (0, 1, 3, 5, 7, 9): stamp(A, timing, 4 + (0, 1, 3, 5, 7, 9).index(c))
        A("s_barrier")
        if c >= 2 and c - 2 + D <= 9:
            dma(c - 2 + D)
    if FUSED:
        A("s_branch kv_tail")
        A.label("kv_idle")
        for c in range(10): A("s_barrier")
        A.label("kv_tail")
        HOOK["kv_tail"](A, end)
    A("s_branch %s" % end)
    A.label("kv_comp")
    vXr, vWr = 8, 12
    XF = [16, 20]; KF = [24, 28]; VF = [32, 36]
    DK, DV = 64, 80
    A("s_lshl_b32 s26, s%d, 12" % sW)
    x_read_setup(A, vXr, 26, XB, t0, t1, t2)
    set_off = XB
    A("v_lshrrev_b32 v%d, 5, v%d" % (t0, vLane))
    A("v_bfe_u32 v%d, v%d, 2, 2" % (t1, vLane))
    A("v_lshl_add_u32 v%d, v%d, 3, v%d" % (t0, t0, t1))
    A("v_mul_u32_u24 v%d, 40, v%d" % (vWr, t0))
    A("v_bfe_u32 v%d, v%d, 4, 1" % (t0, vLane))
    A("v_lshl_add_u32 v%d, v%d, 5, v%d" % (vWr, t0, vWr))
    A("v_and_b32 v%d, 3, v%d" % (t0, vLane))
    A("v_lshl_add_u32 v%d, v%d, 3, v%d" % (vWr, t0, vWr))
    def reads(S):
        c, s_ = divmod(S, 4); fb = S & 1
        o = (c % D) * BUF
        if o >= 65536:
            A("v_add_u32 v%d, %d, v%d" % (t0, 65536, vXr + s_))
            A("ds_read_b128 %s, v%d offset:%d" % (v(XF[fb], 4), t0, o - 65536))
        else:
            A("ds_read_b128 %s, v%d offset:%d" % (v(XF[fb], 4), vXr + s_, o))
        for h in range(2):
            A("ds_read_b64_tr_b16 %s, v%d offset:%d" % (v(KF[fb] + 2 * h, 2), vWr, S * 640 + h * 160))
        for h in range(2):
            A("ds_read_b64_tr_b16 %s, v%d offset:%d" % (v(VF[fb] + 2 * h, 2), vWr, 32768 + S * 640 + h * 160))
    A("s_barrier")
    reads(0)
    for S in range(40):
        c, s_ = divmod(S, 4); fb = S & 1
        if S + 1 < 40:
            reads(S + 1)
            A("s_waitcnt lgkmcnt(5)")
        else:
            A("s_waitcnt lgkmcnt(0)")
        A("v_mfma_f32_32x32x16_bf16 %s, %s, %s, %s" % (v(DK, 16), v(KF[fb], 4), v(XF[fb], 4), "0" if S == 0 else v(DK, 16)))
        if s_ == 2 and c + 1 < 10:
            A("s_barrier")
        A("v_mfma_f32_32x32x16_bf16 %s, %s, %s, %s" % (v(DV, 16), v(XF[fb], 4), v(VF[fb], 4), "0" if S == 0 else v(DV, 16)))
    if RTS: stamp(A, timing, 2)
    A("s_waitcnt lgkmcnt(0)")
    srd(A, SO, 4, WS_KV, NKV)
    A("s_lshr_b32 s26, s%d, 5" % sRow0)
    A("s_add_u32 s26, s26, s%d" % sW)
    A("s_mul_i32 s26, s26, 2560")
    vK1, vK2, vV = 8, 9, 10
    A("v_and_b32 v%d, 31, v%d" % (t0, vLane))
    A("v_lshrrev_b32 v%d, 5, v%d" % (t1, vLane))
    A("v_lshlrev_b32 v%d, 4, v%d" % (vK1, t0))
    A("v_lshl_add_u32 v%d, v%d, 3, v%d" % (vK1, t1, vK1))
    A("v_lshlrev_b32 v%d, 30, v%d" % (vK2, t1))
    A("v_lshl_add_u32 v%d, v%d, 3, v%d" % (vK2, t0, vK2))
    A("v_mul_u32_u24 v%d, 320, v%d" % (vV, t1))
    A("v_lshl_add_u32 v%d, v%d, 4, v%d" % (vV, t0, vV))
    A("v_cmp_gt_u32 vcc, 20, v%d" % t0)
    A("v_mov_b32 v%d, 0x40000000" % t2)
    A("s_nop 1")
    A("v_cndmask_b32 v%d, v%d, v%d, vcc" % (vV, t2, vV))
    A("s_nop 7")
    for j in range(6):
        A("v_cvt_pk_bf16_f32 v%d, v%d, v%d" % (16 + j, DK + 2 * j, DK + 2 * j + 1))
    for j in range(6):
        A("v_lshlrev_b32 v%d, 16, v%d" % (DK + 2 * j, 16 + j))
        A("v_and_b32 v%d, 0xffff0000, v%d" % (DK + 2 * j + 1, 16 + j))
    A("s_mov_b32 s27, 0x%x" % f32bits(CSCALE))
    for r in range(12):
        A("v_mul_f32 v%d, s27, v%d" % (DK + r, DK + r))
    for j in range(6):
        A("v_cvt_pk_bf16_f32 v%d, v%d, v%d" % (16 + j, DK + 2 * j, DK + 2 * j + 1))
    for j in range(8):
        A("v_cvt_pk_bf16_f32 v%d, v%d, v%d" % (24 + j, DV + 2 * j, DV + 2 * j + 1))
    A("buffer_store_dwordx2 %s, v%d, s[%d:%d], s26 offen%s" % (v(16, 2), vK1, SO, SO + 3, SC1))
    A("buffer_store_dwordx2 %s, v%d, s[%d:%d], s26 offen offset:512%s" % (v(18, 2), vK1, SO, SO + 3, SC1))
    A("buffer_store_dwordx2 %s, v%d, s[%d:%d], s26 offen offset:1024%s" % (v(20, 2), vK2, SO, SO + 3, SC1))
    A("buffer_store_dwordx4 %s, v%d, s[%d:%d], s26 offen offset:1280%s" % (v(24, 4), vV, SO, SO + 3, SC1))
    A("buffer_store_dwordx4 %s, v%d, s[%d:%d], s26 offen offset:1920%s" % (v(28, 4), vV, SO, SO + 3, SC1))
    if FUSED:
        A("s_waitcnt vmcnt(0)")
        if RTS: stamp(A, timing, 3)
        A("s_branch kv_tail")
    A("s_branch %s" % end)

AUX = True
WS_WF  = 0x0300000
WS_CNT = 0x02C0000
NWF = 819200

def gate_row(A, X, XU, WU, SG, vZero, sOff):
    for q in range(5):
        A("v_lshlrev_b32 v%d, 16, v%d" % (XU + 2 * q, X + q))
        A("v_and_b32 v%d, 0xffff0000, v%d" % (XU + 2 * q + 1, X + q))
    for q in range(10):
        A("v_mul_f32 v%d, v%d, v%d" % (XU + q, XU + q, WU + q))
    for q in range(5):
        A("v_cvt_pk_bf16_f32 v%d, v%d, v%d" % (X + q, XU + 2 * q, XU + 2 * q + 1))
    for q in range(5):
        A("v_lshlrev_b32 v%d, 16, v%d" % (XU + 2 * q, X + q))
        A("v_and_b32 v%d, 0xffff0000, v%d" % (XU + 2 * q + 1, X + q))
    for q in range(5):
        A("v_add_f32 v%d, v%d, v%d" % (XU + q, XU + q, XU + 5 + q))
    A("v_add_f32 v%d, v%d, v%d" % (XU, XU, XU + 1))
    A("v_add_f32 v%d, v%d, v%d" % (XU + 2, XU + 2, XU + 3))
    A("v_add_f32 v%d, v%d, v%d" % (XU, XU, XU + 4))
    A("v_add_f32 v%d, v%d, v%d" % (XU, XU, XU + 2))
    for ctl in ("row_shr:1", "row_shr:2", "row_shr:4", "row_shr:8"):
        A("s_nop 1")
        A("v_add_f32_dpp v%d, v%d, v%d %s row_mask:0xf bank_mask:0xf bound_ctrl:0" % (XU, XU, XU, ctl))
    A("s_nop 1")
    A("v_add_f32_dpp v%d, v%d, v%d row_bcast:15 row_mask:0xa bank_mask:0xf" % (XU, XU, XU))
    A("s_nop 1")
    A("v_add_f32_dpp v%d, v%d, v%d row_bcast:31 row_mask:0xc bank_mask:0xf" % (XU, XU, XU))
    A("v_cvt_pk_bf16_f32 v%d, v%d, v%d" % (XU, XU, XU))
    A("v_lshlrev_b32 v%d, 16, v%d" % (XU, XU))
    A("v_mul_f32 v%d, 0xbfb8aa3b, v%d" % (XU, XU))
    A("v_exp_f32 v%d, v%d" % (XU, XU))
    A("s_nop 0")
    A("v_add_f32 v%d, 1.0, v%d" % (XU, XU))
    A("v_rcp_f32 v%d, v%d" % (XU, XU))
    A("s_nop 0")
    A("v_cvt_pk_bf16_f32 v%d, v%d, v%d" % (XU, XU, XU))
    A("v_lshlrev_b32 v%d, 16, v%d" % (X, XU))
    A("s_mov_b32 exec_lo, 0")
    A("s_mov_b32 exec_hi, 0x80000000")
    A("buffer_store_dword v%d, v%d, s[%d:%d], s%d offen%s" % (X, vZero, SG, SG + 3, sOff, SC1))
    A("s_mov_b64 exec, -1")

def role_wo(A, end):
    SWO, SWF, SC = 8, 12, 16
    A("s_load_dwordx2 s[32:33], s[0:1], 104")
    A("s_load_dwordx2 s[4:5], s[0:1], 136")
    A("s_sub_u32 s20, s2, 240")
    A("s_lshl_b32 s20, s20, 2")
    A("s_add_u32 s20, s20, s%d" % sW)
    A("s_sub_u32 s20, s20, 12")
    A("v_lshrrev_b32 v2, 4, v%d" % vLane)
    A("v_and_b32 v3, 15, v%d" % vLane)
    A("v_mul_u32_u24 v4, %d, v2" % (8 * 1280))
    A("v_lshl_add_u32 v4, v3, 4, v4")
    A("v_lshrrev_b32 v5, 1, v3")
    A("v_mul_u32_u24 v5, 20480, v5")
    A("v_lshl_add_u32 v5, v2, 8, v5")
    A("v_and_b32 v6, 1, v3")
    A("v_lshl_add_u32 v5, v6, 7, v5")
    A("v_lshlrev_b32 v6, 7, v%d" % vLane)
    A("v_mov_b32 v7, 0")
    A("s_mov_b32 s40, 0x05040100")
    A("s_mov_b32 s41, 0x07060302")
    for n in range(2):
        A("s_add_u32 s21, s20, %d" % (64 * n))
        A("s_mul_i32 s22, s21, 205")
        A("s_lshr_b32 s22, s22, 10")
        A("s_mul_i32 s23, s22, 5")
        A("s_sub_u32 s23, s21, s23")
        A("s_mul_i32 s24, s22, %d" % (32 * 1280))
        A("s_lshl_b32 s25, s23, 8")
        A("s_add_u32 s%d, s24, s25" % (26 + 3 * n))
        A("s_add_u32 s%d, s%d, 5120" % (27 + 3 * n, 26 + 3 * n))
        A("s_mul_i32 s24, s23, %d" % (8 * 20480))
        A("s_lshl_b32 s25, s22, 10")
        A("s_add_u32 s%d, s24, s25" % (28 + 3 * n))
        A("s_cmp_ge_u32 s21, 100")
        A("s_cselect_b32 s%d, 0x1000000, s%d" % (28 + 3 * n, 28 + 3 * n))
    A("s_waitcnt lgkmcnt(0)")
    srd(A, SWO, 32, 0, 640 * 1280)
    srd(A, SWF, 4, WS_WF, NWF)
    srd(A, SC, 4, WS_CNT, 4096)
    L = [16, 48]; Pk = [80, 16]
    for _ in range(WDELAY): A("s_barrier")
    for n in range(2):
        for e in range(8):
            A("buffer_load_dwordx4 %s, v4, s[%d:%d], s%d offen offset:%d" % (v(L[n] + 4 * e, 4), SWO, SWO + 3, 26 + 3 * n + (e >> 2), (e & 3) * 1280))
    A("s_cmp_eq_u32 s20, 0")
    A("s_cbranch_scc0 k1_wo_nz")
    A("buffer_store_dword v7, v6, s[%d:%d], 0 offen" % (SC, SC + 3))
    A.label("k1_wo_nz")
    A("s_barrier")
    A("s_waitcnt vmcnt(0)")
    for n in range(2):
        for cc in range(8):
            for m in range(4):
                A("v_perm_b32 v%d, v%d, v%d, s%d" % (Pk[n] + 4 * cc + m, L[n] + 4 * (2 * m + 1) + (cc >> 1), L[n] + 4 * (2 * m) + (cc >> 1), 40 + (cc & 1)))
            A("buffer_store_dwordx4 %s, v5, s[%d:%d], s%d offen offset:%d" % (v(Pk[n] + 4 * cc, 4), SWF, SWF + 3, 28 + 3 * n, cc * 16))
    A("s_branch %s" % end)

CH = 34816
TAB = 17408
UB = 4 * CH
UP = 4576
CP0 = 2048
CPS = 4160
EX2 = 20480

GROWS = {0: [11], 1: [10], 2: [9], 3: [8], 4: [3], 5: [2], 6: [1], 7: [0],
         256: [14, 15], 258: [13], 260: [12, 7, 6], 262: [5], 264: [4],
         512: [18], 516: [17], 520: [16], 768: [22], 772: [21], 776: [20],
         1024: [25], 1032: [24], 1280: [27], 1288: [26], 1536: [29], 1544: [28], 1792: [31], 1800: [30]}

def role_ssm(A, end, timing):
    t0, t1, t2, t3 = 2, 3, 4, 5
    sD0, sCH, sHF = 7, 8, 9
    SX, SAT = 12, 36
    A("s_load_dwordx16 s[16:31], s[0:1], 0")
    A("s_load_dwordx2 s[32:33], s[0:1], 64")
    A("s_load_dwordx2 s[4:5], s[0:1], 136")
    A("s_and_b32 s10, s2, 7")
    A("s_mul_i32 s10, s10, 20")
    A("s_lshr_b32 s11, s2, 3")
    A("s_add_u32 s10, s10, s11")
    A("s_lshl_b32 s%d, s10, 2" % sD0)
    A("s_cmp_lt_u32 s%d, 8" % sW)
    A("s_cbranch_scc1 ssm_main")
    if LPRIO: A("s_setprio %d" % LPRIO)
    if AUX: A("s_load_dwordx2 s[36:37], s[0:1], 112")
    A("s_sub_u32 s10, s%d, 8" % sW)
    A("v_mul_u32_u24 v%d, 1280, v%d" % (t0, vLane))
    A("s_mul_i32 s11, s10, %d" % (256 * 1280))
    A("s_lshl_b32 s34, s%d, 1" % sD0)
    A("s_add_u32 s11, s11, s34")
    A("s_waitcnt lgkmcnt(0)")
    srd(A, SX, 16, 0, NQ)
    if B0: A("s_barrier")
    for e in range(4):
        A("s_add_u32 s34, s11, %d" % (e * 64 * 1280))
        A("buffer_load_dwordx2 %s, v%d, s[%d:%d], s34 offen %s" % (v(8 + 2 * e, 2), t0, SX, SX + 3, GMOD))
    NG = 0
    if AUX:
        GX, GW, XU, WU, SGW, SG = 32, 44, 52, 64, 40, 44
        NG = 0
        A("s_lshl_b32 s38, s2, 3")
        A("s_add_u32 s38, s38, s10")
        A("s_mul_i32 s39, s38, 1280")
        A("v_mul_u32_u24 v24, 20, v%d" % vLane)
        A("v_mov_b32 v25, 0")
        srd(A, SGW, 36, 0, 1280)
        srd(A, SG, 4, WS_G, 8192)
    A("v_mov_b32 v16, 0"); A("v_mov_b32 v17, 0"); A("v_mov_b32 v18, 0"); A("v_mov_b32 v19, 0")
    A("s_mul_i32 s34, s10, %d" % UP)
    A("s_add_u32 s34, s34, %d" % UB)
    A("v_lshlrev_b32 v%d, 4, v%d" % (t1, vLane))
    A("v_add_u32 v%d, s34, v%d" % (t1, t1))
    A("s_cmp_lt_u32 s10, 4")
    A("s_cbranch_scc0 ssm_nz")
    A("s_mov_b32 exec_lo, 0x3fffffff")
    A("s_mov_b32 exec_hi, 0")
    A("ds_write_b128 v%d, v[16:19]" % t1)
    A("s_mov_b64 exec, -1")
    A.label("ssm_nz")
    A("s_lshl_b32 s34, s10, 9")
    A("s_add_u32 s34, s34, %d" % (UB + 480))
    A("v_lshlrev_b32 v%d, 1, v%d" % (t1, vLane))
    A("v_add_u32 v%d, s34, v%d" % (t1, t1))
    if V3:
        A("s_barrier")
        A("s_barrier")
    for e in range(4):
        A("s_waitcnt vmcnt(%d)" % (3 - e + NG))
        for cc in range(4):
            A("ds_write_b16%s v%d, v%d offset:%d" % ("_d16_hi" if cc & 1 else "", t1, 8 + 2 * e + (cc >> 1), cc * UP + e * 128))
    if AUX:
        for j in range(2):
            A("s_add_u32 s48, s39, %d" % (j * 1280 * 1280))
            A("buffer_load_dwordx4 %s, v24, s[%d:%d], s48 offen" % (v(GX + 6 * j, 4), SX, SX + 3))
            A("buffer_load_dword v%d, v24, s[%d:%d], s48 offen offset:16" % (GX + 6 * j + 4, SX, SX + 3))
        A("buffer_load_dwordx4 %s, v24, s[%d:%d], 0 offen" % (v(GW, 4), SGW, SGW + 3))
        A("buffer_load_dword v%d, v24, s[%d:%d], 0 offen offset:16" % (GW + 4, SGW, SGW + 3))
    A("s_waitcnt lgkmcnt(0)")
    stamp(A, timing, 1)
    if V3: A("s_barrier")
    if AUX:
        A("s_setprio 0")
        A("s_waitcnt vmcnt(0)")
        for q in range(5):
            A("v_lshlrev_b32 v%d, 16, v%d" % (WU + 2 * q, GW + q))
            A("v_and_b32 v%d, 0xffff0000, v%d" % (WU + 2 * q + 1, GW + q))
        A("s_lshl_b32 s48, s38, 2")
        gate_row(A, GX, XU, WU, SG, 25, 48)
        A("s_cmp_ge_u32 s38, 768")
        A("s_cbranch_scc1 ssm_ng")
        A("s_add_u32 s49, s48, %d" % (1280 * 4))
        gate_row(A, GX + 6, XU, WU, SG, 25, 49)
        A.label("ssm_ng")
    dump_stamps(A, timing, 2, end, 0)
    A("s_branch %s" % end)

    A.label("ssm_main")
    A("s_lshr_b32 s%d, s%d, 1" % (sCH, sW))
    A("s_and_b32 s%d, s%d, 1" % (sHF, sW))
    P = 8
    for i in range(6): A("v_mov_b32 v%d, 0" % (P + i))
    A("s_add_u32 s10, s%d, s%d" % (sD0, sCH))
    A("s_lshl_b32 s11, s10, 8")
    A("s_lshl_b32 s34, s%d, 7" % sHF)
    A("s_add_u32 s11, s11, s34")
    A("v_lshlrev_b32 v%d, 1, v%d" % (t0, vLane))
    A("v_add_u32 v%d, s11, v%d" % (t0, t0))
    A("s_lshl_b32 s11, s%d, 1" % sD0)
    A("s_waitcnt lgkmcnt(0)")
    for i in range(6):
        A("global_load_short_d16_hi v%d, v%d, s[%d:%d]" % (P + i, t0, 18 + 2 * i, 19 + 2 * i))
    A("s_load_dwordx2 s[34:35], s[30:31], s11")
    A("s_load_dwordx2 s[40:41], s[32:33], s11")
    if B0: A("s_barrier")
    srd(A, SAT, 4, WS_AT, NQ)
    vTab = 50
    A("s_mul_i32 s42, s%d, %d" % (sW, TAB))
    A("v_lshlrev_b32 v%d, 2, v%d" % (vTab, vLane))
    A("v_add_u32 v%d, s42, v%d" % (vTab, vTab))
    A("s_waitcnt lgkmcnt(0)")
    for (src, dst) in ((34, 43), (40, 44)):
        A("s_bitcmp1_b32 s%d, 1" % sCH)
        A("s_cselect_b32 s%d, s%d, s%d" % (dst, src + 1, src))
        A("s_lshl_b32 s45, s%d, 16" % dst)
        A("s_and_b32 s%d, s%d, 0xffff0000" % (dst, dst))
        A("s_bitcmp1_b32 s%d, 0" % sCH)
        A("s_cselect_b32 s%d, s%d, s45" % (dst, dst))
    sDskip = 44
    vDT = 6
    A("v_mov_b32 v%d, s43" % vDT)
    A("v_mul_f32 v%d, 0x%x, v%d" % (vDT, f32bits(LOG2E), vDT))
    A("v_exp_f32 v%d, v%d" % (vDT, vDT))
    A("s_nop 0")
    A("v_cvt_pk_bf16_f32 v%d, v%d, v%d" % (vDT, vDT, vDT))
    A("v_and_b32 v%d, 0xffff0000, v%d" % (vDT, vDT))
    Z, E1, E2, E4, W8, E256, E512, E1024, CB = 14, 16, 18, 20, 22, 24, 26, 28, 30
    GA, GB, FA, FB, T1, T2 = 32, 34, 38, 40, 42, 44
    PK = [46, 47, 48, 49]
    A("s_waitcnt vmcnt(0)")
    stamp(A, timing, 7)
    A("v_mul_f32 v%d, v%d, v%d" % (Z, vDT, P + 0))
    A("v_mul_f32 v%d, v%d, v%d" % (Z + 1, vDT, P + 1))
    A("v_mul_f32 v%d, v%d, v%d" % (P + 2, vDT, P + 2))
    A("v_mul_f32 v%d, v%d, v%d" % (P + 3, vDT, P + 3))
    A("v_mul_f32 v%d, 0x%x, v%d" % (Z, f32bits(LOG2E), Z))
    A("v_mul_f32 v%d, 0x%x, v%d" % (Z + 1, f32bits(1.0 / (2 * math.pi)), Z + 1))
    def cmul(d, a, b, t, conj=False):
        A("v_pk_mul_f32 %s, %s, %s op_sel_hi:[0,1]" % (v(t, 2), v(b, 2), v(a, 2)))
        A("v_pk_fma_f32 %s, %s, %s, %s op_sel:[1,1,0] op_sel_hi:[1,0,1] %s:[1,0,0]" % (v(d, 2), v(b, 2), v(a, 2), v(t, 2), "neg_hi" if conj else "neg_lo"))
    def anchor(d, m):
        if m == 1:
            A("v_exp_f32 v%d, v%d" % (t0, Z))
            A("v_fract_f32 v%d, v%d" % (t1, Z + 1))
        else:
            A("v_mul_f32 v%d, %s, v%d" % (t0, "%d.0" % m if m in (2, 4) else "0x%x" % f32bits(float(m)), Z))
            A("v_mul_f32 v%d, %s, v%d" % (t1, "%d.0" % m if m in (2, 4) else "0x%x" % f32bits(float(m)), Z + 1))
            A("v_exp_f32 v%d, v%d" % (t0, t0))
            A("v_fract_f32 v%d, v%d" % (t1, t1))
        A("v_cos_f32 v%d, v%d" % (d, t1))
        A("v_sin_f32 v%d, v%d" % (d + 1, t1))
        A("s_nop 0")
        A("v_mul_f32 v%d, v%d, v%d" % (d, d, t0))
        A("v_mul_f32 v%d, v%d, v%d" % (d + 1, d + 1, t0))
    anchor(W8, 8)
    anchor(E1, 1)
    cmul(CB, P + 4, P + 2, T1)
    A("v_xor_b32 v%d, 0x80000000, v%d" % (CB + 1, CB + 1))
    anchor(E256, 256)
    anchor(E512, 512)
    anchor(E1024, 1024)
    cmul(E2, E1, E1, T1)
    cmul(E4, E2, E2, T2)
    pki = [0]
    def put(src, rows):
        pk = PK[pki[0] & 3]; pki[0] += 1
        A("v_cvt_pk_bf16_f32 v%d, v%d, v%d" % (pk, src, src + 1))
        for r in rows:
            A("ds_write_b32 v%d, v%d offset:%d" % (vTab, pk, r * 272))
    fops = []
    fops.append(lambda: (A("v_mov_b32 v%d, 0x3f80" % PK[3]), A("ds_write_b32 v%d, v%d offset:%d" % (vTab, PK[3], 32 * 272))))
    fops.append(lambda: put(W8, [33]))
    cur = W8
    fr = [FA, FB]
    for j in range(2, 32):
        d = fr[j & 1]
        fops.append((lambda d=d, cur=cur, j=j: (cmul(d, cur, W8, T1), put(d, [32 + j]))))
        cur = d
    gops = []
    def gstep(d, a, b, base):
        gops.append(lambda: (cmul(d, a, b, T2, conj=True), put(d, GROWS[base])))
    gops.append(lambda: put(CB, GROWS[0]))
    g = [GA, GB]
    prev = CB
    for k in range(1, 8):
        gstep(g[k & 1], prev, E1, k); prev = g[k & 1]
    G256, G512, G1024, G1536 = 36, 52, 54, 56
    gstep(G256, CB, E256, 256)
    prev = G256
    for k, base in enumerate((258, 260, 262, 264)):
        gstep(g[k & 1], prev, E2, base); prev = g[k & 1]
    gstep(G512, CB, E512, 512)
    gstep(GA, G512, E4, 516); gstep(GB, GA, E4, 520)
    gstep(G256, G512, E256, 768)
    gstep(GA, G256, E4, 772); gstep(GB, GA, E4, 776)
    gstep(G1024, CB, E1024, 1024)
    gstep(GA, G1024, W8, 1032)
    gstep(GB, G1024, E256, 1280); gstep(GA, GB, W8, 1288)
    gstep(G1536, G1024, E512, 1536); gstep(GA, G1536, W8, 1544)
    gstep(GB, G1536, E256, 1792); gstep(GA, GB, W8, 1800)
    n = max(len(fops), len(gops))
    for i in range(n):
        if i < len(fops): fops[i]()
        if i < len(gops): gops[i]()
    stamp(A, timing, 1)
    AF, BF, DK = 64, 96, 16
    A("v_and_b32 v%d, 31, v%d" % (t0, vLane))
    A("v_mul_u32_u24 v%d, 272, v%d" % (t0, t0))
    A("v_lshrrev_b32 v%d, 5, v%d" % (t1, vLane))
    A("v_lshl_add_u32 v%d, v%d, 4, v%d" % (t0, t1, t0))
    A("v_add_u32 v%d, s42, v%d" % (t0, t0))
    for t in range(8):
        A("ds_read_b128 %s, v%d offset:%d" % (v(AF + 4 * t, 4), t0, 32 * t))
        A("ds_read_b128 %s, v%d offset:%d" % (v(BF + 4 * t, 4), t0, 32 * 272 + 32 * t))
    for t in range(8):
        A("s_waitcnt lgkmcnt(%d)" % (14 - 2 * t))
        A("v_mfma_f32_32x32x16_bf16 %s, %s, %s, %s" % (v(DK, 16), v(AF + 4 * t, 4), v(BF + 4 * t, 4), "0" if t == 0 else v(DK, 16)))
    vL16 = 7
    A("v_lshlrev_b32 v%d, 4, v%d" % (vL16, vLane))
    A("v_add_u32 v%d, s42, v%d" % (t0, vL16))
    A("s_xor_b32 s45, s%d, 1" % sW)
    A("s_mul_i32 s45, s45, %d" % TAB)
    A("v_add_u32 v%d, s45, v%d" % (t1, vL16))
    A("s_mul_i32 s46, s%d, %d" % (sCH, CH))
    A("s_nop 7")
    A("s_nop 1")
    A("s_cmp_eq_u32 s%d, 0" % sHF)
    A("s_cbranch_scc0 ssm_x1")
    A("ds_write_b128 v%d, %s" % (t0, v(DK + 8, 4)))
    A("ds_write_b128 v%d, %s offset:1024" % (t0, v(DK + 12, 4)))
    A("s_branch ssm_x2")
    A.label("ssm_x1")
    A("ds_write_b128 v%d, %s" % (t0, v(DK, 4)))
    A("ds_write_b128 v%d, %s offset:1024" % (t0, v(DK + 4, 4)))
    A.label("ssm_x2")
    A("s_waitcnt lgkmcnt(0)")
    A("s_barrier")
    stamp(A, timing, 2)
    R = 32
    A("ds_read_b128 %s, v%d" % (v(R, 4), t1))
    A("ds_read_b128 %s, v%d offset:1024" % (v(R + 4, 4), t1))
    A("v_and_b32 v%d, 31, v%d" % (t2, vLane))
    A("v_lshrrev_b32 v%d, 5, v%d" % (t3, vLane))
    A("v_lshlrev_b32 v%d, 4, v%d" % (t2, t2))
    A("s_add_u32 s47, s46, %d" % (CP0 + 4080))
    A("v_sub_u32 v%d, s47, v%d" % (t2, t2))
    A("s_waitcnt lgkmcnt(0)")
    A("s_cmp_eq_u32 s%d, 0" % sHF)
    A("s_cbranch_scc0 ssm_y1")
    for r in range(8): A("v_add_f32 v%d, v%d, v%d" % (DK + r, DK + r, R + r))
    A("v_lshlrev_b32 v%d, 9, v%d" % (t3, t3))
    A("v_sub_u32 v%d, v%d, v%d" % (t2, t2, t3))
    for j in range(4): A("v_cvt_pk_bf16_f32 v%d, v%d, v%d" % (R + j, DK + 2 * j, DK + 2 * j + 1))
    A("ds_write_b128 v%d, %s" % (t2, v(R, 4)))
    A("v_mov_b32 v%d, 0" % (R + 4)); A("v_mov_b32 v%d, 0" % (R + 5)); A("v_mov_b32 v%d, 0" % (R + 6)); A("v_mov_b32 v%d, 0" % (R + 7))
    A("s_add_u32 s47, s46, %d" % (CP0 + 4096))
    A("v_add_u32 v%d, s47, v%d" % (t3, vL16))
    A("s_mov_b64 exec, 0xf")
    A("ds_write_b128 v%d, %s" % (t3, v(R + 4, 4)))
    A("s_mov_b64 exec, -1")
    A("s_branch ssm_y2")
    A.label("ssm_y1")
    for r in range(8): A("v_add_f32 v%d, v%d, v%d" % (DK + r, DK + 8 + r, R + r))
    A("v_lshlrev_b32 v%d, 9, v%d" % (R + 12, t3))
    A("v_sub_u32 v%d, v%d, v%d" % (R + 12, t2, R + 12))
    A("v_subrev_u32 v%d, 1024, v%d" % (R + 12, R + 12))
    A("v_cvt_pk_bf16_f32 v%d, v%d, v%d" % (R + 0, DK + 0, DK + 0))
    A("v_cvt_pk_bf16_f32 v%d, v%d, v%d" % (R + 1, DK + 1, DK + 1))
    A("v_cvt_pk_bf16_f32 v%d, v%d, v%d" % (R + 2, DK + 1, DK + 2))
    A("v_cvt_pk_bf16_f32 v%d, v%d, v%d" % (R + 3, DK + 2, DK + 2))
    A("ds_write_b128 v%d, %s" % (R + 12, v(R, 4)))
    A("v_lshlrev_b32 v%d, 10, v%d" % (R + 13, t3))
    A("v_sub_u32 v%d, v%d, v%d" % (R + 13, t2, R + 13))
    A("v_subrev_u32 v%d, 2560, v%d" % (R + 13, R + 13))
    A("v_and_b32 v%d, 1, v%d" % (R + 14, vLane))
    A("v_cmp_eq_u32 vcc, 1, v%d" % (R + 14))
    A("s_nop 1")
    for k in range(2):
        K8, K0 = DK + 4 + 2 * k, DK + 5 + 2 * k
        o = R + 4 + 4 * k
        A("v_cndmask_b32 v%d, v%d, v%d, vcc" % (R + 15, K0, K8))
        A("v_cvt_pk_bf16_f32 v%d, v%d, v%d" % (o + 0, K8, K8))
        A("v_cvt_pk_bf16_f32 v%d, v%d, v%d" % (o + 1, K8, R + 15))
        A("v_cvt_pk_bf16_f32 v%d, v%d, v%d" % (o + 2, K0, K0))
        A("v_mov_b32 v%d, v%d" % (o + 3, o + 2))
    A("ds_write_b128 v%d, %s offset:512" % (R + 13, v(R + 4, 4)))
    A("ds_write_b128 v%d, %s" % (R + 13, v(R + 8, 4)))
    A.label("ssm_y2")
    A("s_waitcnt lgkmcnt(0)")
    A("s_barrier")
    stamp(A, timing, 3)
    A("s_lshl_b32 s47, s%d, 11" % sHF)
    A("s_add_u32 s47, s47, s46")
    A("s_add_u32 s47, s47, %d" % CP0)
    A("v_add_u32 v%d, s47, v%d" % (t0, vL16))
    for it in range(2):
        d = 32 + 8 * it
        A("ds_read_b128 %s, v%d offset:%d" % (v(d, 4), t0, it * 1024))
        A("ds_read_b64 %s, v%d offset:%d" % (v(d + 4, 2), t0, it * 1024 + 16))
    A("v_lshrrev_b32 v%d, 2, v%d" % (t1, vLane))
    A("v_mul_u32_u24 v%d, %d, v%d" % (t1, CPS, t1))
    A("v_and_b32 v%d, 3, v%d" % (t2, vLane))
    A("v_lshl_add_u32 v%d, v%d, 4, v%d" % (t1, t2, t1))
    A("s_add_u32 s47, s46, %d" % (CP0 + CPS + 4096))
    A("v_add_u32 v%d, s47, v%d" % (t1, t1))
    for r in range(4): A("v_mov_b32 v%d, 0" % (60 + r))
    A("s_cmp_eq_u32 s%d, 0" % sHF)
    A("s_cbranch_scc0 ssm_z1")
    A("s_mov_b64 exec, 0xfff")
    A("ds_write_b128 v%d, v[60:63]" % t1)
    A("s_mov_b64 exec, -1")
    A.label("ssm_z1")
    A("v_add_u32 v64, %d, v%d" % (2 * CPS, t0))
    A("v_add_u32 v65, %d, v%d" % (2 * CPS + 1024, t0))
    A("s_waitcnt lgkmcnt(0)")
    for it in range(2):
        d = 32 + 8 * it; e = 48 + 8 * it
        for i in range(4): A("v_alignbit_b32 v%d, v%d, v%d, 16" % (e + i, d + i + 1, d + i))
        for i in range(4): A("v_alignbit_b32 v%d, v%d, v%d, 16" % (e + 4 + i, d + i + 2, d + i + 1))
        A("ds_write_b128 v%d, %s offset:%d" % (t0, v(e, 4), it * 1024 + CPS))
        A("ds_write2_b32 v%d, v%d, v%d offset0:0 offset1:1" % (64 + it, d + 1, d + 2))
        A("ds_write2_b32 v%d, v%d, v%d offset0:2 offset1:3" % (64 + it, d + 3, d + 4))
        A("ds_write_b128 v%d, %s offset:%d" % (t0, v(e + 4, 4), it * 1024 + 3 * CPS))
    AF, BF, DC = 32, 64, 96
    vAlo, vAhi, vB = 8, 9, 10
    A("v_and_b32 v%d, 3, v%d" % (t1, vLane))
    A("v_sub_u32 v%d, 3, v%d" % (t1, t1))
    A("v_mul_u32_u24 v%d, %d, v%d" % (vAlo, CPS, t1))
    A("v_bfe_u32 v%d, v%d, 2, 2" % (t1, vLane))
    A("v_lshrrev_b32 v%d, 4, v%d" % (t2, vLane))
    A("v_lshlrev_b32 v%d, 1, v%d" % (t3, t2))
    A("v_sub_u32 v%d, v%d, v%d" % (t3, t3, t1))
    A("v_lshl_add_u32 v%d, v%d, 3, v%d" % (vAlo, t3, vAlo))
    A("s_lshl_b32 s47, s%d, 8" % sHF)
    A("s_sub_u32 s48, s46, s47")
    A("s_add_u32 s48, s48, %d" % (CP0 + 8 * 507 - 3584))
    A("v_add_u32 v%d, s48, v%d" % (vAlo, vAlo))
    A("v_add_u32 v%d, 2048, v%d" % (vAhi, vAlo))
    A("v_and_b32 v%d, 15, v%d" % (t1, vLane))
    A("v_lshlrev_b32 v%d, 5, v%d" % (vB, t1))
    A("v_lshl_add_u32 v%d, v%d, 4, v%d" % (vB, t2, vB))
    A("s_mul_i32 s48, s%d, %d" % (sCH, UP))
    A("s_add_u32 s48, s48, %d" % (UB + 448))
    A("s_sub_u32 s49, s48, s47")
    A("v_add_u32 v%d, s49, v%d" % (vB, vB))
    vU, vO = 11, 12
    A("v_lshlrev_b32 v%d, 5, v%d" % (vO, t1))
    A("v_lshl_add_u32 v%d, v%d, 3, v%d" % (vO, t2, vO))
    A("s_lshl_b32 s47, s%d, 11" % sHF)
    A("s_add_u32 s49, s48, s47")
    A("s_add_u32 s49, s49, 32")
    A("v_add_u32 v%d, s49, v%d" % (vU, vO))
    A("s_add_u32 s10, s%d, s%d" % (sD0, sCH))
    A("s_lshl_b32 s10, s10, 12")
    A("s_add_u32 s10, s10, s47")
    A("s_add_u32 s47, s46, %d" % EX2)
    A("s_lshl_b32 s48, s%d, 12" % sHF)
    A("s_add_u32 s49, s47, s48")
    A("v_add_u32 v%d, s49, v%d" % (13, vL16))
    A("s_xor_b32 s48, s48, 4096")
    A("s_add_u32 s49, s47, s48")
    A("v_add_u32 v%d, s49, v%d" % (14, vL16))
    A("s_waitcnt lgkmcnt(0)")
    stamp(A, timing, 8)
    A("s_barrier")
    stamp(A, timing, 4)
    for cl in range(4):
        if cl:
            A("v_subrev_u32 v%d, 64, v%d" % (vAlo, vAlo))
            A("v_subrev_u32 v%d, 64, v%d" % (vB, vB))
        seq = [("B", 0)]
        for a in range(8): seq += [("A", a, 0), ("A", a, 1)]
        seq += [("B", b) for b in range(1, 8)]
        for x in seq:
            if x[0] == "A":
                i, h = x[1], x[2]
                A("ds_read_b64 %s, v%d offset:%d" % (v(AF + 4 * i + 2 * h, 2), vAlo, 512 * (7 - i) + 8 * h))
            else:
                A("ds_read_b128 %s, v%d offset:%d" % (v(BF + 4 * x[1], 4), vB, 512 * x[1]))
        pos = {x: n for n, x in enumerate(seq)}
        waited = -1
        for b in range(8):
            for a in range(8 - b):
                need = max(pos[("A", a, 1)], pos[("B", b)])
                if need > waited:
                    cnt = len(seq) - 1 - need
                    if cnt <= 15:
                        A("s_waitcnt lgkmcnt(%d)" % cnt)
                        waited = need
                    elif len(seq) - 1 - 15 > waited:
                        A("s_waitcnt lgkmcnt(15)")
                        waited = len(seq) - 1 - 15
                c = a + b
                first = (cl == 0 and b == 0)
                A("v_mfma_f32_16x16x32_bf16 %s, %s, %s, %s" % (v(DC + 4 * c, 4), v(AF + 4 * a, 4), v(BF + 4 * b, 4), "0" if first else v(DC + 4 * c, 4)))
    stamp(A, timing, 5)
    A("s_nop 7")
    A("s_cmp_eq_u32 s%d, 0" % sHF)
    A("s_cbranch_scc0 ssm_w1")
    for k in range(4): A("ds_write_b128 v13, %s offset:%d" % (v(DC + 16 + 4 * k, 4), 1024 * k))
    A("s_branch ssm_w2")
    A.label("ssm_w1")
    for k in range(4): A("ds_write_b128 v13, %s offset:%d" % (v(DC + 4 * k, 4), 1024 * k))
    A.label("ssm_w2")
    U = 32
    for k in range(4): A("ds_read_b64 %s, v%d offset:%d" % (v(U + 2 * k, 2), vU, 512 * k))
    A("s_waitcnt lgkmcnt(0)")
    A("s_barrier")
    R = 64
    for k in range(4): A("ds_read_b128 %s, v14 offset:%d" % (v(R + 4 * k, 4), 1024 * k))
    UF = 40
    for k in range(8):
        A("v_lshlrev_b32 v%d, 16, v%d" % (UF + 2 * k, U + k))
        A("v_and_b32 v%d, 0xffff0000, v%d" % (UF + 2 * k + 1, U + k))
    for r in range(16): A("v_mul_f32 v%d, s%d, v%d" % (UF + r, sDskip, UF + r))
    for k in range(8): A("v_cvt_pk_bf16_f32 v%d, v%d, v%d" % (U + k, UF + 2 * k, UF + 2 * k + 1))
    for k in range(8):
        A("v_lshlrev_b32 v%d, 16, v%d" % (UF + 2 * k, U + k))
        A("v_and_b32 v%d, 0xffff0000, v%d" % (UF + 2 * k + 1, U + k))
    A("s_waitcnt lgkmcnt(0)")
    A("s_cmp_eq_u32 s%d, 0" % sHF)
    A("s_cbranch_scc0 ssm_v1")
    for r in range(16): A("v_add_f32 v%d, v%d, v%d" % (DC + r, DC + r, R + r))
    A("s_branch ssm_v2")
    A.label("ssm_v1")
    for r in range(16): A("v_add_f32 v%d, v%d, v%d" % (DC + r, DC + 16 + r, R + r))
    A.label("ssm_v2")
    for k in range(8): A("v_cvt_pk_bf16_f32 v%d, v%d, v%d" % (U + k, DC + 2 * k, DC + 2 * k + 1))
    for k in range(8):
        A("v_lshlrev_b32 v%d, 16, v%d" % (DC + 2 * k, U + k))
        A("v_and_b32 v%d, 0xffff0000, v%d" % (DC + 2 * k + 1, U + k))
    for r in range(16): A("v_add_f32 v%d, v%d, v%d" % (DC + r, DC + r, UF + r))
    for k in range(8): A("v_cvt_pk_bf16_f32 v%d, v%d, v%d" % (U + k, DC + 2 * k, DC + 2 * k + 1))
    for k in range(4):
        A("buffer_store_dwordx2 %s, v%d, s[%d:%d], s10 offen offset:%d" % (v(U + 2 * k, 2), vO, SAT, SAT + 3, 512 * k))
    stamp(A, timing, 6)
    dump_stamps(A, timing, 9, end, 0)
    A("s_branch %s" % end)


FL = 157696
LPRIO2 = 2
GXCD = True
WOSSM = True
OPERM = False
WOWAVE = 8
SPIN = 100000
UROT = True
UROTM = 5
UEARLY = False
PF = ""
PHASES = [[0, 1, 2, 3], [4, 5, 6, 7]]

def flag_set(A, vaddr, vval, off):
    A("s_mov_b64 exec, 1")
    A("ds_write_b32 v%d, v%d offset:%d" % (vaddr, vval, off))
    A("s_mov_b64 exec, -1")

def flag_wait(A, vaddr, off, label, vt=2):
    A("s_mov_b32 s59, 0")
    A.label(label)
    A("ds_read_b32 v%d, v%d offset:%d" % (vt, vaddr, off))
    A("s_waitcnt lgkmcnt(0)")
    A("v_cmp_le_u32 vcc, 4, v%d" % vt)
    A("s_nop 3")
    A("s_cmp_eq_u64 vcc, -1")
    A("s_cbranch_scc1 %s_d" % label)
    A("s_add_u32 s59, s59, 1")
    A("s_cmp_lt_u32 s59, %d" % SPIN)
    A("s_cbranch_scc0 %s_d" % label)
    A("s_sleep 1")
    A("s_branch %s" % label)
    A.label(label + "_d")

def conv_phases(A, timing, vA, vB, AF, BF, DC, vFc, vFu):
    mf = []
    for p, bl in enumerate(PHASES):
        amax = 7 - bl[0]
        for cl in range(4):
            for a in range(amax, -1, -1):
                for b in bl:
                    if a + b <= 7: mf.append((p, cl, a, b))
    def aslot(p, cl, a):
        na = 8 - PHASES[p][0]
        return (a + na * (cl % (8 // na))) % 8
    def bslot(p, cl, b):
        nb = len(PHASES[p])
        return (b - PHASES[p][0] + nb * (cl % (8 // nb))) % 8
    reads = {}
    for n, (p, cl, a, b) in enumerate(mf):
        ta, tb = ("A", p, cl, a), ("B", p, cl, b)
        if ta not in reads:
            r = AF + 4 * aslot(p, cl, a)
            reads[ta] = dict(kind="A", slot=aslot(p, cl, a), first=n, last=n, p=p,
                             txt=["ds_read_b64 %s, v%d offset:%d" % (v(r + 2 * h, 2), vA, 512 * (7 - a) + 8 * h + 64 * (3 - cl)) for h in range(2)])
        if tb not in reads:
            r = BF + 4 * bslot(p, cl, b)
            reads[tb] = dict(kind="B", slot=bslot(p, cl, b), first=n, last=n, p=p,
                             txt=["ds_read_b128 %s, v%d offset:%d" % (v(r, 4), vB, 512 * b + 64 * (3 - cl))])
        reads[ta]["last"] = n; reads[tb]["last"] = n
    pstart = {}
    for n, m in enumerate(mf): pstart.setdefault(m[0], n)
    for t, r in reads.items():
        prev = [q["last"] for q in reads.values() if q["kind"] == r["kind"] and q["slot"] == r["slot"] and q["last"] < r["first"]]
        e = max(prev) + 1 if prev else 0
        if r["kind"] == "B": e = max(e, pstart[r["p"]])
        r["e"] = e
        for q in reads.values():
            if q is not r and q["kind"] == r["kind"] and q["slot"] == r["slot"]:
                assert q["last"] < r["first"] or q["first"] > r["last"]
    order = []; state = {"done": 0}
    issued = set()
    def issue_ready(n, only=None):
        rd = sorted([t for t, r in reads.items() if t not in issued and r["e"] <= n and (only is None or r["kind"] == only)], key=lambda t: reads[t]["first"])
        for t in rd:
            for x in reads[t]["txt"]:
                A(x); order.append(t)
            issued.add(t)
    def need(tag):
        idx = max(i for i, x in enumerate(order) if x == tag)
        if idx < state["done"]: return
        cnt = min(len(order) - 1 - idx, 15)
        A("s_waitcnt lgkmcnt(%d)" % cnt)
        state["done"] = len(order) - cnt
        assert state["done"] > idx
    first = set()
    for n, (p, cl, a, b) in enumerate(mf):
        if n == pstart[p]:
            if p == 0: flag_wait(A, vFc, 0, "ssm_fp0")
            else:
                issue_ready(n, only="A")
                flag_wait(A, vFu, 4 if UROT else 4 * (PHASES[p][-1] >> 1), "ssm_fp%d" % p)
            state["done"] = len(order)
            stamp(A, timing, 4 if p == 0 else (9 if p == 1 else 10))
        issue_ready(n)
        need(("B", p, cl, b)); need(("A", p, cl, a))
        c = a + b
        A("v_mfma_f32_16x16x32_bf16 %s, %s, %s, %s" % (v(DC + 4 * c, 4), v(AF + 4 * aslot(p, cl, a), 4), v(BF + 4 * bslot(p, cl, b), 4), v(DC + 4 * c, 4) if c in first else "0"))
        first.add(c)

def role_ssm3(A, end, timing):
    t0, t1, t2, t3 = 2, 3, 4, 5
    sD0, sCH, sHF = 7, 8, 9
    SX, SAT = 12, 36
    A("s_load_dwordx16 s[16:31], s[0:1], 0")
    A("s_load_dwordx2 s[32:33], s[0:1], 64")
    A("s_load_dwordx2 s[4:5], s[0:1], 136")
    A("s_and_b32 s10, s2, 7")
    A("s_mul_i32 s10, s10, 20")
    A("s_lshr_b32 s11, s2, 3")
    A("s_add_u32 s10, s10, s11")
    A("s_lshl_b32 s%d, s10, 2" % sD0)
    A("s_cmp_lt_u32 s%d, 8" % sW)
    A("s_cbranch_scc1 ssm_main")
    A("s_cmp_lt_u32 s%d, 12" % sW)
    A("s_cbranch_scc0 ssm_lp2")
    A("s_setprio %d" % LPRIO)
    A("s_branch ssm_lp3")
    A.label("ssm_lp2")
    A("s_setprio %d" % LPRIO2)
    A.label("ssm_lp3")
    A("s_load_dwordx2 s[36:37], s[0:1], 112")
    if WOSSM: A("s_load_dwordx2 s[82:83], s[0:1], 104")
    if PF: A("s_load_dwordx2 s[76:77], s[0:1], 80")
    A("s_sub_u32 s10, s%d, 8" % sW)
    A("s_lshr_b32 s50, s10, 2")
    A("s_and_b32 s51, s10, 3")
    if UROT:
        A("s_lshr_b32 s53, s2, 3")
        A("s_mul_i32 s53, s53, %d" % UROTM)
        A("s_add_u32 s53, s53, s51")
        for e in range(4):
            A("s_add_u32 s52, s53, %d" % (4 * e))
            A("s_and_b32 s52, s52, 15")
            A("s_lshl_b32 s52, s52, 6")
            A("s_lshl_b32 s54, s50, 10")
            A("s_add_u32 s%d, s52, s54" % (84 + e))
    else:
        A("s_lshl_b32 s52, s50, 10")
        A("s_lshl_b32 s53, s51, 7")
        A("s_add_u32 s52, s52, s53")
        for e, eo in enumerate([0, 64, 512, 576]):
            A("s_add_u32 s%d, s52, %d" % (84 + e, eo))
    A("v_mul_u32_u24 v%d, 1280, v%d" % (t0, vLane))
    A("s_lshl_b32 s11, s%d, 1" % sD0)
    A("v_mov_b32 v16, 0"); A("v_mov_b32 v17, 0"); A("v_mov_b32 v18, 0"); A("v_mov_b32 v19, 0")
    A("s_mul_i32 s34, s10, %d" % UP)
    A("s_add_u32 s34, s34, %d" % UB)
    A("v_lshlrev_b32 v%d, 4, v%d" % (t1, vLane))
    A("v_add_u32 v%d, s34, v%d" % (t1, t1))
    A("s_cmp_lt_u32 s10, 4")
    A("s_cbranch_scc0 ssm_nz")
    A("s_mov_b32 exec_lo, 0x3fffffff")
    A("s_mov_b32 exec_hi, 0")
    A("ds_write_b128 v%d, v[16:19]" % t1)
    A("s_mov_b64 exec, -1")
    A.label("ssm_nz")
    A("s_cmp_eq_u32 s10, 4")
    A("s_cbranch_scc0 ssm_nf")
    A("v_lshlrev_b32 v%d, 2, v%d" % (t1, vLane))
    A("v_add_u32 v%d, %d, v%d" % (t1, FL, t1))
    A("ds_write_b32 v%d, v16" % t1)
    A.label("ssm_nf")
    A("v_lshlrev_b32 v%d, 1, v%d" % (t1, vLane))
    A("v_add_u32 v%d, %d, v%d" % (t1, UB + 480, t1))
    for e in range(4):
        A("s_lshl_b32 s34, s%d, 1" % (84 + e))
        A("v_add_u32 v%d, s34, v%d" % (4 + e, t1))
    A("s_lshl_b32 s34, s50, %d" % (2 if UROT else 3))
    A("s_add_u32 s34, s34, %d" % (FL + 128))
    A("v_mov_b32 v20, s34")
    A("v_mov_b32 v21, 1")
    A("s_waitcnt lgkmcnt(0)")
    srd(A, SX, 16, 0, NQ)
    def prefetch():
        A("s_lshr_b32 s78, s2, 3")
        A("s_lshl_b32 s78, s78, 3")
        A("s_add_u32 s78, s78, s10")
        A("v_lshlrev_b32 v77, 7, v%d" % vLane)
        A("s_cmp_lt_u32 s78, 100")
        A("s_cbranch_scc0 ssm_pf1")
        srd(A, 72, 76, 0, 640 * 1280)
        A("s_lshl_b32 s79, s78, 13")
        A("buffer_load_dword v76, v77, s[72:75], s79 offen")
        A("s_branch ssm_pf2")
        A.label("ssm_pf1")
        A("s_sub_u32 s78, s78, 100")
        A("s_cmp_ge_u32 s78, 20")
        A("s_cselect_b32 s79, 8, 0")
        A("s_cselect_b32 s80, 20, 0")
        A("s_sub_u32 s78, s78, s80")
        A("s_and_b32 s80, s2, 7")
        A("s_add_u32 s79, s79, s80")
        A("s_mul_i32 s79, s79, 163840")
        A("s_lshl_b32 s80, s78, 13")
        A("s_add_u32 s79, s79, s80")
        A("s_cmp_ge_u32 s78, 20")
        A("s_cselect_b32 s79, 0x400000, s79")
        A("buffer_load_dword v76, v77, s[%d:%d], s79 offen" % (SX, SX + 3))
        A.label("ssm_pf2")
    if not UEARLY: A("s_barrier")
    if PF == "before": prefetch()
    for e in range(4):
        A("s_mul_i32 s34, s%d, 1280" % (84 + e))
        A("s_add_u32 s34, s34, s11")
        A("buffer_load_dwordx2 %s, v%d, s[%d:%d], s34 offen %s" % (v(8 + 2 * e, 2), t0, SX, SX + 3, GMOD))
    if PF == "after": prefetch()
    if UEARLY: A("s_barrier")
    stamp(A, timing, 2)
    GX, GW, XU, WU, SGW, SG = 32, 44, 52, 64, 40, 44
    if GXCD:
        A("s_lshr_b32 s38, s2, 3")
        A("s_lshl_b32 s38, s38, 3")
        A("s_add_u32 s38, s38, s10")
        A("s_and_b32 s54, s2, 7")
        A("s_lshl_b32 s54, s54, 7")
        for (dst, add) in ((55, 0), (56, 160)):
            A("s_add_u32 s57, s38, %d" % add)
            A("s_lshr_b32 s58, s57, 7")
            A("s_lshl_b32 s58, s58, 10")
            A("s_and_b32 s57, s57, 127")
            A("s_add_u32 s57, s57, s58")
            A("s_add_u32 s%d, s57, s54" % dst)
        A("s_cmp_ge_u32 s38, 96")
        A("s_cselect_b32 s56, 0x100000, s56")
    else:
        A("s_lshl_b32 s38, s2, 3")
        A("s_add_u32 s55, s38, s10")
        A("s_add_u32 s56, s55, 1280")
    A("v_mul_u32_u24 v24, 20, v%d" % vLane)
    A("v_mov_b32 v25, 0")
    srd(A, SGW, 36, 0, 1280)
    srd(A, SG, 4, WS_G, 8192)
    for e in range(4):
        A("s_waitcnt vmcnt(%d)" % (3 - e + (1 if PF == "after" else 0)))
        for cc in range(4):
            A("ds_write_b16%s v%d, v%d offset:%d" % ("_d16_hi" if cc & 1 else "", 4 + e, 8 + 2 * e + (cc >> 1), cc * UP))
        if (e == 3) if UROT else (e & 1):
            A("s_waitcnt lgkmcnt(0)")
            A("s_mov_b64 exec, 1")
            A("ds_add_u32 v20, v21 offset:%d" % (0 if UROT else 4 * (e >> 1)))
            A("s_mov_b64 exec, -1")
            stamp(A, timing, 1 if e == 1 else 3)
    for j in range(2):
        A("s_min_u32 s48, s%d, 2048" % (55 + j))
        A("s_mul_i32 s48, s48, 1280")
        A("buffer_load_dwordx4 %s, v24, s[%d:%d], s48 offen" % (v(GX + 6 * j, 4), SX, SX + 3))
        A("buffer_load_dword v%d, v24, s[%d:%d], s48 offen offset:16" % (GX + 6 * j + 4, SX, SX + 3))
    A("buffer_load_dwordx4 %s, v24, s[%d:%d], 0 offen" % (v(GW, 4), SGW, SGW + 3))
    A("buffer_load_dword v%d, v24, s[%d:%d], 0 offen offset:16" % (GW + 4, SGW, SGW + 3))
    A("s_setprio 0")
    def gates():
        for q in range(5):
            A("v_lshlrev_b32 v%d, 16, v%d" % (WU + 2 * q, GW + q))
            A("v_and_b32 v%d, 0xffff0000, v%d" % (WU + 2 * q + 1, GW + q))
        A("s_lshl_b32 s48, s55, 2")
        gate_row(A, GX, XU, WU, SG, 25, 48)
        lb = A.newlabel("ssm_ng")
        A("s_cmp_ge_u32 s56, 2048")
        A("s_cbranch_scc1 %s" % lb)
        A("s_lshl_b32 s49, s56, 2")
        gate_row(A, GX + 6, XU, WU, SG, 25, 49)
        A.label(lb)
    if WOSSM:
        SWO, SWF, SC = 84, 88, 92
        A("s_cmp_eq_u32 s%d, %d" % (sW, WOWAVE))
        A("s_cbranch_scc0 ssm_nwo")
        A("s_cmp_lt_u32 s2, 100")
        A("s_cbranch_scc0 ssm_nwo")
        A("v_lshrrev_b32 v28, 4, v%d" % vLane)
        A("v_and_b32 v29, 15, v%d" % vLane)
        if not OPERM:
            A("v_mul_u32_u24 v26, %d, v28" % (8 * 1280))
            A("v_lshl_add_u32 v26, v29, 4, v26")
        A("v_lshrrev_b32 v27, 1, v29")
        A("v_mul_u32_u24 v27, 20480, v27")
        A("v_lshl_add_u32 v27, v28, 8, v27")
        A("v_and_b32 v28, 1, v29")
        A("v_lshl_add_u32 v27, v28, 7, v27")
        A("v_lshlrev_b32 v28, 7, v%d" % vLane)
        A("s_mov_b32 s50, 0x05040100")
        A("s_mov_b32 s51, 0x07060302")
        A("s_mul_i32 s52, s2, 205")
        A("s_lshr_b32 s52, s52, 10")
        A("s_mul_i32 s53, s52, 5")
        A("s_sub_u32 s53, s2, s53")
        if OPERM:
            tab = [0, 8, 4, 12, 20, 28, 24, 32, 16, 36]
            tc = sum(t << (6 * i) for i, t in enumerate(tab))
            A("s_mov_b32 s90, 0x%x" % (tc & 0xffffffff))
            A("s_mov_b32 s91, 0x%x" % (tc >> 32))
            A("s_lshl_b32 s54, s52, 5")
            A("v_lshrrev_b32 v30, 4, v%d" % vLane)
            A("v_lshlrev_b32 v30, 3, v30")
            A("v_add_u32 v30, s54, v30")
            for (dst, add) in ((26, 0), (22, 4)):
                A("v_add_u32 v31, %d, v30" % add)
                A("v_mul_u32_u24 v23, 1639, v31")
                A("v_lshrrev_b32 v23, 16, v23")
                A("v_mul_u32_u24 v%d, 40, v23" % dst)
                A("v_sub_u32 v31, v31, v%d" % dst)
                A("v_lshrrev_b32 v31, 2, v31")
                A("v_mul_u32_u24 v31, 6, v31")
                A("v_lshrrev_b64 v[16:17], v31, s[90:91]")
                A("v_and_b32 v23, 63, v16")
                A("v_add_u32 v%d, v%d, v23" % (dst, dst))
                A("v_mul_u32_u24 v%d, 1280, v%d" % (dst, dst))
                A("v_lshl_add_u32 v%d, v29, 4, v%d" % (dst, dst))
            A("s_lshl_b32 s96, s53, 8")
        else:
            A("s_mul_i32 s54, s52, %d" % (32 * 1280))
            A("s_lshl_b32 s57, s53, 8")
            A("s_add_u32 s96, s54, s57")
            A("s_add_u32 s97, s96, 5120")
        A("s_mul_i32 s54, s53, %d" % (8 * 20480))
        A("s_lshl_b32 s57, s52, 10")
        A("s_add_u32 s58, s54, s57")
        srd(A, SWO, 82, 0, 640 * 1280)
        srd(A, SWF, 4, WS_WF, NWF)
        srd(A, SC, 4, WS_CNT, 4096)
        LW = 80
        for e in range(8):
            if OPERM: A("buffer_load_dwordx4 %s, v%d, s[%d:%d], s96 offen offset:%d" % (v(LW + 4 * e, 4), 22 if e >> 2 else 26, SWO, SWO + 3, (e & 3) * 1280))
            else: A("buffer_load_dwordx4 %s, v26, s[%d:%d], s%d offen offset:%d" % (v(LW + 4 * e, 4), SWO, SWO + 3, 96 + (e >> 2), (e & 3) * 1280))
        A("s_cmp_eq_u32 s2, 0")
        A("s_cbranch_scc0 ssm_wnz")
        A("buffer_store_dword v25, v28, s[%d:%d], 0 offen" % (SC, SC + 3))
        A("s_waitcnt vmcnt(9)")
        A("s_branch ssm_wn2")
        A.label("ssm_wnz")
        A("s_waitcnt vmcnt(8)")
        A.label("ssm_wn2")
        gates()
        A("s_waitcnt vmcnt(0)")
        for cc in range(8):
            pk = 112 + 4 * (cc & 3)
            for m in range(4):
                A("v_perm_b32 v%d, v%d, v%d, s%d" % (pk + m, LW + 4 * (2 * m + 1) + (cc >> 1), LW + 4 * (2 * m) + (cc >> 1), 50 + (cc & 1)))
            A("buffer_store_dwordx4 %s, v27, s[%d:%d], s58 offen offset:%d%s" % (v(pk, 4), SWF, SWF + 3, cc * 16, SC1))
        A("s_branch ssm_ldone")
        A.label("ssm_nwo")
    A("s_waitcnt vmcnt(0)")
    gates()
    A.label("ssm_ldone")
    dump_stamps(A, timing, 4, end, 0)
    A("s_branch %s" % end)

    A.label("ssm_main")
    A("s_lshr_b32 s%d, s%d, 1" % (sCH, sW))
    A("s_and_b32 s%d, s%d, 1" % (sHF, sW))
    P = 8
    for i in range(6): A("v_mov_b32 v%d, 0" % (P + i))
    A("s_add_u32 s10, s%d, s%d" % (sD0, sCH))
    A("s_lshl_b32 s11, s10, 8")
    A("s_lshl_b32 s34, s%d, 7" % sHF)
    A("s_add_u32 s11, s11, s34")
    A("v_lshlrev_b32 v%d, 1, v%d" % (t0, vLane))
    A("v_add_u32 v%d, s11, v%d" % (t0, t0))
    A("s_lshl_b32 s11, s%d, 1" % sD0)
    A("s_waitcnt lgkmcnt(0)")
    for i in range(6):
        A("global_load_short_d16_hi v%d, v%d, s[%d:%d]" % (P + i, t0, 18 + 2 * i, 19 + 2 * i))
    A("s_load_dwordx2 s[34:35], s[30:31], s11")
    A("s_load_dwordx2 s[40:41], s[32:33], s11")
    if B0: A("s_barrier")
    srd(A, SAT, 4, WS_AT, NQ)
    vTab = 50
    A("s_mul_i32 s42, s%d, %d" % (sW, TAB))
    A("v_lshlrev_b32 v%d, 2, v%d" % (vTab, vLane))
    A("v_add_u32 v%d, s42, v%d" % (vTab, vTab))
    A("s_waitcnt lgkmcnt(0)")
    for (src, dst) in ((34, 43), (40, 44)):
        A("s_bitcmp1_b32 s%d, 1" % sCH)
        A("s_cselect_b32 s%d, s%d, s%d" % (dst, src + 1, src))
        A("s_lshl_b32 s45, s%d, 16" % dst)
        A("s_and_b32 s%d, s%d, 0xffff0000" % (dst, dst))
        A("s_bitcmp1_b32 s%d, 0" % sCH)
        A("s_cselect_b32 s%d, s%d, s45" % (dst, dst))
    sDskip = 44
    vDT = 6
    A("v_mov_b32 v%d, s43" % vDT)
    A("v_mul_f32 v%d, 0x%x, v%d" % (vDT, f32bits(LOG2E), vDT))
    A("v_exp_f32 v%d, v%d" % (vDT, vDT))
    A("s_nop 0")
    A("v_cvt_pk_bf16_f32 v%d, v%d, v%d" % (vDT, vDT, vDT))
    A("v_and_b32 v%d, 0xffff0000, v%d" % (vDT, vDT))
    Z, E1, E2, E4, W8, E256, E512, E1024, CB = 14, 16, 18, 20, 22, 24, 26, 28, 30
    GA, GB, FA, FB, T1, T2 = 32, 34, 38, 40, 42, 44
    PK = [46, 47, 48, 49]
    A("s_waitcnt vmcnt(0)")
    stamp(A, timing, 7)
    A("v_mul_f32 v%d, v%d, v%d" % (Z, vDT, P + 0))
    A("v_mul_f32 v%d, v%d, v%d" % (Z + 1, vDT, P + 1))
    A("v_mul_f32 v%d, v%d, v%d" % (P + 2, vDT, P + 2))
    A("v_mul_f32 v%d, v%d, v%d" % (P + 3, vDT, P + 3))
    A("v_mul_f32 v%d, 0x%x, v%d" % (Z, f32bits(LOG2E), Z))
    A("v_mul_f32 v%d, 0x%x, v%d" % (Z + 1, f32bits(1.0 / (2 * math.pi)), Z + 1))
    def cmul(d, a, b, t, conj=False):
        A("v_pk_mul_f32 %s, %s, %s op_sel_hi:[0,1]" % (v(t, 2), v(b, 2), v(a, 2)))
        A("v_pk_fma_f32 %s, %s, %s, %s op_sel:[1,1,0] op_sel_hi:[1,0,1] %s:[1,0,0]" % (v(d, 2), v(b, 2), v(a, 2), v(t, 2), "neg_hi" if conj else "neg_lo"))
    def anchor(d, m):
        if m == 1:
            A("v_exp_f32 v%d, v%d" % (t0, Z))
            A("v_fract_f32 v%d, v%d" % (t1, Z + 1))
        else:
            A("v_mul_f32 v%d, %s, v%d" % (t0, "%d.0" % m if m in (2, 4) else "0x%x" % f32bits(float(m)), Z))
            A("v_mul_f32 v%d, %s, v%d" % (t1, "%d.0" % m if m in (2, 4) else "0x%x" % f32bits(float(m)), Z + 1))
            A("v_exp_f32 v%d, v%d" % (t0, t0))
            A("v_fract_f32 v%d, v%d" % (t1, t1))
        A("v_cos_f32 v%d, v%d" % (d, t1))
        A("v_sin_f32 v%d, v%d" % (d + 1, t1))
        A("s_nop 0")
        A("v_mul_f32 v%d, v%d, v%d" % (d, d, t0))
        A("v_mul_f32 v%d, v%d, v%d" % (d + 1, d + 1, t0))
    anchor(W8, 8)
    anchor(E1, 1)
    cmul(CB, P + 4, P + 2, T1)
    A("v_xor_b32 v%d, 0x80000000, v%d" % (CB + 1, CB + 1))
    anchor(E256, 256)
    anchor(E512, 512)
    anchor(E1024, 1024)
    cmul(E2, E1, E1, T1)
    cmul(E4, E2, E2, T2)
    pki = [0]
    def put(src, rows):
        pk = PK[pki[0] & 3]; pki[0] += 1
        A("v_cvt_pk_bf16_f32 v%d, v%d, v%d" % (pk, src, src + 1))
        for r in rows:
            A("ds_write_b32 v%d, v%d offset:%d" % (vTab, pk, r * 272))
    fops = []
    fops.append(lambda: (A("v_mov_b32 v%d, 0x3f80" % PK[3]), A("ds_write_b32 v%d, v%d offset:%d" % (vTab, PK[3], 32 * 272))))
    fops.append(lambda: put(W8, [33]))
    cur = W8
    fr = [FA, FB]
    for j in range(2, 32):
        d = fr[j & 1]
        fops.append((lambda d=d, cur=cur, j=j: (cmul(d, cur, W8, T1), put(d, [32 + j]))))
        cur = d
    gops = []
    def gstep(d, a, b, base):
        gops.append(lambda: (cmul(d, a, b, T2, conj=True), put(d, GROWS[base])))
    gops.append(lambda: put(CB, GROWS[0]))
    g = [GA, GB]
    prev = CB
    for k in range(1, 8):
        gstep(g[k & 1], prev, E1, k); prev = g[k & 1]
    G256, G512, G1024, G1536 = 36, 52, 54, 56
    gstep(G256, CB, E256, 256)
    prev = G256
    for k, base in enumerate((258, 260, 262, 264)):
        gstep(g[k & 1], prev, E2, base); prev = g[k & 1]
    gstep(G512, CB, E512, 512)
    gstep(GA, G512, E4, 516); gstep(GB, GA, E4, 520)
    gstep(G256, G512, E256, 768)
    gstep(GA, G256, E4, 772); gstep(GB, GA, E4, 776)
    gstep(G1024, CB, E1024, 1024)
    gstep(GA, G1024, W8, 1032)
    gstep(GB, G1024, E256, 1280); gstep(GA, GB, W8, 1288)
    gstep(G1536, G1024, E512, 1536); gstep(GA, G1536, W8, 1544)
    gstep(GB, G1536, E256, 1792); gstep(GA, GB, W8, 1800)
    n = max(len(fops), len(gops))
    for i in range(n):
        if i < len(fops): fops[i]()
        if i < len(gops): gops[i]()
    stamp(A, timing, 1)
    A("s_lshl_b32 s45, s%d, 2" % sW)
    A("s_add_u32 s45, s45, %d" % FL)
    A("v_mov_b32 v58, s45")
    A("s_xor_b32 s45, s45, 4")
    A("v_mov_b32 v59, s45")
    A("v_mov_b32 v51, 4")
    AF, BF, DK = 64, 96, 16
    A("v_and_b32 v%d, 31, v%d" % (t0, vLane))
    A("v_mul_u32_u24 v%d, 272, v%d" % (t0, t0))
    A("v_lshrrev_b32 v%d, 5, v%d" % (t1, vLane))
    A("v_lshl_add_u32 v%d, v%d, 4, v%d" % (t0, t1, t0))
    A("v_add_u32 v%d, s42, v%d" % (t0, t0))
    for t in range(8):
        A("ds_read_b128 %s, v%d offset:%d" % (v(AF + 4 * t, 4), t0, 32 * t))
        A("ds_read_b128 %s, v%d offset:%d" % (v(BF + 4 * t, 4), t0, 32 * 272 + 32 * t))
    for t in range(8):
        A("s_waitcnt lgkmcnt(%d)" % (14 - 2 * t))
        A("v_mfma_f32_32x32x16_bf16 %s, %s, %s, %s" % (v(DK, 16), v(AF + 4 * t, 4), v(BF + 4 * t, 4), "0" if t == 0 else v(DK, 16)))
    vL16 = 7
    A("v_lshlrev_b32 v%d, 4, v%d" % (vL16, vLane))
    A("v_add_u32 v%d, s42, v%d" % (t0, vL16))
    A("s_xor_b32 s45, s%d, 1" % sW)
    A("s_mul_i32 s45, s45, %d" % TAB)
    A("v_add_u32 v%d, s45, v%d" % (t1, vL16))
    A("s_mul_i32 s46, s%d, %d" % (sCH, CH))
    A("s_nop 7")
    A("s_nop 1")
    A("s_cmp_eq_u32 s%d, 0" % sHF)
    A("s_cbranch_scc0 ssm_x1")
    A("ds_write_b128 v%d, %s" % (t0, v(DK + 8, 4)))
    A("ds_write_b128 v%d, %s offset:1024" % (t0, v(DK + 12, 4)))
    A("s_branch ssm_x2")
    A.label("ssm_x1")
    A("ds_write_b128 v%d, %s" % (t0, v(DK, 4)))
    A("ds_write_b128 v%d, %s offset:1024" % (t0, v(DK + 4, 4)))
    A.label("ssm_x2")
    A("s_waitcnt lgkmcnt(0)")
    flag_set(A, 58, 51, 0)
    flag_wait(A, 59, 0, "ssm_fx")
    stamp(A, timing, 2)
    R = 32
    A("ds_read_b128 %s, v%d" % (v(R, 4), t1))
    A("ds_read_b128 %s, v%d offset:1024" % (v(R + 4, 4), t1))
    A("v_and_b32 v%d, 31, v%d" % (t2, vLane))
    A("v_lshrrev_b32 v%d, 5, v%d" % (t3, vLane))
    A("v_lshlrev_b32 v%d, 4, v%d" % (t2, t2))
    A("s_add_u32 s47, s46, %d" % (CP0 + 4080))
    A("v_sub_u32 v%d, s47, v%d" % (t2, t2))
    A("s_waitcnt lgkmcnt(0)")
    A("s_cmp_eq_u32 s%d, 0" % sHF)
    A("s_cbranch_scc0 ssm_y1")
    for r in range(8): A("v_add_f32 v%d, v%d, v%d" % (DK + r, DK + r, R + r))
    A("v_lshlrev_b32 v%d, 9, v%d" % (t3, t3))
    A("v_sub_u32 v%d, v%d, v%d" % (t2, t2, t3))
    for j in range(4): A("v_cvt_pk_bf16_f32 v%d, v%d, v%d" % (R + j, DK + 2 * j, DK + 2 * j + 1))
    A("ds_write_b128 v%d, %s" % (t2, v(R, 4)))
    A("v_mov_b32 v%d, 0" % (R + 4)); A("v_mov_b32 v%d, 0" % (R + 5)); A("v_mov_b32 v%d, 0" % (R + 6)); A("v_mov_b32 v%d, 0" % (R + 7))
    A("s_add_u32 s47, s46, %d" % (CP0 + 4096))
    A("v_add_u32 v%d, s47, v%d" % (t3, vL16))
    A("s_mov_b64 exec, 0xf")
    A("ds_write_b128 v%d, %s" % (t3, v(R + 4, 4)))
    A("s_mov_b64 exec, -1")
    A("s_branch ssm_y2")
    A.label("ssm_y1")
    for r in range(8): A("v_add_f32 v%d, v%d, v%d" % (DK + r, DK + 8 + r, R + r))
    A("v_lshlrev_b32 v%d, 9, v%d" % (R + 12, t3))
    A("v_sub_u32 v%d, v%d, v%d" % (R + 12, t2, R + 12))
    A("v_subrev_u32 v%d, 1024, v%d" % (R + 12, R + 12))
    A("v_cvt_pk_bf16_f32 v%d, v%d, v%d" % (R + 0, DK + 0, DK + 0))
    A("v_cvt_pk_bf16_f32 v%d, v%d, v%d" % (R + 1, DK + 1, DK + 1))
    A("v_cvt_pk_bf16_f32 v%d, v%d, v%d" % (R + 2, DK + 1, DK + 2))
    A("v_cvt_pk_bf16_f32 v%d, v%d, v%d" % (R + 3, DK + 2, DK + 2))
    A("ds_write_b128 v%d, %s" % (R + 12, v(R, 4)))
    A("v_lshlrev_b32 v%d, 10, v%d" % (R + 13, t3))
    A("v_sub_u32 v%d, v%d, v%d" % (R + 13, t2, R + 13))
    A("v_subrev_u32 v%d, 2560, v%d" % (R + 13, R + 13))
    A("v_and_b32 v%d, 1, v%d" % (R + 14, vLane))
    A("v_cmp_eq_u32 vcc, 1, v%d" % (R + 14))
    A("s_nop 1")
    for k in range(2):
        K8, K0 = DK + 4 + 2 * k, DK + 5 + 2 * k
        o = R + 4 + 4 * k
        A("v_cndmask_b32 v%d, v%d, v%d, vcc" % (R + 15, K0, K8))
        A("v_cvt_pk_bf16_f32 v%d, v%d, v%d" % (o + 0, K8, K8))
        A("v_cvt_pk_bf16_f32 v%d, v%d, v%d" % (o + 1, K8, R + 15))
        A("v_cvt_pk_bf16_f32 v%d, v%d, v%d" % (o + 2, K0, K0))
        A("v_mov_b32 v%d, v%d" % (o + 3, o + 2))
    A("ds_write_b128 v%d, %s offset:512" % (R + 13, v(R + 4, 4)))
    A("ds_write_b128 v%d, %s" % (R + 13, v(R + 8, 4)))
    A.label("ssm_y2")
    A("s_waitcnt lgkmcnt(0)")
    flag_set(A, 58, 51, 32)
    flag_wait(A, 59, 32, "ssm_fd")
    stamp(A, timing, 3)
    A("s_lshl_b32 s47, s%d, 11" % sHF)
    A("s_add_u32 s47, s47, s46")
    A("s_add_u32 s47, s47, %d" % CP0)
    A("v_add_u32 v%d, s47, v%d" % (t0, vL16))
    for it in range(2):
        d = 32 + 8 * it
        A("ds_read_b128 %s, v%d offset:%d" % (v(d, 4), t0, it * 1024))
        A("ds_read_b64 %s, v%d offset:%d" % (v(d + 4, 2), t0, it * 1024 + 16))
    A("v_lshrrev_b32 v%d, 2, v%d" % (t1, vLane))
    A("v_mul_u32_u24 v%d, %d, v%d" % (t1, CPS, t1))
    A("v_and_b32 v%d, 3, v%d" % (t2, vLane))
    A("v_lshl_add_u32 v%d, v%d, 4, v%d" % (t1, t2, t1))
    A("s_add_u32 s47, s46, %d" % (CP0 + CPS + 4096))
    A("v_add_u32 v%d, s47, v%d" % (t1, t1))
    for r in range(4): A("v_mov_b32 v%d, 0" % (60 + r))
    A("s_cmp_eq_u32 s%d, 0" % sHF)
    A("s_cbranch_scc0 ssm_z1")
    A("s_mov_b64 exec, 0xfff")
    A("ds_write_b128 v%d, v[60:63]" % t1)
    A("s_mov_b64 exec, -1")
    A.label("ssm_z1")
    A("v_add_u32 v64, %d, v%d" % (2 * CPS, t0))
    A("v_add_u32 v65, %d, v%d" % (2 * CPS + 1024, t0))
    A("s_waitcnt lgkmcnt(0)")
    for it in range(2):
        d = 32 + 8 * it; e = 48 + 8 * it
        for i in range(4): A("v_alignbit_b32 v%d, v%d, v%d, 16" % (e + i, d + i + 1, d + i))
        for i in range(4): A("v_alignbit_b32 v%d, v%d, v%d, 16" % (e + 4 + i, d + i + 2, d + i + 1))
        A("ds_write_b128 v%d, %s offset:%d" % (t0, v(e, 4), it * 1024 + CPS))
        A("ds_write2_b32 v%d, v%d, v%d offset0:0 offset1:1" % (64 + it, d + 1, d + 2))
        A("ds_write2_b32 v%d, v%d, v%d offset0:2 offset1:3" % (64 + it, d + 3, d + 4))
        A("ds_write_b128 v%d, %s offset:%d" % (t0, v(e + 4, 4), it * 1024 + 3 * CPS))
    AF, BF, DC = 32, 64, 96
    vAlo, vAhi, vB = 8, 9, 10
    A("v_and_b32 v%d, 3, v%d" % (t1, vLane))
    A("v_sub_u32 v%d, 3, v%d" % (t1, t1))
    A("v_mul_u32_u24 v%d, %d, v%d" % (vAlo, CPS, t1))
    A("v_bfe_u32 v%d, v%d, 2, 2" % (t1, vLane))
    A("v_lshrrev_b32 v%d, 4, v%d" % (t2, vLane))
    A("v_lshlrev_b32 v%d, 1, v%d" % (t3, t2))
    A("v_sub_u32 v%d, v%d, v%d" % (t3, t3, t1))
    A("v_lshl_add_u32 v%d, v%d, 3, v%d" % (vAlo, t3, vAlo))
    A("s_lshl_b32 s47, s%d, 8" % sHF)
    A("s_sub_u32 s48, s46, s47")
    A("s_add_u32 s48, s48, %d" % (CP0 + 8 * 507 - 3584))
    A("v_add_u32 v%d, s48, v%d" % (vAlo, vAlo))
    A("v_add_u32 v%d, 2048, v%d" % (vAhi, vAlo))
    A("v_and_b32 v%d, 15, v%d" % (t1, vLane))
    A("v_lshlrev_b32 v%d, 5, v%d" % (vB, t1))
    A("v_lshl_add_u32 v%d, v%d, 4, v%d" % (vB, t2, vB))
    A("s_mul_i32 s48, s%d, %d" % (sCH, UP))
    A("s_add_u32 s48, s48, %d" % (UB + 448))
    A("s_sub_u32 s49, s48, s47")
    A("v_add_u32 v%d, s49, v%d" % (vB, vB))
    vU, vO = 11, 12
    A("v_lshlrev_b32 v%d, 5, v%d" % (vO, t1))
    A("v_lshl_add_u32 v%d, v%d, 3, v%d" % (vO, t2, vO))
    A("s_lshl_b32 s47, s%d, 11" % sHF)
    A("s_add_u32 s49, s48, s47")
    A("s_add_u32 s49, s49, 32")
    A("v_add_u32 v%d, s49, v%d" % (vU, vO))
    A("s_add_u32 s10, s%d, s%d" % (sD0, sCH))
    A("s_lshl_b32 s10, s10, 12")
    A("s_add_u32 s10, s10, s47")
    A("s_add_u32 s47, s46, %d" % EX2)
    A("s_lshl_b32 s48, s%d, 12" % sHF)
    A("s_add_u32 s49, s47, s48")
    A("v_add_u32 v%d, s49, v%d" % (13, vL16))
    A("s_xor_b32 s48, s48, 4096")
    A("s_add_u32 s49, s47, s48")
    A("v_add_u32 v%d, s49, v%d" % (14, vL16))
    vFo, vFp, vFc, vFu, vF4 = 16, 17, 18, 19, 20
    A("s_lshl_b32 s45, s%d, 2" % sW)
    A("s_add_u32 s45, s45, %d" % FL)
    A("v_mov_b32 v%d, s45" % vFo)
    A("s_xor_b32 s45, s45, 4")
    A("v_mov_b32 v%d, s45" % vFp)
    A("v_mov_b32 v%d, 4" % vF4)
    A("v_mov_b32 v%d, %d" % (vFu, FL + 128))
    A("v_add_u32 v%d, 64, v%d" % (vFc, vFp))
    A("s_mov_b32 s45, %d" % (FL + 128))
    A("v_writelane_b32 v%d, s45, 1" % vFc)
    if not UROT:
        A("s_mov_b32 s45, %d" % (FL + 132))
        A("v_writelane_b32 v%d, s45, 2" % vFc)
    A("v_subrev_u32 v%d, 192, v%d" % (vAlo, vAlo))
    A("v_subrev_u32 v%d, 192, v%d" % (vB, vB))
    A("s_waitcnt lgkmcnt(0)")
    flag_set(A, vFo, vF4, 64)
    stamp(A, timing, 8)
    conv_phases(A, timing, vAlo, vB, AF, BF, DC, vFc, vFu)
    stamp(A, timing, 5)
    A("s_nop 7")
    A("s_cmp_eq_u32 s%d, 0" % sHF)
    A("s_cbranch_scc0 ssm_w1")
    for k in range(4): A("ds_write_b128 v13, %s offset:%d" % (v(DC + 16 + 4 * k, 4), 1024 * k))
    A("s_branch ssm_w2")
    A.label("ssm_w1")
    for k in range(4): A("ds_write_b128 v13, %s offset:%d" % (v(DC + 4 * k, 4), 1024 * k))
    A.label("ssm_w2")
    U = 32
    for k in range(4): A("ds_read_b64 %s, v%d offset:%d" % (v(U + 2 * k, 2), vU, 512 * k))
    A("s_waitcnt lgkmcnt(0)")
    flag_set(A, vFo, vF4, 96)
    flag_wait(A, vFp, 96, "ssm_fe")
    R = 64
    for k in range(4): A("ds_read_b128 %s, v14 offset:%d" % (v(R + 4 * k, 4), 1024 * k))
    UF = 40
    for k in range(8):
        A("v_lshlrev_b32 v%d, 16, v%d" % (UF + 2 * k, U + k))
        A("v_and_b32 v%d, 0xffff0000, v%d" % (UF + 2 * k + 1, U + k))
    for r in range(16): A("v_mul_f32 v%d, s%d, v%d" % (UF + r, sDskip, UF + r))
    for k in range(8): A("v_cvt_pk_bf16_f32 v%d, v%d, v%d" % (U + k, UF + 2 * k, UF + 2 * k + 1))
    for k in range(8):
        A("v_lshlrev_b32 v%d, 16, v%d" % (UF + 2 * k, U + k))
        A("v_and_b32 v%d, 0xffff0000, v%d" % (UF + 2 * k + 1, U + k))
    A("s_waitcnt lgkmcnt(0)")
    A("s_cmp_eq_u32 s%d, 0" % sHF)
    A("s_cbranch_scc0 ssm_v1")
    for r in range(16): A("v_add_f32 v%d, v%d, v%d" % (DC + r, DC + r, R + r))
    A("s_branch ssm_v2")
    A.label("ssm_v1")
    for r in range(16): A("v_add_f32 v%d, v%d, v%d" % (DC + r, DC + 16 + r, R + r))
    A.label("ssm_v2")
    for k in range(8): A("v_cvt_pk_bf16_f32 v%d, v%d, v%d" % (U + k, DC + 2 * k, DC + 2 * k + 1))
    for k in range(8):
        A("v_lshlrev_b32 v%d, 16, v%d" % (DC + 2 * k, U + k))
        A("v_and_b32 v%d, 0xffff0000, v%d" % (DC + 2 * k + 1, U + k))
    for r in range(16): A("v_add_f32 v%d, v%d, v%d" % (DC + r, DC + r, UF + r))
    for k in range(8): A("v_cvt_pk_bf16_f32 v%d, v%d, v%d" % (U + k, DC + 2 * k, DC + 2 * k + 1))
    for k in range(4):
        A("buffer_store_dwordx2 %s, v%d, s[%d:%d], s10 offen offset:%d%s" % (v(U + 2 * k, 2), vO, SAT, SAT + 3, 512 * k, SC1))
    stamp(A, timing, 6)
    dump_stamps(A, timing, 11, end, 0)
    A("s_branch %s" % end)

SSM2 = False
SSM3 = True
RS = 2056
NGR = 29
FBASE = NGR * RS
UB2 = 125440
UCH, UCB = 9120, 4576
KB2 = 16 * RS
KCH, CPS2 = 8448, 4224
EX3 = 69632
DROW = [7, 6, 5, 4, 264, 262, 260, 260, 3, 2, 1, 0, 260, 258, 256, 256, 520, 516, 512, -1, 776, 772, 768, 255, 1032, 1024, 1288, 1280, 1544, 1536, 1800, 1792]
SROWMAP = {7: 6, 12: 6, 15: 14, 29: 7, 30: 12, 31: 15}
SROW = {}
for r_, b_ in enumerate(DROW): SROW.setdefault(b_, SROWMAP.get(r_, r_))
PIPE = True
QST = False
NOSSM = False
NOQ = False

def role_ssm2(A, end, timing):
    t0, t1, t2, t3 = 2, 3, 4, 5
    sD0, sCH, sHF = 7, 8, 9
    SX, SAT = 12, 36
    A("s_load_dwordx16 s[16:31], s[0:1], 0")
    A("s_load_dwordx2 s[32:33], s[0:1], 64")
    A("s_load_dwordx2 s[4:5], s[0:1], 136")
    A("s_and_b32 s10, s2, 7")
    A("s_mul_i32 s10, s10, 20")
    A("s_lshr_b32 s11, s2, 3")
    A("s_add_u32 s10, s10, s11")
    A("s_lshl_b32 s%d, s10, 2" % sD0)
    A("s_cmp_lt_u32 s%d, 8" % sW)
    A("s_cbranch_scc1 ssm_main")
    if LPRIO: A("s_setprio %d" % LPRIO)
    A("s_load_dwordx2 s[36:37], s[0:1], 112")
    A("s_sub_u32 s10, s%d, 8" % sW)
    A("v_mul_u32_u24 v%d, 2560, v%d" % (t0, vLane))
    A("s_mul_i32 s11, s10, %d" % (128 * 1280))
    A("s_lshl_b32 s34, s%d, 1" % sD0)
    A("s_add_u32 s11, s11, s34")
    A("s_add_u32 s35, s11, %d" % (1024 * 1280))
    GX, GW, XU, WU, SGW, SG = 32, 44, 52, 64, 40, 44
    A("s_lshl_b32 s38, s2, 3")
    A("s_add_u32 s38, s38, s10")
    A("s_mul_i32 s39, s38, 1280")
    A("s_add_u32 s48, s39, %d" % (1280 * 1280))
    A("v_mul_u32_u24 v24, 20, v%d" % vLane)
    A("v_mov_b32 v25, 0")
    A("s_waitcnt lgkmcnt(0)")
    srd(A, SX, 16, 0, NQ)
    srd(A, SGW, 36, 0, 1280)
    srd(A, SG, 4, WS_G, 8192)
    if B0: A("s_barrier")
    for e in range(2):
        A("buffer_load_dwordx2 %s, v%d, s[%d:%d], s11 offen offset:%d %s" % (v(8 + 2 * e, 2), t0, SX, SX + 3, 1280 * e, GMOD))
    for j in range(2):
        A("buffer_load_dwordx4 %s, v24, s[%d:%d], s%d offen" % (v(GX + 6 * j, 4), SX, SX + 3, 48 if j else 39))
        A("buffer_load_dword v%d, v24, s[%d:%d], s%d offen offset:16" % (GX + 6 * j + 4, SX, SX + 3, 48 if j else 39))
    A("buffer_load_dwordx4 %s, v24, s[%d:%d], 0 offen" % (v(GW, 4), SGW, SGW + 3))
    A("buffer_load_dword v%d, v24, s[%d:%d], 0 offen offset:16" % (GW + 4, SGW, SGW + 3))
    for e in range(2):
        A("buffer_load_dwordx2 %s, v%d, s[%d:%d], s35 offen offset:%d %s" % (v(12 + 2 * e, 2), t0, SX, SX + 3, 1280 * e, GMOD))
    A("v_mov_b32 v16, 0"); A("v_mov_b32 v17, 0"); A("v_mov_b32 v18, 0"); A("v_mov_b32 v19, 0")
    A("s_lshr_b32 s34, s10, 1")
    A("s_mul_i32 s34, s34, %d" % UCH)
    A("s_and_b32 s50, s10, 1")
    A("s_mul_i32 s50, s50, %d" % UCB)
    A("s_add_u32 s34, s34, s50")
    A("s_add_u32 s34, s34, %d" % UB2)
    A("v_lshlrev_b32 v%d, 4, v%d" % (t1, vLane))
    A("v_add_u32 v%d, s34, v%d" % (t1, t1))
    A("s_mov_b32 exec_lo, 0x1fffffff")
    A("s_mov_b32 exec_hi, 0")
    A("ds_write_b128 v%d, v[16:19]" % t1)
    A("s_mov_b64 exec, -1")
    A("s_lshl_b32 s34, s10, 8")
    A("s_add_u32 s34, s34, %d" % (UB2 + 452))
    A("v_lshlrev_b32 v%d, 2, v%d" % (t1, vLane))
    A("v_add_u32 v%d, s34, v%d" % (t1, t1))
    A("s_mov_b32 s52, 0x05040100")
    A("s_mov_b32 s53, 0x07060302")
    A("s_waitcnt lgkmcnt(0)")
    A("s_barrier")
    def uwrite(q):
        r = 8 + 4 * q
        for c in range(4):
            A("v_perm_b32 v%d, v%d, v%d, s%d" % (16 + c, r + 2 + (c >> 1), r + (c >> 1), 52 + (c & 1)))
        for c in range(4):
            A("ds_write_b32 v%d, v%d offset:%d" % (t1, 16 + c, 2048 * q + c * UCH))
            A("ds_write_b32 v%d, v%d offset:%d" % (t1, 16 + c, 2048 * q + c * UCH + 4572))
        A("s_waitcnt lgkmcnt(0)")
    A("s_waitcnt vmcnt(8)")
    uwrite(0)
    stamp(A, timing, 1)
    A("s_barrier")
    A("s_setprio 0")
    A("s_waitcnt vmcnt(2)")
    for q in range(5):
        A("v_lshlrev_b32 v%d, 16, v%d" % (WU + 2 * q, GW + q))
        A("v_and_b32 v%d, 0xffff0000, v%d" % (WU + 2 * q + 1, GW + q))
    A("s_lshl_b32 s48, s38, 2")
    gate_row(A, GX, XU, WU, SG, 25, 48)
    A("s_add_u32 s49, s48, %d" % (1280 * 4))
    gate_row(A, GX + 6, XU, WU, SG, 25, 49)
    if LPRIO: A("s_setprio %d" % LPRIO)
    stamp(A, timing, 2)
    A("s_waitcnt vmcnt(2)")
    uwrite(1)
    stamp(A, timing, 3)
    A("s_barrier")
    dump_stamps(A, timing, 4, end, 0)
    A("s_branch %s" % end)

    A.label("ssm_main")
    A("s_lshr_b32 s%d, s%d, 1" % (sCH, sW))
    A("s_and_b32 s%d, s%d, 1" % (sHF, sW))
    P = 8
    for i in range(6): A("v_mov_b32 v%d, 0" % (P + i))
    A("s_add_u32 s10, s%d, s%d" % (sD0, sCH))
    A("s_lshl_b32 s11, s10, 8")
    A("s_lshl_b32 s34, s%d, 7" % sHF)
    A("s_add_u32 s11, s11, s34")
    A("v_lshlrev_b32 v%d, 1, v%d" % (t0, vLane))
    A("v_add_u32 v%d, s11, v%d" % (t0, t0))
    A("s_lshl_b32 s11, s%d, 1" % sD0)
    A("s_waitcnt lgkmcnt(0)")
    for i in range(6):
        A("global_load_short_d16_hi v%d, v%d, s[%d:%d]" % (P + i, t0, 18 + 2 * i, 19 + 2 * i))
    A("s_load_dwordx2 s[34:35], s[30:31], s11")
    A("s_load_dwordx2 s[40:41], s[32:33], s11")
    if B0: A("s_barrier")
    srd(A, SAT, 4, WS_AT, NQ)
    vL16 = 7
    vGA, vFA = 58, 59
    vXS, vXR = 60, 61
    vXS1, vXR1 = 62, 63
    vKW = 120
    vA, vB, vU, vO, vES, vER = 121, 122, 123, 124, 125, 126
    sMG, sMF = 42, 43
    A("s_lshl_b32 s%d, s%d, 8" % (sMG, sW))
    A("s_add_u32 s%d, s%d, %d" % (sMF, sMG, FBASE))
    A("v_lshlrev_b32 v%d, 4, v%d" % (vL16, vLane))
    A("v_and_b32 v%d, 31, v%d" % (t1, vLane))
    A("v_lshrrev_b32 v%d, 5, v%d" % (t2, vLane))
    A("v_mul_u32_u24 v%d, %d, v%d" % (vFA, RS, t1))
    A("v_mov_b32 v%d, v%d" % (t3, t1))
    for r_, s_ in sorted(SROWMAP.items()):
        A("v_writelane_b32 v%d, %d, %d" % (t3, s_, r_))
        A("v_writelane_b32 v%d, %d, %d" % (t3, s_, r_ + 32))
    A("v_mul_u32_u24 v%d, %d, v%d" % (vGA, RS, t3))
    A("v_lshl_add_u32 v%d, v%d, 4, v%d" % (vGA, t2, vGA))
    A("v_add_u32 v%d, s%d, v%d" % (vGA, sMG, vGA))
    A("v_lshl_add_u32 v%d, v%d, 4, v%d" % (vFA, t2, vFA))
    A("v_add_u32 v%d, s%d, v%d" % (vFA, sMF, vFA))
    A("v_lshrrev_b32 v%d, 4, v%d" % (t3, vLane))
    A("v_mul_u32_u24 v%d, %d, v%d" % (vXS, 2 * RS, t3))
    A("v_and_b32 v%d, 15, v%d" % (t0, vLane))
    A("v_lshl_add_u32 v%d, v%d, 4, v%d" % (vXS, t0, vXS))
    A("s_xor_b32 s45, s%d, 256" % sMG)
    A("v_add_u32 v%d, s45, v%d" % (vXR, vXS))
    A("v_add_u32 v%d, s%d, v%d" % (vXS, sMG, vXS))
    A("v_lshlrev_b32 v%d, 2, v%d" % (vXS1, vLane))
    A("v_add_u32 v%d, %d, v%d" % (vXS1, RS, vXS1))
    A("v_add_u32 v%d, s45, v%d" % (vXR1, vXS1))
    A("v_add_u32 v%d, s%d, v%d" % (vXS1, sMG, vXS1))
    A("s_mul_i32 s46, s%d, %d" % (sCH, KCH))
    A("s_add_u32 s46, s46, %d" % KB2)
    A("s_add_u32 s47, s46, 4080")
    A("v_lshlrev_b32 v%d, 4, v%d" % (vKW, t1))
    A("v_sub_u32 v%d, s47, v%d" % (vKW, vKW))
    A("s_mov_b32 s52, 0"); A("s_mov_b32 s53, -1")
    A("s_mov_b32 s54, 1"); A("s_mov_b32 s55, 1")
    A("s_mov_b32 s56, 0xaaaaaaaa"); A("s_mov_b32 s57, 0xaaaaaaaa")
    A("v_and_b32 v%d, 1, v%d" % (vA, t0))
    A("v_xor_b32 v%d, 1, v%d" % (vA, vA))
    A("v_mul_u32_u24 v%d, %d, v%d" % (vA, CPS2, vA))
    A("v_lshrrev_b32 v%d, 1, v%d" % (vB, t0))
    A("v_lshlrev_b32 v%d, 3, v%d" % (vU, vB))
    A("v_sub_u32 v%d, v%d, v%d" % (vA, vA, vU))
    A("v_lshl_add_u32 v%d, v%d, 4, v%d" % (vA, t3, vA))
    A("s_lshl_b32 s47, s%d, 8" % sHF)
    A("s_sub_u32 s48, s46, s47")
    A("s_add_u32 s48, s48, %d" % (4088 - 3584 - 192))
    A("v_add_u32 v%d, s48, v%d" % (vA, vA))
    A("v_lshlrev_b32 v%d, 6, v%d" % (vO, vB))
    A("v_lshl_add_u32 v%d, v%d, 4, v%d" % (vO, t3, vO))
    A("v_and_b32 v%d, 1, v%d" % (vU, t0))
    A("v_mul_u32_u24 v%d, %d, v%d" % (vB, UCB, vU))
    A("v_add_u32 v%d, v%d, v%d" % (vB, vB, vO))
    A("s_mul_i32 s48, s%d, %d" % (sCH, UCH))
    A("s_add_u32 s48, s48, %d" % (UB2 + 448))
    A("s_sub_u32 s49, s48, s47")
    A("s_sub_u32 s49, s49, 192")
    A("v_add_u32 v%d, s49, v%d" % (vB, vB))
    A("v_lshl_add_u32 v%d, v%d, 2, v%d" % (vO, vU, vO))
    A("s_lshl_b32 s47, s%d, 11" % sHF)
    A("s_add_u32 s49, s48, s47")
    A("s_add_u32 s49, s49, %d" % UCB)
    A("v_add_u32 v%d, s49, v%d" % (vU, vO))
    A("s_add_u32 s50, s%d, s%d" % (sD0, sCH))
    A("s_lshl_b32 s50, s50, 12")
    A("s_add_u32 s50, s50, s47")
    sOut = 50
    A("s_lshl_b32 s48, s%d, 12" % sW)
    A("s_add_u32 s49, s48, %d" % EX3)
    A("v_add_u32 v%d, s49, v%d" % (vES, vL16))
    A("s_xor_b32 s49, s49, 4096")
    A("v_add_u32 v%d, s49, v%d" % (vER, vL16))
    A("s_waitcnt lgkmcnt(0)")
    for (src, dst) in ((34, 58), (40, 44)):
        A("s_bitcmp1_b32 s%d, 1" % sCH)
        A("s_cselect_b32 s%d, s%d, s%d" % (dst, src + 1, src))
        A("s_lshl_b32 s45, s%d, 16" % dst)
        A("s_and_b32 s%d, s%d, 0xffff0000" % (dst, dst))
        A("s_bitcmp1_b32 s%d, 0" % sCH)
        A("s_cselect_b32 s%d, s%d, s45" % (dst, dst))
    sDskip = 44
    vDT = 6
    A("v_mov_b32 v%d, s58" % vDT)
    A("v_mul_f32 v%d, 0x%x, v%d" % (vDT, f32bits(LOG2E), vDT))
    A("v_exp_f32 v%d, v%d" % (vDT, vDT))
    A("s_mov_b32 m0, s%d" % sMF)
    A("v_cvt_pk_bf16_f32 v%d, v%d, v%d" % (vDT, vDT, vDT))
    A("v_and_b32 v%d, 0xffff0000, v%d" % (vDT, vDT))
    Z, E1, E2, E4, W8, E256, E512, E1024, CB, EM1, W16 = 14, 16, 18, 20, 22, 24, 26, 28, 30, 64, 66
    GA, GB, T1, T2 = 32, 34, 42, 44
    FR = [38, 40, 68, 70]
    G256, G512, G1024, G1536 = 36, 52, 54, 56
    PK = [46, 47, 48, 49]
    A("v_mov_b32 v%d, 0x3f80" % PK[3])
    A("ds_write_addtid_b32 v%d offset:0" % PK[3])
    A("s_waitcnt vmcnt(0)")
    stamp(A, timing, 7)
    A("v_mul_f32 v%d, v%d, v%d" % (Z, vDT, P + 0))
    A("v_mul_f32 v%d, v%d, v%d" % (Z + 1, vDT, P + 1))
    A("v_mul_f32 v%d, v%d, v%d" % (P + 2, vDT, P + 2))
    A("v_mul_f32 v%d, v%d, v%d" % (P + 3, vDT, P + 3))
    A("v_mul_f32 v%d, 0x%x, v%d" % (Z, f32bits(LOG2E), Z))
    A("v_mul_f32 v%d, 0x%x, v%d" % (Z + 1, f32bits(1.0 / (2 * math.pi)), Z + 1))
    def cmul(d, a, b, t, conj=False):
        A("v_pk_mul_f32 %s, %s, %s op_sel_hi:[0,1]" % (v(t, 2), v(b, 2), v(a, 2)))
        A("v_pk_fma_f32 %s, %s, %s, %s op_sel:[1,1,0] op_sel_hi:[1,0,1] %s:[1,0,0]" % (v(d, 2), v(b, 2), v(a, 2), v(t, 2), "neg_hi" if conj else "neg_lo"))
    A("v_exp_f32 v%d, v%d" % (t0, Z))
    A("v_fract_f32 v%d, v%d" % (t1, Z + 1))
    A("v_exp_f32 v%d, -v%d" % (t2, Z))
    A("v_cos_f32 v%d, v%d" % (E1, t1))
    A("v_sin_f32 v%d, v%d" % (E1 + 1, t1))
    A("v_mul_f32 v%d, 0x%x, v%d" % (Z, f32bits(256.0), Z))
    A("v_mul_f32 v%d, 0x%x, v%d" % (Z + 1, f32bits(256.0), Z + 1))
    A("v_mul_f32 v%d, v%d, v%d" % (EM1, E1, t2))
    A("v_mul_f32 v%d, -v%d, v%d" % (EM1 + 1, E1 + 1, t2))
    A("v_mul_f32 v%d, v%d, v%d" % (E1, E1, t0))
    A("v_mul_f32 v%d, v%d, v%d" % (E1 + 1, E1 + 1, t0))
    A("v_exp_f32 v%d, v%d" % (t0, Z))
    A("v_fract_f32 v%d, v%d" % (t1, Z + 1))
    cmul(E2, E1, E1, T1)
    A("v_cos_f32 v%d, v%d" % (E256, t1))
    A("v_sin_f32 v%d, v%d" % (E256 + 1, t1))
    cmul(E4, E2, E2, T1)
    cmul(CB, P + 4, P + 2, T2)
    cmul(W8, E4, E4, T1)
    A("v_xor_b32 v%d, 0x80000000, v%d" % (CB + 1, CB + 1))
    A("v_mul_f32 v%d, v%d, v%d" % (E256, E256, t0))
    A("v_mul_f32 v%d, v%d, v%d" % (E256 + 1, E256 + 1, t0))
    cmul(W16, W8, W8, T1)
    cmul(E512, E256, E256, T2)
    cmul(E1024, E512, E512, T2)
    fitems = [(None, W8, 1), (None, W16, 2)]
    regs = {1: W8, 2: W16}
    for j in range(3, 32):
        d = FR[j & 3]
        fitems.append(((lambda d=d, s=regs[j - 2]: cmul(d, s, W16, T1)), d, j))
        regs[j] = d
    gitems = []
    def gstep(d, a, b, base):
        gitems.append(((lambda: cmul(d, a, b, T2, conj=True)), d, SROW[base]))
    gitems.append((None, CB, SROW[0]))
    g = [GA, GB]
    gstep(G256, CB, E256, 256)
    prev = CB
    for k in range(1, 8):
        gstep(g[k & 1], prev, E1, k); prev = g[k & 1]
    gstep(GA, CB, EM1, -1)
    gstep(GB, G256, EM1, 255)
    gstep(G512, CB, E512, 512)
    prev = G256
    for k, base in enumerate((258, 260, 262, 264)):
        gstep(g[k & 1], prev, E2, base); prev = g[k & 1]
    gstep(G1024, CB, E1024, 1024)
    gstep(GA, G512, E4, 516); gstep(GB, GA, E4, 520)
    gstep(G256, G512, E256, 768)
    gstep(GA, G256, E4, 772); gstep(GB, GA, E4, 776)
    gstep(GA, G1024, W8, 1032)
    gstep(GB, G1024, E256, 1280); gstep(GA, GB, W8, 1288)
    gstep(G1536, G1024, E512, 1536); gstep(GA, G1536, W8, 1544)
    gstep(GB, G1536, E256, 1792); gstep(GA, GB, W8, 1800)
    assert len(gitems) == NGR and len(fitems) == 31
    cur_m0 = ["F"]
    def setm0(x):
        if cur_m0[0] != x:
            A("s_mov_b32 m0, s%d" % (sMF if x == "F" else sMG)); cur_m0[0] = x
            return True
        return False
    rnd = 0
    fi = gi = 0
    while fi < len(fitems) or gi < len(gitems):
        fs = fitems[fi:fi + 2]; gs = gitems[gi:gi + 2]; fi += 2; gi += 2
        out = []
        seq = []
        for k in range(2):
            if k < len(fs): seq.append(("F", fs[k]))
            if k < len(gs): seq.append(("G", gs[k]))
        for n_, (kind, (fn, src, row)) in enumerate(seq):
            if fn: fn()
            A("v_cvt_pk_bf16_f32 v%d, v%d, v%d" % (PK[n_], src, src + 1))
            out.append((kind, PK[n_], row))
        order = ["F", "G"] if cur_m0[0] == "F" else ["G", "F"]
        for kind in order:
            ws = [o for o in out if o[0] == kind]
            if not ws: continue
            if setm0(kind): A("s_nop 0")
            for (_, pk, row) in ws:
                A("ds_write_addtid_b32 v%d offset:%d" % (pk, row * RS))
    stamp(A, timing, 1)
    AF, BF, DK = 64, 80, 16
    A("s_waitcnt lgkmcnt(0)")
    rd = []
    for t in range(8):
        for h in range(2): rd.append("ds_read_b64 %s, v%d offset:%d" % (v(AF + 4 * (t & 3) + 2 * h, 2), vGA, 32 * t + 8 * h))
        for h in range(2): rd.append("ds_read_b64 %s, v%d offset:%d" % (v(BF + 4 * (t & 3) + 2 * h, 2), vFA, 32 * t + 8 * h))
    for x in rd[:16]: A(x)
    issued = 16
    for t in range(8):
        need = 4 * (t + 1)
        A("s_waitcnt lgkmcnt(%d)" % (issued - need))
        A("v_mfma_f32_32x32x16_bf16 %s, %s, %s, %s" % (v(DK, 16), v(AF + 4 * (t & 3), 4), v(BF + 4 * (t & 3), 4), "0" if t == 0 else v(DK, 16)))
        for x in rd[issued:issued + 4]: A(x)
        issued = min(32, issued + 4)
    A("s_nop 7")
    A("s_nop 3")
    A("s_cmp_eq_u32 s%d, 0" % sHF)
    A("s_cbranch_scc0 ssm_x1")
    A("ds_write_b128 v%d, %s" % (vXS, v(DK + 8, 4)))
    A("ds_write_b128 v%d, %s offset:%d" % (vXS, v(DK + 12, 4), 8 * RS))
    A("s_branch ssm_x2")
    A.label("ssm_x1")
    A("ds_write_b128 v%d, %s" % (vXS, v(DK, 4)))
    A("ds_write_b128 v%d, %s offset:%d" % (vXS, v(DK + 4, 4), 8 * RS))
    A("ds_write_b32 v%d, v%d" % (vXS1, DK + 11))
    A.label("ssm_x2")
    A("s_waitcnt lgkmcnt(0)")
    A("s_barrier")
    stamp(A, timing, 2)
    R = 32
    A("ds_read_b128 %s, v%d" % (v(R, 4), vXR))
    A("ds_read_b128 %s, v%d offset:%d" % (v(R + 4, 4), vXR, 8 * RS))
    A("v_lshrrev_b32 v%d, 5, v%d" % (t3, vLane))
    A("s_cmp_eq_u32 s%d, 0" % sHF)
    A("s_cbranch_scc0 ssm_y1")
    A("ds_read_b32 v%d, v%d" % (R + 8, vXR1))
    A("v_lshlrev_b32 v%d, 9, v%d" % (t3, t3))
    A("v_sub_u32 v%d, v%d, v%d" % (t2, vKW, t3))
    A("v_lshrrev_b32 v%d, 2, v%d" % (t0, vLane))
    A("v_mul_u32_u24 v%d, %d, v%d" % (t0, CPS2, t0))
    A("v_and_b32 v%d, 3, v%d" % (t1, vLane))
    A("v_lshl_add_u32 v%d, v%d, 4, v%d" % (t0, t1, t0))
    A("s_add_u32 s47, s46, 4096")
    A("v_add_u32 v%d, s47, v%d" % (t0, t0))
    for r in range(4): A("v_mov_b32 v%d, 0" % (R + 12 + r))
    A("s_mov_b64 exec, 0xff")
    A("ds_write_b128 v%d, %s" % (t0, v(R + 12, 4)))
    A("s_mov_b64 exec, -1")
    A("s_waitcnt lgkmcnt(1)")
    for r in range(8): A("v_add_f32 v%d, v%d, v%d" % (DK + r, DK + r, R + r))
    A("v_add_f32 v%d, v%d, v%d" % (DK + 11, DK + 11, R + 8))
    for j in range(4): A("v_cvt_pk_bf16_f32 v%d, v%d, v%d" % (R + j, DK + 2 * j, DK + 2 * j + 1))
    A("ds_write_b128 v%d, %s" % (t2, v(R, 4)))
    A("v_cndmask_b32 v%d, v%d, v%d, s[52:53]" % (R + 9, DK + 11, DK + 7))
    A("v_cndmask_b32 v%d, 0, v%d, s[52:53]" % (R + 10, DK + 11))
    A("v_cndmask_b32 v%d, v%d, v%d, s[54:55]" % (R + 9, R + 9, R + 10))
    for j in range(3): A("v_cvt_pk_bf16_f32 v%d, v%d, v%d" % (R + 4 + j, DK + 2 * j + 1, DK + 2 * j + 2))
    A("v_cvt_pk_bf16_f32 v%d, v%d, v%d" % (R + 7, DK + 7, R + 9))
    A("ds_write_b128 v%d, %s offset:%d" % (t2, v(R + 4, 4), CPS2))
    A("s_branch ssm_y2")
    A.label("ssm_y1")
    A("v_lshlrev_b32 v%d, 9, v%d" % (R + 12, t3))
    A("v_sub_u32 v%d, v%d, v%d" % (R + 12, vKW, R + 12))
    A("v_subrev_u32 v%d, 1024, v%d" % (R + 12, R + 12))
    A("v_lshlrev_b32 v%d, 10, v%d" % (R + 13, t3))
    A("v_sub_u32 v%d, v%d, v%d" % (R + 13, vKW, R + 13))
    A("v_subrev_u32 v%d, 2560, v%d" % (R + 13, R + 13))
    A("s_waitcnt lgkmcnt(0)")
    for r in range(8): A("v_add_f32 v%d, v%d, v%d" % (DK + r, DK + 8 + r, R + r))
    K8, K4, K0 = DK, DK + 1, DK + 2
    A("v_cvt_pk_bf16_f32 v%d, v%d, v%d" % (R + 0, K8, K8))
    A("v_cvt_pk_bf16_f32 v%d, v%d, v%d" % (R + 1, K4, K4))
    A("v_cvt_pk_bf16_f32 v%d, v%d, v%d" % (R + 2, K4, K0))
    A("v_cvt_pk_bf16_f32 v%d, v%d, v%d" % (R + 3, K0, K0))
    A("ds_write_b128 v%d, %s" % (R + 12, v(R, 4)))
    A("v_cvt_pk_bf16_f32 v%d, v%d, v%d" % (R + 4, K8, K4))
    A("v_mov_b32 v%d, v%d" % (R + 5, R + 1))
    A("v_mov_b32 v%d, v%d" % (R + 6, R + 3))
    A("v_mov_b32 v%d, v%d" % (R + 7, R + 3))
    A("ds_write_b128 v%d, %s offset:%d" % (R + 12, v(R + 4, 4), CPS2))
    for k in range(2):
        K8, K0 = DK + 4 + 2 * k, DK + 5 + 2 * k
        o = 72 + 8 * k
        A("v_cndmask_b32 v%d, v%d, v%d, s[56:57]" % (R + 15, K0, K8))
        A("v_cvt_pk_bf16_f32 v%d, v%d, v%d" % (o + 0, K8, K8))
        A("v_cvt_pk_bf16_f32 v%d, v%d, v%d" % (o + 1, K8, R + 15))
        A("v_cvt_pk_bf16_f32 v%d, v%d, v%d" % (o + 2, K0, K0))
        A("v_mov_b32 v%d, v%d" % (o + 3, o + 2))
        A("ds_write_b128 v%d, %s offset:%d" % (R + 13, v(o, 4), 512 * (1 - k)))
        A("v_mov_b32 v%d, v%d" % (o + 4, o + 0))
        A("v_cvt_pk_bf16_f32 v%d, v%d, v%d" % (o + 5, R + 15, K0))
        A("v_mov_b32 v%d, v%d" % (o + 6, o + 2))
        A("v_mov_b32 v%d, v%d" % (o + 7, o + 2))
        A("ds_write_b128 v%d, %s offset:%d" % (R + 13, v(o + 4, 4), 512 * (1 - k) + CPS2))
    A.label("ssm_y2")
    AF, BFS, DC = 16, [48, 64], 80
    units = [(0, cl) for cl in range(4)] + [(1, cl) for cl in range(4)]
    def a_list(ph): return list(range(7, -1, -1)) if ph == 0 else list(range(3, -1, -1))
    def b_list(ph): return [0, 1, 2, 3] if ph == 0 else [4, 5, 6, 7]
    def a_reads(ph, cl, a): return ["ds_read_b64 %s, v%d offset:%d" % (v(AF + 4 * a + 2 * h, 2), vA, 512 * (7 - a) + 8 * h + 64 * (3 - cl)) for h in range(2)]
    def b_read(ph, cl, b, buf): return "ds_read_b128 %s, v%d offset:%d" % (v(BFS[buf] + 4 * (b & 3), 4), vB, 512 * b + 64 * (3 - cl))
    order = []
    state = {"done": 0}
    def issue(tag, text):
        A(text); order.append(tag)
    def need(tag):
        idx = max(i for i, x in enumerate(order) if x == tag)
        if idx < state["done"]: return
        cnt = len(order) - 1 - idx
        if cnt > 15: cnt = 15
        A("s_waitcnt lgkmcnt(%d)" % cnt)
        state["done"] = len(order) - cnt
        assert state["done"] > idx
    A("s_waitcnt lgkmcnt(0)")
    stamp(A, timing, 8)
    A("s_barrier")
    stamp(A, timing, 3)
    for b in b_list(0): issue(("B", 0, b), b_read(0, 0, b, 0))
    for a in a_list(0):
        for x in a_reads(0, 0, a): issue(("A", 0, a), x)
    first = set()
    for u, (ph, cl) in enumerate(units):
        buf = u & 1
        nxt = units[u + 1] if u + 1 < len(units) else None
        if u == 4:
            stamp(A, timing, 4)
            A("s_barrier")
            for b in b_list(1): issue(("B", u, b), b_read(1, cl, b, buf))
        if nxt and u + 1 != 4:
            for b in b_list(nxt[0]): issue(("B", u + 1, b), b_read(nxt[0], nxt[1], b, buf ^ 1))
        for a in a_list(ph):
            for b in b_list(ph):
                if a + b > 7: continue
                need(("B", u, b)); need(("A", u, a))
                c = a + b
                acc = v(DC + 4 * c, 4) if c in first else "0"
                first.add(c)
                A("v_mfma_f32_16x16x32_bf16 %s, %s, %s, %s" % (v(DC + 4 * c, 4), v(AF + 4 * a, 4), v(BFS[buf] + 4 * (b & 3), 4), acc))
            if nxt and a in a_list(nxt[0]):
                for x in a_reads(nxt[0], nxt[1], a): issue(("A", u + 1, a), x)
    stamp(A, timing, 5)
    U = 16
    for k in range(4): A("ds_read2_b32 %s, v%d offset0:%d offset1:%d" % (v(U + 2 * k, 2), vU if k < 2 else 13, 128 * (k & 1), 128 * (k & 1) + 2)) if k < 2 else None
    A("v_add_u32 v13, 1024, v%d" % vU)
    for k in range(2, 4): A("ds_read2_b32 %s, v13 offset0:%d offset1:%d" % (v(U + 2 * k, 2), 128 * (k & 1), 128 * (k & 1) + 2))
    A("s_nop 3")
    A("s_cmp_eq_u32 s%d, 0" % sHF)
    A("s_cbranch_scc0 ssm_w1")
    for k in range(4): A("ds_write_b128 v%d, %s offset:%d" % (vES, v(DC + 16 + 4 * k, 4), 1024 * k))
    A("s_branch ssm_w2")
    A.label("ssm_w1")
    for k in range(4): A("ds_write_b128 v%d, %s offset:%d" % (vES, v(DC + 4 * k, 4), 1024 * k))
    A.label("ssm_w2")
    UF = 32
    A("s_waitcnt lgkmcnt(4)")
    for k in range(8):
        A("v_lshlrev_b32 v%d, 16, v%d" % (UF + 2 * k, U + k))
        A("v_and_b32 v%d, 0xffff0000, v%d" % (UF + 2 * k + 1, U + k))
    for r in range(16): A("v_mul_f32 v%d, s%d, v%d" % (UF + r, sDskip, UF + r))
    for k in range(8): A("v_cvt_pk_bf16_f32 v%d, v%d, v%d" % (U + k, UF + 2 * k, UF + 2 * k + 1))
    A("s_waitcnt lgkmcnt(0)")
    A("s_barrier")
    R = 48
    for k in range(4): A("ds_read_b128 %s, v%d offset:%d" % (v(R + 4 * k, 4), vER, 1024 * k))
    for k in range(8):
        A("v_lshlrev_b32 v%d, 16, v%d" % (UF + 2 * k, U + k))
        A("v_and_b32 v%d, 0xffff0000, v%d" % (UF + 2 * k + 1, U + k))
    A("s_cmp_eq_u32 s%d, 0" % sHF)
    A("s_cbranch_scc1 ssm_v1")
    for r in range(16): A("v_mov_b32 v%d, v%d" % (DC + r, DC + 16 + r))
    A.label("ssm_v1")
    for k in range(4):
        A("s_waitcnt lgkmcnt(%d)" % (3 - k))
        for r in range(4): A("v_add_f32 v%d, v%d, v%d" % (DC + 4 * k + r, DC + 4 * k + r, R + 4 * k + r))
        for j in range(2): A("v_cvt_pk_bf16_f32 v%d, v%d, v%d" % (U + 2 * k + j, DC + 4 * k + 2 * j, DC + 4 * k + 2 * j + 1))
        for j in range(2):
            A("v_lshlrev_b32 v%d, 16, v%d" % (DC + 4 * k + 2 * j, U + 2 * k + j))
            A("v_and_b32 v%d, 0xffff0000, v%d" % (DC + 4 * k + 2 * j + 1, U + 2 * k + j))
        for r in range(4): A("v_add_f32 v%d, v%d, v%d" % (DC + 4 * k + r, DC + 4 * k + r, UF + 4 * k + r))
        for j in range(2): A("v_cvt_pk_bf16_f32 v%d, v%d, v%d" % (U + 2 * k + j, DC + 4 * k + 2 * j, DC + 4 * k + 2 * j + 1))
        for j in range(2):
            A("buffer_store_dword v%d, v%d, s[%d:%d], s%d offen offset:%d" % (U + 2 * k + j, vO, SAT, SAT + 3, sOut, 512 * k + 8 * j))
    stamp(A, timing, 6)
    dump_stamps(A, timing, 9, end, 0)
    A("s_branch %s" % end)

def gen_k1(name="k1_kernel", timing=False):
    A = Asm()
    end = name + "_end"
    A("s_cmp_ge_u32 s2, 256")
    A("s_cbranch_scc1 %s" % end)
    stamp(A, timing, 0)
    A("v_lshrrev_b32 v2, 6, v0")
    A("v_and_b32 v%d, 63, v0" % vLane)
    A("v_readfirstlane_b32 s%d, v2" % sW)
    A("s_cmp_lt_u32 s2, 160")
    A("s_cbranch_scc1 %s" % (end if NOSSM else "k1_ssm"))
    if NOQ: A("s_branch %s" % end)
    A("s_cmp_lt_u32 s2, 240")
    A("s_cbranch_scc1 k1_q")
    role_kv(A, end, timing)
    A.label("k1_q")
    role_q(A, end, timing)
    if AUX and not (SSM3 and WOSSM):
        A.label("k1_wo")
        role_wo(A, end)
    A.label("k1_ssm")
    (role_ssm3 if SSM3 else role_ssm2 if SSM2 else role_ssm)(A, end, timing)
    A.label(end)
    A("s_endpgm")
    return dict(name=name, grid=256, block=1024, lds=163840, body=A.text(), vgpr=128)

if __name__ == "__main__":
    import sys
    tm = False
    for a in sys.argv[2:]:
        if a.startswith("t"): tm = int(a[1:]) if len(a) > 1 else True
    for a in sys.argv[2:]:
        if a.startswith("g:"): GMOD = a[2:].replace("+", " ")
    k = gen_k1(timing=tm)
    open(sys.argv[1], "w").write(compose([k]))
```

```python
import sys
from asmlib import *
import k1

WS_WF  = 0x0300000
NWF = 819200
WS_T = 0x1000000

SPIN = 20000
PRIO = "toggle"
OWAIT = True
ROT = True
QSLEEP = 1
FSLEEP = 4
HSLEEP = 2

SLOT = [6, 13, 26, 31] + [s_ for s_ in range(32) if s_ not in (6, 13, 26, 31)]
QA1, QA2 = 98304, 63488
FLG = k1.FL
GO = FLG + 160
WS_QF = 0x02D0000
TWO = False
K2HALF = False
IT3 = 8
PRIO2 = "0yyy"
XA = 40960
EXP = ""
QFIRST = True
sW, vLane = 6, 1

class Stamps:
    def __init__(self, on): self.on = on; self.n = 0
    def __call__(self, A):
        if self.on:
            assert self.n < 10
            A("s_memrealtime s[%d:%d]" % (40 + 2 * self.n, 41 + 2 * self.n)); self.n += 1

def poll_flags(A, label, sd, st, off=128, n=2):
    A("v_min_u32 v2, %d, v%d" % (n - 1, vLane))
    A("v_lshlrev_b32 v2, 2, v2")
    A("s_mov_b32 s%d, 0" % st)
    A.label(label)
    A("global_load_dword v5, v2, s[%d:%d] offset:%d sc1" % (sd, sd + 1, off))
    A("s_waitcnt vmcnt(0)")
    A("v_cmp_eq_u32 vcc, 1, v5")
    A("s_add_u32 s%d, s%d, 1" % (st, st))
    A("s_nop 3")
    A("s_cmp_eq_u64 vcc, -1")
    A("s_cbranch_scc1 %s_d" % label)
    A("s_cmp_lt_u32 s%d, %d" % (st, SPIN))
    A("s_cbranch_scc0 %s_d" % label)
    A("s_sleep %d" % FSLEEP)
    A("s_branch %s" % label)
    A.label(label + "_d")

def arrive(A, label, sd, st, k, target, vb=3):
    A("v_mov_b32 v2, %d" % (4 * k))
    A("v_mov_b32 v%d, 1" % vb)
    A("s_mov_b64 exec, 1")
    A("global_atomic_add v5, v2, v%d, s[%d:%d] sc0 sc1" % (vb, sd, sd + 1))
    A("s_waitcnt vmcnt(0)")
    A("v_readfirstlane_b32 s%d, v5" % st)
    A("s_cmp_eq_u32 s%d, %d" % (st, target - 1))
    A("s_cbranch_scc0 %s" % label)
    A("global_store_dword v2, v%d, s[%d:%d] offset:128 sc1" % (vb, sd, sd + 1))
    A.label(label)
    A("s_mov_b64 exec, -1")

def vwg(A, dst, t0, t1):
    A("s_and_b32 s%d, s2, 7" % t0)
    A("s_lshl_b32 s%d, s%d, 5" % (t0, t0))
    A("s_lshr_b32 s%d, s2, 6" % t1)
    A("s_lshl_b32 s%d, s%d, 3" % (t1, t1))
    A("s_or_b32 s%d, s%d, s%d" % (t0, t0, t1))
    A("s_bfe_u32 s%d, s2, 0x30003" % t1)
    A("s_or_b32 s%d, s%d, s%d" % (dst, t0, t1))

def omark(A, sV, srdx, parts, t0, t1):
    A("v_lshrrev_b32 v2, 3, v%d" % vLane)
    A("v_lshlrev_b32 v2, 8, v2")
    A("v_and_b32 v3, 7, v%d" % vLane)
    A("v_lshl_add_u32 v2, v3, 4, v2")
    for r in range(4): A("v_mov_b32 v%d, -1" % (4 + r))
    A("s_lshr_b32 s%d, s%d, 1" % (t0, sV))
    A("s_mul_i32 s%d, s%d, 20480" % (t0, t0))
    A("s_and_b32 s%d, s%d, 1" % (t1, sV))
    A("s_lshl_b32 s%d, s%d, 7" % (t1, t1))
    A("s_add_u32 s%d, s%d, s%d" % (t0, t0, t1))

def q_stored(A, sRow0, sN0b, sJ):
    A("s_lshr_b32 s28, s%d, 4" % sRow0)
    A("s_add_u32 s28, s28, s%d" % sJ)
    A("s_lshl_b32 s28, s28, 8")
    A("s_lshr_b32 s29, s%d, 6" % sN0b)
    A("s_add_u32 s28, s28, s29")
    A("s_add_u32 s28, s28, 0x%x" % WS_QF)
    A("v_mov_b32 v2, s28")
    A("v_mov_b32 v3, 1")
    A("s_mov_b64 exec, 1")
    A("s_waitcnt vmcnt(0)")
    A("global_store_dword v2, v3, s[4:5] sc1")
    A("s_mov_b64 exec, -1")

def q_idle(A, end):
    A("s_load_dwordx2 s[4:5], s[0:1], 136")
    A("s_load_dwordx2 s[12:13], s[0:1], 128")
    A("s_sub_u32 s23, s2, 160")
    A("s_and_b32 s20, s23, 15")
    A("s_lshr_b32 s21, s23, 4")
    A("s_lshl_b32 s25, s20, 11")
    A("s_lshl_b32 s24, s21, 2")
    A("s_add_u32 s25, s25, s24")
    A("s_add_u32 s25, s25, 0x%x" % WS_QF)
    A("v_lshlrev_b32 v8, 8, v%d" % vLane)
    A("v_add_u32 v8, s25, v8")
    A("v_mov_b32 v9, 0")
    vwg(A, 26, 27, 28)
    omark(A, 26, 8, None, 27, 28)
    A("s_sub_u32 s24, s%d, 12" % sW)
    A("s_lshl_b32 s28, s24, 11")
    A("s_add_u32 s27, s27, s28")
    A("s_waitcnt lgkmcnt(0)")
    srd(A, 8, 4, WS_O, NQ)
    A("s_cmp_eq_u32 s%d, 12" % sW)
    A("s_cbranch_scc0 q_nz")
    A("s_mov_b64 exec, 0xff")
    A("global_store_dword v8, v9, s[4:5] sc1")
    A("s_mov_b64 exec, -1")
    A.label("q_nz")
    A("s_barrier")
    A("buffer_store_dwordx4 v[4:7], v2, s[8:11], s27 offen sc1")
    A("s_add_u32 s27, s27, %d" % (4 * 2048))
    A("buffer_store_dwordx4 v[4:7], v2, s[8:11], s27 offen sc1")
    A("s_cmp_lt_u32 s24, 2")
    A("s_cbranch_scc0 q_n3")
    A("s_add_u32 s27, s27, %d" % (4 * 2048))
    A("buffer_store_dwordx4 v[4:7], v2, s[8:11], s27 offen sc1")
    A.label("q_n3")
    A("s_barrier")
    A("s_waitcnt vmcnt(0)")
    A("s_barrier")
    A("v_mov_b32 v2, 0")
    A("v_mov_b32 v3, 1")
    A("v_mov_b32 v5, 0")
    A("s_cmp_eq_u32 s%d, 12" % sW)
    A("s_cbranch_scc0 q_na")
    A("s_mov_b64 exec, 1")
    A("global_atomic_add v5, v2, v3, s[12:13] sc0 sc1")
    A("s_mov_b64 exec, -1")
    A.label("q_na")
    for b in range(4, 8): A("s_barrier")
    A("s_waitcnt vmcnt(0)")
    A("v_readfirstlane_b32 s24, v5")
    A("s_cmp_eq_u32 s24, 79")
    A("s_cbranch_scc0 q_ar")
    A("s_mov_b64 exec, 1")
    A("global_store_dword v2, v3, s[12:13] offset:128 sc1")
    A("s_mov_b64 exec, -1")
    A.label("q_ar")
    A("s_barrier")
    A("v_min_u32 v2, 1, v%d" % vLane)
    A("v_lshlrev_b32 v2, 2, v2")
    A("global_load_dword v5, v2, s[12:13] offset:128 sc1")
    A("s_barrier")
    A("s_barrier")
    A("s_waitcnt vmcnt(0)")
    A("v_readfirstlane_b32 s24, v5")
    A("s_cmp_eq_u32 s24, 1")
    A("s_cbranch_scc1 q_fq")
    poll_flags(A, "q_pf1", 12, 24, off=128, n=1)
    A.label("q_fq")
    A("v_min_u32 v2, 1, v%d" % vLane)
    A("v_lshlrev_b32 v2, 2, v2")
    A("global_load_dword v5, v2, s[12:13] offset:128 sc1")
    A("s_barrier")
    poll_flags(A, "q_pf2", 12, 24, off=132, n=1)
    A("s_branch %s" % end)

def kv_tail(A, end):
    A("s_barrier")
    A("s_cmp_eq_u32 s%d, 8" % sW)
    A("s_cbranch_scc0 kv_np")
    A("s_load_dwordx2 s[12:13], s[0:1], 128")
    A("s_waitcnt lgkmcnt(0)")
    arrive(A, "kv_ar", 12, 24, 1, 16)
    poll_flags(A, "kv_pf", 12, 24)
    A.label("kv_np")
    A("s_barrier")

def phase2(A, name, end, force_fallback=False, timing=False):
    st = Stamps(timing)
    def dump():
        if not timing: return
        A("s_waitcnt vmcnt(0) lgkmcnt(0)")
        A("s_memrealtime s[38:39]")
        A("s_lshl_b32 s30, s3, 4")
        A("s_add_u32 s30, s30, s%d" % sW)
        A("s_lshl_b32 s30, s30, 6")
        A("s_add_u32 s30, s30, 0x%x" % WS_T)
        A("v_mov_b32 v2, s30")
        A("s_mov_b64 exec, 1")
        A("v_mov_b32 v3, s100")
        A("global_store_dword v2, v3, s[4:5]")
        for i in range(st.n):
            A("v_mov_b32 v3, s%d" % (40 + 2 * i))
            A("global_store_dword v2, v3, s[4:5] offset:%d" % (4 * (i + 1)))
        A("s_waitcnt lgkmcnt(0)")
        A("v_mov_b32 v3, s38")
        A("global_store_dword v2, v3, s[4:5] offset:%d" % (4 * (st.n + 1)))
        A("s_sub_u32 s30, s98, s96")
        A("v_mov_b32 v3, s30")
        A("global_store_dword v2, v3, s[4:5] offset:52")
        A("s_mov_b64 exec, -1")
    st(A)
    A("s_load_dwordx2 s[4:5], s[0:1], 136")
    A("s_load_dwordx2 s[92:93], s[0:1], 120")
    A("s_load_dwordx2 s[94:95], s[0:1], 128")
    A("s_mov_b32 s3, s2")
    vwg(A, 2, 26, 27)
    SRD_KV, SRD_Q, SRD_X = 8, 12, 16
    SRD_WF, SRD_AT, SRD_G, SRD_OUT = 60, 64, 68, 72
    sG8, sJ8 = 79, 78
    PA = 40960
    A("s_lshr_b32 s%d, s2, 3" % sG8)
    A("s_and_b32 s%d, s2, 7" % sJ8)
    A("s_cmp_ge_u32 s%d, 8" % sW)
    A("s_cbranch_scc1 %s_proj" % name)

    if TWO:
        aV, aK1, aK2 = 0, 2, 3
        Q1 = {"A": 4, "B": 10}; Q2 = {"A": 8, "B": 14}
        S = {"A": 16, "B": 32}; O = {"A": 48, "B": 64}; P = {"A": 80, "B": 88}
        K1 = [96, 102]; K2 = [100, 106]; V = [108, 116]
        T0, T1, T2, T3 = 124, 125, 126, 127
        sMASK = 24
        sKA, sKD = 22, 23
        A("v_and_b32 v%d, 31, v%d" % (T2, vLane))
        A("v_lshrrev_b32 v%d, 5, v%d" % (T3, vLane))
        A("s_cmp_ge_u32 s%d, 4" % sW)
        A("s_cselect_b32 s%d, %d, %d" % (sKA, SLOT[1], SLOT[0]))
        A("s_mul_i32 s%d, s%d, 5120" % (sKA, sKA))
        A("s_cselect_b64 vcc, -1, 0")
        A("v_lshlrev_b32 v%d, 4, v%d" % (aK1, vLane))
        A("v_lshlrev_b32 v%d, 3, v%d" % (aK2, T2))
        A("v_mul_u32_u24 v%d, 320, v%d" % (aV, T3))
        A("v_lshl_add_u32 v%d, v%d, 4, v%d" % (aV, T2, aV))
        A("s_and_b32 s27, s%d, 3" % sW)
        A("s_lshl_b32 s26, s27, 11")
        A("s_add_u32 s26, s26, %d" % QA1)
        A("v_add_u32 v16, s26, v%d" % aK1)
        A("s_lshl_b32 s26, s27, 9")
        A("s_add_u32 s26, s26, %d" % QA2)
        A("v_add_u32 v17, s26, v%d" % aK2)
        for r in (aK1, aK2, aV): A("v_add_u32 v%d, s%d, v%d" % (r, sKA, r))
        A("s_mov_b32 s%d, 0x000fffff" % sMASK)
        A("s_mov_b32 s%d, 0x000fffff" % (sMASK + 1))
        A("v_cmp_eq_u32 s[28:29], 20, v%d" % T2)
        A("v_mov_b32 v19, 0x3f803f80")
        A("v_mov_b32 v%d, 0" % T0)
        A("v_cndmask_b32 v%d, v%d, v19, s[28:29]" % (T0, T0))
        for r in range(16):
            A("v_mov_b32 v%d, v%d" % (V[0] + r, T0))
        for r in range(32):
            A("v_mov_b32 v%d, 0" % (O["A"] + r))
        for r in range(8):
            A("v_mov_b32 v%d, 0" % (P["B"] + r))
        for r in (K2[0], K2[0] + 1, K2[1], K2[1] + 1):
            A("v_mov_b32 v%d, 0" % r)
        for t_ in "AB":
            A("v_mov_b32 v%d, 0" % Q2[t_]); A("v_mov_b32 v%d, 0" % (Q2[t_] + 1))
        A("s_waitcnt lgkmcnt(0)")
        st(A)
        A("s_barrier")
        st(A)
        if timing: A("s_memtime s[96:97]")
        A("ds_read_b128 %s, v16" % v(Q1["A"], 4))
        A("ds_read_b128 %s, v%d" % (v(K1[0], 4), aK1))
        A("s_mov_b32 exec_hi, 0")
        A("ds_read_b64 %s, v17" % v(Q2["A"], 2))
        A("ds_read_b64 %s, v17 offset:256" % v(Q2["B"], 2))
        if K2HALF: A("ds_read_b64 %s, v%d offset:1024" % (v(K2[0], 2), aK2))
        A("s_mov_b64 exec, -1")
        if not K2HALF: A("ds_read_b64 %s, v%d offset:1024" % (v(K2[0], 2), aK2))
        A("ds_read_b128 %s, v16 offset:1024" % v(Q1["B"], 4))
        srd(A, SRD_KV, 4, WS_KV, NKV)
        srd(A, SRD_X, 4, WS_O, NQ)
        srd(A, SRD_AT, 4, WS_AT, NQ)
        srd(A, SRD_G, 4, WS_G, 8192)
        srd(A, SRD_OUT, 92, 0, NQ)
        A("s_waitcnt lgkmcnt(1)")
        A("v_mfma_f32_32x32x16_bf16 %s, %s, %s, 0" % (v(S["A"], 16), v(K1[0], 4), v(Q1["A"], 4)))
        A("v_mfma_f32_32x32x8_bf16 %s, %s, %s, %s" % (v(S["A"], 16), v(K2[0], 2), v(Q2["A"], 2), v(S["A"], 16)))
        A("s_waitcnt lgkmcnt(0)")
        A("s_nop 7")
        A("s_nop 3")
        def H(cur, kb, vb, pre, do_qk=True):
            oth = "B" if cur == "A" else "A"
            Sc, Pc = S[cur], P[cur]
            So, Po, Oo = S[oth], P[oth], O[oth]
            for r in pre: A(r)
            M = [None, None]
            if do_qk:
                M = ["v_mfma_f32_32x32x16_bf16 %s, %s, %s, 0" % (v(So, 16), v(K1[kb], 4), v(Q1[oth], 4)),
                     "v_mfma_f32_32x32x8_bf16 %s, %s, %s, %s" % (v(So, 16), v(K2[kb], 2), v(Q2[oth], 2), v(So, 16))]
            M.append("v_mfma_f32_32x32x16_bf16 %s, %s, %s, %s" % (v(Oo, 16), v(V[vb], 4), v(Po, 4), v(Oo, 16)))
            M.append("v_mfma_f32_32x32x16_bf16 %s, %s, %s, %s" % (v(Oo, 16), v(V[vb] + 4, 4), v(Po + 4, 4), v(Oo, 16)))
            E = ["v_exp_f32 v%d, v%d" % (Sc + r, Sc + r) for r in range(16)]
            C = ["v_cvt_pk_bf16_f32 v%d, v%d, v%d" % (Pc + j, Sc + 2 * j, Sc + 2 * j + 1) for j in range(8)]
            for g in range(4):
                if M[g]: A(M[g])
                for r in range(4): A(E[4 * g + r])
                if g >= 1:
                    A(C[2 * (g - 1)]); A(C[2 * (g - 1) + 1])
            A(C[6]); A(C[7])
        def reads(kb, koff, vb, voff):
            R_ = []
            if kb is not None:
                R_.append("ds_read_b128 %s, v%d offset:%d" % (v(K1[kb], 4), aK1, koff))
                if not K2HALF: R_.append("ds_read_b64 %s, v%d offset:%d" % (v(K2[kb], 2), aK2, koff + 1024))
            R_.append("s_mov_b64 exec, s[%d:%d]" % (sMASK, sMASK + 1))
            R_.append("ds_read_b128 %s, v%d offset:%d" % (v(V[vb], 4), aV, voff + 1280))
            R_.append("ds_read_b128 %s, v%d offset:%d" % (v(V[vb] + 4, 4), aV, voff + 1280 + 640))
            if kb is not None and K2HALF:
                R_.append("s_mov_b32 exec_lo, -1")
                R_.append("s_mov_b32 exec_hi, 0")
                R_.append("ds_read_b64 %s, v%d offset:%d" % (v(K2[kb], 2), aK2, koff + 1024))
            R_.append("s_mov_b64 exec, -1")
            return R_
        pst = ["0"]
        for it in range(16):
            last = it == 15
            if it == IT3: A("s_barrier")
            def prio(k):
                pat = PRIO2[(it % (len(PRIO2) // 4)) * 4 + k]
                if pat == pst[0]: return
                pst[0] = pat
                if pat == "0": A("s_setprio 0")
                else:
                    lb = A.newlabel(name + "_p")
                    A("s_setprio 0")
                    A("s_cbranch_vcc%s %s" % ("z" if pat == "y" else "nz", lb))
                    A("s_setprio 1")
                    A.label(lb)
            prio(0)
            H("A", 0, 1, reads(1, 2560, 0, 0))
            prio(1)
            H("B", 1, 0, ["s_waitcnt lgkmcnt(0)"])
            prio(2)
            pre = []
            if it == 1: pre.append("s_waitcnt vmcnt(0)")
            if it in (1, 5): pre.append("s_barrier")
            if not last:
                pre += ["s_cmp_ge_u32 s%d, 4" % sW,
                        "s_cselect_b32 s26, %d, %d" % (SLOT[2 * it + 3], SLOT[2 * it + 2]),
                        "s_mul_i32 s26, s26, 5120",
                        "s_sub_u32 s%d, s26, s%d" % (sKD, sKA),
                        "s_mov_b32 s%d, s26" % sKA,
                        "v_add_u32 v%d, s%d, v%d" % (aK1, sKD, aK1),
                        "v_add_u32 v%d, s%d, v%d" % (aK2, sKD, aK2)]
            H("A", 1, 0, pre + reads(None if last else 0, 0, 1, 2560))
            prio(3)
            pre = [] if last else ["v_add_u32 v%d, s%d, v%d" % (aV, sKD, aV)]
            H("B", 0, 1, pre + ["s_waitcnt lgkmcnt(0)"], do_qk=not last)
        A("s_nop 1")
        A("v_mfma_f32_32x32x16_bf16 %s, %s, %s, %s" % (v(O["B"], 16), v(V[1], 4), v(P["B"], 4), v(O["B"], 16)))
        A("v_mfma_f32_32x32x16_bf16 %s, %s, %s, %s" % (v(O["B"], 16), v(V[1] + 4, 4), v(P["B"] + 4, 4), v(O["B"], 16)))
        A("s_setprio 0")
        st(A)
        if timing: A("s_memtime s[98:99]")
    else:
        aK1, aK2, aV = 2, 3, 10
        Q1, Q2 = 4, 8
        S = [16, 32]; O = 48; P = [64, 72]
        K1 = [80, 84]; K2 = [88, 90]; V = [92, 100]
        T0, T1, T2, T3 = 108, 109, 110, 111
        sMASK = 24
        A("v_and_b32 v%d, 31, v%d" % (T2, vLane))
        A("v_lshrrev_b32 v%d, 5, v%d" % (T3, vLane))
        A("v_lshlrev_b32 v%d, 4, v%d" % (aK1, vLane))
        A("v_lshlrev_b32 v%d, 3, v%d" % (aK2, T2))
        A("v_mul_u32_u24 v%d, 320, v%d" % (aV, T3))
        A("v_lshl_add_u32 v%d, v%d, 4, v%d" % (aV, T2, aV))
        A("s_lshl_b32 s26, s%d, 10" % sW)
        A("s_add_u32 s26, s26, %d" % QA1)
        A("v_add_u32 v16, s26, v%d" % aK1)
        A("s_lshl_b32 s26, s%d, 8" % sW)
        A("s_add_u32 s26, s26, %d" % QA2)
        A("v_add_u32 v17, s26, v%d" % aK2)
        A("s_mov_b32 s%d, 0x000fffff" % sMASK)
        A("s_mov_b32 s%d, 0x000fffff" % (sMASK + 1))
        A("v_cmp_eq_u32 vcc, 20, v%d" % T2)
        A("v_mov_b32 v19, 0x3f803f80")
        A("v_mov_b32 v%d, 0" % T0)
        A("v_cndmask_b32 v%d, v%d, v19, vcc" % (T0, T0))
        for r in range(16):
            A("v_mov_b32 v%d, v%d" % (V[0] + r, T0))
        for r in range(16):
            A("v_mov_b32 v%d, 0" % (O + r))
        A("v_mov_b32 v%d, 0" % Q2); A("v_mov_b32 v%d, 0" % (Q2 + 1))
        A("s_cmp_ge_u32 s%d, 4" % sW)
        A("s_cselect_b64 vcc, -1, 0")
        base = {"K": 0, "V": 0}
        def rebase(kind, j):
            ad = SLOT[j >> 1] * 5120 + (j & 1) * 2560
            lo = base[kind]
            if not (0 <= ad - lo <= 65535 - 2560):
                nb = ad // 32768 * 32768
                for r in ((aK1, aK2) if kind == "K" else (aV,)):
                    d = nb - lo
                    if d >= 0: A("v_add_u32 v%d, %d, v%d" % (r, d, r))
                    else: A("v_subrev_u32 v%d, %d, v%d" % (r, -d, r))
                base[kind] = nb
            return ad - base[kind]
        def readK(j):
            o = rebase("K", j)
            A("ds_read_b128 %s, v%d offset:%d" % (v(K1[j & 1], 4), aK1, o))
            A("ds_read_b64 %s, v%d offset:%d" % (v(K2[j & 1], 2), aK2, o + 1024))
        def readV(j):
            o = rebase("V", j)
            A("s_mov_b64 exec, s[%d:%d]" % (sMASK, sMASK + 1))
            A("ds_read_b128 %s, v%d offset:%d" % (v(V[j & 1], 4), aV, o + 1280))
            A("ds_read_b128 %s, v%d offset:%d" % (v(V[j & 1] + 4, 4), aV, o + 1280 + 640))
            A("s_mov_b64 exec, -1")
        def qk(j):
            return ["v_mfma_f32_32x32x16_bf16 %s, %s, %s, 0" % (v(S[j & 1], 16), v(K1[j & 1], 4), v(Q1, 4)),
                    "v_mfma_f32_32x32x8_bf16 %s, %s, %s, %s" % (v(S[j & 1], 16), v(K2[j & 1], 2), v(Q2, 2), v(S[j & 1], 16))]
        def pv(j):
            return ["v_mfma_f32_32x32x16_bf16 %s, %s, %s, %s" % (v(O, 16), v(V[j & 1], 4), v(P[j & 1], 4), v(O, 16)),
                    "v_mfma_f32_32x32x16_bf16 %s, %s, %s, %s" % (v(O, 16), v(V[j & 1] + 4, 4), v(P[j & 1] + 4, 4), v(O, 16))]
        A("s_waitcnt lgkmcnt(0)")
        st(A)
        A("s_barrier")
        st(A)
        if timing: A("s_memtime s[96:97]")
        A("ds_read_b128 %s, v16" % v(Q1, 4))
        A("s_mov_b32 exec_hi, 0")
        A("ds_read_b64 %s, v17" % v(Q2, 2))
        A("s_mov_b64 exec, -1")
        readK(0); readK(1)
        srd(A, SRD_KV, 4, WS_KV, NKV)
        srd(A, SRD_X, 4, WS_O, NQ)
        srd(A, SRD_AT, 4, WS_AT, NQ)
        srd(A, SRD_G, 4, WS_G, 8192)
        srd(A, SRD_OUT, 92, 0, NQ)
        A("s_waitcnt lgkmcnt(2)")
        for x in qk(0): A(x)
        A("s_nop 7")
        A("s_nop 3")
        jB2, jB3 = 6, 22
        for j in range(64):
            if j == jB2:
                A("s_waitcnt vmcnt(0)")
            if j == jB2 or j == jB3:
                A("s_barrier")
            if PRIO == "toggle" and j % 4 == 0:
                A("s_setprio 0")
            n = 0
            skip = ("halflds" in EXP and (j & 1)) or "nolds" in EXP
            if skip:
                rebase("K", min(j + 2, 63)); rebase("V", j)
            else:
                if j + 2 < 64:
                    readK(j + 2); n += 2
                readV(j); n += 2
            A("s_waitcnt lgkmcnt(%d)" % n)
            M = (qk(j + 1) if j + 1 < 64 else [None, None]) + (pv(j - 1) if j >= 1 else [None, None])
            if "nok2" in EXP: M[1] = None
            if "nopv" in EXP: M[2] = M[3] = None
            if "nopv1" in EXP: M[3] = None
            if "noqk" in EXP: M[0] = M[1] = None
            Sc, Pc = S[j & 1], P[j & 1]
            E = ["v_exp_f32 v%d, v%d" % (Sc + r, Sc + r) for r in range(16)]
            C = ["v_cvt_pk_bf16_f32 v%d, v%d, v%d" % (Pc + q, Sc + 2 * q, Sc + 2 * q + 1) for q in range(8)]
            for g in range(4):
                if M[g]: A(M[g])
                for r in range(4): A(E[4 * g + r])
                if g >= 1:
                    A(C[2 * (g - 1)]); A(C[2 * (g - 1) + 1])
            A(C[6]); A(C[7])
            if PRIO == "toggle" and j % 4 == 0:
                lb = A.newlabel(name + "_p")
                A("s_cbranch_vccz %s" % lb)
                A("s_setprio 1")
                A.label(lb)
        A("s_waitcnt lgkmcnt(0)")
        A("s_nop 1")
        for x in pv(63): A(x)
        A("s_setprio 0")
        st(A)
        if timing: A("s_memtime s[98:99]")
    norm = name + "_norm"; fb = name + "_fb"; stl = name + "_st"
    if TWO:
        T = S["B"]; R = S["A"]
        AD0, AD1, ADt = 102, 103, 104
        sT = 23
        A("s_and_b32 s%d, s%d, 3" % (sT, sW))
        A("s_lshl_b32 s%d, s%d, 1" % (sT, sT))
        A("s_lshr_b32 s26, s%d, 2" % sW)
        A("s_add_u32 s%d, s%d, s26" % (sT, sT))
        A("s_mul_i32 s26, s%d, 3072" % sW)
        A("s_add_u32 s26, s26, %d" % XA)
        A("s_xor_b32 s27, s%d, 4" % sW)
        A("s_mul_i32 s27, s27, 3072")
        A("s_add_u32 s27, s27, %d" % XA)
        A("v_lshlrev_b32 v%d, 4, v%d" % (105, vLane))
        A("v_add_u32 v%d, s26, v%d" % (aK1, 105))
        A("v_add_u32 v%d, s27, v%d" % (aK2, 105))
    else:
        T = O; R = S[0]
        AD0, AD1, ADt = R + 6, R + 7, R + 14
        sT = sW
    A("s_mov_b32 s32, 0")
    A("v_and_b32 v%d, 7, v%d" % (AD0, vLane))
    A("v_lshlrev_b32 v%d, 4, v%d" % (AD0, AD0))
    A("v_bfe_u32 v%d, v%d, 4, 1" % (ADt, vLane))
    A("v_mul_u32_u24 v%d, %d, v%d" % (ADt, 5 * 256, ADt))
    A("v_add_u32 v%d, v%d, v%d" % (AD0, AD0, ADt))
    A("v_bfe_u32 v%d, v%d, 3, 1" % (ADt, vLane))
    A("v_lshl_add_u32 v%d, v%d, 9, v%d" % (AD1, ADt, AD0))
    A("v_lshl_add_u32 v%d, v%d, 8, v%d" % (AD1, T3, AD1))
    A("v_lshl_add_u32 v%d, v%d, 3, v%d" % (AD0, ADt, AD0))
    A("v_lshlrev_b32 v%d, 30, v%d" % (ADt, T3))
    A("v_add3_u32 v%d, v%d, v%d, %d" % (AD0, AD0, ADt, 0))
    A("s_lshr_b32 s27, s2, 1")
    A("s_mul_i32 s27, s27, 20480")
    A("s_and_b32 s26, s2, 1")
    A("s_lshl_b32 s26, s26, 7")
    A("s_add_u32 s27, s27, s26")
    A("s_mul_i32 s26, s%d, 2560" % sT)
    A("s_add_u32 s27, s27, s26")
    A("s_nop 7")
    A("s_nop 1")
    if TWO:
        A("s_cmp_ge_u32 s%d, 4" % sW)
        A("s_cbranch_scc1 %s_x1" % name)
        for k in range(3): A("ds_write_b128 v%d, %s offset:%d" % (aK1, v(O["B"] + 4 * k, 4), k * 1024))
        A("s_branch %s_x2" % name)
        A.label(name + "_x1")
        for k in range(3): A("ds_write_b128 v%d, %s offset:%d" % (aK1, v(O["A"] + 4 * k, 4), k * 1024))
        A.label(name + "_x2")
        A("s_waitcnt lgkmcnt(0)")
        A("s_barrier")
        for k in range(3): A("ds_read_b128 %s, v%d offset:%d" % (v(R + 4 * k, 4), aK2, k * 1024))
        A("s_cmp_ge_u32 s%d, 4" % sW)
        A("s_cbranch_scc1 %s_x3" % name)
        A("s_waitcnt lgkmcnt(0)")
        for r in range(12): A("v_add_f32 v%d, v%d, v%d" % (T + r, O["A"] + r, R + r))
        A("s_branch %s_x4" % name)
        A.label(name + "_x3")
        A("s_waitcnt lgkmcnt(0)")
        for r in range(12): A("v_add_f32 v%d, v%d, v%d" % (T + r, O["B"] + r, R + r))
        for r in range(4): A("v_mov_b32 v%d, v%d" % (Q1["A"] + r, Q1["B"] + r))
        for r in range(2): A("v_mov_b32 v%d, v%d" % (Q2["A"] + r, Q2["B"] + r))
        A.label(name + "_x4")
    A.label(norm)
    A("v_mov_b32 v%d, v%d" % (R + 0, T + 8))
    A("v_mov_b32 v%d, v%d" % (R + 1, T + 8))
    A("s_nop 1")
    A("v_permlane32_swap_b32 v%d, v%d" % (R + 0, R + 1))
    A("s_cmp_eq_u32 s32, 1")
    A("s_cbranch_scc1 %s" % stl)
    A("v_max3_f32 v%d, |v%d|, |v%d|, |v%d|" % (R + 2, T + 0, T + 1, T + 2))
    A("v_max3_f32 v%d, |v%d|, |v%d|, |v%d|" % (R + 3, T + 3, T + 4, T + 5))
    A("v_max3_f32 v%d, |v%d|, |v%d|, |v%d|" % (R + 4, T + 6, T + 7, T + 8))
    A("v_max3_f32 v%d, |v%d|, |v%d|, |v%d|" % (R + 5, T + 9, T + 10, T + 11))
    A("v_max3_f32 v%d, v%d, v%d, v%d" % (R + 2, R + 2, R + 3, R + 4))
    A("v_max_f32 v%d, v%d, v%d" % (R + 2, R + 2, R + 5))
    A("v_mov_b32 v%d, 0x%x" % (R + 3, (127 - 30) << 23))
    A("v_mov_b32 v%d, 0x%x" % (R + 4, (127 + 30) << 23))
    A("v_mov_b32 v%d, 0x%x" % (R + 5, (127 + 120) << 23))
    A("v_cmp_ge_f32 s[34:35], v%d, v%d" % (R + 1, R + 3))
    A("v_cmp_le_f32 s[36:37], v%d, v%d" % (R + 1, R + 4))
    A("v_cmp_le_f32 s[38:39], v%d, v%d" % (R + 2, R + 5))
    A("s_nop 1")
    A("s_and_b64 s[34:35], s[34:35], s[36:37]")
    A("s_and_b64 s[34:35], s[34:35], s[38:39]")
    if force_fallback:
        A("s_mov_b64 s[34:35], 0")
    if EXP: A("s_mov_b64 s[34:35], -1")
    A("s_cmp_eq_u64 s[34:35], -1")
    A("s_cbranch_scc0 %s" % fb)
    A.label(stl)
    A("v_rcp_f32 v%d, v%d" % (R + 1, R + 1))
    A("s_nop 0")
    for r in range(12):
        A("v_mul_f32 v%d, v%d, v%d" % (T + r, T + r, R + 1))
    for j in range(6):
        A("v_cvt_pk_bf16_f32 v%d, v%d, v%d" % (R + 8 + j, T + 2 * j, T + 2 * j + 1))
    A("buffer_store_dwordx4 %s, v%d, s[%d:%d], s27 offen sc1" % (v(R + 8, 4), AD1, SRD_X, SRD_X + 3))
    A("buffer_store_dwordx2 %s, v%d, s[%d:%d], s27 offen offset:1024 sc1" % (v(R + 12, 2), AD0, SRD_X, SRD_X + 3))
    st(A)
    if OWAIT: A("s_waitcnt vmcnt(0)")
    A("s_barrier")
    st(A)
    sLH, sRP = 7, 20
    sL0, sN0 = 77, 76
    sLT = [80, 81, 82]; sNT = [83, 84, 85]; sTAU = [86, 87, 88]
    AV, GV, OMG = 64, 76, 80
    vAo, vC4, vPR = 2, 3, 10
    A("s_lshr_b32 s%d, s%d, 2" % (sLH, sW))
    A("s_and_b32 s%d, s%d, 3" % (sRP, sW))
    A("s_mul_i32 s%d, s%d, 80" % (sN0, sJ8))
    A("s_lshl_b32 s%d, s%d, 6" % (sL0, sG8))
    A("s_lshl_b32 s30, s%d, 5" % sLH)
    A("s_add_u32 s%d, s%d, s30" % (sL0, sL0))
    for m in range(3):
        A("s_add_u32 s%d, s%d, %d" % (sTAU[m], sRP, 4 * m))
        if m == 2:
            A("s_sub_u32 s30, s%d, 4" % sTAU[m])
            A("s_cmp_lt_u32 s%d, 10" % sTAU[m])
            A("s_cselect_b32 s%d, s%d, s30" % (sTAU[m], sTAU[m]))
        A("s_cmp_ge_u32 s%d, 5" % sTAU[m])
        A("s_cselect_b32 s%d, 1, 0" % sLT[m])
        A("s_mul_i32 s30, s%d, 5" % sLT[m])
        A("s_sub_u32 s%d, s%d, s30" % (sNT[m], sTAU[m]))
    A("v_lshrrev_b32 v%d, 4, v%d" % (vAo, vLane))
    A("v_and_b32 v%d, 15, v%d" % (vC4, vLane))
    A("v_mul_u32_u24 v8, 1280, v%d" % vC4)
    A("v_lshl_add_u32 v8, v%d, 3, v8" % vAo)
    A("v_lshlrev_b32 v%d, 14, v%d" % (vAo, vAo))
    A("v_lshl_add_u32 v%d, v%d, 1, v%d" % (vAo, vC4, vAo))
    A("v_lshlrev_b32 v%d, 2, v%d" % (vC4, vC4))
    for m in range(3):
        A("s_lshl_b32 s31, s%d, 4" % sLT[m])
        A("s_add_u32 s31, s31, s%d" % sL0)
        A("s_lshl_b32 s32, s%d, 4" % sNT[m])
        A("s_add_u32 s32, s32, s%d" % sN0)
        A("s_mul_i32 s33, s31, 1280")
        A("s_lshl_b32 s30, s32, 1")
        A("s_add_u32 s%d, s33, s30" % (36 + m))
        A("s_lshl_b32 s32, s32, 12")
        A("s_lshl_b32 s33, s31, 1")
        A("s_add_u32 s32, s32, s33")
        for r in range(4):
            A("s_add_u32 s30, s32, %d" % (r * 4096))
            A("buffer_load_short_d16_hi v%d, v%d, s[%d:%d], s30 offen sc1" % (AV + 4 * m + r, vAo, SRD_AT, SRD_AT + 3))
        A("s_lshl_b32 s33, s31, 2")
        A("buffer_load_dword v%d, v%d, s[%d:%d], s33 offen sc1" % (GV + m, vC4, SRD_G, SRD_G + 3))
    A("s_mul_i32 s30, s%d, 40960" % sLH)
    A("s_add_u32 s30, s30, %d" % PA)
    A("v_lshlrev_b32 v%d, 4, v%d" % (vPR, vLane))
    A("v_add_u32 v%d, s30, v%d" % (vPR, vPR))
    for m in range(3):
        A("s_lshl_b32 s30, s%d, 12" % sTAU[m])
        A("v_add_u32 v%d, s30, v%d" % (4 + m, vPR))
    A("s_waitcnt vmcnt(0)")
    for r in range(12):
        A("v_and_b32 v%d, 0xffff0000, v%d" % (AV + r, AV + r))
    TT = 84
    for m in range(3):
        A("v_sub_f32 v%d, 1.0, v%d" % (OMG + m, GV + m))
        for r in range(4):
            A("v_mul_f32 v%d, v%d, v%d" % (AV + 4 * m + r, AV + 4 * m + r, GV + m))
    for m in range(3):
        A("v_cvt_pk_bf16_f32 v%d, v%d, v%d" % (OMG + m, OMG + m, OMG + m))
        for j in range(2):
            A("v_cvt_pk_bf16_f32 v%d, v%d, v%d" % (TT + 2 * m + j, AV + 4 * m + 2 * j, AV + 4 * m + 2 * j + 1))
    for m in range(3):
        A("v_and_b32 v%d, 0xffff0000, v%d" % (OMG + m, OMG + m))
        for j in range(2):
            A("v_lshlrev_b32 v%d, 16, v%d" % (AV + 4 * m + 2 * j, TT + 2 * m + j))
            A("v_and_b32 v%d, 0xffff0000, v%d" % (AV + 4 * m + 2 * j + 1, TT + 2 * m + j))
    st(A)
    A("s_barrier")
    st(A)
    PR = 16
    for m in range(3):
        for src in range(4):
            A("ds_read_b128 %s, v%d offset:%d" % (v(PR + 16 * m + 4 * src, 4), 4 + m, src * 1024))
    for m in range(3):
        b = PR + 16 * m
        A("s_waitcnt lgkmcnt(%d)" % (8 - 4 * m))
        for r in range(4): A("v_add_f32 v%d, v%d, v%d" % (b + r, b + r, b + 4 + r))
        for r in range(4): A("v_add_f32 v%d, v%d, v%d" % (b + 8 + r, b + 8 + r, b + 12 + r))
        for r in range(4): A("v_add_f32 v%d, v%d, v%d" % (b + r, b + r, b + 8 + r))
        for j in range(2): A("v_cvt_pk_bf16_f32 v%d, v%d, v%d" % (b + 4 + j, b + 2 * j, b + 2 * j + 1))
        for j in range(2):
            A("v_lshlrev_b32 v%d, 16, v%d" % (b + 2 * j, b + 4 + j))
            A("v_and_b32 v%d, 0xffff0000, v%d" % (b + 2 * j + 1, b + 4 + j))
        for r in range(4): A("v_mul_f32 v%d, v%d, v%d" % (b + r, b + r, OMG + m))
        for j in range(2): A("v_cvt_pk_bf16_f32 v%d, v%d, v%d" % (b + 4 + j, b + 2 * j, b + 2 * j + 1))
        for j in range(2):
            A("v_lshlrev_b32 v%d, 16, v%d" % (b + 2 * j, b + 4 + j))
            A("v_and_b32 v%d, 0xffff0000, v%d" % (b + 2 * j + 1, b + 4 + j))
        for r in range(4): A("v_add_f32 v%d, v%d, v%d" % (b + r, b + r, AV + 4 * m + r))
        for j in range(2): A("v_cvt_pk_bf16_f32 v%d, v%d, v%d" % (b + 4 + j, b + 2 * j, b + 2 * j + 1))
        if m == 2:
            A("s_cmp_ge_u32 s%d, 2" % sRP)
            A("s_cbranch_scc1 %s_ns" % name)
        A("buffer_store_dwordx2 %s, v8, s[%d:%d], s%d offen" % (v(b + 4, 2), SRD_OUT, SRD_OUT + 3, 36 + m))
    A.label(name + "_ns")
    st(A)
    dump()
    A("s_branch %s" % end)

    A.label(fb)
    FK1, FK2, FV = K1[0], K2[0], V[0]
    if TWO:
        FS, FM, FP = O["A"], O["B"], P["A"]
        Q1, Q2 = Q1["A"], Q2["A"]
    else:
        FS = S[1]; FM = 112
        FP = P[0]
    A("v_lshlrev_b32 v%d, 4, v%d" % (aK1, vLane))
    A("v_lshlrev_b32 v%d, 3, v%d" % (aK2, T2))
    A("v_mul_u32_u24 v%d, 320, v%d" % (aV, T3))
    A("v_lshl_add_u32 v%d, v%d, 4, v%d" % (aV, T2, aV))
    A("v_cmp_gt_u32 vcc, 20, v%d" % T2)
    A("v_mov_b32 v%d, 0x40000000" % (R + 0))
    A("s_nop 1")
    A("v_cndmask_b32 v%d, v%d, v%d, vcc" % (aV, R + 0, aV))
    A("v_mov_b32 v%d, 0xff800000" % (R + 0))
    A("s_mov_b32 s33, 0")
    f1 = name + "_f1"
    A.label(f1)
    A("buffer_load_dwordx4 %s, v%d, s[%d:%d], s33 offen" % (v(FK1, 4), aK1, SRD_KV, SRD_KV + 3))
    A("buffer_load_dwordx2 %s, v%d, s[%d:%d], s33 offen offset:1024" % (v(FK2, 2), aK2, SRD_KV, SRD_KV + 3))
    A("s_waitcnt vmcnt(0)")
    A("v_mfma_f32_32x32x16_bf16 %s, %s, %s, 0" % (v(FS, 16), v(FK1, 4), v(Q1, 4)))
    A("v_mfma_f32_32x32x8_bf16 %s, %s, %s, %s" % (v(FS, 16), v(FK2, 2), v(Q2, 2), v(FS, 16)))
    A("s_nop 7")
    A("s_nop 7")
    for r in range(0, 16, 2):
        A("v_max3_f32 v%d, v%d, v%d, v%d" % (R + 0, R + 0, FS + r, FS + r + 1))
    A("s_add_u32 s33, s33, 2560")
    A("s_cmp_lt_u32 s33, %d" % NKV)
    A("s_cbranch_scc1 %s" % f1)
    A("v_mov_b32 v%d, v%d" % (R + 1, R + 0))
    A("s_nop 1")
    A("v_permlane32_swap_b32 v%d, v%d" % (R + 0, R + 1))
    A("s_nop 1")
    A("v_max_f32 v%d, v%d, v%d" % (R + 0, R + 0, R + 1))
    for r in range(16):
        A("v_mul_f32 v%d, -1.0, v%d" % (FM + r, R + 0))
    for r in range(16):
        A("v_mov_b32 v%d, 0" % (T + r))
    A("s_mov_b32 s33, 0")
    f2 = name + "_f2"
    A.label(f2)
    A("buffer_load_dwordx4 %s, v%d, s[%d:%d], s33 offen" % (v(FK1, 4), aK1, SRD_KV, SRD_KV + 3))
    A("buffer_load_dwordx2 %s, v%d, s[%d:%d], s33 offen offset:1024" % (v(FK2, 2), aK2, SRD_KV, SRD_KV + 3))
    A("buffer_load_dwordx4 %s, v%d, s[%d:%d], s33 offen offset:1280" % (v(FV, 4), aV, SRD_KV, SRD_KV + 3))
    A("buffer_load_dwordx4 %s, v%d, s[%d:%d], s33 offen offset:1920" % (v(FV + 4, 4), aV, SRD_KV, SRD_KV + 3))
    A("s_waitcnt vmcnt(0)")
    A("v_mfma_f32_32x32x16_bf16 %s, %s, %s, %s" % (v(FS, 16), v(FK1, 4), v(Q1, 4), v(FM, 16)))
    A("v_mfma_f32_32x32x8_bf16 %s, %s, %s, %s" % (v(FS, 16), v(FK2, 2), v(Q2, 2), v(FS, 16)))
    for r in range(8):
        A("v_or_b32 v%d, v%d, v%d" % (FV + r, FV + r, T0))
    A("s_nop 7")
    A("s_nop 7")
    for r in range(16):
        A("v_exp_f32 v%d, v%d" % (FS + r, FS + r))
    A("s_nop 0")
    for j in range(8):
        A("v_cvt_pk_bf16_f32 v%d, v%d, v%d" % (FP + j, FS + 2 * j, FS + 2 * j + 1))
    A("s_nop 1")
    A("v_mfma_f32_32x32x16_bf16 %s, %s, %s, %s" % (v(T, 16), v(FV, 4), v(FP, 4), v(T, 16)))
    A("v_mfma_f32_32x32x16_bf16 %s, %s, %s, %s" % (v(T, 16), v(FV + 4, 4), v(FP + 4, 4), v(T, 16)))
    A("s_add_u32 s33, s33, 2560")
    A("s_cmp_lt_u32 s33, %d" % NKV)
    A("s_cbranch_scc1 %s" % f2)
    A("s_nop 7")
    A("s_nop 7")
    A("s_mov_b32 s32, 1")
    A("s_branch %s" % norm)

    A.label(name + "_proj")
    st.n = 1
    sP, sKQ, sL2 = 20, 21, 22
    vL16, vPW, vWL = 0, 3, 12
    ACC = [4, 56]; XF, WF = 16, 64
    A("s_sub_u32 s%d, s%d, 8" % (sP, sW))
    A("s_and_b32 s%d, s%d, 3" % (sKQ, sP))
    A("s_lshr_b32 s%d, s%d, 2" % (sL2, sP))
    A("v_lshlrev_b32 v%d, 4, v%d" % (vL16, vLane))
    A("s_waitcnt lgkmcnt(0)")
    srd(A, SRD_KV, 4, WS_KV, NKV)
    srd(A, SRD_X, 4, WS_O, NQ)
    srd(A, SRD_Q, 4, WS_Q, NQ)
    A("s_cmp_ge_u32 s3, 160")
    A("s_cselect_b32 s26, 1, 0")
    A("s_cmp_lt_u32 s3, 240")
    A("s_cselect_b32 s26, s26, 0")
    A("s_cmp_eq_u32 s26, 1")
    A("s_cbranch_scc1 p_go")
    omark(A, 2, SRD_X, None, 27, 26)
    A("s_lshl_b32 s26, s%d, 11" % sP)
    A("s_add_u32 s27, s27, s26")
    A("buffer_store_dwordx4 v[4:7], v2, s[%d:%d], s27 offen sc1" % (SRD_X, SRD_X + 3))
    A("s_cmp_lt_u32 s%d, 2" % sP)
    A("s_cbranch_scc0 p_np2")
    A("s_add_u32 s27, s27, %d" % (8 * 2048))
    A("buffer_store_dwordx4 v[4:7], v2, s[%d:%d], s27 offen sc1" % (SRD_X, SRD_X + 3))
    A.label("p_np2")
    A("s_cmp_lt_u32 s3, 160")
    A("s_cbranch_scc0 p_go")
    A("s_cmp_eq_u32 s%d, 1" % sP)
    A("s_cbranch_scc0 p_nw")
    poll_flags(A, "p_pf", 94, 26)
    A("v_mov_b32 v2, %d" % GO)
    A("v_mov_b32 v3, 4")
    A("s_mov_b64 exec, 1")
    A("ds_write_b32 v2, v3")
    A("s_mov_b64 exec, -1")
    A.label("p_nw")
    A("v_mov_b32 v4, %d" % GO)
    A("v_lshlrev_b32 v5, 2, v%d" % vLane)
    A("v_add_u32 v5, %d, v5" % (FLG + 64))
    A("v_cmp_gt_u32 vcc, 8, v%d" % vLane)
    A("s_nop 1")
    A("v_cndmask_b32 v4, v4, v5, vcc")
    k1.flag_wait(A, 4, 0, "p_fk", vt=2)
    A.label("p_go")
    st(A)
    sRot, sU, sM = 23, 24, 25
    if ROT:
        A("s_lshl_b32 s%d, s%d, 2" % (sRot, sJ8))
        A("s_add_u32 s%d, s%d, s%d" % (sRot, sRot, sG8))
    else:
        A("s_mov_b32 s%d, 0" % sRot)
    def dma_unit(ubase):
        ent = [SLOT[u] if u >= 0 else 0 for u in range(ubase, min(ubase + 8, 32))]
        tc = sum(e << (5 * k) for k, e in enumerate(ent))
        A("s_mov_b32 s26, 0x%x" % (tc & 0xffffffff))
        A("s_mov_b32 s27, 0x%x" % (tc >> 32))
        A("s_mul_i32 s28, s%d, 5" % sP)
        A("s_lshr_b64 s[26:27], s[26:27], s28")
        A("s_and_b32 s26, s26, 31")
        A("s_mul_i32 s26, s26, 5120")
        A("s_add_u32 s28, s%d, %d" % (sP, ubase + 32))
        A("s_add_u32 s28, s28, s%d" % sRot)
        A("s_and_b32 s28, s28, 31")
        A("s_mul_i32 s28, s28, 5120")
        A("s_mov_b32 m0, s26")
        A("s_add_u32 s29, s28, 4096")
        for i in range(4):
            A("buffer_load_dwordx4 v%d, s[%d:%d], s28 offen offset:%d lds" % (vL16, SRD_KV, SRD_KV + 3, i * 1024))
        A("s_add_u32 m0, s26, 4096")
        A("s_nop 0")
        A("buffer_load_dwordx4 v%d, s[%d:%d], s29 offen lds" % (vL16, SRD_KV, SRD_KV + 3))
    A("s_cmp_ge_u32 s%d, 4" % sP)
    A("s_cbranch_scc0 p_ne")
    dma_unit(-4)
    A.label("p_ne")
    A("s_lshr_b32 s26, s2, 1")
    A("s_lshl_b32 s26, s26, 8")
    A("s_add_u32 s26, s26, 0x%x" % WS_QF)
    A("v_min_u32 v2, 4, v%d" % vLane)
    A("v_lshlrev_b32 v2, 2, v2")
    A("v_add_u32 v2, s26, v2")
    A("s_mov_b32 s26, 0")
    A.label("p_hl")
    A("global_load_dword v5, v2, s[4:5] sc1")
    A("s_waitcnt vmcnt(0)")
    A("v_cmp_eq_u32 vcc, 1, v5")
    A("s_add_u32 s26, s26, 1")
    A("s_nop 3")
    A("s_cmp_eq_u64 vcc, -1")
    A("s_cbranch_scc1 p_q")
    A("s_cmp_lt_u32 s26, %d" % SPIN)
    A("s_cbranch_scc0 p_q")
    A("s_sleep %d" % HSLEEP)
    A("s_branch p_hl")
    A.label("p_q")
    st(A)
    T2, T3 = 10, 11
    qa, qb, Q1, Q2, vC = 14, 15, 4, 8, 13
    A("v_lshrrev_b32 v%d, 5, v%d" % (T3, vLane))
    A("v_and_b32 v18, 7, v%d" % vLane)
    A("v_bfe_u32 v19, v%d, 3, 2" % vLane)
    A("v_mul_u32_u24 v%d, 1280, v18" % qa)
    A("v_mul_u32_u24 v19, 40, v19")
    A("v_add_u32 v%d, v%d, v19" % (qa, qa))
    A("v_lshlrev_b32 v%d, 30, v%d" % (qb, T3))
    A("v_add3_u32 v%d, v%d, v%d, 32" % (qb, qb, qa))
    A("v_lshl_add_u32 v%d, v%d, 4, v%d" % (qa, T3, qa))
    A("s_mul_i32 s27, s2, %d" % (8 * 1280))
    A("s_mul_i32 s26, s%d, 160" % sP)
    A("s_add_u32 s27, s27, s26")
    A("s_lshl_b32 s26, s%d, 10" % sP)
    A("s_add_u32 s26, s26, %d" % QA1)
    A("v_add_u32 v16, s26, v%d" % vL16)
    A("s_lshl_b32 s26, s%d, 8" % sP)
    A("s_add_u32 s26, s26, %d" % QA2)
    A("v_lshlrev_b32 v17, 3, v%d" % vLane)
    A("v_add_u32 v17, s26, v17")
    A("buffer_load_dwordx4 %s, v%d, s[%d:%d], s27 offen sc1" % (v(Q1, 4), qa, SRD_Q, SRD_Q + 3))
    A("buffer_load_dwordx2 %s, v%d, s[%d:%d], s27 offen sc1" % (v(Q2, 2), qb, SRD_Q, SRD_Q + 3))
    sX0, sX1, sWF0, sWL = 34, 35, 36, 37
    A("s_lshl_b32 s30, s%d, 2" % sG8)
    A("s_lshl_b32 s31, s%d, 1" % sL2)
    A("s_add_u32 s30, s30, s31")
    A("s_mul_i32 s%d, s30, 20480" % sX0)
    A("s_mul_i32 s31, s%d, 5120" % sKQ)
    A("s_add_u32 s%d, s%d, s31" % (sX0, sX0))
    A("s_add_u32 s%d, s%d, 20480" % (sX1, sX0))
    A("s_add_u32 s38, s%d, 4096" % sX0)
    A("s_add_u32 s39, s%d, 4096" % sX1)
    A("s_mul_i32 s%d, s%d, 102400" % (sWF0, sJ8))
    A("s_mul_i32 s31, s%d, 5120" % sKQ)
    A("s_add_u32 s%d, s%d, s31" % (sWF0, sWF0))
    A("s_mul_i32 s31, s%d, 20480" % sL2)
    A("s_add_u32 s%d, s%d, s31" % (sWL, sWF0))
    A("s_add_u32 s%d, s%d, %d" % (sWL, sWL, 3 * 20480))
    A("s_mul_i32 s30, s%d, 40960" % sL2)
    A("s_lshl_b32 s31, s%d, 10" % sKQ)
    A("s_add_u32 s31, s31, s30")
    A("s_add_u32 s31, s31, %d" % PA)
    A("v_add_u32 v%d, s31, v%d" % (vPW, vL16))
    A("s_mul_i32 s31, s%d, 10240" % sKQ)
    A("v_add_u32 v%d, s31, v%d" % (vWL, vL16))
    srd(A, SRD_WF, 4, WS_WF, NWF)
    A("s_waitcnt vmcnt(0)")
    A("ds_write_b128 v16, %s" % v(Q1, 4))
    A("s_mov_b32 exec_hi, 0")
    A("ds_write_b64 v17, %s" % v(Q2, 2))
    A("s_mov_b64 exec, -1")
    A("s_waitcnt lgkmcnt(0)")
    st(A)
    A("s_barrier")
    st(A)
    dma_unit(4)
    A("s_waitcnt vmcnt(0)")
    A("s_barrier")
    A("s_cmp_eq_u32 s%d, 4" % sP)
    A("s_cbranch_scc0 p_nd")
    arrive(A, "p_ar", 94, 30, 2, 256, vb=10)
    A.label("p_nd")
    dma_unit(12)
    dma_unit(20)
    A("s_cmp_lt_u32 s%d, 4" % sP)
    A("s_cbranch_scc0 p_nl")
    dma_unit(28)
    A.label("p_nl")
    A("s_waitcnt vmcnt(0)")
    A("s_barrier")
    st(A)
    poll_flags(A, "p_dl", 94, 30, off=136, n=1)
    for t in range(3):
        A("s_add_u32 s30, s%d, %d" % (sWF0, t * 20480))
        A("s_add_u32 s31, s30, 4096")
        for i in range(5):
            d = WF + (t * 5 + i) * 4
            if i < 4: A("buffer_load_dwordx4 %s, v%d, s[%d:%d], s30 offen offset:%d" % (v(d, 4), vL16, SRD_WF, SRD_WF + 3, i * 1024))
            else: A("buffer_load_dwordx4 %s, v%d, s[%d:%d], s31 offen" % (v(d, 4), vL16, SRD_WF, SRD_WF + 3))
    if TWO: A("s_barrier")
    else: A("s_waitcnt vmcnt(0)")
    A("s_mul_i32 s30, s%d, 10240" % sKQ)
    A("s_mul_i32 s31, s%d, 5120" % sL2)
    A("s_add_u32 s30, s30, s31")
    A("s_mov_b32 m0, s30")
    A("s_nop 0")
    for i in range(4):
        A("buffer_load_dwordx4 v%d, s[%d:%d], s%d offen offset:%d lds" % (vL16, SRD_WF, SRD_WF + 3, sWL, i * 1024))
    A("s_add_u32 m0, s30, 4096")
    A("s_add_u32 s31, s%d, 4096" % sWL)
    A("buffer_load_dwordx4 v%d, s[%d:%d], s31 offen lds" % (vL16, SRD_WF, SRD_WF + 3))
    A("s_waitcnt vmcnt(0)")
    A("s_mov_b32 s30, 0")
    if TWO: A("s_barrier")
    A("s_barrier")
    st(A)
    A("s_setprio 3")
    pl = name + "_pl"
    A.label(pl)
    for i in range(5):
        for lt2 in range(2):
            d = XF + (lt2 * 5 + i) * 4
            if i < 4: A("buffer_load_dwordx4 %s, v%d, s[%d:%d], s%d offen offset:%d sc1" % (v(d, 4), vL16, SRD_X, SRD_X + 3, sX1 if lt2 else sX0, i * 1024))
            else: A("buffer_load_dwordx4 %s, v%d, s[%d:%d], s%d offen sc1" % (v(d, 4), vL16, SRD_X, SRD_X + 3, 39 if lt2 else 38))
    def mm(t, slot):
        out = []
        for i in range(5):
            for lt2 in range(2):
                a = ACC[t & 1] + 4 * lt2
                out.append("v_mfma_f32_16x16x32_bf16 %s, %s, %s, %s" % (v(a, 4), v(WF + (slot * 5 + i) * 4, 4), v(XF + (lt2 * 5 + i) * 4, 4), "0" if i == 0 else v(a, 4)))
        return out
    m0_ = mm(0, 0)
    vC = 13
    for n in range(10):
        i, lt2 = divmod(n, 2)
        d = XF + (lt2 * 5 + i) * 4
        A("s_waitcnt vmcnt(%d)" % (9 - n))
        A(m0_[n])
        if n == 0:
            A("v_max3_u32 v%d, v%d, v%d, v%d" % (vC, d, d + 1, d + 2))
            A("v_max_u32 v%d, v%d, v%d" % (vC, vC, d + 3))
        else:
            A("v_max3_u32 v%d, v%d, v%d, v%d" % (vC, vC, d, d + 1))
            A("v_max3_u32 v%d, v%d, v%d, v%d" % (vC, vC, d + 2, d + 3))
    A("v_cmp_eq_u32 vcc, -1, v%d" % vC)
    A("s_add_u32 s30, s30, 1")
    A("s_nop 3")
    A("s_cmp_eq_u64 vcc, 0")
    A("s_cbranch_scc1 %s_d" % pl)
    A("s_cmp_lt_u32 s30, %d" % SPIN)
    A("s_cbranch_scc1 %s" % pl)
    A.label(pl + "_d")
    st(A)
    def wfl(tp, slot):
        for i in range(5):
            A("ds_read_b128 %s, v%d offset:%d" % (v(WF + (slot * 5 + i) * 4, 4), vWL, tp * 5120 + i * 1024))
    def pw(t):
        for lt2 in range(2):
            A("ds_write_b128 v%d, %s offset:%d" % (vPW, v(ACC[t & 1] + 4 * lt2, 4), (lt2 * 5 + t) * 4096))
    wfl(0, 0)
    for x in mm(1, 1): A(x)
    pw(0)
    wfl(1, 1)
    for x in mm(2, 2): A(x)
    pw(1)
    A("s_waitcnt lgkmcnt(9)")
    for x in mm(3, 0): A(x)
    pw(2)
    A("s_waitcnt lgkmcnt(4)")
    for x in mm(4, 1): A(x)
    pw(3)
    A("s_nop 7")
    pw(4)
    A("s_waitcnt lgkmcnt(0)")
    st(A)
    A("s_barrier")
    dump()
    A("s_branch %s" % end)

def gen_kf(name, force_fallback=False, timing=False):
    k1.FUSED = True; k1.SC1 = " sc1"; k1.OPERM = True
    k1.HOOK["q_idle"] = q_idle; k1.HOOK["kv_tail"] = kv_tail; k1.HOOK["q_stored"] = q_stored
    A = Asm()
    end = name + "_end"
    ph2 = name + "_ph2"
    A("s_cmp_ge_u32 s2, 256")
    A("s_cbranch_scc1 %s" % end)
    if timing: A("s_memrealtime s[100:101]")
    k1.rts_clear(A)
    if QFIRST:
        A("s_add_u32 s2, s2, 160")
        A("s_and_b32 s2, s2, 255")
    A("v_lshrrev_b32 v2, 6, v0")
    A("v_and_b32 v%d, 63, v0" % vLane)
    A("v_readfirstlane_b32 s%d, v2" % sW)
    A("s_cmp_lt_u32 s2, 160")
    A("s_cbranch_scc1 k1_ssm")
    A("s_cmp_lt_u32 s2, 240")
    A("s_cbranch_scc1 k1_q")
    k1.role_kv(A, ph2, False)
    A.label("k1_q")
    k1.role_q(A, ph2, False)
    A.label("k1_ssm")
    k1.role_ssm3(A, ph2, False)
    A.label(ph2)
    k1.rts_dump(A)
    phase2(A, name, end, force_fallback, timing)
    A.label(end)
    A("s_endpgm")
    return dict(name=name, grid=256, block=1024, lds=163840, body=A.text(), vgpr=128)

NAME = "gated_mix__ssm_conv_s4__grouped_kv_mqa__prompt"
if __name__ == "__main__":
    k1.QINIT = 2
    for a in sys.argv[2:]:
        if "=" in a:
            k_, v_ = a.split("=")
            if k_.startswith("K1_"): setattr(k1, k_[3:], eval(v_))
            else: globals()[k_] = eval(v_)
    kk = gen_kf(NAME + "_kernel", force_fallback="fb" in sys.argv, timing="t" in sys.argv)
    hdr = open("cdna_kernels/%s.s.ref" % NAME).read().split("; Override launch")[0]
    open(sys.argv[1], "w").write(hdr + compose([kk]))
```

```python
from asmlib import *
import struct, math

def f32bits(x):
    return struct.unpack("<I", struct.pack("<f", x))[0]

GMOD = ""
FUSED = False
SC1 = ""
HOOK = {}
STG2 = 36864
AMP = None
V3 = True
LPRIO = 3
B0 = True
QINIT = 5
QSTEP = 1
QVG = 0
QPD = 1
KPD = 1
QBAR = 0
QDIR = False
GDELAY = 0
QROT = True
QORD = [[0,2,1,3,4,6,5,7,8,9],[2,0,3,1,6,4,7,5,9,8]]
QORD_ROT = [[0,1,2,3,4,5,6,7,8,9],[5,6,7,8,9,0,1,2,3,4]]
WDELAY = 0
LOG2E = 1.4426950408889634
CSCALE = (20 ** -0.5) * LOG2E

sW = 6
vLane = 1

RTS = False
def stamp(A, timing, n):
    if RTS:
        A("s_memrealtime s[%d:%d]" % (60 + 2 * n, 61 + 2 * n)); return
    if timing is not False: A("s_memtime s[%d:%d]" % (60 + 2 * n, 61 + 2 * n))

def rts_clear(A):
    if RTS:
        for n in range(11): A("s_mov_b32 s%d, 0" % (60 + 2 * n))

def rts_dump(A, vt=2):
    if not RTS: return
    A("s_load_dwordx2 s[4:5], s[0:1], 136")
    A("s_memrealtime s[82:83]")
    A("s_waitcnt lgkmcnt(0)")
    A("s_lshl_b32 s98, s2, 4")
    A("s_add_u32 s98, s98, s%d" % sW)
    A("s_lshl_b32 s98, s98, 6")
    A("s_add_u32 s98, s98, 0x1080000")
    A("v_mov_b32 v%d, s98" % vt)
    A("s_mov_b64 exec, 1")
    for i in range(12):
        A("v_mov_b32 v%d, s%d" % (vt + 1, 60 + 2 * i))
        A("global_store_dword v%d, v%d, s[4:5] offset:%d" % (vt, vt + 1, 4 * i))
    A("s_mov_b64 exec, -1")

def dump_stamps(A, timing, nst, end, wg, vt=2):
    if RTS: return
    if timing is False or (timing is not True and (timing >= 160) != (wg >= 160)): return
    if timing is not True: wg = timing
    if AMP is not None:
        a_, b_, w_ = AMP
        if b_ >= nst: return
        A("s_waitcnt lgkmcnt(0)")
        A("s_cmp_eq_u32 s2, %d" % wg)
        A("s_cbranch_scc0 %s" % end)
        A("s_cmp_eq_u32 s%d, %d" % (sW, w_))
        A("s_cbranch_scc0 %s" % end)
        A("s_load_dwordx2 s[40:41], s[0:1], 136")
        A("v_mov_b32 v%d, 0x2C8000" % vt)
        A("s_sub_u32 s51, s%d, s%d" % (60 + 2 * b_, 60 + 2 * a_))
        A("v_mov_b32 v%d, s51" % (vt + 1))
        A("s_waitcnt lgkmcnt(0)")
        A("global_store_dword v%d, v%d, s[40:41]" % (vt, vt + 1))
        return
    A("s_waitcnt lgkmcnt(0)")
    A("s_cmp_eq_u32 s2, %d" % wg)
    A("s_cbranch_scc0 %s" % end)
    A("s_load_dwordx2 s[40:41], s[0:1], 128")
    A("s_and_b32 s50, s%d, 3" % sW)
    A("s_cmp_eq_u32 s50, 0")
    A("s_cbranch_scc0 %s" % end)
    A("s_lshl_b32 s50, s%d, 4" % sW)
    A("v_mov_b32 v%d, s50" % vt)
    A("s_waitcnt lgkmcnt(0)")
    for i in range(1, nst):
        A("s_sub_u32 s51, s%d, s60" % (60 + 2 * i))
        A("v_mov_b32 v%d, s51" % (vt + 1))
        A("global_store_dword v%d, v%d, s[40:41] offset:%d" % (vt, vt + 1, 4 * (i - 1)))

def x_dma_setup(A, vX, t0, t1):
    for e in range(2):
        A("v_lshrrev_b32 v%d, 3, v%d" % (t0, vLane))
        if e: A("v_add_u32 v%d, 8, v%d" % (t0, t0))
        A("v_mul_u32_u24 v%d, 1280, v%d" % (vX + e, t0))
        A("v_lshrrev_b32 v%d, 4, v%d" % (t0, vLane))
        if e: A("v_add_u32 v%d, 4, v%d" % (t0, t0))
        A("v_and_b32 v%d, 7, v%d" % (t1, vLane))
        A("v_xor_b32 v%d, v%d, v%d" % (t0, t0, t1))
        A("v_lshl_add_u32 v%d, v%d, 4, v%d" % (vX + e, t0, vX + e))

def x_read_setup(A, vXr, sRowOff128, xbase, t0, t1, t2):
    A("v_and_b32 v%d, 31, v%d" % (t0, vLane))
    A("v_bfe_u32 v%d, v%d, 1, 3" % (t1, vLane))
    A("v_lshrrev_b32 v%d, 5, v%d" % (t2, vLane))
    A("v_xor_b32 v%d, v%d, v%d" % (t1, t1, t2))
    A("v_lshlrev_b32 v%d, 7, v%d" % (t0, t0))
    A("v_add_u32 v%d, s%d, v%d" % (t0, sRowOff128, t0))
    if xbase: A("v_add_u32 v%d, %d, v%d" % (t0, xbase, t0))
    for s_ in range(4):
        A("v_xor_b32 v%d, %d, v%d" % (t2, 2 * s_, t1))
        A("v_lshl_add_u32 v%d, v%d, 4, v%d" % (vXr + s_, t2, t0))

def role_q(A, end, timing):
    D = 5; BUF = 32768; WOFF = 16384
    SX, SWT, SO = 8, 12, 16
    sRow0, sN0b, sJ = 20, 21, 22
    t0, t1, t2 = 2, 3, 4
    A("s_cmp_ge_u32 s%d, 12" % sW)
    A("s_cbranch_scc1 %s" % ("q_poison" if (OPERM or FUSED) else end))
    A("s_load_dwordx2 s[32:33], s[0:1], 0")
    A("s_load_dwordx2 s[34:35], s[0:1], 80")
    A("s_load_dwordx2 s[4:5], s[0:1], 136")
    A("s_sub_u32 s23, s2, 160")
    A("s_and_b32 s%d, s23, 15" % sRow0)
    A("s_lshl_b32 s%d, s%d, 7" % (sRow0, sRow0))
    A("s_lshr_b32 s%d, s23, 4" % sN0b)
    A("s_lshl_b32 s%d, s%d, 8" % (sN0b, sN0b))
    A("s_cmp_lt_u32 s%d, 4" % sW)
    A("s_cbranch_scc1 q_comp")
    vX, vWd = 8, 10
    A("s_sub_u32 s%d, s%d, 4" % (sJ, sW))
    x_dma_setup(A, vX, t0, t1)
    A("v_lshrrev_b32 v%d, 4, v%d" % (t0, vLane))
    A("v_mul_u32_u24 v%d, 1280, v%d" % (vWd, t0))
    A("v_and_b32 v%d, 1, v%d" % (t1, t0))
    A("v_lshlrev_b32 v%d, 1, v%d" % (t1, t1))
    A("v_lshrrev_b32 v%d, 1, v%d" % (t0, t0))
    A("v_lshl_add_u32 v%d, v%d, 3, v%d" % (t1, t0, t1))
    A("v_and_b32 v%d, 15, v%d" % (t0, vLane))
    A("v_xor_b32 v%d, v%d, v%d" % (t0, t0, t1))
    A("v_lshl_add_u32 v%d, v%d, 4, v%d" % (vWd, t0, vWd))
    sXg, sWg, sM0 = 24, 25, 26
    A("s_lshl_b32 s27, s%d, 4" % sJ)
    A("s_add_u32 s27, s27, s%d" % sRow0)
    A("s_mul_i32 s%d, s27, 1280" % sXg)
    A("s_mul_i32 s%d, s%d, %d" % (sWg, sJ, 8 * 1280))
    A("s_add_u32 s%d, s%d, s%d" % (sWg, sWg, sN0b))
    A("s_lshl_b32 s%d, s%d, 11" % (sM0, sJ))
    A("s_waitcnt lgkmcnt(0)")
    srd(A, SX, 32, 0, NQ)
    srd(A, SWT, 34, 0, 640 * 1280)
    srd(A, SO, 4, WS_Q, NQ)
    issued = []
    QOFF = QORD
    if QROT:
        A("s_lshr_b32 s36, s23, 4")
        A("s_lshl_b32 s36, s36, 1")
        A("s_bfe_u32 s37, s23, 0x10003")
    def dma(c):
        b = (c % D) * BUF
        if QROT:
            A("s_cmp_eq_u32 s37, 1")
            A("s_cselect_b32 s29, %d, %d" % (QOFF[1][c], QOFF[0][c]))
            A("s_add_u32 s29, s29, s36")
            A("s_cmp_ge_u32 s29, 10")
            A("s_cselect_b32 s30, 10, 0")
            A("s_sub_u32 s29, s29, s30")
            A("s_lshl_b32 s30, s29, 7")
            A("s_add_u32 s30, s30, s%d" % sXg)
            A("s_mul_i32 s31, s29, %d" % (64 * 1280))
            A("s_add_u32 s31, s31, s%d" % sWg)
            if QVG:
                R = 32 + 16 * (c % QVG)
                for e in range(2):
                    A("buffer_load_dwordx4 %s, v%d, s[%d:%d], s30 offen" % (v(R + 4 * e, 4), vX + e, SX, SX + 3))
                    issued.append(c)
                for e in range(2):
                    if e:
                        A("s_add_u32 s31, s31, %d" % (4 * e * 1280))
                    A("buffer_load_dwordx4 %s, v%d, s[%d:%d], s31 offen" % (v(R + 8 + 4 * e, 4), vWd, SWT, SWT + 3))
                    issued.append(c)
                return
            for e in range(2):
                A("s_add_u32 m0, s%d, %d" % (sM0, b + e * 1024))
                A("s_nop 0")
                A("buffer_load_dwordx4 v%d, s[%d:%d], s30 offen lds" % (vX + e, SX, SX + 3))
                issued.append(c)
            for e in range(2):
                A("s_add_u32 m0, s%d, %d" % (sM0, b + WOFF + e * 1024))
                A("s_add_u32 s28, s31, %d" % (4 * e * 1280))
                A("buffer_load_dwordx4 v%d, s[%d:%d], s28 offen lds" % (vWd, SWT, SWT + 3))
                issued.append(c)
            return
        for e in range(2):
            A("s_add_u32 m0, s%d, %d" % (sM0, b + e * 1024))
            A("s_add_u32 s28, s%d, %d" % (sXg, c * 128))
            A("buffer_load_dwordx4 v%d, s[%d:%d], s28 offen lds" % (vX + e, SX, SX + 3))
            issued.append(c)
        for e in range(2):
            A("s_add_u32 m0, s%d, %d" % (sM0, b + WOFF + e * 1024))
            A("s_add_u32 s28, s%d, %d" % (sWg, (64 * c + 4 * e) * 1280))
            A("buffer_load_dwordx4 v%d, s[%d:%d], s28 offen lds" % (vWd, SWT, SWT + 3))
            issued.append(c)
    for c in range(QVG if QVG else QINIT):
        dma(c)
    if QVG:
        assert QROT
        vL = [14, 15, 7]
        A("v_lshlrev_b32 v%d, 4, v%d" % (vL[0], vLane))
        A("v_add_u32 v%d, s%d, v%d" % (vL[0], sM0, vL[0]))
        A("v_add_u32 v%d, 0x10000, v%d" % (vL[1], vL[0]))
        A("v_add_u32 v%d, 0x20000, v%d" % (vL[2], vL[0]))
    vSl, vSg = 12, 13
    A("v_lshrrev_b32 v%d, 4, v%d" % (t0, vLane))
    A("v_and_b32 v%d, 15, v%d" % (t1, vLane))
    A("v_mul_u32_u24 v%d, 272, v%d" % (vSl, t0))
    A("v_lshl_add_u32 v%d, v%d, 4, v%d" % (vSl, t1, vSl))
    A("s_mul_i32 s27, s%d, %d" % (sJ, 16 * 272))
    if FUSED:
        A("s_cmp_ge_u32 s%d, 4" % sJ)
        A("s_cselect_b32 s28, %d, 0" % (STG2 - 64 * 272))
        A("s_add_u32 s27, s27, s28")
    A("v_add_u32 v%d, s27, v%d" % (vSl, vSl))
    A("v_mul_u32_u24 v%d, 1280, v%d" % (vSg, t0))
    A("v_lshl_add_u32 v%d, v%d, 4, v%d" % (vSg, t1, vSg))
    for c in range(10):
        last = max(i for i, x in enumerate(issued) if x == c)
        if QVG:
            R = 32 + 16 * (c % QVG)
            b = (c % D) * BUF
            first = min(i for i, x in enumerate(issued) if x == c)
            for e in range(4):
                A("s_waitcnt vmcnt(%d)" % (len(issued) - 1 - (first + e)))
                o = b + (e & 1) * 1024 + (WOFF if e >= 2 else 0)
                A("ds_write_b128 v%d, %s offset:%d" % (vL[o >> 16], v(R + 4 * e, 4), o & 0xffff))
            A("s_waitcnt lgkmcnt(0)")
            if c + QVG <= 9: dma(c + QVG)
            if RTS and c in (0, 1, 3, 5, 7, 9): stamp(A, timing, 4 + (0, 1, 3, 5, 7, 9).index(c))
            A("s_barrier")
            continue
        A("s_waitcnt vmcnt(%d)" % (len(issued) - 1 - last))
        if RTS and c in (0, 1, 3, 5, 7, 9): stamp(A, timing, 4 + (0, 1, 3, 5, 7, 9).index(c))
        A("s_barrier")
        nxt = max(issued) + 1
        k_ = 0
        while nxt <= 9 and nxt - D + 2 <= c and k_ < QSTEP:
            dma(nxt); nxt += 1; k_ += 1
    A("s_barrier")
    if RTS: stamp(A, timing, 2)
    if QDIR:
        if "q_load_tail" in HOOK: HOOK["q_load_tail"](A)
        A("s_branch %s" % end)
    for e in range(4 if not QDIR else 0):
        A("ds_read_b128 %s, v%d offset:%d" % (v(16 + 4 * e, 4), vSl, e * 4 * 272))
    if not QDIR: A("s_add_u32 s28, s%d, s%d" % (sXg, sN0b))
    for e in range(4 if not QDIR else 0):
        A("s_waitcnt lgkmcnt(%d)" % (3 - e))
        A("buffer_store_dwordx4 %s, v%d, s[%d:%d], s28 offen offset:%d%s" % (v(16 + 4 * e, 4), vSg, SO, SO + 3, 0, SC1) if e == 0 else
          "s_add_u32 s29, s28, %d\nbuffer_store_dwordx4 %s, v%d, s[%d:%d], s29 offen%s" % (e * 4 * 1280, v(16 + 4 * e, 4), vSg, SO, SO + 3, SC1))
        if e: A("s_nop 0")
    if not QDIR:
        stamp(A, timing, 3)
        dump_stamps(A, timing, 4, end, 160)
        if FUSED: HOOK["q_stored"](A, sRow0, sN0b, sJ)
        A("s_branch %s" % end)
    if FUSED:
        A.label("q_poison")
        HOOK["q_idle"](A, end)
    elif OPERM:
        A.label("q_poison")
        A("s_load_dwordx2 s[4:5], s[0:1], 136")
        A("s_sub_u32 s23, s2, 160")
        A("s_lshl_b32 s23, s23, 2")
        A("s_add_u32 s23, s23, s%d" % sW)
        A("s_sub_u32 s23, s23, 12")
        A("s_lshl_b32 s23, s23, 13")
        A("v_lshlrev_b32 v2, 4, v%d" % vLane)
        for r in range(4): A("v_mov_b32 v%d, -1" % (4 + r))
        A("s_waitcnt lgkmcnt(0)")
        srd(A, 8, 4, WS_O, NQ)
        for e in range(8):
            if e == 4: A("s_add_u32 s23, s23, 4096")
            A("buffer_store_dwordx4 v[4:7], v2, s[8:11], s23 offen offset:%d" % ((e & 3) * 1024))
        A("s_branch %s" % end)
    A.label("q_comp")
    vXr, vWr = 8, 12
    XF = [[16, 20], [24, 28], [48, 52]]; WF = [[32, 36], [40, 44], [56, 60]]
    NS = QPD + 1
    ACC = 64
    A("s_and_b32 s24, s%d, 1" % sW)
    A("s_lshl_b32 s24, s24, 13")
    x_read_setup(A, vXr, 24, 0, t0, t1, t2)
    A("v_lshrrev_b32 v%d, 5, v%d" % (t0, vLane))
    A("v_bfe_u32 v%d, v%d, 2, 2" % (t1, vLane))
    A("v_lshl_add_u32 v%d, v%d, 3, v%d" % (t0, t0, t1))
    A("v_lshlrev_b32 v%d, 8, v%d" % (t0, t0))
    A("v_bfe_u32 v%d, v%d, 1, 1" % (t2, vLane))
    A("v_lshl_add_u32 v%d, v%d, 3, v%d" % (t0, t2, t0))
    A("v_add_u32 v%d, %d, v%d" % (t0, WOFF, t0))
    A("v_and_b32 v%d, 1, v%d" % (t2, vLane))
    A("v_lshlrev_b32 v%d, 2, v%d" % (t2, t2))
    A("v_bfe_u32 v5, v%d, 4, 1" % vLane)
    A("v_or_b32 v%d, v%d, v5" % (t2, t2))
    A("s_lshr_b32 s25, s%d, 1" % sW)
    A("s_lshl_b32 s25, s25, 3")
    A("v_or_b32 v%d, s25, v%d" % (t2, t2))
    A("v_and_b32 v5, 1, v%d" % t1)
    A("v_lshlrev_b32 v5, 1, v5")
    A("v_xor_b32 v%d, v%d, v5" % (t2, t2))
    A("v_lshrrev_b32 v5, 1, v%d" % t1)
    A("v_lshlrev_b32 v5, 3, v5")
    A("v_xor_b32 v%d, v%d, v5" % (t2, t2))
    A("v_lshl_add_u32 v%d, v%d, 4, v%d" % (vWr, t2, t0))
    A("v_xor_b32 v%d, 2, v%d" % (t2, t2))
    A("v_lshl_add_u32 v%d, v%d, 4, v%d" % (vWr + 1, t2, t0))
    vSt = 14
    A("v_and_b32 v%d, 31, v%d" % (t0, vLane))
    A("v_mul_u32_u24 v%d, 272, v%d" % (vSt, t0))
    A("v_lshrrev_b32 v%d, 5, v%d" % (t0, vLane))
    A("v_lshl_add_u32 v%d, v%d, 6, v%d" % (vSt, t0, vSt))
    A("s_and_b32 s24, s%d, 1" % sW)
    A("s_mul_i32 s24, s24, %d" % (STG2 if FUSED else 64 * 272))
    A("s_lshl_b32 s25, s25, 4")
    A("s_add_u32 s24, s24, s25")
    A("v_add_u32 v%d, s24, v%d" % (vSt, vSt))
    if QDIR:
        vRd, vSg2 = 15, 5
        A("s_mul_i32 s24, s%d, 9216" % sW)
        A("s_cmp_eq_u32 s%d, 3" % sW)
        A("s_cselect_b32 s24, 36864, s24")
        A("v_and_b32 v%d, 31, v%d" % (t0, vLane))
        A("v_mul_u32_u24 v%d, 144, v%d" % (vSt, t0))
        A("v_lshrrev_b32 v%d, 5, v%d" % (t0, vLane))
        A("v_lshl_add_u32 v%d, v%d, 6, v%d" % (vSt, t0, vSt))
        A("v_add_u32 v%d, s24, v%d" % (vSt, vSt))
        A("v_lshrrev_b32 v%d, 3, v%d" % (t0, vLane))
        A("v_and_b32 v%d, 7, v%d" % (t1, vLane))
        A("v_mul_u32_u24 v%d, 144, v%d" % (vRd, t0))
        A("v_lshl_add_u32 v%d, v%d, 4, v%d" % (vRd, t1, vRd))
        A("v_add_u32 v%d, s24, v%d" % (vRd, vRd))
        A("v_mul_u32_u24 v%d, 1280, v%d" % (vSg2, t0))
        A("v_lshl_add_u32 v%d, v%d, 4, v%d" % (vSg2, t1, vSg2))
        A("s_and_b32 s24, s%d, 1" % sW)
        A("s_lshr_b32 s25, s%d, 1" % sW)
        A("s_lshl_b32 s26, s24, 6")
        A("s_add_u32 s26, s26, s%d" % sRow0)
        A("s_mul_i32 s26, s26, 1280")
        A("s_add_u32 s26, s26, s%d" % sN0b)
        A("s_lshl_b32 s27, s25, 7")
        A("s_add_u32 s26, s26, s27")
        A("s_lshr_b32 s27, s%d, 6" % sRow0)
        A("s_add_u32 s27, s27, s24")
        if HOOK["KVF"] == 2:
            A("s_mul_i32 s27, s27, 10")
            A("s_lshr_b32 s28, s%d, 7" % sN0b)
            A("s_add_u32 s27, s27, s28")
            A("s_add_u32 s27, s27, s25")
            A("s_lshl_b32 s27, s27, 7")
        else:
            A("s_lshl_b32 s27, s27, 8")
            A("s_lshr_b32 s28, s%d, 5" % sN0b)
            A("s_add_u32 s27, s27, s28")
            A("s_lshl_b32 s28, s25, 2")
            A("s_add_u32 s27, s27, s28")
        A("s_add_u32 s27, s27, 0x%x" % HOOK["WS_QF"])
        if QDIR == 3:
            A("v_and_b32 v%d, 31, v%d" % (t0, vLane))
            A("v_lshlrev_b32 v%d, 4, v%d" % (vSg2, t0))
            A("v_lshrrev_b32 v%d, 5, v%d" % (t0, vLane))
            A("v_lshl_add_u32 v%d, v%d, 13, v%d" % (vSg2, t0, vSg2))
            A("s_mul_i32 s26, s%d, 1280" % sRow0)
            A("s_lshl_b32 s28, s%d, 7" % sN0b)
            A("s_add_u32 s26, s26, s28")
            A("s_lshl_b32 s28, s25, 14")
            A("s_add_u32 s26, s26, s28")
            A("s_lshl_b32 s28, s24, 10")
            A("s_add_u32 s26, s26, s28")
            A("s_add_u32 s28, s26, 4096")
    bias = [0]
    def set_bias(nb):
        d = nb - bias[0]
        if d:
            for r in list(range(vXr, vXr + 4)) + [vWr, vWr + 1]:
                A("v_add_u32 v%d, %d, v%d" % (r, d & 0xffffffff, r))
        bias[0] = nb
    def reads(S):
        c, s_ = divmod(S, 4); fb = S % NS
        b = (c % D) * BUF
        set_bias(b // 65536 * 65536)
        o = b - bias[0]
        for lg in range(2):
            A("ds_read_b128 %s, v%d offset:%d" % (v(XF[fb][lg], 4), vXr + s_, o + lg * 4096))
        for t in range(2):
            for h in range(2):
                A("ds_read_b64_tr_b16 %s, v%d offset:%d" % (v(WF[fb][t] + 2 * h, 2), vWr + t, o + s_ * 4096 + h * 1024))
    def mfma(S, i):
        fb = S % NS; lg, t = divmod(i, 2)
        a = ACC + 16 * (2 * lg + t)
        A("v_mfma_f32_32x32x16_bf16 %s, %s, %s, %s" % (v(a, 16), v(WF[fb][t], 4), v(XF[fb][lg], 4), "0" if S == 0 else v(a, 16)))
    A("s_barrier")
    stamp(A, timing, 1)
    qst = [4]
    for S in range(QPD): reads(S)
    for S in range(40):
        c, s_ = divmod(S, 4)
        if S + QPD < 40: reads(S + QPD)
        A("s_waitcnt lgkmcnt(%d)" % (6 * min(QPD, 39 - S)))
        for i in range(4):
            mfma(S, i)
            if i == 0 and s_ == 3 - QPD and c + 1 < 10:
                A("s_barrier")
                if QST and c in (0, 2, 4, 6, 8): stamp(A, timing, qst[0]); qst[0] += 1
                if QST and RTS and c == 0: A("s_memtime s[90:91]")
                if QST and RTS and c == 8: A("s_memtime s[92:93]")
    stamp(A, timing, 2)
    if QST and RTS:
        A("s_waitcnt lgkmcnt(0)")
        A("s_sub_u32 s60, s92, s90")
    if QDIR:
        if QDIR == 1: A("s_barrier")
        srd(A, SO, 4, WS_Q, NQ)
        A("v_mov_b32 v2, s27")
        A("v_mov_b32 v3, 1")
    if QDIR == 3:
        A("s_nop 7")
        A("s_nop 3")
        for lg in range(2):
            for t in range(2):
                a = ACC + 16 * (2 * lg + t)
                for h in range(2):
                    for j in range(4 * h, 4 * h + 4):
                        A("v_cvt_pk_bf16_f32 v%d, v%d, v%d" % (a + j, a + 2 * j, a + 2 * j + 1))
                    A("buffer_store_dwordx4 %s, v%d, s[%d:%d], s%d offen offset:%d%s" % (v(a + 4 * h, 4), vSg2, SO, SO + 3, 28 if t else 26, h * 2048 + lg * 512, SC1))
        stamp(A, timing, 3)
        if QBAR == 0: A("s_barrier")
        A("s_mov_b64 exec, 1")
        A("s_waitcnt vmcnt(0)")
        A("global_store_dword v2, v3, s[4:5] sc1")
        A("s_mov_b64 exec, -1")
        if RTS: stamp(A, timing, 10)
        if QBAR == 1: A("s_barrier")
        A("s_branch %s" % end)
        return
    A("s_nop 7")
    A("s_nop 3")
    for lg in range(2):
        for t in range(2):
            a = ACC + 16 * (2 * lg + t)
            for j in range(8):
                A("v_cvt_pk_bf16_f32 v%d, v%d, v%d" % (a + j, a + 2 * j, a + 2 * j + 1))
            for h in range(2):
                A("ds_write_b128 v%d, %s offset:%d" % (vSt, v(a + 4 * h, 4), lg * 32 * (144 if QDIR else 272) + 32 * t + 16 * h))
        if QDIR:
            pass
    A("s_waitcnt lgkmcnt(0)")
    if QDIR:
        for i in range(8):
            A("ds_read_b128 %s, v%d offset:%d" % (v(16 + 4 * i, 4), vRd, i * 8 * 144))
        for i in range(8):
            A("s_waitcnt lgkmcnt(%d)" % (7 - i))
            if i: A("s_add_u32 s26, s26, %d" % (8 * 1280))
            A("buffer_store_dwordx4 %s, v%d, s[%d:%d], s26 offen%s" % (v(16 + 4 * i, 4), vSg2, SO, SO + 3, SC1))
        stamp(A, timing, 3)
        A("s_mov_b64 exec, 1")
        A("s_waitcnt vmcnt(0)")
        A("global_store_dword v2, v3, s[4:5] sc1")
        A("s_mov_b64 exec, -1")
        if RTS: stamp(A, timing, 10)
        if QDIR == 2: A("s_barrier")
        A("s_branch %s" % end)
        return
    A("s_barrier")
    stamp(A, timing, 3)
    dump_stamps(A, timing, 9 if QST else 4, end, 160)
    A("s_branch %s" % end)

def role_kv(A, end, timing):
    D = 5; XB = 65536; BUF = 16384
    SX, SK, SV, SO = 8, 12, 16, 20
    sRow0, sJ = 24, 25
    t0, t1, t2 = 2, 3, 4
    A("s_cmp_ge_u32 s%d, 12" % sW)
    A("s_cbranch_scc1 %s" % ("kv_idle" if FUSED else "k1_wo" if AUX and not (SSM3 and WOSSM) else end))
    A("s_load_dwordx2 s[32:33], s[0:1], 0")
    A("s_load_dwordx4 s[36:39], s[0:1], 88")
    A("s_load_dwordx2 s[4:5], s[0:1], 136")
    A("s_sub_u32 s%d, s2, 240" % sRow0)
    A("s_lshl_b32 s%d, s%d, 7" % (sRow0, sRow0))
    A("s_cmp_lt_u32 s%d, 4" % sW)
    A("s_cbranch_scc1 kv_comp")
    vX, vL16 = 8, 10
    A("s_sub_u32 s%d, s%d, 4" % (sJ, sW))
    x_dma_setup(A, vX, t0, t1)
    A("v_lshlrev_b32 v%d, 4, v%d" % (vL16, vLane))
    sXg, sM0 = 26, 27
    A("s_lshl_b32 s28, s%d, 4" % sJ)
    A("s_add_u32 s28, s28, s%d" % sRow0)
    A("s_mul_i32 s%d, s28, 1280" % sXg)
    A("s_lshl_b32 s%d, s%d, 11" % (sM0, sJ))
    A("s_waitcnt lgkmcnt(0)")
    srd(A, SX, 32, 0, NQ)
    srd(A, SK, 36, 0, 25600)
    srd(A, SV, 38, 0, 25600)
    issued = []
    def dma(c):
        b = XB + (c % D) * BUF
        for e in range(2):
            A("s_add_u32 m0, s%d, %d" % (sM0, b + e * 1024))
            A("s_add_u32 s29, s%d, %d" % (sXg, c * 128))
            A("buffer_load_dwordx4 v%d, s[%d:%d], s29 offen lds" % (vX + e, SX, SX + 3))
            issued.append(c)
    A("s_lshl_b32 s30, s%d, 10" % sJ)
    for e in range(4):
        for (sr, base) in ((SK, 0), (SV, 32768)):
            A("s_add_u32 s29, s30, %d" % (e * 8192))
            A("s_add_u32 m0, s29, %d" % base)
            A("s_nop 0")
            A("buffer_load_dwordx4 v%d, s[%d:%d], s29 offen lds" % (vL16, sr, sr + 3))
            issued.append(0)
    for c in range(D):
        dma(c)
    for c in range(10):
        last = max(i for i, x in enumerate(issued) if x == c)
        A("s_waitcnt vmcnt(%d)" % (len(issued) - 1 - last))
        if RTS and c in (0, 1, 3, 5, 7, 9): stamp(A, timing, 4 + (0, 1, 3, 5, 7, 9).index(c))
        A("s_barrier")
        if c >= 2 and c - 2 + D <= 9:
            dma(c - 2 + D)
    if FUSED:
        A("s_branch kv_tail")
        A.label("kv_idle")
        if "kv_idle" in HOOK: HOOK["kv_idle"](A)
        else:
            for c in range(10): A("s_barrier")
        A.label("kv_tail")
        HOOK["kv_tail"](A, end)
    A("s_branch %s" % end)
    A.label("kv_comp")
    vXr, vWr = 8, 12
    XF = [16, 20, 40]; KF = [24, 28, 44]; VF = [32, 36, 48]
    NS = KPD + 1
    DK, DV = 64, 80
    A("s_lshl_b32 s26, s%d, 12" % sW)
    x_read_setup(A, vXr, 26, XB, t0, t1, t2)
    set_off = XB
    A("v_lshrrev_b32 v%d, 5, v%d" % (t0, vLane))
    A("v_bfe_u32 v%d, v%d, 2, 2" % (t1, vLane))
    A("v_lshl_add_u32 v%d, v%d, 3, v%d" % (t0, t0, t1))
    A("v_mul_u32_u24 v%d, 40, v%d" % (vWr, t0))
    A("v_bfe_u32 v%d, v%d, 4, 1" % (t0, vLane))
    A("v_lshl_add_u32 v%d, v%d, 5, v%d" % (vWr, t0, vWr))
    A("v_and_b32 v%d, 3, v%d" % (t0, vLane))
    A("v_lshl_add_u32 v%d, v%d, 3, v%d" % (vWr, t0, vWr))
    def reads(S):
        c, s_ = divmod(S, 4); fb = S % NS
        o = (c % D) * BUF
        if o >= 65536:
            A("v_add_u32 v%d, %d, v%d" % (t0, 65536, vXr + s_))
            A("ds_read_b128 %s, v%d offset:%d" % (v(XF[fb], 4), t0, o - 65536))
        else:
            A("ds_read_b128 %s, v%d offset:%d" % (v(XF[fb], 4), vXr + s_, o))
        for h in range(2):
            A("ds_read_b64_tr_b16 %s, v%d offset:%d" % (v(KF[fb] + 2 * h, 2), vWr, S * 640 + h * 160))
        for h in range(2):
            A("ds_read_b64_tr_b16 %s, v%d offset:%d" % (v(VF[fb] + 2 * h, 2), vWr, 32768 + S * 640 + h * 160))
    A("s_barrier")
    for S in range(KPD): reads(S)
    for S in range(40):
        c, s_ = divmod(S, 4); fb = S % NS
        if S + KPD < 40: reads(S + KPD)
        A("s_waitcnt lgkmcnt(%d)" % (5 * min(KPD, 39 - S)))
        A("v_mfma_f32_32x32x16_bf16 %s, %s, %s, %s" % (v(DK, 16), v(KF[fb], 4), v(XF[fb], 4), "0" if S == 0 else v(DK, 16)))
        if s_ == 3 - KPD and c + 1 < 10:
            A("s_barrier")
        A("v_mfma_f32_32x32x16_bf16 %s, %s, %s, %s" % (v(DV, 16), v(XF[fb], 4), v(VF[fb], 4), "0" if S == 0 else v(DV, 16)))
    if RTS: stamp(A, timing, 2)
    A("s_waitcnt lgkmcnt(0)")
    srd(A, SO, 4, WS_KV, NKV)
    A("s_lshr_b32 s26, s%d, 5" % sRow0)
    A("s_add_u32 s26, s26, s%d" % sW)
    A("s_mul_i32 s26, s26, 2560")
    vK1, vK2, vV = 8, 9, 10
    A("v_and_b32 v%d, 31, v%d" % (t0, vLane))
    A("v_lshrrev_b32 v%d, 5, v%d" % (t1, vLane))
    A("v_lshlrev_b32 v%d, 4, v%d" % (vK1, t0))
    A("v_lshl_add_u32 v%d, v%d, 3, v%d" % (vK1, t1, vK1))
    A("v_lshlrev_b32 v%d, 30, v%d" % (vK2, t1))
    A("v_lshl_add_u32 v%d, v%d, 3, v%d" % (vK2, t0, vK2))
    A("v_mul_u32_u24 v%d, 320, v%d" % (vV, t1))
    A("v_lshl_add_u32 v%d, v%d, 4, v%d" % (vV, t0, vV))
    A("v_cmp_gt_u32 vcc, 20, v%d" % t0)
    A("v_mov_b32 v%d, 0x40000000" % t2)
    A("s_nop 1")
    A("v_cndmask_b32 v%d, v%d, v%d, vcc" % (vV, t2, vV))
    A("s_nop 7")
    for j in range(6):
        A("v_cvt_pk_bf16_f32 v%d, v%d, v%d" % (16 + j, DK + 2 * j, DK + 2 * j + 1))
    for j in range(6):
        A("v_lshlrev_b32 v%d, 16, v%d" % (DK + 2 * j, 16 + j))
        A("v_and_b32 v%d, 0xffff0000, v%d" % (DK + 2 * j + 1, 16 + j))
    A("s_mov_b32 s27, 0x%x" % f32bits(CSCALE))
    for r in range(12):
        A("v_mul_f32 v%d, s27, v%d" % (DK + r, DK + r))
    for j in range(6):
        A("v_cvt_pk_bf16_f32 v%d, v%d, v%d" % (16 + j, DK + 2 * j, DK + 2 * j + 1))
    for j in range(8):
        A("v_cvt_pk_bf16_f32 v%d, v%d, v%d" % (24 + j, DV + 2 * j, DV + 2 * j + 1))
    A("buffer_store_dwordx2 %s, v%d, s[%d:%d], s26 offen%s" % (v(16, 2), vK1, SO, SO + 3, SC1))
    A("buffer_store_dwordx2 %s, v%d, s[%d:%d], s26 offen offset:512%s" % (v(18, 2), vK1, SO, SO + 3, SC1))
    A("buffer_store_dwordx2 %s, v%d, s[%d:%d], s26 offen offset:1024%s" % (v(20, 2), vK2, SO, SO + 3, SC1))
    A("buffer_store_dwordx4 %s, v%d, s[%d:%d], s26 offen offset:1280%s" % (v(24, 4), vV, SO, SO + 3, SC1))
    A("buffer_store_dwordx4 %s, v%d, s[%d:%d], s26 offen offset:1920%s" % (v(28, 4), vV, SO, SO + 3, SC1))
    if FUSED:
        A("s_waitcnt vmcnt(0)")
        if RTS: stamp(A, timing, 3)
        A("s_branch kv_tail")
    A("s_branch %s" % end)

AUX = True
WS_WF  = 0x0300000
WS_CNT = 0x02C0000
NWF = 819200

def gate_row(A, X, XU, WU, SG, vZero, sOff, pre=None):
    for q in range(5):
        A("v_lshlrev_b32 v%d, 16, v%d" % (XU + 2 * q, X + q))
        A("v_and_b32 v%d, 0xffff0000, v%d" % (XU + 2 * q + 1, X + q))
    for q in range(10):
        A("v_mul_f32 v%d, v%d, v%d" % (XU + q, XU + q, WU + q))
    for q in range(5):
        A("v_cvt_pk_bf16_f32 v%d, v%d, v%d" % (X + q, XU + 2 * q, XU + 2 * q + 1))
    for q in range(5):
        A("v_lshlrev_b32 v%d, 16, v%d" % (XU + 2 * q, X + q))
        A("v_and_b32 v%d, 0xffff0000, v%d" % (XU + 2 * q + 1, X + q))
    for q in range(5):
        A("v_add_f32 v%d, v%d, v%d" % (XU + q, XU + q, XU + 5 + q))
    A("v_add_f32 v%d, v%d, v%d" % (XU, XU, XU + 1))
    A("v_add_f32 v%d, v%d, v%d" % (XU + 2, XU + 2, XU + 3))
    A("v_add_f32 v%d, v%d, v%d" % (XU, XU, XU + 4))
    A("v_add_f32 v%d, v%d, v%d" % (XU, XU, XU + 2))
    for ctl in ("row_shr:1", "row_shr:2", "row_shr:4", "row_shr:8"):
        A("s_nop 1")
        A("v_add_f32_dpp v%d, v%d, v%d %s row_mask:0xf bank_mask:0xf bound_ctrl:0" % (XU, XU, XU, ctl))
    A("s_nop 1")
    A("v_add_f32_dpp v%d, v%d, v%d row_bcast:15 row_mask:0xa bank_mask:0xf" % (XU, XU, XU))
    A("s_nop 1")
    A("v_add_f32_dpp v%d, v%d, v%d row_bcast:31 row_mask:0xc bank_mask:0xf" % (XU, XU, XU))
    A("v_cvt_pk_bf16_f32 v%d, v%d, v%d" % (XU, XU, XU))
    A("v_lshlrev_b32 v%d, 16, v%d" % (XU, XU))
    A("v_mul_f32 v%d, 0xbfb8aa3b, v%d" % (XU, XU))
    A("v_exp_f32 v%d, v%d" % (XU, XU))
    A("s_nop 0")
    A("v_add_f32 v%d, 1.0, v%d" % (XU, XU))
    A("v_rcp_f32 v%d, v%d" % (XU, XU))
    A("s_nop 0")
    A("v_cvt_pk_bf16_f32 v%d, v%d, v%d" % (XU, XU, XU))
    A("v_lshlrev_b32 v%d, 16, v%d" % (X, XU))
    if pre: pre()
    A("s_mov_b32 exec_lo, 0")
    A("s_mov_b32 exec_hi, 0x80000000")
    A("buffer_store_dword v%d, v%d, s[%d:%d], s%d offen%s" % (X, vZero, SG, SG + 3, sOff, SC1))
    A("s_mov_b64 exec, -1")

def role_wo(A, end):
    SWO, SWF, SC = 8, 12, 16
    A("s_load_dwordx2 s[32:33], s[0:1], 104")
    A("s_load_dwordx2 s[4:5], s[0:1], 136")
    A("s_sub_u32 s20, s2, 240")
    A("s_lshl_b32 s20, s20, 2")
    A("s_add_u32 s20, s20, s%d" % sW)
    A("s_sub_u32 s20, s20, 12")
    A("v_lshrrev_b32 v2, 4, v%d" % vLane)
    A("v_and_b32 v3, 15, v%d" % vLane)
    A("v_mul_u32_u24 v4, %d, v2" % (8 * 1280))
    A("v_lshl_add_u32 v4, v3, 4, v4")
    A("v_lshrrev_b32 v5, 1, v3")
    A("v_mul_u32_u24 v5, 20480, v5")
    A("v_lshl_add_u32 v5, v2, 8, v5")
    A("v_and_b32 v6, 1, v3")
    A("v_lshl_add_u32 v5, v6, 7, v5")
    A("v_lshlrev_b32 v6, 7, v%d" % vLane)
    A("v_mov_b32 v7, 0")
    A("s_mov_b32 s40, 0x05040100")
    A("s_mov_b32 s41, 0x07060302")
    for n in range(2):
        A("s_add_u32 s21, s20, %d" % (64 * n))
        A("s_mul_i32 s22, s21, 205")
        A("s_lshr_b32 s22, s22, 10")
        A("s_mul_i32 s23, s22, 5")
        A("s_sub_u32 s23, s21, s23")
        A("s_mul_i32 s24, s22, %d" % (32 * 1280))
        A("s_lshl_b32 s25, s23, 8")
        A("s_add_u32 s%d, s24, s25" % (26 + 3 * n))
        A("s_add_u32 s%d, s%d, 5120" % (27 + 3 * n, 26 + 3 * n))
        A("s_mul_i32 s24, s23, %d" % (8 * 20480))
        A("s_lshl_b32 s25, s22, 10")
        A("s_add_u32 s%d, s24, s25" % (28 + 3 * n))
        A("s_cmp_ge_u32 s21, 100")
        A("s_cselect_b32 s%d, 0x1000000, s%d" % (28 + 3 * n, 28 + 3 * n))
    A("s_waitcnt lgkmcnt(0)")
    srd(A, SWO, 32, 0, 640 * 1280)
    srd(A, SWF, 4, WS_WF, NWF)
    srd(A, SC, 4, WS_CNT, 4096)
    L = [16, 48]; Pk = [80, 16]
    for _ in range(WDELAY): A("s_barrier")
    for n in range(2):
        for e in range(8):
            A("buffer_load_dwordx4 %s, v4, s[%d:%d], s%d offen offset:%d" % (v(L[n] + 4 * e, 4), SWO, SWO + 3, 26 + 3 * n + (e >> 2), (e & 3) * 1280))
    A("s_cmp_eq_u32 s20, 0")
    A("s_cbranch_scc0 k1_wo_nz")
    A("buffer_store_dword v7, v6, s[%d:%d], 0 offen" % (SC, SC + 3))
    A.label("k1_wo_nz")
    A("s_barrier")
    A("s_waitcnt vmcnt(0)")
    for n in range(2):
        for cc in range(8):
            for m in range(4):
                A("v_perm_b32 v%d, v%d, v%d, s%d" % (Pk[n] + 4 * cc + m, L[n] + 4 * (2 * m + 1) + (cc >> 1), L[n] + 4 * (2 * m) + (cc >> 1), 40 + (cc & 1)))
            A("buffer_store_dwordx4 %s, v5, s[%d:%d], s%d offen offset:%d" % (v(Pk[n] + 4 * cc, 4), SWF, SWF + 3, 28 + 3 * n, cc * 16))
    A("s_branch %s" % end)

CH = 34816
TAB = 17408
UB = 4 * CH
UP = 4576
CP0 = 2048
CPS = 4160
EX2 = 20480

GROWS = {0: [11], 1: [10], 2: [9], 3: [8], 4: [3], 5: [2], 6: [1], 7: [0],
         256: [14, 15], 258: [13], 260: [12, 7, 6], 262: [5], 264: [4],
         512: [18], 516: [17], 520: [16], 768: [22], 772: [21], 776: [20],
         1024: [25], 1032: [24], 1280: [27], 1288: [26], 1536: [29], 1544: [28], 1792: [31], 1800: [30]}

def role_ssm(A, end, timing):
    t0, t1, t2, t3 = 2, 3, 4, 5
    sD0, sCH, sHF = 7, 8, 9
    SX, SAT = 12, 36
    A("s_load_dwordx16 s[16:31], s[0:1], 0")
    A("s_load_dwordx2 s[32:33], s[0:1], 64")
    A("s_load_dwordx2 s[4:5], s[0:1], 136")
    A("s_and_b32 s10, s2, 7")
    A("s_mul_i32 s10, s10, 20")
    A("s_lshr_b32 s11, s2, 3")
    A("s_add_u32 s10, s10, s11")
    A("s_lshl_b32 s%d, s10, 2" % sD0)
    A("s_cmp_lt_u32 s%d, 8" % sW)
    A("s_cbranch_scc1 ssm_main")
    if LPRIO: A("s_setprio %d" % LPRIO)
    if AUX: A("s_load_dwordx2 s[36:37], s[0:1], 112")
    A("s_sub_u32 s10, s%d, 8" % sW)
    A("v_mul_u32_u24 v%d, 1280, v%d" % (t0, vLane))
    A("s_mul_i32 s11, s10, %d" % (256 * 1280))
    A("s_lshl_b32 s34, s%d, 1" % sD0)
    A("s_add_u32 s11, s11, s34")
    A("s_waitcnt lgkmcnt(0)")
    srd(A, SX, 16, 0, NQ)
    if B0: A("s_barrier")
    for e in range(4):
        A("s_add_u32 s34, s11, %d" % (e * 64 * 1280))
        A("buffer_load_dwordx2 %s, v%d, s[%d:%d], s34 offen %s" % (v(8 + 2 * e, 2), t0, SX, SX + 3, GMOD))
    NG = 0
    if AUX:
        GX, GW, XU, WU, SGW, SG = 32, 44, 52, 64, 40, 44
        NG = 0
        A("s_lshl_b32 s38, s2, 3")
        A("s_add_u32 s38, s38, s10")
        A("s_mul_i32 s39, s38, 1280")
        A("v_mul_u32_u24 v24, 20, v%d" % vLane)
        A("v_mov_b32 v25, 0")
        srd(A, SGW, 36, 0, 1280)
        srd(A, SG, 4, WS_G, 8192)
    A("v_mov_b32 v16, 0"); A("v_mov_b32 v17, 0"); A("v_mov_b32 v18, 0"); A("v_mov_b32 v19, 0")
    A("s_mul_i32 s34, s10, %d" % UP)
    A("s_add_u32 s34, s34, %d" % UB)
    A("v_lshlrev_b32 v%d, 4, v%d" % (t1, vLane))
    A("v_add_u32 v%d, s34, v%d" % (t1, t1))
    A("s_cmp_lt_u32 s10, 4")
    A("s_cbranch_scc0 ssm_nz")
    A("s_mov_b32 exec_lo, 0x3fffffff")
    A("s_mov_b32 exec_hi, 0")
    A("ds_write_b128 v%d, v[16:19]" % t1)
    A("s_mov_b64 exec, -1")
    A.label("ssm_nz")
    A("s_lshl_b32 s34, s10, 9")
    A("s_add_u32 s34, s34, %d" % (UB + 480))
    A("v_lshlrev_b32 v%d, 1, v%d" % (t1, vLane))
    A("v_add_u32 v%d, s34, v%d" % (t1, t1))
    if V3:
        A("s_barrier")
        A("s_barrier")
    for e in range(4):
        A("s_waitcnt vmcnt(%d)" % (3 - e + NG))
        for cc in range(4):
            A("ds_write_b16%s v%d, v%d offset:%d" % ("_d16_hi" if cc & 1 else "", t1, 8 + 2 * e + (cc >> 1), cc * UP + e * 128))
    if AUX:
        for j in range(2):
            A("s_add_u32 s48, s39, %d" % (j * 1280 * 1280))
            A("buffer_load_dwordx4 %s, v24, s[%d:%d], s48 offen" % (v(GX + 6 * j, 4), SX, SX + 3))
            A("buffer_load_dword v%d, v24, s[%d:%d], s48 offen offset:16" % (GX + 6 * j + 4, SX, SX + 3))
        A("buffer_load_dwordx4 %s, v24, s[%d:%d], 0 offen" % (v(GW, 4), SGW, SGW + 3))
        A("buffer_load_dword v%d, v24, s[%d:%d], 0 offen offset:16" % (GW + 4, SGW, SGW + 3))
    A("s_waitcnt lgkmcnt(0)")
    stamp(A, timing, 1)
    if V3: A("s_barrier")
    if AUX:
        A("s_setprio 0")
        A("s_waitcnt vmcnt(0)")
        for q in range(5):
            A("v_lshlrev_b32 v%d, 16, v%d" % (WU + 2 * q, GW + q))
            A("v_and_b32 v%d, 0xffff0000, v%d" % (WU + 2 * q + 1, GW + q))
        A("s_lshl_b32 s48, s38, 2")
        gate_row(A, GX, XU, WU, SG, 25, 48)
        A("s_cmp_ge_u32 s38, 768")
        A("s_cbranch_scc1 ssm_ng")
        A("s_add_u32 s49, s48, %d" % (1280 * 4))
        gate_row(A, GX + 6, XU, WU, SG, 25, 49)
        A.label("ssm_ng")
    dump_stamps(A, timing, 2, end, 0)
    A("s_branch %s" % end)

    A.label("ssm_main")
    A("s_lshr_b32 s%d, s%d, 1" % (sCH, sW))
    A("s_and_b32 s%d, s%d, 1" % (sHF, sW))
    P = 8
    for i in range(6): A("v_mov_b32 v%d, 0" % (P + i))
    A("s_add_u32 s10, s%d, s%d" % (sD0, sCH))
    A("s_lshl_b32 s11, s10, 8")
    A("s_lshl_b32 s34, s%d, 7" % sHF)
    A("s_add_u32 s11, s11, s34")
    A("v_lshlrev_b32 v%d, 1, v%d" % (t0, vLane))
    A("v_add_u32 v%d, s11, v%d" % (t0, t0))
    A("s_lshl_b32 s11, s%d, 1" % sD0)
    A("s_waitcnt lgkmcnt(0)")
    for i in range(6):
        A("global_load_short_d16_hi v%d, v%d, s[%d:%d]" % (P + i, t0, 18 + 2 * i, 19 + 2 * i))
    A("s_load_dwordx2 s[34:35], s[30:31], s11")
    A("s_load_dwordx2 s[40:41], s[32:33], s11")
    if B0: A("s_barrier")
    srd(A, SAT, 4, WS_AT, NQ)
    vTab = 50
    A("s_mul_i32 s42, s%d, %d" % (sW, TAB))
    A("v_lshlrev_b32 v%d, 2, v%d" % (vTab, vLane))
    A("v_add_u32 v%d, s42, v%d" % (vTab, vTab))
    A("s_waitcnt lgkmcnt(0)")
    for (src, dst) in ((34, 43), (40, 44)):
        A("s_bitcmp1_b32 s%d, 1" % sCH)
        A("s_cselect_b32 s%d, s%d, s%d" % (dst, src + 1, src))
        A("s_lshl_b32 s45, s%d, 16" % dst)
        A("s_and_b32 s%d, s%d, 0xffff0000" % (dst, dst))
        A("s_bitcmp1_b32 s%d, 0" % sCH)
        A("s_cselect_b32 s%d, s%d, s45" % (dst, dst))
    sDskip = 44
    vDT = 6
    A("v_mov_b32 v%d, s43" % vDT)
    A("v_mul_f32 v%d, 0x%x, v%d" % (vDT, f32bits(LOG2E), vDT))
    A("v_exp_f32 v%d, v%d" % (vDT, vDT))
    A("s_nop 0")
    A("v_cvt_pk_bf16_f32 v%d, v%d, v%d" % (vDT, vDT, vDT))
    A("v_and_b32 v%d, 0xffff0000, v%d" % (vDT, vDT))
    Z, E1, E2, E4, W8, E256, E512, E1024, CB = 14, 16, 18, 20, 22, 24, 26, 28, 30
    GA, GB, FA, FB, T1, T2 = 32, 34, 38, 40, 42, 44
    PK = [46, 47, 48, 49]
    A("s_waitcnt vmcnt(0)")
    stamp(A, timing, 7)
    A("v_mul_f32 v%d, v%d, v%d" % (Z, vDT, P + 0))
    A("v_mul_f32 v%d, v%d, v%d" % (Z + 1, vDT, P + 1))
    A("v_mul_f32 v%d, v%d, v%d" % (P + 2, vDT, P + 2))
    A("v_mul_f32 v%d, v%d, v%d" % (P + 3, vDT, P + 3))
    A("v_mul_f32 v%d, 0x%x, v%d" % (Z, f32bits(LOG2E), Z))
    A("v_mul_f32 v%d, 0x%x, v%d" % (Z + 1, f32bits(1.0 / (2 * math.pi)), Z + 1))
    def cmul(d, a, b, t, conj=False):
        A("v_pk_mul_f32 %s, %s, %s op_sel_hi:[0,1]" % (v(t, 2), v(b, 2), v(a, 2)))
        A("v_pk_fma_f32 %s, %s, %s, %s op_sel:[1,1,0] op_sel_hi:[1,0,1] %s:[1,0,0]" % (v(d, 2), v(b, 2), v(a, 2), v(t, 2), "neg_hi" if conj else "neg_lo"))
    def anchor(d, m):
        if m == 1:
            A("v_exp_f32 v%d, v%d" % (t0, Z))
            A("v_fract_f32 v%d, v%d" % (t1, Z + 1))
        else:
            A("v_mul_f32 v%d, %s, v%d" % (t0, "%d.0" % m if m in (2, 4) else "0x%x" % f32bits(float(m)), Z))
            A("v_mul_f32 v%d, %s, v%d" % (t1, "%d.0" % m if m in (2, 4) else "0x%x" % f32bits(float(m)), Z + 1))
            A("v_exp_f32 v%d, v%d" % (t0, t0))
            A("v_fract_f32 v%d, v%d" % (t1, t1))
        A("v_cos_f32 v%d, v%d" % (d, t1))
        A("v_sin_f32 v%d, v%d" % (d + 1, t1))
        A("s_nop 0")
        A("v_mul_f32 v%d, v%d, v%d" % (d, d, t0))
        A("v_mul_f32 v%d, v%d, v%d" % (d + 1, d + 1, t0))
    anchor(W8, 8)
    anchor(E1, 1)
    cmul(CB, P + 4, P + 2, T1)
    A("v_xor_b32 v%d, 0x80000000, v%d" % (CB + 1, CB + 1))
    anchor(E256, 256)
    anchor(E512, 512)
    anchor(E1024, 1024)
    cmul(E2, E1, E1, T1)
    cmul(E4, E2, E2, T2)
    pki = [0]
    def put(src, rows):
        pk = PK[pki[0] & 3]; pki[0] += 1
        A("v_cvt_pk_bf16_f32 v%d, v%d, v%d" % (pk, src, src + 1))
        for r in rows:
            A("ds_write_b32 v%d, v%d offset:%d" % (vTab, pk, r * 272))
    fops = []
    fops.append(lambda: (A("v_mov_b32 v%d, 0x3f80" % PK[3]), A("ds_write_b32 v%d, v%d offset:%d" % (vTab, PK[3], 32 * 272))))
    fops.append(lambda: put(W8, [33]))
    cur = W8
    fr = [FA, FB]
    for j in range(2, 32):
        d = fr[j & 1]
        fops.append((lambda d=d, cur=cur, j=j: (cmul(d, cur, W8, T1), put(d, [32 + j]))))
        cur = d
    gops = []
    def gstep(d, a, b, base):
        gops.append(lambda: (cmul(d, a, b, T2, conj=True), put(d, GROWS[base])))
    gops.append(lambda: put(CB, GROWS[0]))
    g = [GA, GB]
    prev = CB
    for k in range(1, 8):
        gstep(g[k & 1], prev, E1, k); prev = g[k & 1]
    G256, G512, G1024, G1536 = 36, 52, 54, 56
    gstep(G256, CB, E256, 256)
    prev = G256
    for k, base in enumerate((258, 260, 262, 264)):
        gstep(g[k & 1], prev, E2, base); prev = g[k & 1]
    gstep(G512, CB, E512, 512)
    gstep(GA, G512, E4, 516); gstep(GB, GA, E4, 520)
    gstep(G256, G512, E256, 768)
    gstep(GA, G256, E4, 772); gstep(GB, GA, E4, 776)
    gstep(G1024, CB, E1024, 1024)
    gstep(GA, G1024, W8, 1032)
    gstep(GB, G1024, E256, 1280); gstep(GA, GB, W8, 1288)
    gstep(G1536, G1024, E512, 1536); gstep(GA, G1536, W8, 1544)
    gstep(GB, G1536, E256, 1792); gstep(GA, GB, W8, 1800)
    n = max(len(fops), len(gops))
    for i in range(n):
        if i < len(fops): fops[i]()
        if i < len(gops): gops[i]()
    stamp(A, timing, 1)
    AF, BF, DK = 64, 96, 16
    A("v_and_b32 v%d, 31, v%d" % (t0, vLane))
    A("v_mul_u32_u24 v%d, 272, v%d" % (t0, t0))
    A("v_lshrrev_b32 v%d, 5, v%d" % (t1, vLane))
    A("v_lshl_add_u32 v%d, v%d, 4, v%d" % (t0, t1, t0))
    A("v_add_u32 v%d, s42, v%d" % (t0, t0))
    for t in range(8):
        A("ds_read_b128 %s, v%d offset:%d" % (v(AF + 4 * t, 4), t0, 32 * t))
        A("ds_read_b128 %s, v%d offset:%d" % (v(BF + 4 * t, 4), t0, 32 * 272 + 32 * t))
    for t in range(8):
        A("s_waitcnt lgkmcnt(%d)" % (14 - 2 * t))
        A("v_mfma_f32_32x32x16_bf16 %s, %s, %s, %s" % (v(DK, 16), v(AF + 4 * t, 4), v(BF + 4 * t, 4), "0" if t == 0 else v(DK, 16)))
    vL16 = 7
    A("v_lshlrev_b32 v%d, 4, v%d" % (vL16, vLane))
    A("v_add_u32 v%d, s42, v%d" % (t0, vL16))
    A("s_xor_b32 s45, s%d, 1" % sW)
    A("s_mul_i32 s45, s45, %d" % TAB)
    A("v_add_u32 v%d, s45, v%d" % (t1, vL16))
    A("s_mul_i32 s46, s%d, %d" % (sCH, CH))
    A("s_nop 7")
    A("s_nop 1")
    A("s_cmp_eq_u32 s%d, 0" % sHF)
    A("s_cbranch_scc0 ssm_x1")
    A("ds_write_b128 v%d, %s" % (t0, v(DK + 8, 4)))
    A("ds_write_b128 v%d, %s offset:1024" % (t0, v(DK + 12, 4)))
    A("s_branch ssm_x2")
    A.label("ssm_x1")
    A("ds_write_b128 v%d, %s" % (t0, v(DK, 4)))
    A("ds_write_b128 v%d, %s offset:1024" % (t0, v(DK + 4, 4)))
    A.label("ssm_x2")
    A("s_waitcnt lgkmcnt(0)")
    A("s_barrier")
    stamp(A, timing, 2)
    R = 32
    A("ds_read_b128 %s, v%d" % (v(R, 4), t1))
    A("ds_read_b128 %s, v%d offset:1024" % (v(R + 4, 4), t1))
    A("v_and_b32 v%d, 31, v%d" % (t2, vLane))
    A("v_lshrrev_b32 v%d, 5, v%d" % (t3, vLane))
    A("v_lshlrev_b32 v%d, 4, v%d" % (t2, t2))
    A("s_add_u32 s47, s46, %d" % (CP0 + 4080))
    A("v_sub_u32 v%d, s47, v%d" % (t2, t2))
    A("s_waitcnt lgkmcnt(0)")
    A("s_cmp_eq_u32 s%d, 0" % sHF)
    A("s_cbranch_scc0 ssm_y1")
    for r in range(8): A("v_add_f32 v%d, v%d, v%d" % (DK + r, DK + r, R + r))
    A("v_lshlrev_b32 v%d, 9, v%d" % (t3, t3))
    A("v_sub_u32 v%d, v%d, v%d" % (t2, t2, t3))
    for j in range(4): A("v_cvt_pk_bf16_f32 v%d, v%d, v%d" % (R + j, DK + 2 * j, DK + 2 * j + 1))
    A("ds_write_b128 v%d, %s" % (t2, v(R, 4)))
    A("v_mov_b32 v%d, 0" % (R + 4)); A("v_mov_b32 v%d, 0" % (R + 5)); A("v_mov_b32 v%d, 0" % (R + 6)); A("v_mov_b32 v%d, 0" % (R + 7))
    A("s_add_u32 s47, s46, %d" % (CP0 + 4096))
    A("v_add_u32 v%d, s47, v%d" % (t3, vL16))
    A("s_mov_b64 exec, 0xf")
    A("ds_write_b128 v%d, %s" % (t3, v(R + 4, 4)))
    A("s_mov_b64 exec, -1")
    A("s_branch ssm_y2")
    A.label("ssm_y1")
    for r in range(8): A("v_add_f32 v%d, v%d, v%d" % (DK + r, DK + 8 + r, R + r))
    A("v_lshlrev_b32 v%d, 9, v%d" % (R + 12, t3))
    A("v_sub_u32 v%d, v%d, v%d" % (R + 12, t2, R + 12))
    A("v_subrev_u32 v%d, 1024, v%d" % (R + 12, R + 12))
    A("v_cvt_pk_bf16_f32 v%d, v%d, v%d" % (R + 0, DK + 0, DK + 0))
    A("v_cvt_pk_bf16_f32 v%d, v%d, v%d" % (R + 1, DK + 1, DK + 1))
    A("v_cvt_pk_bf16_f32 v%d, v%d, v%d" % (R + 2, DK + 1, DK + 2))
    A("v_cvt_pk_bf16_f32 v%d, v%d, v%d" % (R + 3, DK + 2, DK + 2))
    A("ds_write_b128 v%d, %s" % (R + 12, v(R, 4)))
    A("v_lshlrev_b32 v%d, 10, v%d" % (R + 13, t3))
    A("v_sub_u32 v%d, v%d, v%d" % (R + 13, t2, R + 13))
    A("v_subrev_u32 v%d, 2560, v%d" % (R + 13, R + 13))
    A("v_and_b32 v%d, 1, v%d" % (R + 14, vLane))
    A("v_cmp_eq_u32 vcc, 1, v%d" % (R + 14))
    A("s_nop 1")
    for k in range(2):
        K8, K0 = DK + 4 + 2 * k, DK + 5 + 2 * k
        o = R + 4 + 4 * k
        A("v_cndmask_b32 v%d, v%d, v%d, vcc" % (R + 15, K0, K8))
        A("v_cvt_pk_bf16_f32 v%d, v%d, v%d" % (o + 0, K8, K8))
        A("v_cvt_pk_bf16_f32 v%d, v%d, v%d" % (o + 1, K8, R + 15))
        A("v_cvt_pk_bf16_f32 v%d, v%d, v%d" % (o + 2, K0, K0))
        A("v_mov_b32 v%d, v%d" % (o + 3, o + 2))
    A("ds_write_b128 v%d, %s offset:512" % (R + 13, v(R + 4, 4)))
    A("ds_write_b128 v%d, %s" % (R + 13, v(R + 8, 4)))
    A.label("ssm_y2")
    A("s_waitcnt lgkmcnt(0)")
    A("s_barrier")
    stamp(A, timing, 3)
    A("s_lshl_b32 s47, s%d, 11" % sHF)
    A("s_add_u32 s47, s47, s46")
    A("s_add_u32 s47, s47, %d" % CP0)
    A("v_add_u32 v%d, s47, v%d" % (t0, vL16))
    for it in range(2):
        d = 32 + 8 * it
        A("ds_read_b128 %s, v%d offset:%d" % (v(d, 4), t0, it * 1024))
        A("ds_read_b64 %s, v%d offset:%d" % (v(d + 4, 2), t0, it * 1024 + 16))
    A("v_lshrrev_b32 v%d, 2, v%d" % (t1, vLane))
    A("v_mul_u32_u24 v%d, %d, v%d" % (t1, CPS, t1))
    A("v_and_b32 v%d, 3, v%d" % (t2, vLane))
    A("v_lshl_add_u32 v%d, v%d, 4, v%d" % (t1, t2, t1))
    A("s_add_u32 s47, s46, %d" % (CP0 + CPS + 4096))
    A("v_add_u32 v%d, s47, v%d" % (t1, t1))
    for r in range(4): A("v_mov_b32 v%d, 0" % (60 + r))
    A("s_cmp_eq_u32 s%d, 0" % sHF)
    A("s_cbranch_scc0 ssm_z1")
    A("s_mov_b64 exec, 0xfff")
    A("ds_write_b128 v%d, v[60:63]" % t1)
    A("s_mov_b64 exec, -1")
    A.label("ssm_z1")
    A("v_add_u32 v64, %d, v%d" % (2 * CPS, t0))
    A("v_add_u32 v65, %d, v%d" % (2 * CPS + 1024, t0))
    A("s_waitcnt lgkmcnt(0)")
    for it in range(2):
        d = 32 + 8 * it; e = 48 + 8 * it
        for i in range(4): A("v_alignbit_b32 v%d, v%d, v%d, 16" % (e + i, d + i + 1, d + i))
        for i in range(4): A("v_alignbit_b32 v%d, v%d, v%d, 16" % (e + 4 + i, d + i + 2, d + i + 1))
        A("ds_write_b128 v%d, %s offset:%d" % (t0, v(e, 4), it * 1024 + CPS))
        A("ds_write2_b32 v%d, v%d, v%d offset0:0 offset1:1" % (64 + it, d + 1, d + 2))
        A("ds_write2_b32 v%d, v%d, v%d offset0:2 offset1:3" % (64 + it, d + 3, d + 4))
        A("ds_write_b128 v%d, %s offset:%d" % (t0, v(e + 4, 4), it * 1024 + 3 * CPS))
    AF, BF, DC = 32, 64, 96
    vAlo, vAhi, vB = 8, 9, 10
    A("v_and_b32 v%d, 3, v%d" % (t1, vLane))
    A("v_sub_u32 v%d, 3, v%d" % (t1, t1))
    A("v_mul_u32_u24 v%d, %d, v%d" % (vAlo, CPS, t1))
    A("v_bfe_u32 v%d, v%d, 2, 2" % (t1, vLane))
    A("v_lshrrev_b32 v%d, 4, v%d" % (t2, vLane))
    A("v_lshlrev_b32 v%d, 1, v%d" % (t3, t2))
    A("v_sub_u32 v%d, v%d, v%d" % (t3, t3, t1))
    A("v_lshl_add_u32 v%d, v%d, 3, v%d" % (vAlo, t3, vAlo))
    A("s_lshl_b32 s47, s%d, 8" % sHF)
    A("s_sub_u32 s48, s46, s47")
    A("s_add_u32 s48, s48, %d" % (CP0 + 8 * 507 - 3584))
    A("v_add_u32 v%d, s48, v%d" % (vAlo, vAlo))
    A("v_add_u32 v%d, 2048, v%d" % (vAhi, vAlo))
    A("v_and_b32 v%d, 15, v%d" % (t1, vLane))
    A("v_lshlrev_b32 v%d, 5, v%d" % (vB, t1))
    A("v_lshl_add_u32 v%d, v%d, 4, v%d" % (vB, t2, vB))
    A("s_mul_i32 s48, s%d, %d" % (sCH, UP))
    A("s_add_u32 s48, s48, %d" % (UB + 448))
    A("s_sub_u32 s49, s48, s47")
    A("v_add_u32 v%d, s49, v%d" % (vB, vB))
    vU, vO = 11, 12
    A("v_lshlrev_b32 v%d, 5, v%d" % (vO, t1))
    A("v_lshl_add_u32 v%d, v%d, 3, v%d" % (vO, t2, vO))
    A("s_lshl_b32 s47, s%d, 11" % sHF)
    A("s_add_u32 s49, s48, s47")
    A("s_add_u32 s49, s49, 32")
    A("v_add_u32 v%d, s49, v%d" % (vU, vO))
    A("s_add_u32 s10, s%d, s%d" % (sD0, sCH))
    A("s_lshl_b32 s10, s10, 12")
    A("s_add_u32 s10, s10, s47")
    A("s_add_u32 s47, s46, %d" % EX2)
    A("s_lshl_b32 s48, s%d, 12" % sHF)
    A("s_add_u32 s49, s47, s48")
    A("v_add_u32 v%d, s49, v%d" % (13, vL16))
    A("s_xor_b32 s48, s48, 4096")
    A("s_add_u32 s49, s47, s48")
    A("v_add_u32 v%d, s49, v%d" % (14, vL16))
    A("s_waitcnt lgkmcnt(0)")
    stamp(A, timing, 8)
    A("s_barrier")
    stamp(A, timing, 4)
    for cl in range(4):
        if cl:
            A("v_subrev_u32 v%d, 64, v%d" % (vAlo, vAlo))
            A("v_subrev_u32 v%d, 64, v%d" % (vB, vB))
        seq = [("B", 0)]
        for a in range(8): seq += [("A", a, 0), ("A", a, 1)]
        seq += [("B", b) for b in range(1, 8)]
        for x in seq:
            if x[0] == "A":
                i, h = x[1], x[2]
                A("ds_read_b64 %s, v%d offset:%d" % (v(AF + 4 * i + 2 * h, 2), vAlo, 512 * (7 - i) + 8 * h))
            else:
                A("ds_read_b128 %s, v%d offset:%d" % (v(BF + 4 * x[1], 4), vB, 512 * x[1]))
        pos = {x: n for n, x in enumerate(seq)}
        waited = -1
        for b in range(8):
            for a in range(8 - b):
                need = max(pos[("A", a, 1)], pos[("B", b)])
                if need > waited:
                    cnt = len(seq) - 1 - need
                    if cnt <= 15:
                        A("s_waitcnt lgkmcnt(%d)" % cnt)
                        waited = need
                    elif len(seq) - 1 - 15 > waited:
                        A("s_waitcnt lgkmcnt(15)")
                        waited = len(seq) - 1 - 15
                c = a + b
                first = (cl == 0 and b == 0)
                A("v_mfma_f32_16x16x32_bf16 %s, %s, %s, %s" % (v(DC + 4 * c, 4), v(AF + 4 * a, 4), v(BF + 4 * b, 4), "0" if first else v(DC + 4 * c, 4)))
    stamp(A, timing, 5)
    A("s_nop 7")
    A("s_cmp_eq_u32 s%d, 0" % sHF)
    A("s_cbranch_scc0 ssm_w1")
    for k in range(4): A("ds_write_b128 v13, %s offset:%d" % (v(DC + 16 + 4 * k, 4), 1024 * k))
    A("s_branch ssm_w2")
    A.label("ssm_w1")
    for k in range(4): A("ds_write_b128 v13, %s offset:%d" % (v(DC + 4 * k, 4), 1024 * k))
    A.label("ssm_w2")
    U = 32
    for k in range(4): A("ds_read_b64 %s, v%d offset:%d" % (v(U + 2 * k, 2), vU, 512 * k))
    A("s_waitcnt lgkmcnt(0)")
    A("s_barrier")
    R = 64
    for k in range(4): A("ds_read_b128 %s, v14 offset:%d" % (v(R + 4 * k, 4), 1024 * k))
    UF = 40
    for k in range(8):
        A("v_lshlrev_b32 v%d, 16, v%d" % (UF + 2 * k, U + k))
        A("v_and_b32 v%d, 0xffff0000, v%d" % (UF + 2 * k + 1, U + k))
    for r in range(16): A("v_mul_f32 v%d, s%d, v%d" % (UF + r, sDskip, UF + r))
    for k in range(8): A("v_cvt_pk_bf16_f32 v%d, v%d, v%d" % (U + k, UF + 2 * k, UF + 2 * k + 1))
    for k in range(8):
        A("v_lshlrev_b32 v%d, 16, v%d" % (UF + 2 * k, U + k))
        A("v_and_b32 v%d, 0xffff0000, v%d" % (UF + 2 * k + 1, U + k))
    A("s_waitcnt lgkmcnt(0)")
    A("s_cmp_eq_u32 s%d, 0" % sHF)
    A("s_cbranch_scc0 ssm_v1")
    for r in range(16): A("v_add_f32 v%d, v%d, v%d" % (DC + r, DC + r, R + r))
    A("s_branch ssm_v2")
    A.label("ssm_v1")
    for r in range(16): A("v_add_f32 v%d, v%d, v%d" % (DC + r, DC + 16 + r, R + r))
    A.label("ssm_v2")
    for k in range(8): A("v_cvt_pk_bf16_f32 v%d, v%d, v%d" % (U + k, DC + 2 * k, DC + 2 * k + 1))
    for k in range(8):
        A("v_lshlrev_b32 v%d, 16, v%d" % (DC + 2 * k, U + k))
        A("v_and_b32 v%d, 0xffff0000, v%d" % (DC + 2 * k + 1, U + k))
    for r in range(16): A("v_add_f32 v%d, v%d, v%d" % (DC + r, DC + r, UF + r))
    for k in range(8): A("v_cvt_pk_bf16_f32 v%d, v%d, v%d" % (U + k, DC + 2 * k, DC + 2 * k + 1))
    for k in range(4):
        A("buffer_store_dwordx2 %s, v%d, s[%d:%d], s10 offen offset:%d" % (v(U + 2 * k, 2), vO, SAT, SAT + 3, 512 * k))
    stamp(A, timing, 6)
    dump_stamps(A, timing, 9, end, 0)
    A("s_branch %s" % end)


FL = 157696
LPRIO2 = 2
GPRIO = 0
QGATE = False
WOP2 = False
MARKAT = 0
MPRIO = 0
MPRIO2 = 0
GXCD = True
WOSSM = True
OPERM = False
WOWAVE = 8
SPIN = 100000
UROT = True
UROTM = 5
UEARLY = False
PF = ""
PHASES = [[0, 1, 2, 3], [4, 5, 6, 7]]

def flag_set(A, vaddr, vval, off):
    A("s_mov_b64 exec, 1")
    A("ds_write_b32 v%d, v%d offset:%d" % (vaddr, vval, off))
    A("s_mov_b64 exec, -1")

def flag_wait(A, vaddr, off, label, vt=2):
    A("s_mov_b32 s59, 0")
    A.label(label)
    A("ds_read_b32 v%d, v%d offset:%d" % (vt, vaddr, off))
    A("s_waitcnt lgkmcnt(0)")
    A("v_cmp_le_u32 vcc, 4, v%d" % vt)
    A("s_nop 3")
    A("s_cmp_eq_u64 vcc, -1")
    A("s_cbranch_scc1 %s_d" % label)
    A("s_add_u32 s59, s59, 1")
    A("s_cmp_lt_u32 s59, %d" % SPIN)
    A("s_cbranch_scc0 %s_d" % label)
    A("s_sleep 1")
    A("s_branch %s" % label)
    A.label(label + "_d")

def conv_phases(A, timing, vA, vB, AF, BF, DC, vFc, vFu):
    mf = []
    for p, bl in enumerate(PHASES):
        amax = 7 - bl[0]
        for cl in range(4):
            for a in range(amax, -1, -1):
                for b in bl:
                    if a + b <= 7: mf.append((p, cl, a, b))
    def aslot(p, cl, a):
        na = 8 - PHASES[p][0]
        return (a + na * (cl % (8 // na))) % 8
    def bslot(p, cl, b):
        nb = len(PHASES[p])
        return (b - PHASES[p][0] + nb * (cl % (8 // nb))) % 8
    reads = {}
    for n, (p, cl, a, b) in enumerate(mf):
        ta, tb = ("A", p, cl, a), ("B", p, cl, b)
        if ta not in reads:
            r = AF + 4 * aslot(p, cl, a)
            reads[ta] = dict(kind="A", slot=aslot(p, cl, a), first=n, last=n, p=p,
                             txt=["ds_read_b64 %s, v%d offset:%d" % (v(r + 2 * h, 2), vA, 512 * (7 - a) + 8 * h + 64 * (3 - cl)) for h in range(2)])
        if tb not in reads:
            r = BF + 4 * bslot(p, cl, b)
            reads[tb] = dict(kind="B", slot=bslot(p, cl, b), first=n, last=n, p=p,
                             txt=["ds_read_b128 %s, v%d offset:%d" % (v(r, 4), vB, 512 * b + 64 * (3 - cl))])
        reads[ta]["last"] = n; reads[tb]["last"] = n
    pstart = {}
    for n, m in enumerate(mf): pstart.setdefault(m[0], n)
    for t, r in reads.items():
        prev = [q["last"] for q in reads.values() if q["kind"] == r["kind"] and q["slot"] == r["slot"] and q["last"] < r["first"]]
        e = max(prev) + 1 if prev else 0
        if r["kind"] == "B": e = max(e, pstart[r["p"]])
        r["e"] = e
        for q in reads.values():
            if q is not r and q["kind"] == r["kind"] and q["slot"] == r["slot"]:
                assert q["last"] < r["first"] or q["first"] > r["last"]
    order = []; state = {"done": 0}
    issued = set()
    def issue_ready(n, only=None):
        rd = sorted([t for t, r in reads.items() if t not in issued and r["e"] <= n and (only is None or r["kind"] == only)], key=lambda t: reads[t]["first"])
        for t in rd:
            for x in reads[t]["txt"]:
                A(x); order.append(t)
            issued.add(t)
    def need(tag):
        idx = max(i for i, x in enumerate(order) if x == tag)
        if idx < state["done"]: return
        cnt = min(len(order) - 1 - idx, 15)
        A("s_waitcnt lgkmcnt(%d)" % cnt)
        state["done"] = len(order) - cnt
        assert state["done"] > idx
    first = set()
    for n, (p, cl, a, b) in enumerate(mf):
        if n == pstart[p]:
            if p == 0: flag_wait(A, vFc, 0, "ssm_fp0")
            else:
                issue_ready(n, only="A")
                flag_wait(A, vFu, 4 if UROT else 4 * (PHASES[p][-1] >> 1), "ssm_fp%d" % p)
            state["done"] = len(order)
            stamp(A, timing, 4 if p == 0 else (9 if p == 1 else 10))
        issue_ready(n)
        need(("B", p, cl, b)); need(("A", p, cl, a))
        c = a + b
        A("v_mfma_f32_16x16x32_bf16 %s, %s, %s, %s" % (v(DC + 4 * c, 4), v(AF + 4 * aslot(p, cl, a), 4), v(BF + 4 * bslot(p, cl, b), 4), v(DC + 4 * c, 4) if c in first else "0"))
        first.add(c)

def role_ssm3(A, end, timing):
    t0, t1, t2, t3 = 2, 3, 4, 5
    sD0, sCH, sHF = 7, 8, 9
    SX, SAT = 12, 36
    A("s_load_dwordx16 s[16:31], s[0:1], 0")
    A("s_load_dwordx2 s[32:33], s[0:1], 64")
    A("s_load_dwordx2 s[4:5], s[0:1], 136")
    A("s_and_b32 s10, s2, 7")
    A("s_mul_i32 s10, s10, 20")
    A("s_lshr_b32 s11, s2, 3")
    A("s_add_u32 s10, s10, s11")
    A("s_lshl_b32 s%d, s10, 2" % sD0)
    A("s_cmp_lt_u32 s%d, 8" % sW)
    A("s_cbranch_scc1 ssm_main")
    A("s_cmp_lt_u32 s%d, 12" % sW)
    A("s_cbranch_scc0 ssm_lp2")
    A("s_setprio %d" % LPRIO)
    A("s_branch ssm_lp3")
    A.label("ssm_lp2")
    A("s_setprio %d" % LPRIO2)
    A.label("ssm_lp3")
    if not QGATE: A("s_load_dwordx2 s[36:37], s[0:1], 112")
    if WOSSM and not WOP2: A("s_load_dwordx2 s[82:83], s[0:1], 104")
    if PF: A("s_load_dwordx2 s[76:77], s[0:1], 80")
    A("s_sub_u32 s10, s%d, 8" % sW)
    A("s_lshr_b32 s50, s10, 2")
    A("s_and_b32 s51, s10, 3")
    if UROT:
        A("s_lshr_b32 s53, s2, 3")
        A("s_mul_i32 s53, s53, %d" % UROTM)
        A("s_add_u32 s53, s53, s51")
        for e in range(4):
            A("s_add_u32 s52, s53, %d" % (4 * e))
            A("s_and_b32 s52, s52, 15")
            A("s_lshl_b32 s52, s52, 6")
            A("s_lshl_b32 s54, s50, 10")
            A("s_add_u32 s%d, s52, s54" % (84 + e))
    else:
        A("s_lshl_b32 s52, s50, 10")
        A("s_lshl_b32 s53, s51, 7")
        A("s_add_u32 s52, s52, s53")
        for e, eo in enumerate([0, 64, 512, 576]):
            A("s_add_u32 s%d, s52, %d" % (84 + e, eo))
    A("v_mul_u32_u24 v%d, 1280, v%d" % (t0, vLane))
    A("s_lshl_b32 s11, s%d, 1" % sD0)
    A("v_mov_b32 v16, 0"); A("v_mov_b32 v17, 0"); A("v_mov_b32 v18, 0"); A("v_mov_b32 v19, 0")
    A("s_mul_i32 s34, s10, %d" % UP)
    A("s_add_u32 s34, s34, %d" % UB)
    A("v_lshlrev_b32 v%d, 4, v%d" % (t1, vLane))
    A("v_add_u32 v%d, s34, v%d" % (t1, t1))
    A("s_cmp_lt_u32 s10, 4")
    A("s_cbranch_scc0 ssm_nz")
    A("s_mov_b32 exec_lo, 0x3fffffff")
    A("s_mov_b32 exec_hi, 0")
    A("ds_write_b128 v%d, v[16:19]" % t1)
    A("s_mov_b64 exec, -1")
    A.label("ssm_nz")
    A("s_cmp_eq_u32 s10, 4")
    A("s_cbranch_scc0 ssm_nf")
    A("v_lshlrev_b32 v%d, 2, v%d" % (t1, vLane))
    A("v_add_u32 v%d, %d, v%d" % (t1, FL, t1))
    A("ds_write_b32 v%d, v16" % t1)
    A.label("ssm_nf")
    A("v_lshlrev_b32 v%d, 1, v%d" % (t1, vLane))
    A("v_add_u32 v%d, %d, v%d" % (t1, UB + 480, t1))
    for e in range(4):
        A("s_lshl_b32 s34, s%d, 1" % (84 + e))
        A("v_add_u32 v%d, s34, v%d" % (4 + e, t1))
    A("s_lshl_b32 s34, s50, %d" % (2 if UROT else 3))
    A("s_add_u32 s34, s34, %d" % (FL + 128))
    A("v_mov_b32 v20, s34")
    A("v_mov_b32 v21, 1")
    A("s_waitcnt lgkmcnt(0)")
    srd(A, SX, 16, 0, NQ)
    def prefetch():
        A("s_lshr_b32 s78, s2, 3")
        A("s_lshl_b32 s78, s78, 3")
        A("s_add_u32 s78, s78, s10")
        A("v_lshlrev_b32 v77, 7, v%d" % vLane)
        A("s_cmp_lt_u32 s78, 100")
        A("s_cbranch_scc0 ssm_pf1")
        srd(A, 72, 76, 0, 640 * 1280)
        A("s_lshl_b32 s79, s78, 13")
        A("buffer_load_dword v76, v77, s[72:75], s79 offen")
        A("s_branch ssm_pf2")
        A.label("ssm_pf1")
        A("s_sub_u32 s78, s78, 100")
        A("s_cmp_ge_u32 s78, 20")
        A("s_cselect_b32 s79, 8, 0")
        A("s_cselect_b32 s80, 20, 0")
        A("s_sub_u32 s78, s78, s80")
        A("s_and_b32 s80, s2, 7")
        A("s_add_u32 s79, s79, s80")
        A("s_mul_i32 s79, s79, 163840")
        A("s_lshl_b32 s80, s78, 13")
        A("s_add_u32 s79, s79, s80")
        A("s_cmp_ge_u32 s78, 20")
        A("s_cselect_b32 s79, 0x400000, s79")
        A("buffer_load_dword v76, v77, s[%d:%d], s79 offen" % (SX, SX + 3))
        A.label("ssm_pf2")
    if "ssm_mark" in HOOK and MARKAT == 0: HOOK["ssm_mark"](A)
    if not UEARLY: A("s_barrier")
    if "ssm_mark" in HOOK and MARKAT == 1: HOOK["ssm_mark"](A)
    if PF == "before": prefetch()
    for e in range(4):
        A("s_mul_i32 s34, s%d, 1280" % (84 + e))
        A("s_add_u32 s34, s34, s11")
        A("buffer_load_dwordx2 %s, v%d, s[%d:%d], s34 offen %s" % (v(8 + 2 * e, 2), t0, SX, SX + 3, GMOD))
    if PF == "after": prefetch()
    if UEARLY: A("s_barrier")
    stamp(A, timing, 2)
    GX, GW, XU, WU, SGW, SG = 32, 44, 52, 64, 40, 44
    if QGATE: pass
    elif GXCD:
        A("s_lshr_b32 s38, s2, 3")
        A("s_lshl_b32 s38, s38, 3")
        A("s_add_u32 s38, s38, s10")
        A("s_and_b32 s54, s2, 7")
        A("s_lshl_b32 s54, s54, 7")
        for (dst, add) in ((55, 0), (56, 160)):
            A("s_add_u32 s57, s38, %d" % add)
            A("s_lshr_b32 s58, s57, 7")
            A("s_lshl_b32 s58, s58, 10")
            A("s_and_b32 s57, s57, 127")
            A("s_add_u32 s57, s57, s58")
            A("s_add_u32 s%d, s57, s54" % dst)
        A("s_cmp_ge_u32 s38, 96")
        A("s_cselect_b32 s56, 0x100000, s56")
    else:
        A("s_lshl_b32 s38, s2, 3")
        A("s_add_u32 s55, s38, s10")
        A("s_add_u32 s56, s55, 1280")
    if not QGATE:
        A("v_mul_u32_u24 v24, 20, v%d" % vLane)
        srd(A, SGW, 36, 0, 1280)
        srd(A, SG, 4, WS_G, 8192)
    A("v_mov_b32 v25, 0")
    for e in range(4):
        A("s_waitcnt vmcnt(%d)" % (3 - e + (1 if PF == "after" else 0)))
        for cc in range(4):
            A("ds_write_b16%s v%d, v%d offset:%d" % ("_d16_hi" if cc & 1 else "", 4 + e, 8 + 2 * e + (cc >> 1), cc * UP))
        if (e == 3) if UROT else (e & 1):
            A("s_waitcnt lgkmcnt(0)")
            A("s_mov_b64 exec, 1")
            A("ds_add_u32 v20, v21 offset:%d" % (0 if UROT else 4 * (e >> 1)))
            A("s_mov_b64 exec, -1")
            stamp(A, timing, 1 if e == 1 else 3)
    if "ssm_marked" in HOOK: HOOK["ssm_marked"](A)
    for j in range(0 if QGATE else 2):
        A("s_min_u32 s48, s%d, 2048" % (55 + j))
        A("s_mul_i32 s48, s48, 1280")
        A("buffer_load_dwordx4 %s, v24, s[%d:%d], s48 offen" % (v(GX + 6 * j, 4), SX, SX + 3))
        A("buffer_load_dword v%d, v24, s[%d:%d], s48 offen offset:16" % (GX + 6 * j + 4, SX, SX + 3))
    if not QGATE:
        A("buffer_load_dwordx4 %s, v24, s[%d:%d], 0 offen" % (v(GW, 4), SGW, SGW + 3))
        A("buffer_load_dword v%d, v24, s[%d:%d], 0 offen offset:16" % (GW + 4, SGW, SGW + 3))
    A("s_setprio %d" % GPRIO)
    def gates():
        if QGATE: return
        for q in range(5):
            A("v_lshlrev_b32 v%d, 16, v%d" % (WU + 2 * q, GW + q))
            A("v_and_b32 v%d, 0xffff0000, v%d" % (WU + 2 * q + 1, GW + q))
        A("s_lshl_b32 s48, s55, 2")
        if RTS: stamp(A, timing, 6)
        gate_row(A, GX, XU, WU, SG, 25, 48, pre=(lambda: stamp(A, timing, 7)) if RTS else None)
        if RTS: stamp(A, timing, 8)
        lb = A.newlabel("ssm_ng")
        A("s_cmp_ge_u32 s56, 2048")
        A("s_cbranch_scc1 %s" % lb)
        A("s_lshl_b32 s49, s56, 2")
        gate_row(A, GX + 6, XU, WU, SG, 25, 49)
        A.label(lb)
    if WOSSM and not WOP2:
        SWO, SWF, SC = 84, 88, 92
        A("s_cmp_eq_u32 s%d, %d" % (sW, WOWAVE))
        A("s_cbranch_scc0 ssm_nwo")
        A("s_cmp_lt_u32 s2, 100")
        A("s_cbranch_scc0 ssm_nwo")
        A("v_lshrrev_b32 v28, 4, v%d" % vLane)
        A("v_and_b32 v29, 15, v%d" % vLane)
        if not OPERM:
            A("v_mul_u32_u24 v26, %d, v28" % (8 * 1280))
            A("v_lshl_add_u32 v26, v29, 4, v26")
        A("v_lshrrev_b32 v27, 1, v29")
        A("v_mul_u32_u24 v27, 20480, v27")
        A("v_lshl_add_u32 v27, v28, 8, v27")
        A("v_and_b32 v28, 1, v29")
        A("v_lshl_add_u32 v27, v28, 7, v27")
        A("v_lshlrev_b32 v28, 7, v%d" % vLane)
        A("s_mov_b32 s50, 0x05040100")
        A("s_mov_b32 s51, 0x07060302")
        A("s_mul_i32 s52, s2, 205")
        A("s_lshr_b32 s52, s52, 10")
        A("s_mul_i32 s53, s52, 5")
        A("s_sub_u32 s53, s2, s53")
        if OPERM:
            tab = [0, 8, 4, 12, 20, 28, 24, 32, 16, 36]
            tc = sum(t << (6 * i) for i, t in enumerate(tab))
            A("s_mov_b32 s90, 0x%x" % (tc & 0xffffffff))
            A("s_mov_b32 s91, 0x%x" % (tc >> 32))
            A("s_lshl_b32 s54, s52, 5")
            A("v_lshrrev_b32 v30, 4, v%d" % vLane)
            A("v_lshlrev_b32 v30, 3, v30")
            A("v_add_u32 v30, s54, v30")
            for (dst, add) in ((26, 0), (22, 4)):
                A("v_add_u32 v31, %d, v30" % add)
                A("v_mul_u32_u24 v23, 1639, v31")
                A("v_lshrrev_b32 v23, 16, v23")
                A("v_mul_u32_u24 v%d, 40, v23" % dst)
                A("v_sub_u32 v31, v31, v%d" % dst)
                A("v_lshrrev_b32 v31, 2, v31")
                A("v_mul_u32_u24 v31, 6, v31")
                A("v_lshrrev_b64 v[16:17], v31, s[90:91]")
                A("v_and_b32 v23, 63, v16")
                A("v_add_u32 v%d, v%d, v23" % (dst, dst))
                A("v_mul_u32_u24 v%d, 1280, v%d" % (dst, dst))
                A("v_lshl_add_u32 v%d, v29, 4, v%d" % (dst, dst))
            A("s_lshl_b32 s96, s53, 8")
        else:
            A("s_mul_i32 s54, s52, %d" % (32 * 1280))
            A("s_lshl_b32 s57, s53, 8")
            A("s_add_u32 s96, s54, s57")
            A("s_add_u32 s97, s96, 5120")
        A("s_mul_i32 s54, s53, %d" % (8 * 20480))
        A("s_lshl_b32 s57, s52, 10")
        A("s_add_u32 s58, s54, s57")
        srd(A, SWO, 82, 0, 640 * 1280)
        srd(A, SWF, 4, WS_WF, NWF)
        srd(A, SC, 4, WS_CNT, 4096)
        LW = 80
        for e in range(8):
            if OPERM: A("buffer_load_dwordx4 %s, v%d, s[%d:%d], s96 offen offset:%d" % (v(LW + 4 * e, 4), 22 if e >> 2 else 26, SWO, SWO + 3, (e & 3) * 1280))
            else: A("buffer_load_dwordx4 %s, v26, s[%d:%d], s%d offen offset:%d" % (v(LW + 4 * e, 4), SWO, SWO + 3, 96 + (e >> 2), (e & 3) * 1280))
        A("s_cmp_eq_u32 s2, 0")
        A("s_cbranch_scc0 ssm_wnz")
        A("buffer_store_dword v25, v28, s[%d:%d], 0 offen" % (SC, SC + 3))
        A("s_waitcnt vmcnt(9)")
        A("s_branch ssm_wn2")
        A.label("ssm_wnz")
        A("s_waitcnt vmcnt(8)")
        A.label("ssm_wn2")
        gates()
        A("s_waitcnt vmcnt(0)")
        for cc in range(8):
            pk = 112 + 4 * (cc & 3)
            for m in range(4):
                A("v_perm_b32 v%d, v%d, v%d, s%d" % (pk + m, LW + 4 * (2 * m + 1) + (cc >> 1), LW + 4 * (2 * m) + (cc >> 1), 50 + (cc & 1)))
            A("buffer_store_dwordx4 %s, v27, s[%d:%d], s58 offen offset:%d%s" % (v(pk, 4), SWF, SWF + 3, cc * 16, SC1))
        A("s_branch ssm_ldone")
        A.label("ssm_nwo")
    A("s_waitcnt vmcnt(0)")
    if RTS: stamp(A, timing, 4)
    gates()
    if RTS: stamp(A, timing, 5)
    A.label("ssm_ldone")
    if GPRIO: A("s_setprio 0")
    dump_stamps(A, timing, 4, end, 0)
    A("s_branch %s" % end)

    A.label("ssm_main")
    A("s_lshr_b32 s%d, s%d, 1" % (sCH, sW))
    A("s_and_b32 s%d, s%d, 1" % (sHF, sW))
    P = 8
    for i in range(6): A("v_mov_b32 v%d, 0" % (P + i))
    A("s_add_u32 s10, s%d, s%d" % (sD0, sCH))
    A("s_lshl_b32 s11, s10, 8")
    A("s_lshl_b32 s34, s%d, 7" % sHF)
    A("s_add_u32 s11, s11, s34")
    A("v_lshlrev_b32 v%d, 1, v%d" % (t0, vLane))
    A("v_add_u32 v%d, s11, v%d" % (t0, t0))
    A("s_lshl_b32 s11, s%d, 1" % sD0)
    A("s_waitcnt lgkmcnt(0)")
    for i in range(6):
        A("global_load_short_d16_hi v%d, v%d, s[%d:%d]" % (P + i, t0, 18 + 2 * i, 19 + 2 * i))
    A("s_load_dwordx2 s[34:35], s[30:31], s11")
    A("s_load_dwordx2 s[40:41], s[32:33], s11")
    if B0: A("s_barrier")
    srd(A, SAT, 4, WS_AT, NQ)
    vTab = 50
    A("s_mul_i32 s42, s%d, %d" % (sW, TAB))
    A("v_lshlrev_b32 v%d, 2, v%d" % (vTab, vLane))
    A("v_add_u32 v%d, s42, v%d" % (vTab, vTab))
    A("s_waitcnt lgkmcnt(0)")
    for (src, dst) in ((34, 43), (40, 44)):
        A("s_bitcmp1_b32 s%d, 1" % sCH)
        A("s_cselect_b32 s%d, s%d, s%d" % (dst, src + 1, src))
        A("s_lshl_b32 s45, s%d, 16" % dst)
        A("s_and_b32 s%d, s%d, 0xffff0000" % (dst, dst))
        A("s_bitcmp1_b32 s%d, 0" % sCH)
        A("s_cselect_b32 s%d, s%d, s45" % (dst, dst))
    sDskip = 44
    vDT = 6
    A("v_mov_b32 v%d, s43" % vDT)
    A("v_mul_f32 v%d, 0x%x, v%d" % (vDT, f32bits(LOG2E), vDT))
    A("v_exp_f32 v%d, v%d" % (vDT, vDT))
    A("s_nop 0")
    A("v_cvt_pk_bf16_f32 v%d, v%d, v%d" % (vDT, vDT, vDT))
    A("v_and_b32 v%d, 0xffff0000, v%d" % (vDT, vDT))
    Z, E1, E2, E4, W8, E256, E512, E1024, CB = 14, 16, 18, 20, 22, 24, 26, 28, 30
    GA, GB, FA, FB, T1, T2 = 32, 34, 38, 40, 42, 44
    PK = [46, 47, 48, 49]
    A("s_waitcnt vmcnt(0)")
    stamp(A, timing, 7)
    A("v_mul_f32 v%d, v%d, v%d" % (Z, vDT, P + 0))
    A("v_mul_f32 v%d, v%d, v%d" % (Z + 1, vDT, P + 1))
    A("v_mul_f32 v%d, v%d, v%d" % (P + 2, vDT, P + 2))
    A("v_mul_f32 v%d, v%d, v%d" % (P + 3, vDT, P + 3))
    A("v_mul_f32 v%d, 0x%x, v%d" % (Z, f32bits(LOG2E), Z))
    A("v_mul_f32 v%d, 0x%x, v%d" % (Z + 1, f32bits(1.0 / (2 * math.pi)), Z + 1))
    def cmul(d, a, b, t, conj=False):
        A("v_pk_mul_f32 %s, %s, %s op_sel_hi:[0,1]" % (v(t, 2), v(b, 2), v(a, 2)))
        A("v_pk_fma_f32 %s, %s, %s, %s op_sel:[1,1,0] op_sel_hi:[1,0,1] %s:[1,0,0]" % (v(d, 2), v(b, 2), v(a, 2), v(t, 2), "neg_hi" if conj else "neg_lo"))
    def anchor(d, m):
        if m == 1:
            A("v_exp_f32 v%d, v%d" % (t0, Z))
            A("v_fract_f32 v%d, v%d" % (t1, Z + 1))
        else:
            A("v_mul_f32 v%d, %s, v%d" % (t0, "%d.0" % m if m in (2, 4) else "0x%x" % f32bits(float(m)), Z))
            A("v_mul_f32 v%d, %s, v%d" % (t1, "%d.0" % m if m in (2, 4) else "0x%x" % f32bits(float(m)), Z + 1))
            A("v_exp_f32 v%d, v%d" % (t0, t0))
            A("v_fract_f32 v%d, v%d" % (t1, t1))
        A("v_cos_f32 v%d, v%d" % (d, t1))
        A("v_sin_f32 v%d, v%d" % (d + 1, t1))
        A("s_nop 0")
        A("v_mul_f32 v%d, v%d, v%d" % (d, d, t0))
        A("v_mul_f32 v%d, v%d, v%d" % (d + 1, d + 1, t0))
    anchor(W8, 8)
    anchor(E1, 1)
    cmul(CB, P + 4, P + 2, T1)
    A("v_xor_b32 v%d, 0x80000000, v%d" % (CB + 1, CB + 1))
    anchor(E256, 256)
    anchor(E512, 512)
    anchor(E1024, 1024)
    cmul(E2, E1, E1, T1)
    cmul(E4, E2, E2, T2)
    pki = [0]
    def put(src, rows):
        pk = PK[pki[0] & 3]; pki[0] += 1
        A("v_cvt_pk_bf16_f32 v%d, v%d, v%d" % (pk, src, src + 1))
        for r in rows:
            A("ds_write_b32 v%d, v%d offset:%d" % (vTab, pk, r * 272))
    fops = []
    fops.append(lambda: (A("v_mov_b32 v%d, 0x3f80" % PK[3]), A("ds_write_b32 v%d, v%d offset:%d" % (vTab, PK[3], 32 * 272))))
    fops.append(lambda: put(W8, [33]))
    cur = W8
    fr = [FA, FB]
    for j in range(2, 32):
        d = fr[j & 1]
        fops.append((lambda d=d, cur=cur, j=j: (cmul(d, cur, W8, T1), put(d, [32 + j]))))
        cur = d
    gops = []
    def gstep(d, a, b, base):
        gops.append(lambda: (cmul(d, a, b, T2, conj=True), put(d, GROWS[base])))
    gops.append(lambda: put(CB, GROWS[0]))
    g = [GA, GB]
    prev = CB
    for k in range(1, 8):
        gstep(g[k & 1], prev, E1, k); prev = g[k & 1]
    G256, G512, G1024, G1536 = 36, 52, 54, 56
    gstep(G256, CB, E256, 256)
    prev = G256
    for k, base in enumerate((258, 260, 262, 264)):
        gstep(g[k & 1], prev, E2, base); prev = g[k & 1]
    gstep(G512, CB, E512, 512)
    gstep(GA, G512, E4, 516); gstep(GB, GA, E4, 520)
    gstep(G256, G512, E256, 768)
    gstep(GA, G256, E4, 772); gstep(GB, GA, E4, 776)
    gstep(G1024, CB, E1024, 1024)
    gstep(GA, G1024, W8, 1032)
    gstep(GB, G1024, E256, 1280); gstep(GA, GB, W8, 1288)
    gstep(G1536, G1024, E512, 1536); gstep(GA, G1536, W8, 1544)
    gstep(GB, G1536, E256, 1792); gstep(GA, GB, W8, 1800)
    n = max(len(fops), len(gops))
    for i in range(n):
        if i < len(fops): fops[i]()
        if i < len(gops): gops[i]()
    stamp(A, timing, 1)
    if MPRIO:
        A("s_cmp_ge_u32 s%d, 4" % sW)
        A("s_cbranch_scc0 ssm_mp")
        A("s_setprio %d" % MPRIO)
        A.label("ssm_mp")
    A("s_lshl_b32 s45, s%d, 2" % sW)
    A("s_add_u32 s45, s45, %d" % FL)
    A("v_mov_b32 v58, s45")
    A("s_xor_b32 s45, s45, 4")
    A("v_mov_b32 v59, s45")
    A("v_mov_b32 v51, 4")
    AF, BF, DK = 64, 96, 16
    A("v_and_b32 v%d, 31, v%d" % (t0, vLane))
    A("v_mul_u32_u24 v%d, 272, v%d" % (t0, t0))
    A("v_lshrrev_b32 v%d, 5, v%d" % (t1, vLane))
    A("v_lshl_add_u32 v%d, v%d, 4, v%d" % (t0, t1, t0))
    A("v_add_u32 v%d, s42, v%d" % (t0, t0))
    for t in range(8):
        A("ds_read_b128 %s, v%d offset:%d" % (v(AF + 4 * t, 4), t0, 32 * t))
        A("ds_read_b128 %s, v%d offset:%d" % (v(BF + 4 * t, 4), t0, 32 * 272 + 32 * t))
    for t in range(8):
        A("s_waitcnt lgkmcnt(%d)" % (14 - 2 * t))
        A("v_mfma_f32_32x32x16_bf16 %s, %s, %s, %s" % (v(DK, 16), v(AF + 4 * t, 4), v(BF + 4 * t, 4), "0" if t == 0 else v(DK, 16)))
    vL16 = 7
    A("v_lshlrev_b32 v%d, 4, v%d" % (vL16, vLane))
    A("v_add_u32 v%d, s42, v%d" % (t0, vL16))
    A("s_xor_b32 s45, s%d, 1" % sW)
    A("s_mul_i32 s45, s45, %d" % TAB)
    A("v_add_u32 v%d, s45, v%d" % (t1, vL16))
    A("s_mul_i32 s46, s%d, %d" % (sCH, CH))
    A("s_nop 7")
    A("s_nop 1")
    A("s_cmp_eq_u32 s%d, 0" % sHF)
    A("s_cbranch_scc0 ssm_x1")
    A("ds_write_b128 v%d, %s" % (t0, v(DK + 8, 4)))
    A("ds_write_b128 v%d, %s offset:1024" % (t0, v(DK + 12, 4)))
    A("s_branch ssm_x2")
    A.label("ssm_x1")
    A("ds_write_b128 v%d, %s" % (t0, v(DK, 4)))
    A("ds_write_b128 v%d, %s offset:1024" % (t0, v(DK + 4, 4)))
    A.label("ssm_x2")
    A("s_waitcnt lgkmcnt(0)")
    flag_set(A, 58, 51, 0)
    flag_wait(A, 59, 0, "ssm_fx")
    stamp(A, timing, 2)
    R = 32
    A("ds_read_b128 %s, v%d" % (v(R, 4), t1))
    A("ds_read_b128 %s, v%d offset:1024" % (v(R + 4, 4), t1))
    A("v_and_b32 v%d, 31, v%d" % (t2, vLane))
    A("v_lshrrev_b32 v%d, 5, v%d" % (t3, vLane))
    A("v_lshlrev_b32 v%d, 4, v%d" % (t2, t2))
    A("s_add_u32 s47, s46, %d" % (CP0 + 4080))
    A("v_sub_u32 v%d, s47, v%d" % (t2, t2))
    A("s_waitcnt lgkmcnt(0)")
    A("s_cmp_eq_u32 s%d, 0" % sHF)
    A("s_cbranch_scc0 ssm_y1")
    for r in range(8): A("v_add_f32 v%d, v%d, v%d" % (DK + r, DK + r, R + r))
    A("v_lshlrev_b32 v%d, 9, v%d" % (t3, t3))
    A("v_sub_u32 v%d, v%d, v%d" % (t2, t2, t3))
    for j in range(4): A("v_cvt_pk_bf16_f32 v%d, v%d, v%d" % (R + j, DK + 2 * j, DK + 2 * j + 1))
    A("ds_write_b128 v%d, %s" % (t2, v(R, 4)))
    A("v_mov_b32 v%d, 0" % (R + 4)); A("v_mov_b32 v%d, 0" % (R + 5)); A("v_mov_b32 v%d, 0" % (R + 6)); A("v_mov_b32 v%d, 0" % (R + 7))
    A("s_add_u32 s47, s46, %d" % (CP0 + 4096))
    A("v_add_u32 v%d, s47, v%d" % (t3, vL16))
    A("s_mov_b64 exec, 0xf")
    A("ds_write_b128 v%d, %s" % (t3, v(R + 4, 4)))
    A("s_mov_b64 exec, -1")
    A("s_branch ssm_y2")
    A.label("ssm_y1")
    for r in range(8): A("v_add_f32 v%d, v%d, v%d" % (DK + r, DK + 8 + r, R + r))
    A("v_lshlrev_b32 v%d, 9, v%d" % (R + 12, t3))
    A("v_sub_u32 v%d, v%d, v%d" % (R + 12, t2, R + 12))
    A("v_subrev_u32 v%d, 1024, v%d" % (R + 12, R + 12))
    A("v_cvt_pk_bf16_f32 v%d, v%d, v%d" % (R + 0, DK + 0, DK + 0))
    A("v_cvt_pk_bf16_f32 v%d, v%d, v%d" % (R + 1, DK + 1, DK + 1))
    A("v_cvt_pk_bf16_f32 v%d, v%d, v%d" % (R + 2, DK + 1, DK + 2))
    A("v_cvt_pk_bf16_f32 v%d, v%d, v%d" % (R + 3, DK + 2, DK + 2))
    A("ds_write_b128 v%d, %s" % (R + 12, v(R, 4)))
    A("v_lshlrev_b32 v%d, 10, v%d" % (R + 13, t3))
    A("v_sub_u32 v%d, v%d, v%d" % (R + 13, t2, R + 13))
    A("v_subrev_u32 v%d, 2560, v%d" % (R + 13, R + 13))
    A("v_and_b32 v%d, 1, v%d" % (R + 14, vLane))
    A("v_cmp_eq_u32 vcc, 1, v%d" % (R + 14))
    A("s_nop 1")
    for k in range(2):
        K8, K0 = DK + 4 + 2 * k, DK + 5 + 2 * k
        o = R + 4 + 4 * k
        A("v_cndmask_b32 v%d, v%d, v%d, vcc" % (R + 15, K0, K8))
        A("v_cvt_pk_bf16_f32 v%d, v%d, v%d" % (o + 0, K8, K8))
        A("v_cvt_pk_bf16_f32 v%d, v%d, v%d" % (o + 1, K8, R + 15))
        A("v_cvt_pk_bf16_f32 v%d, v%d, v%d" % (o + 2, K0, K0))
        A("v_mov_b32 v%d, v%d" % (o + 3, o + 2))
    A("ds_write_b128 v%d, %s offset:512" % (R + 13, v(R + 4, 4)))
    A("ds_write_b128 v%d, %s" % (R + 13, v(R + 8, 4)))
    A.label("ssm_y2")
    A("s_waitcnt lgkmcnt(0)")
    flag_set(A, 58, 51, 32)
    flag_wait(A, 59, 32, "ssm_fd")
    stamp(A, timing, 3)
    A("s_lshl_b32 s47, s%d, 11" % sHF)
    A("s_add_u32 s47, s47, s46")
    A("s_add_u32 s47, s47, %d" % CP0)
    A("v_add_u32 v%d, s47, v%d" % (t0, vL16))
    for it in range(2):
        d = 32 + 8 * it
        A("ds_read_b128 %s, v%d offset:%d" % (v(d, 4), t0, it * 1024))
        A("ds_read_b64 %s, v%d offset:%d" % (v(d + 4, 2), t0, it * 1024 + 16))
    A("v_lshrrev_b32 v%d, 2, v%d" % (t1, vLane))
    A("v_mul_u32_u24 v%d, %d, v%d" % (t1, CPS, t1))
    A("v_and_b32 v%d, 3, v%d" % (t2, vLane))
    A("v_lshl_add_u32 v%d, v%d, 4, v%d" % (t1, t2, t1))
    A("s_add_u32 s47, s46, %d" % (CP0 + CPS + 4096))
    A("v_add_u32 v%d, s47, v%d" % (t1, t1))
    for r in range(4): A("v_mov_b32 v%d, 0" % (60 + r))
    A("s_cmp_eq_u32 s%d, 0" % sHF)
    A("s_cbranch_scc0 ssm_z1")
    A("s_mov_b64 exec, 0xfff")
    A("ds_write_b128 v%d, v[60:63]" % t1)
    A("s_mov_b64 exec, -1")
    A.label("ssm_z1")
    A("v_add_u32 v64, %d, v%d" % (2 * CPS, t0))
    A("v_add_u32 v65, %d, v%d" % (2 * CPS + 1024, t0))
    A("s_waitcnt lgkmcnt(0)")
    for it in range(2):
        d = 32 + 8 * it; e = 48 + 8 * it
        for i in range(4): A("v_alignbit_b32 v%d, v%d, v%d, 16" % (e + i, d + i + 1, d + i))
        for i in range(4): A("v_alignbit_b32 v%d, v%d, v%d, 16" % (e + 4 + i, d + i + 2, d + i + 1))
        A("ds_write_b128 v%d, %s offset:%d" % (t0, v(e, 4), it * 1024 + CPS))
        A("ds_write2_b32 v%d, v%d, v%d offset0:0 offset1:1" % (64 + it, d + 1, d + 2))
        A("ds_write2_b32 v%d, v%d, v%d offset0:2 offset1:3" % (64 + it, d + 3, d + 4))
        A("ds_write_b128 v%d, %s offset:%d" % (t0, v(e + 4, 4), it * 1024 + 3 * CPS))
    AF, BF, DC = 32, 64, 96
    vAlo, vAhi, vB = 8, 9, 10
    A("v_and_b32 v%d, 3, v%d" % (t1, vLane))
    A("v_sub_u32 v%d, 3, v%d" % (t1, t1))
    A("v_mul_u32_u24 v%d, %d, v%d" % (vAlo, CPS, t1))
    A("v_bfe_u32 v%d, v%d, 2, 2" % (t1, vLane))
    A("v_lshrrev_b32 v%d, 4, v%d" % (t2, vLane))
    A("v_lshlrev_b32 v%d, 1, v%d" % (t3, t2))
    A("v_sub_u32 v%d, v%d, v%d" % (t3, t3, t1))
    A("v_lshl_add_u32 v%d, v%d, 3, v%d" % (vAlo, t3, vAlo))
    A("s_lshl_b32 s47, s%d, 8" % sHF)
    A("s_sub_u32 s48, s46, s47")
    A("s_add_u32 s48, s48, %d" % (CP0 + 8 * 507 - 3584))
    A("v_add_u32 v%d, s48, v%d" % (vAlo, vAlo))
    A("v_add_u32 v%d, 2048, v%d" % (vAhi, vAlo))
    A("v_and_b32 v%d, 15, v%d" % (t1, vLane))
    A("v_lshlrev_b32 v%d, 5, v%d" % (vB, t1))
    A("v_lshl_add_u32 v%d, v%d, 4, v%d" % (vB, t2, vB))
    A("s_mul_i32 s48, s%d, %d" % (sCH, UP))
    A("s_add_u32 s48, s48, %d" % (UB + 448))
    A("s_sub_u32 s49, s48, s47")
    A("v_add_u32 v%d, s49, v%d" % (vB, vB))
    vU, vO = 11, 12
    A("v_lshlrev_b32 v%d, 5, v%d" % (vO, t1))
    A("v_lshl_add_u32 v%d, v%d, 3, v%d" % (vO, t2, vO))
    A("s_lshl_b32 s47, s%d, 11" % sHF)
    A("s_add_u32 s49, s48, s47")
    A("s_add_u32 s49, s49, 32")
    A("v_add_u32 v%d, s49, v%d" % (vU, vO))
    A("s_add_u32 s10, s%d, s%d" % (sD0, sCH))
    A("s_lshl_b32 s10, s10, 12")
    A("s_add_u32 s10, s10, s47")
    A("s_add_u32 s47, s46, %d" % EX2)
    A("s_lshl_b32 s48, s%d, 12" % sHF)
    A("s_add_u32 s49, s47, s48")
    A("v_add_u32 v%d, s49, v%d" % (13, vL16))
    A("s_xor_b32 s48, s48, 4096")
    A("s_add_u32 s49, s47, s48")
    A("v_add_u32 v%d, s49, v%d" % (14, vL16))
    vFo, vFp, vFc, vFu, vF4 = 16, 17, 18, 19, 20
    A("s_lshl_b32 s45, s%d, 2" % sW)
    A("s_add_u32 s45, s45, %d" % FL)
    A("v_mov_b32 v%d, s45" % vFo)
    A("s_xor_b32 s45, s45, 4")
    A("v_mov_b32 v%d, s45" % vFp)
    A("v_mov_b32 v%d, 4" % vF4)
    A("v_mov_b32 v%d, %d" % (vFu, FL + 128))
    A("v_add_u32 v%d, 64, v%d" % (vFc, vFp))
    A("s_mov_b32 s45, %d" % (FL + 128))
    A("v_writelane_b32 v%d, s45, 1" % vFc)
    if not UROT:
        A("s_mov_b32 s45, %d" % (FL + 132))
        A("v_writelane_b32 v%d, s45, 2" % vFc)
    A("v_subrev_u32 v%d, 192, v%d" % (vAlo, vAlo))
    A("v_subrev_u32 v%d, 192, v%d" % (vB, vB))
    A("s_waitcnt lgkmcnt(0)")
    flag_set(A, vFo, vF4, 64)
    stamp(A, timing, 8)
    conv_phases(A, timing, vAlo, vB, AF, BF, DC, vFc, vFu)
    stamp(A, timing, 5)
    A("s_nop 7")
    A("s_cmp_eq_u32 s%d, 0" % sHF)
    A("s_cbranch_scc0 ssm_w1")
    for k in range(4): A("ds_write_b128 v13, %s offset:%d" % (v(DC + 16 + 4 * k, 4), 1024 * k))
    A("s_branch ssm_w2")
    A.label("ssm_w1")
    for k in range(4): A("ds_write_b128 v13, %s offset:%d" % (v(DC + 4 * k, 4), 1024 * k))
    A.label("ssm_w2")
    U = 32
    for k in range(4): A("ds_read_b64 %s, v%d offset:%d" % (v(U + 2 * k, 2), vU, 512 * k))
    A("s_waitcnt lgkmcnt(0)")
    flag_set(A, vFo, vF4, 96)
    flag_wait(A, vFp, 96, "ssm_fe")
    R = 64
    for k in range(4): A("ds_read_b128 %s, v14 offset:%d" % (v(R + 4 * k, 4), 1024 * k))
    UF = 40
    for k in range(8):
        A("v_lshlrev_b32 v%d, 16, v%d" % (UF + 2 * k, U + k))
        A("v_and_b32 v%d, 0xffff0000, v%d" % (UF + 2 * k + 1, U + k))
    for r in range(16): A("v_mul_f32 v%d, s%d, v%d" % (UF + r, sDskip, UF + r))
    for k in range(8): A("v_cvt_pk_bf16_f32 v%d, v%d, v%d" % (U + k, UF + 2 * k, UF + 2 * k + 1))
    for k in range(8):
        A("v_lshlrev_b32 v%d, 16, v%d" % (UF + 2 * k, U + k))
        A("v_and_b32 v%d, 0xffff0000, v%d" % (UF + 2 * k + 1, U + k))
    A("s_waitcnt lgkmcnt(0)")
    A("s_cmp_eq_u32 s%d, 0" % sHF)
    A("s_cbranch_scc0 ssm_v1")
    for r in range(16): A("v_add_f32 v%d, v%d, v%d" % (DC + r, DC + r, R + r))
    A("s_branch ssm_v2")
    A.label("ssm_v1")
    for r in range(16): A("v_add_f32 v%d, v%d, v%d" % (DC + r, DC + 16 + r, R + r))
    A.label("ssm_v2")
    for k in range(8): A("v_cvt_pk_bf16_f32 v%d, v%d, v%d" % (U + k, DC + 2 * k, DC + 2 * k + 1))
    for k in range(8):
        A("v_lshlrev_b32 v%d, 16, v%d" % (DC + 2 * k, U + k))
        A("v_and_b32 v%d, 0xffff0000, v%d" % (DC + 2 * k + 1, U + k))
    for r in range(16): A("v_add_f32 v%d, v%d, v%d" % (DC + r, DC + r, UF + r))
    for k in range(8): A("v_cvt_pk_bf16_f32 v%d, v%d, v%d" % (U + k, DC + 2 * k, DC + 2 * k + 1))
    for k in range(4):
        A("buffer_store_dwordx2 %s, v%d, s[%d:%d], s10 offen offset:%d%s" % (v(U + 2 * k, 2), vO, SAT, SAT + 3, 512 * k, SC1))
    stamp(A, timing, 6)
    dump_stamps(A, timing, 11, end, 0)
    A("s_branch %s" % end)

SSM2 = False
SSM3 = True
RS = 2056
NGR = 29
FBASE = NGR * RS
UB2 = 125440
UCH, UCB = 9120, 4576
KB2 = 16 * RS
KCH, CPS2 = 8448, 4224
EX3 = 69632
DROW = [7, 6, 5, 4, 264, 262, 260, 260, 3, 2, 1, 0, 260, 258, 256, 256, 520, 516, 512, -1, 776, 772, 768, 255, 1032, 1024, 1288, 1280, 1544, 1536, 1800, 1792]
SROWMAP = {7: 6, 12: 6, 15: 14, 29: 7, 30: 12, 31: 15}
SROW = {}
for r_, b_ in enumerate(DROW): SROW.setdefault(b_, SROWMAP.get(r_, r_))
PIPE = True
QST = False
NOSSM = False
NOQ = False

def role_ssm2(A, end, timing):
    t0, t1, t2, t3 = 2, 3, 4, 5
    sD0, sCH, sHF = 7, 8, 9
    SX, SAT = 12, 36
    A("s_load_dwordx16 s[16:31], s[0:1], 0")
    A("s_load_dwordx2 s[32:33], s[0:1], 64")
    A("s_load_dwordx2 s[4:5], s[0:1], 136")
    A("s_and_b32 s10, s2, 7")
    A("s_mul_i32 s10, s10, 20")
    A("s_lshr_b32 s11, s2, 3")
    A("s_add_u32 s10, s10, s11")
    A("s_lshl_b32 s%d, s10, 2" % sD0)
    A("s_cmp_lt_u32 s%d, 8" % sW)
    A("s_cbranch_scc1 ssm_main")
    if LPRIO: A("s_setprio %d" % LPRIO)
    A("s_load_dwordx2 s[36:37], s[0:1], 112")
    A("s_sub_u32 s10, s%d, 8" % sW)
    A("v_mul_u32_u24 v%d, 2560, v%d" % (t0, vLane))
    A("s_mul_i32 s11, s10, %d" % (128 * 1280))
    A("s_lshl_b32 s34, s%d, 1" % sD0)
    A("s_add_u32 s11, s11, s34")
    A("s_add_u32 s35, s11, %d" % (1024 * 1280))
    GX, GW, XU, WU, SGW, SG = 32, 44, 52, 64, 40, 44
    A("s_lshl_b32 s38, s2, 3")
    A("s_add_u32 s38, s38, s10")
    A("s_mul_i32 s39, s38, 1280")
    A("s_add_u32 s48, s39, %d" % (1280 * 1280))
    A("v_mul_u32_u24 v24, 20, v%d" % vLane)
    A("v_mov_b32 v25, 0")
    A("s_waitcnt lgkmcnt(0)")
    srd(A, SX, 16, 0, NQ)
    srd(A, SGW, 36, 0, 1280)
    srd(A, SG, 4, WS_G, 8192)
    if B0: A("s_barrier")
    for e in range(2):
        A("buffer_load_dwordx2 %s, v%d, s[%d:%d], s11 offen offset:%d %s" % (v(8 + 2 * e, 2), t0, SX, SX + 3, 1280 * e, GMOD))
    for j in range(2):
        A("buffer_load_dwordx4 %s, v24, s[%d:%d], s%d offen" % (v(GX + 6 * j, 4), SX, SX + 3, 48 if j else 39))
        A("buffer_load_dword v%d, v24, s[%d:%d], s%d offen offset:16" % (GX + 6 * j + 4, SX, SX + 3, 48 if j else 39))
    A("buffer_load_dwordx4 %s, v24, s[%d:%d], 0 offen" % (v(GW, 4), SGW, SGW + 3))
    A("buffer_load_dword v%d, v24, s[%d:%d], 0 offen offset:16" % (GW + 4, SGW, SGW + 3))
    for e in range(2):
        A("buffer_load_dwordx2 %s, v%d, s[%d:%d], s35 offen offset:%d %s" % (v(12 + 2 * e, 2), t0, SX, SX + 3, 1280 * e, GMOD))
    A("v_mov_b32 v16, 0"); A("v_mov_b32 v17, 0"); A("v_mov_b32 v18, 0"); A("v_mov_b32 v19, 0")
    A("s_lshr_b32 s34, s10, 1")
    A("s_mul_i32 s34, s34, %d" % UCH)
    A("s_and_b32 s50, s10, 1")
    A("s_mul_i32 s50, s50, %d" % UCB)
    A("s_add_u32 s34, s34, s50")
    A("s_add_u32 s34, s34, %d" % UB2)
    A("v_lshlrev_b32 v%d, 4, v%d" % (t1, vLane))
    A("v_add_u32 v%d, s34, v%d" % (t1, t1))
    A("s_mov_b32 exec_lo, 0x1fffffff")
    A("s_mov_b32 exec_hi, 0")
    A("ds_write_b128 v%d, v[16:19]" % t1)
    A("s_mov_b64 exec, -1")
    A("s_lshl_b32 s34, s10, 8")
    A("s_add_u32 s34, s34, %d" % (UB2 + 452))
    A("v_lshlrev_b32 v%d, 2, v%d" % (t1, vLane))
    A("v_add_u32 v%d, s34, v%d" % (t1, t1))
    A("s_mov_b32 s52, 0x05040100")
    A("s_mov_b32 s53, 0x07060302")
    A("s_waitcnt lgkmcnt(0)")
    A("s_barrier")
    def uwrite(q):
        r = 8 + 4 * q
        for c in range(4):
            A("v_perm_b32 v%d, v%d, v%d, s%d" % (16 + c, r + 2 + (c >> 1), r + (c >> 1), 52 + (c & 1)))
        for c in range(4):
            A("ds_write_b32 v%d, v%d offset:%d" % (t1, 16 + c, 2048 * q + c * UCH))
            A("ds_write_b32 v%d, v%d offset:%d" % (t1, 16 + c, 2048 * q + c * UCH + 4572))
        A("s_waitcnt lgkmcnt(0)")
    A("s_waitcnt vmcnt(8)")
    uwrite(0)
    stamp(A, timing, 1)
    A("s_barrier")
    A("s_setprio 0")
    A("s_waitcnt vmcnt(2)")
    for q in range(5):
        A("v_lshlrev_b32 v%d, 16, v%d" % (WU + 2 * q, GW + q))
        A("v_and_b32 v%d, 0xffff0000, v%d" % (WU + 2 * q + 1, GW + q))
    A("s_lshl_b32 s48, s38, 2")
    gate_row(A, GX, XU, WU, SG, 25, 48)
    A("s_add_u32 s49, s48, %d" % (1280 * 4))
    gate_row(A, GX + 6, XU, WU, SG, 25, 49)
    if LPRIO: A("s_setprio %d" % LPRIO)
    stamp(A, timing, 2)
    A("s_waitcnt vmcnt(2)")
    uwrite(1)
    stamp(A, timing, 3)
    A("s_barrier")
    dump_stamps(A, timing, 4, end, 0)
    A("s_branch %s" % end)

    A.label("ssm_main")
    A("s_lshr_b32 s%d, s%d, 1" % (sCH, sW))
    A("s_and_b32 s%d, s%d, 1" % (sHF, sW))
    P = 8
    for i in range(6): A("v_mov_b32 v%d, 0" % (P + i))
    A("s_add_u32 s10, s%d, s%d" % (sD0, sCH))
    A("s_lshl_b32 s11, s10, 8")
    A("s_lshl_b32 s34, s%d, 7" % sHF)
    A("s_add_u32 s11, s11, s34")
    A("v_lshlrev_b32 v%d, 1, v%d" % (t0, vLane))
    A("v_add_u32 v%d, s11, v%d" % (t0, t0))
    A("s_lshl_b32 s11, s%d, 1" % sD0)
    A("s_waitcnt lgkmcnt(0)")
    for i in range(6):
        A("global_load_short_d16_hi v%d, v%d, s[%d:%d]" % (P + i, t0, 18 + 2 * i, 19 + 2 * i))
    A("s_load_dwordx2 s[34:35], s[30:31], s11")
    A("s_load_dwordx2 s[40:41], s[32:33], s11")
    if B0: A("s_barrier")
    srd(A, SAT, 4, WS_AT, NQ)
    vL16 = 7
    vGA, vFA = 58, 59
    vXS, vXR = 60, 61
    vXS1, vXR1 = 62, 63
    vKW = 120
    vA, vB, vU, vO, vES, vER = 121, 122, 123, 124, 125, 126
    sMG, sMF = 42, 43
    A("s_lshl_b32 s%d, s%d, 8" % (sMG, sW))
    A("s_add_u32 s%d, s%d, %d" % (sMF, sMG, FBASE))
    A("v_lshlrev_b32 v%d, 4, v%d" % (vL16, vLane))
    A("v_and_b32 v%d, 31, v%d" % (t1, vLane))
    A("v_lshrrev_b32 v%d, 5, v%d" % (t2, vLane))
    A("v_mul_u32_u24 v%d, %d, v%d" % (vFA, RS, t1))
    A("v_mov_b32 v%d, v%d" % (t3, t1))
    for r_, s_ in sorted(SROWMAP.items()):
        A("v_writelane_b32 v%d, %d, %d" % (t3, s_, r_))
        A("v_writelane_b32 v%d, %d, %d" % (t3, s_, r_ + 32))
    A("v_mul_u32_u24 v%d, %d, v%d" % (vGA, RS, t3))
    A("v_lshl_add_u32 v%d, v%d, 4, v%d" % (vGA, t2, vGA))
    A("v_add_u32 v%d, s%d, v%d" % (vGA, sMG, vGA))
    A("v_lshl_add_u32 v%d, v%d, 4, v%d" % (vFA, t2, vFA))
    A("v_add_u32 v%d, s%d, v%d" % (vFA, sMF, vFA))
    A("v_lshrrev_b32 v%d, 4, v%d" % (t3, vLane))
    A("v_mul_u32_u24 v%d, %d, v%d" % (vXS, 2 * RS, t3))
    A("v_and_b32 v%d, 15, v%d" % (t0, vLane))
    A("v_lshl_add_u32 v%d, v%d, 4, v%d" % (vXS, t0, vXS))
    A("s_xor_b32 s45, s%d, 256" % sMG)
    A("v_add_u32 v%d, s45, v%d" % (vXR, vXS))
    A("v_add_u32 v%d, s%d, v%d" % (vXS, sMG, vXS))
    A("v_lshlrev_b32 v%d, 2, v%d" % (vXS1, vLane))
    A("v_add_u32 v%d, %d, v%d" % (vXS1, RS, vXS1))
    A("v_add_u32 v%d, s45, v%d" % (vXR1, vXS1))
    A("v_add_u32 v%d, s%d, v%d" % (vXS1, sMG, vXS1))
    A("s_mul_i32 s46, s%d, %d" % (sCH, KCH))
    A("s_add_u32 s46, s46, %d" % KB2)
    A("s_add_u32 s47, s46, 4080")
    A("v_lshlrev_b32 v%d, 4, v%d" % (vKW, t1))
    A("v_sub_u32 v%d, s47, v%d" % (vKW, vKW))
    A("s_mov_b32 s52, 0"); A("s_mov_b32 s53, -1")
    A("s_mov_b32 s54, 1"); A("s_mov_b32 s55, 1")
    A("s_mov_b32 s56, 0xaaaaaaaa"); A("s_mov_b32 s57, 0xaaaaaaaa")
    A("v_and_b32 v%d, 1, v%d" % (vA, t0))
    A("v_xor_b32 v%d, 1, v%d" % (vA, vA))
    A("v_mul_u32_u24 v%d, %d, v%d" % (vA, CPS2, vA))
    A("v_lshrrev_b32 v%d, 1, v%d" % (vB, t0))
    A("v_lshlrev_b32 v%d, 3, v%d" % (vU, vB))
    A("v_sub_u32 v%d, v%d, v%d" % (vA, vA, vU))
    A("v_lshl_add_u32 v%d, v%d, 4, v%d" % (vA, t3, vA))
    A("s_lshl_b32 s47, s%d, 8" % sHF)
    A("s_sub_u32 s48, s46, s47")
    A("s_add_u32 s48, s48, %d" % (4088 - 3584 - 192))
    A("v_add_u32 v%d, s48, v%d" % (vA, vA))
    A("v_lshlrev_b32 v%d, 6, v%d" % (vO, vB))
    A("v_lshl_add_u32 v%d, v%d, 4, v%d" % (vO, t3, vO))
    A("v_and_b32 v%d, 1, v%d" % (vU, t0))
    A("v_mul_u32_u24 v%d, %d, v%d" % (vB, UCB, vU))
    A("v_add_u32 v%d, v%d, v%d" % (vB, vB, vO))
    A("s_mul_i32 s48, s%d, %d" % (sCH, UCH))
    A("s_add_u32 s48, s48, %d" % (UB2 + 448))
    A("s_sub_u32 s49, s48, s47")
    A("s_sub_u32 s49, s49, 192")
    A("v_add_u32 v%d, s49, v%d" % (vB, vB))
    A("v_lshl_add_u32 v%d, v%d, 2, v%d" % (vO, vU, vO))
    A("s_lshl_b32 s47, s%d, 11" % sHF)
    A("s_add_u32 s49, s48, s47")
    A("s_add_u32 s49, s49, %d" % UCB)
    A("v_add_u32 v%d, s49, v%d" % (vU, vO))
    A("s_add_u32 s50, s%d, s%d" % (sD0, sCH))
    A("s_lshl_b32 s50, s50, 12")
    A("s_add_u32 s50, s50, s47")
    sOut = 50
    A("s_lshl_b32 s48, s%d, 12" % sW)
    A("s_add_u32 s49, s48, %d" % EX3)
    A("v_add_u32 v%d, s49, v%d" % (vES, vL16))
    A("s_xor_b32 s49, s49, 4096")
    A("v_add_u32 v%d, s49, v%d" % (vER, vL16))
    A("s_waitcnt lgkmcnt(0)")
    for (src, dst) in ((34, 58), (40, 44)):
        A("s_bitcmp1_b32 s%d, 1" % sCH)
        A("s_cselect_b32 s%d, s%d, s%d" % (dst, src + 1, src))
        A("s_lshl_b32 s45, s%d, 16" % dst)
        A("s_and_b32 s%d, s%d, 0xffff0000" % (dst, dst))
        A("s_bitcmp1_b32 s%d, 0" % sCH)
        A("s_cselect_b32 s%d, s%d, s45" % (dst, dst))
    sDskip = 44
    vDT = 6
    A("v_mov_b32 v%d, s58" % vDT)
    A("v_mul_f32 v%d, 0x%x, v%d" % (vDT, f32bits(LOG2E), vDT))
    A("v_exp_f32 v%d, v%d" % (vDT, vDT))
    A("s_mov_b32 m0, s%d" % sMF)
    A("v_cvt_pk_bf16_f32 v%d, v%d, v%d" % (vDT, vDT, vDT))
    A("v_and_b32 v%d, 0xffff0000, v%d" % (vDT, vDT))
    Z, E1, E2, E4, W8, E256, E512, E1024, CB, EM1, W16 = 14, 16, 18, 20, 22, 24, 26, 28, 30, 64, 66
    GA, GB, T1, T2 = 32, 34, 42, 44
    FR = [38, 40, 68, 70]
    G256, G512, G1024, G1536 = 36, 52, 54, 56
    PK = [46, 47, 48, 49]
    A("v_mov_b32 v%d, 0x3f80" % PK[3])
    A("ds_write_addtid_b32 v%d offset:0" % PK[3])
    A("s_waitcnt vmcnt(0)")
    stamp(A, timing, 7)
    A("v_mul_f32 v%d, v%d, v%d" % (Z, vDT, P + 0))
    A("v_mul_f32 v%d, v%d, v%d" % (Z + 1, vDT, P + 1))
    A("v_mul_f32 v%d, v%d, v%d" % (P + 2, vDT, P + 2))
    A("v_mul_f32 v%d, v%d, v%d" % (P + 3, vDT, P + 3))
    A("v_mul_f32 v%d, 0x%x, v%d" % (Z, f32bits(LOG2E), Z))
    A("v_mul_f32 v%d, 0x%x, v%d" % (Z + 1, f32bits(1.0 / (2 * math.pi)), Z + 1))
    def cmul(d, a, b, t, conj=False):
        A("v_pk_mul_f32 %s, %s, %s op_sel_hi:[0,1]" % (v(t, 2), v(b, 2), v(a, 2)))
        A("v_pk_fma_f32 %s, %s, %s, %s op_sel:[1,1,0] op_sel_hi:[1,0,1] %s:[1,0,0]" % (v(d, 2), v(b, 2), v(a, 2), v(t, 2), "neg_hi" if conj else "neg_lo"))
    A("v_exp_f32 v%d, v%d" % (t0, Z))
    A("v_fract_f32 v%d, v%d" % (t1, Z + 1))
    A("v_exp_f32 v%d, -v%d" % (t2, Z))
    A("v_cos_f32 v%d, v%d" % (E1, t1))
    A("v_sin_f32 v%d, v%d" % (E1 + 1, t1))
    A("v_mul_f32 v%d, 0x%x, v%d" % (Z, f32bits(256.0), Z))
    A("v_mul_f32 v%d, 0x%x, v%d" % (Z + 1, f32bits(256.0), Z + 1))
    A("v_mul_f32 v%d, v%d, v%d" % (EM1, E1, t2))
    A("v_mul_f32 v%d, -v%d, v%d" % (EM1 + 1, E1 + 1, t2))
    A("v_mul_f32 v%d, v%d, v%d" % (E1, E1, t0))
    A("v_mul_f32 v%d, v%d, v%d" % (E1 + 1, E1 + 1, t0))
    A("v_exp_f32 v%d, v%d" % (t0, Z))
    A("v_fract_f32 v%d, v%d" % (t1, Z + 1))
    cmul(E2, E1, E1, T1)
    A("v_cos_f32 v%d, v%d" % (E256, t1))
    A("v_sin_f32 v%d, v%d" % (E256 + 1, t1))
    cmul(E4, E2, E2, T1)
    cmul(CB, P + 4, P + 2, T2)
    cmul(W8, E4, E4, T1)
    A("v_xor_b32 v%d, 0x80000000, v%d" % (CB + 1, CB + 1))
    A("v_mul_f32 v%d, v%d, v%d" % (E256, E256, t0))
    A("v_mul_f32 v%d, v%d, v%d" % (E256 + 1, E256 + 1, t0))
    cmul(W16, W8, W8, T1)
    cmul(E512, E256, E256, T2)
    cmul(E1024, E512, E512, T2)
    fitems = [(None, W8, 1), (None, W16, 2)]
    regs = {1: W8, 2: W16}
    for j in range(3, 32):
        d = FR[j & 3]
        fitems.append(((lambda d=d, s=regs[j - 2]: cmul(d, s, W16, T1)), d, j))
        regs[j] = d
    gitems = []
    def gstep(d, a, b, base):
        gitems.append(((lambda: cmul(d, a, b, T2, conj=True)), d, SROW[base]))
    gitems.append((None, CB, SROW[0]))
    g = [GA, GB]
    gstep(G256, CB, E256, 256)
    prev = CB
    for k in range(1, 8):
        gstep(g[k & 1], prev, E1, k); prev = g[k & 1]
    gstep(GA, CB, EM1, -1)
    gstep(GB, G256, EM1, 255)
    gstep(G512, CB, E512, 512)
    prev = G256
    for k, base in enumerate((258, 260, 262, 264)):
        gstep(g[k & 1], prev, E2, base); prev = g[k & 1]
    gstep(G1024, CB, E1024, 1024)
    gstep(GA, G512, E4, 516); gstep(GB, GA, E4, 520)
    gstep(G256, G512, E256, 768)
    gstep(GA, G256, E4, 772); gstep(GB, GA, E4, 776)
    gstep(GA, G1024, W8, 1032)
    gstep(GB, G1024, E256, 1280); gstep(GA, GB, W8, 1288)
    gstep(G1536, G1024, E512, 1536); gstep(GA, G1536, W8, 1544)
    gstep(GB, G1536, E256, 1792); gstep(GA, GB, W8, 1800)
    assert len(gitems) == NGR and len(fitems) == 31
    cur_m0 = ["F"]
    def setm0(x):
        if cur_m0[0] != x:
            A("s_mov_b32 m0, s%d" % (sMF if x == "F" else sMG)); cur_m0[0] = x
            return True
        return False
    rnd = 0
    fi = gi = 0
    while fi < len(fitems) or gi < len(gitems):
        fs = fitems[fi:fi + 2]; gs = gitems[gi:gi + 2]; fi += 2; gi += 2
        out = []
        seq = []
        for k in range(2):
            if k < len(fs): seq.append(("F", fs[k]))
            if k < len(gs): seq.append(("G", gs[k]))
        for n_, (kind, (fn, src, row)) in enumerate(seq):
            if fn: fn()
            A("v_cvt_pk_bf16_f32 v%d, v%d, v%d" % (PK[n_], src, src + 1))
            out.append((kind, PK[n_], row))
        order = ["F", "G"] if cur_m0[0] == "F" else ["G", "F"]
        for kind in order:
            ws = [o for o in out if o[0] == kind]
            if not ws: continue
            if setm0(kind): A("s_nop 0")
            for (_, pk, row) in ws:
                A("ds_write_addtid_b32 v%d offset:%d" % (pk, row * RS))
    stamp(A, timing, 1)
    AF, BF, DK = 64, 80, 16
    A("s_waitcnt lgkmcnt(0)")
    rd = []
    for t in range(8):
        for h in range(2): rd.append("ds_read_b64 %s, v%d offset:%d" % (v(AF + 4 * (t & 3) + 2 * h, 2), vGA, 32 * t + 8 * h))
        for h in range(2): rd.append("ds_read_b64 %s, v%d offset:%d" % (v(BF + 4 * (t & 3) + 2 * h, 2), vFA, 32 * t + 8 * h))
    for x in rd[:16]: A(x)
    issued = 16
    for t in range(8):
        need = 4 * (t + 1)
        A("s_waitcnt lgkmcnt(%d)" % (issued - need))
        A("v_mfma_f32_32x32x16_bf16 %s, %s, %s, %s" % (v(DK, 16), v(AF + 4 * (t & 3), 4), v(BF + 4 * (t & 3), 4), "0" if t == 0 else v(DK, 16)))
        for x in rd[issued:issued + 4]: A(x)
        issued = min(32, issued + 4)
    A("s_nop 7")
    A("s_nop 3")
    A("s_cmp_eq_u32 s%d, 0" % sHF)
    A("s_cbranch_scc0 ssm_x1")
    A("ds_write_b128 v%d, %s" % (vXS, v(DK + 8, 4)))
    A("ds_write_b128 v%d, %s offset:%d" % (vXS, v(DK + 12, 4), 8 * RS))
    A("s_branch ssm_x2")
    A.label("ssm_x1")
    A("ds_write_b128 v%d, %s" % (vXS, v(DK, 4)))
    A("ds_write_b128 v%d, %s offset:%d" % (vXS, v(DK + 4, 4), 8 * RS))
    A("ds_write_b32 v%d, v%d" % (vXS1, DK + 11))
    A.label("ssm_x2")
    A("s_waitcnt lgkmcnt(0)")
    A("s_barrier")
    stamp(A, timing, 2)
    R = 32
    A("ds_read_b128 %s, v%d" % (v(R, 4), vXR))
    A("ds_read_b128 %s, v%d offset:%d" % (v(R + 4, 4), vXR, 8 * RS))
    A("v_lshrrev_b32 v%d, 5, v%d" % (t3, vLane))
    A("s_cmp_eq_u32 s%d, 0" % sHF)
    A("s_cbranch_scc0 ssm_y1")
    A("ds_read_b32 v%d, v%d" % (R + 8, vXR1))
    A("v_lshlrev_b32 v%d, 9, v%d" % (t3, t3))
    A("v_sub_u32 v%d, v%d, v%d" % (t2, vKW, t3))
    A("v_lshrrev_b32 v%d, 2, v%d" % (t0, vLane))
    A("v_mul_u32_u24 v%d, %d, v%d" % (t0, CPS2, t0))
    A("v_and_b32 v%d, 3, v%d" % (t1, vLane))
    A("v_lshl_add_u32 v%d, v%d, 4, v%d" % (t0, t1, t0))
    A("s_add_u32 s47, s46, 4096")
    A("v_add_u32 v%d, s47, v%d" % (t0, t0))
    for r in range(4): A("v_mov_b32 v%d, 0" % (R + 12 + r))
    A("s_mov_b64 exec, 0xff")
    A("ds_write_b128 v%d, %s" % (t0, v(R + 12, 4)))
    A("s_mov_b64 exec, -1")
    A("s_waitcnt lgkmcnt(1)")
    for r in range(8): A("v_add_f32 v%d, v%d, v%d" % (DK + r, DK + r, R + r))
    A("v_add_f32 v%d, v%d, v%d" % (DK + 11, DK + 11, R + 8))
    for j in range(4): A("v_cvt_pk_bf16_f32 v%d, v%d, v%d" % (R + j, DK + 2 * j, DK + 2 * j + 1))
    A("ds_write_b128 v%d, %s" % (t2, v(R, 4)))
    A("v_cndmask_b32 v%d, v%d, v%d, s[52:53]" % (R + 9, DK + 11, DK + 7))
    A("v_cndmask_b32 v%d, 0, v%d, s[52:53]" % (R + 10, DK + 11))
    A("v_cndmask_b32 v%d, v%d, v%d, s[54:55]" % (R + 9, R + 9, R + 10))
    for j in range(3): A("v_cvt_pk_bf16_f32 v%d, v%d, v%d" % (R + 4 + j, DK + 2 * j + 1, DK + 2 * j + 2))
    A("v_cvt_pk_bf16_f32 v%d, v%d, v%d" % (R + 7, DK + 7, R + 9))
    A("ds_write_b128 v%d, %s offset:%d" % (t2, v(R + 4, 4), CPS2))
    A("s_branch ssm_y2")
    A.label("ssm_y1")
    A("v_lshlrev_b32 v%d, 9, v%d" % (R + 12, t3))
    A("v_sub_u32 v%d, v%d, v%d" % (R + 12, vKW, R + 12))
    A("v_subrev_u32 v%d, 1024, v%d" % (R + 12, R + 12))
    A("v_lshlrev_b32 v%d, 10, v%d" % (R + 13, t3))
    A("v_sub_u32 v%d, v%d, v%d" % (R + 13, vKW, R + 13))
    A("v_subrev_u32 v%d, 2560, v%d" % (R + 13, R + 13))
    A("s_waitcnt lgkmcnt(0)")
    for r in range(8): A("v_add_f32 v%d, v%d, v%d" % (DK + r, DK + 8 + r, R + r))
    K8, K4, K0 = DK, DK + 1, DK + 2
    A("v_cvt_pk_bf16_f32 v%d, v%d, v%d" % (R + 0, K8, K8))
    A("v_cvt_pk_bf16_f32 v%d, v%d, v%d" % (R + 1, K4, K4))
    A("v_cvt_pk_bf16_f32 v%d, v%d, v%d" % (R + 2, K4, K0))
    A("v_cvt_pk_bf16_f32 v%d, v%d, v%d" % (R + 3, K0, K0))
    A("ds_write_b128 v%d, %s" % (R + 12, v(R, 4)))
    A("v_cvt_pk_bf16_f32 v%d, v%d, v%d" % (R + 4, K8, K4))
    A("v_mov_b32 v%d, v%d" % (R + 5, R + 1))
    A("v_mov_b32 v%d, v%d" % (R + 6, R + 3))
    A("v_mov_b32 v%d, v%d" % (R + 7, R + 3))
    A("ds_write_b128 v%d, %s offset:%d" % (R + 12, v(R + 4, 4), CPS2))
    for k in range(2):
        K8, K0 = DK + 4 + 2 * k, DK + 5 + 2 * k
        o = 72 + 8 * k
        A("v_cndmask_b32 v%d, v%d, v%d, s[56:57]" % (R + 15, K0, K8))
        A("v_cvt_pk_bf16_f32 v%d, v%d, v%d" % (o + 0, K8, K8))
        A("v_cvt_pk_bf16_f32 v%d, v%d, v%d" % (o + 1, K8, R + 15))
        A("v_cvt_pk_bf16_f32 v%d, v%d, v%d" % (o + 2, K0, K0))
        A("v_mov_b32 v%d, v%d" % (o + 3, o + 2))
        A("ds_write_b128 v%d, %s offset:%d" % (R + 13, v(o, 4), 512 * (1 - k)))
        A("v_mov_b32 v%d, v%d" % (o + 4, o + 0))
        A("v_cvt_pk_bf16_f32 v%d, v%d, v%d" % (o + 5, R + 15, K0))
        A("v_mov_b32 v%d, v%d" % (o + 6, o + 2))
        A("v_mov_b32 v%d, v%d" % (o + 7, o + 2))
        A("ds_write_b128 v%d, %s offset:%d" % (R + 13, v(o + 4, 4), 512 * (1 - k) + CPS2))
    A.label("ssm_y2")
    AF, BFS, DC = 16, [48, 64], 80
    units = [(0, cl) for cl in range(4)] + [(1, cl) for cl in range(4)]
    def a_list(ph): return list(range(7, -1, -1)) if ph == 0 else list(range(3, -1, -1))
    def b_list(ph): return [0, 1, 2, 3] if ph == 0 else [4, 5, 6, 7]
    def a_reads(ph, cl, a): return ["ds_read_b64 %s, v%d offset:%d" % (v(AF + 4 * a + 2 * h, 2), vA, 512 * (7 - a) + 8 * h + 64 * (3 - cl)) for h in range(2)]
    def b_read(ph, cl, b, buf): return "ds_read_b128 %s, v%d offset:%d" % (v(BFS[buf] + 4 * (b & 3), 4), vB, 512 * b + 64 * (3 - cl))
    order = []
    state = {"done": 0}
    def issue(tag, text):
        A(text); order.append(tag)
    def need(tag):
        idx = max(i for i, x in enumerate(order) if x == tag)
        if idx < state["done"]: return
        cnt = len(order) - 1 - idx
        if cnt > 15: cnt = 15
        A("s_waitcnt lgkmcnt(%d)" % cnt)
        state["done"] = len(order) - cnt
        assert state["done"] > idx
    A("s_waitcnt lgkmcnt(0)")
    stamp(A, timing, 8)
    A("s_barrier")
    stamp(A, timing, 3)
    for b in b_list(0): issue(("B", 0, b), b_read(0, 0, b, 0))
    for a in a_list(0):
        for x in a_reads(0, 0, a): issue(("A", 0, a), x)
    first = set()
    for u, (ph, cl) in enumerate(units):
        buf = u & 1
        nxt = units[u + 1] if u + 1 < len(units) else None
        if u == 4:
            stamp(A, timing, 4)
            A("s_barrier")
            for b in b_list(1): issue(("B", u, b), b_read(1, cl, b, buf))
        if nxt and u + 1 != 4:
            for b in b_list(nxt[0]): issue(("B", u + 1, b), b_read(nxt[0], nxt[1], b, buf ^ 1))
        for a in a_list(ph):
            for b in b_list(ph):
                if a + b > 7: continue
                need(("B", u, b)); need(("A", u, a))
                c = a + b
                acc = v(DC + 4 * c, 4) if c in first else "0"
                first.add(c)
                A("v_mfma_f32_16x16x32_bf16 %s, %s, %s, %s" % (v(DC + 4 * c, 4), v(AF + 4 * a, 4), v(BFS[buf] + 4 * (b & 3), 4), acc))
            if nxt and a in a_list(nxt[0]):
                for x in a_reads(nxt[0], nxt[1], a): issue(("A", u + 1, a), x)
    stamp(A, timing, 5)
    U = 16
    for k in range(4): A("ds_read2_b32 %s, v%d offset0:%d offset1:%d" % (v(U + 2 * k, 2), vU if k < 2 else 13, 128 * (k & 1), 128 * (k & 1) + 2)) if k < 2 else None
    A("v_add_u32 v13, 1024, v%d" % vU)
    for k in range(2, 4): A("ds_read2_b32 %s, v13 offset0:%d offset1:%d" % (v(U + 2 * k, 2), 128 * (k & 1), 128 * (k & 1) + 2))
    A("s_nop 3")
    A("s_cmp_eq_u32 s%d, 0" % sHF)
    A("s_cbranch_scc0 ssm_w1")
    for k in range(4): A("ds_write_b128 v%d, %s offset:%d" % (vES, v(DC + 16 + 4 * k, 4), 1024 * k))
    A("s_branch ssm_w2")
    A.label("ssm_w1")
    for k in range(4): A("ds_write_b128 v%d, %s offset:%d" % (vES, v(DC + 4 * k, 4), 1024 * k))
    A.label("ssm_w2")
    UF = 32
    A("s_waitcnt lgkmcnt(4)")
    for k in range(8):
        A("v_lshlrev_b32 v%d, 16, v%d" % (UF + 2 * k, U + k))
        A("v_and_b32 v%d, 0xffff0000, v%d" % (UF + 2 * k + 1, U + k))
    for r in range(16): A("v_mul_f32 v%d, s%d, v%d" % (UF + r, sDskip, UF + r))
    for k in range(8): A("v_cvt_pk_bf16_f32 v%d, v%d, v%d" % (U + k, UF + 2 * k, UF + 2 * k + 1))
    A("s_waitcnt lgkmcnt(0)")
    A("s_barrier")
    R = 48
    for k in range(4): A("ds_read_b128 %s, v%d offset:%d" % (v(R + 4 * k, 4), vER, 1024 * k))
    for k in range(8):
        A("v_lshlrev_b32 v%d, 16, v%d" % (UF + 2 * k, U + k))
        A("v_and_b32 v%d, 0xffff0000, v%d" % (UF + 2 * k + 1, U + k))
    A("s_cmp_eq_u32 s%d, 0" % sHF)
    A("s_cbranch_scc1 ssm_v1")
    for r in range(16): A("v_mov_b32 v%d, v%d" % (DC + r, DC + 16 + r))
    A.label("ssm_v1")
    for k in range(4):
        A("s_waitcnt lgkmcnt(%d)" % (3 - k))
        for r in range(4): A("v_add_f32 v%d, v%d, v%d" % (DC + 4 * k + r, DC + 4 * k + r, R + 4 * k + r))
        for j in range(2): A("v_cvt_pk_bf16_f32 v%d, v%d, v%d" % (U + 2 * k + j, DC + 4 * k + 2 * j, DC + 4 * k + 2 * j + 1))
        for j in range(2):
            A("v_lshlrev_b32 v%d, 16, v%d" % (DC + 4 * k + 2 * j, U + 2 * k + j))
            A("v_and_b32 v%d, 0xffff0000, v%d" % (DC + 4 * k + 2 * j + 1, U + 2 * k + j))
        for r in range(4): A("v_add_f32 v%d, v%d, v%d" % (DC + 4 * k + r, DC + 4 * k + r, UF + 4 * k + r))
        for j in range(2): A("v_cvt_pk_bf16_f32 v%d, v%d, v%d" % (U + 2 * k + j, DC + 4 * k + 2 * j, DC + 4 * k + 2 * j + 1))
        for j in range(2):
            A("buffer_store_dword v%d, v%d, s[%d:%d], s%d offen offset:%d" % (U + 2 * k + j, vO, SAT, SAT + 3, sOut, 512 * k + 8 * j))
    stamp(A, timing, 6)
    dump_stamps(A, timing, 9, end, 0)
    A("s_branch %s" % end)

def gen_k1(name="k1_kernel", timing=False):
    A = Asm()
    end = name + "_end"
    A("s_cmp_ge_u32 s2, 256")
    A("s_cbranch_scc1 %s" % end)
    stamp(A, timing, 0)
    A("v_lshrrev_b32 v2, 6, v0")
    A("v_and_b32 v%d, 63, v0" % vLane)
    A("v_readfirstlane_b32 s%d, v2" % sW)
    A("s_cmp_lt_u32 s2, 160")
    A("s_cbranch_scc1 %s" % (end if NOSSM else "k1_ssm"))
    if NOQ: A("s_branch %s" % end)
    A("s_cmp_lt_u32 s2, 240")
    A("s_cbranch_scc1 k1_q")
    role_kv(A, end, timing)
    A.label("k1_q")
    role_q(A, end, timing)
    if AUX and not (SSM3 and WOSSM):
        A.label("k1_wo")
        role_wo(A, end)
    A.label("k1_ssm")
    (role_ssm3 if SSM3 else role_ssm2 if SSM2 else role_ssm)(A, end, timing)
    A.label(end)
    A("s_endpgm")
    return dict(name=name, grid=256, block=1024, lds=163840, body=A.text(), vgpr=128)

if __name__ == "__main__":
    import sys
    tm = False
    for a in sys.argv[2:]:
        if a.startswith("t"): tm = int(a[1:]) if len(a) > 1 else True
    for a in sys.argv[2:]:
        if a.startswith("g:"): GMOD = a[2:].replace("+", " ")
    k = gen_k1(timing=tm)
    open(sys.argv[1], "w").write(compose([k]))
```

```python
import sys
from asmlib import *
import k1

WS_WF  = 0x0300000
NWF = 819200
WS_T = 0x1000000

SPIN = 20000
PRIO = "toggle"
OWAIT = True
ROT = True
QSLEEP = 1
FSLEEP = 4
HSLEEP = 2

SLOT = [6, 13, 26, 31] + [s_ for s_ in range(32) if s_ not in (6, 13, 26, 31)]
QA1, QA2 = 98304, 63488
FLG = k1.FL
GO = FLG + 160
WS_QF = 0x02D0000
TWO = False
K2HALF = False
IT3 = 8
PRIO2 = "0yyy"
XA = 40960
EXP = ""
QFIRST = True
TAIL = 0
JB4 = 62
TSLEEP = 0
OST = ''
XFWAIT = False
WS_XF = 0x02E0000
PROFF = 2560 + 1024
XST = ' sc1'
XST2 = None
XLD1 = ' sc1'
KSLEEP = 2
GOSPLIT = False
QPOLL = 0
QDEPTH = 1
QKVL = False
GBP = 2
GSPLIT = True
GLATE = 1
QARR = 3
QANS = 5
GFIRST = 3
GPER = 1
GWAIT = 0
QFLAG = 10
QSL2 = 0
WOP = 0
KVF = False
sW, vLane = 6, 1

class Stamps:
    def __init__(self, on): self.on = on; self.n = 0
    def __call__(self, A, k=None):
        if self.on:
            if k is not None:
                A("s_memrealtime s[%d:%d]" % (40 + 2 * k, 41 + 2 * k)); return
            assert self.n < 10
            A("s_memrealtime s[%d:%d]" % (40 + 2 * self.n, 41 + 2 * self.n)); self.n += 1

def poll_flags(A, label, sd, st, off=128, n=2):
    A("v_min_u32 v2, %d, v%d" % (n - 1, vLane))
    A("v_lshlrev_b32 v2, 2, v2")
    A("s_mov_b32 s%d, 0" % st)
    A.label(label)
    A("global_load_dword v5, v2, s[%d:%d] offset:%d sc1" % (sd, sd + 1, off))
    A("s_waitcnt vmcnt(0)")
    A("v_cmp_eq_u32 vcc, 1, v5")
    A("s_add_u32 s%d, s%d, 1" % (st, st))
    A("s_nop 3")
    A("s_cmp_eq_u64 vcc, -1")
    A("s_cbranch_scc1 %s_d" % label)
    A("s_cmp_lt_u32 s%d, %d" % (st, SPIN))
    A("s_cbranch_scc0 %s_d" % label)
    A("s_sleep %d" % FSLEEP)
    A("s_branch %s" % label)
    A.label(label + "_d")

def arrive(A, label, sd, st, k, target, vb=3):
    A("v_mov_b32 v2, %d" % (4 * k))
    A("v_mov_b32 v%d, 1" % vb)
    A("s_mov_b64 exec, 1")
    A("global_atomic_add v5, v2, v%d, s[%d:%d] sc0 sc1" % (vb, sd, sd + 1))
    A("s_waitcnt vmcnt(0)")
    A("v_readfirstlane_b32 s%d, v5" % st)
    A("s_cmp_eq_u32 s%d, %d" % (st, target - 1))
    A("s_cbranch_scc0 %s" % label)
    A("global_store_dword v2, v%d, s[%d:%d] offset:128 sc1" % (vb, sd, sd + 1))
    A.label(label)
    A("s_mov_b64 exec, -1")

def vwg(A, dst, t0, t1):
    A("s_and_b32 s%d, s2, 7" % t0)
    A("s_lshl_b32 s%d, s%d, 5" % (t0, t0))
    A("s_lshr_b32 s%d, s2, 6" % t1)
    A("s_lshl_b32 s%d, s%d, 3" % (t1, t1))
    A("s_or_b32 s%d, s%d, s%d" % (t0, t0, t1))
    A("s_bfe_u32 s%d, s2, 0x30003" % t1)
    A("s_or_b32 s%d, s%d, s%d" % (dst, t0, t1))

def omark(A, sV, srdx, parts, t0, t1):
    A("v_lshrrev_b32 v2, 3, v%d" % vLane)
    A("v_lshlrev_b32 v2, 8, v2")
    A("v_and_b32 v3, 7, v%d" % vLane)
    A("v_lshl_add_u32 v2, v3, 4, v2")
    for r in range(4): A("v_mov_b32 v%d, -1" % (4 + r))
    A("s_lshr_b32 s%d, s%d, 1" % (t0, sV))
    A("s_mul_i32 s%d, s%d, 20480" % (t0, t0))
    A("s_and_b32 s%d, s%d, 1" % (t1, sV))
    A("s_lshl_b32 s%d, s%d, 7" % (t1, t1))
    A("s_add_u32 s%d, s%d, s%d" % (t0, t0, t1))

def cmark(A, srdq, sWS, sV, vA, vM):
    srd(A, srdq, sWS, WS_Q, NQ)
    A("v_lshlrev_b32 v%d, 4, v%d" % (vA, vLane))
    for r in range(4): A("v_mov_b32 v%d, -1" % (vM + r))
    A("s_mul_i32 s%d, s%d, 10240" % (sV, sV))
    for e in range(10):
        if e == 4 or e == 8: A("s_add_u32 s%d, s%d, 4096" % (sV, sV))
        A("buffer_store_dwordx4 %s, v%d, s[%d:%d], s%d offen offset:%d sc1" % (v(vM, 4), vA, srdq, srdq + 3, sV, (e & 3) * 1024))

def carrive(A, sD, sV, vA, vB):
    A("s_lshr_b32 s%d, s%d, 4" % (sV, sV))
    A("s_lshl_b32 s%d, s%d, 2" % (sV, sV))
    A("v_mov_b32 v%d, s%d" % (vA, sV))
    A("v_mov_b32 v%d, 1" % vB)
    A("s_mov_b64 exec, 1")
    A("global_atomic_add v%d, v%d, s[%d:%d] offset:64 sc1" % (vA, vB, sD, sD + 1))
    A("s_mov_b64 exec, -1")

def ssm_mark(A):
    A("s_cmp_eq_u32 s%d, 9" % sW)
    A("s_cbranch_scc0 ssm_nmk")
    vwg(A, 88, 89, 90)
    cmark(A, 92, 4, 88, 28, 30)
    A.label("ssm_nmk")

def ssm_marked(A):
    A("s_cmp_eq_u32 s%d, 9" % sW)
    A("s_cbranch_scc0 ssm_nma")
    A("s_load_dwordx2 s[90:91], s[0:1], 128")
    vwg(A, 88, 89, 92)
    A("s_waitcnt lgkmcnt(0)")
    carrive(A, 90, 88, 28, 29)
    A.label("ssm_nma")

def kv_idle3(A):
    A("s_load_dwordx2 s[4:5], s[0:1], 136")
    A("s_load_dwordx2 s[12:13], s[0:1], 128")
    A("s_cmp_eq_u32 s%d, 12" % sW)
    A("s_cbranch_scc0 kv_nmk")
    vwg(A, 26, 27, 28)
    A("s_waitcnt lgkmcnt(0)")
    cmark(A, 8, 4, 26, 2, 4)
    A.label("kv_nmk")
    for c in range(10):
        if c == 4:
            A("s_cmp_eq_u32 s%d, 12" % sW)
            A("s_cbranch_scc0 kv_nma")
            A("s_waitcnt vmcnt(0)")
            vwg(A, 26, 27, 28)
            carrive(A, 12, 26, 2, 4)
            A.label("kv_nma")
        A("s_barrier")

def xf_clear(A, sV, sWS, t0, t1):
    A("s_lshr_b32 s%d, s%d, 3" % (t0, sV))
    A("s_lshl_b32 s%d, s%d, 10" % (t0, t0))
    A("s_and_b32 s%d, s%d, 7" % (t1, sV))
    A("s_lshl_b32 s%d, s%d, 3" % (t1, t1))
    A("s_add_u32 s%d, s%d, s%d" % (t0, t0, t1))
    A("s_add_u32 s%d, s%d, 0x%x" % (t0, t0, WS_XF))
    A("v_lshrrev_b32 v8, 1, v%d" % vLane)
    A("v_lshlrev_b32 v8, 8, v8")
    A("v_and_b32 v9, 1, v%d" % vLane)
    A("v_lshl_add_u32 v8, v9, 2, v8")
    A("v_add_u32 v8, s%d, v8" % t0)
    A("v_mov_b32 v9, 0")
    A("s_mov_b64 exec, 0xff")
    A("global_store_dword v8, v9, s[%d:%d] sc1" % (sWS, sWS + 1))
    A("s_mov_b64 exec, -1")

def q_stored(A, sRow0, sN0b, sJ):
    A("s_lshr_b32 s28, s%d, 4" % sRow0)
    A("s_add_u32 s28, s28, s%d" % sJ)
    A("s_lshl_b32 s28, s28, 8")
    A("s_lshr_b32 s29, s%d, 6" % sN0b)
    A("s_add_u32 s28, s28, s29")
    A("s_add_u32 s28, s28, 0x%x" % WS_QF)
    A("v_mov_b32 v2, s28")
    A("v_mov_b32 v3, 1")
    A("s_mov_b64 exec, 1")
    A("s_waitcnt vmcnt(0)")
    A("global_store_dword v2, v3, s[4:5] sc1")
    A("s_mov_b64 exec, -1")

def QC(): return 140 if KVF else 128

def q_idle(A, end):
    A("s_load_dwordx2 s[4:5], s[0:1], 136")
    A("s_load_dwordx2 s[12:13], s[0:1], 128")
    if k1.QGATE: A("s_load_dwordx2 s[30:31], s[0:1], 112")
    A("s_sub_u32 s23, s2, 160")
    A("s_and_b32 s20, s23, 15")
    A("s_lshr_b32 s21, s23, 4")
    A("s_lshl_b32 s25, s20, 11")
    A("s_lshl_b32 s24, s21, 2")
    A("s_add_u32 s25, s25, s24")
    A("s_add_u32 s25, s25, 0x%x" % WS_QF)
    A("v_lshlrev_b32 v8, 8, v%d" % vLane)
    A("v_add_u32 v8, s25, v8")
    if k1.QDIR:
        A("s_lshl_b32 s25, s20, 9")
        A("s_lshl_b32 s24, s21, 3")
        A("s_add_u32 s25, s25, s24")
        A("s_add_u32 s25, s25, 0x%x" % WS_QF)
        A("v_lshrrev_b32 v8, 1, v%d" % vLane)
        A("v_lshlrev_b32 v8, 8, v8")
        A("v_and_b32 v9, 1, v%d" % vLane)
        A("v_lshl_add_u32 v8, v9, 2, v8")
        A("v_add_u32 v8, s25, v8")
    A("v_mov_b32 v9, 0")
    vwg(A, 26, 27, 28)
    omark(A, 26, 8, None, 27, 28)
    A("s_sub_u32 s24, s%d, 12" % sW)
    A("s_lshl_b32 s28, s24, 11")
    A("s_add_u32 s27, s27, s28")
    GW, GX, XU, WU, GA_ = 32, 72, 16, 24, 112
    if GBP: GX, GA_ = 84, 104
    GXN = 5 if GBP else 10
    vGa = [10, 11, 12]; vGw = 13
    if k1.QGATE:
        A("s_lshl_b32 s32, s21, 5")
        A("s_lshl_b32 s33, s24, 3")
        A("s_add_u32 s32, s32, s33")
        A("v_lshrrev_b32 v14, 3, v%d" % vLane)
        A("v_add_u32 v14, s32, v14")
        A("v_and_b32 v15, 7, v%d" % vLane)
        A("v_lshlrev_b32 v%d, 7, v14" % vGa[0])
        A("v_bfe_u32 v14, v14, 1, 3")
        A("v_xor_b32 v%d, v14, v15" % vGw)
        A("v_lshl_add_u32 v%d, v%d, 4, v%d" % (vGa[0], vGw if GBP == 2 else 15, vGa[0]))
        A("v_and_b32 v%d, 0x3fff, v%d" % (vGa[0], vGa[0]))
        A("v_add_u32 v%d, 0x10000, v%d" % (vGa[1], vGa[0]))
        A("v_add_u32 v%d, 0x20000, v%d" % (vGa[2], vGa[0]))
        A("v_lshlrev_b32 v%d, 4, v%d" % (vGw, vGw))
        if GBP == 2:
            def pack(l): return sum(x << (4 * i) for i, x in enumerate(l))
            A("s_bfe_u32 s37, s23, 0x10003")
            A("s_cmp_eq_u32 s37, 1")
            A("s_mov_b32 s34, 0x%x" % pack(k1.QORD[0][:8]))
            A("s_mov_b32 s35, 0x%x" % pack(k1.QORD[1][:8]))
            A("s_cselect_b32 s34, s35, s34")
            A("s_mov_b32 s35, 0x%x" % pack(k1.QORD[0][8:]))
            A("s_mov_b32 s38, 0x%x" % pack(k1.QORD[1][8:]))
            A("s_cselect_b32 s35, s38, s35")
            A("s_lshl_b32 s36, s21, 1")
            for (dst, tab, msk) in ((18, 34, 7), (19, 35, 1)):
                A("v_bfe_u32 v%d, v%d, 3, %d" % (dst, vLane, 3 if msk == 7 else 1))
                A("v_lshlrev_b32 v%d, 2, v%d" % (dst, dst))
                A("v_bfe_u32 v%d, s%d, v%d, 4" % (dst, tab, dst))
                A("v_add_u32 v%d, s36, v%d" % (dst, dst))
                A("v_subrev_u32 v20, 10, v%d" % dst)
                A("v_min_u32 v%d, v%d, v20" % (dst, dst))
                A("v_lshlrev_b32 v%d, 7, v%d" % (dst, dst))
                A("v_lshl_add_u32 v%d, v15, 4, v%d" % (dst, dst))
        A("s_lshl_b32 s33, s20, 7")
        A("s_add_u32 s32, s32, s33")
        A("s_lshl_b32 s32, s32, 2")
        A("v_lshrrev_b32 v14, 3, v%d" % vLane)
        A("v_lshlrev_b32 v14, 2, v14")
        A("s_lshl_b32 s36, s21, 1")
        A("s_bfe_u32 s37, s23, 0x10003")
        for r in range(8): A("v_mov_b32 v%d, 0" % (GA_ + r))
    A("s_waitcnt lgkmcnt(0)")
    srd(A, 8, 4, WS_O, NQ)
    if QPOLL in (1, 2): srd(A, 40, 4, WS_Q, NQ)
    if k1.QGATE:
        srd(A, 16, 30, 0, 1280)
        if GBP == 2:
            A("buffer_load_dwordx4 %s, v18, s[16:19], 0 offen" % v(GW, 4))
            A("buffer_load_dwordx4 %s, v19, s[16:19], 0 offen" % v(GW + 4, 4))
        elif GBP:
            A("v_lshlrev_b32 v15, 4, v%d" % vLane)
            A("buffer_load_dwordx4 %s, v15, s[16:19], 0 offen" % v(GW, 4))
            A("buffer_load_dwordx4 %s, v15, s[16:19], 0 offen offset:1024" % v(GW + 4, 4))
            A("v_lshrrev_b32 v%d, 2, v%d" % (vGw, vGw))
        else:
            A("s_cmp_lt_u32 s21, 4")
            A("s_cbranch_scc0 q_ngw")
            for t in range(10):
                A("s_cmp_eq_u32 s37, 1")
                A("s_cselect_b32 s29, %d, %d" % (k1.QORD[1][t], k1.QORD[0][t]))
                A("s_add_u32 s29, s29, s36")
                A("s_cmp_ge_u32 s29, 10")
                A("s_cselect_b32 s33, 10, 0")
                A("s_sub_u32 s29, s29, s33")
                A("s_lshl_b32 s29, s29, 7")
                A("buffer_load_dwordx4 %s, v%d, s[16:19], s29 offen" % (v(GW + 4 * t, 4), vGw))
            A.label("q_ngw")
        srd(A, 16, 4, k1.WS_G, 8192)
    A("s_cmp_eq_u32 s%d, 12" % sW)
    A("s_cbranch_scc0 q_nz")
    A("s_mov_b64 exec, %s" % ("0xf" if k1.QDIR else "0xff"))
    A("global_store_dword v8, v9, s[4:5] sc1")
    A("s_mov_b64 exec, -1")
    A.label("q_nz")
    if TAIL == 5:
        A("s_cmp_eq_u32 s%d, 13" % sW)
        A("s_cbranch_scc0 q_nx")
        xf_clear(A, 26, 4, 28, 29)
        A.label("q_nx")
    def qmark():
        A("v_lshrrev_b32 v16, 4, v%d" % vLane)
        A("v_mul_u32_u24 v16, 1280, v16")
        A("v_and_b32 v17, 15, v%d" % vLane)
        A("v_lshl_add_u32 v16, v17, 4, v16")
        A("s_lshl_b32 s38, s20, 7")
        A("s_lshl_b32 s39, s24, 5")
        A("s_add_u32 s38, s38, s39")
        A("s_mul_i32 s38, s38, 1280")
        A("s_lshl_b32 s39, s21, 8")
        A("s_add_u32 s38, s38, s39")
        for e in range(8):
            if e: A("s_add_u32 s38, s38, %d" % (4 * 1280))
            A("buffer_store_dwordx4 v[4:7], v16, s[40:43], s38 offen sc1")
    def gread(t):
        if not k1.QGATE: return
        b = (t % 5) * 32768
        A("ds_read_b128 %s, v%d offset:%d" % (v(GX + 4 * (t % GXN), 4), vGa[b >> 16], b & 0xffff))
    def gperm(t):
        if not (k1.QGATE and GBP) or t > 9: return
        W = GW + 12 + 4 * t
        ix = GW + 8 + (t & 3)
        A("s_cmp_eq_u32 s37, 1")
        A("s_cselect_b32 s29, %d, %d" % (k1.QORD[1][t], k1.QORD[0][t]))
        A("s_add_u32 s29, s29, s36")
        A("s_cmp_ge_u32 s29, 10")
        A("s_cselect_b32 s33, 10, 0")
        A("s_sub_u32 s29, s29, s33")
        A("s_lshl_b32 s33, s29, 5")
        A("v_add_u32 v%d, s33, v%d" % (ix, vGw))
        A("s_cmp_ge_u32 s29, 8")
        l1 = A.newlabel("q_gp"); l2 = A.newlabel("q_gp")
        A("s_cbranch_scc1 %s" % l1)
        for q in range(4): A("ds_bpermute_b32 v%d, v%d, v%d" % (W + q, ix, GW + q))
        A("s_branch %s" % l2)
        A.label(l1)
        for q in range(4): A("ds_bpermute_b32 v%d, v%d, v%d" % (W + q, ix, GW + 4 + q))
        A.label(l2)
    def gdist(halves=(0, 1)):
        Wr = lambda t, j: GW + 12 + 4 * t + j
        for half in halves:
            dpp = "row_shr:8 row_mask:0xf bank_mask:0xc" if half == 0 else "row_shl:8 row_mask:0xf bank_mask:0x3"
            for j in range(4): A("v_mov_b32 v%d, v%d" % (Wr(half, j), GW + j))
            for j in range(4): A("v_mov_b32 v%d, v%d" % (Wr(8 + half, j), GW + 4 + j))
            for j in range(4): A("v_mov_b32_dpp v%d, v%d %s" % (Wr(half, j), GW + j, dpp))
            for j in range(4): A("v_mov_b32_dpp v%d, v%d %s" % (Wr(8 + half, j), GW + 4 + j, dpp))
            for j in range(4): A("v_mov_b32 v%d, v%d" % (Wr(2 + half, j), Wr(half, j)))
            A("s_nop 1")
            for j in range(4): A("v_permlane16_swap_b32 v%d, v%d" % (Wr(half, j), Wr(2 + half, j)))
            A("s_nop 1")
            for j in range(4): A("v_mov_b32 v%d, v%d" % (Wr(4 + half, j), Wr(half, j)))
            for j in range(4): A("v_mov_b32 v%d, v%d" % (Wr(6 + half, j), Wr(2 + half, j)))
            A("s_nop 1")
            for j in range(4): A("v_permlane32_swap_b32 v%d, v%d" % (Wr(half, j), Wr(4 + half, j)))
            for j in range(4): A("v_permlane32_swap_b32 v%d, v%d" % (Wr(2 + half, j), Wr(6 + half, j)))
    def gmath(t):
        if not k1.QGATE: return
        W = GW + 12 + 4 * t if GBP else GW + 4 * t
        X = GX + 4 * (t % GXN)
        for q in range(4):
            A("v_lshlrev_b32 v%d, 16, v%d" % (XU + 2 * q, X + q))
            A("v_and_b32 v%d, 0xffff0000, v%d" % (XU + 2 * q + 1, X + q))
            A("v_lshlrev_b32 v%d, 16, v%d" % (WU + 2 * q, W + q))
            A("v_and_b32 v%d, 0xffff0000, v%d" % (WU + 2 * q + 1, W + q))
        for q in range(4):
            A("v_pk_mul_f32 %s, %s, %s" % (v(XU + 2 * q, 2), v(XU + 2 * q, 2), v(WU + 2 * q, 2)))
        for q in range(4):
            A("v_cvt_pk_bf16_f32 v%d, v%d, v%d" % (WU + q, XU + 2 * q, XU + 2 * q + 1))
        for q in range(4):
            A("v_lshlrev_b32 v%d, 16, v%d" % (XU + 2 * q, WU + q))
            A("v_and_b32 v%d, 0xffff0000, v%d" % (XU + 2 * q + 1, WU + q))
        for q in range(4):
            A("v_pk_add_f32 %s, %s, %s" % (v(GA_ + 2 * q, 2), v(GA_ + 2 * q, 2), v(XU + 2 * q, 2)))
    def gfin():
        if not k1.QGATE: return
        X = GA_
        A("v_pk_add_f32 %s, %s, %s" % (v(X, 2), v(X, 2), v(X + 2, 2)))
        A("v_pk_add_f32 %s, %s, %s" % (v(X + 4, 2), v(X + 4, 2), v(X + 6, 2)))
        A("v_pk_add_f32 %s, %s, %s" % (v(X, 2), v(X, 2), v(X + 4, 2)))
        A("v_add_f32 v%d, v%d, v%d" % (X, X, X + 1))
        for ctl in ("row_shr:1", "row_shr:2", "row_shr:4"):
            A("s_nop 1")
            A("v_add_f32_dpp v%d, v%d, v%d %s row_mask:0xf bank_mask:0xf bound_ctrl:0" % (X, X, X, ctl))
        A("v_cvt_pk_bf16_f32 v%d, v%d, v%d" % (X, X, X))
        A("v_lshlrev_b32 v%d, 16, v%d" % (X, X))
        A("v_mul_f32 v%d, 0xbfb8aa3b, v%d" % (X, X))
        A("v_exp_f32 v%d, v%d" % (X, X))
        A("s_nop 0")
        A("v_add_f32 v%d, 1.0, v%d" % (X, X))
        A("v_rcp_f32 v%d, v%d" % (X, X))
        A("s_nop 0")
        A("v_cvt_pk_bf16_f32 v%d, v%d, v%d" % (X, X, X))
        A("v_lshlrev_b32 v%d, 16, v%d" % (X, X))
        A("s_cmp_lt_u32 s21, 4")
        A("s_cbranch_scc0 q_ngs")
        A("s_mov_b32 exec_lo, 0x80808080")
        A("s_mov_b32 exec_hi, 0x80808080")
        A("buffer_store_dword v%d, v14, s[16:19], s32 offen sc1" % X)
        A("s_mov_b64 exec, -1")
        A.label("q_ngs")
    def qflag(n):
        if not QPOLL or n != QFLAG: return
        A("s_cmp_eq_u32 s%d, 13" % sW)
        A("s_cbranch_scc0 q_nfl")
        A("v_mov_b32 v9, 1")
        A("s_mov_b64 exec, 0xff")
        A("global_store_dword v8, v9, s[4:5] sc1")
        A("s_mov_b64 exec, -1")
        A.label("q_nfl")
    def bar(n):
        A("s_waitcnt lgkmcnt(0)")
        A("s_barrier")
        qflag(n)
        gread(n - 1)
    if QPOLL == 1: qmark()
    if QPOLL == 3:
        A("s_cmp_eq_u32 s%d, 14" % sW)
        A("s_cbranch_scc0 q_ncm")
        A("s_mov_b32 s38, s26")
        cmark(A, 40, 4, 38, 16, 4)
        A.label("q_ncm")
    bar(1)
    A("buffer_store_dwordx4 v[4:7], v2, s[8:11], s27 offen sc1")
    A("s_add_u32 s27, s27, %d" % (4 * 2048))
    A("buffer_store_dwordx4 v[4:7], v2, s[8:11], s27 offen sc1")
    A("s_cmp_lt_u32 s24, 2")
    A("s_cbranch_scc0 q_n3")
    A("s_add_u32 s27, s27, %d" % (4 * 2048))
    A("buffer_store_dwordx4 v[4:7], v2, s[8:11], s27 offen sc1")
    A.label("q_n3")
    if QPOLL == 2: qmark()
    gm = [0]
    def gsome(n):
        if GBP == 2 and k1.QGATE:
            if GSPLIT:
                if n == GFIRST: gdist((0,))
                if n == GFIRST + 1: gdist((1,))
            elif n == GFIRST: gdist()
        for _ in range(GPER if not (GSPLIT and n <= GFIRST + 1) else 1):
            if gm[0] <= n - 2 and n >= GFIRST + (1 if GBP == 1 else 0):
                assert n - 1 - gm[0] < GXN
                gmath(gm[0]); gm[0] += 1
        if n == GFIRST and GBP == 1:
            for t in range(10): gperm(t)
    for n in range(2, 11):
        if n == QARR or (n == GFIRST and GFIRST < QARR and k1.QGATE):
            if n == QARR: A("s_waitcnt vmcnt(0)")
            else: A("s_waitcnt vmcnt(%d)" % GWAIT)
        if n == QARR + QANS:
            A("s_waitcnt vmcnt(0)")
            A("v_readfirstlane_b32 s24, v5")
            A("s_cmp_eq_u32 s24, 79")
            A("s_cbranch_scc0 q_ar")
            A("s_mov_b64 exec, 1")
            A("global_store_dword v2, v3, s[12:13] offset:%d sc1" % QC())
            A("s_mov_b64 exec, -1")
            A.label("q_ar")
        bar(n)
        if n == QARR:
            A("v_mov_b32 v2, 0")
            A("v_mov_b32 v3, 1")
            A("v_mov_b32 v5, 0")
            A("s_cmp_eq_u32 s%d, 12" % sW)
            A("s_cbranch_scc0 q_na")
            A("s_mov_b64 exec, 1")
            A("global_atomic_add v5, v2, v3, s[12:13] sc0 sc1")
            A("s_mov_b64 exec, -1")
            if QPOLL == 3:
                A("s_mov_b32 s38, s26")
                carrive(A, 12, 38, 16, 17)
            A.label("q_na")
        if n == QARR + QANS:
            if QPOLL == 3:
                A("s_lshl_b32 s38, s20, 2")
                A("s_add_u32 s38, s38, 64")
                A("v_mov_b32 v2, s38")
                A("v_mov_b32 v6, 16")
                A("s_mov_b32 s39, %d" % QC())
                A("v_writelane_b32 v2, s39, 0")
                A("v_writelane_b32 v6, 1, 0")
                A("global_load_dword v5, v2, s[12:13] sc1")
            else:
                A("v_min_u32 v2, 1, v%d" % vLane)
                A("v_lshlrev_b32 v2, 2, v2")
                A("global_load_dword v5, v2, s[12:13] offset:%d sc1" % QC())
        gsome(n)
    assert QARR + QANS <= 10
    A("s_waitcnt lgkmcnt(0)")
    while k1.QGATE and gm[0] < (10 if not GLATE else 9 - GLATE + 1):
        gmath(gm[0]); gm[0] += 1
    if QPOLL == 3:
        A("s_mov_b32 s24, 0")
        A.label("q_pf1")
        A("s_waitcnt vmcnt(0)")
        A("v_cmp_eq_u32 vcc, v5, v6")
        A("s_add_u32 s24, s24, 1")
        A("s_nop 3")
        A("s_cmp_eq_u64 vcc, -1")
        A("s_cbranch_scc1 q_fq")
        A("s_cmp_lt_u32 s24, %d" % SPIN)
        A("s_cbranch_scc0 q_fq")
        A("s_sleep %d" % FSLEEP)
        A("global_load_dword v5, v2, s[12:13] sc1")
        A("s_branch q_pf1")
    else:
        A("s_waitcnt vmcnt(%d)" % 0)
        A("v_readfirstlane_b32 s24, v5")
        A("s_cmp_eq_u32 s24, 1")
        A("s_cbranch_scc1 q_fq")
        poll_flags(A, "q_pf1", 12, 24, off=QC(), n=1)
    A.label("q_fq")
    if not GLATE: gfin()
    if not KVF and not QKVL:
        A("v_min_u32 v2, 1, v%d" % vLane)
        A("v_lshlrev_b32 v2, 2, v2")
        A("global_load_dword v5, v2, s[12:13] offset:128 sc1")
    A("s_barrier")
    qflag(11)
    if GLATE and k1.QGATE:
        while gm[0] < 10:
            gmath(gm[0]); gm[0] += 1
        gfin()
    if KVF: poll_flags(A, "q_pf2", 12, 24, off=144, n=16)
    elif not QKVL: poll_flags(A, "q_pf2", 12, 24, off=132, n=1)
    A("s_branch %s" % end)

def KVOFF(): return WS_QF + 0xA000

def poll_lines(A, label, st, voff, n):
    A("s_mov_b32 s%d, 0" % st)
    A.label(label)
    A("global_load_dword v5, v2, s[4:5] sc1")
    A("s_waitcnt vmcnt(0)")
    A("v_cmp_eq_u32 vcc, 1, v5")
    A("s_add_u32 s%d, s%d, 1" % (st, st))
    A("s_nop 3")
    A("s_cmp_eq_u64 vcc, -1")
    A("s_cbranch_scc1 %s_d" % label)
    A("s_cmp_lt_u32 s%d, %d" % (st, SPIN))
    A("s_cbranch_scc0 %s_d" % label)
    A("s_sleep %d" % KSLEEP)
    A("s_branch %s" % label)
    A.label(label + "_d")

def kv_addr(A, t0):
    A("s_and_b32 s%d, s2, 7" % t0)
    A("s_lshl_b32 s%d, s%d, 11" % (t0, t0))
    A("s_add_u32 s%d, s%d, 0x%x" % (t0, t0, KVOFF()))
    A("v_min_u32 v2, 15, v%d" % vLane)
    A("v_lshlrev_b32 v2, 7, v2")
    A("v_add_u32 v2, s%d, v2" % t0)

def q_idle2(A, end):
    A("s_load_dwordx2 s[4:5], s[0:1], 136")
    A("s_load_dwordx2 s[12:13], s[0:1], 128")
    A("s_sub_u32 s23, s2, 160")
    A("s_and_b32 s20, s23, 15")
    A("s_lshr_b32 s21, s23, 4")
    A("s_mul_i32 s25, s20, 20")
    A("s_lshl_b32 s24, s21, 1")
    A("s_add_u32 s25, s25, s24")
    A("s_lshl_b32 s25, s25, 7")
    A("s_add_u32 s25, s25, 0x%x" % WS_QF)
    A("v_lshrrev_b32 v8, 1, v%d" % vLane)
    A("v_mul_u32_u24 v8, 1280, v8")
    A("v_and_b32 v9, 1, v%d" % vLane)
    A("v_lshl_add_u32 v8, v9, 7, v8")
    A("v_add_u32 v8, s25, v8")
    A("v_mov_b32 v9, 0")
    vwg(A, 26, 27, 28)
    omark(A, 26, 8, None, 27, 28)
    A("s_sub_u32 s24, s%d, 12" % sW)
    A("s_lshl_b32 s28, s24, 11")
    A("s_add_u32 s27, s27, s28")
    A("v_mov_b32 v10, 0")
    A("v_mov_b32 v11, 1")
    A("v_mov_b32 v12, 0")
    A("s_waitcnt lgkmcnt(0)")
    srd(A, 8, 4, WS_O, NQ)
    A("s_cmp_eq_u32 s%d, 12" % sW)
    A("s_cbranch_scc0 q_nz")
    A("s_mov_b64 exec, 0xf")
    A("global_store_dword v8, v9, s[4:5] sc1")
    A("s_mov_b64 exec, -1")
    A.label("q_nz")
    A("s_barrier")
    A("s_cmp_eq_u32 s%d, 12" % sW)
    A("s_cbranch_scc0 q_nz2")
    A("s_mov_b64 exec, 1")
    A("s_waitcnt vmcnt(0)")
    A("global_atomic_add v12, v10, v11, s[12:13] sc0 sc1")
    A("s_mov_b64 exec, -1")
    A.label("q_nz2")
    A("buffer_store_dwordx4 v[4:7], v2, s[8:11], s27 offen sc1")
    A("s_add_u32 s27, s27, %d" % (4 * 2048))
    A("buffer_store_dwordx4 v[4:7], v2, s[8:11], s27 offen sc1")
    A("s_cmp_lt_u32 s24, 2")
    A("s_cbranch_scc0 q_n3")
    A("s_add_u32 s27, s27, %d" % (4 * 2048))
    A("buffer_store_dwordx4 v[4:7], v2, s[8:11], s27 offen sc1")
    A.label("q_n3")
    A("s_barrier")
    A("s_barrier")
    A("s_cmp_eq_u32 s%d, 12" % sW)
    A("s_cbranch_scc0 q_ar")
    A("s_waitcnt vmcnt(0)")
    A("v_readfirstlane_b32 s24, v12")
    A("s_cmp_eq_u32 s24, 95")
    A("s_cbranch_scc0 q_ar")
    A("s_mov_b64 exec, 1")
    A("global_store_dword v10, v11, s[12:13] offset:128 sc1")
    A("s_mov_b64 exec, -1")
    A.label("q_ar")
    for b in range(4, 9): A("s_barrier")
    A("global_load_dword v5, v10, s[12:13] offset:128 sc1")
    A("s_barrier")
    A("s_barrier")
    A("s_waitcnt vmcnt(0)")
    A("v_readfirstlane_b32 s24, v5")
    A("s_cmp_eq_u32 s24, 1")
    A("s_cbranch_scc1 q_fq")
    poll_flags(A, "q_pf1", 12, 24, off=128, n=1)
    A.label("q_fq")
    kv_addr(A, 24)
    A("s_barrier")
    poll_lines(A, "q_pf2", 24, 2, 16)
    A("s_branch %s" % end)

def kv_idle2(A):
    A("s_load_dwordx2 s[4:5], s[0:1], 136")
    A("s_load_dwordx2 s[12:13], s[0:1], 128")
    A("s_sub_u32 s24, s2, 240")
    A("s_lshl_b32 s24, s24, 7")
    A("s_add_u32 s24, s24, 0x%x" % KVOFF())
    A("v_lshlrev_b32 v8, 11, v%d" % vLane)
    A("v_add_u32 v8, s24, v8")
    A("v_mov_b32 v10, 0")
    A("v_mov_b32 v11, 1")
    A("v_mov_b32 v12, 0")
    A("s_cmp_eq_u32 s%d, 12" % sW)
    A("s_cbranch_scc0 kv_i1")
    A("s_waitcnt lgkmcnt(0)")
    A("s_mov_b64 exec, 0xff")
    A("global_store_dword v8, v10, s[4:5] sc1")
    A("s_mov_b64 exec, -1")
    A.label("kv_i1")
    A("s_barrier")
    A("s_cmp_eq_u32 s%d, 12" % sW)
    A("s_cbranch_scc0 kv_i1b")
    A("s_mov_b64 exec, 1")
    A("s_waitcnt vmcnt(0)")
    A("global_atomic_add v12, v10, v11, s[12:13] sc0 sc1")
    A("s_mov_b64 exec, -1")
    A.label("kv_i1b")
    A("s_barrier"); A("s_barrier")
    A("s_cmp_eq_u32 s%d, 12" % sW)
    A("s_cbranch_scc0 kv_i2")
    A("s_waitcnt vmcnt(0)")
    A("v_readfirstlane_b32 s24, v12")
    A("s_cmp_eq_u32 s24, 95")
    A("s_cbranch_scc0 kv_i2")
    A("s_mov_b64 exec, 1")
    A("global_store_dword v10, v11, s[12:13] offset:128 sc1")
    A("s_mov_b64 exec, -1")
    A.label("kv_i2")
    for c in range(7): A("s_barrier")

def kv_tail(A, end):
    A("s_barrier")
    A("s_cmp_eq_u32 s%d, 8" % sW)
    A("s_cbranch_scc0 kv_np")
    A("s_load_dwordx2 s[12:13], s[0:1], 128")
    A("s_waitcnt lgkmcnt(0)")
    if KVF == 2:
        A("s_load_dwordx2 s[4:5], s[0:1], 136")
        A("s_sub_u32 s24, s2, 240")
        A("s_lshl_b32 s24, s24, 7")
        A("s_add_u32 s24, s24, 0x%x" % KVOFF())
        A("v_lshlrev_b32 v8, 11, v%d" % vLane)
        A("v_add_u32 v8, s24, v8")
        A("v_mov_b32 v3, 1")
        A("s_waitcnt lgkmcnt(0)")
        A("s_mov_b64 exec, 0xff")
        A("global_store_dword v8, v3, s[4:5] sc1")
        A("s_mov_b64 exec, -1")
        poll_flags(A, "kv_pf1", 12, 24, off=128, n=1)
        kv_addr(A, 24)
        poll_lines(A, "kv_pf", 24, 2, 16)
    elif KVF:
        A("s_sub_u32 s24, s2, 240")
        A("s_lshl_b32 s24, s24, 2")
        A("v_mov_b32 v2, s24")
        A("v_mov_b32 v3, 1")
        A("s_mov_b64 exec, 1")
        A("global_store_dword v2, v3, s[12:13] offset:144 sc1")
        A("s_mov_b64 exec, -1")
        poll_flags(A, "kv_pf", 12, 24, off=140, n=17)
    else:
        arrive(A, "kv_ar", 12, 24, 1, 16)
        poll_flags(A, "kv_pf", 12, 24)
    A.label("kv_np")
    A("s_barrier")

def phase2(A, name, end, force_fallback=False, timing=False):
    st = Stamps(timing)
    def dump():
        if not timing: return
        A("s_waitcnt vmcnt(0) lgkmcnt(0)")
        A("s_memrealtime s[38:39]")
        A("s_lshl_b32 s30, s3, 4")
        A("s_add_u32 s30, s30, s%d" % sW)
        A("s_lshl_b32 s30, s30, 6")
        A("s_add_u32 s30, s30, 0x%x" % WS_T)
        A("v_mov_b32 v2, s30")
        A("s_mov_b64 exec, 1")
        A("v_mov_b32 v3, s100")
        A("global_store_dword v2, v3, s[4:5]")
        for i in range(st.n):
            A("v_mov_b32 v3, s%d" % (40 + 2 * i))
            A("global_store_dword v2, v3, s[4:5] offset:%d" % (4 * (i + 1)))
        A("s_waitcnt lgkmcnt(0)")
        A("v_mov_b32 v3, s38")
        A("global_store_dword v2, v3, s[4:5] offset:%d" % (4 * (st.n + 1)))
        A("s_sub_u32 s30, s98, s96")
        A("v_mov_b32 v3, s30")
        A("global_store_dword v2, v3, s[4:5] offset:52")
        A("v_mov_b32 v3, s99")
        A("global_store_dword v2, v3, s[4:5] offset:56")
        A("s_mov_b64 exec, -1")
    st(A)
    A("s_load_dwordx2 s[4:5], s[0:1], 136")
    A("s_load_dwordx2 s[92:93], s[0:1], 120")
    A("s_load_dwordx2 s[94:95], s[0:1], 128")
    A("s_mov_b32 s3, s2")
    vwg(A, 2, 26, 27)
    SRD_KV, SRD_Q, SRD_X = 8, 12, 16
    SRD_WF, SRD_AT, SRD_G, SRD_OUT = 60, 64, 68, 72
    sG8, sJ8 = 79, 78
    PA = 40960
    A("s_lshr_b32 s%d, s2, 3" % sG8)
    A("s_and_b32 s%d, s2, 7" % sJ8)
    A("s_cmp_ge_u32 s%d, 8" % sW)
    A("s_cbranch_scc1 %s_proj" % name)

    if TWO:
        aV, aK1, aK2 = 0, 2, 3
        Q1 = {"A": 4, "B": 10}; Q2 = {"A": 8, "B": 14}
        S = {"A": 16, "B": 32}; O = {"A": 48, "B": 64}; P = {"A": 80, "B": 88}
        K1 = [96, 102]; K2 = [100, 106]; V = [108, 116]
        T0, T1, T2, T3 = 124, 125, 126, 127
        sMASK = 24
        sKA, sKD = 22, 23
        A("v_and_b32 v%d, 31, v%d" % (T2, vLane))
        A("v_lshrrev_b32 v%d, 5, v%d" % (T3, vLane))
        A("s_cmp_ge_u32 s%d, 4" % sW)
        A("s_cselect_b32 s%d, %d, %d" % (sKA, SLOT[1], SLOT[0]))
        A("s_mul_i32 s%d, s%d, 5120" % (sKA, sKA))
        A("s_cselect_b64 vcc, -1, 0")
        A("v_lshlrev_b32 v%d, 4, v%d" % (aK1, vLane))
        A("v_lshlrev_b32 v%d, 3, v%d" % (aK2, T2))
        A("v_mul_u32_u24 v%d, 320, v%d" % (aV, T3))
        A("v_lshl_add_u32 v%d, v%d, 4, v%d" % (aV, T2, aV))
        A("s_and_b32 s27, s%d, 3" % sW)
        A("s_lshl_b32 s26, s27, 11")
        A("s_add_u32 s26, s26, %d" % QA1)
        A("v_add_u32 v16, s26, v%d" % aK1)
        A("s_lshl_b32 s26, s27, 9")
        A("s_add_u32 s26, s26, %d" % QA2)
        A("v_add_u32 v17, s26, v%d" % aK2)
        for r in (aK1, aK2, aV): A("v_add_u32 v%d, s%d, v%d" % (r, sKA, r))
        A("s_mov_b32 s%d, 0x000fffff" % sMASK)
        A("s_mov_b32 s%d, 0x000fffff" % (sMASK + 1))
        A("v_cmp_eq_u32 s[28:29], 20, v%d" % T2)
        A("v_mov_b32 v19, 0x3f803f80")
        A("v_mov_b32 v%d, 0" % T0)
        A("v_cndmask_b32 v%d, v%d, v19, s[28:29]" % (T0, T0))
        for r in range(16):
            A("v_mov_b32 v%d, v%d" % (V[0] + r, T0))
        for r in range(32):
            A("v_mov_b32 v%d, 0" % (O["A"] + r))
        for r in range(8):
            A("v_mov_b32 v%d, 0" % (P["B"] + r))
        for r in (K2[0], K2[0] + 1, K2[1], K2[1] + 1):
            A("v_mov_b32 v%d, 0" % r)
        for t_ in "AB":
            A("v_mov_b32 v%d, 0" % Q2[t_]); A("v_mov_b32 v%d, 0" % (Q2[t_] + 1))
        A("s_waitcnt lgkmcnt(0)")
        st(A)
        A("s_barrier")
        st(A)
        if timing: A("s_memtime s[96:97]")
        A("ds_read_b128 %s, v16" % v(Q1["A"], 4))
        A("ds_read_b128 %s, v%d" % (v(K1[0], 4), aK1))
        A("s_mov_b32 exec_hi, 0")
        A("ds_read_b64 %s, v17" % v(Q2["A"], 2))
        A("ds_read_b64 %s, v17 offset:256" % v(Q2["B"], 2))
        if K2HALF: A("ds_read_b64 %s, v%d offset:1024" % (v(K2[0], 2), aK2))
        A("s_mov_b64 exec, -1")
        if not K2HALF: A("ds_read_b64 %s, v%d offset:1024" % (v(K2[0], 2), aK2))
        A("ds_read_b128 %s, v16 offset:1024" % v(Q1["B"], 4))
        srd(A, SRD_KV, 4, WS_KV, NKV)
        srd(A, SRD_X, 4, WS_O, NQ)
        srd(A, SRD_AT, 4, WS_AT, NQ)
        srd(A, SRD_G, 4, WS_G, 8192)
        srd(A, SRD_OUT, 92, 0, NQ)
        A("s_waitcnt lgkmcnt(1)")
        A("v_mfma_f32_32x32x16_bf16 %s, %s, %s, 0" % (v(S["A"], 16), v(K1[0], 4), v(Q1["A"], 4)))
        A("v_mfma_f32_32x32x8_bf16 %s, %s, %s, %s" % (v(S["A"], 16), v(K2[0], 2), v(Q2["A"], 2), v(S["A"], 16)))
        A("s_waitcnt lgkmcnt(0)")
        A("s_nop 7")
        A("s_nop 3")
        def H(cur, kb, vb, pre, do_qk=True):
            oth = "B" if cur == "A" else "A"
            Sc, Pc = S[cur], P[cur]
            So, Po, Oo = S[oth], P[oth], O[oth]
            for r in pre: A(r)
            M = [None, None]
            if do_qk:
                M = ["v_mfma_f32_32x32x16_bf16 %s, %s, %s, 0" % (v(So, 16), v(K1[kb], 4), v(Q1[oth], 4)),
                     "v_mfma_f32_32x32x8_bf16 %s, %s, %s, %s" % (v(So, 16), v(K2[kb], 2), v(Q2[oth], 2), v(So, 16))]
            M.append("v_mfma_f32_32x32x16_bf16 %s, %s, %s, %s" % (v(Oo, 16), v(V[vb], 4), v(Po, 4), v(Oo, 16)))
            M.append("v_mfma_f32_32x32x16_bf16 %s, %s, %s, %s" % (v(Oo, 16), v(V[vb] + 4, 4), v(Po + 4, 4), v(Oo, 16)))
            E = ["v_exp_f32 v%d, v%d" % (Sc + r, Sc + r) for r in range(16)]
            C = ["v_cvt_pk_bf16_f32 v%d, v%d, v%d" % (Pc + j, Sc + 2 * j, Sc + 2 * j + 1) for j in range(8)]
            for g in range(4):
                if M[g]: A(M[g])
                for r in range(4): A(E[4 * g + r])
                if g >= 1:
                    A(C[2 * (g - 1)]); A(C[2 * (g - 1) + 1])
            A(C[6]); A(C[7])
        def reads(kb, koff, vb, voff):
            R_ = []
            if kb is not None:
                R_.append("ds_read_b128 %s, v%d offset:%d" % (v(K1[kb], 4), aK1, koff))
                if not K2HALF: R_.append("ds_read_b64 %s, v%d offset:%d" % (v(K2[kb], 2), aK2, koff + 1024))
            R_.append("s_mov_b64 exec, s[%d:%d]" % (sMASK, sMASK + 1))
            R_.append("ds_read_b128 %s, v%d offset:%d" % (v(V[vb], 4), aV, voff + 1280))
            R_.append("ds_read_b128 %s, v%d offset:%d" % (v(V[vb] + 4, 4), aV, voff + 1280 + 640))
            if kb is not None and K2HALF:
                R_.append("s_mov_b32 exec_lo, -1")
                R_.append("s_mov_b32 exec_hi, 0")
                R_.append("ds_read_b64 %s, v%d offset:%d" % (v(K2[kb], 2), aK2, koff + 1024))
            R_.append("s_mov_b64 exec, -1")
            return R_
        pst = ["0"]
        for it in range(16):
            last = it == 15
            if it == IT3: A("s_barrier")
            def prio(k):
                pat = PRIO2[(it % (len(PRIO2) // 4)) * 4 + k]
                if pat == pst[0]: return
                pst[0] = pat
                if pat == "0": A("s_setprio 0")
                else:
                    lb = A.newlabel(name + "_p")
                    A("s_setprio 0")
                    A("s_cbranch_vcc%s %s" % ("z" if pat == "y" else "nz", lb))
                    A("s_setprio 1")
                    A.label(lb)
            prio(0)
            H("A", 0, 1, reads(1, 2560, 0, 0))
            prio(1)
            H("B", 1, 0, ["s_waitcnt lgkmcnt(0)"])
            prio(2)
            pre = []
            if it == 1: pre.append("s_waitcnt vmcnt(0)")
            if it in (1, 5): pre.append("s_barrier")
            if not last:
                pre += ["s_cmp_ge_u32 s%d, 4" % sW,
                        "s_cselect_b32 s26, %d, %d" % (SLOT[2 * it + 3], SLOT[2 * it + 2]),
                        "s_mul_i32 s26, s26, 5120",
                        "s_sub_u32 s%d, s26, s%d" % (sKD, sKA),
                        "s_mov_b32 s%d, s26" % sKA,
                        "v_add_u32 v%d, s%d, v%d" % (aK1, sKD, aK1),
                        "v_add_u32 v%d, s%d, v%d" % (aK2, sKD, aK2)]
            H("A", 1, 0, pre + reads(None if last else 0, 0, 1, 2560))
            prio(3)
            pre = [] if last else ["v_add_u32 v%d, s%d, v%d" % (aV, sKD, aV)]
            H("B", 0, 1, pre + ["s_waitcnt lgkmcnt(0)"], do_qk=not last)
        A("s_nop 1")
        A("v_mfma_f32_32x32x16_bf16 %s, %s, %s, %s" % (v(O["B"], 16), v(V[1], 4), v(P["B"], 4), v(O["B"], 16)))
        A("v_mfma_f32_32x32x16_bf16 %s, %s, %s, %s" % (v(O["B"], 16), v(V[1] + 4, 4), v(P["B"] + 4, 4), v(O["B"], 16)))
        A("s_setprio 0")
        st(A)
        if timing: A("s_memtime s[98:99]")
    else:
        aK1, aK2, aV = 2, 3, 10
        Q1, Q2 = 4, 8
        S = [16, 32]; O = 48; P = [64, 72]
        K1 = [80, 84]; K2 = [88, 90]; V = [92, 100]
        T0, T1, T2, T3 = 108, 109, 110, 111
        sMASK = 24
        A("v_and_b32 v%d, 31, v%d" % (T2, vLane))
        A("v_lshrrev_b32 v%d, 5, v%d" % (T3, vLane))
        A("v_lshlrev_b32 v%d, 4, v%d" % (aK1, vLane))
        A("v_lshlrev_b32 v%d, 3, v%d" % (aK2, T2))
        A("v_mul_u32_u24 v%d, 320, v%d" % (aV, T3))
        A("v_lshl_add_u32 v%d, v%d, 4, v%d" % (aV, T2, aV))
        A("s_lshl_b32 s26, s%d, 10" % sW)
        A("s_add_u32 s26, s26, %d" % QA1)
        A("v_add_u32 v16, s26, v%d" % aK1)
        A("s_lshl_b32 s26, s%d, 8" % sW)
        A("s_add_u32 s26, s26, %d" % QA2)
        A("v_add_u32 v17, s26, v%d" % aK2)
        A("s_mov_b32 s%d, 0x000fffff" % sMASK)
        A("s_mov_b32 s%d, 0x000fffff" % (sMASK + 1))
        A("v_cmp_eq_u32 vcc, 20, v%d" % T2)
        A("v_mov_b32 v19, 0x3f803f80")
        A("v_mov_b32 v%d, 0" % T0)
        A("v_cndmask_b32 v%d, v%d, v19, vcc" % (T0, T0))
        for r in range(16):
            A("v_mov_b32 v%d, v%d" % (V[0] + r, T0))
        for r in range(16):
            A("v_mov_b32 v%d, 0" % (O + r))
        A("v_mov_b32 v%d, 0" % Q2); A("v_mov_b32 v%d, 0" % (Q2 + 1))
        A("s_cmp_ge_u32 s%d, 4" % sW)
        A("s_cselect_b64 vcc, -1, 0")
        base = {"K": 0, "V": 0}
        def rebase(kind, j):
            ad = SLOT[j >> 1] * 5120 + (j & 1) * 2560
            lo = base[kind]
            if not (0 <= ad - lo <= 65535 - 2560):
                nb = ad // 32768 * 32768
                for r in ((aK1, aK2) if kind == "K" else (aV,)):
                    d = nb - lo
                    if d >= 0: A("v_add_u32 v%d, %d, v%d" % (r, d, r))
                    else: A("v_subrev_u32 v%d, %d, v%d" % (r, -d, r))
                base[kind] = nb
            return ad - base[kind]
        def readK(j):
            o = rebase("K", j)
            A("ds_read_b128 %s, v%d offset:%d" % (v(K1[j & 1], 4), aK1, o))
            A("ds_read_b64 %s, v%d offset:%d" % (v(K2[j & 1], 2), aK2, o + 1024))
        def readV(j):
            o = rebase("V", j)
            A("s_mov_b64 exec, s[%d:%d]" % (sMASK, sMASK + 1))
            A("ds_read_b128 %s, v%d offset:%d" % (v(V[j & 1], 4), aV, o + 1280))
            A("ds_read_b128 %s, v%d offset:%d" % (v(V[j & 1] + 4, 4), aV, o + 1280 + 640))
            A("s_mov_b64 exec, -1")
        def qk(j):
            return ["v_mfma_f32_32x32x16_bf16 %s, %s, %s, 0" % (v(S[j & 1], 16), v(K1[j & 1], 4), v(Q1, 4)),
                    "v_mfma_f32_32x32x8_bf16 %s, %s, %s, %s" % (v(S[j & 1], 16), v(K2[j & 1], 2), v(Q2, 2), v(S[j & 1], 16))]
        def pv(j):
            return ["v_mfma_f32_32x32x16_bf16 %s, %s, %s, %s" % (v(O, 16), v(V[j & 1], 4), v(P[j & 1], 4), v(O, 16)),
                    "v_mfma_f32_32x32x16_bf16 %s, %s, %s, %s" % (v(O, 16), v(V[j & 1] + 4, 4), v(P[j & 1] + 4, 4), v(O, 16))]
        A("s_waitcnt lgkmcnt(0)")
        st(A)
        A("s_barrier")
        st(A)
        if timing: A("s_memtime s[96:97]")
        A("ds_read_b128 %s, v16" % v(Q1, 4))
        A("s_mov_b32 exec_hi, 0")
        A("ds_read_b64 %s, v17" % v(Q2, 2))
        A("s_mov_b64 exec, -1")
        readK(0); readK(1)
        srd(A, SRD_KV, 4, WS_KV, NKV)
        srd(A, SRD_X, 4, WS_O, NQ)
        srd(A, SRD_AT, 4, WS_AT, NQ)
        srd(A, SRD_G, 4, WS_G, 8192)
        srd(A, SRD_OUT, 92, 0, NQ)
        A("s_waitcnt lgkmcnt(2)")
        for x in qk(0): A(x)
        A("s_nop 7")
        A("s_nop 3")
        jB2, jB3 = 6, 22
        for j in range(64):
            if j == jB2:
                A("s_waitcnt vmcnt(0)")
            if j == jB2 or j == jB3 or (TAIL in (1, 3, 5) and j == JB4):
                A("s_barrier")
            if (PRIO == "toggle" or (PRIO.startswith("old") and j < int(PRIO[3:]))) and j % 4 == 0:
                A("s_setprio 0")
            if PRIO.startswith("old") and j == int(PRIO[3:]):
                lb = A.newlabel(name + "_p")
                A("s_setprio 0")
                A("s_cbranch_vccnz %s" % lb)
                A("s_setprio 1")
                A.label(lb)
            n = 0
            skip = ("halflds" in EXP and (j & 1)) or "nolds" in EXP
            if skip:
                rebase("K", min(j + 2, 63)); rebase("V", j)
            else:
                if j + 2 < 64:
                    readK(j + 2); n += 2
                readV(j); n += 2
            A("s_waitcnt lgkmcnt(%d)" % n)
            M = (qk(j + 1) if j + 1 < 64 else [None, None]) + (pv(j - 1) if j >= 1 else [None, None])
            if "nok2" in EXP: M[1] = None
            if "nopv" in EXP: M[2] = M[3] = None
            if "nopv1" in EXP: M[3] = None
            if "noqk" in EXP: M[0] = M[1] = None
            Sc, Pc = S[j & 1], P[j & 1]
            E = ["v_exp_f32 v%d, v%d" % (Sc + r, Sc + r) for r in range(16)]
            C = ["v_cvt_pk_bf16_f32 v%d, v%d, v%d" % (Pc + q, Sc + 2 * q, Sc + 2 * q + 1) for q in range(8)]
            for g in range(4):
                if M[g]: A(M[g])
                for r in range(4): A(E[4 * g + r])
                if g >= 1:
                    A(C[2 * (g - 1)]); A(C[2 * (g - 1) + 1])
            A(C[6]); A(C[7])
            if (PRIO == "toggle" or (PRIO.startswith("old") and j < int(PRIO[3:]))) and j % 4 == 0:
                lb = A.newlabel(name + "_p")
                A("s_cbranch_vccz %s" % lb)
                A("s_setprio 1")
                A.label(lb)
        if TAIL in (1, 3, 5) and JB4 == 64: A("s_barrier")
        A("s_waitcnt lgkmcnt(0)")
        A("s_nop 1")
        for x in pv(63): A(x)
        A("s_setprio 0")
        if TAIL in (1, 3, 5) and JB4 == 65: A("s_barrier")
        st(A)
        if timing: A("s_memtime s[98:99]")
    norm = name + "_norm"; fb = name + "_fb"; stl = name + "_st"
    if TWO:
        T = S["B"]; R = S["A"]
        AD0, AD1, ADt = 102, 103, 104
        sT = 23
        A("s_and_b32 s%d, s%d, 3" % (sT, sW))
        A("s_lshl_b32 s%d, s%d, 1" % (sT, sT))
        A("s_lshr_b32 s26, s%d, 2" % sW)
        A("s_add_u32 s%d, s%d, s26" % (sT, sT))
        A("s_mul_i32 s26, s%d, 3072" % sW)
        A("s_add_u32 s26, s26, %d" % XA)
        A("s_xor_b32 s27, s%d, 4" % sW)
        A("s_mul_i32 s27, s27, 3072")
        A("s_add_u32 s27, s27, %d" % XA)
        A("v_lshlrev_b32 v%d, 4, v%d" % (105, vLane))
        A("v_add_u32 v%d, s26, v%d" % (aK1, 105))
        A("v_add_u32 v%d, s27, v%d" % (aK2, 105))
    else:
        T = O; R = S[0]
        AD0, AD1, ADt = R + 6, R + 7, R + 14
        sT = sW
    A("s_mov_b32 s32, 0")
    A("v_and_b32 v%d, 7, v%d" % (AD0, vLane))
    A("v_lshlrev_b32 v%d, 4, v%d" % (AD0, AD0))
    A("v_bfe_u32 v%d, v%d, 4, 1" % (ADt, vLane))
    A("v_mul_u32_u24 v%d, %d, v%d" % (ADt, 5 * 256, ADt))
    A("v_add_u32 v%d, v%d, v%d" % (AD0, AD0, ADt))
    A("v_bfe_u32 v%d, v%d, 3, 1" % (ADt, vLane))
    A("v_lshl_add_u32 v%d, v%d, 9, v%d" % (AD1, ADt, AD0))
    A("v_lshl_add_u32 v%d, v%d, 8, v%d" % (AD1, T3, AD1))
    A("v_lshl_add_u32 v%d, v%d, 3, v%d" % (AD0, ADt, AD0))
    A("v_lshlrev_b32 v%d, 30, v%d" % (ADt, T3))
    A("v_add3_u32 v%d, v%d, v%d, %d" % (AD0, AD0, ADt, 0))
    A("s_lshr_b32 s27, s2, 1")
    A("s_mul_i32 s27, s27, 20480")
    A("s_and_b32 s26, s2, 1")
    A("s_lshl_b32 s26, s26, 7")
    A("s_add_u32 s27, s27, s26")
    A("s_mul_i32 s26, s%d, 2560" % sT)
    A("s_add_u32 s27, s27, s26")
    A("s_nop 7")
    A("s_nop 1")
    if TWO:
        A("s_cmp_ge_u32 s%d, 4" % sW)
        A("s_cbranch_scc1 %s_x1" % name)
        for k in range(3): A("ds_write_b128 v%d, %s offset:%d" % (aK1, v(O["B"] + 4 * k, 4), k * 1024))
        A("s_branch %s_x2" % name)
        A.label(name + "_x1")
        for k in range(3): A("ds_write_b128 v%d, %s offset:%d" % (aK1, v(O["A"] + 4 * k, 4), k * 1024))
        A.label(name + "_x2")
        A("s_waitcnt lgkmcnt(0)")
        A("s_barrier")
        for k in range(3): A("ds_read_b128 %s, v%d offset:%d" % (v(R + 4 * k, 4), aK2, k * 1024))
        A("s_cmp_ge_u32 s%d, 4" % sW)
        A("s_cbranch_scc1 %s_x3" % name)
        A("s_waitcnt lgkmcnt(0)")
        for r in range(12): A("v_add_f32 v%d, v%d, v%d" % (T + r, O["A"] + r, R + r))
        A("s_branch %s_x4" % name)
        A.label(name + "_x3")
        A("s_waitcnt lgkmcnt(0)")
        for r in range(12): A("v_add_f32 v%d, v%d, v%d" % (T + r, O["B"] + r, R + r))
        for r in range(4): A("v_mov_b32 v%d, v%d" % (Q1["A"] + r, Q1["B"] + r))
        for r in range(2): A("v_mov_b32 v%d, v%d" % (Q2["A"] + r, Q2["B"] + r))
        A.label(name + "_x4")
    A.label(norm)
    A("v_mov_b32 v%d, v%d" % (R + 0, T + 8))
    A("v_mov_b32 v%d, v%d" % (R + 1, T + 8))
    A("s_nop 1")
    A("v_permlane32_swap_b32 v%d, v%d" % (R + 0, R + 1))
    A("s_cmp_eq_u32 s32, 1")
    A("s_cbranch_scc1 %s" % stl)
    A("v_max3_f32 v%d, |v%d|, |v%d|, |v%d|" % (R + 2, T + 0, T + 1, T + 2))
    A("v_max3_f32 v%d, |v%d|, |v%d|, |v%d|" % (R + 3, T + 3, T + 4, T + 5))
    A("v_max3_f32 v%d, |v%d|, |v%d|, |v%d|" % (R + 4, T + 6, T + 7, T + 8))
    A("v_max3_f32 v%d, |v%d|, |v%d|, |v%d|" % (R + 5, T + 9, T + 10, T + 11))
    A("v_max3_f32 v%d, v%d, v%d, v%d" % (R + 2, R + 2, R + 3, R + 4))
    A("v_max_f32 v%d, v%d, v%d" % (R + 2, R + 2, R + 5))
    A("v_mov_b32 v%d, 0x%x" % (R + 3, (127 - 30) << 23))
    A("v_mov_b32 v%d, 0x%x" % (R + 4, (127 + 30) << 23))
    A("v_mov_b32 v%d, 0x%x" % (R + 5, (127 + 120) << 23))
    A("v_cmp_ge_f32 s[34:35], v%d, v%d" % (R + 1, R + 3))
    A("v_cmp_le_f32 s[36:37], v%d, v%d" % (R + 1, R + 4))
    A("v_cmp_le_f32 s[38:39], v%d, v%d" % (R + 2, R + 5))
    A("s_nop 1")
    A("s_and_b64 s[34:35], s[34:35], s[36:37]")
    A("s_and_b64 s[34:35], s[34:35], s[38:39]")
    if force_fallback:
        A("s_mov_b64 s[34:35], 0")
    if EXP: A("s_mov_b64 s[34:35], -1")
    A("s_cmp_eq_u64 s[34:35], -1")
    A("s_cbranch_scc0 %s" % fb)
    A.label(stl)
    A("v_rcp_f32 v%d, v%d" % (R + 1, R + 1))
    A("s_nop 0")
    for r in range(12):
        A("v_mul_f32 v%d, v%d, v%d" % (T + r, T + r, R + 1))
    for j in range(6):
        A("v_cvt_pk_bf16_f32 v%d, v%d, v%d" % (R + 8 + j, T + 2 * j, T + 2 * j + 1))
    A("buffer_store_dwordx4 %s, v%d, s[%d:%d], s27 offen%s" % (v(R + 8, 4), AD1, SRD_X, SRD_X + 3, XST))
    A("buffer_store_dwordx2 %s, v%d, s[%d:%d], s27 offen offset:1024%s" % (v(R + 12, 2), AD0, SRD_X, SRD_X + 3, XST))
    if XST2 is not None:
        A("buffer_store_dwordx4 %s, v%d, s[%d:%d], s27 offen%s" % (v(R + 8, 4), AD1, SRD_X, SRD_X + 3, XST2))
        A("buffer_store_dwordx2 %s, v%d, s[%d:%d], s27 offen offset:1024%s" % (v(R + 12, 2), AD0, SRD_X, SRD_X + 3, XST2))
    if TAIL == 5:
        A("s_lshl_b32 s26, s%d, 2" % sG8)
        A("s_lshr_b32 s28, s%d, 1" % sW)
        A("s_add_u32 s26, s26, s28")
        A("s_lshl_b32 s26, s26, 8")
        A("s_lshl_b32 s28, s%d, 3" % sJ8)
        A("s_add_u32 s26, s26, s28")
        A("s_and_b32 s28, s%d, 1" % sW)
        A("s_lshl_b32 s28, s28, 2")
        A("s_add_u32 s26, s26, s28")
        A("s_add_u32 s26, s26, 0x%x" % WS_XF)
        A("v_mov_b32 v%d, s26" % (R + 0))
        A("v_mov_b32 v%d, 1" % (R + 1))
        if XFWAIT: A("s_waitcnt vmcnt(0)")
        A("s_mov_b64 exec, 1")
        A("global_store_dword v%d, v%d, s[4:5] sc1" % (R + 0, R + 1))
        A("s_mov_b64 exec, -1")
    st(A)
    if TAIL in (1, 3, 5) and JB4 == 66: A("s_barrier")
    if TAIL in (0, 2):
        if OWAIT: A("s_waitcnt vmcnt(0)")
        A("s_barrier")
    st(A)
    sLH, sRP = 7, 20
    sL0, sN0 = 77, 76
    sLT = [80, 81, 82]; sNT = [83, 84, 85]; sTAU = [86, 87, 88]
    AV, GV, OMG = 64, 76, 80
    vAo, vC4, vPR = 2, 3, 10
    A("s_lshr_b32 s%d, s%d, 2" % (sLH, sW))
    A("s_and_b32 s%d, s%d, 3" % (sRP, sW))
    A("s_mul_i32 s%d, s%d, 80" % (sN0, sJ8))
    A("s_lshl_b32 s%d, s%d, 6" % (sL0, sG8))
    A("s_lshl_b32 s30, s%d, 5" % sLH)
    A("s_add_u32 s%d, s%d, s30" % (sL0, sL0))
    for m in range(3):
        A("s_add_u32 s%d, s%d, %d" % (sTAU[m], sRP, 4 * m))
        if m == 2:
            A("s_sub_u32 s30, s%d, 4" % sTAU[m])
            A("s_cmp_lt_u32 s%d, 10" % sTAU[m])
            A("s_cselect_b32 s%d, s%d, s30" % (sTAU[m], sTAU[m]))
        A("s_cmp_ge_u32 s%d, 5" % sTAU[m])
        A("s_cselect_b32 s%d, 1, 0" % sLT[m])
        A("s_mul_i32 s30, s%d, 5" % sLT[m])
        A("s_sub_u32 s%d, s%d, s30" % (sNT[m], sTAU[m]))
    A("v_lshrrev_b32 v%d, 4, v%d" % (vAo, vLane))
    A("v_and_b32 v%d, 15, v%d" % (vC4, vLane))
    A("v_mul_u32_u24 v8, 1280, v%d" % vC4)
    A("v_lshl_add_u32 v8, v%d, 3, v8" % vAo)
    A("v_lshlrev_b32 v%d, 14, v%d" % (vAo, vAo))
    A("v_lshl_add_u32 v%d, v%d, 1, v%d" % (vAo, vC4, vAo))
    A("v_lshlrev_b32 v%d, 2, v%d" % (vC4, vC4))
    for m in range(3):
        A("s_lshl_b32 s31, s%d, 4" % sLT[m])
        A("s_add_u32 s31, s31, s%d" % sL0)
        A("s_lshl_b32 s32, s%d, 4" % sNT[m])
        A("s_add_u32 s32, s32, s%d" % sN0)
        A("s_mul_i32 s33, s31, 1280")
        A("s_lshl_b32 s30, s32, 1")
        A("s_add_u32 s%d, s33, s30" % (36 + m))
        A("s_lshl_b32 s32, s32, 12")
        A("s_lshl_b32 s33, s31, 1")
        A("s_add_u32 s32, s32, s33")
        for r in range(4):
            A("s_add_u32 s30, s32, %d" % (r * 4096))
            A("buffer_load_short_d16_hi v%d, v%d, s[%d:%d], s30 offen sc1" % (AV + 4 * m + r, vAo, SRD_AT, SRD_AT + 3))
        A("s_lshl_b32 s33, s31, 2")
        A("buffer_load_dword v%d, v%d, s[%d:%d], s33 offen sc1" % (GV + m, vC4, SRD_G, SRD_G + 3))
    A("s_mul_i32 s30, s%d, 40960" % sLH)
    A("s_add_u32 s30, s30, %d" % PA)
    A("v_lshlrev_b32 v%d, 4, v%d" % (vPR, vLane))
    A("v_add_u32 v%d, s30, v%d" % (vPR, vPR))
    for m in range(3):
        A("s_lshl_b32 s30, s%d, 12" % sTAU[m])
        A("v_add_u32 v%d, s30, v%d" % (4 + m, vPR))
    A("s_waitcnt vmcnt(0)")
    for r in range(12):
        A("v_and_b32 v%d, 0xffff0000, v%d" % (AV + r, AV + r))
    TT = 84
    for m in range(3):
        A("v_sub_f32 v%d, 1.0, v%d" % (OMG + m, GV + m))
        for r in range(4):
            A("v_mul_f32 v%d, v%d, v%d" % (AV + 4 * m + r, AV + 4 * m + r, GV + m))
    for m in range(3):
        A("v_cvt_pk_bf16_f32 v%d, v%d, v%d" % (OMG + m, OMG + m, OMG + m))
        for j in range(2):
            A("v_cvt_pk_bf16_f32 v%d, v%d, v%d" % (TT + 2 * m + j, AV + 4 * m + 2 * j, AV + 4 * m + 2 * j + 1))
    for m in range(3):
        A("v_and_b32 v%d, 0xffff0000, v%d" % (OMG + m, OMG + m))
        for j in range(2):
            A("v_lshlrev_b32 v%d, 16, v%d" % (AV + 4 * m + 2 * j, TT + 2 * m + j))
            A("v_and_b32 v%d, 0xffff0000, v%d" % (AV + 4 * m + 2 * j + 1, TT + 2 * m + j))
    st(A)
    A("s_barrier")
    st(A)
    PR = 16
    for m in range(3):
        for src in range(4):
            A("ds_read_b128 %s, v%d offset:%d" % (v(PR + 16 * m + 4 * src, 4), 4 + m, src * 1024))
    for m in range(3):
        b = PR + 16 * m
        A("s_waitcnt lgkmcnt(%d)" % (8 - 4 * m))
        for r in range(4): A("v_add_f32 v%d, v%d, v%d" % (b + r, b + r, b + 4 + r))
        for r in range(4): A("v_add_f32 v%d, v%d, v%d" % (b + 8 + r, b + 8 + r, b + 12 + r))
        for r in range(4): A("v_add_f32 v%d, v%d, v%d" % (b + r, b + r, b + 8 + r))
        for j in range(2): A("v_cvt_pk_bf16_f32 v%d, v%d, v%d" % (b + 4 + j, b + 2 * j, b + 2 * j + 1))
        for j in range(2):
            A("v_lshlrev_b32 v%d, 16, v%d" % (b + 2 * j, b + 4 + j))
            A("v_and_b32 v%d, 0xffff0000, v%d" % (b + 2 * j + 1, b + 4 + j))
        for r in range(4): A("v_mul_f32 v%d, v%d, v%d" % (b + r, b + r, OMG + m))
        for j in range(2): A("v_cvt_pk_bf16_f32 v%d, v%d, v%d" % (b + 4 + j, b + 2 * j, b + 2 * j + 1))
        for j in range(2):
            A("v_lshlrev_b32 v%d, 16, v%d" % (b + 2 * j, b + 4 + j))
            A("v_and_b32 v%d, 0xffff0000, v%d" % (b + 2 * j + 1, b + 4 + j))
        for r in range(4): A("v_add_f32 v%d, v%d, v%d" % (b + r, b + r, AV + 4 * m + r))
        for j in range(2): A("v_cvt_pk_bf16_f32 v%d, v%d, v%d" % (b + 4 + j, b + 2 * j, b + 2 * j + 1))
        if m == 2:
            A("s_cmp_ge_u32 s%d, 2" % sRP)
            A("s_cbranch_scc1 %s_ns" % name)
        A("buffer_store_dwordx2 %s, v8, s[%d:%d], s%d offen%s" % (v(b + 4, 2), SRD_OUT, SRD_OUT + 3, 36 + m, OST))
    A.label(name + "_ns")
    st(A)
    dump()
    A("s_branch %s" % end)

    A.label(fb)
    FK1, FK2, FV = K1[0], K2[0], V[0]
    if TWO:
        FS, FM, FP = O["A"], O["B"], P["A"]
        Q1, Q2 = Q1["A"], Q2["A"]
    else:
        FS = S[1]; FM = 112
        FP = P[0]
    A("v_lshlrev_b32 v%d, 4, v%d" % (aK1, vLane))
    A("v_lshlrev_b32 v%d, 3, v%d" % (aK2, T2))
    A("v_mul_u32_u24 v%d, 320, v%d" % (aV, T3))
    A("v_lshl_add_u32 v%d, v%d, 4, v%d" % (aV, T2, aV))
    A("v_cmp_gt_u32 vcc, 20, v%d" % T2)
    A("v_mov_b32 v%d, 0x40000000" % (R + 0))
    A("s_nop 1")
    A("v_cndmask_b32 v%d, v%d, v%d, vcc" % (aV, R + 0, aV))
    A("v_mov_b32 v%d, 0xff800000" % (R + 0))
    A("s_mov_b32 s33, 0")
    f1 = name + "_f1"
    A.label(f1)
    A("buffer_load_dwordx4 %s, v%d, s[%d:%d], s33 offen" % (v(FK1, 4), aK1, SRD_KV, SRD_KV + 3))
    A("buffer_load_dwordx2 %s, v%d, s[%d:%d], s33 offen offset:1024" % (v(FK2, 2), aK2, SRD_KV, SRD_KV + 3))
    A("s_waitcnt vmcnt(0)")
    A("v_mfma_f32_32x32x16_bf16 %s, %s, %s, 0" % (v(FS, 16), v(FK1, 4), v(Q1, 4)))
    A("v_mfma_f32_32x32x8_bf16 %s, %s, %s, %s" % (v(FS, 16), v(FK2, 2), v(Q2, 2), v(FS, 16)))
    A("s_nop 7")
    A("s_nop 7")
    for r in range(0, 16, 2):
        A("v_max3_f32 v%d, v%d, v%d, v%d" % (R + 0, R + 0, FS + r, FS + r + 1))
    A("s_add_u32 s33, s33, 2560")
    A("s_cmp_lt_u32 s33, %d" % NKV)
    A("s_cbranch_scc1 %s" % f1)
    A("v_mov_b32 v%d, v%d" % (R + 1, R + 0))
    A("s_nop 1")
    A("v_permlane32_swap_b32 v%d, v%d" % (R + 0, R + 1))
    A("s_nop 1")
    A("v_max_f32 v%d, v%d, v%d" % (R + 0, R + 0, R + 1))
    for r in range(16):
        A("v_mul_f32 v%d, -1.0, v%d" % (FM + r, R + 0))
    for r in range(16):
        A("v_mov_b32 v%d, 0" % (T + r))
    A("s_mov_b32 s33, 0")
    f2 = name + "_f2"
    A.label(f2)
    A("buffer_load_dwordx4 %s, v%d, s[%d:%d], s33 offen" % (v(FK1, 4), aK1, SRD_KV, SRD_KV + 3))
    A("buffer_load_dwordx2 %s, v%d, s[%d:%d], s33 offen offset:1024" % (v(FK2, 2), aK2, SRD_KV, SRD_KV + 3))
    A("buffer_load_dwordx4 %s, v%d, s[%d:%d], s33 offen offset:1280" % (v(FV, 4), aV, SRD_KV, SRD_KV + 3))
    A("buffer_load_dwordx4 %s, v%d, s[%d:%d], s33 offen offset:1920" % (v(FV + 4, 4), aV, SRD_KV, SRD_KV + 3))
    A("s_waitcnt vmcnt(0)")
    A("v_mfma_f32_32x32x16_bf16 %s, %s, %s, %s" % (v(FS, 16), v(FK1, 4), v(Q1, 4), v(FM, 16)))
    A("v_mfma_f32_32x32x8_bf16 %s, %s, %s, %s" % (v(FS, 16), v(FK2, 2), v(Q2, 2), v(FS, 16)))
    for r in range(8):
        A("v_or_b32 v%d, v%d, v%d" % (FV + r, FV + r, T0))
    A("s_nop 7")
    A("s_nop 7")
    for r in range(16):
        A("v_exp_f32 v%d, v%d" % (FS + r, FS + r))
    A("s_nop 0")
    for j in range(8):
        A("v_cvt_pk_bf16_f32 v%d, v%d, v%d" % (FP + j, FS + 2 * j, FS + 2 * j + 1))
    A("s_nop 1")
    A("v_mfma_f32_32x32x16_bf16 %s, %s, %s, %s" % (v(T, 16), v(FV, 4), v(FP, 4), v(T, 16)))
    A("v_mfma_f32_32x32x16_bf16 %s, %s, %s, %s" % (v(T, 16), v(FV + 4, 4), v(FP + 4, 4), v(T, 16)))
    A("s_add_u32 s33, s33, 2560")
    A("s_cmp_lt_u32 s33, %d" % NKV)
    A("s_cbranch_scc1 %s" % f2)
    A("s_nop 7")
    A("s_nop 7")
    A("s_mov_b32 s32, 1")
    A("s_branch %s" % norm)

    A.label(name + "_proj")
    st.n = 1
    sP, sKQ, sL2 = 20, 21, 22
    vL16, vPW, vWL = 0, 3, 12
    ACC = [4, 56]; XF, WF = 16, 64
    A("s_sub_u32 s%d, s%d, 8" % (sP, sW))
    A("s_and_b32 s%d, s%d, 3" % (sKQ, sP))
    A("s_lshr_b32 s%d, s%d, 2" % (sL2, sP))
    A("v_lshlrev_b32 v%d, 4, v%d" % (vL16, vLane))
    A("s_waitcnt lgkmcnt(0)")
    srd(A, SRD_KV, 4, WS_KV, NKV)
    srd(A, SRD_X, 4, WS_O, NQ)
    srd(A, SRD_Q, 4, WS_Q, NQ)
    A("s_cmp_ge_u32 s3, 160")
    A("s_cselect_b32 s26, 1, 0")
    A("s_cmp_lt_u32 s3, 240")
    A("s_cselect_b32 s26, s26, 0")
    A("s_cmp_eq_u32 s26, 1")
    A("s_cbranch_scc1 p_go")
    omark(A, 2, SRD_X, None, 27, 26)
    A("s_lshl_b32 s26, s%d, 11" % sP)
    A("s_add_u32 s27, s27, s26")
    A("buffer_store_dwordx4 v[4:7], v2, s[%d:%d], s27 offen sc1" % (SRD_X, SRD_X + 3))
    A("s_cmp_lt_u32 s%d, 2" % sP)
    A("s_cbranch_scc0 p_np2")
    A("s_add_u32 s27, s27, %d" % (8 * 2048))
    A("buffer_store_dwordx4 v[4:7], v2, s[%d:%d], s27 offen sc1" % (SRD_X, SRD_X + 3))
    A.label("p_np2")
    if TAIL == 5:
        A("s_cmp_eq_u32 s%d, 2" % sP)
        A("s_cbranch_scc0 p_nx")
        xf_clear(A, 2, 4, 26, 27)
        A.label("p_nx")
    A("s_cmp_lt_u32 s3, 160")
    A("s_cbranch_scc0 p_go")
    A("s_cmp_eq_u32 s%d, 1" % sP)
    A("s_cbranch_scc0 p_nw")
    if KVF == 2:
        poll_flags(A, "p_pf1", 94, 26, off=128, n=1)
        if GOSPLIT:
            A("v_mov_b32 v2, %d" % (GO + 4))
            A("v_mov_b32 v3, 4")
            A("s_mov_b64 exec, 1")
            A("ds_write_b32 v2, v3")
            A("s_mov_b64 exec, -1")
        kv_addr(A, 27)
        poll_lines(A, "p_pf", 26, 2, 16)
    elif KVF: poll_flags(A, "p_pf", 94, 26, off=140, n=17)
    else: poll_flags(A, "p_pf", 94, 26)
    A("v_mov_b32 v2, %d" % GO)
    A("v_mov_b32 v3, 4")
    A("s_mov_b64 exec, 1")
    A("ds_write_b32 v2, v3")
    A("s_mov_b64 exec, -1")
    A.label("p_nw")
    A("v_mov_b32 v4, %d" % GO)
    A("v_lshlrev_b32 v5, 2, v%d" % vLane)
    A("v_add_u32 v5, %d, v5" % (FLG + 64))
    A("v_cmp_gt_u32 vcc, 8, v%d" % vLane)
    A("s_nop 1")
    A("v_cndmask_b32 v4, v4, v5, vcc")
    k1.flag_wait(A, 4, 0, "p_fk", vt=2)
    A.label("p_go")
    st(A)
    sRot, sU, sM = 23, 24, 25
    if ROT:
        A("s_lshl_b32 s%d, s%d, 2" % (sRot, sJ8))
        A("s_add_u32 s%d, s%d, s%d" % (sRot, sRot, sG8))
    else:
        A("s_mov_b32 s%d, 0" % sRot)
    def dma_unit(ubase):
        ent = [SLOT[u] if u >= 0 else 0 for u in range(ubase, min(ubase + 8, 32))]
        tc = sum(e << (5 * k) for k, e in enumerate(ent))
        A("s_mov_b32 s26, 0x%x" % (tc & 0xffffffff))
        A("s_mov_b32 s27, 0x%x" % (tc >> 32))
        A("s_mul_i32 s28, s%d, 5" % sP)
        A("s_lshr_b64 s[26:27], s[26:27], s28")
        A("s_and_b32 s26, s26, 31")
        A("s_mul_i32 s26, s26, 5120")
        A("s_add_u32 s28, s%d, %d" % (sP, ubase + 32))
        A("s_add_u32 s28, s28, s%d" % sRot)
        A("s_and_b32 s28, s28, 31")
        A("s_mul_i32 s28, s28, 5120")
        A("s_mov_b32 m0, s26")
        A("s_add_u32 s29, s28, 4096")
        for i in range(4):
            A("buffer_load_dwordx4 v%d, s[%d:%d], s28 offen offset:%d lds" % (vL16, SRD_KV, SRD_KV + 3, i * 1024))
        A("s_add_u32 m0, s26, 4096")
        A("s_nop 0")
        A("buffer_load_dwordx4 v%d, s[%d:%d], s29 offen lds" % (vL16, SRD_KV, SRD_KV + 3))
    if QKVL:
        assert not KVF and not QPOLL
        A("s_cmp_ge_u32 s3, 160")
        A("s_cselect_b32 s33, 1, 0")
        A("s_cmp_lt_u32 s3, 240")
        A("s_cselect_b32 s33, s33, 0")
        A("s_cmp_ge_u32 s%d, 4" % sP)
        A("s_cselect_b32 s33, s33, 0")
        A("v_mov_b32 v26, 0")
        A("v_mov_b32 v25, 0")
        A("s_cmp_eq_u32 s33, 1")
        A("s_cbranch_scc0 p_nk")
        A("global_load_dword v25, v26, s[94:95] offset:132 sc1")
        A("s_branch p_ne")
        A.label("p_nk")
    A("s_cmp_ge_u32 s%d, 4" % sP)
    A("s_cbranch_scc0 p_ne")
    dma_unit(-4)
    A.label("p_ne")
    if k1.QDIR and KVF == 2:
        A("s_lshr_b32 s26, s2, 3")
        A("s_mul_i32 s26, s26, 10")
        A("s_mul_i32 s27, s%d, 5" % sP)
        A("s_lshr_b32 s27, s27, 2")
        A("s_add_u32 s26, s26, s27")
        A("s_lshl_b32 s26, s26, 7")
    elif k1.QDIR:
        A("s_lshr_b32 s26, s2, 3")
        A("s_lshl_b32 s26, s26, 8")
        A("s_mul_i32 s27, s%d, 5" % sP)
        A("s_and_b32 s27, s27, 0xfc")
        A("s_add_u32 s26, s26, s27")
    else:
        A("s_lshr_b32 s26, s2, 1")
        A("s_lshl_b32 s26, s26, 8")
    A("s_add_u32 s26, s26, 0x%x" % WS_QF)
    A("v_min_u32 v2, %d, v%d" % (1 if k1.QDIR else 4, vLane))
    A("v_lshlrev_b32 v2, %d, v2" % (7 if KVF == 2 else 2))
    A("v_add_u32 v2, s26, v2")
    A("s_mov_b32 s26, 0")
    A.label("p_hl")
    A("global_load_dword v5, v2, s[4:5] sc1")
    A("s_waitcnt vmcnt(0)")
    A("v_cmp_eq_u32 vcc, 1, v5")
    A("s_add_u32 s26, s26, 1")
    A("s_nop 3")
    A("s_cmp_eq_u64 vcc, -1")
    A("s_cbranch_scc1 p_q")
    A("s_cmp_lt_u32 s26, %d" % SPIN)
    A("s_cbranch_scc0 p_q")
    A("s_sleep %d" % HSLEEP)
    A("s_branch p_hl")
    A.label("p_q")
    st(A)
    T2, T3 = 10, 11
    qa, qb, Q1, Q2, vC = 14, 15, 4, 8, 13
    A("v_lshrrev_b32 v%d, 5, v%d" % (T3, vLane))
    A("v_and_b32 v18, 7, v%d" % vLane)
    A("v_bfe_u32 v19, v%d, 3, 2" % vLane)
    A("v_mul_u32_u24 v%d, 1280, v18" % qa)
    A("v_mul_u32_u24 v19, 40, v19")
    A("v_add_u32 v%d, v%d, v19" % (qa, qa))
    A("v_lshlrev_b32 v%d, 30, v%d" % (qb, T3))
    A("v_add3_u32 v%d, v%d, v%d, 32" % (qb, qb, qa))
    A("v_lshl_add_u32 v%d, v%d, 4, v%d" % (qa, T3, qa))
    A("s_mul_i32 s27, s2, %d" % (8 * 1280))
    A("s_mul_i32 s26, s%d, 160" % sP)
    A("s_add_u32 s27, s27, s26")
    A("s_lshl_b32 s26, s%d, 10" % sP)
    A("s_add_u32 s26, s26, %d" % QA1)
    A("v_add_u32 v16, s26, v%d" % vL16)
    A("s_lshl_b32 s26, s%d, 8" % sP)
    A("s_add_u32 s26, s26, %d" % QA2)
    A("v_lshlrev_b32 v17, 3, v%d" % vLane)
    A("v_add_u32 v17, s26, v17")
    if k1.QDIR == 3:
        assert not QPOLL
        A("v_bfe_u32 v19, v%d, 3, 2" % vLane)
        A("v_mul_u32_u24 v19, 5, v19")
        A("v_lshlrev_b32 v18, 4, v18")
        def qaddr(d, e):
            A("v_lshrrev_b32 v%d, 1, v%d" % (d, e))
            A("v_lshl_add_u32 v%d, v%d, 11, v18" % (d, d))
            A("v_and_b32 v23, 1, v%d" % e)
            A("v_lshl_add_u32 v%d, v23, 3, v%d" % (d, d))
        A("v_lshl_add_u32 v24, v%d, 1, v19" % T3)
        qaddr(20, 24)
        A("v_add_u32 v24, 1, v24")
        qaddr(21, 24)
        A("v_add_u32 v24, 4, v19")
        qaddr(22, 24)
        A("v_lshlrev_b32 v23, 30, v%d" % T3)
        A("v_add_u32 v22, v23, v22")
        A("s_lshr_b32 s27, s2, 4")
        A("s_mul_i32 s27, s27, 163840")
        A("s_and_b32 s26, s2, 15")
        A("s_lshl_b32 s26, s26, 7")
        A("s_add_u32 s27, s27, s26")
        A("s_mul_i32 s26, s%d, 20480" % sP)
        A("s_add_u32 s27, s27, s26")
        A("buffer_load_dwordx2 %s, v20, s[%d:%d], s27 offen sc1" % (v(Q1, 2), SRD_Q, SRD_Q + 3))
        A("buffer_load_dwordx2 %s, v21, s[%d:%d], s27 offen sc1" % (v(Q1 + 2, 2), SRD_Q, SRD_Q + 3))
        A("buffer_load_dwordx2 %s, v22, s[%d:%d], s27 offen sc1" % (v(Q2, 2), SRD_Q, SRD_Q + 3))
    else:
        A("buffer_load_dwordx4 %s, v%d, s[%d:%d], s27 offen sc1" % (v(Q1, 4), qa, SRD_Q, SRD_Q + 3))
        A("buffer_load_dwordx2 %s, v%d, s[%d:%d], s27 offen sc1" % (v(Q2, 2), qb, SRD_Q, SRD_Q + 3))
    if QKVL:
        A("s_cmp_eq_u32 s33, 1")
        A("s_cbranch_scc0 p_nk2")
        A("s_mov_b32 s28, 0")
        A.label("p_pk")
        A("v_readfirstlane_b32 s26, v25")
        A("s_add_u32 s28, s28, 1")
        A("s_cmp_eq_u32 s26, 1")
        A("s_cbranch_scc1 p_nk3")
        A("s_cmp_lt_u32 s28, %d" % SPIN)
        A("s_cbranch_scc0 p_nk3")
        A("s_sleep %d" % FSLEEP)
        A("global_load_dword v25, v26, s[94:95] offset:132 sc1")
        A("s_waitcnt vmcnt(0)")
        A("s_branch p_pk")
        A.label("p_nk3")
        dma_unit(-4)
        A.label("p_nk2")
    sX0, sX1, sWF0, sWL = 34, 35, 36, 37
    A("s_lshl_b32 s30, s%d, 2" % sG8)
    A("s_lshl_b32 s31, s%d, 1" % sL2)
    A("s_add_u32 s30, s30, s31")
    A("s_mul_i32 s%d, s30, 20480" % sX0)
    A("s_mul_i32 s31, s%d, 5120" % sKQ)
    A("s_add_u32 s%d, s%d, s31" % (sX0, sX0))
    A("s_add_u32 s%d, s%d, 20480" % (sX1, sX0))
    A("s_add_u32 s38, s%d, 4096" % sX0)
    A("s_add_u32 s39, s%d, 4096" % sX1)
    A("s_mul_i32 s%d, s%d, 102400" % (sWF0, sJ8))
    A("s_mul_i32 s31, s%d, 5120" % sKQ)
    A("s_add_u32 s%d, s%d, s31" % (sWF0, sWF0))
    A("s_mul_i32 s31, s%d, 20480" % sL2)
    A("s_add_u32 s%d, s%d, s31" % (sWL, sWF0))
    A("s_add_u32 s%d, s%d, %d" % (sWL, sWL, 3 * 20480))
    A("s_mul_i32 s30, s%d, 40960" % sL2)
    A("s_lshl_b32 s31, s%d, 10" % sKQ)
    A("s_add_u32 s31, s31, s30")
    A("s_add_u32 s31, s31, %d" % PA)
    A("v_add_u32 v%d, s31, v%d" % (vPW, vL16))
    if TAIL in (3, 5): A("s_mov_b32 s89, s31")
    A("s_mul_i32 s31, s%d, 10240" % sKQ)
    A("v_add_u32 v%d, s31, v%d" % (vWL, vL16))
    if TAIL in (3, 5): A("s_mov_b32 s90, s31")
    srd(A, SRD_WF, 4, WS_WF, NWF)
    if QPOLL:
        A("s_mov_b32 s26, 0")
        A.label("p_ql")
        A("s_waitcnt vmcnt(0)")
        A("v_max3_u32 v%d, v%d, v%d, v%d" % (vC, Q1, Q1 + 1, Q1 + 2))
        A("v_max3_u32 v%d, v%d, v%d, v%d" % (vC, vC, Q1 + 3, Q2))
        A("v_max_u32 v%d, v%d, v%d" % (vC, vC, Q2 + 1))
        A("v_cmp_eq_u32 vcc, -1, v%d" % vC)
        A("s_add_u32 s26, s26, 1")
        A("s_nop 3")
        A("s_cmp_eq_u64 vcc, 0")
        A("s_cbranch_scc1 p_qd")
        A("s_cmp_lt_u32 s26, %d" % SPIN)
        A("s_cbranch_scc0 p_qd")
        if QSL2: A("s_sleep %d" % QSL2)
        A("buffer_load_dwordx4 %s, v%d, s[%d:%d], s27 offen sc1" % (v(Q1, 4), qa, SRD_Q, SRD_Q + 3))
        A("buffer_load_dwordx2 %s, v%d, s[%d:%d], s27 offen sc1" % (v(Q2, 2), qb, SRD_Q, SRD_Q + 3))
        A("s_branch p_ql")
        A.label("p_qd")
    A("s_waitcnt vmcnt(0)")
    A("ds_write_b128 v16, %s" % v(Q1, 4))
    A("s_mov_b32 exec_hi, 0")
    A("ds_write_b64 v17, %s" % v(Q2, 2))
    A("s_mov_b64 exec, -1")
    A("s_waitcnt lgkmcnt(0)")
    st(A)
    A("s_barrier")
    st(A)
    dma_unit(4)
    A("s_waitcnt vmcnt(0)")
    A("s_barrier")
    def arr():
        A("s_cmp_eq_u32 s%d, 4" % sP)
        A("s_cbranch_scc0 p_nd")
        arrive(A, "p_ar", 94, 30, 2, 256, vb=10)
        A.label("p_nd")
    if not k1.WOP2: arr()
    dma_unit(12)
    dma_unit(20)
    A("s_cmp_lt_u32 s%d, 4" % sP)
    A("s_cbranch_scc0 p_nl")
    dma_unit(28)
    A.label("p_nl")
    if k1.WOP2:
        SWO, LW = 64, 80
        A("s_cmp_eq_u32 s%d, %d" % (sP, WOP))
        A("s_cbranch_scc0 p_nwo")
        A("s_cmp_lt_u32 s3, 100")
        A("s_cbranch_scc0 p_nwo")
        A("s_load_dwordx2 s[82:83], s[0:1], 104")
        A("v_lshrrev_b32 v28, 4, v%d" % vLane)
        A("v_and_b32 v29, 15, v%d" % vLane)
        A("v_lshrrev_b32 v27, 1, v29")
        A("v_mul_u32_u24 v27, 20480, v27")
        A("v_lshl_add_u32 v27, v28, 8, v27")
        A("v_and_b32 v28, 1, v29")
        A("v_lshl_add_u32 v27, v28, 7, v27")
        A("s_mov_b32 s76, 0x05040100")
        A("s_mov_b32 s77, 0x07060302")
        A("s_mul_i32 s80, s3, 205")
        A("s_lshr_b32 s80, s80, 10")
        A("s_mul_i32 s81, s80, 5")
        A("s_sub_u32 s81, s3, s81")
        tab = [0, 8, 4, 12, 20, 28, 24, 32, 16, 36]
        tc = sum(t_ << (6 * i) for i, t_ in enumerate(tab))
        A("s_mov_b32 s90, 0x%x" % (tc & 0xffffffff))
        A("s_mov_b32 s91, 0x%x" % (tc >> 32))
        A("s_lshl_b32 s84, s80, 5")
        A("v_lshrrev_b32 v30, 4, v%d" % vLane)
        A("v_lshlrev_b32 v30, 3, v30")
        A("v_add_u32 v30, s84, v30")
        for (dst, add) in ((26, 0), (22, 4)):
            A("v_add_u32 v31, %d, v30" % add)
            A("v_mul_u32_u24 v23, 1639, v31")
            A("v_lshrrev_b32 v23, 16, v23")
            A("v_mul_u32_u24 v%d, 40, v23" % dst)
            A("v_sub_u32 v31, v31, v%d" % dst)
            A("v_lshrrev_b32 v31, 2, v31")
            A("v_mul_u32_u24 v31, 6, v31")
            A("v_lshrrev_b64 v[16:17], v31, s[90:91]")
            A("v_and_b32 v23, 63, v16")
            A("v_add_u32 v%d, v%d, v23" % (dst, dst))
            A("v_mul_u32_u24 v%d, 1280, v%d" % (dst, dst))
            A("v_lshl_add_u32 v%d, v29, 4, v%d" % (dst, dst))
        A("s_lshl_b32 s87, s81, 8")
        A("s_mul_i32 s84, s81, %d" % (8 * 20480))
        A("s_lshl_b32 s85, s80, 10")
        A("s_add_u32 s86, s84, s85")
        A("s_waitcnt lgkmcnt(0)")
        srd(A, SWO, 82, 0, 640 * 1280)
        for e in range(8):
            A("buffer_load_dwordx4 %s, v%d, s[%d:%d], s87 offen offset:%d" % (v(LW + 4 * e, 4), 22 if e >> 2 else 26, SWO, SWO + 3, (e & 3) * 1280))
        A("s_waitcnt vmcnt(0)")
        for cc in range(8):
            pk = 112 + 4 * (cc & 3)
            for m in range(4):
                A("v_perm_b32 v%d, v%d, v%d, s%d" % (pk + m, LW + 4 * (2 * m + 1) + (cc >> 1), LW + 4 * (2 * m) + (cc >> 1), 76 + (cc & 1)))
            A("buffer_store_dwordx4 %s, v27, s[%d:%d], s86 offen offset:%d sc1" % (v(pk, 4), SRD_WF, SRD_WF + 3, cc * 16))
            if cc == 3: A("s_nop 1")
        A.label("p_nwo")
    A("s_waitcnt vmcnt(0)")
    A("s_barrier")
    st(A)
    if k1.WOP2: arr()
    poll_flags(A, "p_dl", 94, 30, off=136, n=1)
    for t in range(3):
        A("s_add_u32 s30, s%d, %d" % (sWF0, t * 20480))
        A("s_add_u32 s31, s30, 4096")
        for i in range(5):
            d = WF + (t * 5 + i) * 4
            if i < 4: A("buffer_load_dwordx4 %s, v%d, s[%d:%d], s30 offen offset:%d" % (v(d, 4), vL16, SRD_WF, SRD_WF + 3, i * 1024))
            else: A("buffer_load_dwordx4 %s, v%d, s[%d:%d], s31 offen" % (v(d, 4), vL16, SRD_WF, SRD_WF + 3))
    if TWO: A("s_barrier")
    else: A("s_waitcnt vmcnt(0)")
    A("s_mul_i32 s30, s%d, 10240" % sKQ)
    A("s_mul_i32 s31, s%d, 5120" % sL2)
    A("s_add_u32 s30, s30, s31")
    A("s_mov_b32 m0, s30")
    A("s_nop 0")
    for i in range(4):
        A("buffer_load_dwordx4 v%d, s[%d:%d], s%d offen offset:%d lds" % (vL16, SRD_WF, SRD_WF + 3, sWL, i * 1024))
    A("s_add_u32 m0, s30, 4096")
    A("s_add_u32 s31, s%d, 4096" % sWL)
    A("buffer_load_dwordx4 v%d, s[%d:%d], s31 offen lds" % (vL16, SRD_WF, SRD_WF + 3))
    if TAIL:
        assert not TWO
        AC = [[4, 8], [12, 56], [60, 124]]
        AC += [[WF + 40, WF + 44], [WF + 48, WF + 52]]
        vWL2, vC = 2, 1
        sMiss = 33
        A("v_mov_b32 v%d, v%d" % (vWL2, vWL))
        for t in range(3):
            for lt2 in range(2):
                for r in range(4): A("v_mov_b32 v%d, 0" % (AC[t][lt2] + r))
        A("s_mov_b32 s%d, 0x3ff" % sMiss)
        A("s_mov_b32 s30, 0")
        A("s_waitcnt vmcnt(0)")
        A("s_barrier")
        st(A)
        A("s_setprio 3")
        pl = name + "_pl"
        def xload(n, pol=" sc1"):
            i, lt2 = divmod(n, 2)
            d = XF + (lt2 * 5 + i) * 4
            if i < 4: A("buffer_load_dwordx4 %s, v%d, s[%d:%d], s%d offen offset:%d%s" % (v(d, 4), vL16, SRD_X, SRD_X + 3, sX1 if lt2 else sX0, i * 1024, pol))
            else: A("buffer_load_dwordx4 %s, v%d, s[%d:%d], s%d offen%s" % (v(d, 4), vL16, SRD_X, SRD_X + 3, 39 if lt2 else 38, pol))
        def xcheck(n):
            i, lt2 = divmod(n, 2)
            d = XF + (lt2 * 5 + i) * 4
            c = 26 + 2 * (n & 1)
            A("v_max3_u32 v%d, v%d, v%d, v%d" % (vC, d, d + 1, d + 2))
            A("v_max_u32 v%d, v%d, v%d" % (vC, vC, d + 3))
            A("v_cmp_eq_u32 s[%d:%d], -1, v%d" % (c, c + 1, vC))
        def xuse(n):
            i, lt2 = divmod(n, 2)
            d = XF + (lt2 * 5 + i) * 4
            c = 26 + 2 * (n & 1)
            lb = A.newlabel(name + "_xm")
            A("s_cmp_eq_u64 s[%d:%d], 0" % (c, c + 1))
            A("s_cbranch_scc0 %s" % lb)
            for t in range(3):
                a = AC[t][lt2]
                A("v_mfma_f32_16x16x32_bf16 %s, %s, %s, %s" % (v(a, 4), v(WF + (t * 5 + i) * 4, 4), v(d, 4), v(a, 4)))
            A("s_bitset0_b32 s%d, %d" % (sMiss, n))
            A.label(lb)
        if TAIL in (3, 5):
            if TAIL == 3:
                A("v_and_b32 v2, 16, v%d" % vL16)
                A("v_lshlrev_b32 v2, 3, v2")
                A("v_and_b32 v3, 32, v%d" % vL16)
                A("v_mul_u32_u24 v3, 640, v3")
                A("v_add3_u32 v2, v2, v3, %d" % PROFF) if PROFF <= 64 else (A("v_add_u32 v2, v2, v3"), A("v_add_u32 v2, %d, v2" % PROFF))
            else:
                A("s_lshl_b32 s26, s%d, 2" % sG8)
                A("s_add_u32 s26, s26, s%d" % sKQ)
                A("s_lshl_b32 s26, s26, 8")
                A("s_lshl_b32 s27, s%d, 5" % sL2)
                A("s_add_u32 s26, s26, s27")
                A("s_add_u32 s26, s26, 0x%x" % WS_XF)
                A("v_lshrrev_b32 v2, 2, v%d" % vL16)
                A("v_and_b32 v2, 28, v2")
                A("v_add_u32 v2, s26, v2")
            def xuse2(n):
                lb = A.newlabel(name + "_xs")
                A("s_bitcmp1_b32 s%d, %d" % (sMiss, n))
                A("s_cbranch_scc0 %s" % lb)
                xuse(n)
                A.label(lb)
            def batch(lts):
                ns = [2 * i + lt2 for i in range(5) for lt2 in lts]
                for n in ns: xload(n)
                global_c = {}
                for k, n in enumerate(ns):
                    A("s_waitcnt vmcnt(%d)" % (len(ns) - 1 - k))
                    xcheck(n, k & 1)
                    if k: xuse2k(ns[k - 1], (k - 1) & 1)
                A("s_nop 3")
                xuse2k(ns[-1], (len(ns) - 1) & 1)
            def xcheck(n, par):
                i, lt2 = divmod(n, 2)
                d = XF + (lt2 * 5 + i) * 4
                c = 26 + 2 * par
                A("v_max3_u32 v%d, v%d, v%d, v%d" % (vC, d, d + 1, d + 2))
                A("v_max_u32 v%d, v%d, v%d" % (vC, vC, d + 3))
                A("v_cmp_eq_u32 s[%d:%d], -1, v%d" % (c, c + 1, vC))
            def xuse2k(n, par):
                i, lt2 = divmod(n, 2)
                d = XF + (lt2 * 5 + i) * 4
                c = 26 + 2 * par
                lb = A.newlabel(name + "_xm")
                A("s_bitcmp1_b32 s%d, %d" % (sMiss, n))
                A("s_cbranch_scc0 %s" % lb)
                A("s_cmp_eq_u64 s[%d:%d], 0" % (c, c + 1))
                A("s_cbranch_scc0 %s" % lb)
                for t in range(3):
                    a = AC[t][lt2]
                    A("v_mfma_f32_16x16x32_bf16 %s, %s, %s, %s" % (v(a, 4), v(WF + (t * 5 + i) * 4, 4), v(d, 4), v(a, 4)))
                A("s_bitset0_b32 s%d, %d" % (sMiss, n))
                A.label(lb)
            A.label(pl)
            if TAIL == 3: A("buffer_load_dword v3, v2, s[%d:%d], s%d offen sc1" % (SRD_X, SRD_X + 3, sX0))
            else: A("global_load_dword v3, v2, s[4:5] sc1")
            A("s_add_u32 s30, s30, 1")
            A("s_waitcnt vmcnt(0)")
            A("v_cmp_eq_u32 vcc, -1, v3" if TAIL == 3 else "v_cmp_ne_u32 vcc, 1, v3")
            A("s_cmp_lt_u32 s30, %d" % SPIN)
            A("s_cbranch_scc0 %s_d" % pl)
            A("s_nop 3")
            A("s_and_b32 s31, vcc_lo, %d" % (3 if TAIL == 3 else 15))
            A("s_cselect_b32 s31, 0, 0x155")
            A("s_and_b32 s32, vcc_lo, %d" % (12 if TAIL == 3 else 0xf0))
            A("s_cselect_b32 s32, 0, 0x2aa")
            A("s_or_b32 s31, s31, s32")
            A("s_and_b32 s31, s31, s%d" % sMiss)
            A("s_cbranch_scc1 %s_go" % pl)
            if TSLEEP: A("s_sleep %d" % TSLEEP)
            A("s_branch %s" % pl)
            A.label(pl + "_go")
            if timing:
                A("s_cmp_eq_u32 s%d, 0x3ff" % sMiss)
                A("s_cbranch_scc0 %s_nt" % pl)
                st(A, 5)
                A.label(pl + "_nt")
            A("s_and_b32 s32, s31, 0x155")
            A("s_cbranch_scc0 %s_b1" % pl)
            A("s_and_b32 s32, s31, 0x2aa")
            A("s_cbranch_scc0 %s_b0" % pl)
            batch([0, 1])
            A("s_branch %s_ck" % pl)
            A.label(pl + "_b0")
            batch([0])
            A("s_branch %s_ck" % pl)
            A.label(pl + "_b1")
            batch([1])
            A.label(pl + "_ck")
            A("s_cmp_eq_u32 s%d, 0" % sMiss)
            A("s_cbranch_scc0 %s" % pl)
        else:
            for n in range(10): xload(n, XLD1)
            for n in range(10):
                A("s_waitcnt vmcnt(%d)" % (9 - n))
                xcheck(n)
                if n: xuse(n - 1)
            A("s_nop 3")
            xuse(9)
            st(A, 5)
            if timing: A("s_mov_b32 s98, s%d" % sMiss)
            A.label(pl)
            A("s_cmp_eq_u32 s%d, 0" % sMiss)
            A("s_cbranch_scc1 %s_d" % pl)
            A("s_add_u32 s30, s30, 1")
            A("s_cmp_lt_u32 s30, %d" % SPIN)
            A("s_cbranch_scc0 %s_d" % pl)
            if TSLEEP: A("s_sleep %d" % TSLEEP)
            for lt2 in range(2):
                lg = A.newlabel(name + "_xg")
                A("s_and_b32 s31, s%d, 0x%x" % (sMiss, 0x155 << lt2))
                A("s_cbranch_scc0 %s" % lg)
                for i in range(5):
                    n = 2 * i + lt2
                    lb = A.newlabel(name + "_xl")
                    A("s_bitcmp1_b32 s%d, %d" % (sMiss, n))
                    A("s_cbranch_scc0 %s" % lb)
                    xload(n)
                    A.label(lb)
                A.label(lg)
            A("s_waitcnt vmcnt(0)")
            for lt2 in range(2):
                lg = A.newlabel(name + "_xg")
                A("s_and_b32 s31, s%d, 0x%x" % (sMiss, 0x155 << lt2))
                A("s_cbranch_scc0 %s" % lg)
                for i in range(5):
                    n = 2 * i + lt2
                    lb = A.newlabel(name + "_xl")
                    A("s_bitcmp1_b32 s%d, %d" % (sMiss, n))
                    A("s_cbranch_scc0 %s" % lb)
                    xcheck(n)
                    A("s_nop 3")
                    xuse(n)
                    A.label(lb)
                A.label(lg)
            A("s_branch %s" % pl)
        A.label(pl + "_d")
        st(A)
        if timing:
            A("s_mov_b32 s99, s30"); A("s_mov_b32 s96, 0")
        if TAIL in (3, 5):
            A("v_add_u32 v%d, s90, v%d" % (vWL2, vL16))
            A("v_add_u32 v%d, s89, v%d" % (vPW, vL16))
        def wfl(tp, slot):
            for i in range(5):
                A("ds_read_b128 %s, v%d offset:%d" % (v(WF + (slot * 5 + i) * 4, 4), vWL2, tp * 5120 + i * 1024))
        def pw(t):
            for lt2 in range(2):
                A("ds_write_b128 v%d, %s offset:%d" % (vPW, v(AC[t][lt2], 4), (lt2 * 5 + t) * 4096))
        def mm(t, slot):
            for i in range(5):
                for lt2 in range(2):
                    a = AC[t][lt2]
                    A("v_mfma_f32_16x16x32_bf16 %s, %s, %s, %s" % (v(a, 4), v(WF + (slot * 5 + i) * 4, 4), v(XF + (lt2 * 5 + i) * 4, 4), "0" if i == 0 else v(a, 4)))
        wfl(0, 0)
        wfl(1, 1)
        pw(0); pw(1); pw(2)
        A("s_waitcnt lgkmcnt(11)")
        mm(3, 0)
        A("s_waitcnt lgkmcnt(6)")
        mm(4, 1)
        pw(3)
        A("s_nop 7")
        pw(4)
        A("s_waitcnt lgkmcnt(0)")
        st(A)
        A("s_barrier")
        dump()
        A("s_branch %s" % end)
        return
    A("s_waitcnt vmcnt(0)")
    A("s_mov_b32 s30, 0")
    if TWO: A("s_barrier")
    A("s_barrier")
    st(A)
    A("s_setprio 3")
    pl = name + "_pl"
    A.label(pl)
    for i in range(5):
        for lt2 in range(2):
            d = XF + (lt2 * 5 + i) * 4
            if i < 4: A("buffer_load_dwordx4 %s, v%d, s[%d:%d], s%d offen offset:%d sc1" % (v(d, 4), vL16, SRD_X, SRD_X + 3, sX1 if lt2 else sX0, i * 1024))
            else: A("buffer_load_dwordx4 %s, v%d, s[%d:%d], s%d offen sc1" % (v(d, 4), vL16, SRD_X, SRD_X + 3, 39 if lt2 else 38))
    def mm(t, slot):
        out = []
        for i in range(5):
            for lt2 in range(2):
                a = ACC[t & 1] + 4 * lt2
                out.append("v_mfma_f32_16x16x32_bf16 %s, %s, %s, %s" % (v(a, 4), v(WF + (slot * 5 + i) * 4, 4), v(XF + (lt2 * 5 + i) * 4, 4), "0" if i == 0 else v(a, 4)))
        return out
    m0_ = mm(0, 0)
    vC = 13
    for n in range(10):
        i, lt2 = divmod(n, 2)
        d = XF + (lt2 * 5 + i) * 4
        A("s_waitcnt vmcnt(%d)" % (9 - n))
        A(m0_[n])
        if n == 0:
            A("v_max3_u32 v%d, v%d, v%d, v%d" % (vC, d, d + 1, d + 2))
            A("v_max_u32 v%d, v%d, v%d" % (vC, vC, d + 3))
        else:
            A("v_max3_u32 v%d, v%d, v%d, v%d" % (vC, vC, d, d + 1))
            A("v_max3_u32 v%d, v%d, v%d, v%d" % (vC, vC, d + 2, d + 3))
    A("v_cmp_eq_u32 vcc, -1, v%d" % vC)
    A("s_add_u32 s30, s30, 1")
    A("s_nop 3")
    A("s_cmp_eq_u64 vcc, 0")
    A("s_cbranch_scc1 %s_d" % pl)
    A("s_cmp_lt_u32 s30, %d" % SPIN)
    A("s_cbranch_scc1 %s" % pl)
    A.label(pl + "_d")
    st(A)
    def wfl(tp, slot):
        for i in range(5):
            A("ds_read_b128 %s, v%d offset:%d" % (v(WF + (slot * 5 + i) * 4, 4), vWL, tp * 5120 + i * 1024))
    def pw(t):
        for lt2 in range(2):
            A("ds_write_b128 v%d, %s offset:%d" % (vPW, v(ACC[t & 1] + 4 * lt2, 4), (lt2 * 5 + t) * 4096))
    wfl(0, 0)
    for x in mm(1, 1): A(x)
    pw(0)
    wfl(1, 1)
    for x in mm(2, 2): A(x)
    pw(1)
    A("s_waitcnt lgkmcnt(9)")
    for x in mm(3, 0): A(x)
    pw(2)
    A("s_waitcnt lgkmcnt(4)")
    for x in mm(4, 1): A(x)
    pw(3)
    A("s_nop 7")
    pw(4)
    A("s_waitcnt lgkmcnt(0)")
    st(A)
    A("s_barrier")
    dump()
    A("s_branch %s" % end)

def gen_kf(name, force_fallback=False, timing=False):
    k1.FUSED = True; k1.SC1 = " sc1"; k1.OPERM = True
    k1.HOOK["WS_QF"] = WS_QF
    k1.HOOK["KVF"] = KVF
    if KVF == 2:
        assert k1.QDIR
        k1.HOOK["kv_idle"] = kv_idle2
    if QPOLL == 3:
        k1.HOOK["kv_idle"] = kv_idle3; k1.HOOK["ssm_mark"] = ssm_mark; k1.HOOK["ssm_marked"] = ssm_marked
    k1.HOOK["q_idle"] = q_idle2 if KVF == 2 else q_idle; k1.HOOK["kv_tail"] = kv_tail; k1.HOOK["q_stored"] = (lambda *a: None) if QPOLL else q_stored
    A = Asm()
    end = name + "_end"
    ph2 = name + "_ph2"
    A("s_cmp_ge_u32 s2, 256")
    A("s_cbranch_scc1 %s" % end)
    if timing: A("s_memrealtime s[100:101]")
    k1.rts_clear(A)
    if QFIRST:
        A("s_add_u32 s2, s2, 160")
        A("s_and_b32 s2, s2, 255")
    A("v_lshrrev_b32 v2, 6, v0")
    A("v_and_b32 v%d, 63, v0" % vLane)
    A("v_readfirstlane_b32 s%d, v2" % sW)
    A("s_cmp_lt_u32 s2, 160")
    A("s_cbranch_scc1 k1_ssm")
    A("s_cmp_lt_u32 s2, 240")
    A("s_cbranch_scc1 k1_q")
    k1.role_kv(A, ph2, False)
    A.label("k1_q")
    k1.role_q(A, ph2, False)
    A.label("k1_ssm")
    k1.role_ssm3(A, ph2, False)
    A.label(ph2)
    k1.rts_dump(A)
    phase2(A, name, end, force_fallback, timing)
    A.label(end)
    A("s_endpgm")
    return dict(name=name, grid=256, block=1024, lds=163840, body=A.text(), vgpr=128)

NAME = "gated_mix__ssm_conv_s4__grouped_kv_mqa__prompt"
if __name__ == "__main__":
    k1.QINIT = 2
    for a in sys.argv[2:]:
        if "=" in a:
            k_, v_ = a.split("=")
            if k_.startswith("K1_"): setattr(k1, k_[3:], eval(v_))
            else: globals()[k_] = eval(v_)
    kk = gen_kf(NAME + "_kernel", force_fallback="fb" in sys.argv, timing="t" in sys.argv)
    hdr = open("cdna_kernels/%s.s.ref" % NAME).read().split("; Override launch")[0]
    open(sys.argv[1], "w").write(hdr + compose([kk]))
```
